```python
import torch

def _softmax(x, axis=-1):
    return torch.softmax(x, dim=axis)
def _gelu(x):
    return torch.nn.functional.gelu(x, approximate="tanh")
def _silu(x):
    return torch.nn.functional.silu(x)
def _sigmoid(x):
    return torch.sigmoid(x)
def _layernorm(x, axis=-1, eps=1e-5):
    m = x.mean(dim=axis, keepdim=True)
    v = x.var(dim=axis, keepdim=True, unbiased=False)
    return (x - m) / torch.sqrt(v + eps)
def _scatter_add(tgt, idx, src, axis=0):
    return tgt.clone().index_add_(axis, idx, src)
def _segment_sum(src, seg, n):
    out = torch.zeros((n,) + src.shape[1:], dtype=src.dtype)
    return out.index_add_(0, seg, src)
def _pad(x, pw):
    flat = tuple(v for pair in reversed(pw) for v in pair)
    return torch.nn.functional.pad(x, flat)

kernel_name = 'gated_mix__linear_attn_block__grouped_kv_mqa__prompt'

def setup_inputs():

    _w = (lambda a: (lambda t: t.to(torch.bfloat16) if t.is_floating_point() else t)(torch.as_tensor(a)))
    def _A_setup():
        B, S, D = 1, 2048, 512
        return {
            "x": _w((lambda *s: torch.randn(*s, dtype=torch.bfloat16) * 0.05)(B, S, D)),
            "wqkv": _w((lambda *s: torch.randn(*s, dtype=torch.bfloat16) * 1.6)(D, 3 * D)),
            "wo": _w((lambda *s: torch.randn(*s, dtype=torch.bfloat16) * 0.05)(D, D)),
        }
    _A_in = _A_setup()

    def _B_setup():
        B, S, D, H = 1, 2048, 512, 32
        Dh = D // H
        return {
            "x": _w((lambda *s: torch.randn(*s, dtype=torch.bfloat16) * 0.05)(B, S, D)),
            "wq": _w((lambda *s: torch.randn(*s, dtype=torch.bfloat16) * 1.6)(D, H * Dh)),
            "wk": _w((lambda *s: torch.randn(*s, dtype=torch.bfloat16) * 1.6)(D, Dh)),
            "wv": _w((lambda *s: torch.randn(*s, dtype=torch.bfloat16) * 0.05)(D, Dh)),
            "wo": _w((lambda *s: torch.randn(*s, dtype=torch.bfloat16) * 0.05)(H * Dh, D)),
        }
    _B_in = _B_setup()

    return {
        "A_x": _A_in["x"],
        "A_wqkv": _A_in["wqkv"],
        "A_wo": _A_in["wo"],
        "B_x": _B_in["x"],
        "B_wq": _B_in["wq"],
        "B_wk": _B_in["wk"],
        "B_wv": _B_in["wv"],
        "B_wo": _B_in["wo"],
        "gate_w": _w((lambda *s: torch.randn(*s, dtype=torch.bfloat16) * 0.05)(512) * 16.0),
    }

def reference(A_x, A_wqkv, A_wo, B_x, B_wq, B_wk, B_wv, B_wo, gate_w):
    def _A_ref(x, wqkv, wo):
        B, S, D = x.shape
        H = 32; Dh = D // H
        qkv = (lambda x, *d: x.permute(*d))((x @ wqkv).reshape(B, S, 3, H, Dh), 2, 0, 3, 1, 4)
        q, k, v = qkv[0], qkv[1], qkv[2]
        phi = lambda t: torch.where(t > 0, t + 1, torch.exp(t)) + 1e-6
        pq, pk = phi(q), phi(k)
        kv = torch.einsum("bhsd,bhse->bhde", pk, v)
        z = torch.einsum("bhsd->bhd", pk)
        num = torch.einsum("bhqd,bhde->bhqe", pq, kv)
        den = torch.einsum("bhqd,bhd->bhq", pq, z)[..., None] + 1e-6
        o = num / den
        return (lambda x, *d: x.permute(*d))(o, 0, 2, 1, 3).reshape(B, S, D) @ wo

    def _B_ref(x, wq, wk, wv, wo):
        B, S, D = x.shape
        H = 32
        Dh = D // H
        q = (lambda x, *d: x.permute(*d))((x @ wq).reshape(B, S, H, Dh), 0, 2, 1, 3)
        k = x @ wk
        v = x @ wv
        scores = torch.einsum("bhqd,bkd->bhqk", q, k) * (Dh ** -0.5)
        p = _softmax(scores, axis=-1)
        o = torch.einsum("bhqk,bkd->bhqd", p, v)
        return (lambda x, *d: x.permute(*d))(o, 0, 2, 1, 3).reshape(B, S, H * Dh) @ wo

    x = A_x
    g = _sigmoid((x * gate_w).sum(-1, keepdims=True))
    a = _A_ref(x, A_wqkv, A_wo)
    b = _B_ref(x, B_wq, B_wk, B_wv, B_wo)
    return g * a + (1 - g) * b
```

```python
import sys, math, struct

NAME = "gated_mix__linear_attn_block__grouped_kv_mqa__prompt"

def f2u(x):
    return struct.unpack("<I", struct.pack("<f", x))[0]

class Asm:
    def __init__(self):
        self.lines = []
        self.vm = []
    def __call__(self, s):
        for l in s.split("\n"):
            l = l.strip()
            if l:
                self.lines.append("    " + l)
    def label(self, l):
        self.lines.append(l + ":")
    def c(self, s):
        self.lines.append("    ; " + s)
    def vmem(self, s, tag):
        self(s)
        self.vm.append(tag)
    def vm_n(self, tag):
        idx = max(i for i, t in enumerate(self.vm) if t == tag)
        return len(self.vm) - 1 - idx
    def wait_vm(self, tag, extra=""):
        if tag is None:
            n = 0
            self.vm = []
        else:
            n = self.vm_n(tag)
            self.vm = self.vm[len(self.vm) - n:] if n else []
        assert n <= 63
        self(f"s_waitcnt vmcnt({n}) {extra}".strip())
    def text(self):
        return "\n".join(self.lines) + "\n"

def vr(a, n=1):
    return f"v{a}" if n == 1 else f"v[{a}:{a+n-1}]"
def sr(a, n=1):
    return f"s{a}" if n == 1 else f"s[{a}:{a+n-1}]"

WS_KV = 0x000000
WS_KVP = 0x040000
WS_OA = 0x200000
WS_OB = 0x400000
WS_DBG1 = 0x600000
WS_DBG2 = 0x800000
WS_TS = 0xA00000
WS_SIZE = 0x1000000
C_KV = 0
C_A = 4
C_O = 128
L_X = 0
L_RING = 65536
L_MISC = 131072
LDS_SIZE = 163840

LOG2E = 1.4426950408889634
QSCALE = 0.25 * LOG2E

S_X, S_W, S_WK, S_WV, S_GW, S_WOA, S_WOB, S_OUT, S_DBG, S_WS = 8, 12, 16, 20, 24, 28, 32, 36, 40, 44
S_WAVE, S_QB, S_HG, S_RT, S_HH = 48, 49, 50, 51, 52
S_T0, S_T1, S_T2, S_T3 = 53, 54, 55, 56
S_WOFF, S_WSTR8, S_WSTR32, S_M0W = 57, 58, 59, 60
S_SEG = 61
S_SPIN = 62
S_VMASK = 64
S_HMASK = 66
S_SAVE = 68
S_LOG2E, S_EPS, S_QS, S_ONES = 70, 71, 72, 73
S_TS = 74
S_KA = 76

def gen(opts):
    ts = opts.get("ts", False)
    dbg = opts.get("dbg", False)
    a = Asm()

    def stamp(i):
        if not ts: return
        a(f"""s_memrealtime {sr(S_TS,2)}
              s_waitcnt lgkmcnt(0)
              v_writelane_b32 v255, {sr(S_TS)}, {i}""")

    V_TID, V_LANE = 0, 1
    V_T0, V_T1, V_T2, V_T3 = 2, 3, 4, 5
    V_XOFF, V_WOFF = 6, 7
    V_XA0, V_XA1, V_WA = 8, 9, 10
    V_L16 = 11
    V_G = 12
    V_IDX = 13
    V_KA, V_VA = 14, 15
    V_QF, V_PQ = 16, 20
    V_ACCQ, V_ACCKV = 24, 40
    V_FB = [56, 80]
    V_GX, V_GW, V_GACC = 104, 136, 168
    V_KVS = 184
    V_S = [24, 40]
    V_O = 56
    V_C = 72
    V_KF = 88
    V_VF = [92, 100]
    V_KP = 108
    V_OA = 172
    V_FA = 108
    V_FBB = 140
    V_OUT = [188, 204]
    V_WO = 220
    V_WOA0, V_WOA1 = 252, 253

    a.label(f"{NAME}_kernel")
    a(f"""s_cmp_ge_u32 s2, 256
          s_cbranch_scc1 L_end
          s_load_dwordx16 {sr(S_KA,16)}, s[0:1], 0
          s_load_dwordx8 {sr(S_KA+16,8)}, s[0:1], 64
          v_and_b32 {vr(V_LANE)}, 63, v0
          v_lshrrev_b32 {vr(V_T0)}, 6, v0
          s_and_b32 {sr(S_HG)}, s2, 7
          v_readfirstlane_b32 {sr(S_WAVE)}, {vr(V_T0)}
          s_lshr_b32 {sr(S_QB)}, s2, 3""")
    stamp(0)
    a(f"""v_lshrrev_b32 {vr(V_T0)}, 4, {vr(V_LANE)}
          v_xor_b32 {vr(V_T0)}, {vr(V_T0)}, {vr(V_LANE)}
          v_and_b32 {vr(V_T0)}, 3, {vr(V_T0)}
          v_lshlrev_b32 {vr(V_T0)}, 4, {vr(V_T0)}
          v_lshrrev_b32 {vr(V_T1)}, 2, {vr(V_LANE)}
          v_lshl_add_u32 {vr(V_XOFF)}, {vr(V_T1)}, 10, {vr(V_T0)}
          v_lshlrev_b32 {vr(V_L16)}, 4, {vr(V_LANE)}
          s_and_b32 {sr(S_RT)}, {sr(S_WAVE)}, 1
          s_lshr_b32 {sr(S_HH)}, {sr(S_WAVE)}, 1
          s_mov_b32 {sr(S_X+2)}, 0x200000
          s_mov_b32 {sr(S_X+3)}, 0x20000
          s_lshl_b32 {sr(S_T0)}, {sr(S_QB)}, 16
          s_lshl_b32 {sr(S_T1)}, {sr(S_WAVE)}, 7
          s_add_u32 {sr(S_T0)}, {sr(S_T0)}, {sr(S_T1)}
          s_and_b32 {sr(S_T2)}, {sr(S_HG)}, 1
          s_lshl_b32 {sr(S_T3)}, {sr(S_T2)}, 15
          s_add_u32 {sr(S_T0)}, {sr(S_T0)}, {sr(S_T3)}
          s_lshl_b32 {sr(S_T1)}, {sr(S_WAVE)}, 13
          s_lshl_b32 {sr(S_T3)}, {sr(S_T2)}, 11
          s_add_u32 {sr(S_T1)}, {sr(S_T1)}, {sr(S_T3)}
          s_waitcnt lgkmcnt(0)
          s_mov_b32 {sr(S_X)}, {sr(S_KA+0)}
          s_mov_b32 {sr(S_X+1)}, {sr(S_KA+1)}""")
    def xdma(half):
        for rg in range(2):
            for kb in range(2):
                a(f"s_add_u32 m0, {sr(S_T1)}, {L_X + kb*4096 + rg*1024}")
                a(f"s_add_u32 {sr(S_T2)}, {sr(S_T0)}, {rg*16384 + kb*64}")
                a.vmem(f"buffer_load_dwordx4 {vr(V_XOFF)}, {sr(S_X,4)}, {sr(S_T2)} offen lds", f"x{half}")
    xdma(0)
    def srd(s, ka, size):
        a(f"""s_mov_b32 {sr(s)}, {sr(S_KA+ka)}
              s_mov_b32 {sr(s+1)}, {sr(S_KA+ka+1)}
              s_mov_b32 {sr(s+2)}, {hex(size)}
              s_mov_b32 {sr(s+3)}, 0x20000""")
    srd(S_WK, 10, 16384)
    srd(S_WV, 12, 16384)
    a(f"""s_cmp_ge_u32 {sr(S_HG)}, 2
          s_cbranch_scc1 L_noprod0
          s_lshl_b32 {sr(S_T2)}, {sr(S_WAVE)}, 11
          s_lshl_b32 {sr(S_T3)}, {sr(S_WAVE)}, 12
          s_add_u32 m0, {sr(S_T3)}, {L_MISC}
          s_nop 0
          buffer_load_dwordx4 {vr(V_L16)}, {sr(S_WK,4)}, {sr(S_T2)} offen lds
          buffer_load_dwordx4 {vr(V_L16)}, {sr(S_WK,4)}, {sr(S_T2)} offen offset:1024 lds
          s_add_u32 m0, {sr(S_T3)}, {L_MISC + 2048}
          s_nop 0
          buffer_load_dwordx4 {vr(V_L16)}, {sr(S_WV,4)}, {sr(S_T2)} offen lds
          buffer_load_dwordx4 {vr(V_L16)}, {sr(S_WV,4)}, {sr(S_T2)} offen offset:1024 lds""")
    a.label("L_noprod0")
    a.vm.append("wkv")
    a(f"""s_xor_b32 {sr(S_T0)}, {sr(S_T0)}, 0x8000
          s_xor_b32 {sr(S_T1)}, {sr(S_T1)}, 0x800""")
    xdma(1)
    a(f"""s_cmp_eq_u32 {sr(S_HH)}, 0
          s_cselect_b32 {sr(S_W)}, {sr(S_KA+8)}, {sr(S_KA+2)}
          s_cselect_b32 {sr(S_W+1)}, {sr(S_KA+9)}, {sr(S_KA+3)}
          s_cselect_b32 {sr(S_T0)}, 1, 3
          s_lshl_b32 {sr(S_W+2)}, {sr(S_T0)}, 19
          s_mov_b32 {sr(S_W+3)}, 0x20000
          s_lshl_b32 {sr(S_T0)}, {sr(S_T0)}, 10
          s_lshl_b32 {sr(S_WSTR8)}, {sr(S_T0)}, 3
          s_lshl_b32 {sr(S_WSTR32)}, {sr(S_T0)}, 5
          s_max_u32 {sr(S_T1)}, {sr(S_HH)}, 1
          s_sub_u32 {sr(S_T1)}, {sr(S_T1)}, 1
          s_lshl_b32 {sr(S_T1)}, {sr(S_T1)}, 10
          s_lshl_b32 {sr(S_T2)}, {sr(S_HG)}, 7
          s_add_u32 {sr(S_WOFF)}, {sr(S_T1)}, {sr(S_T2)}
          s_mul_i32 {sr(S_T1)}, {sr(S_RT)}, {sr(S_WSTR8)}
          s_lshl_b32 {sr(S_T1)}, {sr(S_T1)}, 1
          s_add_u32 {sr(S_WOFF)}, {sr(S_WOFF)}, {sr(S_T1)}
          s_lshl_b32 {sr(S_M0W)}, {sr(S_WAVE)}, 11
          s_and_b32 {sr(S_T1)}, {sr(S_HH)}, 1
          s_lshl_b32 {sr(S_T1)}, {sr(S_T1)}, 1
          v_lshrrev_b32 {vr(V_T0)}, 1, {vr(V_LANE)}
          v_and_b32 {vr(V_T0)}, 3, {vr(V_T0)}
          v_bfe_u32 {vr(V_T1)}, {vr(V_LANE)}, 4, 1
          v_xor_b32 {vr(V_T0)}, {vr(V_T0)}, {vr(V_T1)}
          v_xor_b32 {vr(V_T0)}, {sr(S_T1)}, {vr(V_T0)}
          v_lshlrev_b32 {vr(V_T0)}, 5, {vr(V_T0)}
          v_and_b32 {vr(V_T1)}, 1, {vr(V_LANE)}
          v_lshl_add_u32 {vr(V_T0)}, {vr(V_T1)}, 4, {vr(V_T0)}
          v_lshrrev_b32 {vr(V_T1)}, 3, {vr(V_LANE)}
          v_mul_u32_u24 {vr(V_T1)}, {sr(S_T0)}, {vr(V_T1)}
          v_add_u32 {vr(V_WOFF)}, {vr(V_T0)}, {vr(V_T1)}""")
    def wdma(c):
        slot = c % 4
        a(f"s_add_u32 m0, {sr(S_M0W)}, {L_RING + slot*16384}")
        a(f"s_add_u32 {sr(S_T2)}, {sr(S_WOFF)}, {sr(S_WSTR8)}")
        a.vmem(f"buffer_load_dwordx4 {vr(V_WOFF)}, {sr(S_W,4)}, {sr(S_WOFF)} offen lds", f"w{c}")
        a(f"s_add_u32 m0, {sr(S_M0W)}, {L_RING + slot*16384 + 1024}")
        a(f"s_add_u32 {sr(S_WOFF)}, {sr(S_WOFF)}, {sr(S_WSTR32)}")
        a.vmem(f"buffer_load_dwordx4 {vr(V_WOFF)}, {sr(S_W,4)}, {sr(S_T2)} offen lds", f"w{c}")
    wdma(0)
    srd(S_GW, 16, 1024)
    for i in range(32):
        a(f"v_mov_b32 {vr(V_GW+i)}, 0")
    a(f"""v_lshrrev_b32 {vr(V_T0)}, 1, {vr(V_LANE)}
          s_lshl_b32 {sr(S_T2)}, {sr(S_HH)}, 8
          s_mov_b32 exec_lo, 1
          s_mov_b32 exec_hi, 1""")
    for s in range(8):
        a.vmem(f"buffer_load_dwordx4 {vr(V_GW+4*s,4)}, {vr(V_T0)}, {sr(S_GW,4)}, {sr(S_T2)} offen offset:{s*32}", "gw")
    a("s_mov_b64 exec, -1")
    for c in (1, 2, 3):
        wdma(c)
    srd(S_WOA, 4, 0x80000)
    srd(S_WOB, 14, 0x80000)
    srd(S_OUT, 18, 0x200000)
    srd(S_DBG, 20, 256)
    srd(S_WS, 22, WS_SIZE)
    a(f"""s_mov_b32 {sr(S_VMASK)}, 0xffff
          s_mov_b32 {sr(S_VMASK+1)}, 0xffff
          s_cmp_eq_u32 {sr(S_RT)}, 0
          s_cselect_b32 {sr(S_HMASK)}, -1, 0
          s_cselect_b32 {sr(S_HMASK+1)}, 0, -1
          s_mov_b32 {sr(S_LOG2E)}, {hex(f2u(LOG2E))}
          s_mov_b32 {sr(S_EPS)}, {hex(f2u(1e-6))}
          s_mov_b32 {sr(S_QS)}, {hex(f2u(QSCALE))}
          s_mov_b32 {sr(S_ONES)}, 0x3f803f80""")
    a(f"""v_and_b32 {vr(V_T0)}, 31, {vr(V_LANE)}
          v_lshrrev_b32 {vr(V_T1)}, 5, {vr(V_LANE)}
          v_bfe_u32 {vr(V_T2)}, {vr(V_LANE)}, 2, 2
          v_xor_b32 {vr(V_T2)}, {vr(V_T2)}, {vr(V_T1)}
          v_lshlrev_b32 {vr(V_T2)}, 4, {vr(V_T2)}
          v_lshl_add_u32 {vr(V_T3)}, {vr(V_T0)}, 6, {vr(V_T2)}
          s_lshl_b32 {sr(S_T0)}, {sr(S_RT)}, 11
          v_add_u32 {vr(V_XA0)}, {sr(S_T0)}, {vr(V_T3)}
          v_xor_b32 {vr(V_XA1)}, 32, {vr(V_XA0)}""")
    a(f"""v_bfe_u32 {vr(V_T0)}, {vr(V_LANE)}, 4, 1
          v_bfe_u32 {vr(V_T2)}, {vr(V_LANE)}, 3, 2
          v_xor_b32 {vr(V_T2)}, {sr(S_HH)}, {vr(V_T2)}
          v_lshlrev_b32 {vr(V_T2)}, 5, {vr(V_T2)}
          v_lshl_add_u32 {vr(V_T2)}, {vr(V_T0)}, 12, {vr(V_T2)}
          v_lshl_add_u32 {vr(V_T2)}, {vr(V_T1)}, 10, {vr(V_T2)}
          v_bfe_u32 {vr(V_T0)}, {vr(V_LANE)}, 2, 2
          v_lshl_add_u32 {vr(V_T2)}, {vr(V_T0)}, 7, {vr(V_T2)}
          v_and_b32 {vr(V_T0)}, 3, {vr(V_LANE)}
          v_lshl_add_u32 {vr(V_T2)}, {vr(V_T0)}, 3, {vr(V_T2)}
          v_add_u32 {vr(V_WA)}, {L_RING}, {vr(V_T2)}""")
    for i in range(8):
        a(f"v_mov_b32 {vr(V_ACCQ+i)}, 0")
        a(f"v_mov_b32 {vr(V_ACCQ+8+i)}, {sr(S_EPS)}")
    a(f"""v_mov_b32 {vr(V_T0)}, {sr(S_EPS)}
          v_cndmask_b32 {vr(V_T0)}, 0, {vr(V_T0)}, {sr(S_VMASK,2)}""")
    for i in range(16):
        a(f"v_mov_b32 {vr(V_ACCKV+i)}, {vr(V_T0)}")
    a(f"v_mov_b32 {vr(V_IDX)}, 0xdddd")

    PX, PW, PD = V_FB[0], V_FB[0] + 16, V_GACC
    a(f"""s_cmp_ge_u32 {sr(S_HG)}, 2
          s_cbranch_scc1 L_noprod1""")
    a(f"""s_lshl_b32 {sr(S_T0)}, {sr(S_HG)}, 11
          s_lshl_b32 {sr(S_T1)}, {sr(S_WAVE)}, 13
          s_add_u32 {sr(S_T0)}, {sr(S_T0)}, {sr(S_T1)}
          v_add_u32 {vr(V_T0)}, {sr(S_T0)}, {vr(V_T3)}
          v_xor_b32 {vr(V_T1)}, 32, {vr(V_T0)}""")
    a(f"""v_bfe_u32 {vr(V_T2)}, {vr(V_LANE)}, 4, 1
          v_lshlrev_b32 {vr(V_T2)}, 11, {vr(V_T2)}
          v_lshrrev_b32 {vr(V_T3)}, 5, {vr(V_LANE)}
          v_lshl_add_u32 {vr(V_T2)}, {vr(V_T3)}, 8, {vr(V_T2)}
          v_and_b32 {vr(V_T3)}, 15, {vr(V_LANE)}
          v_lshl_add_u32 {vr(V_T2)}, {vr(V_T3)}, 3, {vr(V_T2)}
          s_lshl_b32 {sr(S_T1)}, {sr(S_WAVE)}, 12
          s_add_u32 {sr(S_T1)}, {sr(S_T1)}, {L_MISC}
          v_add_u32 {vr(V_T2)}, {sr(S_T1)}, {vr(V_T2)}""")
    n = a.vm_n("wkv")
    a(f"s_waitcnt vmcnt({n})")
    for s in range(4):
        a(f"ds_read_b128 {vr(PX+4*s,4)}, {vr(V_T0 if s%2==0 else V_T1)} offset:{L_X + (s//2)*4096}")
        a(f"ds_read_b64_tr_b16 {vr(PW+4*s,2)}, {vr(V_T2)} offset:{s*512}")
        a(f"ds_read_b64_tr_b16 {vr(PW+4*s+2,2)}, {vr(V_T2)} offset:{s*512+128}")
    for s in range(4):
        a(f"s_waitcnt lgkmcnt({9-3*s})")
        a(f"v_mfma_f32_32x32x16_bf16 {vr(PD,16)}, {vr(PW+4*s,4)}, {vr(PX+4*s,4)}, {'0' if s==0 else vr(PD,16)}")
    a(f"""v_add_u32 {vr(V_T0)}, {sr(S_T1)}, {vr(V_L16)}
          v_lshlrev_b32 {vr(V_T1)}, 2, {vr(V_LANE)}
          v_add_u32 {vr(V_T1)}, {sr(S_T1)}, {vr(V_T1)}
          s_nop 9
          ds_write_b128 {vr(V_T0)}, {vr(PD,4)}
          ds_write_b128 {vr(V_T0)}, {vr(PD+4,4)} offset:1024""")
    for r in range(8):
        a(f"ds_write_b32 {vr(V_T1)}, {vr(PD+8+r)} offset:{2048 + r*256}")
    a(f"""s_waitcnt lgkmcnt(0)
          s_barrier
          s_cmp_ge_u32 {sr(S_WAVE)}, 2
          s_cbranch_scc1 L_noprod1""")
    a(f"""v_bfe_u32 {vr(V_T0)}, {vr(V_LANE)}, 3, 1
          v_lshlrev_b32 {vr(V_T0)}, 10, {vr(V_T0)}
          v_and_b32 {vr(V_T1)}, 3, {vr(V_LANE)}
          v_lshl_add_u32 {vr(V_T0)}, {vr(V_T1)}, 8, {vr(V_T0)}
          v_bfe_u32 {vr(V_T1)}, {vr(V_LANE)}, 2, 1
          v_lshl_add_u32 {vr(V_T0)}, {vr(V_T1)}, 7, {vr(V_T0)}
          v_lshrrev_b32 {vr(V_T1)}, 4, {vr(V_LANE)}
          v_lshl_add_u32 {vr(V_T0)}, {vr(V_T1)}, 5, {vr(V_T0)}
          v_add_u32 {vr(V_T0)}, {L_MISC + 2048}, {vr(V_T0)}
          v_add_u32 {vr(V_T1)}, 16, {vr(V_T0)}
          v_add_u32 {vr(V_T2)}, {L_MISC}, {vr(V_L16)}
          v_add_u32 {vr(V_T3)}, 1024, {vr(V_T2)}
          s_cmp_eq_u32 {sr(S_WAVE)}, 0
          s_cselect_b64 {sr(S_SAVE,2)}, -1, 0
          s_nop 0
          v_cndmask_b32 {vr(V_T0)}, {vr(V_T0)}, {vr(V_T2)}, {sr(S_SAVE,2)}
          v_cndmask_b32 {vr(V_T1)}, {vr(V_T1)}, {vr(V_T3)}, {sr(S_SAVE,2)}""")
    R = V_KVS
    for j in range(8):
        a(f"ds_read_b128 {vr(R+8*j,4)}, {vr(V_T0)} offset:{j*4096}")
        if j == 7: a("s_waitcnt lgkmcnt(8)")
        a(f"ds_read_b128 {vr(R+8*j+4,4)}, {vr(V_T1)} offset:{j*4096}")
    for j in range(1, 8):
        a(f"s_waitcnt lgkmcnt({min(2*(7-j), 8)})")
        for i in range(8):
            a(f"v_add_f32 {vr(R+i)}, {vr(R+i)}, {vr(R+8*j+i)}")
    for i in range(4):
        a(f"v_cvt_pk_bf16_f32 {vr(R+8+i)}, {vr(R+2*i)}, {vr(R+2*i+1)}")
    a(f"""s_lshl_b32 {sr(S_T0)}, {sr(S_QB)}, 12
          s_lshl_b32 {sr(S_T1)}, {sr(S_HG)}, 11
          s_add_u32 {sr(S_T0)}, {sr(S_T0)}, {sr(S_T1)}
          s_lshl_b32 {sr(S_T1)}, {sr(S_WAVE)}, 10
          s_add_u32 {sr(S_T0)}, {sr(S_T0)}, {sr(S_T1)}
          buffer_store_dwordx4 {vr(R+8,4)}, {vr(V_L16)}, {sr(S_WS,4)}, {sr(S_T0)} offen offset:{WS_KV} sc1""")
    a.label("L_noprod1")
    stamp(1)

    C_SIG = opts.get("c_sig", 2)
    def reads(c):
        fb = V_FB[c % 2]
        slot = c % 4
        a(f"ds_read_b128 {vr(fb,4)}, {vr(V_XA0)} offset:{L_X + c*4096}")
        for T in range(2):
            for u in range(2):
                a(f"ds_read_b64_tr_b16 {vr(fb+8+T*8+2*u,2)}, {vr(V_WA)} offset:{slot*16384 + T*8192 + u*512}")
        a(f"ds_read_b128 {vr(fb+4,4)}, {vr(V_XA1)} offset:{L_X + c*4096}")
        for T in range(2):
            for u in range(2):
                a(f"ds_read_b64_tr_b16 {vr(fb+8+T*8+4+2*u,2)}, {vr(V_WA)} offset:{slot*16384 + T*8192 + 2048 + u*512}")
    def mfmas(c):
        fb = V_FB[c % 2]
        for p in range(2):
            a(f"v_mfma_f32_32x32x16_bf16 {vr(V_ACCQ,16)}, {vr(fb+8+4*p,4)}, {vr(fb+4*p,4)}, {vr(V_ACCQ,16)}")
            a(f"v_mfma_f32_32x32x16_bf16 {vr(V_ACCKV,16)}, {vr(fb+4*p,4)}, {vr(fb+16+4*p,4)}, {vr(V_ACCKV,16)}")
    for c in range(16):
        if c == C_SIG:
            later = [t for t in a.vm if t.startswith("w") and t != "wkv" and int(t[1:]) >= 4]
            n = len(later)
            a.vm = a.vm[len(a.vm) - n:] if n else []
            a(f"s_waitcnt vmcnt({n}) lgkmcnt(0)")
        elif f"w{c}" in a.vm:
            a.wait_vm(f"w{c}" if c != 0 else "gw", "lgkmcnt(0)")
        else:
            a("s_waitcnt lgkmcnt(0)")
        a("s_barrier")
        if c == C_SIG:
            a(f"""s_cmp_ge_u32 {sr(S_HG)}, 2
                  s_cbranch_scc1 L_nosig
                  s_cmp_lg_u32 {sr(S_WAVE)}, 7
                  s_cbranch_scc1 L_nosig
                  v_mov_b32 {vr(V_T0)}, 1
                  v_mov_b32 {vr(V_T1)}, {C_KV}
                  s_mov_b64 exec, 1
                  buffer_atomic_add {vr(V_T0)}, {vr(V_T1)}, {sr(S_DBG,4)}, 0 offen sc1
                  s_mov_b64 exec, -1""")
            a.label("L_nosig")
        if c >= 1 and c + 3 <= 15:
            wdma(c + 3)
        if c == 0:
            a(f"""s_lshl_b32 {sr(S_T0)}, {sr(S_HH)}, 14
                  v_add_u32 {vr(V_T0)}, {sr(S_T0)}, {vr(V_XA0)}
                  v_add_u32 {vr(V_T1)}, {sr(S_T0)}, {vr(V_XA1)}""")
            for s in range(8):
                a(f"ds_read_b128 {vr(V_GX+4*s,4)}, {vr(V_T0 if s%2==0 else V_T1)} offset:{L_X + (s//2)*4096}")
            a("s_waitcnt lgkmcnt(4)")
        reads(c)
        if c == 0:
            for s in range(8):
                if s == 4: a("s_waitcnt lgkmcnt(10)")
                a(f"v_mfma_f32_32x32x16_bf16 {vr(V_GACC,16)}, {vr(V_GW+4*s,4)}, {vr(V_GX+4*s,4)}, {'0' if s==0 else vr(V_GACC,16)}")
        else:
            mfmas(c - 1)
    a("s_waitcnt lgkmcnt(0)")
    mfmas(15)
    stamp(2)

    def poll(lbl, off_s, off_imm, target, mask=None):
        a(f"""s_cmp_lg_u32 {sr(S_WAVE)}, 0
              s_cbranch_scc1 {lbl}_done
              v_mov_b32 {vr(V_T1)}, {off_imm}
              s_mov_b32 {sr(S_SPIN)}, 0
              s_mov_b64 exec, 1""")
        a.label(f"{lbl}_loop")
        a(f"""buffer_load_dword {vr(V_T0)}, {vr(V_T1)}, {sr(S_DBG,4)}, {off_s} offen sc1
              s_waitcnt vmcnt(0)
              v_readfirstlane_b32 {sr(S_T0)}, {vr(V_T0)}
              s_add_u32 {sr(S_SPIN)}, {sr(S_SPIN)}, 1""")
        if mask is not None:
            a(f"s_and_b32 {sr(S_T0)}, {sr(S_T0)}, {hex(mask)}")
        a(f"""s_cmp_ge_u32 {sr(S_T0)}, {target}
              s_cbranch_scc1 {lbl}_ok
              s_cmp_lt_u32 {sr(S_SPIN)}, 200000
              s_cbranch_scc1 {lbl}_loop""")
        a.label(f"{lbl}_ok")
        a("s_mov_b64 exec, -1")
        a.label(f"{lbl}_done")

    def signal(lbl, off_s, off_imm, val, wave=7):
        a(f"""s_cmp_lg_u32 {sr(S_WAVE)}, {wave}
              s_cbranch_scc1 {lbl}
              v_mov_b32 {vr(V_T0)}, {val}
              v_mov_b32 {vr(V_T1)}, {off_imm}
              s_mov_b64 exec, 1
              buffer_atomic_add {vr(V_T0)}, {vr(V_T1)}, {sr(S_DBG,4)}, {off_s} offen sc1
              s_mov_b64 exec, -1""")
        a.label(lbl)

    poll("L_pkv", "0", C_KV, 64)
    a("s_barrier")
    stamp(3)
    a.vm = []
    a(f"s_lshl_b32 {sr(S_T0)}, {sr(S_WAVE)}, 10")
    for j in range(16):
        if j: a(f"s_add_u32 {sr(S_T0)}, {sr(S_T0)}, 8192")
        a.vmem(f"buffer_load_dwordx4 {vr(V_KVS+4*j,4)}, {vr(V_L16)}, {sr(S_WS,4)}, {sr(S_T0)} offen offset:{WS_KV} sc1", f"kv{j//4}")
    E = V_FB[0]
    def phi(src, n, tmp):
        for i in range(n):
            a(f"v_mul_f32 {vr(tmp+i)}, {sr(S_LOG2E)}, {vr(src+i)}")
        for i in range(n):
            a(f"v_exp_f32 {vr(tmp+i)}, {vr(tmp+i)} clamp")
        for i in range(n):
            a(f"v_max_f32 {vr(src+i)}, {sr(S_EPS)}, {vr(src+i)}")
        for i in range(n):
            a(f"v_add_f32 {vr(src+i)}, {vr(src+i)}, {vr(tmp+i)}")
    a(f"s_mov_b64 exec, {sr(S_VMASK,2)}")
    phi(V_ACCKV, 16, E)
    a("s_mov_b64 exec, -1")
    F, G = E + 16, E + 24
    for i in range(8):
        a(f"v_cvt_pk_bf16_f32 {vr(F+i)}, {vr(V_ACCKV+2*i)}, {vr(V_ACCKV+2*i+1)}")
    a(f"v_mov_b32 {vr(V_T0)}, {sr(S_ONES)}")
    for i in range(8):
        a(f"v_cndmask_b32 {vr(G+i)}, {vr(F+i)}, {vr(V_T0)}, {sr(S_VMASK,2)}")
    a("s_nop 1")
    D3 = V_GX + 16
    a(f"v_mfma_f32_32x32x16_bf16 {vr(D3,16)}, {vr(F,4)}, {vr(G,4)}, 0")
    a(f"v_mfma_f32_32x32x16_bf16 {vr(D3,16)}, {vr(F+4,4)}, {vr(G+4,4)}, {vr(D3,16)}")
    for i in range(8):
        a(f"v_mul_f32 {vr(V_ACCQ+i)}, {sr(S_QS)}, {vr(V_ACCQ+i)}")
    for i in range(4):
        a(f"v_cvt_pk_bf16_f32 {vr(V_QF+i)}, {vr(V_ACCQ+2*i)}, {vr(V_ACCQ+2*i+1)}")
    phi(V_ACCQ + 8, 8, E)
    for i in range(4):
        a(f"v_cvt_pk_bf16_f32 {vr(V_PQ+i)}, {vr(V_ACCQ+8+2*i)}, {vr(V_ACCQ+8+2*i+1)}")
    a(f"""s_lshl_b32 {sr(S_T0)}, {sr(S_WAVE)}, 11
          s_add_u32 {sr(S_T0)}, {sr(S_T0)}, {L_MISC}
          v_add_u32 {vr(V_T0)}, {sr(S_T0)}, {vr(V_L16)}
          ds_write_b128 {vr(V_T0)}, {vr(D3,4)}
          ds_write_b128 {vr(V_T0)}, {vr(D3+4,4)} offset:1024
          s_lshl_b32 {sr(S_T1)}, {sr(S_WAVE)}, 8
          s_add_u32 {sr(S_T1)}, {sr(S_T1)}, {L_MISC + 16384}
          v_lshlrev_b32 {vr(V_T1)}, 2, {vr(V_LANE)}
          v_add_u32 {vr(V_T1)}, {sr(S_T1)}, {vr(V_T1)}
          ds_write_b32 {vr(V_T1)}, {vr(V_GACC)}""")
    V_KW0, V_KW1 = V_XA0, V_XA1
    a(f"""s_lshl_b32 {sr(S_T2)}, {sr(S_WAVE)}, 10
          v_add_u32 {vr(V_KW0)}, {sr(S_T2)}, {vr(V_L16)}
          v_add_u32 {vr(V_KW1)}, 0x10000, {vr(V_KW0)}""")
    a.wait_vm("kv0")
    for j in range(4):
        a(f"ds_write_b128 {vr(V_KW0)}, {vr(V_KVS+4*j,4)} offset:{j*8192}")
    a(f"""v_mov_b32 {vr(V_KA)}, {vr(V_L16)}
          v_lshrrev_b32 {vr(V_T2)}, 5, {vr(V_LANE)}
          v_and_b32 {vr(V_T3)}, 15, {vr(V_LANE)}
          v_lshlrev_b32 {vr(V_T3)}, 4, {vr(V_T3)}
          v_lshl_add_u32 {vr(V_VA)}, {vr(V_T2)}, 8, {vr(V_T3)}
          v_xor_b32 {vr(V_T0)}, 0x800, {vr(V_T0)}
          v_and_b32 {vr(V_T1)}, 31, {vr(V_LANE)}
          v_lshlrev_b32 {vr(V_T1)}, 2, {vr(V_T1)}
          s_lshl_b32 {sr(S_T1)}, {sr(S_RT)}, 8
          s_add_u32 {sr(S_T1)}, {sr(S_T1)}, {L_MISC + 16384}
          v_add_u32 {vr(V_T1)}, {sr(S_T1)}, {vr(V_T1)}""")
    for i in range(16):
        a(f"v_mov_b32 {vr(V_VF[0]+i)}, {sr(S_ONES)}")
    a("""s_waitcnt lgkmcnt(0)
         s_barrier""")
    stamp(4)
    a(f"""ds_read_b128 {vr(V_KF,4)}, {vr(V_KA)}
          s_mov_b64 exec, {sr(S_VMASK,2)}
          ds_read_b128 {vr(V_VF[0],4)}, {vr(V_VA)} offset:1024
          ds_read_b128 {vr(V_VF[0]+4,4)}, {vr(V_VA)} offset:1536
          ds_read_b128 {vr(V_VF[1],4)}, {vr(V_VA)} offset:{2048+1024}
          ds_read_b128 {vr(V_VF[1]+4,4)}, {vr(V_VA)} offset:{2048+1536}
          s_mov_b64 exec, -1""")
    X2 = V_GW
    a(f"""ds_read_b128 {vr(X2,4)}, {vr(V_T0)}
          ds_read_b128 {vr(X2+4,4)}, {vr(V_T0)} offset:1024""")
    for j in range(4):
        a(f"ds_read_b32 {vr(X2+8+j)}, {vr(V_T1)} offset:{j*512}")
    a(f"""s_waitcnt lgkmcnt(10)
          v_mfma_f32_32x32x16_bf16 {vr(V_S[0],16)}, {vr(V_KF,4)}, {vr(V_QF,4)}, 0
          s_waitcnt lgkmcnt(0)""")
    for i in range(8):
        a(f"v_add_f32 {vr(X2+i)}, {vr(X2+i)}, {vr(D3+i)}")
    for i in range(4):
        a(f"v_cvt_pk_bf16_f32 {vr(X2+12+i)}, {vr(X2+2*i)}, {vr(X2+2*i+1)}")
    a(f"""s_lshl_b32 {sr(S_T0)}, {sr(S_HG)}, 2
          s_add_u32 {sr(S_T0)}, {sr(S_T0)}, {sr(S_HH)}
          s_lshl_b32 {sr(S_T0)}, {sr(S_T0)}, 15
          s_lshl_b32 {sr(S_T1)}, {sr(S_QB)}, 10
          s_add_u32 {sr(S_T1)}, {sr(S_T1)}, {sr(S_T0)}
          s_add_u32 {sr(S_T1)}, {sr(S_T1)}, {WS_KVP}
          s_mov_b64 exec, {sr(S_HMASK,2)}""")
    a.vmem(f"buffer_store_dwordx4 {vr(X2+12,4)}, {vr(V_L16)}, {sr(S_WS,4)}, {sr(S_T1)} offen sc1", "kvp")
    a("s_mov_b64 exec, -1")
    a(f"""v_add_f32 {vr(X2+8)}, {vr(X2+8)}, {vr(X2+9)}
          v_add_f32 {vr(X2+10)}, {vr(X2+10)}, {vr(X2+11)}
          v_add_f32 {vr(X2+8)}, {vr(X2+8)}, {vr(X2+10)}
          v_mul_f32 {vr(X2+8)}, {sr(S_LOG2E)}, {vr(X2+8)}
          v_exp_f32 {vr(X2+8)}, -{vr(X2+8)}
          s_nop 0
          v_add_f32 {vr(X2+8)}, 1.0, {vr(X2+8)}
          v_rcp_f32 {vr(V_G)}, {vr(X2+8)}""")
    if dbg:
        a(f"""s_lshl_b32 {sr(S_T0)}, {sr(S_QB)}, 1
              s_add_u32 {sr(S_T0)}, {sr(S_T0)}, {sr(S_RT)}
              s_lshl_b32 {sr(S_T0)}, {sr(S_T0)}, 5
              s_lshl_b32 {sr(S_T1)}, {sr(S_HG)}, 2
              s_add_u32 {sr(S_T0)}, {sr(S_T0)}, {sr(S_T1)}
              s_add_u32 {sr(S_T0)}, {sr(S_T0)}, {sr(S_HH)}
              s_lshl_b32 {sr(S_T0)}, {sr(S_T0)}, 10
              s_add_u32 {sr(S_T1)}, {sr(S_T0)}, {WS_DBG1}""")
        a.vmem(f"buffer_store_dwordx4 {vr(V_QF,4)}, {vr(V_L16)}, {sr(S_WS,4)}, {sr(S_T1)} offen", "dbg")
        a(f"s_add_u32 {sr(S_T1)}, {sr(S_T0)}, {WS_DBG2}")
        a.vmem(f"buffer_store_dwordx4 {vr(V_PQ,4)}, {vr(V_L16)}, {sr(S_WS,4)}, {sr(S_T1)} offen", "dbg")
    S0 = V_S[0]
    a(f"""v_max3_f32 {vr(V_T0)}, {vr(S0)}, {vr(S0+1)}, {vr(S0+2)}
          v_max3_f32 {vr(V_T1)}, {vr(S0+3)}, {vr(S0+4)}, {vr(S0+5)}
          v_max3_f32 {vr(V_T2)}, {vr(S0+6)}, {vr(S0+7)}, {vr(S0+8)}
          v_max3_f32 {vr(V_T3)}, {vr(S0+9)}, {vr(S0+10)}, {vr(S0+11)}
          v_max3_f32 {vr(V_T0)}, {vr(V_T0)}, {vr(S0+12)}, {vr(S0+13)}
          v_max3_f32 {vr(V_T1)}, {vr(V_T1)}, {vr(S0+14)}, {vr(S0+15)}
          v_max3_f32 {vr(V_T0)}, {vr(V_T0)}, {vr(V_T1)}, {vr(V_T2)}
          v_max_f32 {vr(V_T0)}, {vr(V_T0)}, {vr(V_T3)}
          v_mov_b32 {vr(V_T1)}, {vr(V_T0)}
          s_nop 1
          v_permlane32_swap_b32 {vr(V_T0)}, {vr(V_T1)}
          s_nop 1
          v_max_f32 {vr(V_T0)}, {vr(V_T0)}, {vr(V_T1)}""")
    for i in range(16):
        a(f"v_sub_f32 {vr(V_C+i)}, 0, {vr(V_T0)}")
    for i in range(16):
        a(f"v_sub_f32 {vr(S0+i)}, {vr(S0+i)}, {vr(V_T0)}")
    for i in range(16):
        a(f"v_mov_b32 {vr(V_O+i)}, 0")
    a(f"""ds_read_b128 {vr(V_KF,4)}, {vr(V_KA)} offset:2048
          v_exp_f32 {vr(S0)}, {vr(S0)}
          v_exp_f32 {vr(S0+1)}, {vr(S0+1)}
          s_mov_b32 {sr(S_SEG)}, 0
          s_waitcnt lgkmcnt(0)""")
    stamp(5)

    a.lines.append("    .p2align 6")
    a.label("L_att")
    for t in range(8):
        cur, nxt = V_S[t % 2], V_S[(t + 1) % 2]
        vf = V_VF[t % 2]
        ex = lambda r: a(f"v_exp_f32 {vr(r)}, {vr(r)}")
        for i in (2, 3, 4, 5): ex(cur + i)
        a("s_waitcnt lgkmcnt(2)")
        a(f"v_mfma_f32_32x32x16_bf16 {vr(nxt,16)}, {vr(V_KF,4)}, {vr(V_QF,4)}, {vr(V_C,16)}")
        a(f"ds_read_b128 {vr(V_KF,4)}, {vr(V_KA)} offset:{(t+2)*2048}")
        for i in (6, 7, 8, 9, 10): ex(cur + i)
        a(f"v_smfmac_f32_32x32x32_bf16 {vr(V_O,16)}, {vr(vf,4)}, {vr(cur,8)}, {vr(V_IDX)}")
        for i in (11, 12, 13, 14, 15): ex(cur + i)
        ex(nxt); ex(nxt + 1)
        a(f"v_smfmac_f32_32x32x32_bf16 {vr(V_O,16)}, {vr(vf+4,4)}, {vr(cur+8,8)}, {vr(V_IDX)}")
        a(f"""s_mov_b64 exec, {sr(S_VMASK,2)}
              ds_read_b128 {vr(vf,4)}, {vr(V_VA)} offset:{(t+2)*2048+1024}
              ds_read_b128 {vr(vf+4,4)}, {vr(V_VA)} offset:{(t+2)*2048+1536}
              s_mov_b64 exec, -1""")
    a(f"""v_add_u32 {vr(V_KA)}, 0x4000, {vr(V_KA)}
          v_add_u32 {vr(V_VA)}, 0x4000, {vr(V_VA)}
          s_add_u32 {sr(S_SEG)}, {sr(S_SEG)}, 1
          s_cmp_eq_u32 {sr(S_SEG)}, 1
          s_cbranch_scc1 L_hook1
          s_cmp_lt_u32 {sr(S_SEG)}, 4
          s_cbranch_scc1 L_att
          s_cmp_eq_u32 {sr(S_SEG)}, 4
          s_cbranch_scc1 L_hook4
          s_cmp_eq_u32 {sr(S_SEG)}, 5
          s_cbranch_scc1 L_hook5
          s_cmp_eq_u32 {sr(S_SEG)}, 6
          s_cbranch_scc1 L_hook6
          s_cmp_eq_u32 {sr(S_SEG)}, 7
          s_cbranch_scc1 L_hook7
          s_branch L_attend""")

    def wodma(srdw, r0, nrows, dst, tag):
        per = nrows // 8 // 8
        a(f"""s_mul_i32 {sr(S_T0)}, {sr(S_WAVE)}, {per*8192}
              s_lshl_b32 {sr(S_T1)}, {sr(S_HG)}, 7
              s_add_u32 {sr(S_T0)}, {sr(S_T0)}, {sr(S_T1)}
              s_mul_i32 {sr(S_T1)}, {sr(S_WAVE)}, {per*1024}""")
        for i in range(per):
            a(f"s_add_u32 m0, {sr(S_T1)}, {dst + i*1024}")
            a(f"s_add_u32 {sr(S_T2)}, {sr(S_T0)}, {r0*1024 + i*8192}")
            a.vmem(f"buffer_load_dwordx4 {vr(V_WOFF)}, {sr(srdw,4)}, {sr(S_T2)} offen lds", tag)

    a.label("L_hook1")
    a.wait_vm(None)
    for j in range(4, 16):
        a(f"ds_write_b128 {vr(V_KW0 if j < 8 else V_KW1)}, {vr(V_KVS+4*j,4)} offset:{(j%8)*8192}")
    a(f"""v_lshrrev_b32 {vr(V_T0)}, 3, {vr(V_LANE)}
          v_bfe_u32 {vr(V_T1)}, {vr(V_LANE)}, 4, 1
          v_lshlrev_b32 {vr(V_T1)}, 2, {vr(V_T1)}
          v_xor_b32 {vr(V_T1)}, {vr(V_T1)}, {vr(V_LANE)}
          v_and_b32 {vr(V_T1)}, 7, {vr(V_T1)}
          v_lshlrev_b32 {vr(V_T1)}, 4, {vr(V_T1)}
          v_lshl_add_u32 {vr(V_WOFF)}, {vr(V_T0)}, 10, {vr(V_T1)}
          s_waitcnt lgkmcnt(0)
          s_barrier
          s_lshl_b32 {sr(S_T3)}, {sr(S_HG)}, 2""")
    signal("L_sigA", sr(S_T3), C_A, 1)
    wodma(S_WOB, 0, 256, L_MISC, "wob0")
    a("s_branch L_att")

    a.label("L_hook4")
    a(f"s_lshl_b32 {sr(S_T3)}, {sr(S_HG)}, 2")
    poll("L_pA", sr(S_T3), C_A, 32)
    a("s_barrier")
    a.vm = []
    def kvp_loads(b):
        a(f"""s_lshl_b32 {sr(S_T0)}, {sr(S_HG)}, 2
              s_add_u32 {sr(S_T0)}, {sr(S_T0)}, {sr(S_HH)}
              s_lshl_b32 {sr(S_T0)}, {sr(S_T0)}, 15
              s_add_u32 {sr(S_T0)}, {sr(S_T0)}, {WS_KVP + b*16384}""")
        for j in range(16):
            if j and j % 4 == 0: a(f"s_add_u32 {sr(S_T0)}, {sr(S_T0)}, 4096")
            a.vmem(f"buffer_load_dwordx4 {vr(V_KP+4*j,4)}, {vr(V_L16)}, {sr(S_WS,4)}, {sr(S_T0)} offen offset:{(j%4)*1024} sc1", f"kp{b}")
    def kvp_mfma(b):
        for j in range(16):
            a(f"v_mfma_f32_32x32x16_bf16 {vr(V_OA,16)}, {vr(V_KP+4*j,4)}, {vr(V_PQ,4)}, {'0' if (b==0 and j==0) else vr(V_OA,16)}")
    kvp_loads(0)
    wodma(S_WOA, 0, 512, 0, "woa")
    a("s_branch L_att")

    a.label("L_hook5")
    a.wait_vm("kp0")
    kvp_mfma(0)
    kvp_loads(1)
    a("s_branch L_att")

    def ooff(dst):
        a(f"""s_lshl_b32 {sr(dst)}, {sr(S_QB)}, 1
              s_add_u32 {sr(dst)}, {sr(dst)}, {sr(S_RT)}
              s_lshl_b32 {sr(dst)}, {sr(dst)}, 3
              s_add_u32 {sr(dst)}, {sr(dst)}, {sr(S_HG)}
              s_lshl_b32 {sr(dst)}, {sr(dst)}, 2
              s_add_u32 {sr(dst)}, {sr(dst)}, {sr(S_HH)}
              s_lshl_b32 {sr(dst)}, {sr(dst)}, 10""")
    a.label("L_hook6")
    a.wait_vm("kp1")
    kvp_mfma(1)
    ooff(S_T3)
    a(f"""s_add_u32 {sr(S_T3)}, {sr(S_T3)}, {WS_OA}
          s_barrier
          s_nop 7
          v_add_f32 {vr(V_T0)}, {sr(S_EPS)}, {vr(V_OA)}
          v_rcp_f32 {vr(V_T0)}, {vr(V_T0)}
          s_nop 0
          v_mul_f32 {vr(V_T0)}, {vr(V_T0)}, {vr(V_G)}""")
    for i in range(8):
        a(f"v_mul_f32 {vr(V_OA+8+i)}, {vr(V_OA+8+i)}, {vr(V_T0)}")
    for i in range(4):
        a(f"v_cvt_pk_bf16_f32 {vr(V_OA+i)}, {vr(V_OA+8+2*i)}, {vr(V_OA+8+2*i+1)}")
    a.vmem(f"buffer_store_dwordx4 {vr(V_OA,4)}, {vr(V_L16)}, {sr(S_WS,4)}, {sr(S_T3)} offen sc1", "oa")
    wodma(S_WOB, 256, 256, 65536, "wob1")
    a("s_branch L_att")

    a.label("L_hook7")
    a.wait_vm(None)
    a(f"""s_barrier
          s_lshl_b32 {sr(S_T3)}, {sr(S_QB)}, 2""")
    signal("L_sigOA", sr(S_T3), C_O, 1)
    a("s_branch L_att")

    a.label("L_attend")
    stamp(6)
    ooff(S_T3)
    a(f"""s_add_u32 {sr(S_T3)}, {sr(S_T3)}, {WS_OB}
          s_mov_b32 {sr(S_T0)}, {hex(f2u(2.0**64))}
          s_nop 3
          v_cmp_nle_f32 vcc, {vr(V_O+8)}, {sr(S_T0)}
          s_mov_b32 {sr(S_T1)}, 0x207""")
    for i in range(8):
        a(f"""v_cmp_class_f32 {sr(S_SAVE,2)}, {vr(V_O+i)}, {sr(S_T1)}
              s_or_b64 vcc, vcc, {sr(S_SAVE,2)}""")
    a("s_cbranch_vccnz L_fallback")
    a.label("L_norm")
    a(f"""v_rcp_f32 {vr(V_T0)}, {vr(V_O+8)}
          v_sub_f32 {vr(V_T1)}, 1.0, {vr(V_G)}
          v_mul_f32 {vr(V_T0)}, {vr(V_T0)}, {vr(V_T1)}""")
    for i in range(8):
        a(f"v_mul_f32 {vr(V_O+i)}, {vr(V_O+i)}, {vr(V_T0)}")
    for i in range(4):
        a(f"v_cvt_pk_bf16_f32 {vr(V_O+8+i)}, {vr(V_O+2*i)}, {vr(V_O+2*i+1)}")
    a.vm = []
    a.vmem(f"buffer_store_dwordx4 {vr(V_O+8,4)}, {vr(V_L16)}, {sr(S_WS,4)}, {sr(S_T3)} offen sc1", "ob")
    a(f"""v_lshrrev_b32 {vr(V_T0)}, 5, {vr(V_LANE)}
          v_lshlrev_b32 {vr(V_T0)}, 9, {vr(V_T0)}
          v_bfe_u32 {vr(V_T1)}, {vr(V_LANE)}, 2, 2
          v_lshl_add_u32 {vr(V_T0)}, {vr(V_T1)}, 7, {vr(V_T0)}
          v_bfe_u32 {vr(V_T1)}, {vr(V_LANE)}, 3, 1
          v_lshl_add_u32 {vr(V_T0)}, {vr(V_T1)}, 6, {vr(V_T0)}
          v_bfe_u32 {vr(V_T1)}, {vr(V_LANE)}, 4, 1
          v_lshl_add_u32 {vr(V_T0)}, {vr(V_T1)}, 5, {vr(V_T0)}
          v_and_b32 {vr(V_T1)}, 3, {vr(V_LANE)}
          v_lshl_add_u32 {vr(V_T0)}, {vr(V_T1)}, 3, {vr(V_T0)}
          s_lshl_b32 {sr(S_T0)}, {sr(S_HH)}, 14
          v_add_u32 {vr(V_WOA0)}, {sr(S_T0)}, {vr(V_T0)}
          v_xor_b32 {vr(V_WOA1)}, 64, {vr(V_WOA0)}""")
    a.wait_vm(None)
    a(f"""s_barrier
          s_lshl_b32 {sr(S_T3)}, {sr(S_QB)}, 2""")
    signal("L_sigOB", sr(S_T3), C_O, 0x100)
    stamp(7)
    poll("L_pOA", sr(S_T3), C_O, 8, mask=0xff)
    a("s_barrier")
    a(f"""s_lshl_b32 {sr(S_T2)}, {sr(S_QB)}, 1
          s_add_u32 {sr(S_T2)}, {sr(S_T2)}, {sr(S_RT)}
          s_lshl_b32 {sr(S_T2)}, {sr(S_T2)}, 2
          s_add_u32 {sr(S_T2)}, {sr(S_T2)}, {sr(S_HH)}
          s_lshl_b32 {sr(S_T2)}, {sr(S_T2)}, 13""")
    def oloads(base, dst, tag):
        for i in range(8):
            if i % 4 == 0: a(f"s_add_u32 {sr(S_T0)}, {sr(S_T2)}, {base + i*1024}")
            a.vmem(f"buffer_load_dwordx4 {vr(dst+4*i,4)}, {vr(V_L16)}, {sr(S_WS,4)}, {sr(S_T0)} offen offset:{(i%4)*1024} sc1", f"{tag}{i}")
    def oproj(src, tag, first):
        def rd(i):
            b = V_WO + 8 * (i % 4)
            for nt in range(2):
                for u in range(2):
                    a(f"ds_read_b64_tr_b16 {vr(b+4*nt+2*u,2)}, {vr(V_WOA0 if nt==0 else V_WOA1)} offset:{i*2048 + u*1024}")
        rd(0); rd(1); rd(2)
        for i in range(8):
            if i + 3 < 8:
                pass
            n_after = 4 * (min(i + 2, 7) - i)
            a.wait_vm(f"{tag}{i}", f"lgkmcnt({n_after})")
            b = V_WO + 8 * (i % 4)
            for nt in range(2):
                a(f"v_mfma_f32_32x32x16_bf16 {vr(V_OUT[nt],16)}, {vr(b+4*nt,4)}, {vr(src+4*i,4)}, {'0' if (first and i==0) else vr(V_OUT[nt],16)}")
            if i + 3 < 8: rd(i + 3)
    a.vm = []
    oloads(WS_OA, V_FA, "fa")
    oproj(V_FA, "fa", True)
    stamp(8)
    poll("L_pOB", sr(S_T3), C_O, 0x800, mask=0xff00)
    a("s_barrier")
    stamp(9)
    a.vm = []
    oloads(WS_OB, V_FBB, "fb")
    a(f"""s_cmp_lt_u32 {sr(S_HH)}, 2
          s_cselect_b32 {sr(S_T0)}, 4, 1
          s_lshl_b32 {sr(S_T0)}, {sr(S_T0)}, 15
          v_add_u32 {vr(V_WOA0)}, {sr(S_T0)}, {vr(V_WOA0)}
          v_add_u32 {vr(V_WOA1)}, {sr(S_T0)}, {vr(V_WOA1)}""")
    oproj(V_FBB, "fb", False)
    a(f"""v_and_b32 {vr(V_T0)}, 31, {vr(V_LANE)}
          v_lshrrev_b32 {vr(V_T1)}, 5, {vr(V_LANE)}
          v_and_b32 {vr(V_T2)}, 7, {vr(V_LANE)}
          v_xor_b32 {vr(V_T1)}, {vr(V_T1)}, {vr(V_T2)}
          v_lshlrev_b32 {vr(V_T1)}, 4, {vr(V_T1)}
          v_lshl_add_u32 {vr(V_T0)}, {vr(V_T0)}, 8, {vr(V_T1)}
          s_lshl_b32 {sr(S_T0)}, {sr(S_HH)}, 14
          s_lshl_b32 {sr(S_T1)}, {sr(S_RT)}, 13
          s_add_u32 {sr(S_T0)}, {sr(S_T0)}, {sr(S_T1)}
          v_add_u32 {vr(V_T0)}, {sr(S_T0)}, {vr(V_T0)}
          v_xor_b32 {vr(V_T1)}, 32, {vr(V_T0)}
          v_xor_b32 {vr(V_T2)}, 64, {vr(V_T0)}
          v_xor_b32 {vr(V_T3)}, 96, {vr(V_T0)}""")
    for nt in range(2):
        for g in range(4):
            a(f"ds_write_b128 {vr(V_T0+g)}, {vr(V_OUT[nt]+4*g,4)} offset:{nt*128}")
    a(f"""v_lshrrev_b32 {vr(V_T0)}, 3, {vr(V_LANE)}
          v_and_b32 {vr(V_T1)}, 7, {vr(V_LANE)}
          v_lshlrev_b32 {vr(V_T2)}, 1, {vr(V_T1)}
          v_xor_b32 {vr(V_T2)}, {vr(V_T2)}, {vr(V_T0)}
          v_lshlrev_b32 {vr(V_T2)}, 4, {vr(V_T2)}
          v_lshl_add_u32 {vr(V_T2)}, {vr(V_T0)}, 8, {vr(V_T2)}
          s_lshl_b32 {sr(S_T0)}, {sr(S_WAVE)}, 11
          v_add_u32 {vr(V_T2)}, {sr(S_T0)}, {vr(V_T2)}
          v_xor_b32 {vr(V_T3)}, 16, {vr(V_T2)}
          v_lshlrev_b32 {vr(V_T1)}, 4, {vr(V_T1)}
          v_lshl_add_u32 {vr(V_T0)}, {vr(V_T0)}, 10, {vr(V_T1)}
          s_lshl_b32 {sr(S_T0)}, {sr(S_QB)}, 16
          s_lshl_b32 {sr(S_T1)}, {sr(S_WAVE)}, 13
          s_add_u32 {sr(S_T0)}, {sr(S_T0)}, {sr(S_T1)}
          s_lshl_b32 {sr(S_T1)}, {sr(S_HG)}, 7
          s_add_u32 {sr(S_T0)}, {sr(S_T0)}, {sr(S_T1)}
          s_waitcnt lgkmcnt(0)
          s_barrier""")
    RR = V_FA
    for k in range(4):
        a(f"ds_read_b128 {vr(RR+8*k,4)}, {vr(V_T2)} offset:{k*16384}")
        a(f"ds_read_b128 {vr(RR+8*k+4,4)}, {vr(V_T3)} offset:{k*16384}")
    for k in range(1, 4):
        a(f"s_waitcnt lgkmcnt({2*(3-k)})")
        for i in range(8):
            a(f"v_add_f32 {vr(RR+i)}, {vr(RR+i)}, {vr(RR+8*k+i)}")
    for i in range(4):
        a(f"v_cvt_pk_bf16_f32 {vr(RR+8+i)}, {vr(RR+2*i)}, {vr(RR+2*i+1)}")
    a(f"buffer_store_dwordx4 {vr(RR+8,4)}, {vr(V_T0)}, {sr(S_OUT,4)}, {sr(S_T0)} offen")
    if ts:
        a("s_waitcnt vmcnt(0)")
        stamp(10)
        a(f"""s_lshl_b32 {sr(S_T0)}, s2, 3
              s_add_u32 {sr(S_T0)}, {sr(S_T0)}, {sr(S_WAVE)}
              s_lshl_b32 {sr(S_T0)}, {sr(S_T0)}, 8
              s_add_u32 {sr(S_T0)}, {sr(S_T0)}, {WS_TS}
              v_lshlrev_b32 {vr(V_T0)}, 2, {vr(V_LANE)}
              buffer_store_dword v255, {vr(V_T0)}, {sr(S_WS,4)}, {sr(S_T0)} offen""")
    a.label("L_end")
    a("s_endpgm")

    a.label("L_fallback")
    FS = V_S[0]
    a(f"""v_mov_b32 {vr(V_T0)}, 0xff800000
          s_mov_b32 {sr(S_T0)}, {WS_KV}""")
    a.label("L_fb1")
    a(f"""buffer_load_dwordx4 {vr(V_KF,4)}, {vr(V_L16)}, {sr(S_WS,4)}, {sr(S_T0)} offen sc1
          s_waitcnt vmcnt(0)
          v_mfma_f32_32x32x16_bf16 {vr(FS,16)}, {vr(V_KF,4)}, {vr(V_QF,4)}, 0
          s_nop 15""")
    for i in range(8):
        a(f"v_max3_f32 {vr(V_T0)}, {vr(V_T0)}, {vr(FS+2*i)}, {vr(FS+2*i+1)}")
    a(f"""s_add_u32 {sr(S_T0)}, {sr(S_T0)}, 2048
          s_cmp_lt_u32 {sr(S_T0)}, {WS_KV + 131072}
          s_cbranch_scc1 L_fb1
          v_mov_b32 {vr(V_T1)}, {vr(V_T0)}
          s_nop 1
          v_permlane32_swap_b32 {vr(V_T0)}, {vr(V_T1)}
          s_nop 1
          v_max_f32 {vr(V_T0)}, {vr(V_T0)}, {vr(V_T1)}""")
    for i in range(16):
        a(f"v_sub_f32 {vr(V_C+i)}, 0, {vr(V_T0)}")
        a(f"v_mov_b32 {vr(V_O+i)}, 0")
    a(f"""v_and_b32 {vr(V_VA)}, 0x3ff, {vr(V_VA)}
          s_mov_b32 {sr(S_T0)}, {WS_KV}""")
    a.label("L_fb2")
    a(f"""buffer_load_dwordx4 {vr(V_KF,4)}, {vr(V_L16)}, {sr(S_WS,4)}, {sr(S_T0)} offen sc1
          s_mov_b64 exec, {sr(S_VMASK,2)}
          buffer_load_dwordx4 {vr(V_VF[0],4)}, {vr(V_VA)}, {sr(S_WS,4)}, {sr(S_T0)} offen offset:1024 sc1
          buffer_load_dwordx4 {vr(V_VF[0]+4,4)}, {vr(V_VA)}, {sr(S_WS,4)}, {sr(S_T0)} offen offset:1536 sc1
          s_mov_b64 exec, -1
          s_waitcnt vmcnt(0)
          v_mfma_f32_32x32x16_bf16 {vr(FS,16)}, {vr(V_KF,4)}, {vr(V_QF,4)}, {vr(V_C,16)}
          s_nop 15""")
    for i in range(16):
        a(f"v_exp_f32 {vr(FS+i)}, {vr(FS+i)}")
    a(f"""s_nop 1
          v_smfmac_f32_32x32x32_bf16 {vr(V_O,16)}, {vr(V_VF[0],4)}, {vr(FS,8)}, {vr(V_IDX)}
          v_smfmac_f32_32x32x32_bf16 {vr(V_O,16)}, {vr(V_VF[0]+4,4)}, {vr(FS+8,8)}, {vr(V_IDX)}
          s_add_u32 {sr(S_T0)}, {sr(S_T0)}, 2048
          s_cmp_lt_u32 {sr(S_T0)}, {WS_KV + 131072}
          s_cbranch_scc1 L_fb2
          s_nop 15
          s_branch L_norm""")

    head = open("cdna_kernels/" + NAME + ".s.ref").read().split("\n")
    hdr = [l for l in head if l.startswith(";") and "@launch" not in l and "Override" not in l and "grid=ceil" not in l]
    out = "\n".join(hdr) + f"\n; @launch grid=(256,1,1) block=(512,1,1) lds={LDS_SIZE}\n"
    out += f""".amdgcn_target "amdgcn-amd-amdhsa--gfx950"
.text
.globl {NAME}_kernel
.p2align 8
.type {NAME}_kernel,@function
"""
    out += a.text()
    out += f""".section .rodata,"a"
.p2align 6
.amdhsa_kernel {NAME}_kernel
  .amdhsa_next_free_vgpr 256
  .amdhsa_next_free_sgpr 102
  .amdhsa_accum_offset 256
  .amdhsa_group_segment_fixed_size 0
  .amdhsa_kernarg_size 96
  .amdhsa_user_sgpr_count 2
  .amdhsa_user_sgpr_kernarg_segment_ptr 1
  .amdhsa_system_sgpr_workgroup_id_x 1
.end_amdhsa_kernel
"""
    return out

if __name__ == "__main__":
    opts = {}
    outp = "cdna_kernels/" + NAME + ".s"
    for arg in sys.argv[1:]:
        if arg.startswith("-o"):
            outp = arg[2:]
        elif "=" in arg:
            k, v = arg.split("=")
            opts[k] = int(v)
        else:
            opts[arg] = True
    open(outp, "w").write(gen(opts))
    print("wrote", outp)
```

```python
import sys, math, struct

NAME = "gated_mix__linear_attn_block__grouped_kv_mqa__prompt"

def f2u(x):
    return struct.unpack("<I", struct.pack("<f", x))[0]

class Asm:
    def __init__(self):
        self.lines = []
        self.vm = []
    def __call__(self, s):
        for l in s.split("\n"):
            l = l.strip()
            if l:
                self.lines.append("    " + l)
    def label(self, l):
        self.lines.append(l + ":")
    def vmem(self, s, tag):
        self(s)
        self.vm.append(tag)
    def vm_n(self, tag):
        idx = max(i for i, t in enumerate(self.vm) if t == tag)
        return len(self.vm) - 1 - idx
    def drop_to(self, n):
        self.vm = self.vm[len(self.vm) - n:] if n else []
    def wait_vm(self, tag, extra=""):
        n = 0 if tag is None else self.vm_n(tag)
        self.drop_to(n)
        assert n <= 63
        self(f"s_waitcnt vmcnt({n}) {extra}".strip())
    def text(self):
        return "\n".join(self.lines) + "\n"

def vr(a, n=1):
    return f"v{a}" if n == 1 else f"v[{a}:{a+n-1}]"
def sr(a, n=1):
    return f"s{a}" if n == 1 else f"s[{a}:{a+n-1}]"

WS_E = 0x000000
WS_FKV = 0x000400
WS_FA = 0x001000
WS_FOA = 0x002000
WS_FOB = 0x00C000
WS_KV = 0x020000
WS_ACC = 0x040000
WS_OA = 0x200000
WS_OB = 0x208000
WS_DBG1 = 0x600000
WS_DBG2 = 0x800000
WS_TS = 0xA00000
WS_SIZE = 0x1000000
L_MISC = 0
L_X = 32768
L_RING = 98304
L_HI = 131072
L_G = L_HI + 16384
L_GW = 31 * 1024
NSA = 12
LDS_SIZE = 163840
LOG2E = 1.4426950408889634
QSCALE = 0.25 * LOG2E
NVGPR = 168

S_TAG, S_QO, S_NS, S_RDY = 4, 5, 6, 7
S_X, S_W, S_WJ, S_FREE, S_FREE2, S_WOA, S_WOB, S_OUT, S_DBG, S_WS = 8, 12, 16, 20, 24, 28, 32, 36, 40, 44
S_WAVE, S_QB, S_HG, S_RT, S_HH = 48, 49, 50, 51, 52
S_T0, S_T1, S_T2, S_T3 = 53, 54, 55, 56
S_WOFF, S_WSTR8, S_WSTR32, S_M0W = 57, 58, 59, 60
S_SEG, S_SPIN, S_HEAD = 61, 62, 63
S_VMASK, S_RT32, S_RO32, S_SAVE = 64, 66, 67, 68
S_LOG2E, S_QS, S_EPS, S_ONES = 70, 72, 20, 21
S_RGJ, S_ROT = 22, 23
S_TS = 74
S_KA = 76

def gen(opts):
    ts = opts.get("ts", False)
    dbg = opts.get("dbg", False)
    a = Asm()
    V_STAMP = NVGPR - 1

    def stamp(i):
        if not ts: return
        a(f"""s_memrealtime {sr(S_TS,2)}
              s_memtime s[100:101]
              s_waitcnt lgkmcnt(0)
              v_writelane_b32 v{V_STAMP}, {sr(S_TS)}, {i}
              v_writelane_b32 v{V_STAMP}, s100, {32+i}""")

    V_LANE = 1
    V_T0, V_T1, V_T2, V_T3 = 2, 3, 4, 5
    V_XOFF, V_WOFF = 6, 7
    V_XA0, V_XA1, V_WA = 8, 9, 10
    V_L16, V_G, V_IDX, V_KA, V_VA = 11, 12, 13, 14, 15
    V_QF, V_PQ = 16, 20
    V_ACCQ, V_ACCKV = 24, 40
    V_FB = [56, 80]
    V_O, V_C, V_KF = 104, 120, 136
    V_VF = [140, 148]
    V_L4, V_FLG, V_TAG, V_WOA0, V_WOA1 = 156, 157, 158, 159, 160
    V_PK = 162
    V_S = [24, 40]
    V_AC, V_OA = 56, 72
    V_FA, V_FBB, V_WO = 56, 120, 88
    V_OUT = [24, 40]

    def srd(s, ka, size):
        a(f"""s_mov_b32 {sr(s)}, {sr(S_KA+ka)}
              s_mov_b32 {sr(s+1)}, {sr(S_KA+ka+1)}
              s_mov_b32 {sr(s+2)}, {hex(size)}
              s_mov_b32 {sr(s+3)}, 0x20000""")
    def flag_store(soff):
        a(f"""s_mov_b64 exec, 1
              buffer_store_dword {vr(V_TAG)}, {vr(V_L4)}, {sr(S_WS,4)}, {sr(soff)} offen sc1
              s_mov_b64 exec, -1""")
    def flag_load(soff, n, tag=None):
        a(f"s_mov_b64 exec, {hex((1 << n) - 1)}" if n <= 4 else f"s_mov_b32 exec_lo, {hex((1 << n) - 1)}\ns_mov_b32 exec_hi, 0")
        s = f"buffer_load_dword {vr(V_FLG)}, {vr(V_L4)}, {sr(S_WS,4)}, {sr(soff)} offen sc1"
        if tag: a.vmem(s, tag)
        else: a(s)
        a("s_mov_b64 exec, -1")
    def flag_check(n):
        a(f"""v_cmp_ne_u32 vcc, {vr(V_FLG)}, {vr(V_TAG)}
              s_and_b32 {sr(S_SAVE)}, vcc_lo, {hex((1 << n) - 1)}
              s_cmp_eq_u32 {sr(S_SAVE)}, 0""")
    def flag_spin(lbl, soff, n):
        a(f"s_mov_b32 {sr(S_SPIN)}, 0")
        a.label(lbl + "_loop")
        flag_check(n)
        a(f"""s_cbranch_scc1 {lbl}_ok
              s_add_u32 {sr(S_SPIN)}, {sr(S_SPIN)}, 1
              s_cmp_ge_u32 {sr(S_SPIN)}, 100000
              s_cbranch_scc1 {lbl}_ok""")
        flag_load(soff, n)
        a(f"""s_waitcnt vmcnt(0)
              s_branch {lbl}_loop""")
        a.label(lbl + "_ok")
    def tag_setup():
        a(f"""s_waitcnt lgkmcnt(0)
              s_mul_i32 {sr(S_TAG)}, {sr(S_TAG)}, 0x9e3779b1
              s_add_u32 {sr(S_TAG)}, {sr(S_TAG)}, 0x7f4a7c15
              v_mov_b32 {vr(V_TAG)}, {sr(S_TAG)}""")

    a.label(f"{NAME}_kernel")
    a(f"""s_cmp_ge_u32 s2, 256
          s_cbranch_scc1 L_end
          s_load_dwordx16 {sr(S_KA,16)}, s[0:1], 0
          s_load_dwordx8 {sr(S_KA+16,8)}, s[0:1], 64
          v_and_b32 {vr(V_LANE)}, 63, v0
          v_lshrrev_b32 {vr(V_T0)}, 6, v0
          s_and_b32 {sr(S_T0)}, s2, 1
          v_readfirstlane_b32 {sr(S_WAVE)}, {vr(V_T0)}
          s_lshl_b32 {sr(S_T0)}, {sr(S_T0)}, 2
          s_bfe_u32 {sr(S_T1)}, s2, 0x20003
          s_add_u32 {sr(S_HG)}, {sr(S_T0)}, {sr(S_T1)}
          s_bfe_u32 {sr(S_T1)}, s2, 0x20001
          s_lshl_b32 {sr(S_T1)}, {sr(S_T1)}, 3
          s_lshr_b32 {sr(S_QB)}, s2, 5
          s_add_u32 {sr(S_QB)}, {sr(S_QB)}, {sr(S_T1)}
          s_lshr_b32 {sr(S_RGJ)}, {sr(S_HG)}, 1""")
    stamp(0)
    a(f"""v_lshrrev_b32 {vr(V_T0)}, 4, {vr(V_LANE)}
          v_xor_b32 {vr(V_T0)}, {vr(V_T0)}, {vr(V_LANE)}
          v_and_b32 {vr(V_T0)}, 3, {vr(V_T0)}
          v_lshlrev_b32 {vr(V_T0)}, 4, {vr(V_T0)}
          v_lshrrev_b32 {vr(V_T1)}, 2, {vr(V_LANE)}
          v_lshl_add_u32 {vr(V_XOFF)}, {vr(V_T1)}, 10, {vr(V_T0)}
          v_lshlrev_b32 {vr(V_L16)}, 4, {vr(V_LANE)}
          v_lshlrev_b32 {vr(V_L4)}, 2, {vr(V_LANE)}
          s_mov_b32 {sr(S_X+2)}, 0x200000
          s_mov_b32 {sr(S_X+3)}, 0x20000
          s_lshl_b32 {sr(S_T0)}, {sr(S_QB)}, 16
          s_cmp_eq_u32 {sr(S_WAVE)}, 8
          s_cbranch_scc1 L_helper
          s_and_b32 {sr(S_RT)}, {sr(S_WAVE)}, 1
          s_lshr_b32 {sr(S_HH)}, {sr(S_WAVE)}, 1
          s_lshl_b32 {sr(S_T1)}, {sr(S_WAVE)}, 7
          s_add_u32 {sr(S_T0)}, {sr(S_T0)}, {sr(S_T1)}
          s_lshl_b32 {sr(S_T1)}, {sr(S_WAVE)}, 13
          s_add_u32 {sr(S_T1)}, {sr(S_T1)}, {L_X}""")
    a(f"""s_cmp_eq_u32 {sr(S_HH)}, 0
          s_cselect_b32 {sr(S_T3)}, 1, 3
          s_lshl_b32 {sr(S_W+2)}, {sr(S_T3)}, 19
          s_mov_b32 {sr(S_W+3)}, 0x20000
          s_lshl_b32 {sr(S_T3)}, {sr(S_T3)}, 10
          s_lshl_b32 {sr(S_WSTR8)}, {sr(S_T3)}, 3
          s_lshl_b32 {sr(S_WSTR32)}, {sr(S_T3)}, 5
          s_max_u32 {sr(S_T2)}, {sr(S_HH)}, 1
          s_sub_u32 {sr(S_T2)}, {sr(S_T2)}, 1
          s_lshl_b32 {sr(S_WOFF)}, {sr(S_T2)}, 10
          s_lshl_b32 {sr(S_T2)}, {sr(S_HG)}, 7
          s_add_u32 {sr(S_WOFF)}, {sr(S_WOFF)}, {sr(S_T2)}
          s_mul_i32 {sr(S_T2)}, {sr(S_RT)}, {sr(S_WSTR8)}
          s_lshl_b32 {sr(S_T2)}, {sr(S_T2)}, 1
          s_add_u32 {sr(S_WOFF)}, {sr(S_WOFF)}, {sr(S_T2)}
          s_lshl_b32 {sr(S_M0W)}, {sr(S_WAVE)}, 11
          s_and_b32 {sr(S_T2)}, {sr(S_HH)}, 1
          s_lshl_b32 {sr(S_T2)}, {sr(S_T2)}, 1
          v_lshrrev_b32 {vr(V_T0)}, 1, {vr(V_LANE)}
          v_and_b32 {vr(V_T0)}, 3, {vr(V_T0)}
          v_bfe_u32 {vr(V_T1)}, {vr(V_LANE)}, 4, 1
          v_xor_b32 {vr(V_T0)}, {vr(V_T0)}, {vr(V_T1)}
          v_xor_b32 {vr(V_T0)}, {sr(S_T2)}, {vr(V_T0)}
          v_lshlrev_b32 {vr(V_T0)}, 5, {vr(V_T0)}
          v_and_b32 {vr(V_T1)}, 1, {vr(V_LANE)}
          v_lshl_add_u32 {vr(V_T0)}, {vr(V_T1)}, 4, {vr(V_T0)}
          v_lshrrev_b32 {vr(V_T1)}, 3, {vr(V_LANE)}
          v_mul_u32_u24 {vr(V_T1)}, {sr(S_T3)}, {vr(V_T1)}
          v_add_u32 {vr(V_WOFF)}, {vr(V_T0)}, {vr(V_T1)}
          s_waitcnt lgkmcnt(0)
          s_mov_b32 {sr(S_X)}, {sr(S_KA+0)}
          s_mov_b32 {sr(S_X+1)}, {sr(S_KA+1)}
          s_cmp_eq_u32 {sr(S_HH)}, 0
          s_cselect_b32 {sr(S_W)}, {sr(S_KA+8)}, {sr(S_KA+2)}
          s_cselect_b32 {sr(S_W+1)}, {sr(S_KA+9)}, {sr(S_KA+3)}
          s_load_dword {sr(S_TAG)}, {sr(S_KA+22,2)}, {WS_E}""")
    for i in range(3):
        a(f"""s_add_u32 {sr(S_T3)}, {sr(S_RGJ)}, {i+1}
              s_and_b32 {sr(S_T3)}, {sr(S_T3)}, 3
              s_lshl_b32 {sr(S_T2)}, {sr(S_T3)}, 10
              s_add_u32 m0, {sr(S_T1)}, {sr(S_T2)}
              s_lshl_b32 {sr(S_T2)}, {sr(S_T3)}, 14
              s_add_u32 {sr(S_T2)}, {sr(S_T2)}, {sr(S_T0)}""")
        a.vmem(f"buffer_load_dwordx4 {vr(V_XOFF)}, {sr(S_X,4)}, {sr(S_T2)} offen lds", "x")
        a(f"""s_add_u32 m0, m0, {4096 - 64}
              s_nop 0""")
        a.vmem(f"buffer_load_dwordx4 {vr(V_XOFF)}, {sr(S_X,4)}, {sr(S_T2)} offen offset:64 lds", "x")
    def wdma(c):
        slot = c % 4
        a(f"s_add_u32 m0, {sr(S_M0W)}, {L_RING + slot*16384}")
        a(f"s_add_u32 {sr(S_T2)}, {sr(S_WOFF)}, {sr(S_WSTR8)}")
        a.vmem(f"buffer_load_dwordx4 {vr(V_WOFF)}, {sr(S_W,4)}, {sr(S_WOFF)} offen lds", f"w{c}")
        a(f"s_add_u32 m0, {sr(S_M0W)}, {L_RING + slot*16384 + 1024}")
        a(f"s_add_u32 {sr(S_WOFF)}, {sr(S_WOFF)}, {sr(S_WSTR32)}")
        a.vmem(f"buffer_load_dwordx4 {vr(V_WOFF)}, {sr(S_W,4)}, {sr(S_T2)} offen lds", f"w{c}")
    wdma(0)
    srd(S_WS, 22, WS_SIZE)
    srd(S_OUT, 18, 0x200000)
    if ts: srd(S_DBG, 20, 256)
    def omap():
        a(f"""s_and_b32 {sr(S_QO)}, s2, 7
              s_lshl_b32 {sr(S_QO)}, {sr(S_QO)}, 2
              s_bfe_u32 {sr(S_T0)}, s2, 0x20003
              s_add_u32 {sr(S_QO)}, {sr(S_QO)}, {sr(S_T0)}
              s_lshr_b32 {sr(S_NS)}, s2, 5""")
    omap()
    a(f"""s_lshl_b32 {sr(S_HEAD)}, {sr(S_HG)}, 2
          s_add_u32 {sr(S_HEAD)}, {sr(S_HEAD)}, {sr(S_HH)}
          s_lshl_b32 {sr(S_RT32)}, {sr(S_QB)}, 1
          s_add_u32 {sr(S_RT32)}, {sr(S_RT32)}, {sr(S_RT)}
          s_lshl_b32 {sr(S_RO32)}, {sr(S_QO)}, 1
          s_add_u32 {sr(S_RO32)}, {sr(S_RO32)}, {sr(S_RT)}
          s_mov_b32 {sr(S_VMASK)}, 0xffff
          s_mov_b32 {sr(S_VMASK+1)}, 0xffff
          s_mov_b32 {sr(S_LOG2E)}, {hex(f2u(LOG2E))}
          s_mov_b32 {sr(S_LOG2E+1)}, {hex(f2u(LOG2E))}
          s_mov_b32 {sr(S_EPS)}, {hex(f2u(1e-6))}
          s_mov_b32 {sr(S_QS)}, {hex(f2u(QSCALE))}
          s_mov_b32 {sr(S_QS+1)}, {hex(f2u(QSCALE))}
          s_mov_b32 {sr(S_ONES)}, 0x3f803f80
          v_and_b32 {vr(V_T0)}, 31, {vr(V_LANE)}
          v_lshrrev_b32 {vr(V_T1)}, 5, {vr(V_LANE)}
          v_bfe_u32 {vr(V_T2)}, {vr(V_LANE)}, 2, 2
          v_xor_b32 {vr(V_T2)}, {vr(V_T2)}, {vr(V_T1)}
          v_lshlrev_b32 {vr(V_T2)}, 4, {vr(V_T2)}
          v_lshl_add_u32 {vr(V_T3)}, {vr(V_T0)}, 6, {vr(V_T2)}
          s_lshl_b32 {sr(S_T0)}, {sr(S_RT)}, 11
          s_add_u32 {sr(S_T0)}, {sr(S_T0)}, {L_X}
          v_add_u32 {vr(V_XA0)}, {sr(S_T0)}, {vr(V_T3)}
          v_xor_b32 {vr(V_XA1)}, 32, {vr(V_XA0)}
          v_bfe_u32 {vr(V_T0)}, {vr(V_LANE)}, 4, 1
          v_bfe_u32 {vr(V_T2)}, {vr(V_LANE)}, 3, 2
          v_xor_b32 {vr(V_T2)}, {sr(S_HH)}, {vr(V_T2)}
          v_lshlrev_b32 {vr(V_T2)}, 5, {vr(V_T2)}
          v_lshl_add_u32 {vr(V_T2)}, {vr(V_T0)}, 12, {vr(V_T2)}
          v_lshl_add_u32 {vr(V_T2)}, {vr(V_T1)}, 10, {vr(V_T2)}
          v_bfe_u32 {vr(V_T0)}, {vr(V_LANE)}, 2, 2
          v_lshl_add_u32 {vr(V_T2)}, {vr(V_T0)}, 7, {vr(V_T2)}
          v_and_b32 {vr(V_T0)}, 3, {vr(V_LANE)}
          v_lshl_add_u32 {vr(V_T2)}, {vr(V_T0)}, 3, {vr(V_T2)}
          v_add_u32 {vr(V_WA)}, {L_RING}, {vr(V_T2)}""")
    wdma(1)
    for i in range(8):
        a(f"v_mov_b32 {vr(V_ACCQ+i)}, 0")
        a(f"v_mov_b32 {vr(V_ACCQ+8+i)}, {sr(S_EPS)}")
    a(f"""v_mov_b32 {vr(V_T0)}, {sr(S_EPS)}
          v_cndmask_b32 {vr(V_T0)}, 0, {vr(V_T0)}, {sr(S_VMASK,2)}""")
    for i in range(16):
        a(f"v_mov_b32 {vr(V_ACCKV+i)}, {vr(V_T0)}")
    wdma(2)
    for i in range(16):
        a(f"v_mov_b32 {vr(V_O+i)}, 0")
        a(f"v_mov_b32 {vr(V_VF[0]+i)}, {sr(S_ONES)}")
    a(f"""v_mov_b32 {vr(V_IDX)}, 0xdddd
          v_mov_b32 {vr(V_KA)}, {vr(V_L16)}
          v_and_b32 {vr(V_T3)}, 15, {vr(V_LANE)}
          v_lshlrev_b32 {vr(V_T3)}, 4, {vr(V_T3)}
          v_lshl_add_u32 {vr(V_VA)}, {vr(V_T1)}, 8, {vr(V_T3)}""")
    wdma(3)
    tag_setup()
    stamp(1)

    def reads(c):
        fb = V_FB[c % 2]
        slot = c % 4
        r = [f"ds_read_b128 {vr(fb,4)}, {vr(V_XA0)} offset:{c*4096}"]
        for T in range(2):
            for u in range(2):
                r.append(f"ds_read_b64_tr_b16 {vr(fb+8+T*8+2*u,2)}, {vr(V_WA)} offset:{slot*16384 + T*8192 + u*512}")
        r.append(f"ds_read_b128 {vr(fb+4,4)}, {vr(V_XA1)} offset:{c*4096}")
        for T in range(2):
            for u in range(2):
                r.append(f"ds_read_b64_tr_b16 {vr(fb+8+T*8+4+2*u,2)}, {vr(V_WA)} offset:{slot*16384 + T*8192 + 2048 + u*512}")
        return r
    def mfmas(c):
        fb = V_FB[c % 2]
        r = []
        for p in range(2):
            r.append(f"v_mfma_f32_32x32x16_bf16 {vr(V_ACCKV,16)}, {vr(fb+4*p,4)}, {vr(fb+16+4*p,4)}, {vr(V_ACCKV,16)}")
            r.append(f"v_mfma_f32_32x32x16_bf16 {vr(V_ACCQ,16)}, {vr(fb+8+4*p,4)}, {vr(fb+4*p,4)}, {vr(V_ACCQ,16)}")
        return r
    for c in range(16):
        a.wait_vm(f"w{c}", "lgkmcnt(0)")
        a("s_barrier")
        if c == 0:
            for r in reads(c): a(r)
        else:
            R_, M_ = reads(c), mfmas(c - 1)
            a(M_[0])
            for r in R_[:5]: a(r)
            a(M_[1])
            for r in R_[5:]: a(r)
            a(M_[2])
            if c + 3 <= 15: wdma(c + 3)
            a(M_[3])
    a("s_waitcnt lgkmcnt(0)")
    for m in mfmas(15): a(m)
    stamp(2)
    E = V_FB[0]
    def phi(src, n, tmp):
        for i in range(0, n, 2):
            a(f"v_pk_mul_f32 {vr(tmp+i,2)}, {sr(S_LOG2E,2)}, {vr(src+i,2)}")
        for i in range(n):
            a(f"v_exp_f32 {vr(tmp+i)}, {vr(tmp+i)} clamp")
        for i in range(n):
            a(f"v_max_f32 {vr(src+i)}, {sr(S_EPS)}, {vr(src+i)}")
        for i in range(0, n, 2):
            a(f"v_pk_add_f32 {vr(src+i,2)}, {vr(src+i,2)}, {vr(tmp+i,2)}")
    a(f"""s_lshl_b32 {sr(S_T0)}, {sr(S_WAVE)}, 11
          s_add_u32 {sr(S_T0)}, {sr(S_T0)}, {L_HI}
          v_lshrrev_b32 {vr(V_T0)}, 4, {vr(V_LANE)}
          v_lshlrev_b32 {vr(V_T0)}, 4, {vr(V_T0)}
          v_add_u32 {vr(V_XA1)}, {sr(S_T0)}, {vr(V_T0)}
          v_and_b32 {vr(V_T0)}, 15, {vr(V_LANE)}
          v_lshl_add_u32 {vr(V_XA0)}, {vr(V_T0)}, 6, {vr(V_XA1)}
          s_nop 4""")
    for i in range(8):
        a(f"v_permlane16_swap_b32 {vr(V_ACCKV+i)}, {vr(V_ACCKV+8+i)}")
    PKF, VFR, DKV, DZ = E + 8, E + 12, E + 16, E + 20
    a("s_nop 0")
    phi(V_ACCKV, 8, E)
    for i in range(4):
        a(f"v_cvt_pk_bf16_f32 {vr(VFR+i)}, {vr(V_ACCKV+8+2*i)}, {vr(V_ACCKV+8+2*i+1)}")
    for i in range(4):
        a(f"v_cvt_pk_bf16_f32 {vr(PKF+i)}, {vr(V_ACCKV+2*i)}, {vr(V_ACCKV+2*i+1)}")
    for i in range(0, 8, 2):
        a(f"v_pk_mul_f32 {vr(V_ACCQ+i,2)}, {sr(S_QS,2)}, {vr(V_ACCQ+i,2)}")
    a(f"v_mfma_f32_16x16x32_bf16 {vr(DKV,4)}, {vr(PKF,4)}, {vr(VFR,4)}, 0")
    a(f"v_mfma_f32_16x16x32_bf16 {vr(DZ,4)}, {vr(PKF,4)}, {vr(V_VF[0],4)}, 0")
    for i in range(4):
        a(f"v_cvt_pk_bf16_f32 {vr(V_QF+i)}, {vr(V_ACCQ+2*i)}, {vr(V_ACCQ+2*i+1)}")
    phi(V_ACCQ + 8, 8, E)
    for i in range(4):
        a(f"v_cvt_pk_bf16_f32 {vr(V_PQ+i)}, {vr(V_ACCQ+8+2*i)}, {vr(V_ACCQ+8+2*i+1)}")
    stamp(3)
    a("s_barrier")
    stamp(4)
    a(f"""ds_read_b128 {vr(V_KF,4)}, {vr(V_KA)}
          s_mov_b64 exec, {sr(S_VMASK,2)}
          ds_read_b128 {vr(V_VF[0],4)}, {vr(V_VA)} offset:1024
          ds_read_b128 {vr(V_VF[0]+4,4)}, {vr(V_VA)} offset:1536
          ds_read_b128 {vr(V_VF[1],4)}, {vr(V_VA)} offset:{2048+1024}
          ds_read_b128 {vr(V_VF[1]+4,4)}, {vr(V_VA)} offset:{2048+1536}
          s_mov_b64 exec, -1
          ds_write_b128 {vr(V_XA0)}, {vr(DKV,4)}
          ds_write_b128 {vr(V_XA1)}, {vr(DZ,4)} offset:1024
          s_waitcnt lgkmcnt(6)
          v_mfma_f32_32x32x16_bf16 {vr(V_S[0],16)}, {vr(V_KF,4)}, {vr(V_QF,4)}, 0
          ds_read_b128 {vr(V_KF,4)}, {vr(V_KA)} offset:2048""")
    if dbg:
        a(f"""s_lshl_b32 {sr(S_T0)}, {sr(S_RT32)}, 5
              s_add_u32 {sr(S_T0)}, {sr(S_T0)}, {sr(S_HEAD)}
              s_lshl_b32 {sr(S_T0)}, {sr(S_T0)}, 10
              s_add_u32 {sr(S_T1)}, {sr(S_T0)}, {WS_DBG1}
              buffer_store_dwordx4 {vr(V_QF,4)}, {vr(V_L16)}, {sr(S_WS,4)}, {sr(S_T1)} offen
              s_add_u32 {sr(S_T1)}, {sr(S_T0)}, {WS_DBG2}
              buffer_store_dwordx4 {vr(V_PQ,4)}, {vr(V_L16)}, {sr(S_WS,4)}, {sr(S_T1)} offen""")
    S0 = V_S[0]
    a(f"""s_mov_b32 {sr(S_SEG)}, 0
          s_nop 9
          v_max3_f32 {vr(V_T0)}, {vr(S0)}, {vr(S0+1)}, {vr(S0+2)}
          v_max3_f32 {vr(V_T1)}, {vr(S0+3)}, {vr(S0+4)}, {vr(S0+5)}
          v_max3_f32 {vr(V_T2)}, {vr(S0+6)}, {vr(S0+7)}, {vr(S0+8)}
          v_max3_f32 {vr(V_T3)}, {vr(S0+9)}, {vr(S0+10)}, {vr(S0+11)}
          v_max3_f32 {vr(V_T0)}, {vr(V_T0)}, {vr(S0+12)}, {vr(S0+13)}
          v_max3_f32 {vr(V_T1)}, {vr(V_T1)}, {vr(S0+14)}, {vr(S0+15)}
          v_max3_f32 {vr(V_T0)}, {vr(V_T0)}, {vr(V_T1)}, {vr(V_T2)}
          v_max_f32 {vr(V_T0)}, {vr(V_T0)}, {vr(V_T3)}
          v_mov_b32 {vr(V_T1)}, {vr(V_T0)}
          s_nop 1
          v_permlane32_swap_b32 {vr(V_T0)}, {vr(V_T1)}
          s_nop 1
          v_max_f32 {vr(V_T0)}, {vr(V_T0)}, {vr(V_T1)}
          v_sub_f32 {vr(V_T2)}, 0, {vr(V_T0)}
          v_sub_f32 {vr(V_T3)}, 0, {vr(V_T0)}""")
    for i in range(0, 16, 2):
        a(f"v_pk_add_f32 {vr(S0+i,2)}, {vr(S0+i,2)}, {vr(V_T2,2)}")
    for i in range(0, 16, 2):
        a(f"v_pk_mov_b32 {vr(V_C+i,2)}, {vr(V_T2,2)}, {vr(V_T2,2)} op_sel:[0,1]")
    a(f"""v_exp_f32 {vr(S0)}, {vr(S0)}
          v_exp_f32 {vr(S0+1)}, {vr(S0+1)}
          s_waitcnt lgkmcnt(0)""")
    stamp(5)

    a.lines.append("    .p2align 6")
    a.label("L_att")
    for t in range(8):
        cur, nxt = V_S[t % 2], V_S[(t + 1) % 2]
        vf = V_VF[t % 2]
        ex = lambda r: a(f"v_exp_f32 {vr(r)}, {vr(r)}")
        if opts.get("prio", 1) and t in (0, 4, 6, 7): a(f"s_setprio { {0:3, 4:2, 6:1, 7:0}[t] }")
        for i in (2, 3, 4, 5): ex(cur + i)
        a("s_waitcnt lgkmcnt(2)")
        a(f"v_mfma_f32_32x32x16_bf16 {vr(nxt,16)}, {vr(V_KF,4)}, {vr(V_QF,4)}, {vr(V_C,16)}")
        a(f"ds_read_b128 {vr(V_KF,4)}, {vr(V_KA)} offset:{(t+2)*2048}")
        for i in (6, 7, 8, 9, 10): ex(cur + i)
        a(f"v_smfmac_f32_32x32x32_bf16 {vr(V_O,16)}, {vr(vf,4)}, {vr(cur,8)}, {vr(V_IDX)}")
        for i in (11, 12, 13, 14, 15): ex(cur + i)
        ex(nxt); ex(nxt + 1)
        a(f"v_smfmac_f32_32x32x32_bf16 {vr(V_O,16)}, {vr(vf+4,4)}, {vr(cur+8,8)}, {vr(V_IDX)}")
        a(f"""s_mov_b64 exec, {sr(S_VMASK,2)}
              ds_read_b128 {vr(vf,4)}, {vr(V_VA)} offset:{(t+2)*2048+1024}
              ds_read_b128 {vr(vf+4,4)}, {vr(V_VA)} offset:{(t+2)*2048+1536}
              s_mov_b64 exec, -1""")
    a(f"""v_add_u32 {vr(V_KA)}, 0x4000, {vr(V_KA)}
          v_add_u32 {vr(V_VA)}, 0x4000, {vr(V_VA)}
          s_add_u32 {sr(S_SEG)}, {sr(S_SEG)}, 1
          s_bitcmp1_b32 0xc, {sr(S_SEG)}
          s_cbranch_scc1 L_att""")
    for h in (1, 4, 5, 6, 7):
        a(f"""s_cmp_eq_u32 {sr(S_SEG)}, {h}
              s_cbranch_scc1 L_hook{h}""")
    a("s_branch L_attend")

    def ooff(dst, base):
        a(f"""s_lshl_b32 {sr(dst)}, {sr(S_RT32)}, 6
              s_add_u32 {sr(dst)}, {sr(dst)}, {sr(S_HEAD)}
              s_lshl_b32 {sr(dst)}, {sr(dst)}, 10
              s_add_u32 {sr(dst)}, {sr(dst)}, {base}""")
    def oloads(base, dst, tag):
        a(f"""s_lshl_b32 {sr(S_T2)}, {sr(S_RO32)}, 3
              s_add_u32 {sr(S_T2)}, {sr(S_T2)}, {sr(S_HH)}
              s_lshl_b32 {sr(S_T2)}, {sr(S_T2)}, 13""")
        for i in range(8):
            if i % 4 == 0: a(f"s_add_u32 {sr(S_T0)}, {sr(S_T2)}, {base + i*1024}")
            a.vmem(f"buffer_load_dwordx4 {vr(dst+4*i,4)}, {vr(V_L16)}, {sr(S_WS,4)}, {sr(S_T0)} offen offset:{(i%4)*1024} sc1", f"{tag}{i}")

    a.label("L_hook1")
    stamp(11)
    a(f"""v_and_b32 {vr(V_T0)}, 0x7c, {vr(V_L4)}
          s_lshl_b32 {sr(S_T0)}, {sr(S_RT)}, 7
          s_add_u32 {sr(S_T0)}, {sr(S_T0)}, {L_G}
          v_add_u32 {vr(V_T0)}, {sr(S_T0)}, {vr(V_T0)}
          s_barrier
          ds_read_b32 {vr(V_G)}, {vr(V_T0)}
          s_waitcnt lgkmcnt(0)""")
    stamp(12)
    a("s_branch L_att")

    a.label("L_hook4")
    stamp(13)
    a.vm = []
    a(f"""v_and_b32 {vr(V_T0)}, 15, {vr(V_LANE)}
          v_cndmask_b32 {vr(V_T0)}, {vr(V_T0)}, 16, {sr(S_VMASK,2)}
          v_lshrrev_b32 {vr(V_T1)}, 5, {vr(V_LANE)}
          v_lshlrev_b32 {vr(V_T1)}, 4, {vr(V_T1)}
          v_lshl_add_u32 {vr(V_T0)}, {vr(V_T0)}, 6, {vr(V_T1)}
          s_lshl_b32 {sr(S_T0)}, {sr(S_HEAD)}, 11
          s_add_u32 {sr(S_T0)}, {sr(S_T0)}, {WS_ACC}
          s_barrier""")
    a.vmem(f"buffer_load_dwordx4 {vr(V_AC,4)}, {vr(V_T0)}, {sr(S_WS,4)}, {sr(S_T0)} offen sc1", "acc")
    a.vmem(f"buffer_load_dwordx4 {vr(V_AC+4,4)}, {vr(V_T0)}, {sr(S_WS,4)}, {sr(S_T0)} offen offset:32 sc1", "acc")
    stamp(14)
    a("s_branch L_att")

    a.label("L_hook5")
    stamp(15)
    a.wait_vm("acc")
    for i in range(4):
        a(f"v_cvt_pk_bf16_f32 {vr(V_AC+8+i)}, {vr(V_AC+2*i)}, {vr(V_AC+2*i+1)}")
    a(f"""s_nop 1
          v_mfma_f32_32x32x16_bf16 {vr(V_OA,16)}, {vr(V_AC+8,4)}, {vr(V_PQ,4)}, 0""")
    ooff(S_T3, WS_OA)
    a(f"""s_nop 7
          v_add_f32 {vr(V_T0)}, {sr(S_EPS)}, {vr(V_OA)}
          v_rcp_f32 {vr(V_T0)}, {vr(V_T0)}
          s_nop 0
          v_mul_f32 {vr(V_T0)}, {vr(V_T0)}, {vr(V_G)}""")
    for i in range(0, 8, 2):
        a(f"v_pk_mul_f32 {vr(V_OA+8+i,2)}, {vr(V_OA+8+i,2)}, {vr(V_T0,2)} op_sel_hi:[1,0]")
    for i in range(4):
        a(f"v_cvt_pk_bf16_f32 {vr(V_PK+i)}, {vr(V_OA+8+2*i)}, {vr(V_OA+8+2*i+1)}")
    a.vmem(f"buffer_store_dwordx4 {vr(V_PK,4)}, {vr(V_L16)}, {sr(S_WS,4)}, {sr(S_T3)} offen sc1", "oa")
    stamp(16)
    a("s_branch L_att")

    a.label("L_hook6")
    stamp(17)
    a.wait_vm(None)
    a("s_barrier")
    stamp(18)
    a("s_branch L_att")

    a.label("L_hook7")
    stamp(19)
    a(f"""s_lshl_b32 {sr(S_T3)}, {sr(S_QO)}, 7
          s_lshl_b32 {sr(S_T0)}, {sr(S_HH)}, 3
          s_add_u32 {sr(S_T3)}, {sr(S_T3)}, {sr(S_T0)}
          s_add_u32 {sr(S_T3)}, {sr(S_T3)}, {WS_FOA}""")
    flag_load(S_T3, 2, "ffoa")
    a(f"""v_lshrrev_b32 {vr(V_T0)}, 5, {vr(V_LANE)}
          v_lshlrev_b32 {vr(V_T0)}, 9, {vr(V_T0)}
          v_bfe_u32 {vr(V_T1)}, {vr(V_LANE)}, 2, 2
          v_lshl_add_u32 {vr(V_T0)}, {vr(V_T1)}, 7, {vr(V_T0)}
          v_bfe_u32 {vr(V_T1)}, {vr(V_LANE)}, 3, 1
          v_lshl_add_u32 {vr(V_T0)}, {vr(V_T1)}, 6, {vr(V_T0)}
          v_bfe_u32 {vr(V_T1)}, {vr(V_LANE)}, 4, 1
          v_lshl_add_u32 {vr(V_T0)}, {vr(V_T1)}, 5, {vr(V_T0)}
          v_and_b32 {vr(V_T1)}, 3, {vr(V_LANE)}
          v_lshl_add_u32 {vr(V_T0)}, {vr(V_T1)}, 3, {vr(V_T0)}
          s_lshl_b32 {sr(S_T0)}, {sr(S_HH)}, 14
          v_add_u32 {vr(V_WOA0)}, {sr(S_T0)}, {vr(V_T0)}
          v_xor_b32 {vr(V_WOA1)}, 64, {vr(V_WOA0)}
          v_sub_f32 {vr(V_G)}, 1.0, {vr(V_G)}""")
    ooff(S_RDY, WS_OB)
    stamp(20)
    a("s_branch L_att")

    a.label("L_attend")
    stamp(6)
    a(f"""s_mov_b32 {sr(S_T0)}, {hex(f2u(2.0**64))}
          v_rcp_f32 {vr(V_T0)}, {vr(V_O+8)}
          v_cmp_nle_f32 vcc, {vr(V_O+8)}, {sr(S_T0)}
          v_pk_mul_f32 {vr(V_T2,2)}, {vr(V_O,2)}, 0
          v_pk_fma_f32 {vr(V_T2,2)}, {vr(V_O+2,2)}, 0, {vr(V_T2,2)}
          v_pk_fma_f32 {vr(V_T2,2)}, {vr(V_O+4,2)}, 0, {vr(V_T2,2)}
          v_pk_fma_f32 {vr(V_T2,2)}, {vr(V_O+6,2)}, 0, {vr(V_T2,2)}
          v_cmp_u_f32 {sr(S_SAVE,2)}, {vr(V_T2)}, {vr(V_T3)}
          s_or_b64 vcc, vcc, {sr(S_SAVE,2)}
          s_cbranch_vccnz L_fallback""")
    a.label("L_norm")
    a(f"v_mul_f32 {vr(V_T0)}, {vr(V_T0)}, {vr(V_G)}")
    for i in range(0, 8, 2):
        a(f"v_pk_mul_f32 {vr(V_O+i,2)}, {vr(V_O+i,2)}, {vr(V_T0,2)} op_sel_hi:[1,0]")
    for i in range(4):
        a(f"v_cvt_pk_bf16_f32 {vr(V_PK+i)}, {vr(V_O+2*i)}, {vr(V_O+2*i+1)}")
    a.vmem(f"buffer_store_dwordx4 {vr(V_PK,4)}, {vr(V_L16)}, {sr(S_WS,4)}, {sr(S_RDY)} offen sc1", "ob")
    a.wait_vm("ffoa")
    flag_spin("L_sfoa", S_T3, 2)
    oloads(WS_OA, V_FA, "fa")
    a(f"""s_lshl_b32 {sr(S_T3)}, {sr(S_RT32)}, 2
          s_lshr_b32 {sr(S_T2)}, {sr(S_HEAD)}, 3
          s_add_u32 {sr(S_T3)}, {sr(S_T3)}, {sr(S_T2)}
          s_lshl_b32 {sr(S_T3)}, {sr(S_T3)}, 7
          s_and_b32 {sr(S_T2)}, {sr(S_HEAD)}, 7
          s_lshl_b32 {sr(S_T2)}, {sr(S_T2)}, 2
          s_add_u32 {sr(S_T3)}, {sr(S_T3)}, {sr(S_T2)}
          s_add_u32 {sr(S_T3)}, {sr(S_T3)}, {WS_FOB}""")
    a.wait_vm("ob")
    flag_store(S_T3)
    a.vm.append("fl")
    stamp(7)
    a(f"""s_lshl_b32 {sr(S_T3)}, {sr(S_RO32)}, 2
          s_add_u32 {sr(S_T3)}, {sr(S_T3)}, {sr(S_HH)}
          s_lshl_b32 {sr(S_T3)}, {sr(S_T3)}, 7
          s_add_u32 {sr(S_T3)}, {sr(S_T3)}, {WS_FOB}""")
    def oproj(src, tag, first, mid=None):
        def rd(i):
            b = V_WO + 8 * (i % 4)
            for nt in range(2):
                for u in range(2):
                    a(f"ds_read_b64_tr_b16 {vr(b+4*nt+2*u,2)}, {vr(V_WOA0 if nt==0 else V_WOA1)} offset:{i*2048 + u*1024}")
        rd(0); rd(1); rd(2)
        for i in range(8):
            n_after = 4 * (min(i + 2, 7) - i)
            a.wait_vm(f"{tag}{i}", f"lgkmcnt({n_after})")
            b = V_WO + 8 * (i % 4)
            for nt in range(2):
                a(f"v_mfma_f32_32x32x16_bf16 {vr(V_OUT[nt],16)}, {vr(b+4*nt,4)}, {vr(src+4*i,4)}, {'0' if (first and i==0) else vr(V_OUT[nt],16)}")
            if i + 3 < 8: rd(i + 3)
            if mid and i == 3: mid()
    oproj(V_FA, "fa", True, mid=lambda: flag_load(S_T3, 8, "ffob"))
    stamp(8)
    a.wait_vm(None)
    flag_spin("L_sfob", S_T3, 8)
    oloads(WS_OB, V_FBB, "fb")
    stamp(9)
    a(f"""s_cmp_lt_u32 {sr(S_HH)}, 2
          s_cselect_b32 {sr(S_T0)}, 4, 1
          s_lshl_b32 {sr(S_T0)}, {sr(S_T0)}, 15
          v_add_u32 {vr(V_WOA0)}, {sr(S_T0)}, {vr(V_WOA0)}
          v_add_u32 {vr(V_WOA1)}, {sr(S_T0)}, {vr(V_WOA1)}
          v_and_b32 {vr(V_T0)}, 31, {vr(V_LANE)}
          v_lshrrev_b32 {vr(V_T1)}, 5, {vr(V_LANE)}
          v_and_b32 {vr(V_T2)}, 7, {vr(V_LANE)}
          v_xor_b32 {vr(V_T1)}, {vr(V_T1)}, {vr(V_T2)}
          v_lshlrev_b32 {vr(V_T1)}, 4, {vr(V_T1)}
          v_lshl_add_u32 {vr(V_T0)}, {vr(V_T0)}, 8, {vr(V_T1)}
          s_lshl_b32 {sr(S_T0)}, {sr(S_HH)}, 14
          s_lshl_b32 {sr(S_T1)}, {sr(S_RT)}, 13
          s_add_u32 {sr(S_T0)}, {sr(S_T0)}, {sr(S_T1)}
          v_add_u32 {vr(V_T0)}, {sr(S_T0)}, {vr(V_T0)}
          v_xor_b32 {vr(V_T1)}, 32, {vr(V_T0)}
          v_xor_b32 {vr(V_T2)}, 64, {vr(V_T0)}
          v_xor_b32 {vr(V_T3)}, 96, {vr(V_T0)}""")
    A0, A1, A2, A3 = V_XA0, V_XA1, V_WA, V_KA
    a(f"""v_lshrrev_b32 {vr(A0)}, 3, {vr(V_LANE)}
          v_and_b32 {vr(A1)}, 7, {vr(V_LANE)}
          v_lshlrev_b32 {vr(A2)}, 1, {vr(A1)}
          v_xor_b32 {vr(A2)}, {vr(A2)}, {vr(A0)}
          v_lshlrev_b32 {vr(A2)}, 4, {vr(A2)}
          v_lshl_add_u32 {vr(A2)}, {vr(A0)}, 8, {vr(A2)}
          s_lshl_b32 {sr(S_T0)}, {sr(S_WAVE)}, 11
          v_add_u32 {vr(A2)}, {sr(S_T0)}, {vr(A2)}
          v_xor_b32 {vr(A3)}, 16, {vr(A2)}
          v_lshlrev_b32 {vr(A1)}, 4, {vr(A1)}
          v_lshl_add_u32 {vr(A0)}, {vr(A0)}, 10, {vr(A1)}
          s_lshl_b32 {sr(S_T0)}, {sr(S_QO)}, 16
          s_lshl_b32 {sr(S_T1)}, {sr(S_WAVE)}, 13
          s_add_u32 {sr(S_T0)}, {sr(S_T0)}, {sr(S_T1)}
          s_lshl_b32 {sr(S_T1)}, {sr(S_NS)}, 7
          s_add_u32 {sr(S_T0)}, {sr(S_T0)}, {sr(S_T1)}
          s_barrier""")
    oproj(V_FBB, "fb", False)
    a("s_nop 10")
    for nt in range(2):
        for g in range(4):
            a(f"ds_write_b128 {vr(V_T0+g)}, {vr(V_OUT[nt]+4*g,4)} offset:{nt*128}")
    a("""s_waitcnt lgkmcnt(0)
         s_barrier""")
    RR = V_FA
    for k in range(4):
        a(f"ds_read_b128 {vr(RR+8*k,4)}, {vr(A2)} offset:{k*16384}")
        a(f"ds_read_b128 {vr(RR+8*k+4,4)}, {vr(A3)} offset:{k*16384}")
    for k in range(1, 4):
        a(f"s_waitcnt lgkmcnt({2*(3-k)})")
        for i in range(0, 8, 2):
            a(f"v_pk_add_f32 {vr(RR+i,2)}, {vr(RR+i,2)}, {vr(RR+8*k+i,2)}")
    for i in range(4):
        a(f"v_cvt_pk_bf16_f32 {vr(RR+8+i)}, {vr(RR+2*i)}, {vr(RR+2*i+1)}")
    a(f"buffer_store_dwordx4 {vr(RR+8,4)}, {vr(A0)}, {sr(S_OUT,4)}, {sr(S_T0)} offen")
    def ts_out():
        a(f"""s_mul_i32 {sr(S_T0)}, s2, 9
              s_add_u32 {sr(S_T0)}, {sr(S_T0)}, {sr(S_WAVE)}
              s_lshl_b32 {sr(S_T0)}, {sr(S_T0)}, 8
              s_add_u32 {sr(S_T0)}, {sr(S_T0)}, {WS_TS}
              buffer_store_dword v{V_STAMP}, {vr(V_L4)}, {sr(S_WS,4)}, {sr(S_T0)} offen""")
    if ts:
        stamp(10)
        ts_out()
        a(f"""s_cmp_lg_u32 s2, {opts.get('tswg', 100)}
              s_cbranch_scc1 L_end
              s_cmp_lg_u32 {sr(S_WAVE)}, 0
              s_cbranch_scc1 L_end
              v_readlane_b32 {sr(S_T0)}, v{V_STAMP}, 0
              s_nop 4
              v_subrev_u32 v{V_STAMP}, {sr(S_T0)}, v{V_STAMP}
              buffer_store_dword v{V_STAMP}, {vr(V_L4)}, {sr(S_DBG,4)}, 0 offen""")
    a.label("L_end")
    a("s_endpgm")

    a.label("L_fallback")
    FS = V_S[0]
    a(f"""v_mov_b32 {vr(V_T0)}, 0xff800000
          s_mov_b32 {sr(S_T0)}, {WS_KV}""")
    a.label("L_fb1")
    a(f"""buffer_load_dwordx4 {vr(V_KF,4)}, {vr(V_L16)}, {sr(S_WS,4)}, {sr(S_T0)} offen sc1
          s_waitcnt vmcnt(0)
          v_mfma_f32_32x32x16_bf16 {vr(FS,16)}, {vr(V_KF,4)}, {vr(V_QF,4)}, 0
          s_nop 15""")
    for i in range(8):
        a(f"v_max3_f32 {vr(V_T0)}, {vr(V_T0)}, {vr(FS+2*i)}, {vr(FS+2*i+1)}")
    a(f"""s_add_u32 {sr(S_T0)}, {sr(S_T0)}, 2048
          s_cmp_lt_u32 {sr(S_T0)}, {WS_KV + 131072}
          s_cbranch_scc1 L_fb1
          v_mov_b32 {vr(V_T1)}, {vr(V_T0)}
          s_nop 1
          v_permlane32_swap_b32 {vr(V_T0)}, {vr(V_T1)}
          s_nop 1
          v_max_f32 {vr(V_T0)}, {vr(V_T0)}, {vr(V_T1)}""")
    for i in range(16):
        a(f"v_sub_f32 {vr(V_C+i)}, 0, {vr(V_T0)}")
        a(f"v_mov_b32 {vr(V_O+i)}, 0")
    a(f"""v_and_b32 {vr(V_VA)}, 0x3ff, {vr(V_VA)}
          s_mov_b32 {sr(S_T0)}, {WS_KV}""")
    a.label("L_fb2")
    a(f"""buffer_load_dwordx4 {vr(V_KF,4)}, {vr(V_L16)}, {sr(S_WS,4)}, {sr(S_T0)} offen sc1
          s_mov_b64 exec, {sr(S_VMASK,2)}
          buffer_load_dwordx4 {vr(V_VF[0],4)}, {vr(V_VA)}, {sr(S_WS,4)}, {sr(S_T0)} offen offset:1024 sc1
          buffer_load_dwordx4 {vr(V_VF[0]+4,4)}, {vr(V_VA)}, {sr(S_WS,4)}, {sr(S_T0)} offen offset:1536 sc1
          s_mov_b64 exec, -1
          s_waitcnt vmcnt(0)
          v_mfma_f32_32x32x16_bf16 {vr(FS,16)}, {vr(V_KF,4)}, {vr(V_QF,4)}, {vr(V_C,16)}
          s_nop 15""")
    for i in range(16):
        a(f"v_exp_f32 {vr(FS+i)}, {vr(FS+i)}")
    a(f"""s_nop 1
          v_smfmac_f32_32x32x32_bf16 {vr(V_O,16)}, {vr(V_VF[0],4)}, {vr(FS,8)}, {vr(V_IDX)}
          v_smfmac_f32_32x32x32_bf16 {vr(V_O,16)}, {vr(V_VF[0]+4,4)}, {vr(FS+8,8)}, {vr(V_IDX)}
          s_add_u32 {sr(S_T0)}, {sr(S_T0)}, 2048
          s_cmp_lt_u32 {sr(S_T0)}, {WS_KV + 131072}
          s_cbranch_scc1 L_fb2
          s_nop 15
          v_rcp_f32 {vr(V_T0)}, {vr(V_O+8)}
          s_nop 0
          s_branch L_norm""")

    a.label("L_helper")
    a.vm = []
    HX, HW, HD = 16, 80, 144
    H_GA = [8, 9, 10, 12]
    H_GX = [16, 32]
    H_GACC = [48, 49, 50, 51]
    H_F4 = 148
    H_FOFF = 152
    H_GWR = [56, 72]
    H_Z = 88
    a(f"""s_setprio {opts.get("hprio", 3)}
          s_lshl_b32 {sr(S_T1)}, {sr(S_RGJ)}, 14
          s_add_u32 {sr(S_T0)}, {sr(S_T0)}, {sr(S_T1)}
          s_lshl_b32 {sr(S_T1)}, {sr(S_RGJ)}, 10
          s_add_u32 {sr(S_T1)}, {sr(S_T1)}, {L_X}
          s_mov_b32 {sr(S_WJ+2)}, 16384
          s_mov_b32 {sr(S_WJ+3)}, 0x20000
          s_mov_b32 {sr(S_T2)}, 0
          s_bitcmp1_b32 {sr(S_HG)}, 0
          s_waitcnt lgkmcnt(0)
          s_mov_b32 {sr(S_X)}, {sr(S_KA+0)}
          s_mov_b32 {sr(S_X+1)}, {sr(S_KA+1)}
          s_cselect_b32 {sr(S_WJ)}, {sr(S_KA+12)}, {sr(S_KA+10)}
          s_cselect_b32 {sr(S_WJ+1)}, {sr(S_KA+13)}, {sr(S_KA+11)}
          s_load_dword {sr(S_TAG)}, {sr(S_KA+22,2)}, {WS_E}""")
    for g in range(4):
        for k in range(4):
            kb = 4 * g + k
            a(f"s_add_u32 m0, {sr(S_T1)}, {kb*4096 - k*64}")
            a(f"s_add_u32 {sr(S_T3)}, {sr(S_T0)}, {g*256}" if k == 0 else "s_nop 0")
            a.vmem(f"buffer_load_dwordx4 {vr(V_XOFF)}, {sr(S_X,4)}, {sr(S_T3)} offen offset:{k*64} lds", f"j{g}")
        a(f"s_mov_b32 m0, {L_MISC + g*4096}")
        a(f"s_mov_b32 {sr(S_T2)}, {g*4096}")
        for k in range(4):
            a.vmem(f"buffer_load_dwordx4 {vr(V_L16)}, {sr(S_WJ,4)}, {sr(S_T2)} offen offset:{k*1024} lds", f"j{g}")
    srd(S_FREE2, 16, 1024)
    a(f"s_mov_b32 m0, {L_GW}\ns_nop 0")
    a.vmem(f"buffer_load_dwordx4 {vr(V_L16)}, {sr(S_FREE2,4)}, 0 offen lds", "gw")
    srd(S_WS, 22, WS_SIZE)
    srd(S_WOA, 4, 0x80000)
    srd(S_WOB, 14, 0x80000)
    omap()
    a(f"""v_and_b32 {vr(V_T0)}, 15, {vr(V_LANE)}
          v_lshrrev_b32 {vr(V_T1)}, 4, {vr(V_LANE)}
          v_bfe_u32 {vr(V_T2)}, {vr(V_LANE)}, 2, 2
          v_xor_b32 {vr(V_T2)}, {vr(V_T2)}, {vr(V_T1)}
          v_lshlrev_b32 {vr(V_T2)}, 4, {vr(V_T2)}
          v_lshl_add_u32 {vr(V_T2)}, {vr(V_T0)}, 6, {vr(V_T2)}
          v_add_u32 {vr(V_T2)}, {sr(S_T1)}, {vr(V_T2)}
          v_lshlrev_b32 {vr(V_T3)}, 3, {vr(V_T0)}
          v_lshl_add_u32 {vr(V_T3)}, {vr(V_T1)}, 8, {vr(V_T3)}""")
    a(f"""v_lshlrev_b32 {vr(13)}, 4, {vr(V_T0)}
          v_and_b32 {vr(14)}, 1, {vr(V_T1)}
          v_lshrrev_b32 {vr(15)}, 1, {vr(V_T1)}
          s_lshr_b32 {sr(S_T0)}, {sr(S_QB)}, 3
          s_lshl_b32 {sr(S_T0)}, {sr(S_T0)}, 4
          s_lshr_b32 {sr(S_T1)}, {sr(S_RGJ)}, 1
          s_lshl_b32 {sr(S_T1)}, {sr(S_T1)}, 3
          s_add_u32 {sr(S_T0)}, {sr(S_T0)}, {sr(S_T1)}
          s_and_b32 {sr(S_T1)}, {sr(S_QB)}, 7
          s_add_u32 {sr(S_SEG)}, {sr(S_T0)}, {sr(S_T1)}
          s_and_b32 {sr(S_T1)}, {sr(S_RGJ)}, 1
          s_and_b32 {sr(S_HEAD)}, s2, 7
          s_lshl_b32 {sr(S_HEAD)}, {sr(S_HEAD)}, 3""")
    tag_setup()
    def job(isV):
        for g in range(4):
            a(f"s_waitcnt vmcnt({8*(3-g)+1})")
            for k in range(4):
                s = 4 * g + k
                a(f"ds_read_b128 {vr(HX+4*s,4)}, {vr(V_T2)} offset:{s*4096}")
                a(f"ds_read_b64_tr_b16 {vr(HW+4*s,2)}, {vr(V_T3)} offset:{L_MISC + s*1024}")
                a(f"ds_read_b64_tr_b16 {vr(HW+4*s+2,2)}, {vr(V_T3)} offset:{L_MISC + s*1024 + 128}")
            for k in range(4):
                s = 4 * g + k
                A_, B_ = (HX, HW) if isV else (HW, HX)
                a(f"s_waitcnt lgkmcnt({9-3*k})")
                a(f"v_mfma_f32_16x16x32_bf16 {vr(HD,4)}, {vr(A_+4*s,4)}, {vr(B_+4*s,4)}, {'0' if s==0 else vr(HD,4)}")
        if isV:
            a(f"""v_lshl_add_u32 {vr(13)}, {vr(15)}, 8, {vr(13)}
                  v_lshl_add_u32 {vr(13)}, {vr(14)}, 3, {vr(13)}
                  s_lshl_b32 {sr(S_T1)}, {sr(S_T1)}, 9
                  s_add_u32 {sr(S_T1)}, {sr(S_T1)}, 1024""")
        else:
            a(f"""v_lshl_add_u32 {vr(13)}, {vr(14)}, 9, {vr(13)}
                  v_lshl_add_u32 {vr(13)}, {vr(15)}, 3, {vr(13)}
                  s_lshl_b32 {sr(S_T1)}, {sr(S_T1)}, 8
                  s_nop 0""")
    a(f"""s_bitcmp1_b32 {sr(S_HG)}, 0
          s_cbranch_scc1 L_jobV""")
    job(False)
    a("s_branch L_jobdone")
    a.label("L_jobV")
    job(True)
    a.label("L_jobdone")
    a.vm = []
    a(f"""s_lshl_b32 {sr(S_T0)}, {sr(S_SEG)}, 11
          s_add_u32 {sr(S_T0)}, {sr(S_T0)}, {sr(S_T1)}
          s_add_u32 {sr(S_T0)}, {sr(S_T0)}, {WS_KV}
          s_nop 1
          v_cvt_pk_bf16_f32 {vr(HD+4)}, {vr(HD)}, {vr(HD+1)}
          v_cvt_pk_bf16_f32 {vr(HD+5)}, {vr(HD+2)}, {vr(HD+3)}
          v_mov_b32 {vr(14)}, 0
          s_lshl_b32 {sr(S_T1)}, s2, 8
          s_add_u32 {sr(S_T1)}, {sr(S_T1)}, {WS_ACC}
          buffer_store_dwordx2 {vr(HD+4,2)}, {vr(13)}, {sr(S_WS,4)}, {sr(S_T0)} offen sc1
          buffer_store_dword {vr(14)}, {vr(V_L4)}, {sr(S_WS,4)}, {sr(S_T1)} offen sc1""")
    stamp(1)
    a(f"""v_bfe_u32 {vr(V_T0)}, {vr(V_LANE)}, 2, 2
          v_lshlrev_b32 {vr(V_T0)}, 4, {vr(V_T0)}
          v_lshl_add_u32 {vr(V_T0)}, {vr(V_LANE)}, 6, {vr(V_T0)}
          v_add_u32 {vr(H_GA[0])}, {L_X}, {vr(V_T0)}
          v_xor_b32 {vr(H_GA[1])}, 16, {vr(H_GA[0])}
          v_xor_b32 {vr(H_GA[2])}, 32, {vr(H_GA[0])}
          v_xor_b32 {vr(H_GA[3])}, 48, {vr(H_GA[0])}
          v_mov_b32 {vr(H_GACC[0])}, 0
          v_mov_b32 {vr(H_GACC[1])}, 0
          v_mov_b32 {vr(H_GACC[2])}, 0
          v_mov_b32 {vr(H_GACC[3])}, 0
          v_add_u32 {vr(H_FOFF)}, {sr(S_HEAD)}, {vr(V_LANE)}
          v_and_b32 {vr(H_FOFF)}, 63, {vr(H_FOFF)}
          v_lshlrev_b32 {vr(H_FOFF)}, 4, {vr(H_FOFF)}
          s_lshl_b32 {sr(S_T3)}, {sr(S_SEG)}, 4
          s_and_b32 {sr(S_T0)}, {sr(S_HG)}, 3
          s_lshl_b32 {sr(S_T0)}, {sr(S_T0)}, 2
          s_add_u32 {sr(S_T3)}, {sr(S_T3)}, {sr(S_T0)}
          s_add_u32 {sr(S_T3)}, {sr(S_T3)}, {WS_FKV}
          v_mov_b32 {vr(H_Z)}, 0
          s_mov_b32 {sr(S_RDY)}, 0
          s_waitcnt vmcnt(2)""")
    a(f"""v_lshrrev_b32 {vr(V_T0)}, 3, {vr(V_LANE)}
          v_bfe_u32 {vr(V_T1)}, {vr(V_LANE)}, 4, 1
          v_lshlrev_b32 {vr(V_T1)}, 2, {vr(V_T1)}
          v_xor_b32 {vr(V_T1)}, {vr(V_T1)}, {vr(V_LANE)}
          v_and_b32 {vr(V_T1)}, 7, {vr(V_T1)}
          v_lshlrev_b32 {vr(V_T1)}, 4, {vr(V_T1)}
          v_lshl_add_u32 {vr(V_WOFF)}, {vr(V_T0)}, 10, {vr(V_T1)}""")
    def kv_sample():
        a(f"buffer_load_dwordx4 {vr(H_F4,4)}, {vr(H_FOFF)}, {sr(S_WS,4)}, 0 offen offset:{WS_FKV} sc1")
    def kv_mask():
        a(f"""v_cmp_ne_u32 vcc, {vr(H_F4)}, {vr(V_TAG)}
              v_cmp_ne_u32 {sr(S_SAVE,2)}, {vr(H_F4+1)}, {vr(V_TAG)}
              s_or_b64 vcc, vcc, {sr(S_SAVE,2)}
              v_cmp_ne_u32 {sr(S_SAVE,2)}, {vr(H_F4+2)}, {vr(V_TAG)}
              s_or_b64 vcc, vcc, {sr(S_SAVE,2)}
              v_cmp_ne_u32 {sr(S_SAVE,2)}, {vr(H_F4+3)}, {vr(V_TAG)}
              s_or_b64 vcc, vcc, {sr(S_SAVE,2)}""")
    def kv_dma(lbl, s0, s1):
        a(f"s_mov_b32 {sr(S_T0)}, {s0}")
        a.label(lbl)
        a(f"""s_add_u32 {sr(S_T1)}, {sr(S_T0)}, {sr(S_HEAD)}
              s_and_b32 {sr(S_T1)}, {sr(S_T1)}, 63
              s_lshl_b32 {sr(S_T1)}, {sr(S_T1)}, 11
              s_add_u32 {sr(S_T1)}, {sr(S_T1)}, {WS_KV}
              s_lshl_b32 m0, {sr(S_T0)}, 11
              s_waitcnt vmcnt(40)""")
        for k in range(4):
            a(f"buffer_load_dwordx4 {vr(V_L16)}, {sr(S_WS,4)}, {sr(S_T1)} offen offset:{k*1024} sc1 lds")
        a(f"""s_add_u32 m0, m0, 4096
              s_add_u32 {sr(S_T1)}, {sr(S_T1)}, 4096""")
        for k in range(4):
            a(f"buffer_load_dwordx4 {vr(V_L16)}, {sr(S_WS,4)}, {sr(S_T1)} offen offset:{k*1024} sc1 lds")
        a(f"""s_add_u32 {sr(S_T0)}, {sr(S_T0)}, 4
              s_cmp_lt_u32 {sr(S_T0)}, {s1}
              s_cbranch_scc1 {lbl}""")
    def kv_spin(lbl, lo_only):
        a(f"s_mov_b32 {sr(S_SPIN)}, 0")
        a.label(lbl + "_loop")
        kv_mask()
        if lo_only:
            a(f"s_and_b32 {sr(S_SAVE)}, vcc_lo, {hex((1 << NSA) - 1)}\ns_cmp_eq_u32 {sr(S_SAVE)}, 0")
        else:
            a("s_cmp_eq_u64 vcc, 0")
        a(f"""s_cbranch_scc1 {lbl}_ok
              s_add_u32 {sr(S_SPIN)}, {sr(S_SPIN)}, 1
              s_cmp_ge_u32 {sr(S_SPIN)}, 100000
              s_cbranch_scc1 {lbl}_ok""")
        kv_sample()
        a(f"""s_waitcnt vmcnt(0)
              s_branch {lbl}_loop""")
        a.label(lbl + "_ok")
    C_SIG = opts.get("c_sig", 1)
    C_SMP = opts.get("c_smp", 9)
    C_CHK = opts.get("c_chk", 12)
    def gate_dots(c):
        if opts.get("nogate"): return
        for q in range(4):
            for r in range(4):
                a(f"v_dot2c_f32_bf16 {vr(H_GACC[r])}, {vr(H_GWR[c%2]+4*q+r)}, {vr(H_GX[c%2]+4*q+r)}")
    for c in range(16):
        a("s_barrier")
        if c > 0: a("s_waitcnt lgkmcnt(0)")
        for q in range(4):
            a(f"ds_read_b128 {vr(H_GX[c%2]+4*q,4)}, {vr(H_GA[q])} offset:{c*4096}")
            a(f"ds_read_b128 {vr(H_GWR[c%2]+4*q,4)}, {vr(H_Z)} offset:{L_GW + c*64 + q*16}")
        if c > 0: gate_dots(c - 1)
        if c == C_SIG:
            a("s_waitcnt vmcnt(0)")
            flag_store(S_T3)
            stamp(2)
        if c == C_SMP:
            kv_sample()
        if c == C_CHK:
            a("s_waitcnt vmcnt(0)")
            kv_mask()
            a(f"""s_and_b32 {sr(S_SAVE)}, vcc_lo, {hex((1 << NSA) - 1)}
                  s_cmp_eq_u32 {sr(S_SAVE)}, 0
                  s_cselect_b32 {sr(S_RDY)}, 1, 0""")
        if c in (C_CHK + 1, C_CHK + 2):
            h = c - C_CHK - 1
            a(f"""s_cmp_eq_u32 {sr(S_RDY)}, 0
                  s_cbranch_scc1 L_hskip{c}""")
            kv_dma(f"L_kvdA{h}", 8 * h, min(8 * h + 8, NSA))
            a.label(f"L_hskip{c}")
    a("s_waitcnt lgkmcnt(0)")
    gate_dots(15)
    stamp(3)
    a(f"""s_cmp_lg_u32 {sr(S_RDY)}, 0
          s_cbranch_scc1 L_hrdy""")
    kv_spin("L_skvA", True)
    kv_dma("L_kvdA2", 0, NSA)
    a.label("L_hrdy")
    kv_sample()
    a(f"""s_mov_b32 {sr(S_T0)}, {hex(f2u(LOG2E))}
          v_add_f32 {vr(H_GACC[0])}, {vr(H_GACC[0])}, {vr(H_GACC[1])}
          v_add_f32 {vr(H_GACC[2])}, {vr(H_GACC[2])}, {vr(H_GACC[3])}
          v_add_f32 {vr(H_GACC[0])}, {vr(H_GACC[0])}, {vr(H_GACC[2])}
          v_mul_f32 {vr(H_GACC[0])}, {sr(S_T0)}, {vr(H_GACC[0])}
          v_exp_f32 {vr(H_GACC[0])}, -{vr(H_GACC[0])}
          v_add_u32 {vr(V_T0)}, {L_G}, {vr(V_L4)}
          v_add_f32 {vr(H_GACC[0])}, 1.0, {vr(H_GACC[0])}
          v_rcp_f32 {vr(H_GACC[0])}, {vr(H_GACC[0])}
          s_waitcnt vmcnt(1)""")
    stamp(4)
    a(f"""s_barrier
          ds_write_b32 {vr(V_T0)}, {vr(H_GACC[0])}
          s_waitcnt vmcnt(0)""")
    kv_spin("L_skvB", False)
    stamp(5)
    kv_dma("L_kvdB", NSA, 64)
    a(f"""s_cmp_lg_u32 s2, 0
          s_cbranch_scc1 L_noep
          s_mov_b32 {sr(S_T0)}, {WS_E}""")
    flag_store(S_T0)
    a.label("L_noep")
    a(f"""v_add_u32 {vr(V_T0)}, {L_HI}, {vr(V_L4)}
          v_lshrrev_b32 {vr(V_T2)}, 4, {vr(V_LANE)}
          v_and_b32 {vr(V_T3)}, 0x3c, {vr(V_L4)}
          v_lshl_add_u32 {vr(V_T1)}, {vr(V_T2)}, 12, {vr(V_T3)}
          v_add_u32 {vr(V_T1)}, {L_HI + 1024}, {vr(V_T1)}
          v_lshl_add_u32 {vr(V_T2)}, {vr(V_T2)}, 11, {vr(V_T3)}
          s_waitcnt vmcnt(0) lgkmcnt(0)""")
    stamp(11)
    a("s_barrier")
    P0, P1 = 16, 40
    a(f"""s_lshl_b32 {sr(S_T0)}, {sr(S_HG)}, 13
          s_add_u32 {sr(S_T0)}, {sr(S_T0)}, {WS_ACC}""")
    for hh in range(4):
        for i in range(4):
            a(f"ds_read_b32 {vr(P0+4*hh+i)}, {vr(V_T0)} offset:{hh*4096 + i*256}")
            a(f"ds_read_b32 {vr(P1+4*hh+i)}, {vr(V_T0)} offset:{hh*4096 + 2048 + i*256}")
        if hh == 3:
            a(f"ds_read_b32 {vr(P0+16)}, {vr(V_T1)}")
            a(f"ds_read_b32 {vr(P1+16)}, {vr(V_T1)} offset:2048")
        a("s_waitcnt lgkmcnt(0)")
        for i in range(4 if hh < 3 else 5):
            a(f"v_add_f32 {vr(P0+4*hh+i)}, {vr(P0+4*hh+i)}, {vr(P1+4*hh+i)}")
        if hh == 2: a(f"s_add_u32 {sr(S_T1)}, {sr(S_T0)}, 4096")
        for i in range(4):
            a(f"buffer_atomic_add_f32 {vr(P0+4*hh+i)}, {vr(V_L4)}, {sr(S_WS,4)}, {sr(S_T0 if hh < 2 else S_T1)} offen offset:{(hh%2)*2048 + i*256} sc1")
    a(f"""buffer_atomic_add_f32 {vr(P0+16)}, {vr(V_T2)}, {sr(S_WS,4)}, {sr(S_T0)} offen offset:1024 sc1
          s_lshl_b32 {sr(S_T3)}, {sr(S_HG)}, 7
          s_add_u32 {sr(S_T3)}, {sr(S_T3)}, {WS_FA}
          s_lshl_b32 {sr(S_T0)}, {sr(S_QB)}, 2
          s_add_u32 {sr(S_T0)}, {sr(S_T0)}, {sr(S_T3)}
          s_waitcnt vmcnt(0)""")
    flag_store(S_T0)
    stamp(12)
    a(f"v_mov_b32 {vr(V_FLG)}, 0\nv_not_b32 {vr(V_FLG)}, {vr(V_TAG)}\ns_sleep 32")
    flag_spin("L_sfa", S_T3, 32)
    stamp(13)
    a("s_barrier")
    def wodma(lbl, srdw, r0, nrows, dst):
        a(f"""s_lshl_b32 {sr(S_T0)}, {sr(S_NS)}, 7
              s_add_u32 {sr(S_T0)}, {sr(S_T0)}, {r0*1024}
              s_mov_b32 m0, {dst}""")
        a.label(lbl)
        a("s_waitcnt vmcnt(40)")
        for i in range(4):
            a(f"buffer_load_dwordx4 {vr(V_WOFF)}, {sr(srdw,4)}, {sr(S_T0)} offen lds")
            a(f"""s_add_u32 m0, m0, 1024
                  s_add_u32 {sr(S_T0)}, {sr(S_T0)}, 8192""")
        a(f"""s_cmp_lt_u32 m0, {dst + nrows*128}
              s_cbranch_scc1 {lbl}""")
    wodma("L_woa", S_WOA, 0, 512, 0)
    wodma("L_wob0", S_WOB, 0, 256, L_HI)
    a(f"""s_lshl_b32 {sr(S_T3)}, {sr(S_QB)}, 7
          s_lshl_b32 {sr(S_T0)}, {sr(S_HG)}, 2
          s_add_u32 {sr(S_T3)}, {sr(S_T3)}, {sr(S_T0)}
          s_add_u32 {sr(S_T3)}, {sr(S_T3)}, {WS_FOA}
          s_waitcnt vmcnt(0)""")
    stamp(17)
    a("s_barrier")
    flag_store(S_T3)
    wodma("L_wob1", S_WOB, 256, 256, 65536)
    a("s_waitcnt vmcnt(0)")
    if ts:
        stamp(18)
        ts_out()
    a("""s_barrier
         s_endpgm""")

    head = open("cdna_kernels/" + NAME + ".s.ref").read().split("\n")
    hdr = [l for l in head if l.startswith(";") and "@launch" not in l and "Override" not in l and "grid=ceil" not in l]
    out = "\n".join(hdr) + f"\n; @launch grid=(256,1,1) block=(576,1,1) lds={LDS_SIZE}\n"
    out += f""".amdgcn_target "amdgcn-amd-amdhsa--gfx950"
.text
.globl {NAME}_kernel
.p2align 8
.type {NAME}_kernel,@function
"""
    out += a.text()
    out += f""".section .rodata,"a"
.p2align 6
.amdhsa_kernel {NAME}_kernel
  .amdhsa_next_free_vgpr {NVGPR}
  .amdhsa_next_free_sgpr 102
  .amdhsa_accum_offset {NVGPR}
  .amdhsa_group_segment_fixed_size 0
  .amdhsa_kernarg_size 96
  .amdhsa_user_sgpr_count 2
  .amdhsa_user_sgpr_kernarg_segment_ptr 1
  .amdhsa_system_sgpr_workgroup_id_x 1
.end_amdhsa_kernel
"""
    return out

if __name__ == "__main__":
    opts = {}
    outp = "cdna_kernels/" + NAME + ".s"
    for arg in sys.argv[1:]:
        if arg.startswith("-o"):
            outp = arg[2:]
        elif "=" in arg:
            k, v = arg.split("=")
            opts[k] = int(v)
        else:
            opts[arg] = True
    open(outp, "w").write(gen(opts))
    print("wrote", outp)
```

```python
import sys, math, struct

NAME = "gated_mix__linear_attn_block__grouped_kv_mqa__prompt"

def f2u(x):
    return struct.unpack("<I", struct.pack("<f", x))[0]

class Asm:
    def __init__(self):
        self.lines = []
        self.vm = []
    def __call__(self, s):
        for l in s.split("\n"):
            l = l.strip()
            if l:
                self.lines.append("    " + l)
    def label(self, l):
        self.lines.append(l + ":")
    def vmem(self, s, tag):
        self(s)
        self.vm.append(tag)
    def vm_n(self, tag):
        idx = max(i for i, t in enumerate(self.vm) if t == tag)
        return len(self.vm) - 1 - idx
    def drop_to(self, n):
        self.vm = self.vm[len(self.vm) - n:] if n else []
    def wait_vm(self, tag, extra=""):
        n = 0 if tag is None else self.vm_n(tag)
        self.drop_to(n)
        assert n <= 63
        self(f"s_waitcnt vmcnt({n}) {extra}".strip())
    def text(self):
        return "\n".join(self.lines) + "\n"

def vr(a, n=1):
    return f"v{a}" if n == 1 else f"v[{a}:{a+n-1}]"
def sr(a, n=1):
    return f"s{a}" if n == 1 else f"s[{a}:{a+n-1}]"

WS_E = 0x000000
WS_FKV = 0x000400
WS_FA = 0x001000
WS_FOA = 0x002000
WS_FOB = 0x00C000
WS_KV = 0x020000
WS_ACC = 0x040000
WS_OA = 0x200000
WS_OB = 0x208000
WS_DBG1 = 0x600000
WS_DBG2 = 0x800000
WS_TS = 0xA00000
WS_SIZE = 0x1000000
L_MISC = 0
L_X = 32768
L_RING = 98304
L_HI = 131072
L_G = L_HI + 16384
L_GW = 31 * 1024
NSA = 12
LDS_SIZE = 163840
LOG2E = 1.4426950408889634
QSCALE = 0.25 * LOG2E
NVGPR = 168

S_TAG, S_QO, S_NS, S_RDY = 4, 5, 6, 7
S_X, S_W, S_WJ, S_FREE, S_FREE2, S_WOA, S_WOB, S_OUT, S_DBG, S_WS = 8, 12, 16, 20, 24, 28, 32, 36, 40, 44
S_WAVE, S_QB, S_HG, S_RT, S_HH = 48, 49, 50, 51, 52
S_T0, S_T1, S_T2, S_T3 = 53, 54, 55, 56
S_WOFF, S_WSTR8, S_WSTR32, S_M0W = 57, 58, 59, 60
S_SEG, S_SPIN, S_HEAD = 61, 62, 63
S_VMASK, S_RT32, S_RO32, S_SAVE = 64, 66, 67, 68
S_LOG2E, S_QS, S_EPS, S_ONES = 70, 72, 20, 21
S_RGJ, S_ROT = 22, 23
S_TS = 74
S_KA = 76

def gen(opts):
    ts = opts.get("ts", False)
    dbg = opts.get("dbg", False)
    a = Asm()
    V_STAMP = NVGPR - 1

    def stamp(i):
        if not ts: return
        a(f"""s_memrealtime {sr(S_TS,2)}
              s_memtime s[100:101]
              s_waitcnt lgkmcnt(0)
              v_writelane_b32 v{V_STAMP}, {sr(S_TS)}, {i}
              v_writelane_b32 v{V_STAMP}, s100, {32+i}""")

    V_LANE = 1
    V_T0, V_T1, V_T2, V_T3 = 2, 3, 4, 5
    V_XOFF, V_WOFF = 6, 7
    V_XA0, V_XA1, V_WA = 8, 9, 10
    V_L16, V_G, V_IDX, V_KA, V_VA = 11, 12, 13, 14, 15
    V_QF, V_PQ = 16, 20
    V_ACCQ, V_ACCKV = 24, 40
    V_FB = [56, 80]
    V_O, V_C, V_KF = 104, 120, 136
    V_VF = [140, 148]
    V_L4, V_FLG, V_TAG, V_WOA0, V_WOA1 = 156, 157, 158, 159, 160
    V_PK = 162
    V_S = [24, 40]
    V_AC, V_OA = 56, 72
    V_FA, V_FBB, V_WO = 56, 120, 88
    V_OUT = [24, 40]

    def srd(s, ka, size):
        a(f"""s_mov_b32 {sr(s)}, {sr(S_KA+ka)}
              s_mov_b32 {sr(s+1)}, {sr(S_KA+ka+1)}
              s_mov_b32 {sr(s+2)}, {hex(size)}
              s_mov_b32 {sr(s+3)}, 0x20000""")
    def flag_store(soff):
        a(f"""s_mov_b64 exec, 1
              buffer_store_dword {vr(V_TAG)}, {vr(V_L4)}, {sr(S_WS,4)}, {sr(soff)} offen sc1
              s_mov_b64 exec, -1""")
    def flag_load(soff, n, tag=None):
        a(f"s_mov_b64 exec, {hex((1 << n) - 1)}" if n <= 4 else f"s_mov_b32 exec_lo, {hex((1 << n) - 1)}\ns_mov_b32 exec_hi, 0")
        s = f"buffer_load_dword {vr(V_FLG)}, {vr(V_L4)}, {sr(S_WS,4)}, {sr(soff)} offen sc1"
        if tag: a.vmem(s, tag)
        else: a(s)
        a("s_mov_b64 exec, -1")
    def flag_check(n):
        a(f"""v_cmp_ne_u32 vcc, {vr(V_FLG)}, {vr(V_TAG)}
              s_and_b32 {sr(S_SAVE)}, vcc_lo, {hex((1 << n) - 1)}
              s_cmp_eq_u32 {sr(S_SAVE)}, 0""")
    def flag_spin(lbl, soff, n):
        a(f"s_mov_b32 {sr(S_SPIN)}, 0")
        a.label(lbl + "_loop")
        flag_check(n)
        a(f"""s_cbranch_scc1 {lbl}_ok
              s_add_u32 {sr(S_SPIN)}, {sr(S_SPIN)}, 1
              s_cmp_ge_u32 {sr(S_SPIN)}, 100000
              s_cbranch_scc1 {lbl}_ok""")
        flag_load(soff, n)
        a(f"""s_waitcnt vmcnt(0)
              s_branch {lbl}_loop""")
        a.label(lbl + "_ok")
    def tag_setup():
        a(f"""s_waitcnt lgkmcnt(0)
              s_mul_i32 {sr(S_TAG)}, {sr(S_TAG)}, 0x9e3779b1
              s_add_u32 {sr(S_TAG)}, {sr(S_TAG)}, 0x7f4a7c15
              v_mov_b32 {vr(V_TAG)}, {sr(S_TAG)}""")

    a.label(f"{NAME}_kernel")
    a(f"""s_cmp_ge_u32 s2, 256
          s_cbranch_scc1 L_end
          s_load_dwordx16 {sr(S_KA,16)}, s[0:1], 0
          s_load_dwordx8 {sr(S_KA+16,8)}, s[0:1], 64
          v_and_b32 {vr(V_LANE)}, 63, v0
          v_lshrrev_b32 {vr(V_T0)}, 6, v0
          s_and_b32 {sr(S_T0)}, s2, 1
          v_readfirstlane_b32 {sr(S_WAVE)}, {vr(V_T0)}
          s_lshl_b32 {sr(S_T0)}, {sr(S_T0)}, 2
          s_bfe_u32 {sr(S_T1)}, s2, 0x20003
          s_add_u32 {sr(S_HG)}, {sr(S_T0)}, {sr(S_T1)}
          s_bfe_u32 {sr(S_T1)}, s2, 0x20001
          s_lshl_b32 {sr(S_T1)}, {sr(S_T1)}, 3
          s_lshr_b32 {sr(S_QB)}, s2, 5
          s_add_u32 {sr(S_QB)}, {sr(S_QB)}, {sr(S_T1)}
          s_lshr_b32 {sr(S_RGJ)}, {sr(S_HG)}, 1""")
    stamp(0)
    a(f"""v_lshrrev_b32 {vr(V_T0)}, 4, {vr(V_LANE)}
          v_xor_b32 {vr(V_T0)}, {vr(V_T0)}, {vr(V_LANE)}
          v_and_b32 {vr(V_T0)}, 3, {vr(V_T0)}
          v_lshlrev_b32 {vr(V_T0)}, 4, {vr(V_T0)}
          v_lshrrev_b32 {vr(V_T1)}, 2, {vr(V_LANE)}
          v_lshl_add_u32 {vr(V_XOFF)}, {vr(V_T1)}, 10, {vr(V_T0)}
          v_lshlrev_b32 {vr(V_L16)}, 4, {vr(V_LANE)}
          v_lshlrev_b32 {vr(V_L4)}, 2, {vr(V_LANE)}
          s_mov_b32 {sr(S_X+2)}, 0x200000
          s_mov_b32 {sr(S_X+3)}, 0x20000
          s_lshl_b32 {sr(S_T0)}, {sr(S_QB)}, 16
          s_cmp_eq_u32 {sr(S_WAVE)}, 8
          s_cbranch_scc1 L_helper
          s_and_b32 {sr(S_RT)}, {sr(S_WAVE)}, 1
          s_lshr_b32 {sr(S_HH)}, {sr(S_WAVE)}, 1
          s_lshl_b32 {sr(S_T1)}, {sr(S_WAVE)}, 7
          s_add_u32 {sr(S_T0)}, {sr(S_T0)}, {sr(S_T1)}
          s_lshl_b32 {sr(S_T1)}, {sr(S_WAVE)}, 13
          s_add_u32 {sr(S_T1)}, {sr(S_T1)}, {L_X}""")
    if opts.get("cpf"):
        a(f"""s_getpc_b64 {sr(S_SAVE,2)}""")
        a.label("L_pc")
        a(f"""s_lshl_b32 {sr(S_T2)}, {sr(S_WAVE)}, 11
              v_lshlrev_b32 {vr(V_T2)}, 5, {vr(V_LANE)}
              v_add_u32 {vr(V_T2)}, {sr(S_T2)}, {vr(V_T2)}
              v_min_u32 {vr(V_T2)}, L_codeend - L_pc - 4, {vr(V_T2)}
              s_mov_b32 exec_lo, 0x11111111
              s_mov_b32 exec_hi, 0x11111111""")
        a.vmem(f"global_load_dword {vr(V_FLG)}, {vr(V_T2)}, {sr(S_SAVE,2)}", "cpf")
        a("s_mov_b64 exec, -1")
    a(f"""s_cmp_eq_u32 {sr(S_HH)}, 0
          s_cselect_b32 {sr(S_T3)}, 1, 3
          s_lshl_b32 {sr(S_W+2)}, {sr(S_T3)}, 19
          s_mov_b32 {sr(S_W+3)}, 0x20000
          s_lshl_b32 {sr(S_T3)}, {sr(S_T3)}, 10
          s_lshl_b32 {sr(S_WSTR8)}, {sr(S_T3)}, 3
          s_lshl_b32 {sr(S_WSTR32)}, {sr(S_T3)}, 5
          s_max_u32 {sr(S_T2)}, {sr(S_HH)}, 1
          s_sub_u32 {sr(S_T2)}, {sr(S_T2)}, 1
          s_lshl_b32 {sr(S_WOFF)}, {sr(S_T2)}, 10
          s_lshl_b32 {sr(S_T2)}, {sr(S_HG)}, 7
          s_add_u32 {sr(S_WOFF)}, {sr(S_WOFF)}, {sr(S_T2)}
          s_mul_i32 {sr(S_T2)}, {sr(S_RT)}, {sr(S_WSTR8)}
          s_lshl_b32 {sr(S_T2)}, {sr(S_T2)}, 1
          s_add_u32 {sr(S_WOFF)}, {sr(S_WOFF)}, {sr(S_T2)}
          s_lshl_b32 {sr(S_M0W)}, {sr(S_WAVE)}, 11
          s_and_b32 {sr(S_T2)}, {sr(S_HH)}, 1
          s_lshl_b32 {sr(S_T2)}, {sr(S_T2)}, 1
          v_lshrrev_b32 {vr(V_T0)}, 1, {vr(V_LANE)}
          v_and_b32 {vr(V_T0)}, 3, {vr(V_T0)}
          v_bfe_u32 {vr(V_T1)}, {vr(V_LANE)}, 4, 1
          v_xor_b32 {vr(V_T0)}, {vr(V_T0)}, {vr(V_T1)}
          v_xor_b32 {vr(V_T0)}, {sr(S_T2)}, {vr(V_T0)}
          v_lshlrev_b32 {vr(V_T0)}, 5, {vr(V_T0)}
          v_and_b32 {vr(V_T1)}, 1, {vr(V_LANE)}
          v_lshl_add_u32 {vr(V_T0)}, {vr(V_T1)}, 4, {vr(V_T0)}
          v_lshrrev_b32 {vr(V_T1)}, 3, {vr(V_LANE)}
          v_mul_u32_u24 {vr(V_T1)}, {sr(S_T3)}, {vr(V_T1)}
          v_add_u32 {vr(V_WOFF)}, {vr(V_T0)}, {vr(V_T1)}
          s_waitcnt lgkmcnt(0)
          s_mov_b32 {sr(S_X)}, {sr(S_KA+0)}
          s_mov_b32 {sr(S_X+1)}, {sr(S_KA+1)}
          s_cmp_eq_u32 {sr(S_HH)}, 0
          s_cselect_b32 {sr(S_W)}, {sr(S_KA+8)}, {sr(S_KA+2)}
          s_cselect_b32 {sr(S_W+1)}, {sr(S_KA+9)}, {sr(S_KA+3)}
          s_load_dword {sr(S_TAG)}, {sr(S_KA+22,2)}, {WS_E}""")
    for i in range(3):
        a(f"""s_add_u32 {sr(S_T3)}, {sr(S_RGJ)}, {i+1}
              s_and_b32 {sr(S_T3)}, {sr(S_T3)}, 3
              s_lshl_b32 {sr(S_T2)}, {sr(S_T3)}, 10
              s_add_u32 m0, {sr(S_T1)}, {sr(S_T2)}
              s_lshl_b32 {sr(S_T2)}, {sr(S_T3)}, 14
              s_add_u32 {sr(S_T2)}, {sr(S_T2)}, {sr(S_T0)}""")
        a.vmem(f"buffer_load_dwordx4 {vr(V_XOFF)}, {sr(S_X,4)}, {sr(S_T2)} offen lds", "x")
        a(f"""s_add_u32 m0, m0, {4096 - 64}
              s_nop 0""")
        a.vmem(f"buffer_load_dwordx4 {vr(V_XOFF)}, {sr(S_X,4)}, {sr(S_T2)} offen offset:64 lds", "x")
    def wdma(c):
        slot = c % 4
        a(f"s_add_u32 m0, {sr(S_M0W)}, {L_RING + slot*16384}")
        a(f"s_add_u32 {sr(S_T2)}, {sr(S_WOFF)}, {sr(S_WSTR8)}")
        a.vmem(f"buffer_load_dwordx4 {vr(V_WOFF)}, {sr(S_W,4)}, {sr(S_WOFF)} offen lds", f"w{c}")
        a(f"s_add_u32 m0, {sr(S_M0W)}, {L_RING + slot*16384 + 1024}")
        a(f"s_add_u32 {sr(S_WOFF)}, {sr(S_WOFF)}, {sr(S_WSTR32)}")
        a.vmem(f"buffer_load_dwordx4 {vr(V_WOFF)}, {sr(S_W,4)}, {sr(S_T2)} offen lds", f"w{c}")
    wdma(0)
    srd(S_WS, 22, WS_SIZE)
    srd(S_OUT, 18, 0x200000)
    if ts: srd(S_DBG, 20, 256)
    def omap():
        a(f"""s_and_b32 {sr(S_QO)}, s2, 7
              s_lshl_b32 {sr(S_QO)}, {sr(S_QO)}, 2
              s_bfe_u32 {sr(S_T0)}, s2, 0x20003
              s_add_u32 {sr(S_QO)}, {sr(S_QO)}, {sr(S_T0)}
              s_lshr_b32 {sr(S_NS)}, s2, 5""")
    omap()
    a(f"""s_lshl_b32 {sr(S_HEAD)}, {sr(S_HG)}, 2
          s_add_u32 {sr(S_HEAD)}, {sr(S_HEAD)}, {sr(S_HH)}
          s_lshl_b32 {sr(S_RT32)}, {sr(S_QB)}, 1
          s_add_u32 {sr(S_RT32)}, {sr(S_RT32)}, {sr(S_RT)}
          s_lshl_b32 {sr(S_RO32)}, {sr(S_QO)}, 1
          s_add_u32 {sr(S_RO32)}, {sr(S_RO32)}, {sr(S_RT)}
          s_mov_b32 {sr(S_VMASK)}, 0xffff
          s_mov_b32 {sr(S_VMASK+1)}, 0xffff
          s_mov_b32 {sr(S_LOG2E)}, {hex(f2u(LOG2E))}
          s_mov_b32 {sr(S_LOG2E+1)}, {hex(f2u(LOG2E))}
          s_mov_b32 {sr(S_EPS)}, {hex(f2u(1e-6))}
          s_mov_b32 {sr(S_QS)}, {hex(f2u(QSCALE))}
          s_mov_b32 {sr(S_QS+1)}, {hex(f2u(QSCALE))}
          s_mov_b32 {sr(S_ONES)}, 0x3f803f80
          v_and_b32 {vr(V_T0)}, 31, {vr(V_LANE)}
          v_lshrrev_b32 {vr(V_T1)}, 5, {vr(V_LANE)}
          v_bfe_u32 {vr(V_T2)}, {vr(V_LANE)}, 2, 2
          v_xor_b32 {vr(V_T2)}, {vr(V_T2)}, {vr(V_T1)}
          v_lshlrev_b32 {vr(V_T2)}, 4, {vr(V_T2)}
          v_lshl_add_u32 {vr(V_T3)}, {vr(V_T0)}, 6, {vr(V_T2)}
          s_lshl_b32 {sr(S_T0)}, {sr(S_RT)}, 11
          s_add_u32 {sr(S_T0)}, {sr(S_T0)}, {L_X}
          v_add_u32 {vr(V_XA0)}, {sr(S_T0)}, {vr(V_T3)}
          v_xor_b32 {vr(V_XA1)}, 32, {vr(V_XA0)}
          v_bfe_u32 {vr(V_T0)}, {vr(V_LANE)}, 4, 1
          v_bfe_u32 {vr(V_T2)}, {vr(V_LANE)}, 3, 2
          v_xor_b32 {vr(V_T2)}, {sr(S_HH)}, {vr(V_T2)}
          v_lshlrev_b32 {vr(V_T2)}, 5, {vr(V_T2)}
          v_lshl_add_u32 {vr(V_T2)}, {vr(V_T0)}, 12, {vr(V_T2)}
          v_lshl_add_u32 {vr(V_T2)}, {vr(V_T1)}, 10, {vr(V_T2)}
          v_bfe_u32 {vr(V_T0)}, {vr(V_LANE)}, 2, 2
          v_lshl_add_u32 {vr(V_T2)}, {vr(V_T0)}, 7, {vr(V_T2)}
          v_and_b32 {vr(V_T0)}, 3, {vr(V_LANE)}
          v_lshl_add_u32 {vr(V_T2)}, {vr(V_T0)}, 3, {vr(V_T2)}
          v_add_u32 {vr(V_WA)}, {L_RING}, {vr(V_T2)}""")
    wdma(1)
    for i in range(8):
        a(f"v_mov_b32 {vr(V_ACCQ+i)}, 0")
        a(f"v_mov_b32 {vr(V_ACCQ+8+i)}, {sr(S_EPS)}")
    a(f"""v_mov_b32 {vr(V_T0)}, {sr(S_EPS)}
          v_cndmask_b32 {vr(V_T0)}, 0, {vr(V_T0)}, {sr(S_VMASK,2)}""")
    for i in range(16):
        a(f"v_mov_b32 {vr(V_ACCKV+i)}, {vr(V_T0)}")
    wdma(2)
    for i in range(16):
        a(f"v_mov_b32 {vr(V_O+i)}, 0")
        a(f"v_mov_b32 {vr(V_VF[0]+i)}, {sr(S_ONES)}")
    a(f"""v_mov_b32 {vr(V_IDX)}, 0xdddd
          v_mov_b32 {vr(V_KA)}, {vr(V_L16)}
          v_and_b32 {vr(V_T3)}, 15, {vr(V_LANE)}
          v_lshlrev_b32 {vr(V_T3)}, 4, {vr(V_T3)}
          v_lshl_add_u32 {vr(V_VA)}, {vr(V_T1)}, 8, {vr(V_T3)}""")
    wdma(3)
    tag_setup()
    stamp(1)

    def reads(c):
        fb = V_FB[c % 2]
        slot = c % 4
        r = [f"ds_read_b128 {vr(fb,4)}, {vr(V_XA0)} offset:{c*4096}"]
        for T in range(2):
            for u in range(2):
                r.append(f"ds_read_b64_tr_b16 {vr(fb+8+T*8+2*u,2)}, {vr(V_WA)} offset:{slot*16384 + T*8192 + u*512}")
        r.append(f"ds_read_b128 {vr(fb+4,4)}, {vr(V_XA1)} offset:{c*4096}")
        for T in range(2):
            for u in range(2):
                r.append(f"ds_read_b64_tr_b16 {vr(fb+8+T*8+4+2*u,2)}, {vr(V_WA)} offset:{slot*16384 + T*8192 + 2048 + u*512}")
        return r
    def mfmas(c):
        fb = V_FB[c % 2]
        r = []
        for p in range(2):
            r.append(f"v_mfma_f32_32x32x16_bf16 {vr(V_ACCKV,16)}, {vr(fb+4*p,4)}, {vr(fb+16+4*p,4)}, {vr(V_ACCKV,16)}")
            r.append(f"v_mfma_f32_32x32x16_bf16 {vr(V_ACCQ,16)}, {vr(fb+8+4*p,4)}, {vr(fb+4*p,4)}, {vr(V_ACCQ,16)}")
        return r
    for c in range(16):
        a.wait_vm(f"w{c}", "lgkmcnt(0)")
        a("s_barrier")
        if c == 0:
            for r in reads(c): a(r)
        else:
            R_, M_ = reads(c), mfmas(c - 1)
            a(M_[0])
            for r in R_[:5]: a(r)
            a(M_[1])
            for r in R_[5:]: a(r)
            a(M_[2])
            if c + 3 <= 15: wdma(c + 3)
            a(M_[3])
    a("s_waitcnt lgkmcnt(0)")
    for m in mfmas(15): a(m)
    stamp(2)
    E = V_FB[0]
    def phi(src, n, tmp):
        for i in range(0, n, 2):
            a(f"v_pk_mul_f32 {vr(tmp+i,2)}, {sr(S_LOG2E,2)}, {vr(src+i,2)}")
        for i in range(n):
            a(f"v_exp_f32 {vr(tmp+i)}, {vr(tmp+i)} clamp")
        for i in range(n):
            a(f"v_max_f32 {vr(src+i)}, {sr(S_EPS)}, {vr(src+i)}")
        for i in range(0, n, 2):
            a(f"v_pk_add_f32 {vr(src+i,2)}, {vr(src+i,2)}, {vr(tmp+i,2)}")
    a(f"""s_lshl_b32 {sr(S_T0)}, {sr(S_WAVE)}, 11
          s_add_u32 {sr(S_T0)}, {sr(S_T0)}, {L_HI}
          v_lshrrev_b32 {vr(V_T0)}, 4, {vr(V_LANE)}
          v_lshlrev_b32 {vr(V_T0)}, 4, {vr(V_T0)}
          v_add_u32 {vr(V_XA1)}, {sr(S_T0)}, {vr(V_T0)}
          v_and_b32 {vr(V_T0)}, 15, {vr(V_LANE)}
          v_lshl_add_u32 {vr(V_XA0)}, {vr(V_T0)}, 6, {vr(V_XA1)}
          s_nop 4""")
    for i in range(8):
        a(f"v_permlane16_swap_b32 {vr(V_ACCKV+i)}, {vr(V_ACCKV+8+i)}")
    PKF, VFR, DKV, DZ = E + 8, E + 12, E + 16, E + 20
    a("s_nop 0")
    phi(V_ACCKV, 8, E)
    for i in range(4):
        a(f"v_cvt_pk_bf16_f32 {vr(VFR+i)}, {vr(V_ACCKV+8+2*i)}, {vr(V_ACCKV+8+2*i+1)}")
    for i in range(4):
        a(f"v_cvt_pk_bf16_f32 {vr(PKF+i)}, {vr(V_ACCKV+2*i)}, {vr(V_ACCKV+2*i+1)}")
    for i in range(0, 8, 2):
        a(f"v_pk_mul_f32 {vr(V_ACCQ+i,2)}, {sr(S_QS,2)}, {vr(V_ACCQ+i,2)}")
    a(f"v_mfma_f32_16x16x32_bf16 {vr(DKV,4)}, {vr(PKF,4)}, {vr(VFR,4)}, 0")
    a(f"v_mfma_f32_16x16x32_bf16 {vr(DZ,4)}, {vr(PKF,4)}, {vr(V_VF[0],4)}, 0")
    for i in range(4):
        a(f"v_cvt_pk_bf16_f32 {vr(V_QF+i)}, {vr(V_ACCQ+2*i)}, {vr(V_ACCQ+2*i+1)}")
    phi(V_ACCQ + 8, 8, E)
    for i in range(4):
        a(f"v_cvt_pk_bf16_f32 {vr(V_PQ+i)}, {vr(V_ACCQ+8+2*i)}, {vr(V_ACCQ+8+2*i+1)}")
    stamp(3)
    a("s_barrier")
    stamp(4)
    a(f"""ds_read_b128 {vr(V_KF,4)}, {vr(V_KA)}
          s_mov_b64 exec, {sr(S_VMASK,2)}
          ds_read_b128 {vr(V_VF[0],4)}, {vr(V_VA)} offset:1024
          ds_read_b128 {vr(V_VF[0]+4,4)}, {vr(V_VA)} offset:1536
          ds_read_b128 {vr(V_VF[1],4)}, {vr(V_VA)} offset:{2048+1024}
          ds_read_b128 {vr(V_VF[1]+4,4)}, {vr(V_VA)} offset:{2048+1536}
          s_mov_b64 exec, -1
          ds_write_b128 {vr(V_XA0)}, {vr(DKV,4)}
          ds_write_b128 {vr(V_XA1)}, {vr(DZ,4)} offset:1024
          s_waitcnt lgkmcnt(6)
          v_mfma_f32_32x32x16_bf16 {vr(V_S[0],16)}, {vr(V_KF,4)}, {vr(V_QF,4)}, 0
          ds_read_b128 {vr(V_KF,4)}, {vr(V_KA)} offset:2048""")
    if dbg:
        a(f"""s_lshl_b32 {sr(S_T0)}, {sr(S_RT32)}, 5
              s_add_u32 {sr(S_T0)}, {sr(S_T0)}, {sr(S_HEAD)}
              s_lshl_b32 {sr(S_T0)}, {sr(S_T0)}, 10
              s_add_u32 {sr(S_T1)}, {sr(S_T0)}, {WS_DBG1}
              buffer_store_dwordx4 {vr(V_QF,4)}, {vr(V_L16)}, {sr(S_WS,4)}, {sr(S_T1)} offen
              s_add_u32 {sr(S_T1)}, {sr(S_T0)}, {WS_DBG2}
              buffer_store_dwordx4 {vr(V_PQ,4)}, {vr(V_L16)}, {sr(S_WS,4)}, {sr(S_T1)} offen""")
    S0 = V_S[0]
    a(f"""s_mov_b32 {sr(S_SEG)}, 0
          s_nop 9
          v_max3_f32 {vr(V_T0)}, {vr(S0)}, {vr(S0+1)}, {vr(S0+2)}
          v_max3_f32 {vr(V_T1)}, {vr(S0+3)}, {vr(S0+4)}, {vr(S0+5)}
          v_max3_f32 {vr(V_T2)}, {vr(S0+6)}, {vr(S0+7)}, {vr(S0+8)}
          v_max3_f32 {vr(V_T3)}, {vr(S0+9)}, {vr(S0+10)}, {vr(S0+11)}
          v_max3_f32 {vr(V_T0)}, {vr(V_T0)}, {vr(S0+12)}, {vr(S0+13)}
          v_max3_f32 {vr(V_T1)}, {vr(V_T1)}, {vr(S0+14)}, {vr(S0+15)}
          v_max3_f32 {vr(V_T0)}, {vr(V_T0)}, {vr(V_T1)}, {vr(V_T2)}
          v_max_f32 {vr(V_T0)}, {vr(V_T0)}, {vr(V_T3)}
          v_mov_b32 {vr(V_T1)}, {vr(V_T0)}
          s_nop 1
          v_permlane32_swap_b32 {vr(V_T0)}, {vr(V_T1)}
          s_nop 1
          v_max_f32 {vr(V_T0)}, {vr(V_T0)}, {vr(V_T1)}
          v_sub_f32 {vr(V_T2)}, 0, {vr(V_T0)}
          v_sub_f32 {vr(V_T3)}, 0, {vr(V_T0)}""")
    for i in range(0, 16, 2):
        a(f"v_pk_add_f32 {vr(S0+i,2)}, {vr(S0+i,2)}, {vr(V_T2,2)}")
    for i in range(0, 16, 2):
        a(f"v_pk_mov_b32 {vr(V_C+i,2)}, {vr(V_T2,2)}, {vr(V_T2,2)} op_sel:[0,1]")
    a(f"""v_exp_f32 {vr(S0)}, {vr(S0)}
          v_exp_f32 {vr(S0+1)}, {vr(S0+1)}
          s_waitcnt lgkmcnt(0)""")
    stamp(5)

    a.lines.append("    .p2align 6")
    a.label("L_att")
    for t in range(8):
        cur, nxt = V_S[t % 2], V_S[(t + 1) % 2]
        vf = V_VF[t % 2]
        ex = lambda r: a(f"v_exp_f32 {vr(r)}, {vr(r)}")
        if opts.get("prio", 1) and t in (0, 4, 6, 7): a(f"s_setprio { {0:3, 4:2, 6:1, 7:0}[t] }")
        for i in (2, 3, 4, 5): ex(cur + i)
        a("s_waitcnt lgkmcnt(2)")
        a(f"v_mfma_f32_32x32x16_bf16 {vr(nxt,16)}, {vr(V_KF,4)}, {vr(V_QF,4)}, {vr(V_C,16)}")
        a(f"ds_read_b128 {vr(V_KF,4)}, {vr(V_KA)} offset:{(t+2)*2048}")
        for i in (6, 7, 8, 9, 10): ex(cur + i)
        a(f"v_smfmac_f32_32x32x32_bf16 {vr(V_O,16)}, {vr(vf,4)}, {vr(cur,8)}, {vr(V_IDX)}")
        for i in (11, 12, 13, 14, 15): ex(cur + i)
        ex(nxt); ex(nxt + 1)
        a(f"v_smfmac_f32_32x32x32_bf16 {vr(V_O,16)}, {vr(vf+4,4)}, {vr(cur+8,8)}, {vr(V_IDX)}")
        a(f"""s_mov_b64 exec, {sr(S_VMASK,2)}
              ds_read_b128 {vr(vf,4)}, {vr(V_VA)} offset:{(t+2)*2048+1024}
              ds_read_b128 {vr(vf+4,4)}, {vr(V_VA)} offset:{(t+2)*2048+1536}
              s_mov_b64 exec, -1""")
    a(f"""v_add_u32 {vr(V_KA)}, 0x4000, {vr(V_KA)}
          v_add_u32 {vr(V_VA)}, 0x4000, {vr(V_VA)}
          s_add_u32 {sr(S_SEG)}, {sr(S_SEG)}, 1
          s_bitcmp1_b32 0xc, {sr(S_SEG)}
          s_cbranch_scc1 L_att""")
    for h in (1, 4, 5, 6, 7):
        a(f"""s_cmp_eq_u32 {sr(S_SEG)}, {h}
              s_cbranch_scc1 L_hook{h}""")
    a("s_branch L_attend")

    def ooff(dst, base):
        a(f"""s_lshl_b32 {sr(dst)}, {sr(S_RT32)}, 6
              s_add_u32 {sr(dst)}, {sr(dst)}, {sr(S_HEAD)}
              s_lshl_b32 {sr(dst)}, {sr(dst)}, 10
              s_add_u32 {sr(dst)}, {sr(dst)}, {base}""")
    def oloads(base, dst, tag):
        a(f"""s_lshl_b32 {sr(S_T2)}, {sr(S_RO32)}, 3
              s_add_u32 {sr(S_T2)}, {sr(S_T2)}, {sr(S_HH)}
              s_lshl_b32 {sr(S_T2)}, {sr(S_T2)}, 13""")
        for i in range(8):
            if i % 4 == 0: a(f"s_add_u32 {sr(S_T0)}, {sr(S_T2)}, {base + i*1024}")
            a.vmem(f"buffer_load_dwordx4 {vr(dst+4*i,4)}, {vr(V_L16)}, {sr(S_WS,4)}, {sr(S_T0)} offen offset:{(i%4)*1024} sc1", f"{tag}{i}")

    a.label("L_hook1")
    stamp(11)
    a(f"""v_and_b32 {vr(V_T0)}, 0x7c, {vr(V_L4)}
          s_lshl_b32 {sr(S_T0)}, {sr(S_RT)}, 7
          s_add_u32 {sr(S_T0)}, {sr(S_T0)}, {L_G}
          v_add_u32 {vr(V_T0)}, {sr(S_T0)}, {vr(V_T0)}
          s_barrier
          ds_read_b32 {vr(V_G)}, {vr(V_T0)}
          s_waitcnt lgkmcnt(0)""")
    stamp(12)
    a("s_branch L_att")

    a.label("L_hook4")
    stamp(13)
    a.vm = []
    a(f"""v_and_b32 {vr(V_T0)}, 15, {vr(V_LANE)}
          v_cndmask_b32 {vr(V_T0)}, {vr(V_T0)}, 16, {sr(S_VMASK,2)}
          v_lshrrev_b32 {vr(V_T1)}, 5, {vr(V_LANE)}
          v_lshlrev_b32 {vr(V_T1)}, 4, {vr(V_T1)}
          v_lshl_add_u32 {vr(V_T0)}, {vr(V_T0)}, 6, {vr(V_T1)}
          s_lshl_b32 {sr(S_T0)}, {sr(S_HEAD)}, 11
          s_add_u32 {sr(S_T0)}, {sr(S_T0)}, {WS_ACC}
          s_barrier""")
    a.vmem(f"buffer_load_dwordx4 {vr(V_AC,4)}, {vr(V_T0)}, {sr(S_WS,4)}, {sr(S_T0)} offen sc1", "acc")
    a.vmem(f"buffer_load_dwordx4 {vr(V_AC+4,4)}, {vr(V_T0)}, {sr(S_WS,4)}, {sr(S_T0)} offen offset:32 sc1", "acc")
    stamp(14)
    a("s_branch L_att")

    a.label("L_hook5")
    stamp(15)
    a.wait_vm("acc")
    for i in range(4):
        a(f"v_cvt_pk_bf16_f32 {vr(V_AC+8+i)}, {vr(V_AC+2*i)}, {vr(V_AC+2*i+1)}")
    a(f"""s_nop 1
          v_mfma_f32_32x32x16_bf16 {vr(V_OA,16)}, {vr(V_AC+8,4)}, {vr(V_PQ,4)}, 0""")
    ooff(S_T3, WS_OA)
    a(f"""s_nop 7
          v_add_f32 {vr(V_T0)}, {sr(S_EPS)}, {vr(V_OA)}
          v_rcp_f32 {vr(V_T0)}, {vr(V_T0)}
          s_nop 0
          v_mul_f32 {vr(V_T0)}, {vr(V_T0)}, {vr(V_G)}""")
    for i in range(0, 8, 2):
        a(f"v_pk_mul_f32 {vr(V_OA+8+i,2)}, {vr(V_OA+8+i,2)}, {vr(V_T0,2)} op_sel_hi:[1,0]")
    for i in range(4):
        a(f"v_cvt_pk_bf16_f32 {vr(V_PK+i)}, {vr(V_OA+8+2*i)}, {vr(V_OA+8+2*i+1)}")
    a.vmem(f"buffer_store_dwordx4 {vr(V_PK,4)}, {vr(V_L16)}, {sr(S_WS,4)}, {sr(S_T3)} offen sc1", "oa")
    stamp(16)
    a("s_branch L_att")

    a.label("L_hook6")
    stamp(17)
    a.wait_vm(None)
    a("s_barrier")
    stamp(18)
    a("s_branch L_att")

    a.label("L_hook7")
    stamp(19)
    a(f"""s_lshl_b32 {sr(S_T3)}, {sr(S_QO)}, 7
          s_lshl_b32 {sr(S_T0)}, {sr(S_HH)}, 3
          s_add_u32 {sr(S_T3)}, {sr(S_T3)}, {sr(S_T0)}
          s_add_u32 {sr(S_T3)}, {sr(S_T3)}, {WS_FOA}""")
    flag_load(S_T3, 2, "ffoa")
    a(f"""v_lshrrev_b32 {vr(V_T0)}, 5, {vr(V_LANE)}
          v_lshlrev_b32 {vr(V_T0)}, 9, {vr(V_T0)}
          v_bfe_u32 {vr(V_T1)}, {vr(V_LANE)}, 2, 2
          v_lshl_add_u32 {vr(V_T0)}, {vr(V_T1)}, 7, {vr(V_T0)}
          v_bfe_u32 {vr(V_T1)}, {vr(V_LANE)}, 3, 1
          v_lshl_add_u32 {vr(V_T0)}, {vr(V_T1)}, 6, {vr(V_T0)}
          v_bfe_u32 {vr(V_T1)}, {vr(V_LANE)}, 4, 1
          v_lshl_add_u32 {vr(V_T0)}, {vr(V_T1)}, 5, {vr(V_T0)}
          v_and_b32 {vr(V_T1)}, 3, {vr(V_LANE)}
          v_lshl_add_u32 {vr(V_T0)}, {vr(V_T1)}, 3, {vr(V_T0)}
          s_lshl_b32 {sr(S_T0)}, {sr(S_HH)}, 14
          v_add_u32 {vr(V_WOA0)}, {sr(S_T0)}, {vr(V_T0)}
          v_xor_b32 {vr(V_WOA1)}, 64, {vr(V_WOA0)}
          v_sub_f32 {vr(V_G)}, 1.0, {vr(V_G)}""")
    ooff(S_RDY, WS_OB)
    stamp(20)
    a("s_branch L_att")

    a.label("L_attend")
    stamp(6)
    a(f"""s_mov_b32 {sr(S_T0)}, {hex(f2u(2.0**64))}
          v_rcp_f32 {vr(V_T0)}, {vr(V_O+8)}
          v_cmp_nle_f32 vcc, {vr(V_O+8)}, {sr(S_T0)}
          v_pk_mul_f32 {vr(V_T2,2)}, {vr(V_O,2)}, 0
          v_pk_fma_f32 {vr(V_T2,2)}, {vr(V_O+2,2)}, 0, {vr(V_T2,2)}
          v_pk_fma_f32 {vr(V_T2,2)}, {vr(V_O+4,2)}, 0, {vr(V_T2,2)}
          v_pk_fma_f32 {vr(V_T2,2)}, {vr(V_O+6,2)}, 0, {vr(V_T2,2)}
          v_cmp_u_f32 {sr(S_SAVE,2)}, {vr(V_T2)}, {vr(V_T3)}
          s_or_b64 vcc, vcc, {sr(S_SAVE,2)}
          s_cbranch_vccnz L_fallback""")
    a.label("L_norm")
    a(f"v_mul_f32 {vr(V_T0)}, {vr(V_T0)}, {vr(V_G)}")
    for i in range(0, 8, 2):
        a(f"v_pk_mul_f32 {vr(V_O+i,2)}, {vr(V_O+i,2)}, {vr(V_T0,2)} op_sel_hi:[1,0]")
    for i in range(4):
        a(f"v_cvt_pk_bf16_f32 {vr(V_PK+i)}, {vr(V_O+2*i)}, {vr(V_O+2*i+1)}")
    a.vmem(f"buffer_store_dwordx4 {vr(V_PK,4)}, {vr(V_L16)}, {sr(S_WS,4)}, {sr(S_RDY)} offen sc1", "ob")
    a.wait_vm("ffoa")
    flag_spin("L_sfoa", S_T3, 2)
    oloads(WS_OA, V_FA, "fa")
    a(f"""s_lshl_b32 {sr(S_T3)}, {sr(S_RT32)}, 2
          s_lshr_b32 {sr(S_T2)}, {sr(S_HEAD)}, 3
          s_add_u32 {sr(S_T3)}, {sr(S_T3)}, {sr(S_T2)}
          s_lshl_b32 {sr(S_T3)}, {sr(S_T3)}, 7
          s_and_b32 {sr(S_T2)}, {sr(S_HEAD)}, 7
          s_lshl_b32 {sr(S_T2)}, {sr(S_T2)}, 2
          s_add_u32 {sr(S_T3)}, {sr(S_T3)}, {sr(S_T2)}
          s_add_u32 {sr(S_T3)}, {sr(S_T3)}, {WS_FOB}""")
    a.wait_vm("ob")
    flag_store(S_T3)
    a.vm.append("fl")
    stamp(7)
    a(f"""s_lshl_b32 {sr(S_T3)}, {sr(S_RO32)}, 2
          s_add_u32 {sr(S_T3)}, {sr(S_T3)}, {sr(S_HH)}
          s_lshl_b32 {sr(S_T3)}, {sr(S_T3)}, 7
          s_add_u32 {sr(S_T3)}, {sr(S_T3)}, {WS_FOB}""")
    def oproj(src, tag, first, mid=None):
        def rd(i):
            b = V_WO + 8 * (i % 4)
            for nt in range(2):
                for u in range(2):
                    a(f"ds_read_b64_tr_b16 {vr(b+4*nt+2*u,2)}, {vr(V_WOA0 if nt==0 else V_WOA1)} offset:{i*2048 + u*1024}")
        rd(0); rd(1); rd(2)
        for i in range(8):
            n_after = 4 * (min(i + 2, 7) - i)
            a.wait_vm(f"{tag}{i}", f"lgkmcnt({n_after})")
            b = V_WO + 8 * (i % 4)
            for nt in range(2):
                a(f"v_mfma_f32_32x32x16_bf16 {vr(V_OUT[nt],16)}, {vr(b+4*nt,4)}, {vr(src+4*i,4)}, {'0' if (first and i==0) else vr(V_OUT[nt],16)}")
            if i + 3 < 8: rd(i + 3)
            if mid and i == 3: mid()
    oproj(V_FA, "fa", True, mid=lambda: flag_load(S_T3, 8, "ffob"))
    stamp(8)
    a.wait_vm(None)
    flag_spin("L_sfob", S_T3, 8)
    oloads(WS_OB, V_FBB, "fb")
    stamp(9)
    a(f"""s_cmp_lt_u32 {sr(S_HH)}, 2
          s_cselect_b32 {sr(S_T0)}, 4, 1
          s_lshl_b32 {sr(S_T0)}, {sr(S_T0)}, 15
          v_add_u32 {vr(V_WOA0)}, {sr(S_T0)}, {vr(V_WOA0)}
          v_add_u32 {vr(V_WOA1)}, {sr(S_T0)}, {vr(V_WOA1)}
          v_and_b32 {vr(V_T0)}, 31, {vr(V_LANE)}
          v_lshrrev_b32 {vr(V_T1)}, 5, {vr(V_LANE)}
          v_and_b32 {vr(V_T2)}, 7, {vr(V_LANE)}
          v_xor_b32 {vr(V_T1)}, {vr(V_T1)}, {vr(V_T2)}
          v_lshlrev_b32 {vr(V_T1)}, 4, {vr(V_T1)}
          v_lshl_add_u32 {vr(V_T0)}, {vr(V_T0)}, 8, {vr(V_T1)}
          s_lshl_b32 {sr(S_T0)}, {sr(S_HH)}, 14
          s_lshl_b32 {sr(S_T1)}, {sr(S_RT)}, 13
          s_add_u32 {sr(S_T0)}, {sr(S_T0)}, {sr(S_T1)}
          v_add_u32 {vr(V_T0)}, {sr(S_T0)}, {vr(V_T0)}
          v_xor_b32 {vr(V_T1)}, 32, {vr(V_T0)}
          v_xor_b32 {vr(V_T2)}, 64, {vr(V_T0)}
          v_xor_b32 {vr(V_T3)}, 96, {vr(V_T0)}""")
    A0, A1, A2, A3 = V_XA0, V_XA1, V_WA, V_KA
    a(f"""v_lshrrev_b32 {vr(A0)}, 3, {vr(V_LANE)}
          v_and_b32 {vr(A1)}, 7, {vr(V_LANE)}
          v_lshlrev_b32 {vr(A2)}, 1, {vr(A1)}
          v_xor_b32 {vr(A2)}, {vr(A2)}, {vr(A0)}
          v_lshlrev_b32 {vr(A2)}, 4, {vr(A2)}
          v_lshl_add_u32 {vr(A2)}, {vr(A0)}, 8, {vr(A2)}
          s_lshl_b32 {sr(S_T0)}, {sr(S_WAVE)}, 11
          v_add_u32 {vr(A2)}, {sr(S_T0)}, {vr(A2)}
          v_xor_b32 {vr(A3)}, 16, {vr(A2)}
          v_lshlrev_b32 {vr(A1)}, 4, {vr(A1)}
          v_lshl_add_u32 {vr(A0)}, {vr(A0)}, 10, {vr(A1)}
          s_lshl_b32 {sr(S_T0)}, {sr(S_QO)}, 16
          s_lshl_b32 {sr(S_T1)}, {sr(S_WAVE)}, 13
          s_add_u32 {sr(S_T0)}, {sr(S_T0)}, {sr(S_T1)}
          s_lshl_b32 {sr(S_T1)}, {sr(S_NS)}, 7
          s_add_u32 {sr(S_T0)}, {sr(S_T0)}, {sr(S_T1)}
          s_barrier""")
    oproj(V_FBB, "fb", False)
    a("s_nop 10")
    for nt in range(2):
        for g in range(4):
            a(f"ds_write_b128 {vr(V_T0+g)}, {vr(V_OUT[nt]+4*g,4)} offset:{nt*128}")
    a("""s_waitcnt lgkmcnt(0)
         s_barrier""")
    RR = V_FA
    for k in range(4):
        a(f"ds_read_b128 {vr(RR+8*k,4)}, {vr(A2)} offset:{k*16384}")
        a(f"ds_read_b128 {vr(RR+8*k+4,4)}, {vr(A3)} offset:{k*16384}")
    for k in range(1, 4):
        a(f"s_waitcnt lgkmcnt({2*(3-k)})")
        for i in range(0, 8, 2):
            a(f"v_pk_add_f32 {vr(RR+i,2)}, {vr(RR+i,2)}, {vr(RR+8*k+i,2)}")
    for i in range(4):
        a(f"v_cvt_pk_bf16_f32 {vr(RR+8+i)}, {vr(RR+2*i)}, {vr(RR+2*i+1)}")
    a(f"buffer_store_dwordx4 {vr(RR+8,4)}, {vr(A0)}, {sr(S_OUT,4)}, {sr(S_T0)} offen")
    def ts_out():
        a(f"""s_mul_i32 {sr(S_T0)}, s2, 9
              s_add_u32 {sr(S_T0)}, {sr(S_T0)}, {sr(S_WAVE)}
              s_lshl_b32 {sr(S_T0)}, {sr(S_T0)}, 8
              s_add_u32 {sr(S_T0)}, {sr(S_T0)}, {WS_TS}
              buffer_store_dword v{V_STAMP}, {vr(V_L4)}, {sr(S_WS,4)}, {sr(S_T0)} offen""")
    if ts:
        stamp(10)
        ts_out()
        a(f"""s_cmp_lg_u32 s2, {opts.get('tswg', 100)}
              s_cbranch_scc1 L_end
              s_cmp_lg_u32 {sr(S_WAVE)}, 0
              s_cbranch_scc1 L_end
              v_readlane_b32 {sr(S_T0)}, v{V_STAMP}, 0
              s_nop 4
              v_subrev_u32 v{V_STAMP}, {sr(S_T0)}, v{V_STAMP}
              buffer_store_dword v{V_STAMP}, {vr(V_L4)}, {sr(S_DBG,4)}, 0 offen""")
    a.label("L_end")
    a("s_endpgm")

    a.label("L_fallback")
    FS = V_S[0]
    a(f"""v_mov_b32 {vr(V_T0)}, 0xff800000
          s_mov_b32 {sr(S_T0)}, {WS_KV}""")
    a.label("L_fb1")
    a(f"""buffer_load_dwordx4 {vr(V_KF,4)}, {vr(V_L16)}, {sr(S_WS,4)}, {sr(S_T0)} offen sc1
          s_waitcnt vmcnt(0)
          v_mfma_f32_32x32x16_bf16 {vr(FS,16)}, {vr(V_KF,4)}, {vr(V_QF,4)}, 0
          s_nop 15""")
    for i in range(8):
        a(f"v_max3_f32 {vr(V_T0)}, {vr(V_T0)}, {vr(FS+2*i)}, {vr(FS+2*i+1)}")
    a(f"""s_add_u32 {sr(S_T0)}, {sr(S_T0)}, 2048
          s_cmp_lt_u32 {sr(S_T0)}, {WS_KV + 131072}
          s_cbranch_scc1 L_fb1
          v_mov_b32 {vr(V_T1)}, {vr(V_T0)}
          s_nop 1
          v_permlane32_swap_b32 {vr(V_T0)}, {vr(V_T1)}
          s_nop 1
          v_max_f32 {vr(V_T0)}, {vr(V_T0)}, {vr(V_T1)}""")
    for i in range(16):
        a(f"v_sub_f32 {vr(V_C+i)}, 0, {vr(V_T0)}")
        a(f"v_mov_b32 {vr(V_O+i)}, 0")
    a(f"""v_and_b32 {vr(V_VA)}, 0x3ff, {vr(V_VA)}
          s_mov_b32 {sr(S_T0)}, {WS_KV}""")
    a.label("L_fb2")
    a(f"""buffer_load_dwordx4 {vr(V_KF,4)}, {vr(V_L16)}, {sr(S_WS,4)}, {sr(S_T0)} offen sc1
          s_mov_b64 exec, {sr(S_VMASK,2)}
          buffer_load_dwordx4 {vr(V_VF[0],4)}, {vr(V_VA)}, {sr(S_WS,4)}, {sr(S_T0)} offen offset:1024 sc1
          buffer_load_dwordx4 {vr(V_VF[0]+4,4)}, {vr(V_VA)}, {sr(S_WS,4)}, {sr(S_T0)} offen offset:1536 sc1
          s_mov_b64 exec, -1
          s_waitcnt vmcnt(0)
          v_mfma_f32_32x32x16_bf16 {vr(FS,16)}, {vr(V_KF,4)}, {vr(V_QF,4)}, {vr(V_C,16)}
          s_nop 15""")
    for i in range(16):
        a(f"v_exp_f32 {vr(FS+i)}, {vr(FS+i)}")
    a(f"""s_nop 1
          v_smfmac_f32_32x32x32_bf16 {vr(V_O,16)}, {vr(V_VF[0],4)}, {vr(FS,8)}, {vr(V_IDX)}
          v_smfmac_f32_32x32x32_bf16 {vr(V_O,16)}, {vr(V_VF[0]+4,4)}, {vr(FS+8,8)}, {vr(V_IDX)}
          s_add_u32 {sr(S_T0)}, {sr(S_T0)}, 2048
          s_cmp_lt_u32 {sr(S_T0)}, {WS_KV + 131072}
          s_cbranch_scc1 L_fb2
          s_nop 15
          v_rcp_f32 {vr(V_T0)}, {vr(V_O+8)}
          s_nop 0
          s_branch L_norm""")

    a.label("L_helper")
    a.vm = []
    HX, HW, HD = 16, 80, 144
    H_GA = [8, 9, 10, 12]
    H_GX = [16, 32]
    H_GACC = [48, 49, 50, 51]
    H_F4 = 148
    H_FOFF = 152
    H_GWR = [56, 72]
    H_Z = 88
    a(f"""s_setprio {opts.get("hprio", 3)}
          s_lshl_b32 {sr(S_T1)}, {sr(S_RGJ)}, 14
          s_add_u32 {sr(S_T0)}, {sr(S_T0)}, {sr(S_T1)}
          s_lshl_b32 {sr(S_T1)}, {sr(S_RGJ)}, 10
          s_add_u32 {sr(S_T1)}, {sr(S_T1)}, {L_X}
          s_mov_b32 {sr(S_WJ+2)}, 16384
          s_mov_b32 {sr(S_WJ+3)}, 0x20000
          s_mov_b32 {sr(S_T2)}, 0
          s_bitcmp1_b32 {sr(S_HG)}, 0
          s_waitcnt lgkmcnt(0)
          s_mov_b32 {sr(S_X)}, {sr(S_KA+0)}
          s_mov_b32 {sr(S_X+1)}, {sr(S_KA+1)}
          s_cselect_b32 {sr(S_WJ)}, {sr(S_KA+12)}, {sr(S_KA+10)}
          s_cselect_b32 {sr(S_WJ+1)}, {sr(S_KA+13)}, {sr(S_KA+11)}
          s_load_dword {sr(S_TAG)}, {sr(S_KA+22,2)}, {WS_E}""")
    for g in range(4):
        for k in range(4):
            kb = 4 * g + k
            a(f"s_add_u32 m0, {sr(S_T1)}, {kb*4096 - k*64}")
            a(f"s_add_u32 {sr(S_T3)}, {sr(S_T0)}, {g*256}" if k == 0 else "s_nop 0")
            a.vmem(f"buffer_load_dwordx4 {vr(V_XOFF)}, {sr(S_X,4)}, {sr(S_T3)} offen offset:{k*64} lds", f"j{g}")
        a(f"s_mov_b32 m0, {L_MISC + g*4096}")
        a(f"s_mov_b32 {sr(S_T2)}, {g*4096}")
        for k in range(4):
            a.vmem(f"buffer_load_dwordx4 {vr(V_L16)}, {sr(S_WJ,4)}, {sr(S_T2)} offen offset:{k*1024} lds", f"j{g}")
    srd(S_FREE2, 16, 1024)
    a(f"s_mov_b32 m0, {L_GW}\ns_nop 0")
    a.vmem(f"buffer_load_dwordx4 {vr(V_L16)}, {sr(S_FREE2,4)}, 0 offen lds", "gw")
    srd(S_WS, 22, WS_SIZE)
    srd(S_WOA, 4, 0x80000)
    srd(S_WOB, 14, 0x80000)
    omap()
    a(f"""v_and_b32 {vr(V_T0)}, 15, {vr(V_LANE)}
          v_lshrrev_b32 {vr(V_T1)}, 4, {vr(V_LANE)}
          v_bfe_u32 {vr(V_T2)}, {vr(V_LANE)}, 2, 2
          v_xor_b32 {vr(V_T2)}, {vr(V_T2)}, {vr(V_T1)}
          v_lshlrev_b32 {vr(V_T2)}, 4, {vr(V_T2)}
          v_lshl_add_u32 {vr(V_T2)}, {vr(V_T0)}, 6, {vr(V_T2)}
          v_add_u32 {vr(V_T2)}, {sr(S_T1)}, {vr(V_T2)}
          v_lshlrev_b32 {vr(V_T3)}, 3, {vr(V_T0)}
          v_lshl_add_u32 {vr(V_T3)}, {vr(V_T1)}, 8, {vr(V_T3)}""")
    a(f"""v_lshlrev_b32 {vr(13)}, 4, {vr(V_T0)}
          v_and_b32 {vr(14)}, 1, {vr(V_T1)}
          v_lshrrev_b32 {vr(15)}, 1, {vr(V_T1)}
          s_lshr_b32 {sr(S_T0)}, {sr(S_QB)}, 3
          s_lshl_b32 {sr(S_T0)}, {sr(S_T0)}, 4
          s_lshr_b32 {sr(S_T1)}, {sr(S_RGJ)}, 1
          s_lshl_b32 {sr(S_T1)}, {sr(S_T1)}, 3
          s_add_u32 {sr(S_T0)}, {sr(S_T0)}, {sr(S_T1)}
          s_and_b32 {sr(S_T1)}, {sr(S_QB)}, 7
          s_add_u32 {sr(S_SEG)}, {sr(S_T0)}, {sr(S_T1)}
          s_and_b32 {sr(S_T1)}, {sr(S_RGJ)}, 1
          s_and_b32 {sr(S_HEAD)}, s2, 7
          s_lshl_b32 {sr(S_HEAD)}, {sr(S_HEAD)}, 3""")
    tag_setup()
    def job(isV):
        for g in range(4):
            a(f"s_waitcnt vmcnt({8*(3-g)+1})")
            for k in range(4):
                s = 4 * g + k
                a(f"ds_read_b128 {vr(HX+4*s,4)}, {vr(V_T2)} offset:{s*4096}")
                a(f"ds_read_b64_tr_b16 {vr(HW+4*s,2)}, {vr(V_T3)} offset:{L_MISC + s*1024}")
                a(f"ds_read_b64_tr_b16 {vr(HW+4*s+2,2)}, {vr(V_T3)} offset:{L_MISC + s*1024 + 128}")
            for k in range(4):
                s = 4 * g + k
                A_, B_ = (HX, HW) if isV else (HW, HX)
                a(f"s_waitcnt lgkmcnt({9-3*k})")
                a(f"v_mfma_f32_16x16x32_bf16 {vr(HD,4)}, {vr(A_+4*s,4)}, {vr(B_+4*s,4)}, {'0' if s==0 else vr(HD,4)}")
        if isV:
            a(f"""v_lshl_add_u32 {vr(13)}, {vr(15)}, 8, {vr(13)}
                  v_lshl_add_u32 {vr(13)}, {vr(14)}, 3, {vr(13)}
                  s_lshl_b32 {sr(S_T1)}, {sr(S_T1)}, 9
                  s_add_u32 {sr(S_T1)}, {sr(S_T1)}, 1024""")
        else:
            a(f"""v_lshl_add_u32 {vr(13)}, {vr(14)}, 9, {vr(13)}
                  v_lshl_add_u32 {vr(13)}, {vr(15)}, 3, {vr(13)}
                  s_lshl_b32 {sr(S_T1)}, {sr(S_T1)}, 8
                  s_nop 0""")
    a(f"""s_bitcmp1_b32 {sr(S_HG)}, 0
          s_cbranch_scc1 L_jobV""")
    job(False)
    a("s_branch L_jobdone")
    a.label("L_jobV")
    job(True)
    a.label("L_jobdone")
    a.vm = []
    a(f"""s_lshl_b32 {sr(S_T0)}, {sr(S_SEG)}, 11
          s_add_u32 {sr(S_T0)}, {sr(S_T0)}, {sr(S_T1)}
          s_add_u32 {sr(S_T0)}, {sr(S_T0)}, {WS_KV}
          s_nop 1
          v_cvt_pk_bf16_f32 {vr(HD+4)}, {vr(HD)}, {vr(HD+1)}
          v_cvt_pk_bf16_f32 {vr(HD+5)}, {vr(HD+2)}, {vr(HD+3)}
          v_mov_b32 {vr(14)}, 0
          s_lshl_b32 {sr(S_T1)}, s2, 8
          s_add_u32 {sr(S_T1)}, {sr(S_T1)}, {WS_ACC}
          buffer_store_dwordx2 {vr(HD+4,2)}, {vr(13)}, {sr(S_WS,4)}, {sr(S_T0)} offen sc1
          buffer_store_dword {vr(14)}, {vr(V_L4)}, {sr(S_WS,4)}, {sr(S_T1)} offen sc1""")
    if opts.get("tlb"):
        srd(S_OUT, 18, 0x200000)
        a(f"""s_mov_b64 exec, 1
              s_lshl_b32 {sr(S_T0)}, {sr(S_QB)}, 17
              s_add_u32 {sr(S_T0)}, {sr(S_T0)}, {WS_OA}
              s_lshl_b32 {sr(S_T1)}, {sr(S_QO)}, 17
              s_add_u32 {sr(S_T1)}, {sr(S_T1)}, {WS_OA}
              s_lshl_b32 {sr(S_T2)}, {sr(S_QO)}, 16
              buffer_load_dword {vr(V_FLG)}, {vr(V_L4)}, {sr(S_WOA,4)}, 0 offen
              buffer_load_dword {vr(V_FLG)}, {vr(V_L4)}, {sr(S_WOB,4)}, 0 offen
              buffer_load_dword {vr(V_FLG)}, {vr(V_L4)}, {sr(S_OUT,4)}, {sr(S_T2)} offen
              buffer_load_dword {vr(V_FLG)}, {vr(V_L4)}, {sr(S_WS,4)}, {sr(S_T0)} offen sc1
              buffer_load_dword {vr(V_FLG)}, {vr(V_L4)}, {sr(S_WS,4)}, {sr(S_T1)} offen sc1
              s_mov_b64 exec, -1""")
    stamp(1)
    a(f"""v_bfe_u32 {vr(V_T0)}, {vr(V_LANE)}, 2, 2
          v_lshlrev_b32 {vr(V_T0)}, 4, {vr(V_T0)}
          v_lshl_add_u32 {vr(V_T0)}, {vr(V_LANE)}, 6, {vr(V_T0)}
          v_add_u32 {vr(H_GA[0])}, {L_X}, {vr(V_T0)}
          v_xor_b32 {vr(H_GA[1])}, 16, {vr(H_GA[0])}
          v_xor_b32 {vr(H_GA[2])}, 32, {vr(H_GA[0])}
          v_xor_b32 {vr(H_GA[3])}, 48, {vr(H_GA[0])}
          v_mov_b32 {vr(H_GACC[0])}, 0
          v_mov_b32 {vr(H_GACC[1])}, 0
          v_mov_b32 {vr(H_GACC[2])}, 0
          v_mov_b32 {vr(H_GACC[3])}, 0
          v_add_u32 {vr(H_FOFF)}, {sr(S_HEAD)}, {vr(V_LANE)}
          v_and_b32 {vr(H_FOFF)}, 63, {vr(H_FOFF)}
          v_lshlrev_b32 {vr(H_FOFF)}, 4, {vr(H_FOFF)}
          s_lshl_b32 {sr(S_T3)}, {sr(S_SEG)}, 4
          s_and_b32 {sr(S_T0)}, {sr(S_HG)}, 3
          s_lshl_b32 {sr(S_T0)}, {sr(S_T0)}, 2
          s_add_u32 {sr(S_T3)}, {sr(S_T3)}, {sr(S_T0)}
          s_add_u32 {sr(S_T3)}, {sr(S_T3)}, {WS_FKV}
          v_mov_b32 {vr(H_Z)}, 0
          s_mov_b32 {sr(S_RDY)}, 0
          s_waitcnt vmcnt({7 if opts.get("tlb") else 2})""")
    a(f"""v_lshrrev_b32 {vr(V_T0)}, 3, {vr(V_LANE)}
          v_bfe_u32 {vr(V_T1)}, {vr(V_LANE)}, 4, 1
          v_lshlrev_b32 {vr(V_T1)}, 2, {vr(V_T1)}
          v_xor_b32 {vr(V_T1)}, {vr(V_T1)}, {vr(V_LANE)}
          v_and_b32 {vr(V_T1)}, 7, {vr(V_T1)}
          v_lshlrev_b32 {vr(V_T1)}, 4, {vr(V_T1)}
          v_lshl_add_u32 {vr(V_WOFF)}, {vr(V_T0)}, 10, {vr(V_T1)}""")
    def kv_sample():
        a(f"buffer_load_dwordx4 {vr(H_F4,4)}, {vr(H_FOFF)}, {sr(S_WS,4)}, 0 offen offset:{WS_FKV} sc1")
    def kv_mask():
        a(f"""v_cmp_ne_u32 vcc, {vr(H_F4)}, {vr(V_TAG)}
              v_cmp_ne_u32 {sr(S_SAVE,2)}, {vr(H_F4+1)}, {vr(V_TAG)}
              s_or_b64 vcc, vcc, {sr(S_SAVE,2)}
              v_cmp_ne_u32 {sr(S_SAVE,2)}, {vr(H_F4+2)}, {vr(V_TAG)}
              s_or_b64 vcc, vcc, {sr(S_SAVE,2)}
              v_cmp_ne_u32 {sr(S_SAVE,2)}, {vr(H_F4+3)}, {vr(V_TAG)}
              s_or_b64 vcc, vcc, {sr(S_SAVE,2)}""")
    def kv_dma(lbl, s0, s1):
        a(f"s_mov_b32 {sr(S_T0)}, {s0}")
        a.label(lbl)
        a(f"""s_add_u32 {sr(S_T1)}, {sr(S_T0)}, {sr(S_HEAD)}
              s_and_b32 {sr(S_T1)}, {sr(S_T1)}, 63
              s_lshl_b32 {sr(S_T1)}, {sr(S_T1)}, 11
              s_add_u32 {sr(S_T1)}, {sr(S_T1)}, {WS_KV}
              s_lshl_b32 m0, {sr(S_T0)}, 11
              s_waitcnt vmcnt(40)""")
        for k in range(4):
            a(f"buffer_load_dwordx4 {vr(V_L16)}, {sr(S_WS,4)}, {sr(S_T1)} offen offset:{k*1024} sc1 lds")
        a(f"""s_add_u32 m0, m0, 4096
              s_add_u32 {sr(S_T1)}, {sr(S_T1)}, 4096""")
        for k in range(4):
            a(f"buffer_load_dwordx4 {vr(V_L16)}, {sr(S_WS,4)}, {sr(S_T1)} offen offset:{k*1024} sc1 lds")
        a(f"""s_add_u32 {sr(S_T0)}, {sr(S_T0)}, 4
              s_cmp_lt_u32 {sr(S_T0)}, {s1}
              s_cbranch_scc1 {lbl}""")
    def kv_spin(lbl, lo_only):
        a(f"s_mov_b32 {sr(S_SPIN)}, 0")
        a.label(lbl + "_loop")
        kv_mask()
        if lo_only:
            a(f"s_and_b32 {sr(S_SAVE)}, vcc_lo, {hex((1 << NSA) - 1)}\ns_cmp_eq_u32 {sr(S_SAVE)}, 0")
        else:
            a("s_cmp_eq_u64 vcc, 0")
        a(f"""s_cbranch_scc1 {lbl}_ok
              s_add_u32 {sr(S_SPIN)}, {sr(S_SPIN)}, 1
              s_cmp_ge_u32 {sr(S_SPIN)}, 100000
              s_cbranch_scc1 {lbl}_ok""")
        kv_sample()
        a(f"""s_waitcnt vmcnt(0)
              s_branch {lbl}_loop""")
        a.label(lbl + "_ok")
    C_SIG = opts.get("c_sig", 1)
    C_SMP = opts.get("c_smp", 9)
    C_CHK = opts.get("c_chk", 12)
    def gate_dots(c):
        if opts.get("nogate"): return
        for q in range(4):
            for r in range(4):
                a(f"v_dot2c_f32_bf16 {vr(H_GACC[r])}, {vr(H_GWR[c%2]+4*q+r)}, {vr(H_GX[c%2]+4*q+r)}")
    for c in range(16):
        a("s_barrier")
        if c > 0: a("s_waitcnt lgkmcnt(0)")
        for q in range(4):
            a(f"ds_read_b128 {vr(H_GX[c%2]+4*q,4)}, {vr(H_GA[q])} offset:{c*4096}")
            a(f"ds_read_b128 {vr(H_GWR[c%2]+4*q,4)}, {vr(H_Z)} offset:{L_GW + c*64 + q*16}")
        if c > 0: gate_dots(c - 1)
        if c == C_SIG:
            a(f"s_waitcnt vmcnt({5 if opts.get('tlb') else 0})")
            flag_store(S_T3)
            stamp(2)
        if c == C_SMP:
            kv_sample()
        if c == C_CHK:
            a("s_waitcnt vmcnt(0)")
            kv_mask()
            a(f"""s_and_b32 {sr(S_SAVE)}, vcc_lo, {hex((1 << NSA) - 1)}
                  s_cmp_eq_u32 {sr(S_SAVE)}, 0
                  s_cselect_b32 {sr(S_RDY)}, 1, 0""")
        if c in (C_CHK + 1, C_CHK + 2):
            h = c - C_CHK - 1
            a(f"""s_cmp_eq_u32 {sr(S_RDY)}, 0
                  s_cbranch_scc1 L_hskip{c}""")
            kv_dma(f"L_kvdA{h}", 8 * h, min(8 * h + 8, NSA))
            a.label(f"L_hskip{c}")
    a("s_waitcnt lgkmcnt(0)")
    gate_dots(15)
    stamp(3)
    a(f"""s_cmp_lg_u32 {sr(S_RDY)}, 0
          s_cbranch_scc1 L_hrdy""")
    kv_spin("L_skvA", True)
    kv_dma("L_kvdA2", 0, NSA)
    a.label("L_hrdy")
    kv_sample()
    a(f"""s_mov_b32 {sr(S_T0)}, {hex(f2u(LOG2E))}
          v_add_f32 {vr(H_GACC[0])}, {vr(H_GACC[0])}, {vr(H_GACC[1])}
          v_add_f32 {vr(H_GACC[2])}, {vr(H_GACC[2])}, {vr(H_GACC[3])}
          v_add_f32 {vr(H_GACC[0])}, {vr(H_GACC[0])}, {vr(H_GACC[2])}
          v_mul_f32 {vr(H_GACC[0])}, {sr(S_T0)}, {vr(H_GACC[0])}
          v_exp_f32 {vr(H_GACC[0])}, -{vr(H_GACC[0])}
          v_add_u32 {vr(V_T0)}, {L_G}, {vr(V_L4)}
          v_add_f32 {vr(H_GACC[0])}, 1.0, {vr(H_GACC[0])}
          v_rcp_f32 {vr(H_GACC[0])}, {vr(H_GACC[0])}
          s_waitcnt vmcnt(1)""")
    stamp(4)
    a(f"""s_barrier
          ds_write_b32 {vr(V_T0)}, {vr(H_GACC[0])}
          s_waitcnt vmcnt(0)""")
    kv_spin("L_skvB", False)
    stamp(5)
    kv_dma("L_kvdB", NSA, 64)
    a(f"""s_cmp_lg_u32 s2, 0
          s_cbranch_scc1 L_noep
          s_mov_b32 {sr(S_T0)}, {WS_E}""")
    flag_store(S_T0)
    a.label("L_noep")
    a(f"""v_add_u32 {vr(V_T0)}, {L_HI}, {vr(V_L4)}
          v_lshrrev_b32 {vr(V_T2)}, 4, {vr(V_LANE)}
          v_and_b32 {vr(V_T3)}, 0x3c, {vr(V_L4)}
          v_lshl_add_u32 {vr(V_T1)}, {vr(V_T2)}, 12, {vr(V_T3)}
          v_add_u32 {vr(V_T1)}, {L_HI + 1024}, {vr(V_T1)}
          v_lshl_add_u32 {vr(V_T2)}, {vr(V_T2)}, 11, {vr(V_T3)}
          s_waitcnt vmcnt(0) lgkmcnt(0)""")
    stamp(11)
    a("s_barrier")
    P0, P1 = 16, 40
    a(f"""s_lshl_b32 {sr(S_T0)}, {sr(S_HG)}, 13
          s_add_u32 {sr(S_T0)}, {sr(S_T0)}, {WS_ACC}""")
    for hh in range(4):
        for i in range(4):
            a(f"ds_read_b32 {vr(P0+4*hh+i)}, {vr(V_T0)} offset:{hh*4096 + i*256}")
            a(f"ds_read_b32 {vr(P1+4*hh+i)}, {vr(V_T0)} offset:{hh*4096 + 2048 + i*256}")
        if hh == 3:
            a(f"ds_read_b32 {vr(P0+16)}, {vr(V_T1)}")
            a(f"ds_read_b32 {vr(P1+16)}, {vr(V_T1)} offset:2048")
        a("s_waitcnt lgkmcnt(0)")
        for i in range(4 if hh < 3 else 5):
            a(f"v_add_f32 {vr(P0+4*hh+i)}, {vr(P0+4*hh+i)}, {vr(P1+4*hh+i)}")
        if hh == 2: a(f"s_add_u32 {sr(S_T1)}, {sr(S_T0)}, 4096")
        for i in range(4):
            a(f"buffer_atomic_add_f32 {vr(P0+4*hh+i)}, {vr(V_L4)}, {sr(S_WS,4)}, {sr(S_T0 if hh < 2 else S_T1)} offen offset:{(hh%2)*2048 + i*256} sc1")
    a(f"""buffer_atomic_add_f32 {vr(P0+16)}, {vr(V_T2)}, {sr(S_WS,4)}, {sr(S_T0)} offen offset:1024 sc1
          s_lshl_b32 {sr(S_T3)}, {sr(S_HG)}, 7
          s_add_u32 {sr(S_T3)}, {sr(S_T3)}, {WS_FA}
          s_lshl_b32 {sr(S_T0)}, {sr(S_QB)}, 2
          s_add_u32 {sr(S_T0)}, {sr(S_T0)}, {sr(S_T3)}
          s_waitcnt vmcnt(0)""")
    flag_store(S_T0)
    stamp(12)
    a(f"v_mov_b32 {vr(V_FLG)}, 0\nv_not_b32 {vr(V_FLG)}, {vr(V_TAG)}\ns_sleep 32")
    flag_spin("L_sfa", S_T3, 32)
    stamp(13)
    a("s_barrier")
    def wodma(lbl, srdw, r0, nrows, dst):
        a(f"""s_lshl_b32 {sr(S_T0)}, {sr(S_NS)}, 7
              s_add_u32 {sr(S_T0)}, {sr(S_T0)}, {r0*1024}
              s_mov_b32 m0, {dst}""")
        a.label(lbl)
        a("s_waitcnt vmcnt(40)")
        for i in range(4):
            a(f"buffer_load_dwordx4 {vr(V_WOFF)}, {sr(srdw,4)}, {sr(S_T0)} offen lds")
            a(f"""s_add_u32 m0, m0, 1024
                  s_add_u32 {sr(S_T0)}, {sr(S_T0)}, 8192""")
        a(f"""s_cmp_lt_u32 m0, {dst + nrows*128}
              s_cbranch_scc1 {lbl}""")
    wodma("L_woa", S_WOA, 0, 512, 0)
    wodma("L_wob0", S_WOB, 0, 256, L_HI)
    a(f"""s_lshl_b32 {sr(S_T3)}, {sr(S_QB)}, 7
          s_lshl_b32 {sr(S_T0)}, {sr(S_HG)}, 2
          s_add_u32 {sr(S_T3)}, {sr(S_T3)}, {sr(S_T0)}
          s_add_u32 {sr(S_T3)}, {sr(S_T3)}, {WS_FOA}
          s_waitcnt vmcnt(0)""")
    stamp(17)
    a("s_barrier")
    flag_store(S_T3)
    wodma("L_wob1", S_WOB, 256, 256, 65536)
    a("s_waitcnt vmcnt(0)")
    if ts:
        stamp(18)
        ts_out()
    a("""s_barrier
         s_endpgm""")
    a.label("L_codeend")

    head = open("cdna_kernels/" + NAME + ".s.ref").read().split("\n")
    hdr = [l for l in head if l.startswith(";") and "@launch" not in l and "Override" not in l and "grid=ceil" not in l]
    out = "\n".join(hdr) + f"\n; @launch grid=(256,1,1) block=(576,1,1) lds={LDS_SIZE}\n"
    out += f""".amdgcn_target "amdgcn-amd-amdhsa--gfx950"
.text
.globl {NAME}_kernel
.p2align 8
.type {NAME}_kernel,@function
"""
    out += a.text()
    out += f""".section .rodata,"a"
.p2align 6
.amdhsa_kernel {NAME}_kernel
  .amdhsa_next_free_vgpr {NVGPR}
  .amdhsa_next_free_sgpr 102
  .amdhsa_accum_offset {NVGPR}
  .amdhsa_group_segment_fixed_size 0
  .amdhsa_kernarg_size 96
  .amdhsa_user_sgpr_count 2
  .amdhsa_user_sgpr_kernarg_segment_ptr 1
  .amdhsa_system_sgpr_workgroup_id_x 1
.end_amdhsa_kernel
"""
    return out

if __name__ == "__main__":
    opts = {}
    outp = "cdna_kernels/" + NAME + ".s"
    for arg in sys.argv[1:]:
        if arg.startswith("-o"):
            outp = arg[2:]
        elif "=" in arg:
            k, v = arg.split("=")
            opts[k] = int(v)
        else:
            opts[arg] = True
    open(outp, "w").write(gen(opts))
    print("wrote", outp)
```

```python
import sys, math, struct

NAME = "gated_mix__linear_attn_block__grouped_kv_mqa__prompt"

def f2u(x):
    return struct.unpack("<I", struct.pack("<f", x))[0]

class Asm:
    def __init__(self):
        self.lines = []
        self.vm = []
    def __call__(self, s):
        for l in s.split("\n"):
            l = l.strip()
            if l:
                self.lines.append("    " + l)
    def label(self, l):
        self.lines.append(l + ":")
    def vmem(self, s, tag):
        self(s)
        self.vm.append(tag)
    def vm_n(self, tag):
        idx = max(i for i, t in enumerate(self.vm) if t == tag)
        return len(self.vm) - 1 - idx
    def drop_to(self, n):
        self.vm = self.vm[len(self.vm) - n:] if n else []
    def wait_vm(self, tag, extra=""):
        n = 0 if tag is None else self.vm_n(tag)
        self.drop_to(n)
        assert n <= 63
        self(f"s_waitcnt vmcnt({n}) {extra}".strip())
    def text(self):
        return "\n".join(self.lines) + "\n"

def vr(a, n=1):
    return f"v{a}" if n == 1 else f"v[{a}:{a+n-1}]"
def sr(a, n=1):
    return f"s{a}" if n == 1 else f"s[{a}:{a+n-1}]"

WS_E = 0x000000
WS_FKV = 0x000400
WS_FA = 0x001000
WS_FOA = 0x002000
WS_FOB = 0x00C000
WS_KV = 0x020000
WS_ACC = 0x040000
WS_OA = 0x200000
WS_OB = 0x208000
WS_DBG1 = 0x600000
WS_DBG2 = 0x800000
WS_TS = 0xA00000
WS_SIZE = 0x1000000
L_MISC = 0
L_X = 32768
L_RING = 98304
L_HI = 131072
L_G = L_HI + 16384
L_GW = 31 * 1024
NSA = 12
LDS_SIZE = 163840
LOG2E = 1.4426950408889634
QSCALE = 0.25 * LOG2E
NVGPR = 168

S_TAG, S_QO, S_NS, S_RDY = 4, 5, 6, 7
S_X, S_W, S_WJ, S_FREE, S_FREE2, S_WOA, S_WOB, S_OUT, S_DBG, S_WS = 8, 12, 16, 20, 24, 28, 32, 36, 40, 44
S_WAVE, S_QB, S_HG, S_RT, S_HH = 48, 49, 50, 51, 52
S_T0, S_T1, S_T2, S_T3 = 53, 54, 55, 56
S_WOFF, S_WSTR8, S_WSTR32, S_M0W = 57, 58, 59, 60
S_SEG, S_SPIN, S_HEAD = 61, 62, 63
S_VMASK, S_RT32, S_RO32, S_SAVE = 64, 66, 67, 68
S_LOG2E, S_QS, S_EPS, S_ONES = 70, 72, 20, 21
S_RGJ, S_ROT = 22, 23
S_TS = 74
S_KA = 76

def gen(opts):
    ts = opts.get("ts", False)
    dbg = opts.get("dbg", False)
    a = Asm()
    V_STAMP = NVGPR - 1

    def stamp(i):
        if not ts: return
        a(f"""s_memrealtime {sr(S_TS,2)}
              s_memtime s[100:101]
              s_waitcnt lgkmcnt(0)
              v_writelane_b32 v{V_STAMP}, {sr(S_TS)}, {i}
              v_writelane_b32 v{V_STAMP}, s100, {32+i}""")

    V_LANE = 1
    V_T0, V_T1, V_T2, V_T3 = 2, 3, 4, 5
    V_XOFF, V_WOFF = 6, 7
    V_XA0, V_XA1, V_WA = 8, 9, 10
    V_L16, V_G, V_IDX, V_KA, V_VA = 11, 12, 13, 14, 15
    V_QF, V_PQ = 16, 20
    V_ACCQ, V_ACCKV = 24, 40
    V_FB = [56, 80]
    V_O, V_C, V_KF = 104, 120, 136
    V_VF = [140, 148]
    V_L4, V_FLG, V_TAG, V_WOA0, V_WOA1 = 156, 157, 158, 159, 160
    V_PK = 162
    V_S = [24, 40]
    V_AC, V_OA = 56, 72
    V_FA, V_FBB, V_WO = 56, 120, 88
    V_OUT = [24, 40]

    def srd(s, ka, size):
        a(f"""s_mov_b32 {sr(s)}, {sr(S_KA+ka)}
              s_mov_b32 {sr(s+1)}, {sr(S_KA+ka+1)}
              s_mov_b32 {sr(s+2)}, {hex(size)}
              s_mov_b32 {sr(s+3)}, 0x20000""")
    def flag_store(soff):
        a(f"""s_mov_b64 exec, 1
              buffer_store_dword {vr(V_TAG)}, {vr(V_L4)}, {sr(S_WS,4)}, {sr(soff)} offen sc1
              s_mov_b64 exec, -1""")
    def flag_load(soff, n, tag=None):
        a(f"s_mov_b64 exec, {hex((1 << n) - 1)}" if n <= 4 else f"s_mov_b32 exec_lo, {hex((1 << n) - 1)}\ns_mov_b32 exec_hi, 0")
        s = f"buffer_load_dword {vr(V_FLG)}, {vr(V_L4)}, {sr(S_WS,4)}, {sr(soff)} offen sc1"
        if tag: a.vmem(s, tag)
        else: a(s)
        a("s_mov_b64 exec, -1")
    def flag_check(n):
        a(f"""v_cmp_ne_u32 vcc, {vr(V_FLG)}, {vr(V_TAG)}
              s_and_b32 {sr(S_SAVE)}, vcc_lo, {hex((1 << n) - 1)}
              s_cmp_eq_u32 {sr(S_SAVE)}, 0""")
    def flag_spin(lbl, soff, n):
        a(f"s_mov_b32 {sr(S_SPIN)}, 0")
        a.label(lbl + "_loop")
        flag_check(n)
        a(f"""s_cbranch_scc1 {lbl}_ok
              s_add_u32 {sr(S_SPIN)}, {sr(S_SPIN)}, 1
              s_cmp_ge_u32 {sr(S_SPIN)}, 100000
              s_cbranch_scc1 {lbl}_ok""")
        flag_load(soff, n)
        a(f"""s_waitcnt vmcnt(0)
              s_branch {lbl}_loop""")
        a.label(lbl + "_ok")
    def tag_setup():
        a(f"""s_waitcnt lgkmcnt(0)
              s_mul_i32 {sr(S_TAG)}, {sr(S_TAG)}, 0x9e3779b1
              s_add_u32 {sr(S_TAG)}, {sr(S_TAG)}, 0x7f4a7c15
              v_mov_b32 {vr(V_TAG)}, {sr(S_TAG)}""")

    a.label(f"{NAME}_kernel")
    a(f"""s_cmp_ge_u32 s2, 256
          s_cbranch_scc1 L_end
          s_load_dwordx16 {sr(S_KA,16)}, s[0:1], 0
          s_load_dwordx8 {sr(S_KA+16,8)}, s[0:1], 64
          v_and_b32 {vr(V_LANE)}, 63, v0
          v_lshrrev_b32 {vr(V_T0)}, 6, v0
          s_and_b32 {sr(S_T0)}, s2, 1
          v_readfirstlane_b32 {sr(S_WAVE)}, {vr(V_T0)}
          s_lshl_b32 {sr(S_T0)}, {sr(S_T0)}, 2
          s_bfe_u32 {sr(S_T1)}, s2, 0x20003
          s_add_u32 {sr(S_HG)}, {sr(S_T0)}, {sr(S_T1)}
          s_bfe_u32 {sr(S_T1)}, s2, 0x20001
          s_lshl_b32 {sr(S_T1)}, {sr(S_T1)}, 3
          s_lshr_b32 {sr(S_QB)}, s2, 5
          s_add_u32 {sr(S_QB)}, {sr(S_QB)}, {sr(S_T1)}
          s_lshr_b32 {sr(S_RGJ)}, {sr(S_HG)}, 1""")
    if opts.get("dbl"): a("s_memrealtime s[100:101]")
    stamp(0)
    a(f"""v_lshrrev_b32 {vr(V_T0)}, 4, {vr(V_LANE)}
          v_xor_b32 {vr(V_T0)}, {vr(V_T0)}, {vr(V_LANE)}
          v_and_b32 {vr(V_T0)}, 3, {vr(V_T0)}
          v_lshlrev_b32 {vr(V_T0)}, 4, {vr(V_T0)}
          v_lshrrev_b32 {vr(V_T1)}, 2, {vr(V_LANE)}
          v_lshl_add_u32 {vr(V_XOFF)}, {vr(V_T1)}, 10, {vr(V_T0)}
          v_lshlrev_b32 {vr(V_L16)}, 4, {vr(V_LANE)}
          v_lshlrev_b32 {vr(V_L4)}, 2, {vr(V_LANE)}
          s_mov_b32 {sr(S_X+2)}, 0x200000
          s_mov_b32 {sr(S_X+3)}, 0x20000
          s_lshl_b32 {sr(S_T0)}, {sr(S_QB)}, 16
          s_cmp_eq_u32 {sr(S_WAVE)}, 8
          s_cbranch_scc1 L_helper
          s_and_b32 {sr(S_RT)}, {sr(S_WAVE)}, 1
          s_lshr_b32 {sr(S_HH)}, {sr(S_WAVE)}, 1
          s_lshl_b32 {sr(S_T1)}, {sr(S_WAVE)}, 7
          s_add_u32 {sr(S_T0)}, {sr(S_T0)}, {sr(S_T1)}
          s_lshl_b32 {sr(S_T1)}, {sr(S_WAVE)}, 13
          s_add_u32 {sr(S_T1)}, {sr(S_T1)}, {L_X}""")
    if opts.get("cpf"):
        a(f"""s_getpc_b64 {sr(S_SAVE,2)}""")
        a.label("L_pc")
        a(f"""s_lshl_b32 {sr(S_T2)}, {sr(S_WAVE)}, 11
              v_lshlrev_b32 {vr(V_T2)}, 5, {vr(V_LANE)}
              v_add_u32 {vr(V_T2)}, {sr(S_T2)}, {vr(V_T2)}
              v_min_u32 {vr(V_T2)}, L_codeend - L_pc - 4, {vr(V_T2)}
              s_mov_b32 exec_lo, 0x11111111
              s_mov_b32 exec_hi, 0x11111111""")
        a.vmem(f"global_load_dword {vr(V_FLG)}, {vr(V_T2)}, {sr(S_SAVE,2)}", "cpf")
        a("s_mov_b64 exec, -1")
    a(f"""s_cmp_eq_u32 {sr(S_HH)}, 0
          s_cselect_b32 {sr(S_T3)}, 1, 3
          s_lshl_b32 {sr(S_W+2)}, {sr(S_T3)}, 19
          s_mov_b32 {sr(S_W+3)}, 0x20000
          s_lshl_b32 {sr(S_T3)}, {sr(S_T3)}, 10
          s_lshl_b32 {sr(S_WSTR8)}, {sr(S_T3)}, 3
          s_lshl_b32 {sr(S_WSTR32)}, {sr(S_T3)}, 5
          s_max_u32 {sr(S_T2)}, {sr(S_HH)}, 1
          s_sub_u32 {sr(S_T2)}, {sr(S_T2)}, 1
          s_lshl_b32 {sr(S_WOFF)}, {sr(S_T2)}, 10
          s_lshl_b32 {sr(S_T2)}, {sr(S_HG)}, 7
          s_add_u32 {sr(S_WOFF)}, {sr(S_WOFF)}, {sr(S_T2)}
          s_mul_i32 {sr(S_T2)}, {sr(S_RT)}, {sr(S_WSTR8)}
          s_lshl_b32 {sr(S_T2)}, {sr(S_T2)}, 1
          s_add_u32 {sr(S_WOFF)}, {sr(S_WOFF)}, {sr(S_T2)}
          s_lshl_b32 {sr(S_M0W)}, {sr(S_WAVE)}, 11
          s_and_b32 {sr(S_T2)}, {sr(S_HH)}, 1
          s_lshl_b32 {sr(S_T2)}, {sr(S_T2)}, 1
          v_lshrrev_b32 {vr(V_T0)}, 1, {vr(V_LANE)}
          v_and_b32 {vr(V_T0)}, 3, {vr(V_T0)}
          v_bfe_u32 {vr(V_T1)}, {vr(V_LANE)}, 4, 1
          v_xor_b32 {vr(V_T0)}, {vr(V_T0)}, {vr(V_T1)}
          v_xor_b32 {vr(V_T0)}, {sr(S_T2)}, {vr(V_T0)}
          v_lshlrev_b32 {vr(V_T0)}, 5, {vr(V_T0)}
          v_and_b32 {vr(V_T1)}, 1, {vr(V_LANE)}
          v_lshl_add_u32 {vr(V_T0)}, {vr(V_T1)}, 4, {vr(V_T0)}
          v_lshrrev_b32 {vr(V_T1)}, 3, {vr(V_LANE)}
          v_mul_u32_u24 {vr(V_T1)}, {sr(S_T3)}, {vr(V_T1)}
          v_add_u32 {vr(V_WOFF)}, {vr(V_T0)}, {vr(V_T1)}
          s_waitcnt lgkmcnt(0)
          s_mov_b32 {sr(S_X)}, {sr(S_KA+0)}
          s_mov_b32 {sr(S_X+1)}, {sr(S_KA+1)}
          s_cmp_eq_u32 {sr(S_HH)}, 0
          s_cselect_b32 {sr(S_W)}, {sr(S_KA+8)}, {sr(S_KA+2)}
          s_cselect_b32 {sr(S_W+1)}, {sr(S_KA+9)}, {sr(S_KA+3)}
          s_load_dword {sr(S_TAG)}, {sr(S_KA+22,2)}, {WS_E}""")
    for i in range(3):
        a(f"""s_add_u32 {sr(S_T3)}, {sr(S_RGJ)}, {i+1}
              s_and_b32 {sr(S_T3)}, {sr(S_T3)}, 3
              s_lshl_b32 {sr(S_T2)}, {sr(S_T3)}, 10
              s_add_u32 m0, {sr(S_T1)}, {sr(S_T2)}
              s_lshl_b32 {sr(S_T2)}, {sr(S_T3)}, 14
              s_add_u32 {sr(S_T2)}, {sr(S_T2)}, {sr(S_T0)}""")
        a.vmem(f"buffer_load_dwordx4 {vr(V_XOFF)}, {sr(S_X,4)}, {sr(S_T2)} offen lds", "x")
        a(f"""s_add_u32 m0, m0, {4096 - 64}
              s_nop 0""")
        a.vmem(f"buffer_load_dwordx4 {vr(V_XOFF)}, {sr(S_X,4)}, {sr(S_T2)} offen offset:64 lds", "x")
    def wdma(c):
        slot = c % 4
        a(f"s_add_u32 m0, {sr(S_M0W)}, {L_RING + slot*16384}")
        a(f"s_add_u32 {sr(S_T2)}, {sr(S_WOFF)}, {sr(S_WSTR8)}")
        a.vmem(f"buffer_load_dwordx4 {vr(V_WOFF)}, {sr(S_W,4)}, {sr(S_WOFF)} offen lds", f"w{c}")
        a(f"s_add_u32 m0, {sr(S_M0W)}, {L_RING + slot*16384 + 1024}")
        a(f"s_add_u32 {sr(S_WOFF)}, {sr(S_WOFF)}, {sr(S_WSTR32)}")
        a.vmem(f"buffer_load_dwordx4 {vr(V_WOFF)}, {sr(S_W,4)}, {sr(S_T2)} offen lds", f"w{c}")
    wdma(0)
    srd(S_WS, 22, WS_SIZE)
    srd(S_OUT, 18, 0x200000)
    if ts: srd(S_DBG, 20, 256)
    def omap():
        a(f"""s_and_b32 {sr(S_QO)}, s2, 7
              s_lshl_b32 {sr(S_QO)}, {sr(S_QO)}, 2
              s_bfe_u32 {sr(S_T0)}, s2, 0x20003
              s_add_u32 {sr(S_QO)}, {sr(S_QO)}, {sr(S_T0)}
              s_lshr_b32 {sr(S_NS)}, s2, 5""")
    omap()
    a(f"""s_lshl_b32 {sr(S_HEAD)}, {sr(S_HG)}, 2
          s_add_u32 {sr(S_HEAD)}, {sr(S_HEAD)}, {sr(S_HH)}
          s_lshl_b32 {sr(S_RT32)}, {sr(S_QB)}, 1
          s_add_u32 {sr(S_RT32)}, {sr(S_RT32)}, {sr(S_RT)}
          s_lshl_b32 {sr(S_RO32)}, {sr(S_QO)}, 1
          s_add_u32 {sr(S_RO32)}, {sr(S_RO32)}, {sr(S_RT)}
          s_mov_b32 {sr(S_VMASK)}, 0xffff
          s_mov_b32 {sr(S_VMASK+1)}, 0xffff
          s_mov_b32 {sr(S_LOG2E)}, {hex(f2u(LOG2E))}
          s_mov_b32 {sr(S_LOG2E+1)}, {hex(f2u(LOG2E))}
          s_mov_b32 {sr(S_EPS)}, {hex(f2u(1e-6))}
          s_mov_b32 {sr(S_QS)}, {hex(f2u(QSCALE))}
          s_mov_b32 {sr(S_QS+1)}, {hex(f2u(QSCALE))}
          s_mov_b32 {sr(S_ONES)}, 0x3f803f80
          v_and_b32 {vr(V_T0)}, 31, {vr(V_LANE)}
          v_lshrrev_b32 {vr(V_T1)}, 5, {vr(V_LANE)}
          v_bfe_u32 {vr(V_T2)}, {vr(V_LANE)}, 2, 2
          v_xor_b32 {vr(V_T2)}, {vr(V_T2)}, {vr(V_T1)}
          v_lshlrev_b32 {vr(V_T2)}, 4, {vr(V_T2)}
          v_lshl_add_u32 {vr(V_T3)}, {vr(V_T0)}, 6, {vr(V_T2)}
          s_lshl_b32 {sr(S_T0)}, {sr(S_RT)}, 11
          s_add_u32 {sr(S_T0)}, {sr(S_T0)}, {L_X}
          v_add_u32 {vr(V_XA0)}, {sr(S_T0)}, {vr(V_T3)}
          v_xor_b32 {vr(V_XA1)}, 32, {vr(V_XA0)}
          v_bfe_u32 {vr(V_T0)}, {vr(V_LANE)}, 4, 1
          v_bfe_u32 {vr(V_T2)}, {vr(V_LANE)}, 3, 2
          v_xor_b32 {vr(V_T2)}, {sr(S_HH)}, {vr(V_T2)}
          v_lshlrev_b32 {vr(V_T2)}, 5, {vr(V_T2)}
          v_lshl_add_u32 {vr(V_T2)}, {vr(V_T0)}, 12, {vr(V_T2)}
          v_lshl_add_u32 {vr(V_T2)}, {vr(V_T1)}, 10, {vr(V_T2)}
          v_bfe_u32 {vr(V_T0)}, {vr(V_LANE)}, 2, 2
          v_lshl_add_u32 {vr(V_T2)}, {vr(V_T0)}, 7, {vr(V_T2)}
          v_and_b32 {vr(V_T0)}, 3, {vr(V_LANE)}
          v_lshl_add_u32 {vr(V_T2)}, {vr(V_T0)}, 3, {vr(V_T2)}
          v_add_u32 {vr(V_WA)}, {L_RING}, {vr(V_T2)}""")
    wdma(1)
    for i in range(8):
        a(f"v_mov_b32 {vr(V_ACCQ+i)}, 0")
        a(f"v_mov_b32 {vr(V_ACCQ+8+i)}, {sr(S_EPS)}")
    a(f"""v_mov_b32 {vr(V_T0)}, {sr(S_EPS)}
          v_cndmask_b32 {vr(V_T0)}, 0, {vr(V_T0)}, {sr(S_VMASK,2)}""")
    for i in range(16):
        a(f"v_mov_b32 {vr(V_ACCKV+i)}, {vr(V_T0)}")
    wdma(2)
    for i in range(16):
        a(f"v_mov_b32 {vr(V_O+i)}, 0")
        a(f"v_mov_b32 {vr(V_VF[0]+i)}, {sr(S_ONES)}")
    a(f"""v_mov_b32 {vr(V_IDX)}, 0xdddd
          v_mov_b32 {vr(V_KA)}, {vr(V_L16)}
          v_and_b32 {vr(V_T3)}, 15, {vr(V_LANE)}
          v_lshlrev_b32 {vr(V_T3)}, 4, {vr(V_T3)}
          v_lshl_add_u32 {vr(V_VA)}, {vr(V_T1)}, 8, {vr(V_T3)}""")
    wdma(3)
    tag_setup()
    if opts.get("dbl"):
        srd(S_DBG, 20, 256)
        a(f"""s_not_b32 {sr(S_T0)}, s100
              v_mov_b32 {vr(V_T0)}, {sr(S_T0)}
              s_cmp_lg_u32 {sr(S_WAVE)}, 0
              s_cbranch_scc1 L_dbl0
              s_mov_b64 exec, 1
              buffer_atomic_umax {vr(V_T0)}, {vr(V_L4)}, {sr(S_DBG,4)}, 0 offen sc1
              s_mov_b64 exec, -1""")
        a.label("L_dbl0")
    stamp(1)

    def reads(c):
        fb = V_FB[c % 2]
        slot = c % 4
        r = [f"ds_read_b128 {vr(fb,4)}, {vr(V_XA0)} offset:{c*4096}"]
        for T in range(2):
            for u in range(2):
                r.append(f"ds_read_b64_tr_b16 {vr(fb+8+T*8+2*u,2)}, {vr(V_WA)} offset:{slot*16384 + T*8192 + u*512}")
        r.append(f"ds_read_b128 {vr(fb+4,4)}, {vr(V_XA1)} offset:{c*4096}")
        for T in range(2):
            for u in range(2):
                r.append(f"ds_read_b64_tr_b16 {vr(fb+8+T*8+4+2*u,2)}, {vr(V_WA)} offset:{slot*16384 + T*8192 + 2048 + u*512}")
        return r
    def mfmas(c):
        fb = V_FB[c % 2]
        r = []
        for p in range(2):
            r.append(f"v_mfma_f32_32x32x16_bf16 {vr(V_ACCKV,16)}, {vr(fb+4*p,4)}, {vr(fb+16+4*p,4)}, {vr(V_ACCKV,16)}")
            r.append(f"v_mfma_f32_32x32x16_bf16 {vr(V_ACCQ,16)}, {vr(fb+8+4*p,4)}, {vr(fb+4*p,4)}, {vr(V_ACCQ,16)}")
        return r
    for c in range(16):
        a.wait_vm(f"w{c}", "lgkmcnt(0)")
        a("s_barrier")
        if c == 0:
            for r in reads(c): a(r)
        else:
            R_, M_ = reads(c), mfmas(c - 1)
            a(M_[0])
            for r in R_[:5]: a(r)
            a(M_[1])
            for r in R_[5:]: a(r)
            a(M_[2])
            if c + 3 <= 15: wdma(c + 3)
            a(M_[3])
    a("s_waitcnt lgkmcnt(0)")
    for m in mfmas(15): a(m)
    stamp(2)
    E = V_FB[0]
    def phi(src, n, tmp):
        for i in range(0, n, 2):
            a(f"v_pk_mul_f32 {vr(tmp+i,2)}, {sr(S_LOG2E,2)}, {vr(src+i,2)}")
        for i in range(n):
            a(f"v_exp_f32 {vr(tmp+i)}, {vr(tmp+i)} clamp")
        for i in range(n):
            a(f"v_max_f32 {vr(src+i)}, {sr(S_EPS)}, {vr(src+i)}")
        for i in range(0, n, 2):
            a(f"v_pk_add_f32 {vr(src+i,2)}, {vr(src+i,2)}, {vr(tmp+i,2)}")
    a(f"""s_lshl_b32 {sr(S_T0)}, {sr(S_WAVE)}, 11
          s_add_u32 {sr(S_T0)}, {sr(S_T0)}, {L_HI}
          v_lshrrev_b32 {vr(V_T0)}, 4, {vr(V_LANE)}
          v_lshlrev_b32 {vr(V_T0)}, 4, {vr(V_T0)}
          v_add_u32 {vr(V_XA1)}, {sr(S_T0)}, {vr(V_T0)}
          v_and_b32 {vr(V_T0)}, 15, {vr(V_LANE)}
          v_lshl_add_u32 {vr(V_XA0)}, {vr(V_T0)}, 6, {vr(V_XA1)}
          s_nop 4""")
    for i in range(8):
        a(f"v_permlane16_swap_b32 {vr(V_ACCKV+i)}, {vr(V_ACCKV+8+i)}")
    PKF, VFR, DKV, DZ = E + 8, E + 12, E + 16, E + 20
    a("s_nop 0")
    phi(V_ACCKV, 8, E)
    for i in range(4):
        a(f"v_cvt_pk_bf16_f32 {vr(VFR+i)}, {vr(V_ACCKV+8+2*i)}, {vr(V_ACCKV+8+2*i+1)}")
    for i in range(4):
        a(f"v_cvt_pk_bf16_f32 {vr(PKF+i)}, {vr(V_ACCKV+2*i)}, {vr(V_ACCKV+2*i+1)}")
    for i in range(0, 8, 2):
        a(f"v_pk_mul_f32 {vr(V_ACCQ+i,2)}, {sr(S_QS,2)}, {vr(V_ACCQ+i,2)}")
    a(f"v_mfma_f32_16x16x32_bf16 {vr(DKV,4)}, {vr(PKF,4)}, {vr(VFR,4)}, 0")
    a(f"v_mfma_f32_16x16x32_bf16 {vr(DZ,4)}, {vr(PKF,4)}, {vr(V_VF[0],4)}, 0")
    for i in range(4):
        a(f"v_cvt_pk_bf16_f32 {vr(V_QF+i)}, {vr(V_ACCQ+2*i)}, {vr(V_ACCQ+2*i+1)}")
    phi(V_ACCQ + 8, 8, E)
    for i in range(4):
        a(f"v_cvt_pk_bf16_f32 {vr(V_PQ+i)}, {vr(V_ACCQ+8+2*i)}, {vr(V_ACCQ+8+2*i+1)}")
    stamp(3)
    a("s_barrier")
    stamp(4)
    a(f"""ds_read_b128 {vr(V_KF,4)}, {vr(V_KA)}
          s_mov_b64 exec, {sr(S_VMASK,2)}
          ds_read_b128 {vr(V_VF[0],4)}, {vr(V_VA)} offset:1024
          ds_read_b128 {vr(V_VF[0]+4,4)}, {vr(V_VA)} offset:1536
          ds_read_b128 {vr(V_VF[1],4)}, {vr(V_VA)} offset:{2048+1024}
          ds_read_b128 {vr(V_VF[1]+4,4)}, {vr(V_VA)} offset:{2048+1536}
          s_mov_b64 exec, -1
          ds_write_b128 {vr(V_XA0)}, {vr(DKV,4)}
          ds_write_b128 {vr(V_XA1)}, {vr(DZ,4)} offset:1024
          s_waitcnt lgkmcnt(6)
          v_mfma_f32_32x32x16_bf16 {vr(V_S[0],16)}, {vr(V_KF,4)}, {vr(V_QF,4)}, 0
          ds_read_b128 {vr(V_KF,4)}, {vr(V_KA)} offset:2048""")
    if dbg:
        a(f"""s_lshl_b32 {sr(S_T0)}, {sr(S_RT32)}, 5
              s_add_u32 {sr(S_T0)}, {sr(S_T0)}, {sr(S_HEAD)}
              s_lshl_b32 {sr(S_T0)}, {sr(S_T0)}, 10
              s_add_u32 {sr(S_T1)}, {sr(S_T0)}, {WS_DBG1}
              buffer_store_dwordx4 {vr(V_QF,4)}, {vr(V_L16)}, {sr(S_WS,4)}, {sr(S_T1)} offen
              s_add_u32 {sr(S_T1)}, {sr(S_T0)}, {WS_DBG2}
              buffer_store_dwordx4 {vr(V_PQ,4)}, {vr(V_L16)}, {sr(S_WS,4)}, {sr(S_T1)} offen""")
    S0 = V_S[0]
    a(f"""s_mov_b32 {sr(S_SEG)}, 0
          s_nop 9
          v_max3_f32 {vr(V_T0)}, {vr(S0)}, {vr(S0+1)}, {vr(S0+2)}
          v_max3_f32 {vr(V_T1)}, {vr(S0+3)}, {vr(S0+4)}, {vr(S0+5)}
          v_max3_f32 {vr(V_T2)}, {vr(S0+6)}, {vr(S0+7)}, {vr(S0+8)}
          v_max3_f32 {vr(V_T3)}, {vr(S0+9)}, {vr(S0+10)}, {vr(S0+11)}
          v_max3_f32 {vr(V_T0)}, {vr(V_T0)}, {vr(S0+12)}, {vr(S0+13)}
          v_max3_f32 {vr(V_T1)}, {vr(V_T1)}, {vr(S0+14)}, {vr(S0+15)}
          v_max3_f32 {vr(V_T0)}, {vr(V_T0)}, {vr(V_T1)}, {vr(V_T2)}
          v_max_f32 {vr(V_T0)}, {vr(V_T0)}, {vr(V_T3)}
          v_mov_b32 {vr(V_T1)}, {vr(V_T0)}
          s_nop 1
          v_permlane32_swap_b32 {vr(V_T0)}, {vr(V_T1)}
          s_nop 1
          v_max_f32 {vr(V_T0)}, {vr(V_T0)}, {vr(V_T1)}
          v_sub_f32 {vr(V_T2)}, 0, {vr(V_T0)}
          v_sub_f32 {vr(V_T3)}, 0, {vr(V_T0)}""")
    for i in range(0, 16, 2):
        a(f"v_pk_add_f32 {vr(S0+i,2)}, {vr(S0+i,2)}, {vr(V_T2,2)}")
    for i in range(0, 16, 2):
        a(f"v_pk_mov_b32 {vr(V_C+i,2)}, {vr(V_T2,2)}, {vr(V_T2,2)} op_sel:[0,1]")
    a(f"""v_exp_f32 {vr(S0)}, {vr(S0)}
          v_exp_f32 {vr(S0+1)}, {vr(S0+1)}
          s_waitcnt lgkmcnt(0)""")
    stamp(5)

    a.lines.append("    .p2align 6")
    a.label("L_att")
    for t in range(8):
        cur, nxt = V_S[t % 2], V_S[(t + 1) % 2]
        vf = V_VF[t % 2]
        ex = lambda r: a(f"v_exp_f32 {vr(r)}, {vr(r)}")
        if opts.get("prio", 1) and t in (0, 4, 6, 7): a(f"s_setprio { {0:3, 4:2, 6:1, 7:0}[t] }")
        for i in (2, 3, 4, 5): ex(cur + i)
        a("s_waitcnt lgkmcnt(2)")
        a(f"v_mfma_f32_32x32x16_bf16 {vr(nxt,16)}, {vr(V_KF,4)}, {vr(V_QF,4)}, {vr(V_C,16)}")
        a(f"ds_read_b128 {vr(V_KF,4)}, {vr(V_KA)} offset:{(t+2)*2048}")
        for i in (6, 7, 8, 9, 10): ex(cur + i)
        a(f"v_smfmac_f32_32x32x32_bf16 {vr(V_O,16)}, {vr(vf,4)}, {vr(cur,8)}, {vr(V_IDX)}")
        for i in (11, 12, 13, 14, 15): ex(cur + i)
        ex(nxt); ex(nxt + 1)
        a(f"v_smfmac_f32_32x32x32_bf16 {vr(V_O,16)}, {vr(vf+4,4)}, {vr(cur+8,8)}, {vr(V_IDX)}")
        a(f"""s_mov_b64 exec, {sr(S_VMASK,2)}
              ds_read_b128 {vr(vf,4)}, {vr(V_VA)} offset:{(t+2)*2048+1024}
              ds_read_b128 {vr(vf+4,4)}, {vr(V_VA)} offset:{(t+2)*2048+1536}
              s_mov_b64 exec, -1""")
    a(f"""v_add_u32 {vr(V_KA)}, 0x4000, {vr(V_KA)}
          v_add_u32 {vr(V_VA)}, 0x4000, {vr(V_VA)}
          s_add_u32 {sr(S_SEG)}, {sr(S_SEG)}, 1
          s_bitcmp1_b32 0xc, {sr(S_SEG)}
          s_cbranch_scc1 L_att""")
    for h in (1, 4, 5, 6, 7):
        a(f"""s_cmp_eq_u32 {sr(S_SEG)}, {h}
              s_cbranch_scc1 L_hook{h}""")
    a("s_branch L_attend")

    def ooff(dst, base):
        a(f"""s_lshl_b32 {sr(dst)}, {sr(S_RT32)}, 6
              s_add_u32 {sr(dst)}, {sr(dst)}, {sr(S_HEAD)}
              s_lshl_b32 {sr(dst)}, {sr(dst)}, 10
              s_add_u32 {sr(dst)}, {sr(dst)}, {base}""")
    def oloads(base, dst, tag):
        a(f"""s_lshl_b32 {sr(S_T2)}, {sr(S_RO32)}, 3
              s_add_u32 {sr(S_T2)}, {sr(S_T2)}, {sr(S_HH)}
              s_lshl_b32 {sr(S_T2)}, {sr(S_T2)}, 13""")
        for i in range(8):
            if i % 4 == 0: a(f"s_add_u32 {sr(S_T0)}, {sr(S_T2)}, {base + i*1024}")
            a.vmem(f"buffer_load_dwordx4 {vr(dst+4*i,4)}, {vr(V_L16)}, {sr(S_WS,4)}, {sr(S_T0)} offen offset:{(i%4)*1024} sc1", f"{tag}{i}")

    a.label("L_hook1")
    stamp(11)
    a(f"""v_and_b32 {vr(V_T0)}, 0x7c, {vr(V_L4)}
          s_lshl_b32 {sr(S_T0)}, {sr(S_RT)}, 7
          s_add_u32 {sr(S_T0)}, {sr(S_T0)}, {L_G}
          v_add_u32 {vr(V_T0)}, {sr(S_T0)}, {vr(V_T0)}
          s_barrier
          ds_read_b32 {vr(V_G)}, {vr(V_T0)}
          s_waitcnt lgkmcnt(0)""")
    stamp(12)
    a("s_branch L_att")

    a.label("L_hook4")
    stamp(13)
    a.vm = []
    a(f"""v_and_b32 {vr(V_T0)}, 15, {vr(V_LANE)}
          v_cndmask_b32 {vr(V_T0)}, {vr(V_T0)}, 16, {sr(S_VMASK,2)}
          v_lshrrev_b32 {vr(V_T1)}, 5, {vr(V_LANE)}
          v_lshlrev_b32 {vr(V_T1)}, 4, {vr(V_T1)}
          v_lshl_add_u32 {vr(V_T0)}, {vr(V_T0)}, 6, {vr(V_T1)}
          s_lshl_b32 {sr(S_T0)}, {sr(S_HEAD)}, 11
          s_add_u32 {sr(S_T0)}, {sr(S_T0)}, {WS_ACC}
          s_barrier""")
    a.vmem(f"buffer_load_dwordx4 {vr(V_AC,4)}, {vr(V_T0)}, {sr(S_WS,4)}, {sr(S_T0)} offen sc1", "acc")
    a.vmem(f"buffer_load_dwordx4 {vr(V_AC+4,4)}, {vr(V_T0)}, {sr(S_WS,4)}, {sr(S_T0)} offen offset:32 sc1", "acc")
    stamp(14)
    a("s_branch L_att")

    a.label("L_hook5")
    stamp(15)
    a.wait_vm("acc")
    for i in range(4):
        a(f"v_cvt_pk_bf16_f32 {vr(V_AC+8+i)}, {vr(V_AC+2*i)}, {vr(V_AC+2*i+1)}")
    a(f"""s_nop 1
          v_mfma_f32_32x32x16_bf16 {vr(V_OA,16)}, {vr(V_AC+8,4)}, {vr(V_PQ,4)}, 0""")
    ooff(S_T3, WS_OA)
    a(f"""s_nop 7
          v_add_f32 {vr(V_T0)}, {sr(S_EPS)}, {vr(V_OA)}
          v_rcp_f32 {vr(V_T0)}, {vr(V_T0)}
          s_nop 0
          v_mul_f32 {vr(V_T0)}, {vr(V_T0)}, {vr(V_G)}""")
    for i in range(0, 8, 2):
        a(f"v_pk_mul_f32 {vr(V_OA+8+i,2)}, {vr(V_OA+8+i,2)}, {vr(V_T0,2)} op_sel_hi:[1,0]")
    for i in range(4):
        a(f"v_cvt_pk_bf16_f32 {vr(V_PK+i)}, {vr(V_OA+8+2*i)}, {vr(V_OA+8+2*i+1)}")
    a.vmem(f"buffer_store_dwordx4 {vr(V_PK,4)}, {vr(V_L16)}, {sr(S_WS,4)}, {sr(S_T3)} offen sc1", "oa")
    stamp(16)
    a("s_branch L_att")

    a.label("L_hook6")
    stamp(17)
    a.wait_vm(None)
    a("s_barrier")
    stamp(18)
    a("s_branch L_att")

    a.label("L_hook7")
    stamp(19)
    a(f"""s_lshl_b32 {sr(S_T3)}, {sr(S_QO)}, 7
          s_lshl_b32 {sr(S_T0)}, {sr(S_HH)}, 3
          s_add_u32 {sr(S_T3)}, {sr(S_T3)}, {sr(S_T0)}
          s_add_u32 {sr(S_T3)}, {sr(S_T3)}, {WS_FOA}""")
    flag_load(S_T3, 2, "ffoa")
    a(f"""v_lshrrev_b32 {vr(V_T0)}, 5, {vr(V_LANE)}
          v_lshlrev_b32 {vr(V_T0)}, 9, {vr(V_T0)}
          v_bfe_u32 {vr(V_T1)}, {vr(V_LANE)}, 2, 2
          v_lshl_add_u32 {vr(V_T0)}, {vr(V_T1)}, 7, {vr(V_T0)}
          v_bfe_u32 {vr(V_T1)}, {vr(V_LANE)}, 3, 1
          v_lshl_add_u32 {vr(V_T0)}, {vr(V_T1)}, 6, {vr(V_T0)}
          v_bfe_u32 {vr(V_T1)}, {vr(V_LANE)}, 4, 1
          v_lshl_add_u32 {vr(V_T0)}, {vr(V_T1)}, 5, {vr(V_T0)}
          v_and_b32 {vr(V_T1)}, 3, {vr(V_LANE)}
          v_lshl_add_u32 {vr(V_T0)}, {vr(V_T1)}, 3, {vr(V_T0)}
          s_lshl_b32 {sr(S_T0)}, {sr(S_HH)}, 14
          v_add_u32 {vr(V_WOA0)}, {sr(S_T0)}, {vr(V_T0)}
          v_xor_b32 {vr(V_WOA1)}, 64, {vr(V_WOA0)}
          v_sub_f32 {vr(V_G)}, 1.0, {vr(V_G)}""")
    ooff(S_RDY, WS_OB)
    stamp(20)
    a("s_branch L_att")

    a.label("L_attend")
    stamp(6)
    a(f"""s_mov_b32 {sr(S_T0)}, {hex(f2u(2.0**64))}
          v_rcp_f32 {vr(V_T0)}, {vr(V_O+8)}
          v_cmp_nle_f32 vcc, {vr(V_O+8)}, {sr(S_T0)}
          v_pk_mul_f32 {vr(V_T2,2)}, {vr(V_O,2)}, 0
          v_pk_fma_f32 {vr(V_T2,2)}, {vr(V_O+2,2)}, 0, {vr(V_T2,2)}
          v_pk_fma_f32 {vr(V_T2,2)}, {vr(V_O+4,2)}, 0, {vr(V_T2,2)}
          v_pk_fma_f32 {vr(V_T2,2)}, {vr(V_O+6,2)}, 0, {vr(V_T2,2)}
          v_cmp_u_f32 {sr(S_SAVE,2)}, {vr(V_T2)}, {vr(V_T3)}
          s_or_b64 vcc, vcc, {sr(S_SAVE,2)}
          s_cbranch_vccnz L_fallback""")
    a.label("L_norm")
    a(f"v_mul_f32 {vr(V_T0)}, {vr(V_T0)}, {vr(V_G)}")
    for i in range(0, 8, 2):
        a(f"v_pk_mul_f32 {vr(V_O+i,2)}, {vr(V_O+i,2)}, {vr(V_T0,2)} op_sel_hi:[1,0]")
    for i in range(4):
        a(f"v_cvt_pk_bf16_f32 {vr(V_PK+i)}, {vr(V_O+2*i)}, {vr(V_O+2*i+1)}")
    a.vmem(f"buffer_store_dwordx4 {vr(V_PK,4)}, {vr(V_L16)}, {sr(S_WS,4)}, {sr(S_RDY)} offen sc1", "ob")
    a.wait_vm("ffoa")
    flag_spin("L_sfoa", S_T3, 2)
    oloads(WS_OA, V_FA, "fa")
    a(f"""s_lshl_b32 {sr(S_T3)}, {sr(S_RT32)}, 2
          s_lshr_b32 {sr(S_T2)}, {sr(S_HEAD)}, 3
          s_add_u32 {sr(S_T3)}, {sr(S_T3)}, {sr(S_T2)}
          s_lshl_b32 {sr(S_T3)}, {sr(S_T3)}, 7
          s_and_b32 {sr(S_T2)}, {sr(S_HEAD)}, 7
          s_lshl_b32 {sr(S_T2)}, {sr(S_T2)}, 2
          s_add_u32 {sr(S_T3)}, {sr(S_T3)}, {sr(S_T2)}
          s_add_u32 {sr(S_T3)}, {sr(S_T3)}, {WS_FOB}""")
    a.wait_vm("ob")
    flag_store(S_T3)
    a.vm.append("fl")
    stamp(7)
    a(f"""s_lshl_b32 {sr(S_T3)}, {sr(S_RO32)}, 2
          s_add_u32 {sr(S_T3)}, {sr(S_T3)}, {sr(S_HH)}
          s_lshl_b32 {sr(S_T3)}, {sr(S_T3)}, 7
          s_add_u32 {sr(S_T3)}, {sr(S_T3)}, {WS_FOB}""")
    def oproj(src, tag, first, mid=None):
        def rd(i):
            b = V_WO + 8 * (i % 4)
            for nt in range(2):
                for u in range(2):
                    a(f"ds_read_b64_tr_b16 {vr(b+4*nt+2*u,2)}, {vr(V_WOA0 if nt==0 else V_WOA1)} offset:{i*2048 + u*1024}")
        rd(0); rd(1); rd(2)
        for i in range(8):
            n_after = 4 * (min(i + 2, 7) - i)
            a.wait_vm(f"{tag}{i}", f"lgkmcnt({n_after})")
            b = V_WO + 8 * (i % 4)
            for nt in range(2):
                a(f"v_mfma_f32_32x32x16_bf16 {vr(V_OUT[nt],16)}, {vr(b+4*nt,4)}, {vr(src+4*i,4)}, {'0' if (first and i==0) else vr(V_OUT[nt],16)}")
            if i + 3 < 8: rd(i + 3)
            if mid and i == 3: mid()
    oproj(V_FA, "fa", True, mid=lambda: flag_load(S_T3, 8, "ffob"))
    stamp(8)
    a.wait_vm(None)
    flag_spin("L_sfob", S_T3, 8)
    oloads(WS_OB, V_FBB, "fb")
    stamp(9)
    a(f"""s_cmp_lt_u32 {sr(S_HH)}, 2
          s_cselect_b32 {sr(S_T0)}, 4, 1
          s_lshl_b32 {sr(S_T0)}, {sr(S_T0)}, 15
          v_add_u32 {vr(V_WOA0)}, {sr(S_T0)}, {vr(V_WOA0)}
          v_add_u32 {vr(V_WOA1)}, {sr(S_T0)}, {vr(V_WOA1)}
          v_and_b32 {vr(V_T0)}, 31, {vr(V_LANE)}
          v_lshrrev_b32 {vr(V_T1)}, 5, {vr(V_LANE)}
          v_and_b32 {vr(V_T2)}, 7, {vr(V_LANE)}
          v_xor_b32 {vr(V_T1)}, {vr(V_T1)}, {vr(V_T2)}
          v_lshlrev_b32 {vr(V_T1)}, 4, {vr(V_T1)}
          v_lshl_add_u32 {vr(V_T0)}, {vr(V_T0)}, 8, {vr(V_T1)}
          s_lshl_b32 {sr(S_T0)}, {sr(S_HH)}, 14
          s_lshl_b32 {sr(S_T1)}, {sr(S_RT)}, 13
          s_add_u32 {sr(S_T0)}, {sr(S_T0)}, {sr(S_T1)}
          v_add_u32 {vr(V_T0)}, {sr(S_T0)}, {vr(V_T0)}
          v_xor_b32 {vr(V_T1)}, 32, {vr(V_T0)}
          v_xor_b32 {vr(V_T2)}, 64, {vr(V_T0)}
          v_xor_b32 {vr(V_T3)}, 96, {vr(V_T0)}""")
    A0, A1, A2, A3 = V_XA0, V_XA1, V_WA, V_KA
    a(f"""v_lshrrev_b32 {vr(A0)}, 3, {vr(V_LANE)}
          v_and_b32 {vr(A1)}, 7, {vr(V_LANE)}
          v_lshlrev_b32 {vr(A2)}, 1, {vr(A1)}
          v_xor_b32 {vr(A2)}, {vr(A2)}, {vr(A0)}
          v_lshlrev_b32 {vr(A2)}, 4, {vr(A2)}
          v_lshl_add_u32 {vr(A2)}, {vr(A0)}, 8, {vr(A2)}
          s_lshl_b32 {sr(S_T0)}, {sr(S_WAVE)}, 11
          v_add_u32 {vr(A2)}, {sr(S_T0)}, {vr(A2)}
          v_xor_b32 {vr(A3)}, 16, {vr(A2)}
          v_lshlrev_b32 {vr(A1)}, 4, {vr(A1)}
          v_lshl_add_u32 {vr(A0)}, {vr(A0)}, 10, {vr(A1)}
          s_lshl_b32 {sr(S_T0)}, {sr(S_QO)}, 16
          s_lshl_b32 {sr(S_T1)}, {sr(S_WAVE)}, 13
          s_add_u32 {sr(S_T0)}, {sr(S_T0)}, {sr(S_T1)}
          s_lshl_b32 {sr(S_T1)}, {sr(S_NS)}, 7
          s_add_u32 {sr(S_T0)}, {sr(S_T0)}, {sr(S_T1)}
          s_barrier""")
    oproj(V_FBB, "fb", False)
    a("s_nop 10")
    for nt in range(2):
        for g in range(4):
            a(f"ds_write_b128 {vr(V_T0+g)}, {vr(V_OUT[nt]+4*g,4)} offset:{nt*128}")
    a("""s_waitcnt lgkmcnt(0)
         s_barrier""")
    RR = V_FA
    for k in range(4):
        a(f"ds_read_b128 {vr(RR+8*k,4)}, {vr(A2)} offset:{k*16384}")
        a(f"ds_read_b128 {vr(RR+8*k+4,4)}, {vr(A3)} offset:{k*16384}")
    for k in range(1, 4):
        a(f"s_waitcnt lgkmcnt({2*(3-k)})")
        for i in range(0, 8, 2):
            a(f"v_pk_add_f32 {vr(RR+i,2)}, {vr(RR+i,2)}, {vr(RR+8*k+i,2)}")
    for i in range(4):
        a(f"v_cvt_pk_bf16_f32 {vr(RR+8+i)}, {vr(RR+2*i)}, {vr(RR+2*i+1)}")
    a(f"buffer_store_dwordx4 {vr(RR+8,4)}, {vr(A0)}, {sr(S_OUT,4)}, {sr(S_T0)} offen")
    if opts.get("dbl"):
        a(f"""s_or_b32 {sr(S_T0)}, s2, {sr(S_WAVE)}
              s_cmp_lg_u32 {sr(S_T0)}, 0
              s_cbranch_scc1 L_end
              s_memrealtime s[98:99]
              buffer_load_dword {vr(V_T0)}, {vr(V_L4)}, {sr(S_DBG,4)}, 0 offen sc1
              s_waitcnt vmcnt(0) lgkmcnt(0)
              v_readfirstlane_b32 {sr(S_T0)}, {vr(V_T0)}
              s_nop 3
              s_not_b32 {sr(S_T0)}, {sr(S_T0)}""" + (f"\ns_mov_b32 {sr(S_T0)}, s100" if opts.get("dbl") == 2 else "") + f"""
              s_sub_u32 {sr(S_T0)}, s98, {sr(S_T0)}
              s_min_u32 {sr(S_T0)}, {sr(S_T0)}, 20000""")
        a.label("L_dbl1")
        a(f"""s_memrealtime s[96:97]
              s_waitcnt lgkmcnt(0)
              s_sub_u32 {sr(S_T1)}, s96, s98
              s_cmp_lt_u32 {sr(S_T1)}, {sr(S_T0)}
              s_cbranch_scc1 L_dbl1""")
    def ts_out():
        a(f"""s_mul_i32 {sr(S_T0)}, s2, 9
              s_add_u32 {sr(S_T0)}, {sr(S_T0)}, {sr(S_WAVE)}
              s_lshl_b32 {sr(S_T0)}, {sr(S_T0)}, 8
              s_add_u32 {sr(S_T0)}, {sr(S_T0)}, {WS_TS}
              buffer_store_dword v{V_STAMP}, {vr(V_L4)}, {sr(S_WS,4)}, {sr(S_T0)} offen""")
    if ts:
        stamp(10)
        ts_out()
        a(f"""s_cmp_lg_u32 s2, {opts.get('tswg', 100)}
              s_cbranch_scc1 L_end
              s_cmp_lg_u32 {sr(S_WAVE)}, 0
              s_cbranch_scc1 L_end
              v_readlane_b32 {sr(S_T0)}, v{V_STAMP}, 0
              s_nop 4
              v_subrev_u32 v{V_STAMP}, {sr(S_T0)}, v{V_STAMP}
              buffer_store_dword v{V_STAMP}, {vr(V_L4)}, {sr(S_DBG,4)}, 0 offen""")
    a.label("L_end")
    a("s_endpgm")

    a.label("L_fallback")
    FS = V_S[0]
    a(f"""v_mov_b32 {vr(V_T0)}, 0xff800000
          s_mov_b32 {sr(S_T0)}, {WS_KV}""")
    a.label("L_fb1")
    a(f"""buffer_load_dwordx4 {vr(V_KF,4)}, {vr(V_L16)}, {sr(S_WS,4)}, {sr(S_T0)} offen sc1
          s_waitcnt vmcnt(0)
          v_mfma_f32_32x32x16_bf16 {vr(FS,16)}, {vr(V_KF,4)}, {vr(V_QF,4)}, 0
          s_nop 15""")
    for i in range(8):
        a(f"v_max3_f32 {vr(V_T0)}, {vr(V_T0)}, {vr(FS+2*i)}, {vr(FS+2*i+1)}")
    a(f"""s_add_u32 {sr(S_T0)}, {sr(S_T0)}, 2048
          s_cmp_lt_u32 {sr(S_T0)}, {WS_KV + 131072}
          s_cbranch_scc1 L_fb1
          v_mov_b32 {vr(V_T1)}, {vr(V_T0)}
          s_nop 1
          v_permlane32_swap_b32 {vr(V_T0)}, {vr(V_T1)}
          s_nop 1
          v_max_f32 {vr(V_T0)}, {vr(V_T0)}, {vr(V_T1)}""")
    for i in range(16):
        a(f"v_sub_f32 {vr(V_C+i)}, 0, {vr(V_T0)}")
        a(f"v_mov_b32 {vr(V_O+i)}, 0")
    a(f"""v_and_b32 {vr(V_VA)}, 0x3ff, {vr(V_VA)}
          s_mov_b32 {sr(S_T0)}, {WS_KV}""")
    a.label("L_fb2")
    a(f"""buffer_load_dwordx4 {vr(V_KF,4)}, {vr(V_L16)}, {sr(S_WS,4)}, {sr(S_T0)} offen sc1
          s_mov_b64 exec, {sr(S_VMASK,2)}
          buffer_load_dwordx4 {vr(V_VF[0],4)}, {vr(V_VA)}, {sr(S_WS,4)}, {sr(S_T0)} offen offset:1024 sc1
          buffer_load_dwordx4 {vr(V_VF[0]+4,4)}, {vr(V_VA)}, {sr(S_WS,4)}, {sr(S_T0)} offen offset:1536 sc1
          s_mov_b64 exec, -1
          s_waitcnt vmcnt(0)
          v_mfma_f32_32x32x16_bf16 {vr(FS,16)}, {vr(V_KF,4)}, {vr(V_QF,4)}, {vr(V_C,16)}
          s_nop 15""")
    for i in range(16):
        a(f"v_exp_f32 {vr(FS+i)}, {vr(FS+i)}")
    a(f"""s_nop 1
          v_smfmac_f32_32x32x32_bf16 {vr(V_O,16)}, {vr(V_VF[0],4)}, {vr(FS,8)}, {vr(V_IDX)}
          v_smfmac_f32_32x32x32_bf16 {vr(V_O,16)}, {vr(V_VF[0]+4,4)}, {vr(FS+8,8)}, {vr(V_IDX)}
          s_add_u32 {sr(S_T0)}, {sr(S_T0)}, 2048
          s_cmp_lt_u32 {sr(S_T0)}, {WS_KV + 131072}
          s_cbranch_scc1 L_fb2
          s_nop 15
          v_rcp_f32 {vr(V_T0)}, {vr(V_O+8)}
          s_nop 0
          s_branch L_norm""")

    a.label("L_helper")
    a.vm = []
    HX, HW, HD = 16, 80, 144
    H_GA = [8, 9, 10, 12]
    H_GX = [16, 32]
    H_GACC = [48, 49, 50, 51]
    H_F4 = 148
    H_FOFF = 152
    H_GWR = [56, 72]
    H_Z = 88
    a(f"""s_setprio {opts.get("hprio", 3)}
          s_lshl_b32 {sr(S_T1)}, {sr(S_RGJ)}, 14
          s_add_u32 {sr(S_T0)}, {sr(S_T0)}, {sr(S_T1)}
          s_lshl_b32 {sr(S_T1)}, {sr(S_RGJ)}, 10
          s_add_u32 {sr(S_T1)}, {sr(S_T1)}, {L_X}
          s_mov_b32 {sr(S_WJ+2)}, 16384
          s_mov_b32 {sr(S_WJ+3)}, 0x20000
          s_mov_b32 {sr(S_T2)}, 0
          s_bitcmp1_b32 {sr(S_HG)}, 0
          s_waitcnt lgkmcnt(0)
          s_mov_b32 {sr(S_X)}, {sr(S_KA+0)}
          s_mov_b32 {sr(S_X+1)}, {sr(S_KA+1)}
          s_cselect_b32 {sr(S_WJ)}, {sr(S_KA+12)}, {sr(S_KA+10)}
          s_cselect_b32 {sr(S_WJ+1)}, {sr(S_KA+13)}, {sr(S_KA+11)}
          s_load_dword {sr(S_TAG)}, {sr(S_KA+22,2)}, {WS_E}""")
    for g in range(4):
        for k in range(4):
            kb = 4 * g + k
            a(f"s_add_u32 m0, {sr(S_T1)}, {kb*4096 - k*64}")
            a(f"s_add_u32 {sr(S_T3)}, {sr(S_T0)}, {g*256}" if k == 0 else "s_nop 0")
            a.vmem(f"buffer_load_dwordx4 {vr(V_XOFF)}, {sr(S_X,4)}, {sr(S_T3)} offen offset:{k*64} lds", f"j{g}")
        a(f"s_mov_b32 m0, {L_MISC + g*4096}")
        a(f"s_mov_b32 {sr(S_T2)}, {g*4096}")
        for k in range(4):
            a.vmem(f"buffer_load_dwordx4 {vr(V_L16)}, {sr(S_WJ,4)}, {sr(S_T2)} offen offset:{k*1024} lds", f"j{g}")
    srd(S_FREE2, 16, 1024)
    a(f"s_mov_b32 m0, {L_GW}\ns_nop 0")
    a.vmem(f"buffer_load_dwordx4 {vr(V_L16)}, {sr(S_FREE2,4)}, 0 offen lds", "gw")
    srd(S_WS, 22, WS_SIZE)
    srd(S_WOA, 4, 0x80000)
    srd(S_WOB, 14, 0x80000)
    omap()
    a(f"""v_and_b32 {vr(V_T0)}, 15, {vr(V_LANE)}
          v_lshrrev_b32 {vr(V_T1)}, 4, {vr(V_LANE)}
          v_bfe_u32 {vr(V_T2)}, {vr(V_LANE)}, 2, 2
          v_xor_b32 {vr(V_T2)}, {vr(V_T2)}, {vr(V_T1)}
          v_lshlrev_b32 {vr(V_T2)}, 4, {vr(V_T2)}
          v_lshl_add_u32 {vr(V_T2)}, {vr(V_T0)}, 6, {vr(V_T2)}
          v_add_u32 {vr(V_T2)}, {sr(S_T1)}, {vr(V_T2)}
          v_lshlrev_b32 {vr(V_T3)}, 3, {vr(V_T0)}
          v_lshl_add_u32 {vr(V_T3)}, {vr(V_T1)}, 8, {vr(V_T3)}""")
    a(f"""v_lshlrev_b32 {vr(13)}, 4, {vr(V_T0)}
          v_and_b32 {vr(14)}, 1, {vr(V_T1)}
          v_lshrrev_b32 {vr(15)}, 1, {vr(V_T1)}
          s_lshr_b32 {sr(S_T0)}, {sr(S_QB)}, 3
          s_lshl_b32 {sr(S_T0)}, {sr(S_T0)}, 4
          s_lshr_b32 {sr(S_T1)}, {sr(S_RGJ)}, 1
          s_lshl_b32 {sr(S_T1)}, {sr(S_T1)}, 3
          s_add_u32 {sr(S_T0)}, {sr(S_T0)}, {sr(S_T1)}
          s_and_b32 {sr(S_T1)}, {sr(S_QB)}, 7
          s_add_u32 {sr(S_SEG)}, {sr(S_T0)}, {sr(S_T1)}
          s_and_b32 {sr(S_T1)}, {sr(S_RGJ)}, 1
          s_and_b32 {sr(S_HEAD)}, s2, 7
          s_lshl_b32 {sr(S_HEAD)}, {sr(S_HEAD)}, 3""")
    tag_setup()
    def job(isV):
        for g in range(4):
            a(f"s_waitcnt vmcnt({8*(3-g)+1})")
            for k in range(4):
                s = 4 * g + k
                a(f"ds_read_b128 {vr(HX+4*s,4)}, {vr(V_T2)} offset:{s*4096}")
                a(f"ds_read_b64_tr_b16 {vr(HW+4*s,2)}, {vr(V_T3)} offset:{L_MISC + s*1024}")
                a(f"ds_read_b64_tr_b16 {vr(HW+4*s+2,2)}, {vr(V_T3)} offset:{L_MISC + s*1024 + 128}")
            for k in range(4):
                s = 4 * g + k
                A_, B_ = (HX, HW) if isV else (HW, HX)
                a(f"s_waitcnt lgkmcnt({9-3*k})")
                a(f"v_mfma_f32_16x16x32_bf16 {vr(HD,4)}, {vr(A_+4*s,4)}, {vr(B_+4*s,4)}, {'0' if s==0 else vr(HD,4)}")
        if isV:
            a(f"""v_lshl_add_u32 {vr(13)}, {vr(15)}, 8, {vr(13)}
                  v_lshl_add_u32 {vr(13)}, {vr(14)}, 3, {vr(13)}
                  s_lshl_b32 {sr(S_T1)}, {sr(S_T1)}, 9
                  s_add_u32 {sr(S_T1)}, {sr(S_T1)}, 1024""")
        else:
            a(f"""v_lshl_add_u32 {vr(13)}, {vr(14)}, 9, {vr(13)}
                  v_lshl_add_u32 {vr(13)}, {vr(15)}, 3, {vr(13)}
                  s_lshl_b32 {sr(S_T1)}, {sr(S_T1)}, 8
                  s_nop 0""")
    a(f"""s_bitcmp1_b32 {sr(S_HG)}, 0
          s_cbranch_scc1 L_jobV""")
    job(False)
    a("s_branch L_jobdone")
    a.label("L_jobV")
    job(True)
    a.label("L_jobdone")
    a.vm = []
    a(f"""s_lshl_b32 {sr(S_T0)}, {sr(S_SEG)}, 11
          s_add_u32 {sr(S_T0)}, {sr(S_T0)}, {sr(S_T1)}
          s_add_u32 {sr(S_T0)}, {sr(S_T0)}, {WS_KV}
          s_nop 1
          v_cvt_pk_bf16_f32 {vr(HD+4)}, {vr(HD)}, {vr(HD+1)}
          v_cvt_pk_bf16_f32 {vr(HD+5)}, {vr(HD+2)}, {vr(HD+3)}
          v_mov_b32 {vr(14)}, 0
          s_lshl_b32 {sr(S_T1)}, s2, 8
          s_add_u32 {sr(S_T1)}, {sr(S_T1)}, {WS_ACC}
          buffer_store_dwordx2 {vr(HD+4,2)}, {vr(13)}, {sr(S_WS,4)}, {sr(S_T0)} offen sc1
          buffer_store_dword {vr(14)}, {vr(V_L4)}, {sr(S_WS,4)}, {sr(S_T1)} offen sc1""")
    if opts.get("tlb"):
        srd(S_OUT, 18, 0x200000)
        a(f"""s_mov_b64 exec, 1
              s_lshl_b32 {sr(S_T0)}, {sr(S_QB)}, 17
              s_add_u32 {sr(S_T0)}, {sr(S_T0)}, {WS_OA}
              s_lshl_b32 {sr(S_T1)}, {sr(S_QO)}, 17
              s_add_u32 {sr(S_T1)}, {sr(S_T1)}, {WS_OA}
              s_lshl_b32 {sr(S_T2)}, {sr(S_QO)}, 16
              buffer_load_dword {vr(V_FLG)}, {vr(V_L4)}, {sr(S_WOA,4)}, 0 offen
              buffer_load_dword {vr(V_FLG)}, {vr(V_L4)}, {sr(S_WOB,4)}, 0 offen
              buffer_load_dword {vr(V_FLG)}, {vr(V_L4)}, {sr(S_OUT,4)}, {sr(S_T2)} offen
              buffer_load_dword {vr(V_FLG)}, {vr(V_L4)}, {sr(S_WS,4)}, {sr(S_T0)} offen sc1
              buffer_load_dword {vr(V_FLG)}, {vr(V_L4)}, {sr(S_WS,4)}, {sr(S_T1)} offen sc1
              s_mov_b64 exec, -1""")
    stamp(1)
    a(f"""v_bfe_u32 {vr(V_T0)}, {vr(V_LANE)}, 2, 2
          v_lshlrev_b32 {vr(V_T0)}, 4, {vr(V_T0)}
          v_lshl_add_u32 {vr(V_T0)}, {vr(V_LANE)}, 6, {vr(V_T0)}
          v_add_u32 {vr(H_GA[0])}, {L_X}, {vr(V_T0)}
          v_xor_b32 {vr(H_GA[1])}, 16, {vr(H_GA[0])}
          v_xor_b32 {vr(H_GA[2])}, 32, {vr(H_GA[0])}
          v_xor_b32 {vr(H_GA[3])}, 48, {vr(H_GA[0])}
          v_mov_b32 {vr(H_GACC[0])}, 0
          v_mov_b32 {vr(H_GACC[1])}, 0
          v_mov_b32 {vr(H_GACC[2])}, 0
          v_mov_b32 {vr(H_GACC[3])}, 0
          v_add_u32 {vr(H_FOFF)}, {sr(S_HEAD)}, {vr(V_LANE)}
          v_and_b32 {vr(H_FOFF)}, 63, {vr(H_FOFF)}
          v_lshlrev_b32 {vr(H_FOFF)}, 4, {vr(H_FOFF)}
          s_lshl_b32 {sr(S_T3)}, {sr(S_SEG)}, 4
          s_and_b32 {sr(S_T0)}, {sr(S_HG)}, 3
          s_lshl_b32 {sr(S_T0)}, {sr(S_T0)}, 2
          s_add_u32 {sr(S_T3)}, {sr(S_T3)}, {sr(S_T0)}
          s_add_u32 {sr(S_T3)}, {sr(S_T3)}, {WS_FKV}
          v_mov_b32 {vr(H_Z)}, 0
          s_mov_b32 {sr(S_RDY)}, 0
          s_waitcnt vmcnt({7 if opts.get("tlb") else 2})""")
    a(f"""v_lshrrev_b32 {vr(V_T0)}, 3, {vr(V_LANE)}
          v_bfe_u32 {vr(V_T1)}, {vr(V_LANE)}, 4, 1
          v_lshlrev_b32 {vr(V_T1)}, 2, {vr(V_T1)}
          v_xor_b32 {vr(V_T1)}, {vr(V_T1)}, {vr(V_LANE)}
          v_and_b32 {vr(V_T1)}, 7, {vr(V_T1)}
          v_lshlrev_b32 {vr(V_T1)}, 4, {vr(V_T1)}
          v_lshl_add_u32 {vr(V_WOFF)}, {vr(V_T0)}, 10, {vr(V_T1)}""")
    def kv_sample():
        a(f"buffer_load_dwordx4 {vr(H_F4,4)}, {vr(H_FOFF)}, {sr(S_WS,4)}, 0 offen offset:{WS_FKV} sc1")
    def kv_mask():
        a(f"""v_cmp_ne_u32 vcc, {vr(H_F4)}, {vr(V_TAG)}
              v_cmp_ne_u32 {sr(S_SAVE,2)}, {vr(H_F4+1)}, {vr(V_TAG)}
              s_or_b64 vcc, vcc, {sr(S_SAVE,2)}
              v_cmp_ne_u32 {sr(S_SAVE,2)}, {vr(H_F4+2)}, {vr(V_TAG)}
              s_or_b64 vcc, vcc, {sr(S_SAVE,2)}
              v_cmp_ne_u32 {sr(S_SAVE,2)}, {vr(H_F4+3)}, {vr(V_TAG)}
              s_or_b64 vcc, vcc, {sr(S_SAVE,2)}""")
    def kv_dma(lbl, s0, s1):
        a(f"s_mov_b32 {sr(S_T0)}, {s0}")
        a.label(lbl)
        a(f"""s_add_u32 {sr(S_T1)}, {sr(S_T0)}, {sr(S_HEAD)}
              s_and_b32 {sr(S_T1)}, {sr(S_T1)}, 63
              s_lshl_b32 {sr(S_T1)}, {sr(S_T1)}, 11
              s_add_u32 {sr(S_T1)}, {sr(S_T1)}, {WS_KV}
              s_lshl_b32 m0, {sr(S_T0)}, 11
              s_waitcnt vmcnt(40)""")
        for k in range(4):
            a(f"buffer_load_dwordx4 {vr(V_L16)}, {sr(S_WS,4)}, {sr(S_T1)} offen offset:{k*1024} sc1 lds")
        a(f"""s_add_u32 m0, m0, 4096
              s_add_u32 {sr(S_T1)}, {sr(S_T1)}, 4096""")
        for k in range(4):
            a(f"buffer_load_dwordx4 {vr(V_L16)}, {sr(S_WS,4)}, {sr(S_T1)} offen offset:{k*1024} sc1 lds")
        a(f"""s_add_u32 {sr(S_T0)}, {sr(S_T0)}, 4
              s_cmp_lt_u32 {sr(S_T0)}, {s1}
              s_cbranch_scc1 {lbl}""")
    def kv_spin(lbl, lo_only):
        a(f"s_mov_b32 {sr(S_SPIN)}, 0")
        a.label(lbl + "_loop")
        kv_mask()
        if lo_only:
            a(f"s_and_b32 {sr(S_SAVE)}, vcc_lo, {hex((1 << NSA) - 1)}\ns_cmp_eq_u32 {sr(S_SAVE)}, 0")
        else:
            a("s_cmp_eq_u64 vcc, 0")
        a(f"""s_cbranch_scc1 {lbl}_ok
              s_add_u32 {sr(S_SPIN)}, {sr(S_SPIN)}, 1
              s_cmp_ge_u32 {sr(S_SPIN)}, 100000
              s_cbranch_scc1 {lbl}_ok""")
        kv_sample()
        a(f"""s_waitcnt vmcnt(0)
              s_branch {lbl}_loop""")
        a.label(lbl + "_ok")
    C_SIG = opts.get("c_sig", 1)
    C_SMP = opts.get("c_smp", 9)
    C_CHK = opts.get("c_chk", 12)
    def gate_dots(c):
        if opts.get("nogate"): return
        for q in range(4):
            for r in range(4):
                a(f"v_dot2c_f32_bf16 {vr(H_GACC[r])}, {vr(H_GWR[c%2]+4*q+r)}, {vr(H_GX[c%2]+4*q+r)}")
    for c in range(16):
        a("s_barrier")
        if c > 0: a("s_waitcnt lgkmcnt(0)")
        for q in range(4):
            a(f"ds_read_b128 {vr(H_GX[c%2]+4*q,4)}, {vr(H_GA[q])} offset:{c*4096}")
            a(f"ds_read_b128 {vr(H_GWR[c%2]+4*q,4)}, {vr(H_Z)} offset:{L_GW + c*64 + q*16}")
        if c > 0: gate_dots(c - 1)
        if c == C_SIG:
            a(f"s_waitcnt vmcnt({5 if opts.get('tlb') else 0})")
            flag_store(S_T3)
            stamp(2)
        if c == C_SMP:
            kv_sample()
        if c == C_CHK:
            a("s_waitcnt vmcnt(0)")
            kv_mask()
            a(f"""s_and_b32 {sr(S_SAVE)}, vcc_lo, {hex((1 << NSA) - 1)}
                  s_cmp_eq_u32 {sr(S_SAVE)}, 0
                  s_cselect_b32 {sr(S_RDY)}, 1, 0""")
        if c in (C_CHK + 1, C_CHK + 2):
            h = c - C_CHK - 1
            a(f"""s_cmp_eq_u32 {sr(S_RDY)}, 0
                  s_cbranch_scc1 L_hskip{c}""")
            kv_dma(f"L_kvdA{h}", 8 * h, min(8 * h + 8, NSA))
            a.label(f"L_hskip{c}")
    a("s_waitcnt lgkmcnt(0)")
    gate_dots(15)
    stamp(3)
    a(f"""s_cmp_lg_u32 {sr(S_RDY)}, 0
          s_cbranch_scc1 L_hrdy""")
    kv_spin("L_skvA", True)
    kv_dma("L_kvdA2", 0, NSA)
    a.label("L_hrdy")
    kv_sample()
    a(f"""s_mov_b32 {sr(S_T0)}, {hex(f2u(LOG2E))}
          v_add_f32 {vr(H_GACC[0])}, {vr(H_GACC[0])}, {vr(H_GACC[1])}
          v_add_f32 {vr(H_GACC[2])}, {vr(H_GACC[2])}, {vr(H_GACC[3])}
          v_add_f32 {vr(H_GACC[0])}, {vr(H_GACC[0])}, {vr(H_GACC[2])}
          v_mul_f32 {vr(H_GACC[0])}, {sr(S_T0)}, {vr(H_GACC[0])}
          v_exp_f32 {vr(H_GACC[0])}, -{vr(H_GACC[0])}
          v_add_u32 {vr(V_T0)}, {L_G}, {vr(V_L4)}
          v_add_f32 {vr(H_GACC[0])}, 1.0, {vr(H_GACC[0])}
          v_rcp_f32 {vr(H_GACC[0])}, {vr(H_GACC[0])}
          s_waitcnt vmcnt(1)""")
    stamp(4)
    a(f"""s_barrier
          ds_write_b32 {vr(V_T0)}, {vr(H_GACC[0])}
          s_waitcnt vmcnt(0)""")
    kv_spin("L_skvB", False)
    stamp(5)
    kv_dma("L_kvdB", NSA, 64)
    a(f"""s_cmp_lg_u32 s2, 0
          s_cbranch_scc1 L_noep
          s_mov_b32 {sr(S_T0)}, {WS_E}""")
    flag_store(S_T0)
    a.label("L_noep")
    a(f"""v_add_u32 {vr(V_T0)}, {L_HI}, {vr(V_L4)}
          v_lshrrev_b32 {vr(V_T2)}, 4, {vr(V_LANE)}
          v_and_b32 {vr(V_T3)}, 0x3c, {vr(V_L4)}
          v_lshl_add_u32 {vr(V_T1)}, {vr(V_T2)}, 12, {vr(V_T3)}
          v_add_u32 {vr(V_T1)}, {L_HI + 1024}, {vr(V_T1)}
          v_lshl_add_u32 {vr(V_T2)}, {vr(V_T2)}, 11, {vr(V_T3)}
          s_waitcnt vmcnt(0) lgkmcnt(0)""")
    stamp(11)
    a("s_barrier")
    P0, P1 = 16, 40
    a(f"""s_lshl_b32 {sr(S_T0)}, {sr(S_HG)}, 13
          s_add_u32 {sr(S_T0)}, {sr(S_T0)}, {WS_ACC}""")
    for hh in range(4):
        for i in range(4):
            a(f"ds_read_b32 {vr(P0+4*hh+i)}, {vr(V_T0)} offset:{hh*4096 + i*256}")
            a(f"ds_read_b32 {vr(P1+4*hh+i)}, {vr(V_T0)} offset:{hh*4096 + 2048 + i*256}")
        if hh == 3:
            a(f"ds_read_b32 {vr(P0+16)}, {vr(V_T1)}")
            a(f"ds_read_b32 {vr(P1+16)}, {vr(V_T1)} offset:2048")
        a("s_waitcnt lgkmcnt(0)")
        for i in range(4 if hh < 3 else 5):
            a(f"v_add_f32 {vr(P0+4*hh+i)}, {vr(P0+4*hh+i)}, {vr(P1+4*hh+i)}")
        if hh == 2: a(f"s_add_u32 {sr(S_T1)}, {sr(S_T0)}, 4096")
        for i in range(4):
            a(f"buffer_atomic_add_f32 {vr(P0+4*hh+i)}, {vr(V_L4)}, {sr(S_WS,4)}, {sr(S_T0 if hh < 2 else S_T1)} offen offset:{(hh%2)*2048 + i*256} sc1")
    a(f"""buffer_atomic_add_f32 {vr(P0+16)}, {vr(V_T2)}, {sr(S_WS,4)}, {sr(S_T0)} offen offset:1024 sc1
          s_lshl_b32 {sr(S_T3)}, {sr(S_HG)}, 7
          s_add_u32 {sr(S_T3)}, {sr(S_T3)}, {WS_FA}
          s_lshl_b32 {sr(S_T0)}, {sr(S_QB)}, 2
          s_add_u32 {sr(S_T0)}, {sr(S_T0)}, {sr(S_T3)}
          s_waitcnt vmcnt(0)""")
    flag_store(S_T0)
    stamp(12)
    a(f"v_mov_b32 {vr(V_FLG)}, 0\nv_not_b32 {vr(V_FLG)}, {vr(V_TAG)}\ns_sleep 32")
    flag_spin("L_sfa", S_T3, 32)
    stamp(13)
    a("s_barrier")
    def wodma(lbl, srdw, r0, nrows, dst):
        a(f"""s_lshl_b32 {sr(S_T0)}, {sr(S_NS)}, 7
              s_add_u32 {sr(S_T0)}, {sr(S_T0)}, {r0*1024}
              s_mov_b32 m0, {dst}""")
        a.label(lbl)
        a("s_waitcnt vmcnt(40)")
        for i in range(4):
            a(f"buffer_load_dwordx4 {vr(V_WOFF)}, {sr(srdw,4)}, {sr(S_T0)} offen lds")
            a(f"""s_add_u32 m0, m0, 1024
                  s_add_u32 {sr(S_T0)}, {sr(S_T0)}, 8192""")
        a(f"""s_cmp_lt_u32 m0, {dst + nrows*128}
              s_cbranch_scc1 {lbl}""")
    wodma("L_woa", S_WOA, 0, 512, 0)
    wodma("L_wob0", S_WOB, 0, 256, L_HI)
    a(f"""s_lshl_b32 {sr(S_T3)}, {sr(S_QB)}, 7
          s_lshl_b32 {sr(S_T0)}, {sr(S_HG)}, 2
          s_add_u32 {sr(S_T3)}, {sr(S_T3)}, {sr(S_T0)}
          s_add_u32 {sr(S_T3)}, {sr(S_T3)}, {WS_FOA}
          s_waitcnt vmcnt(0)""")
    stamp(17)
    a("s_barrier")
    flag_store(S_T3)
    wodma("L_wob1", S_WOB, 256, 256, 65536)
    a("s_waitcnt vmcnt(0)")
    if ts:
        stamp(18)
        ts_out()
    a("""s_barrier
         s_endpgm""")
    a.label("L_codeend")

    head = open("cdna_kernels/" + NAME + ".s.ref").read().split("\n")
    hdr = [l for l in head if l.startswith(";") and "@launch" not in l and "Override" not in l and "grid=ceil" not in l]
    out = "\n".join(hdr) + f"\n; @launch grid=(256,1,1) block=(576,1,1) lds={LDS_SIZE}\n"
    out += f""".amdgcn_target "amdgcn-amd-amdhsa--gfx950"
.text
.globl {NAME}_kernel
.p2align 8
.type {NAME}_kernel,@function
"""
    out += a.text()
    out += f""".section .rodata,"a"
.p2align 6
.amdhsa_kernel {NAME}_kernel
  .amdhsa_next_free_vgpr {NVGPR}
  .amdhsa_next_free_sgpr 102
  .amdhsa_accum_offset {NVGPR}
  .amdhsa_group_segment_fixed_size 0
  .amdhsa_kernarg_size 96
  .amdhsa_user_sgpr_count 2
  .amdhsa_user_sgpr_kernarg_segment_ptr 1
  .amdhsa_system_sgpr_workgroup_id_x 1
.end_amdhsa_kernel
"""
    return out

if __name__ == "__main__":
    opts = {}
    outp = "cdna_kernels/" + NAME + ".s"
    for arg in sys.argv[1:]:
        if arg.startswith("-o"):
            outp = arg[2:]
        elif "=" in arg:
            k, v = arg.split("=")
            opts[k] = int(v)
        else:
            opts[arg] = True
    open(outp, "w").write(gen(opts))
    print("wrote", outp)
```

```python
import sys, math, struct

NAME = "gated_mix__linear_attn_block__grouped_kv_mqa__prompt"

def f2u(x):
    return struct.unpack("<I", struct.pack("<f", x))[0]

class Asm:
    def __init__(self):
        self.lines = []
        self.vm = []
    def __call__(self, s):
        for l in s.split("\n"):
            l = l.strip()
            if l:
                self.lines.append("    " + l)
    def label(self, l):
        self.lines.append(l + ":")
    def vmem(self, s, tag):
        self(s)
        self.vm.append(tag)
    def vm_n(self, tag):
        idx = max(i for i, t in enumerate(self.vm) if t == tag)
        return len(self.vm) - 1 - idx
    def drop_to(self, n):
        self.vm = self.vm[len(self.vm) - n:] if n else []
    def wait_vm(self, tag, extra=""):
        n = 0 if tag is None else self.vm_n(tag)
        self.drop_to(n)
        assert n <= 63
        self(f"s_waitcnt vmcnt({n}) {extra}".strip())
    def text(self):
        return "\n".join(self.lines) + "\n"

def vr(a, n=1):
    return f"v{a}" if n == 1 else f"v[{a}:{a+n-1}]"
def sr(a, n=1):
    return f"s{a}" if n == 1 else f"s[{a}:{a+n-1}]"

WS_E = 0x000000
WS_FKV = 0x000400
WS_FA = 0x001000
WS_FOA = 0x004000
WS_FOB = 0x00C000
WS_KV = 0x020000
WS_ACC = 0x040000
WS_G = 0x014000
WS_OA = 0x200000
WS_OB = 0x208000
WS_DBG1 = 0x600000
WS_DBG2 = 0x800000
WS_TS = 0xA00000
WS_SIZE = 0x1000000
L_MISC = 0
L_X = 32768
L_RING = 98304
L_HI = 131072
L_G = L_HI + 28672
L_GW = 31 * 1024
NSA = 8
LDS_SIZE = 163840
LOG2E = 1.4426950408889634
QSCALE = 0.25 * LOG2E
NVGPR = 168

S_TAG, S_QO, S_NS, S_RDY = 4, 5, 6, 7
S_X, S_W, S_WJ, S_FREE, S_FREE2, S_WOA, S_WOB, S_OUT, S_DBG, S_WS = 8, 12, 16, 20, 24, 28, 32, 36, 40, 44
S_WAVE, S_QB, S_HG, S_RT, S_HH = 48, 49, 50, 51, 52
S_T0, S_T1, S_T2, S_T3 = 53, 54, 55, 56
S_WOFF, S_WSTR8, S_WSTR32, S_M0W = 57, 58, 59, 60
S_SEG, S_SPIN, S_HEAD = 61, 62, 63
S_VMASK, S_RT32, S_RO32, S_SAVE = 64, 66, 67, 68
S_LOG2E, S_QS, S_EPS, S_ONES = 70, 72, 20, 21
S_RGJ, S_ROT = 22, 23
S_XMASK = 24
S_TS = 74
S_KA = 76

def gen(opts):
    ts = opts.get("ts", False)
    dbg = opts.get("dbg", False)
    a = Asm()
    V_STAMP = NVGPR - 1

    def stamp(i):
        if not ts: return
        a(f"""s_memrealtime {sr(S_TS,2)}
              s_memtime s[100:101]
              s_waitcnt lgkmcnt(0)
              v_writelane_b32 v{V_STAMP}, {sr(S_TS)}, {i}
              v_writelane_b32 v{V_STAMP}, s100, {32+i}""")

    V_LANE = 1
    V_T0, V_T1, V_T2, V_T3 = 2, 3, 4, 5
    V_XOFF, V_WOFF = 6, 7
    V_XA0, V_XA1, V_WA = 8, 9, 10
    V_L16, V_G, V_IDX, V_KA, V_VA = 11, 12, 13, 14, 15
    V_QF, V_PQ = 16, 20
    V_ACCQ, V_ACCKV = 24, 40
    V_FB = [56, 80]
    V_O, V_C, V_KF = 104, 120, 136
    V_VF = [140, 148]
    V_L4, V_FLG, V_TAG, V_WOA0, V_WOA1 = 156, 157, 158, 159, 160
    V_PK = 162
    V_S = [24, 40]
    V_AC, V_OA = 56, 72
    V_FA, V_FBB, V_WO = 56, 120, 88
    V_OUT = [24, 40]

    def srd(s, ka, size):
        a(f"""s_mov_b32 {sr(s)}, {sr(S_KA+ka)}
              s_mov_b32 {sr(s+1)}, {sr(S_KA+ka+1)}
              s_mov_b32 {sr(s+2)}, {hex(size)}
              s_mov_b32 {sr(s+3)}, 0x20000""")
    def flag_store(soff):
        a(f"""s_mov_b64 exec, 1
              buffer_store_dword {vr(V_TAG)}, {vr(V_L4)}, {sr(S_WS,4)}, {sr(soff)} offen sc1
              s_mov_b64 exec, -1""")
    def flag_load(soff, n, tag=None):
        a(f"s_mov_b64 exec, {hex((1 << n) - 1)}" if n <= 4 else f"s_mov_b32 exec_lo, {hex((1 << n) - 1)}\ns_mov_b32 exec_hi, 0")
        s = f"buffer_load_dword {vr(V_FLG)}, {vr(V_L4)}, {sr(S_WS,4)}, {sr(soff)} offen sc1"
        if tag: a.vmem(s, tag)
        else: a(s)
        a("s_mov_b64 exec, -1")
    def flag_check(n):
        a(f"""v_cmp_ne_u32 vcc, {vr(V_FLG)}, {vr(V_TAG)}
              s_and_b32 {sr(S_SAVE)}, vcc_lo, {hex((1 << n) - 1)}
              s_cmp_eq_u32 {sr(S_SAVE)}, 0""")
    def flag_spin(lbl, soff, n):
        a(f"s_mov_b32 {sr(S_SPIN)}, 0")
        a.label(lbl + "_loop")
        flag_check(n)
        a(f"""s_cbranch_scc1 {lbl}_ok
              s_add_u32 {sr(S_SPIN)}, {sr(S_SPIN)}, 1
              s_cmp_ge_u32 {sr(S_SPIN)}, 100000
              s_cbranch_scc1 {lbl}_ok""")
        flag_load(soff, n)
        a(f"""s_waitcnt vmcnt(0)
              s_branch {lbl}_loop""")
        a.label(lbl + "_ok")
    def tag_setup():
        a(f"""s_waitcnt lgkmcnt(0)
              s_mul_i32 {sr(S_TAG)}, {sr(S_TAG)}, 0x9e3779b1
              s_add_u32 {sr(S_TAG)}, {sr(S_TAG)}, 0x7f4a7c15
              v_mov_b32 {vr(V_TAG)}, {sr(S_TAG)}""")

    a.label(f"{NAME}_kernel")
    a(f"""s_cmp_ge_u32 s2, 256
          s_cbranch_scc1 L_end
          s_load_dwordx16 {sr(S_KA,16)}, s[0:1], 0
          s_load_dwordx8 {sr(S_KA+16,8)}, s[0:1], 64
          v_and_b32 {vr(V_LANE)}, 63, v0
          v_lshrrev_b32 {vr(V_T0)}, 6, v0
          s_and_b32 {sr(S_T0)}, s2, 1
          v_readfirstlane_b32 {sr(S_WAVE)}, {vr(V_T0)}
          s_lshl_b32 {sr(S_T0)}, {sr(S_T0)}, 2
          s_bfe_u32 {sr(S_T1)}, s2, 0x20003
          s_add_u32 {sr(S_HG)}, {sr(S_T0)}, {sr(S_T1)}
          s_bfe_u32 {sr(S_T1)}, s2, 0x20001
          s_lshl_b32 {sr(S_T1)}, {sr(S_T1)}, 3
          s_lshr_b32 {sr(S_QB)}, s2, 5
          s_add_u32 {sr(S_QB)}, {sr(S_QB)}, {sr(S_T1)}
          s_lshr_b32 {sr(S_RGJ)}, {sr(S_HG)}, 1""")
    if opts.get("dbl"): a("s_memrealtime s[100:101]")
    stamp(0)
    a(f"""v_lshrrev_b32 {vr(V_T0)}, 4, {vr(V_LANE)}
          v_xor_b32 {vr(V_T0)}, {vr(V_T0)}, {vr(V_LANE)}
          v_and_b32 {vr(V_T0)}, 3, {vr(V_T0)}
          v_lshlrev_b32 {vr(V_T0)}, 4, {vr(V_T0)}
          v_lshrrev_b32 {vr(V_T1)}, 2, {vr(V_LANE)}
          v_lshl_add_u32 {vr(V_XOFF)}, {vr(V_T1)}, 10, {vr(V_T0)}
          v_lshlrev_b32 {vr(V_L16)}, 4, {vr(V_LANE)}
          v_lshlrev_b32 {vr(V_L4)}, 2, {vr(V_LANE)}
          s_mov_b32 {sr(S_X+2)}, 0x200000
          s_mov_b32 {sr(S_X+3)}, 0x20000
          s_lshl_b32 {sr(S_T0)}, {sr(S_QB)}, 16
          s_cmp_eq_u32 {sr(S_WAVE)}, 8
          s_cbranch_scc1 L_helper
          s_cmp_eq_u32 {sr(S_WAVE)}, 9
          s_cbranch_scc1 L_loader
          s_and_b32 {sr(S_RT)}, {sr(S_WAVE)}, 1
          s_lshr_b32 {sr(S_HH)}, {sr(S_WAVE)}, 1""")
    S_XOFF, S_XM0 = S_SEG, S_SPIN
    a(f"""s_and_b32 {sr(S_T1)}, {sr(S_WAVE)}, 3
          s_lshr_b32 {sr(S_T2)}, {sr(S_WAVE)}, 2
          s_lshl_b32 {sr(S_T3)}, {sr(S_T1)}, 14
          s_add_u32 {sr(S_XOFF)}, {sr(S_T0)}, {sr(S_T3)}
          s_lshl_b32 {sr(S_T3)}, {sr(S_T2)}, 7
          s_add_u32 {sr(S_XOFF)}, {sr(S_XOFF)}, {sr(S_T3)}
          s_lshl_b32 {sr(S_XM0)}, {sr(S_T1)}, 10
          s_lshl_b32 {sr(S_T3)}, {sr(S_T2)}, 13
          s_add_u32 {sr(S_XM0)}, {sr(S_XM0)}, {sr(S_T3)}
          s_cmp_eq_u32 {sr(S_T1)}, {sr(S_RGJ)}
          s_cselect_b64 {sr(S_XMASK,2)}, 1, -1
          s_waitcnt lgkmcnt(0)
          s_mov_b32 {sr(S_X)}, {sr(S_KA+0)}
          s_mov_b32 {sr(S_X+1)}, {sr(S_KA+1)}
          s_load_dword {sr(S_TAG)}, {sr(S_KA+22,2)}, {WS_E}""")
    def xdma(r):
        a(f"s_add_u32 m0, {sr(S_XM0)}, {L_X + r*16384 - r*256}")
        a(f"s_mov_b64 exec, {sr(S_XMASK,2)}")
        a.vmem(f"buffer_load_dwordx4 {vr(V_XOFF)}, {sr(S_X,4)}, {sr(S_XOFF)} offen offset:{r*256} lds", f"x{r}")
        a(f"s_add_u32 m0, {sr(S_XM0)}, {L_X + r*16384 + 4096 - r*256 - 64}")
        a("s_nop 0")
        a.vmem(f"buffer_load_dwordx4 {vr(V_XOFF)}, {sr(S_X,4)}, {sr(S_XOFF)} offen offset:{r*256 + 64} lds", f"x{r}")
        a("s_mov_b64 exec, -1")
    xdma(0)
    srd(S_WS, 22, WS_SIZE)
    srd(S_OUT, 18, 0x200000)
    if ts: srd(S_DBG, 20, 256)
    def omap():
        a(f"""s_and_b32 {sr(S_QO)}, s2, 7
              s_lshl_b32 {sr(S_QO)}, {sr(S_QO)}, 2
              s_bfe_u32 {sr(S_T0)}, s2, 0x20003
              s_add_u32 {sr(S_QO)}, {sr(S_QO)}, {sr(S_T0)}
              s_lshr_b32 {sr(S_NS)}, s2, 5""")
    omap()
    a(f"""s_lshl_b32 {sr(S_HEAD)}, {sr(S_HG)}, 2
          s_add_u32 {sr(S_HEAD)}, {sr(S_HEAD)}, {sr(S_HH)}
          s_lshl_b32 {sr(S_RT32)}, {sr(S_QB)}, 1
          s_add_u32 {sr(S_RT32)}, {sr(S_RT32)}, {sr(S_RT)}
          s_lshl_b32 {sr(S_RO32)}, {sr(S_QO)}, 1
          s_add_u32 {sr(S_RO32)}, {sr(S_RO32)}, {sr(S_RT)}
          s_mov_b32 {sr(S_VMASK)}, 0xffff
          s_mov_b32 {sr(S_VMASK+1)}, 0xffff
          s_mov_b32 {sr(S_LOG2E)}, {hex(f2u(LOG2E))}
          s_mov_b32 {sr(S_LOG2E+1)}, {hex(f2u(LOG2E))}
          s_mov_b32 {sr(S_EPS)}, {hex(f2u(1e-6))}
          s_mov_b32 {sr(S_QS)}, {hex(f2u(QSCALE))}
          s_mov_b32 {sr(S_QS+1)}, {hex(f2u(QSCALE))}
          s_mov_b32 {sr(S_ONES)}, 0x3f803f80
          v_and_b32 {vr(V_T0)}, 31, {vr(V_LANE)}
          v_lshrrev_b32 {vr(V_T1)}, 5, {vr(V_LANE)}
          v_bfe_u32 {vr(V_T2)}, {vr(V_LANE)}, 2, 2
          v_xor_b32 {vr(V_T2)}, {vr(V_T2)}, {vr(V_T1)}
          v_lshlrev_b32 {vr(V_T2)}, 4, {vr(V_T2)}
          v_lshl_add_u32 {vr(V_T3)}, {vr(V_T0)}, 6, {vr(V_T2)}
          s_lshl_b32 {sr(S_T0)}, {sr(S_RT)}, 11
          s_add_u32 {sr(S_T0)}, {sr(S_T0)}, {L_X}
          v_add_u32 {vr(V_XA0)}, {sr(S_T0)}, {vr(V_T3)}
          v_xor_b32 {vr(V_XA1)}, 32, {vr(V_XA0)}
          v_bfe_u32 {vr(V_T0)}, {vr(V_LANE)}, 4, 1
          v_bfe_u32 {vr(V_T2)}, {vr(V_LANE)}, 3, 2
          v_xor_b32 {vr(V_T2)}, {sr(S_HH)}, {vr(V_T2)}
          v_lshlrev_b32 {vr(V_T2)}, 5, {vr(V_T2)}
          v_lshl_add_u32 {vr(V_T2)}, {vr(V_T0)}, 12, {vr(V_T2)}
          v_lshl_add_u32 {vr(V_T2)}, {vr(V_T1)}, 10, {vr(V_T2)}
          v_bfe_u32 {vr(V_T0)}, {vr(V_LANE)}, 2, 2
          v_lshl_add_u32 {vr(V_T2)}, {vr(V_T0)}, 7, {vr(V_T2)}
          v_and_b32 {vr(V_T0)}, 3, {vr(V_LANE)}
          v_lshl_add_u32 {vr(V_T2)}, {vr(V_T0)}, 3, {vr(V_T2)}
          v_add_u32 {vr(V_WA)}, {L_RING}, {vr(V_T2)}""")
    xdma(1)
    for i in range(8):
        a(f"v_mov_b32 {vr(V_ACCQ+i)}, 0")
        a(f"v_mov_b32 {vr(V_ACCQ+8+i)}, {sr(S_EPS)}")
    a(f"""v_mov_b32 {vr(V_T0)}, {sr(S_EPS)}
          v_cndmask_b32 {vr(V_T0)}, 0, {vr(V_T0)}, {sr(S_VMASK,2)}""")
    for i in range(16):
        a(f"v_mov_b32 {vr(V_ACCKV+i)}, {vr(V_T0)}")
    for i in range(16):
        a(f"v_mov_b32 {vr(V_O+i)}, 0")
        a(f"v_mov_b32 {vr(V_VF[0]+i)}, {sr(S_ONES)}")
    a(f"""v_mov_b32 {vr(V_IDX)}, 0xdddd
          v_mov_b32 {vr(V_KA)}, {vr(V_L16)}
          v_and_b32 {vr(V_T3)}, 15, {vr(V_LANE)}
          v_lshlrev_b32 {vr(V_T3)}, 4, {vr(V_T3)}
          v_lshl_add_u32 {vr(V_VA)}, {vr(V_T1)}, 8, {vr(V_T3)}""")
    tag_setup()
    stamp(1)

    def reads(c):
        fb = V_FB[c % 2]
        slot = c % 4
        r = [f"ds_read_b128 {vr(fb,4)}, {vr(V_XA0)} offset:{c*4096}"]
        for T in range(2):
            for u in range(2):
                r.append(f"ds_read_b64_tr_b16 {vr(fb+8+T*8+2*u,2)}, {vr(V_WA)} offset:{slot*16384 + T*8192 + u*512}")
        r.append(f"ds_read_b128 {vr(fb+4,4)}, {vr(V_XA1)} offset:{c*4096}")
        for T in range(2):
            for u in range(2):
                r.append(f"ds_read_b64_tr_b16 {vr(fb+8+T*8+4+2*u,2)}, {vr(V_WA)} offset:{slot*16384 + T*8192 + 2048 + u*512}")
        return r
    def mfmas(c):
        fb = V_FB[c % 2]
        r = []
        for p in range(2):
            r.append(f"v_mfma_f32_32x32x16_bf16 {vr(V_ACCKV,16)}, {vr(fb+4*p,4)}, {vr(fb+16+4*p,4)}, {vr(V_ACCKV,16)}")
            r.append(f"v_mfma_f32_32x32x16_bf16 {vr(V_ACCQ,16)}, {vr(fb+8+4*p,4)}, {vr(fb+4*p,4)}, {vr(V_ACCQ,16)}")
        return r
    for c in range(16):
        if c in (0, 4):
            a.wait_vm(f"x{c//4}", "lgkmcnt(0)")
        else:
            a("s_waitcnt lgkmcnt(0)")
        a("s_barrier")
        if c == 0:
            for r in reads(c): a(r)
        else:
            R_, M_ = reads(c), mfmas(c - 1)
            a(M_[0])
            for r in R_[:4]: a(r)
            a(M_[1])
            for r in R_[4:7]: a(r)
            a(M_[2])
            for r in R_[7:]: a(r)
            a(M_[3])
    a("s_waitcnt lgkmcnt(0)")
    for m in mfmas(15): a(m)
    stamp(2)
    E = V_FB[0]
    def phi(src, n, tmp):
        for i in range(0, n, 2):
            a(f"v_pk_mul_f32 {vr(tmp+i,2)}, {sr(S_LOG2E,2)}, {vr(src+i,2)}")
        for i in range(n):
            a(f"v_exp_f32 {vr(tmp+i)}, {vr(tmp+i)} clamp")
        for i in range(n):
            a(f"v_max_f32 {vr(src+i)}, {sr(S_EPS)}, {vr(src+i)}")
        for i in range(0, n, 2):
            a(f"v_pk_add_f32 {vr(src+i,2)}, {vr(src+i,2)}, {vr(tmp+i,2)}")
    a(f"""s_lshl_b32 {sr(S_T0)}, {sr(S_WAVE)}, 11
          s_add_u32 {sr(S_T0)}, {sr(S_T0)}, {L_HI}
          v_lshrrev_b32 {vr(V_T0)}, 4, {vr(V_LANE)}
          v_lshlrev_b32 {vr(V_T0)}, 4, {vr(V_T0)}
          v_add_u32 {vr(V_XA1)}, {sr(S_T0)}, {vr(V_T0)}
          v_and_b32 {vr(V_T0)}, 15, {vr(V_LANE)}
          v_lshl_add_u32 {vr(V_XA0)}, {vr(V_T0)}, 6, {vr(V_XA1)}
          s_nop 4""")
    for i in range(8):
        a(f"v_permlane16_swap_b32 {vr(V_ACCKV+i)}, {vr(V_ACCKV+8+i)}")
    PKF, VFR, DKV, DZ = E + 8, E + 12, E + 16, E + 20
    a("s_nop 0")
    phi(V_ACCKV, 8, E)
    for i in range(4):
        a(f"v_cvt_pk_bf16_f32 {vr(VFR+i)}, {vr(V_ACCKV+8+2*i)}, {vr(V_ACCKV+8+2*i+1)}")
    for i in range(4):
        a(f"v_cvt_pk_bf16_f32 {vr(PKF+i)}, {vr(V_ACCKV+2*i)}, {vr(V_ACCKV+2*i+1)}")
    for i in range(0, 8, 2):
        a(f"v_pk_mul_f32 {vr(V_ACCQ+i,2)}, {sr(S_QS,2)}, {vr(V_ACCQ+i,2)}")
    a(f"v_mfma_f32_16x16x32_bf16 {vr(DKV,4)}, {vr(PKF,4)}, {vr(VFR,4)}, 0")
    a(f"v_mfma_f32_16x16x32_bf16 {vr(DZ,4)}, {vr(PKF,4)}, {vr(V_VF[0],4)}, 0")
    for i in range(4):
        a(f"v_cvt_pk_bf16_f32 {vr(V_QF+i)}, {vr(V_ACCQ+2*i)}, {vr(V_ACCQ+2*i+1)}")
    phi(V_ACCQ + 8, 8, E)
    for i in range(4):
        a(f"v_cvt_pk_bf16_f32 {vr(V_PQ+i)}, {vr(V_ACCQ+8+2*i)}, {vr(V_ACCQ+8+2*i+1)}")
    a(f"""ds_write_b128 {vr(V_XA0)}, {vr(DKV,4)}
          ds_write_b128 {vr(V_XA1)}, {vr(DZ,4)} offset:1024
          s_waitcnt lgkmcnt(0)""")
    stamp(3)
    a("s_barrier")
    stamp(4)
    a(f"""ds_read_b128 {vr(V_KF,4)}, {vr(V_KA)}
          s_mov_b64 exec, {sr(S_VMASK,2)}
          ds_read_b128 {vr(V_VF[0],4)}, {vr(V_VA)} offset:1024
          ds_read_b128 {vr(V_VF[0]+4,4)}, {vr(V_VA)} offset:1536
          ds_read_b128 {vr(V_VF[1],4)}, {vr(V_VA)} offset:{2048+1024}
          ds_read_b128 {vr(V_VF[1]+4,4)}, {vr(V_VA)} offset:{2048+1536}
          s_mov_b64 exec, -1
          s_waitcnt lgkmcnt(4)
          v_mfma_f32_32x32x16_bf16 {vr(V_S[0],16)}, {vr(V_KF,4)}, {vr(V_QF,4)}, 0
          ds_read_b128 {vr(V_KF,4)}, {vr(V_KA)} offset:2048""")
    if dbg:
        a(f"""s_lshl_b32 {sr(S_T0)}, {sr(S_RT32)}, 5
              s_add_u32 {sr(S_T0)}, {sr(S_T0)}, {sr(S_HEAD)}
              s_lshl_b32 {sr(S_T0)}, {sr(S_T0)}, 10
              s_add_u32 {sr(S_T1)}, {sr(S_T0)}, {WS_DBG1}
              buffer_store_dwordx4 {vr(V_QF,4)}, {vr(V_L16)}, {sr(S_WS,4)}, {sr(S_T1)} offen
              s_add_u32 {sr(S_T1)}, {sr(S_T0)}, {WS_DBG2}
              buffer_store_dwordx4 {vr(V_PQ,4)}, {vr(V_L16)}, {sr(S_WS,4)}, {sr(S_T1)} offen""")
    S0 = V_S[0]
    a(f"""s_mov_b32 {sr(S_SEG)}, 0
          s_nop 9
          v_max3_f32 {vr(V_T0)}, {vr(S0)}, {vr(S0+1)}, {vr(S0+2)}
          v_max3_f32 {vr(V_T1)}, {vr(S0+3)}, {vr(S0+4)}, {vr(S0+5)}
          v_max3_f32 {vr(V_T2)}, {vr(S0+6)}, {vr(S0+7)}, {vr(S0+8)}
          v_max3_f32 {vr(V_T3)}, {vr(S0+9)}, {vr(S0+10)}, {vr(S0+11)}
          v_max3_f32 {vr(V_T0)}, {vr(V_T0)}, {vr(S0+12)}, {vr(S0+13)}
          v_max3_f32 {vr(V_T1)}, {vr(V_T1)}, {vr(S0+14)}, {vr(S0+15)}
          v_max3_f32 {vr(V_T0)}, {vr(V_T0)}, {vr(V_T1)}, {vr(V_T2)}
          v_max_f32 {vr(V_T0)}, {vr(V_T0)}, {vr(V_T3)}
          v_mov_b32 {vr(V_T1)}, {vr(V_T0)}
          s_nop 1
          v_permlane32_swap_b32 {vr(V_T0)}, {vr(V_T1)}
          s_nop 1
          v_max_f32 {vr(V_T0)}, {vr(V_T0)}, {vr(V_T1)}
          v_sub_f32 {vr(V_T2)}, 0, {vr(V_T0)}
          v_sub_f32 {vr(V_T3)}, 0, {vr(V_T0)}""")
    for i in range(0, 16, 2):
        a(f"v_pk_add_f32 {vr(S0+i,2)}, {vr(S0+i,2)}, {vr(V_T2,2)}")
    for i in range(0, 16, 2):
        a(f"v_pk_mov_b32 {vr(V_C+i,2)}, {vr(V_T2,2)}, {vr(V_T2,2)} op_sel:[0,1]")
    a(f"""v_exp_f32 {vr(S0)}, {vr(S0)}
          v_exp_f32 {vr(S0+1)}, {vr(S0+1)}
          s_waitcnt lgkmcnt(0)""")
    stamp(5)

    def segment(extra=None):
        last = extra is not None
        NT = 10 if last else 8
        ramp = {0: 3, 6: 2, 8: 1, 9: 0} if last else {0: 3, 4: 2, 6: 1, 7: 0}
        for t in range(NT):
            cur, nxt = V_S[t % 2], V_S[(t + 1) % 2]
            vf = V_VF[t % 2]
            ex = lambda r: a(f"v_exp_f32 {vr(r)}, {vr(r)}")
            if t == 2 and not last: a.label("L_att2")
            if t in ramp: a(f"s_setprio {ramp[t]}")
            for i in (2, 3, 4, 5): ex(cur + i)
            if t < 9:
                a("s_waitcnt lgkmcnt(2)")
                a(f"v_mfma_f32_32x32x16_bf16 {vr(nxt,16)}, {vr(V_KF,4)}, {vr(V_QF,4)}, {vr(V_C,16)}")
            else:
                a("s_waitcnt lgkmcnt(0)")
            if t < 8:
                a(f"ds_read_b128 {vr(V_KF,4)}, {vr(V_KA)} offset:{t*2048}")
                if extra: extra(t)
            elif t == 8:
                a("s_nop 0")
            for i in (6, 7, 8, 9, 10): ex(cur + i)
            a(f"v_smfmac_f32_32x32x32_bf16 {vr(V_O,16)}, {vr(vf,4)}, {vr(cur,8)}, {vr(V_IDX)}")
            for i in (11, 12, 13, 14, 15): ex(cur + i)
            if t < 9:
                ex(nxt); ex(nxt + 1)
            else:
                a("s_nop 1")
            a(f"v_smfmac_f32_32x32x32_bf16 {vr(V_O,16)}, {vr(vf+4,4)}, {vr(cur+8,8)}, {vr(V_IDX)}")
            if t < 8:
                a(f"""s_mov_b64 exec, {sr(S_VMASK,2)}
                      ds_read_b128 {vr(vf,4)}, {vr(V_VA)} offset:{t*2048+1024}
                      ds_read_b128 {vr(vf+4,4)}, {vr(V_VA)} offset:{t*2048+1536}
                      s_mov_b64 exec, -1""")
    a("""s_setprio 3
         s_branch L_att2""")
    a.lines.append("    .p2align 6")
    a.label("L_att")
    segment()
    a(f"""v_add_u32 {vr(V_KA)}, 0x4000, {vr(V_KA)}
          v_add_u32 {vr(V_VA)}, 0x4000, {vr(V_VA)}
          s_add_u32 {sr(S_SEG)}, {sr(S_SEG)}, 1
          s_cmp_eq_u32 {sr(S_SEG)}, 2
          s_cbranch_scc1 L_att""")
    for h in (1, 3, 4, 5, 6):
        a(f"""s_cmp_eq_u32 {sr(S_SEG)}, {h}
              s_cbranch_scc1 L_hook{h}""")
    a("s_branch L_hook7")

    def ooff(dst, base):
        a(f"""s_lshl_b32 {sr(dst)}, {sr(S_RT32)}, 6
              s_add_u32 {sr(dst)}, {sr(dst)}, {sr(S_HEAD)}
              s_lshl_b32 {sr(dst)}, {sr(dst)}, 10
              s_add_u32 {sr(dst)}, {sr(dst)}, {base}""")
    def osrc(base):
        a(f"""s_lshl_b32 {sr(S_T0)}, {sr(S_RO32)}, 3
              s_add_u32 {sr(S_T0)}, {sr(S_T0)}, {sr(S_HH)}
              s_lshl_b32 {sr(S_T0)}, {sr(S_T0)}, 13
              s_add_u32 {sr(S_T0)}, {sr(S_T0)}, {base}
              s_add_u32 {sr(S_T1)}, {sr(S_T0)}, 4096""")
    def oload(i, dst, tag):
        a.vmem(f"buffer_load_dwordx4 {vr(dst+4*i,4)}, {vr(V_L16)}, {sr(S_WS,4)}, {sr(S_T0 if i < 4 else S_T1)} offen offset:{(i%4)*1024} sc1", f"{tag}{i}")
    def my_oflag(dst, base):
        a(f"""s_lshl_b32 {sr(dst)}, {sr(S_RT32)}, 2
              s_lshr_b32 {sr(S_T2)}, {sr(S_HEAD)}, 3
              s_add_u32 {sr(dst)}, {sr(dst)}, {sr(S_T2)}
              s_lshl_b32 {sr(dst)}, {sr(dst)}, 7
              s_and_b32 {sr(S_T2)}, {sr(S_HEAD)}, 7
              s_lshl_b32 {sr(S_T2)}, {sr(S_T2)}, 2
              s_add_u32 {sr(dst)}, {sr(dst)}, {sr(S_T2)}
              s_add_u32 {sr(dst)}, {sr(dst)}, {base}""")
    def in_oflag(dst, base):
        a(f"""s_lshl_b32 {sr(dst)}, {sr(S_RO32)}, 2
              s_add_u32 {sr(dst)}, {sr(dst)}, {sr(S_HH)}
              s_lshl_b32 {sr(dst)}, {sr(dst)}, 7
              s_add_u32 {sr(dst)}, {sr(dst)}, {base}""")

    a.label("L_hook1")
    stamp(11)
    a(f"""v_and_b32 {vr(V_T0)}, 0x3c, {vr(V_L4)}
          v_bfe_u32 {vr(V_T1)}, {vr(V_LANE)}, 4, 1
          v_lshl_add_u32 {vr(V_T0)}, {vr(V_T1)}, 7, {vr(V_T0)}
          s_lshl_b32 {sr(S_T0)}, {sr(S_RT32)}, 8
          s_add_u32 {sr(S_T0)}, {sr(S_T0)}, {WS_G}
          s_barrier
          buffer_load_dword {vr(V_G)}, {vr(V_T0)}, {sr(S_WS,4)}, {sr(S_T0)} offen sc1
          v_mov_b32 {vr(V_PK)}, -1
          v_mov_b32 {vr(V_PK+1)}, -1
          v_mov_b32 {vr(V_PK+2)}, -1
          v_mov_b32 {vr(V_PK+3)}, -1""")
    ooff(S_RDY, WS_OB)
    a(f"buffer_store_dwordx4 {vr(V_PK,4)}, {vr(V_L16)}, {sr(S_WS,4)}, {sr(S_RDY)} offen sc1")
    stamp(12)
    a("s_branch L_att")

    a.label("L_hook3")
    stamp(13)
    a.vm = []
    a(f"""v_and_b32 {vr(V_T0)}, 15, {vr(V_LANE)}
          v_cndmask_b32 {vr(V_T0)}, {vr(V_T0)}, 16, {sr(S_VMASK,2)}
          v_lshrrev_b32 {vr(V_T1)}, 5, {vr(V_LANE)}
          v_lshlrev_b32 {vr(V_T1)}, 4, {vr(V_T1)}
          v_lshl_add_u32 {vr(V_T0)}, {vr(V_T0)}, 6, {vr(V_T1)}
          s_lshl_b32 {sr(S_T0)}, {sr(S_HEAD)}, 11
          s_add_u32 {sr(S_T0)}, {sr(S_T0)}, {WS_ACC}
          s_barrier""")
    a.vmem(f"buffer_load_dwordx4 {vr(V_AC,4)}, {vr(V_T0)}, {sr(S_WS,4)}, {sr(S_T0)} offen sc1", "acc")
    a.vmem(f"buffer_load_dwordx4 {vr(V_AC+4,4)}, {vr(V_T0)}, {sr(S_WS,4)}, {sr(S_T0)} offen offset:32 sc1", "acc")
    stamp(14)
    a("s_branch L_att")

    a.label("L_hook4")
    stamp(15)
    a.wait_vm("acc")
    for i in range(4):
        a(f"v_cvt_pk_bf16_f32 {vr(V_AC+8+i)}, {vr(V_AC+2*i)}, {vr(V_AC+2*i+1)}")
    a(f"""s_nop 1
          v_mfma_f32_32x32x16_bf16 {vr(V_OA,16)}, {vr(V_AC+8,4)}, {vr(V_PQ,4)}, 0""")
    ooff(S_T3, WS_OA)
    a(f"""s_waitcnt lgkmcnt(0)
          s_barrier
          s_nop 5
          v_add_f32 {vr(V_T0)}, {sr(S_EPS)}, {vr(V_OA)}
          v_rcp_f32 {vr(V_T0)}, {vr(V_T0)}
          s_nop 0
          v_mul_f32 {vr(V_T0)}, {vr(V_T0)}, {vr(V_G)}""")
    for i in range(0, 8, 2):
        a(f"v_pk_mul_f32 {vr(V_OA+8+i,2)}, {vr(V_OA+8+i,2)}, {vr(V_T0,2)} op_sel_hi:[1,0]")
    for i in range(4):
        a(f"v_cvt_pk_bf16_f32 {vr(V_PK+i)}, {vr(V_OA+8+2*i)}, {vr(V_OA+8+2*i+1)}")
    a.vmem(f"buffer_store_dwordx4 {vr(V_PK,4)}, {vr(V_L16)}, {sr(S_WS,4)}, {sr(S_T3)} offen sc1", "oa")
    stamp(16)
    a("s_branch L_att")

    a.label("L_hook5")
    my_oflag(S_T3, WS_FOA)
    a.wait_vm(None)
    flag_store(S_T3)
    a(f"""v_lshrrev_b32 {vr(V_T0)}, 5, {vr(V_LANE)}
          v_lshlrev_b32 {vr(V_T0)}, 9, {vr(V_T0)}
          v_bfe_u32 {vr(V_T1)}, {vr(V_LANE)}, 2, 2
          v_lshl_add_u32 {vr(V_T0)}, {vr(V_T1)}, 7, {vr(V_T0)}
          v_bfe_u32 {vr(V_T1)}, {vr(V_LANE)}, 3, 1
          v_lshl_add_u32 {vr(V_T0)}, {vr(V_T1)}, 6, {vr(V_T0)}
          v_bfe_u32 {vr(V_T1)}, {vr(V_LANE)}, 4, 1
          v_lshl_add_u32 {vr(V_T0)}, {vr(V_T1)}, 5, {vr(V_T0)}
          v_and_b32 {vr(V_T1)}, 3, {vr(V_LANE)}
          v_lshl_add_u32 {vr(V_T0)}, {vr(V_T1)}, 3, {vr(V_T0)}
          s_lshl_b32 {sr(S_T0)}, {sr(S_HH)}, 14
          v_add_u32 {vr(V_WOA0)}, {sr(S_T0)}, {vr(V_T0)}
          v_xor_b32 {vr(V_WOA1)}, 64, {vr(V_WOA0)}
          v_sub_f32 {vr(V_G)}, 1.0, {vr(V_G)}
          s_branch L_att""")

    a.label("L_hook6")
    stamp(17)
    in_oflag(S_T3, WS_FOA)
    flag_load(S_T3, 8)
    a("s_waitcnt lgkmcnt(0)\ns_barrier")
    stamp(18)
    a("s_branch L_att")

    a.label("L_hook7")
    stamp(19)
    a.wait_vm(None)
    flag_spin("L_sfoa", S_T3, 8)
    osrc(WS_OA)
    stamp(20)
    segment(extra=lambda t: oload(t, V_FA, "fa"))

    def wo_rd(i):
        b = V_WO + 8 * (i % 4)
        for nt in range(2):
            for u in range(2):
                a(f"ds_read_b64_tr_b16 {vr(b+4*nt+2*u,2)}, {vr(V_WOA0 if nt==0 else V_WOA1)} offset:{i*2048 + u*1024}")
    wo_rd(0); wo_rd(1)
    a(f"""s_mov_b32 {sr(S_T0)}, {hex(f2u(2.0**64))}
          s_nop 2""")
    stamp(6)
    a(f"""v_rcp_f32 {vr(V_T0)}, {vr(V_O+8)}
          v_cmp_nle_f32 vcc, {vr(V_O+8)}, {sr(S_T0)}
          v_pk_mul_f32 {vr(V_T2,2)}, {vr(V_O,2)}, 0
          v_pk_fma_f32 {vr(V_T2,2)}, {vr(V_O+2,2)}, 0, {vr(V_T2,2)}
          v_pk_fma_f32 {vr(V_T2,2)}, {vr(V_O+4,2)}, 0, {vr(V_T2,2)}
          v_pk_fma_f32 {vr(V_T2,2)}, {vr(V_O+6,2)}, 0, {vr(V_T2,2)}
          v_cmp_u_f32 {sr(S_SAVE,2)}, {vr(V_T2)}, {vr(V_T3)}
          s_or_b64 vcc, vcc, {sr(S_SAVE,2)}
          s_cbranch_vccnz L_fallback""")
    a.label("L_norm")
    a(f"v_mul_f32 {vr(V_T0)}, {vr(V_T0)}, {vr(V_G)}")
    for i in range(0, 8, 2):
        a(f"v_pk_mul_f32 {vr(V_O+i,2)}, {vr(V_O+i,2)}, {vr(V_T0,2)} op_sel_hi:[1,0]")
    for i in range(4):
        a(f"v_cvt_pk_bf16_f32 {vr(V_PK+i)}, {vr(V_O+2*i)}, {vr(V_O+2*i+1)}")
    for i in range(4):
        a(f"v_min_u32 {vr(V_PK+i)}, -2, {vr(V_PK+i)}")
    a.vmem(f"buffer_store_dwordx4 {vr(V_PK,4)}, {vr(V_L16)}, {sr(S_WS,4)}, {sr(S_RDY)} offen sc1", "ob")
    def oproj(src, tag, first, pre):
        for i in range(pre, 3): wo_rd(i)
        for i in range(8):
            n_after = 4 * (min(i + 2, 7) - i)
            if f"{tag}{i}" in a.vm:
                a.wait_vm(f"{tag}{i}", f"lgkmcnt({n_after})")
            else:
                a(f"s_waitcnt lgkmcnt({n_after})")
            b = V_WO + 8 * (i % 4)
            for nt in range(2):
                a(f"v_mfma_f32_32x32x16_bf16 {vr(V_OUT[nt],16)}, {vr(b+4*nt,4)}, {vr(src+4*i,4)}, {'0' if (first and i==0) else vr(V_OUT[nt],16)}")
            if i + 3 < 8: wo_rd(i + 3)
    a.wait_vm("fa7")
    oproj(V_FA, "fa", True, 2)
    A0, A1, A2, A3 = V_XA0, V_XA1, V_WA, V_KA
    a(f"""s_cmp_lt_u32 {sr(S_HH)}, 2
          s_cselect_b32 {sr(S_T0)}, 4, 1
          s_lshl_b32 {sr(S_T0)}, {sr(S_T0)}, 15
          v_add_u32 {vr(V_WOA0)}, {sr(S_T0)}, {vr(V_WOA0)}
          v_add_u32 {vr(V_WOA1)}, {sr(S_T0)}, {vr(V_WOA1)}""")
    stamp(7)
    osrc(WS_OB)
    a(f"s_mov_b32 {sr(S_T3)}, {sr(S_T0)}\ns_mov_b32 {sr(S_SEG)}, {sr(S_T1)}")
    a.vm = []
    for i in range(8): oload(i, V_FBB, "fb")
    a("s_barrier")
    stamp(8)
    wo_rd(0); wo_rd(1); wo_rd(2)
    a(f"""v_and_b32 {vr(V_T0)}, 31, {vr(V_LANE)}
          v_lshrrev_b32 {vr(V_T1)}, 5, {vr(V_LANE)}
          v_and_b32 {vr(V_T2)}, 7, {vr(V_LANE)}
          v_xor_b32 {vr(V_T1)}, {vr(V_T1)}, {vr(V_T2)}
          v_lshlrev_b32 {vr(V_T1)}, 4, {vr(V_T1)}
          v_lshl_add_u32 {vr(V_T0)}, {vr(V_T0)}, 8, {vr(V_T1)}
          s_lshl_b32 {sr(S_T0)}, {sr(S_HH)}, 14
          s_lshl_b32 {sr(S_T1)}, {sr(S_RT)}, 13
          s_add_u32 {sr(S_T0)}, {sr(S_T0)}, {sr(S_T1)}
          v_add_u32 {vr(V_T0)}, {sr(S_T0)}, {vr(V_T0)}
          v_xor_b32 {vr(V_T1)}, 32, {vr(V_T0)}
          v_xor_b32 {vr(V_T2)}, 64, {vr(V_T0)}
          v_xor_b32 {vr(V_T3)}, 96, {vr(V_T0)}
          v_lshrrev_b32 {vr(A0)}, 3, {vr(V_LANE)}
          v_and_b32 {vr(A1)}, 7, {vr(V_LANE)}
          v_lshlrev_b32 {vr(A2)}, 1, {vr(A1)}
          v_xor_b32 {vr(A2)}, {vr(A2)}, {vr(A0)}
          v_lshlrev_b32 {vr(A2)}, 4, {vr(A2)}
          v_lshl_add_u32 {vr(A2)}, {vr(A0)}, 8, {vr(A2)}
          s_lshl_b32 {sr(S_T0)}, {sr(S_WAVE)}, 11
          v_add_u32 {vr(A2)}, {sr(S_T0)}, {vr(A2)}
          v_xor_b32 {vr(A3)}, 16, {vr(A2)}
          v_lshlrev_b32 {vr(A1)}, 4, {vr(A1)}
          v_lshl_add_u32 {vr(A0)}, {vr(A0)}, 10, {vr(A1)}
          s_lshl_b32 {sr(S_RDY)}, {sr(S_QO)}, 16
          s_lshl_b32 {sr(S_T1)}, {sr(S_WAVE)}, 13
          s_add_u32 {sr(S_RDY)}, {sr(S_RDY)}, {sr(S_T1)}
          s_lshl_b32 {sr(S_T1)}, {sr(S_NS)}, 7
          s_add_u32 {sr(S_RDY)}, {sr(S_RDY)}, {sr(S_T1)}""")
    a(f"s_mov_b32 {sr(S_SPIN)}, 0")
    for i in range(8):
        f = V_FBB + 4 * i
        n_after = 4 * (min(i + 2, 7) - i)
        a(f"s_waitcnt vmcnt({7-i})")
        a.label(f"L_ob{i}")
        a(f"""v_max3_u32 {vr(V_FLG)}, {vr(f)}, {vr(f+1)}, {vr(f+2)}
              v_max_u32 {vr(V_FLG)}, {vr(V_FLG)}, {vr(f+3)}
              v_cmp_eq_u32 vcc, -1, {vr(V_FLG)}
              s_cbranch_vccnz L_obr{i}""")
        a.label(f"L_obk{i}")
        a(f"s_waitcnt lgkmcnt({n_after})")
        b = V_WO + 8 * (i % 4)
        for nt in range(2):
            a(f"v_mfma_f32_32x32x16_bf16 {vr(V_OUT[nt],16)}, {vr(b+4*nt,4)}, {vr(f,4)}, {vr(V_OUT[nt],16)}")
        if i + 3 < 8: wo_rd(i + 3)
    stamp(9)
    a("s_nop 10")
    for nt in range(2):
        for g in range(4):
            a(f"ds_write_b128 {vr(V_T0+g)}, {vr(V_OUT[nt]+4*g,4)} offset:{nt*128}")
    a("""s_waitcnt lgkmcnt(0)
         s_barrier""")
    RR = V_FA
    for k in range(4):
        a(f"ds_read_b128 {vr(RR+8*k,4)}, {vr(A2)} offset:{k*16384}")
        a(f"ds_read_b128 {vr(RR+8*k+4,4)}, {vr(A3)} offset:{k*16384}")
    for k in range(1, 4):
        a(f"s_waitcnt lgkmcnt({2*(3-k)})")
        for i in range(0, 8, 2):
            a(f"v_pk_add_f32 {vr(RR+i,2)}, {vr(RR+i,2)}, {vr(RR+8*k+i,2)}")
    for i in range(4):
        a(f"v_cvt_pk_bf16_f32 {vr(RR+8+i)}, {vr(RR+2*i)}, {vr(RR+2*i+1)}")
    a(f"buffer_store_dwordx4 {vr(RR+8,4)}, {vr(A0)}, {sr(S_OUT,4)}, {sr(S_RDY)} offen")
    def ts_out():
        a(f"""s_mul_i32 {sr(S_T0)}, s2, 10
              s_add_u32 {sr(S_T0)}, {sr(S_T0)}, {sr(S_WAVE)}
              s_lshl_b32 {sr(S_T0)}, {sr(S_T0)}, 8
              s_add_u32 {sr(S_T0)}, {sr(S_T0)}, {WS_TS}
              buffer_store_dword v{V_STAMP}, {vr(V_L4)}, {sr(S_WS,4)}, {sr(S_T0)} offen""")
    if ts:
        stamp(10)
        ts_out()
        a(f"""s_cmp_lg_u32 s2, {opts.get('tswg', 100)}
              s_cbranch_scc1 L_end
              s_cmp_lg_u32 {sr(S_WAVE)}, 0
              s_cbranch_scc1 L_end
              v_readlane_b32 {sr(S_T0)}, v{V_STAMP}, 0
              s_nop 4
              v_subrev_u32 v{V_STAMP}, {sr(S_T0)}, v{V_STAMP}
              buffer_store_dword v{V_STAMP}, {vr(V_L4)}, {sr(S_DBG,4)}, 0 offen""")
    a.label("L_end")
    a("s_endpgm")

    for i in range(8):
        a.label(f"L_obr{i}")
        a(f"""s_add_u32 {sr(S_SPIN)}, {sr(S_SPIN)}, 1
              s_cmp_ge_u32 {sr(S_SPIN)}, 100000
              s_cbranch_scc1 L_obk{i}""")
        for k in range(i, 8):
            a(f"buffer_load_dwordx4 {vr(V_FBB+4*k,4)}, {vr(V_L16)}, {sr(S_WS,4)}, {sr(S_T3 if k < 4 else S_SEG)} offen offset:{(k%4)*1024} sc1")
            if not opts.get("reall", 1): break
        a(f"""s_waitcnt vmcnt({7-i if opts.get("reall", 1) else 0})
              s_branch L_ob{i}""")
    a.label("L_fallback")
    FS = V_S[0]
    a(f"""v_mov_b32 {vr(V_T0)}, 0xff800000
          s_mov_b32 {sr(S_T0)}, {WS_KV}""")
    a.label("L_fb1")
    a(f"""buffer_load_dwordx4 {vr(V_KF,4)}, {vr(V_L16)}, {sr(S_WS,4)}, {sr(S_T0)} offen sc1
          s_waitcnt vmcnt(0)
          v_mfma_f32_32x32x16_bf16 {vr(FS,16)}, {vr(V_KF,4)}, {vr(V_QF,4)}, 0
          s_nop 15""")
    for i in range(8):
        a(f"v_max3_f32 {vr(V_T0)}, {vr(V_T0)}, {vr(FS+2*i)}, {vr(FS+2*i+1)}")
    a(f"""s_add_u32 {sr(S_T0)}, {sr(S_T0)}, 2048
          s_cmp_lt_u32 {sr(S_T0)}, {WS_KV + 131072}
          s_cbranch_scc1 L_fb1
          v_mov_b32 {vr(V_T1)}, {vr(V_T0)}
          s_nop 1
          v_permlane32_swap_b32 {vr(V_T0)}, {vr(V_T1)}
          s_nop 1
          v_max_f32 {vr(V_T0)}, {vr(V_T0)}, {vr(V_T1)}""")
    for i in range(16):
        a(f"v_sub_f32 {vr(V_C+i)}, 0, {vr(V_T0)}")
        a(f"v_mov_b32 {vr(V_O+i)}, 0")
    a(f"""v_and_b32 {vr(V_VA)}, 0x3ff, {vr(V_VA)}
          s_mov_b32 {sr(S_T0)}, {WS_KV}""")
    a.label("L_fb2")
    a(f"""buffer_load_dwordx4 {vr(V_KF,4)}, {vr(V_L16)}, {sr(S_WS,4)}, {sr(S_T0)} offen sc1
          s_mov_b64 exec, {sr(S_VMASK,2)}
          buffer_load_dwordx4 {vr(V_VF[0],4)}, {vr(V_VA)}, {sr(S_WS,4)}, {sr(S_T0)} offen offset:1024 sc1
          buffer_load_dwordx4 {vr(V_VF[0]+4,4)}, {vr(V_VA)}, {sr(S_WS,4)}, {sr(S_T0)} offen offset:1536 sc1
          s_mov_b64 exec, -1
          s_waitcnt vmcnt(0)
          v_mfma_f32_32x32x16_bf16 {vr(FS,16)}, {vr(V_KF,4)}, {vr(V_QF,4)}, {vr(V_C,16)}
          s_nop 15""")
    for i in range(16):
        a(f"v_exp_f32 {vr(FS+i)}, {vr(FS+i)}")
    a(f"""s_nop 1
          v_smfmac_f32_32x32x32_bf16 {vr(V_O,16)}, {vr(V_VF[0],4)}, {vr(FS,8)}, {vr(V_IDX)}
          v_smfmac_f32_32x32x32_bf16 {vr(V_O,16)}, {vr(V_VF[0]+4,4)}, {vr(FS+8,8)}, {vr(V_IDX)}
          s_add_u32 {sr(S_T0)}, {sr(S_T0)}, 2048
          s_cmp_lt_u32 {sr(S_T0)}, {WS_KV + 131072}
          s_cbranch_scc1 L_fb2
          s_nop 15
          v_rcp_f32 {vr(V_T0)}, {vr(V_O+8)}
          s_nop 0
          s_branch L_norm""")

    a.label("L_helper")
    a.vm = []
    HB = [16, 64]
    HD, HDG = 144, 112
    H_F4 = 148
    H_FOFF = 152
    H_GWA = 8
    a(f"""s_setprio {opts.get("hprio", 3)}
          s_lshl_b32 {sr(S_T1)}, {sr(S_RGJ)}, 14
          s_add_u32 {sr(S_WOFF)}, {sr(S_T0)}, {sr(S_T1)}
          s_lshl_b32 {sr(S_T1)}, {sr(S_RGJ)}, 10
          s_add_u32 {sr(S_M0W)}, {sr(S_T1)}, {L_X}
          s_mov_b32 {sr(S_WJ+2)}, 16384
          s_mov_b32 {sr(S_WJ+3)}, 0x20000
          s_bitcmp1_b32 {sr(S_HG)}, 0
          s_waitcnt lgkmcnt(0)
          s_mov_b32 {sr(S_X)}, {sr(S_KA+0)}
          s_mov_b32 {sr(S_X+1)}, {sr(S_KA+1)}
          s_cselect_b32 {sr(S_WJ)}, {sr(S_KA+12)}, {sr(S_KA+10)}
          s_cselect_b32 {sr(S_WJ+1)}, {sr(S_KA+13)}, {sr(S_KA+11)}
          s_load_dword {sr(S_TAG)}, {sr(S_KA+22,2)}, {WS_E}""")
    def jload(g):
        for k in range(4):
            kb = 4 * g + k
            a(f"s_add_u32 m0, {sr(S_M0W)}, {kb*4096 - kb*64}")
            a("s_nop 0")
            a.vmem(f"buffer_load_dwordx4 {vr(V_XOFF)}, {sr(S_X,4)}, {sr(S_WOFF)} offen offset:{kb*64} lds", f"j{g}")
        a(f"s_mov_b32 m0, {L_MISC + 16384 + g*4096}")
        a(f"s_mov_b32 {sr(S_T2)}, {g*4096}")
        for k in range(4):
            a.vmem(f"buffer_load_dwordx4 {vr(V_L16)}, {sr(S_WJ,4)}, {sr(S_T2)} offen offset:{k*1024} lds", f"j{g}")
    srd(S_FREE2, 16, 1024)
    a(f"s_mov_b32 m0, {L_MISC}\ns_nop 0")
    a.vmem(f"buffer_load_dwordx4 {vr(V_L16)}, {sr(S_FREE2,4)}, 0 offen lds", "gw")
    jload(0)
    srd(S_WS, 22, WS_SIZE)
    srd(S_WOA, 4, 0x80000)
    srd(S_WOB, 14, 0x80000)
    omap()
    a(f"""v_and_b32 {vr(V_T0)}, 15, {vr(V_LANE)}
          v_lshrrev_b32 {vr(V_T1)}, 4, {vr(V_LANE)}
          v_bfe_u32 {vr(V_T2)}, {vr(V_LANE)}, 2, 2
          v_xor_b32 {vr(V_T2)}, {vr(V_T2)}, {vr(V_T1)}
          v_lshlrev_b32 {vr(V_T2)}, 4, {vr(V_T2)}
          v_lshl_add_u32 {vr(V_T2)}, {vr(V_T0)}, 6, {vr(V_T2)}
          v_add_u32 {vr(V_T2)}, {sr(S_M0W)}, {vr(V_T2)}
          v_lshlrev_b32 {vr(V_T3)}, 3, {vr(V_T0)}
          v_lshl_add_u32 {vr(V_T3)}, {vr(V_T1)}, 8, {vr(V_T3)}
          v_lshlrev_b32 {vr(H_GWA)}, 4, {vr(V_T1)}
          v_lshlrev_b32 {vr(13)}, 4, {vr(V_T0)}
          v_and_b32 {vr(14)}, 1, {vr(V_T1)}
          v_lshrrev_b32 {vr(15)}, 1, {vr(V_T1)}
          s_lshr_b32 {sr(S_T0)}, {sr(S_QB)}, 3
          s_lshl_b32 {sr(S_T0)}, {sr(S_T0)}, 4
          s_lshr_b32 {sr(S_T1)}, {sr(S_RGJ)}, 1
          s_lshl_b32 {sr(S_T1)}, {sr(S_T1)}, 3
          s_add_u32 {sr(S_T0)}, {sr(S_T0)}, {sr(S_T1)}
          s_and_b32 {sr(S_T1)}, {sr(S_QB)}, 7
          s_add_u32 {sr(S_SEG)}, {sr(S_T0)}, {sr(S_T1)}
          s_and_b32 {sr(S_HEAD)}, s2, 7
          s_lshl_b32 {sr(S_HEAD)}, {sr(S_HEAD)}, 3""")
    jload(1)
    a(f"""v_add_u32 {vr(H_FOFF)}, {sr(S_HEAD)}, {vr(V_LANE)}
          v_and_b32 {vr(H_FOFF)}, 63, {vr(H_FOFF)}
          v_lshlrev_b32 {vr(H_FOFF)}, 4, {vr(H_FOFF)}
          s_lshl_b32 {sr(S_T3)}, {sr(S_SEG)}, 4
          s_and_b32 {sr(S_T0)}, {sr(S_HG)}, 3
          s_lshl_b32 {sr(S_T0)}, {sr(S_T0)}, 2
          s_add_u32 {sr(S_T3)}, {sr(S_T3)}, {sr(S_T0)}
          s_add_u32 {sr(S_T3)}, {sr(S_T3)}, {WS_FKV}
          s_mov_b32 {sr(S_RDY)}, 0
          v_lshrrev_b32 {vr(V_T0)}, 3, {vr(V_LANE)}
          v_bfe_u32 {vr(V_T1)}, {vr(V_LANE)}, 4, 1
          v_lshlrev_b32 {vr(V_T1)}, 2, {vr(V_T1)}
          v_xor_b32 {vr(V_T1)}, {vr(V_T1)}, {vr(V_LANE)}
          v_and_b32 {vr(V_T1)}, 7, {vr(V_T1)}
          v_lshlrev_b32 {vr(V_T1)}, 4, {vr(V_T1)}
          v_lshl_add_u32 {vr(V_WOFF)}, {vr(V_T0)}, 10, {vr(V_T1)}""")
    tag_setup()
    vmh = list(a.vm)
    def job(isV):
        a.vm = list(vmh)
        for c in range(5):
            if c < 4: a.wait_vm(f"j{c}")
            a("s_barrier")
            if c > 0: a("s_waitcnt lgkmcnt(0)")
            if c < 4:
                b = HB[c % 2]
                for k in range(4):
                    s = 4 * c + k
                    if k == 3 and not isV: a("s_waitcnt lgkmcnt(8)")
                    a(f"ds_read_b128 {vr(b+4*k,4)}, {vr(V_T2)} offset:{s*4096}")
                    a(f"ds_read_b64_tr_b16 {vr(b+16+4*k,2)}, {vr(V_T3)} offset:{L_MISC + 16384 + s*1024}")
                    a(f"ds_read_b64_tr_b16 {vr(b+16+4*k+2,2)}, {vr(V_T3)} offset:{L_MISC + 16384 + s*1024 + 128}")
                    if not isV: a(f"ds_read_b128 {vr(b+32+4*k,4)}, {vr(H_GWA)} offset:{L_MISC + s*64}")
            if c > 0:
                b = HB[(c - 1) % 2]
                for k in range(4):
                    z = c == 1 and k == 0
                    A_, B_ = (b, b + 16) if isV else (b + 16, b)
                    a(f"v_mfma_f32_16x16x32_bf16 {vr(HD,4)}, {vr(A_+4*k,4)}, {vr(B_+4*k,4)}, {'0' if z else vr(HD,4)}")
                    if not isV: a(f"v_mfma_f32_16x16x32_bf16 {vr(HDG,4)}, {vr(b+32+4*k,4)}, {vr(b+4*k,4)}, {'0' if z else vr(HDG,4)}")
            if c < 2: jload(c + 2)
        a(f"s_and_b32 {sr(S_T1)}, {sr(S_RGJ)}, 1")
        if isV:
            a(f"""v_lshl_add_u32 {vr(13)}, {vr(15)}, 8, {vr(13)}
                  v_lshl_add_u32 {vr(13)}, {vr(14)}, 3, {vr(13)}
                  s_lshl_b32 {sr(S_T1)}, {sr(S_T1)}, 9
                  s_add_u32 {sr(S_T1)}, {sr(S_T1)}, 1024""")
        else:
            a(f"""v_lshl_add_u32 {vr(13)}, {vr(14)}, 9, {vr(13)}
                  v_lshl_add_u32 {vr(13)}, {vr(15)}, 3, {vr(13)}
                  s_lshl_b32 {sr(S_T1)}, {sr(S_T1)}, 8
                  s_lshl_b32 {sr(S_T0)}, {sr(S_QB)}, 2
                  s_add_u32 {sr(S_T0)}, {sr(S_T0)}, {sr(S_RGJ)}
                  s_lshl_b32 {sr(S_T0)}, {sr(S_T0)}, 7
                  s_add_u32 {sr(S_T0)}, {sr(S_T0)}, {WS_G}
                  s_mov_b32 {sr(S_T2)}, {hex(f2u(LOG2E))}
                  v_mul_f32 {vr(HDG)}, {sr(S_T2)}, {vr(HDG)}
                  v_exp_f32 {vr(HDG)}, -{vr(HDG)}
                  s_nop 0
                  v_add_f32 {vr(HDG)}, 1.0, {vr(HDG)}
                  v_rcp_f32 {vr(HDG)}, {vr(HDG)}
                  s_mov_b32 exec_hi, 0
                  buffer_store_dword {vr(HDG)}, {vr(V_L4)}, {sr(S_WS,4)}, {sr(S_T0)} offen sc1
                  s_mov_b32 exec_hi, -1""")
    a(f"""s_bitcmp1_b32 {sr(S_HG)}, 0
          s_cbranch_scc1 L_jobV""")
    job(False)
    a("s_branch L_jobdone")
    a.label("L_jobV")
    job(True)
    a.label("L_jobdone")
    a.vm = []
    a(f"""s_lshl_b32 {sr(S_T0)}, {sr(S_SEG)}, 11
          s_add_u32 {sr(S_T0)}, {sr(S_T0)}, {sr(S_T1)}
          s_add_u32 {sr(S_T0)}, {sr(S_T0)}, {WS_KV}
          s_nop 1
          v_cvt_pk_bf16_f32 {vr(HD+4)}, {vr(HD)}, {vr(HD+1)}
          v_cvt_pk_bf16_f32 {vr(HD+5)}, {vr(HD+2)}, {vr(HD+3)}
          v_mov_b32 {vr(14)}, 0
          s_lshl_b32 {sr(S_T1)}, s2, 8
          s_add_u32 {sr(S_T1)}, {sr(S_T1)}, {WS_ACC}
          buffer_store_dwordx2 {vr(HD+4,2)}, {vr(13)}, {sr(S_WS,4)}, {sr(S_T0)} offen sc1
          buffer_store_dword {vr(14)}, {vr(V_L4)}, {sr(S_WS,4)}, {sr(S_T1)} offen sc1""")
    stamp(1)
    def kv_sample():
        a(f"buffer_load_dwordx4 {vr(H_F4,4)}, {vr(H_FOFF)}, {sr(S_WS,4)}, 0 offen offset:{WS_FKV} sc1")
    def kv_mask():
        a(f"""v_cmp_ne_u32 vcc, {vr(H_F4)}, {vr(V_TAG)}
              v_cmp_ne_u32 {sr(S_SAVE,2)}, {vr(H_F4+1)}, {vr(V_TAG)}
              s_or_b64 vcc, vcc, {sr(S_SAVE,2)}
              v_cmp_ne_u32 {sr(S_SAVE,2)}, {vr(H_F4+2)}, {vr(V_TAG)}
              s_or_b64 vcc, vcc, {sr(S_SAVE,2)}
              v_cmp_ne_u32 {sr(S_SAVE,2)}, {vr(H_F4+3)}, {vr(V_TAG)}
              s_or_b64 vcc, vcc, {sr(S_SAVE,2)}""")
    def kv_dma(lbl, s0, s1):
        a(f"s_mov_b32 {sr(S_T0)}, {s0}")
        a.label(lbl)
        a(f"""s_add_u32 {sr(S_T1)}, {sr(S_T0)}, {sr(S_HEAD)}
              s_and_b32 {sr(S_T1)}, {sr(S_T1)}, 63
              s_lshl_b32 {sr(S_T1)}, {sr(S_T1)}, 11
              s_add_u32 {sr(S_T1)}, {sr(S_T1)}, {WS_KV}
              s_lshl_b32 m0, {sr(S_T0)}, 11
              s_waitcnt vmcnt(40)""")
        for k in range(4):
            a(f"buffer_load_dwordx4 {vr(V_L16)}, {sr(S_WS,4)}, {sr(S_T1)} offen offset:{k*1024} sc1 lds")
        a(f"""s_add_u32 m0, m0, 4096
              s_add_u32 {sr(S_T1)}, {sr(S_T1)}, 4096""")
        for k in range(4):
            a(f"buffer_load_dwordx4 {vr(V_L16)}, {sr(S_WS,4)}, {sr(S_T1)} offen offset:{k*1024} sc1 lds")
        a(f"""s_add_u32 {sr(S_T0)}, {sr(S_T0)}, 4
              s_cmp_lt_u32 {sr(S_T0)}, {s1}
              s_cbranch_scc1 {lbl}""")
    def kv_spin(lbl, lo_only):
        a(f"s_mov_b32 {sr(S_SPIN)}, 0")
        a.label(lbl + "_loop")
        kv_mask()
        if lo_only:
            a(f"s_and_b32 {sr(S_SAVE)}, vcc_lo, {hex((1 << NSA) - 1)}\ns_cmp_eq_u32 {sr(S_SAVE)}, 0")
        else:
            a("s_cmp_eq_u64 vcc, 0")
        a(f"""s_cbranch_scc1 {lbl}_ok
              s_add_u32 {sr(S_SPIN)}, {sr(S_SPIN)}, 1
              s_cmp_ge_u32 {sr(S_SPIN)}, 100000
              s_cbranch_scc1 {lbl}_ok""")
        kv_sample()
        a(f"""s_waitcnt vmcnt(0)
              s_branch {lbl}_loop""")
        a.label(lbl + "_ok")
    C_SIG = opts.get("c_sig", 8)
    C_SMP = opts.get("c_smp", 13)
    for c in range(5, 16):
        a("s_barrier")
        if c == C_SIG:
            a("s_waitcnt vmcnt(0)")
            flag_store(S_T3)
            stamp(2)
        if c == C_SMP:
            kv_sample()
    stamp(3)
    a("s_waitcnt vmcnt(0)")
    kv_spin("L_skvA", True)
    kv_dma("L_kvdA2", 0, NSA)
    kv_sample()
    a(f"""v_add_u32 {vr(V_T0)}, {L_HI}, {vr(V_L4)}
          v_lshrrev_b32 {vr(V_T2)}, 4, {vr(V_LANE)}
          v_and_b32 {vr(V_T3)}, 0x3c, {vr(V_L4)}
          v_lshl_add_u32 {vr(V_T1)}, {vr(V_T2)}, 12, {vr(V_T3)}
          v_add_u32 {vr(V_T1)}, {L_HI + 1024}, {vr(V_T1)}
          v_lshl_add_u32 {vr(V_T2)}, {vr(V_T2)}, 11, {vr(V_T3)}
          s_waitcnt vmcnt(1)""")
    stamp(4)
    a("""s_barrier
         s_waitcnt vmcnt(0)""")
    kv_spin("L_skvB", False)
    stamp(5)
    kv_dma("L_kvdB", NSA, 64)
    a(f"""s_cmp_lg_u32 s2, 0
          s_cbranch_scc1 L_noep
          s_mov_b32 {sr(S_T0)}, {WS_E}""")
    flag_store(S_T0)
    a.label("L_noep")
    P0, P1 = 16, 40
    for hh in range(4):
        for i in range(4):
            a(f"ds_read_b32 {vr(P0+4*hh+i)}, {vr(V_T0)} offset:{hh*4096 + i*256}")
            a(f"ds_read_b32 {vr(P1+4*hh+i)}, {vr(V_T0)} offset:{hh*4096 + 2048 + i*256}")
        if hh == 3:
            a(f"ds_read_b32 {vr(P0+16)}, {vr(V_T1)}")
            a(f"ds_read_b32 {vr(P1+16)}, {vr(V_T1)} offset:2048")
        a("s_waitcnt lgkmcnt(0)")
        for i in range(4 if hh < 3 else 5):
            a(f"v_add_f32 {vr(P0+4*hh+i)}, {vr(P0+4*hh+i)}, {vr(P1+4*hh+i)}")
    a(f"""s_lshl_b32 {sr(S_T0)}, {sr(S_HG)}, 13
          s_add_u32 {sr(S_T0)}, {sr(S_T0)}, {WS_ACC}
          s_add_u32 {sr(S_T1)}, {sr(S_T0)}, 4096
          s_waitcnt vmcnt(0)""")
    for hh in range(4):
        for i in range(4):
            a(f"buffer_atomic_add_f32 {vr(P0+4*hh+i)}, {vr(V_L4)}, {sr(S_WS,4)}, {sr(S_T0 if hh < 2 else S_T1)} offen offset:{(hh%2)*2048 + i*256} sc1")
    a(f"buffer_atomic_add_f32 {vr(P0+16)}, {vr(V_T2)}, {sr(S_WS,4)}, {sr(S_T0)} offen offset:1024 sc1")
    stamp(11)
    a(f"""s_barrier
          s_lshl_b32 {sr(S_T3)}, {sr(S_HG)}, 7
          s_add_u32 {sr(S_T3)}, {sr(S_T3)}, {WS_FA}
          s_lshl_b32 {sr(S_T0)}, {sr(S_QB)}, 2
          s_add_u32 {sr(S_T0)}, {sr(S_T0)}, {sr(S_T3)}
          s_waitcnt vmcnt(0)""")
    flag_store(S_T0)
    stamp(12)
    a(f"v_not_b32 {vr(V_FLG)}, {vr(V_TAG)}")
    flag_spin("L_sfa", S_T3, 32)
    stamp(13)
    a("""s_barrier
         s_barrier""")
    def wodma(lbl, srdw, r0, nrows, dst):
        a(f"""s_lshl_b32 {sr(S_T0)}, {sr(S_NS)}, 7
              s_add_u32 {sr(S_T0)}, {sr(S_T0)}, {r0*1024}
              s_mov_b32 m0, {dst}""")
        a.label(lbl)
        a("s_waitcnt vmcnt(40)")
        for i in range(4):
            a(f"buffer_load_dwordx4 {vr(V_WOFF)}, {sr(srdw,4)}, {sr(S_T0)} offen lds")
            a(f"""s_add_u32 m0, m0, 1024
                  s_add_u32 {sr(S_T0)}, {sr(S_T0)}, 8192""")
        a(f"""s_cmp_lt_u32 m0, {dst + nrows*128}
              s_cbranch_scc1 {lbl}""")
    wodma("L_woa", S_WOA, 0, 512, 0)
    wodma("L_wob0", S_WOB, 0, 256, L_HI)
    a("s_waitcnt vmcnt(0)")
    stamp(17)
    a("s_barrier")
    wodma("L_wob1", S_WOB, 256, 256, 65536)
    a("s_waitcnt vmcnt(0)")
    if ts:
        stamp(18)
        ts_out()
    a("""s_barrier
         s_endpgm""")

    a.label("L_loader")
    a.vm = []
    LV = [16, 20, 24]
    SO = [57, 58, 59, 60]
    SXO, SXM = [61, 62, 63], [64, 65, 66]
    a(f"""s_setprio 3
          v_lshrrev_b32 {vr(V_T0)}, 1, {vr(V_LANE)}
          v_and_b32 {vr(V_T0)}, 3, {vr(V_T0)}
          v_bfe_u32 {vr(V_T1)}, {vr(V_LANE)}, 4, 1
          v_xor_b32 {vr(V_T0)}, {vr(V_T0)}, {vr(V_T1)}
          v_lshlrev_b32 {vr(V_T0)}, 5, {vr(V_T0)}
          v_and_b32 {vr(V_T1)}, 1, {vr(V_LANE)}
          v_lshl_add_u32 {vr(V_T0)}, {vr(V_T1)}, 4, {vr(V_T0)}
          v_lshrrev_b32 {vr(V_T1)}, 3, {vr(V_LANE)}
          v_lshl_add_u32 {vr(LV[0])}, {vr(V_T1)}, 10, {vr(V_T0)}
          v_mul_u32_u24 {vr(V_T1)}, 3072, {vr(V_T1)}
          v_add_u32 {vr(LV[2])}, {vr(V_T1)}, {vr(V_T0)}
          v_xor_b32 {vr(LV[1])}, 64, {vr(LV[2])}""")
    for rg in range(1, 4):
        a(f"""v_add_u32 {vr(LV[0]+rg)}, {rg*(8192-1024)}, {vr(LV[0])}
              v_add_u32 {vr(LV[1]+rg)}, {rg*(24576-1024)}, {vr(LV[1])}
              v_add_u32 {vr(LV[2]+rg)}, {rg*(24576-1024)}, {vr(LV[2])}""")
    a(f"""s_lshl_b32 {sr(SO[0])}, {sr(S_HG)}, 7
          s_mov_b32 {sr(SO[1])}, {sr(SO[0])}
          s_add_u32 {sr(SO[2])}, {sr(SO[0])}, 1024
          s_add_u32 {sr(SO[3])}, {sr(SO[0])}, 2048
          s_waitcnt lgkmcnt(0)""")
    srd(S_W, 8, 0x80000)
    srd(S_WJ, 2, 0x180000)
    def lw(c):
        for m in range(4):
            a(f"s_mov_b32 m0, {L_RING + (c % 4)*16384 + m*4096}")
            a("s_nop 0" if c == 0 else f"s_add_u32 {sr(SO[m])}, {sr(SO[m])}, {32768 if m == 0 else 98304}")
            for rg in range(4):
                a.vmem(f"buffer_load_dwordx4 {vr(LV[[0,1,2,1][m]]+rg)}, {sr(S_W if m == 0 else S_WJ,4)}, {sr(SO[m])} offen offset:{rg*1024} lds", f"w{c}")
    def lx(kb):
        for i in range(3):
            a(f"s_add_u32 m0, {sr(SXM[i])}, {kb*4096 - kb*64}")
            a("s_nop 0")
            a.vmem(f"buffer_load_dwordx4 {vr(V_XOFF)}, {sr(S_X,4)}, {sr(SXO[i])} offen offset:{kb*64} lds", f"x{kb}")
            a(f"s_add_u32 m0, {sr(SXM[i])}, {(kb+1)*4096 - (kb+1)*64}")
            a("s_nop 0")
            a.vmem(f"buffer_load_dwordx4 {vr(V_XOFF)}, {sr(S_X,4)}, {sr(SXO[i])} offen offset:{(kb+1)*64} lds", f"x{kb}")
    lw(0)
    a(f"""s_mov_b32 {sr(S_X)}, {sr(S_KA+0)}
          s_mov_b32 {sr(S_X+1)}, {sr(S_KA+1)}""")
    for i in range(3):
        a(f"""s_add_u32 {sr(S_T3)}, {sr(S_RGJ)}, {i+1}
              s_and_b32 {sr(S_T3)}, {sr(S_T3)}, 3
              s_lshl_b32 {sr(S_T2)}, {sr(S_T3)}, 10
              s_add_u32 {sr(SXM[i])}, {sr(S_T2)}, {L_X}
              s_lshl_b32 {sr(S_T2)}, {sr(S_T3)}, 14
              s_add_u32 {sr(SXO[i])}, {sr(S_T2)}, {sr(S_T0)}""")
    NPRE = opts.get("npre", 2)
    for c in range(1, NPRE): lw(c)
    nxt = NPRE
    XAT = {2: 8, 4: 10, 6: 12, 8: 14}
    for c in range(16):
        a.wait_vm(f"w{c}")
        assert f"x{c}" not in a.vm
        if opts.get("lst"): a(f"s_memtime s[100:101]\ns_waitcnt lgkmcnt(0)\nv_writelane_b32 v{V_STAMP}, s100, {1+c}")
        a("s_barrier")
        if opts.get("lst"): a(f"s_memtime s[100:101]\ns_waitcnt lgkmcnt(0)\nv_writelane_b32 v{V_STAMP}, s100, {33+c}")
        if c in XAT: lx(XAT[c])
        k = 0
        while nxt <= min(15, c + 3) and k < 2:
            lw(nxt); nxt += 1; k += 1
            assert len(a.vm) <= 63, len(a.vm)
    if opts.get("lst"):
        srd(S_WS, 22, WS_SIZE)
        ts_out()
    a("s_endpgm")

    head = open("cdna_kernels/" + NAME + ".s.ref").read().split("\n")
    hdr = [l for l in head if l.startswith(";") and "@launch" not in l and "Override" not in l and "grid=ceil" not in l]
    out = "\n".join(hdr) + f"\n; @launch grid=(256,1,1) block=(640,1,1) lds={LDS_SIZE}\n"
    out += f""".amdgcn_target "amdgcn-amd-amdhsa--gfx950"
.text
.globl {NAME}_kernel
.p2align 8
.type {NAME}_kernel,@function
"""
    out += a.text()
    out += f""".section .rodata,"a"
.p2align 6
.amdhsa_kernel {NAME}_kernel
  .amdhsa_next_free_vgpr {NVGPR}
  .amdhsa_next_free_sgpr 102
  .amdhsa_accum_offset {NVGPR}
  .amdhsa_group_segment_fixed_size 0
  .amdhsa_kernarg_size 96
  .amdhsa_user_sgpr_count 2
  .amdhsa_user_sgpr_kernarg_segment_ptr 1
  .amdhsa_system_sgpr_workgroup_id_x 1
.end_amdhsa_kernel
"""
    return out

if __name__ == "__main__":
    opts = {}
    outp = "cdna_kernels/" + NAME + ".s"
    for arg in sys.argv[1:]:
        if arg.startswith("-o"):
            outp = arg[2:]
        elif "=" in arg:
            k, v = arg.split("=")
            opts[k] = int(v)
        else:
            opts[arg] = True
    open(outp, "w").write(gen(opts))
    print("wrote", outp)
```

```python
import sys, math, struct

NAME = "gated_mix__linear_attn_block__grouped_kv_mqa__prompt"

def f2u(x):
    return struct.unpack("<I", struct.pack("<f", x))[0]

class Asm:
    def __init__(self):
        self.lines = []
        self.vm = []
    def __call__(self, s):
        for l in s.split("\n"):
            l = l.strip()
            if l:
                self.lines.append("    " + l)
    def label(self, l):
        self.lines.append(l + ":")
    def vmem(self, s, tag):
        self(s)
        self.vm.append(tag)
    def vm_n(self, tag):
        idx = max(i for i, t in enumerate(self.vm) if t == tag)
        return len(self.vm) - 1 - idx
    def drop_to(self, n):
        self.vm = self.vm[len(self.vm) - n:] if n else []
    def wait_vm(self, tag, extra=""):
        n = 0 if tag is None else self.vm_n(tag)
        self.drop_to(n)
        assert n <= 63
        self(f"s_waitcnt vmcnt({n}) {extra}".strip())
    def text(self):
        return "\n".join(self.lines) + "\n"

def vr(a, n=1):
    return f"v{a}" if n == 1 else f"v[{a}:{a+n-1}]"
def sr(a, n=1):
    return f"s{a}" if n == 1 else f"s[{a}:{a+n-1}]"

WS_E = 0x000000
WS_FKV = 0x000400
WS_FA = 0x001000
WS_FOA = 0x004000
WS_FOB = 0x00C000
WS_KV = 0x020000
WS_ACC = 0x040000
WS_G = 0x014000
WS_OA = 0x200000
WS_OB = 0x208000
WS_DBG1 = 0x600000
WS_DBG2 = 0x800000
WS_TS = 0xA00000
WS_SIZE = 0x1000000
L_MISC = 0
L_X = 32768
L_RING = 98304
L_HI = 131072
L_G = L_HI + 28672
L_GW = 31 * 1024
NSA = 8
LDS_SIZE = 163840
LOG2E = 1.4426950408889634
QSCALE = 0.25 * LOG2E
NVGPR = 168

S_TAG, S_QO, S_NS, S_RDY = 4, 5, 6, 7
S_X, S_W, S_WJ, S_FREE, S_FREE2, S_WOA, S_WOB, S_OUT, S_DBG, S_WS = 8, 12, 16, 20, 24, 28, 32, 36, 40, 44
S_WAVE, S_QB, S_HG, S_RT, S_HH = 48, 49, 50, 51, 52
S_T0, S_T1, S_T2, S_T3 = 53, 54, 55, 56
S_WOFF, S_WSTR8, S_WSTR32, S_M0W = 57, 58, 59, 60
S_SEG, S_SPIN, S_HEAD = 61, 62, 63
S_VMASK, S_RT32, S_RO32, S_SAVE = 64, 66, 67, 68
S_LOG2E, S_QS, S_EPS, S_ONES = 70, 72, 20, 21
S_RGJ, S_ROT = 22, 23
S_XMASK = 24
S_TS = 74
S_KA = 76

def gen(opts):
    ts = opts.get("ts", False)
    dbg = opts.get("dbg", False)
    a = Asm()
    V_STAMP = NVGPR - 1

    def stamp(i):
        if "dly" in opts:
            if i == 0: a("s_memrealtime s[74:75]")
            if i == opts["dly"]: a("s_memrealtime s[100:101]")
        if not ts: return
        a(f"""s_memrealtime {sr(S_TS,2)}
              s_memtime s[100:101]
              s_waitcnt lgkmcnt(0)
              v_writelane_b32 v{V_STAMP}, {sr(S_TS)}, {i}
              v_writelane_b32 v{V_STAMP}, s100, {32+i}""")

    V_LANE = 1
    V_T0, V_T1, V_T2, V_T3 = 2, 3, 4, 5
    V_XOFF, V_WOFF = 6, 7
    V_XA0, V_XA1, V_WA = 8, 9, 10
    V_L16, V_G, V_IDX, V_KA, V_VA = 11, 12, 13, 14, 15
    V_QF, V_PQ = 16, 20
    V_ACCQ, V_ACCKV = 24, 40
    V_FB = [56, 80]
    V_O, V_C, V_KF = 104, 120, 136
    V_VF = [140, 148]
    V_L4, V_FLG, V_TAG, V_WOA0, V_WOA1 = 156, 157, 158, 159, 160
    V_PK = 162
    V_S = [24, 40]
    V_AC, V_OA = 56, 72
    V_FA, V_FBB, V_WO = 56, 120, 88
    V_OUT = [24, 40]

    def srd(s, ka, size):
        a(f"""s_mov_b32 {sr(s)}, {sr(S_KA+ka)}
              s_mov_b32 {sr(s+1)}, {sr(S_KA+ka+1)}
              s_mov_b32 {sr(s+2)}, {hex(size)}
              s_mov_b32 {sr(s+3)}, 0x20000""")
    def flag_store(soff):
        a(f"""s_mov_b64 exec, 1
              buffer_store_dword {vr(V_TAG)}, {vr(V_L4)}, {sr(S_WS,4)}, {sr(soff)} offen sc1
              s_mov_b64 exec, -1""")
    def flag_load(soff, n, tag=None):
        a(f"s_mov_b64 exec, {hex((1 << n) - 1)}" if n <= 4 else f"s_mov_b32 exec_lo, {hex((1 << n) - 1)}\ns_mov_b32 exec_hi, 0")
        s = f"buffer_load_dword {vr(V_FLG)}, {vr(V_L4)}, {sr(S_WS,4)}, {sr(soff)} offen sc1"
        if tag: a.vmem(s, tag)
        else: a(s)
        a("s_mov_b64 exec, -1")
    def flag_check(n):
        a(f"""v_cmp_ne_u32 vcc, {vr(V_FLG)}, {vr(V_TAG)}
              s_and_b32 {sr(S_SAVE)}, vcc_lo, {hex((1 << n) - 1)}
              s_cmp_eq_u32 {sr(S_SAVE)}, 0""")
    def flag_spin(lbl, soff, n):
        a(f"s_mov_b32 {sr(S_SPIN)}, 0")
        a.label(lbl + "_loop")
        flag_check(n)
        a(f"""s_cbranch_scc1 {lbl}_ok
              s_add_u32 {sr(S_SPIN)}, {sr(S_SPIN)}, 1
              s_cmp_ge_u32 {sr(S_SPIN)}, 100000
              s_cbranch_scc1 {lbl}_ok""")
        flag_load(soff, n)
        a(f"""s_waitcnt vmcnt(0)
              s_branch {lbl}_loop""")
        a.label(lbl + "_ok")
    def tag_setup():
        a(f"""s_waitcnt lgkmcnt(0)
              s_mul_i32 {sr(S_TAG)}, {sr(S_TAG)}, 0x9e3779b1
              s_add_u32 {sr(S_TAG)}, {sr(S_TAG)}, 0x7f4a7c15
              v_mov_b32 {vr(V_TAG)}, {sr(S_TAG)}""")

    a.label(f"{NAME}_kernel")
    a(f"""s_cmp_ge_u32 s2, 256
          s_cbranch_scc1 L_end
          s_load_dwordx16 {sr(S_KA,16)}, s[0:1], 0
          s_load_dwordx8 {sr(S_KA+16,8)}, s[0:1], 64
          v_and_b32 {vr(V_LANE)}, 63, v0
          v_lshrrev_b32 {vr(V_T0)}, 6, v0
          s_and_b32 {sr(S_T0)}, s2, 1
          v_readfirstlane_b32 {sr(S_WAVE)}, {vr(V_T0)}
          s_lshl_b32 {sr(S_T0)}, {sr(S_T0)}, 2
          s_bfe_u32 {sr(S_T1)}, s2, 0x20003
          s_add_u32 {sr(S_HG)}, {sr(S_T0)}, {sr(S_T1)}
          s_bfe_u32 {sr(S_T1)}, s2, 0x20001
          s_lshl_b32 {sr(S_T1)}, {sr(S_T1)}, 3
          s_lshr_b32 {sr(S_QB)}, s2, 5
          s_add_u32 {sr(S_QB)}, {sr(S_QB)}, {sr(S_T1)}
          s_lshr_b32 {sr(S_RGJ)}, {sr(S_HG)}, 1""")
    stamp(0)
    a(f"""v_lshrrev_b32 {vr(V_T0)}, 4, {vr(V_LANE)}
          v_xor_b32 {vr(V_T0)}, {vr(V_T0)}, {vr(V_LANE)}
          v_and_b32 {vr(V_T0)}, 3, {vr(V_T0)}
          v_lshlrev_b32 {vr(V_T0)}, 4, {vr(V_T0)}
          v_lshrrev_b32 {vr(V_T1)}, 2, {vr(V_LANE)}
          v_lshl_add_u32 {vr(V_XOFF)}, {vr(V_T1)}, 10, {vr(V_T0)}
          v_lshlrev_b32 {vr(V_L16)}, 4, {vr(V_LANE)}
          v_lshlrev_b32 {vr(V_L4)}, 2, {vr(V_LANE)}
          s_mov_b32 {sr(S_X+2)}, 0x200000
          s_mov_b32 {sr(S_X+3)}, 0x20000
          s_lshl_b32 {sr(S_T0)}, {sr(S_QB)}, 16
          s_cmp_eq_u32 {sr(S_WAVE)}, 8
          s_cbranch_scc1 L_helper
          s_cmp_eq_u32 {sr(S_WAVE)}, 9
          s_cbranch_scc1 L_loader
          s_and_b32 {sr(S_RT)}, {sr(S_WAVE)}, 1
          s_lshr_b32 {sr(S_HH)}, {sr(S_WAVE)}, 1""")
    S_XOFF, S_XM0 = S_SEG, S_SPIN
    a(f"""s_and_b32 {sr(S_T1)}, {sr(S_WAVE)}, 3
          s_lshr_b32 {sr(S_T2)}, {sr(S_WAVE)}, 2
          s_lshl_b32 {sr(S_T3)}, {sr(S_T1)}, 14
          s_add_u32 {sr(S_XOFF)}, {sr(S_T0)}, {sr(S_T3)}
          s_lshl_b32 {sr(S_T3)}, {sr(S_T2)}, 7
          s_add_u32 {sr(S_XOFF)}, {sr(S_XOFF)}, {sr(S_T3)}
          s_lshl_b32 {sr(S_XM0)}, {sr(S_T1)}, 10
          s_lshl_b32 {sr(S_T3)}, {sr(S_T2)}, 13
          s_add_u32 {sr(S_XM0)}, {sr(S_XM0)}, {sr(S_T3)}
          s_cmp_eq_u32 {sr(S_T1)}, {sr(S_RGJ)}
          s_cselect_b64 {sr(S_XMASK,2)}, 1, -1
          s_waitcnt lgkmcnt(0)
          s_mov_b32 {sr(S_X)}, {sr(S_KA+0)}
          s_mov_b32 {sr(S_X+1)}, {sr(S_KA+1)}
          s_load_dword {sr(S_TAG)}, {sr(S_KA+22,2)}, {WS_E}""")
    def xdma(r):
        a(f"s_add_u32 m0, {sr(S_XM0)}, {L_X + r*16384 - r*256}")
        a(f"s_mov_b64 exec, {sr(S_XMASK,2)}")
        a.vmem(f"buffer_load_dwordx4 {vr(V_XOFF)}, {sr(S_X,4)}, {sr(S_XOFF)} offen offset:{r*256} lds", f"x{r}")
        a(f"s_add_u32 m0, {sr(S_XM0)}, {L_X + r*16384 + 4096 - r*256 - 64}")
        a("s_nop 0")
        a.vmem(f"buffer_load_dwordx4 {vr(V_XOFF)}, {sr(S_X,4)}, {sr(S_XOFF)} offen offset:{r*256 + 64} lds", f"x{r}")
        a("s_mov_b64 exec, -1")
    PF = opts.get("pf", 1)
    if PF:
        a(f"""s_and_b32 {sr(S_T1)}, {sr(S_WAVE)}, 3
              s_cmp_eq_u32 {sr(S_T1)}, 0
              s_cselect_b32 {sr(S_W)}, {sr(S_KA+8)}, {sr(S_KA+2)}
              s_cselect_b32 {sr(S_W+1)}, {sr(S_KA+9)}, {sr(S_KA+3)}
              s_cselect_b32 {sr(S_T3)}, 1, 3
              s_lshl_b32 {sr(S_W+2)}, {sr(S_T3)}, 19
              s_mov_b32 {sr(S_W+3)}, 0x20000
              s_lshl_b32 {sr(S_T3)}, {sr(S_T3)}, 10
              v_mul_u32_u24 {vr(V_T2)}, {sr(S_T3)}, {vr(V_T1)}
              v_and_b32 {vr(V_T3)}, 3, {vr(V_LANE)}
              v_lshl_add_u32 {vr(V_T2)}, {vr(V_T3)}, 7, {vr(V_T2)}
              s_lshr_b32 {sr(S_T2)}, s2, 3
              s_lshl_b32 {sr(S_T2)}, {sr(S_T2)}, 2
              s_bfe_u32 {sr(S_RDY)}, s2, 0x20001
              s_add_u32 {sr(S_T2)}, {sr(S_T2)}, {sr(S_RDY)}
              s_lshl_b32 {sr(S_T2)}, {sr(S_T2)}, 2
              s_mul_i32 {sr(S_T2)}, {sr(S_T2)}, {sr(S_T3)}
              s_max_u32 {sr(S_T1)}, {sr(S_T1)}, 1
              s_sub_u32 {sr(S_T1)}, {sr(S_T1)}, 1
              s_lshl_b32 {sr(S_T1)}, {sr(S_T1)}, 10
              s_add_u32 {sr(S_T2)}, {sr(S_T2)}, {sr(S_T1)}
              s_and_b32 {sr(S_T1)}, s2, 1
              s_lshl_b32 {sr(S_T1)}, {sr(S_T1)}, 9
              s_add_u32 {sr(S_T2)}, {sr(S_T2)}, {sr(S_T1)}
              s_lshr_b32 {sr(S_T1)}, {sr(S_WAVE)}, 2
              s_lshl_b32 {sr(S_T1)}, {sr(S_T1)}, 6
              s_add_u32 {sr(S_T2)}, {sr(S_T2)}, {sr(S_T1)}""")
    if opts.get("pffirst", 0) == 0: xdma(0)
    if PF:
        if PF == 1:
            a(f"""s_cmp_lt_u32 {sr(S_WAVE)}, 4
                  s_cselect_b32 exec_lo, 0xffff, 1
                  s_mov_b32 exec_hi, 0""")
        else:
            a("s_mov_b64 exec, 0xffff")
        a.vmem(f"buffer_load_dword {vr(V_FLG)}, {vr(V_T2)}, {sr(S_W,4)}, {sr(S_T2)} offen", "pf")
        a(f"""s_mov_b64 exec, -1
              v_lshlrev_b32 {vr(V_T2)}, 6, {vr(V_LANE)}
              s_lshl_b32 {sr(S_T1)}, {sr(S_HG)}, 13
              s_lshl_b32 {sr(S_T2)}, {sr(S_WAVE)}, 10
              s_add_u32 {sr(S_T1)}, {sr(S_T1)}, {sr(S_T2)}
              s_add_u32 {sr(S_T1)}, {sr(S_T1)}, {sr(S_T0)}
              s_mov_b64 exec, {'0x55' if PF == 1 else '0xff'}""")
        a.vmem(f"buffer_load_dword {vr(V_FLG)}, {vr(V_T2)}, {sr(S_X,4)}, {sr(S_T1)} offen offset:512", "pf")
        a("s_mov_b64 exec, -1")
    if opts.get("pffirst", 0): xdma(0)
    srd(S_WS, 22, WS_SIZE)
    srd(S_OUT, 18, 0x200000)
    if ts: srd(S_DBG, 20, 256)
    def omap():
        a(f"""s_and_b32 {sr(S_QO)}, s2, 7
              s_lshl_b32 {sr(S_QO)}, {sr(S_QO)}, 2
              s_bfe_u32 {sr(S_T0)}, s2, 0x20003
              s_add_u32 {sr(S_QO)}, {sr(S_QO)}, {sr(S_T0)}
              s_lshr_b32 {sr(S_NS)}, s2, 5""")
    omap()
    a(f"""s_lshl_b32 {sr(S_HEAD)}, {sr(S_HG)}, 2
          s_add_u32 {sr(S_HEAD)}, {sr(S_HEAD)}, {sr(S_HH)}
          s_lshl_b32 {sr(S_RT32)}, {sr(S_QB)}, 1
          s_add_u32 {sr(S_RT32)}, {sr(S_RT32)}, {sr(S_RT)}
          s_lshl_b32 {sr(S_RO32)}, {sr(S_QO)}, 1
          s_add_u32 {sr(S_RO32)}, {sr(S_RO32)}, {sr(S_RT)}
          s_mov_b32 {sr(S_VMASK)}, 0xffff
          s_mov_b32 {sr(S_VMASK+1)}, 0xffff
          s_mov_b32 {sr(S_LOG2E)}, {hex(f2u(LOG2E))}
          s_mov_b32 {sr(S_LOG2E+1)}, {hex(f2u(LOG2E))}
          s_mov_b32 {sr(S_EPS)}, {hex(f2u(1e-6))}
          s_mov_b32 {sr(S_QS)}, {hex(f2u(QSCALE))}
          s_mov_b32 {sr(S_QS+1)}, {hex(f2u(QSCALE))}
          s_mov_b32 {sr(S_ONES)}, 0x3f803f80
          v_and_b32 {vr(V_T0)}, 31, {vr(V_LANE)}
          v_lshrrev_b32 {vr(V_T1)}, 5, {vr(V_LANE)}
          v_bfe_u32 {vr(V_T2)}, {vr(V_LANE)}, 2, 2
          v_xor_b32 {vr(V_T2)}, {vr(V_T2)}, {vr(V_T1)}
          v_lshlrev_b32 {vr(V_T2)}, 4, {vr(V_T2)}
          v_lshl_add_u32 {vr(V_T3)}, {vr(V_T0)}, 6, {vr(V_T2)}
          s_lshl_b32 {sr(S_T0)}, {sr(S_RT)}, 11
          s_add_u32 {sr(S_T0)}, {sr(S_T0)}, {L_X}
          v_add_u32 {vr(V_XA0)}, {sr(S_T0)}, {vr(V_T3)}
          v_xor_b32 {vr(V_XA1)}, 32, {vr(V_XA0)}
          v_bfe_u32 {vr(V_T0)}, {vr(V_LANE)}, 4, 1
          v_bfe_u32 {vr(V_T2)}, {vr(V_LANE)}, 3, 2
          v_xor_b32 {vr(V_T2)}, {sr(S_HH)}, {vr(V_T2)}
          v_lshlrev_b32 {vr(V_T2)}, 5, {vr(V_T2)}
          v_lshl_add_u32 {vr(V_T2)}, {vr(V_T0)}, 12, {vr(V_T2)}
          v_lshl_add_u32 {vr(V_T2)}, {vr(V_T1)}, 10, {vr(V_T2)}
          v_bfe_u32 {vr(V_T0)}, {vr(V_LANE)}, 2, 2
          v_lshl_add_u32 {vr(V_T2)}, {vr(V_T0)}, 7, {vr(V_T2)}
          v_and_b32 {vr(V_T0)}, 3, {vr(V_LANE)}
          v_lshl_add_u32 {vr(V_T2)}, {vr(V_T0)}, 3, {vr(V_T2)}
          v_add_u32 {vr(V_WA)}, {L_RING}, {vr(V_T2)}""")
    xdma(1)
    for i in range(8):
        a(f"v_mov_b32 {vr(V_ACCQ+i)}, 0")
        a(f"v_mov_b32 {vr(V_ACCQ+8+i)}, {sr(S_EPS)}")
    a(f"""v_mov_b32 {vr(V_T0)}, {sr(S_EPS)}
          v_cndmask_b32 {vr(V_T0)}, 0, {vr(V_T0)}, {sr(S_VMASK,2)}""")
    for i in range(16):
        a(f"v_mov_b32 {vr(V_ACCKV+i)}, {vr(V_T0)}")
    for i in range(16):
        a(f"v_mov_b32 {vr(V_O+i)}, 0")
        a(f"v_mov_b32 {vr(V_VF[0]+i)}, {sr(S_ONES)}")
    a(f"""v_mov_b32 {vr(V_IDX)}, 0xdddd
          v_mov_b32 {vr(V_KA)}, {vr(V_L16)}
          v_and_b32 {vr(V_T3)}, 15, {vr(V_LANE)}
          v_lshlrev_b32 {vr(V_T3)}, 4, {vr(V_T3)}
          v_lshl_add_u32 {vr(V_VA)}, {vr(V_T1)}, 8, {vr(V_T3)}""")
    tag_setup()
    stamp(1)

    def reads(c):
        fb = V_FB[c % 2]
        slot = c % 4
        r = [f"ds_read_b128 {vr(fb,4)}, {vr(V_XA0)} offset:{c*4096}"]
        for T in range(2):
            for u in range(2):
                r.append(f"ds_read_b64_tr_b16 {vr(fb+8+T*8+2*u,2)}, {vr(V_WA)} offset:{slot*16384 + T*8192 + u*512}")
        r.append(f"ds_read_b128 {vr(fb+4,4)}, {vr(V_XA1)} offset:{c*4096}")
        for T in range(2):
            for u in range(2):
                r.append(f"ds_read_b64_tr_b16 {vr(fb+8+T*8+4+2*u,2)}, {vr(V_WA)} offset:{slot*16384 + T*8192 + 2048 + u*512}")
        return r
    def mfmas(c):
        fb = V_FB[c % 2]
        r = []
        for p in range(2):
            r.append(f"v_mfma_f32_32x32x16_bf16 {vr(V_ACCKV,16)}, {vr(fb+4*p,4)}, {vr(fb+16+4*p,4)}, {vr(V_ACCKV,16)}")
            r.append(f"v_mfma_f32_32x32x16_bf16 {vr(V_ACCQ,16)}, {vr(fb+8+4*p,4)}, {vr(fb+4*p,4)}, {vr(V_ACCQ,16)}")
        return r
    for c in range(16):
        if c in (0, 4):
            a.wait_vm(f"x{c//4}", "lgkmcnt(0)")
        else:
            a("s_waitcnt lgkmcnt(0)")
        a("s_barrier")
        if c == 0:
            for r in reads(c): a(r)
        else:
            R_, M_ = reads(c), mfmas(c - 1)
            a(M_[0])
            for r in R_[:4]: a(r)
            a(M_[1])
            for r in R_[4:7]: a(r)
            a(M_[2])
            for r in R_[7:]: a(r)
            a(M_[3])
    a("s_waitcnt lgkmcnt(0)")
    for m in mfmas(15): a(m)
    stamp(2)
    E = V_FB[0]
    def phi(src, n, tmp):
        for i in range(0, n, 2):
            a(f"v_pk_mul_f32 {vr(tmp+i,2)}, {sr(S_LOG2E,2)}, {vr(src+i,2)}")
        for i in range(n):
            a(f"v_exp_f32 {vr(tmp+i)}, {vr(tmp+i)} clamp")
        for i in range(n):
            a(f"v_max_f32 {vr(src+i)}, {sr(S_EPS)}, {vr(src+i)}")
        for i in range(0, n, 2):
            a(f"v_pk_add_f32 {vr(src+i,2)}, {vr(src+i,2)}, {vr(tmp+i,2)}")
    a(f"""s_lshl_b32 {sr(S_T0)}, {sr(S_WAVE)}, 11
          s_add_u32 {sr(S_T0)}, {sr(S_T0)}, {L_HI}
          v_lshrrev_b32 {vr(V_T0)}, 4, {vr(V_LANE)}
          v_lshlrev_b32 {vr(V_T0)}, 4, {vr(V_T0)}
          v_add_u32 {vr(V_XA1)}, {sr(S_T0)}, {vr(V_T0)}
          v_and_b32 {vr(V_T0)}, 15, {vr(V_LANE)}
          v_lshl_add_u32 {vr(V_XA0)}, {vr(V_T0)}, 6, {vr(V_XA1)}
          s_nop 4""")
    for i in range(8):
        a(f"v_permlane16_swap_b32 {vr(V_ACCKV+i)}, {vr(V_ACCKV+8+i)}")
    PKF, VFR, DKV, DZ = E + 8, E + 12, E + 16, E + 20
    a("s_nop 0")
    phi(V_ACCKV, 8, E)
    for i in range(4):
        a(f"v_cvt_pk_bf16_f32 {vr(VFR+i)}, {vr(V_ACCKV+8+2*i)}, {vr(V_ACCKV+8+2*i+1)}")
    for i in range(4):
        a(f"v_cvt_pk_bf16_f32 {vr(PKF+i)}, {vr(V_ACCKV+2*i)}, {vr(V_ACCKV+2*i+1)}")
    for i in range(0, 8, 2):
        a(f"v_pk_mul_f32 {vr(V_ACCQ+i,2)}, {sr(S_QS,2)}, {vr(V_ACCQ+i,2)}")
    a(f"v_mfma_f32_16x16x32_bf16 {vr(DKV,4)}, {vr(PKF,4)}, {vr(VFR,4)}, 0")
    a(f"v_mfma_f32_16x16x32_bf16 {vr(DZ,4)}, {vr(PKF,4)}, {vr(V_VF[0],4)}, 0")
    for i in range(4):
        a(f"v_cvt_pk_bf16_f32 {vr(V_QF+i)}, {vr(V_ACCQ+2*i)}, {vr(V_ACCQ+2*i+1)}")
    phi(V_ACCQ + 8, 8, E)
    for i in range(4):
        a(f"v_cvt_pk_bf16_f32 {vr(V_PQ+i)}, {vr(V_ACCQ+8+2*i)}, {vr(V_ACCQ+8+2*i+1)}")
    a(f"""ds_write_b128 {vr(V_XA0)}, {vr(DKV,4)}
          ds_write_b128 {vr(V_XA1)}, {vr(DZ,4)} offset:1024
          s_waitcnt lgkmcnt(0)""")
    stamp(3)
    a("s_barrier")
    stamp(4)
    a(f"""ds_read_b128 {vr(V_KF,4)}, {vr(V_KA)}
          s_mov_b64 exec, {sr(S_VMASK,2)}
          ds_read_b128 {vr(V_VF[0],4)}, {vr(V_VA)} offset:1024
          ds_read_b128 {vr(V_VF[0]+4,4)}, {vr(V_VA)} offset:1536
          ds_read_b128 {vr(V_VF[1],4)}, {vr(V_VA)} offset:{2048+1024}
          ds_read_b128 {vr(V_VF[1]+4,4)}, {vr(V_VA)} offset:{2048+1536}
          s_mov_b64 exec, -1
          s_waitcnt lgkmcnt(4)
          v_mfma_f32_32x32x16_bf16 {vr(V_S[0],16)}, {vr(V_KF,4)}, {vr(V_QF,4)}, 0
          ds_read_b128 {vr(V_KF,4)}, {vr(V_KA)} offset:2048""")
    if dbg:
        a(f"""s_lshl_b32 {sr(S_T0)}, {sr(S_RT32)}, 5
              s_add_u32 {sr(S_T0)}, {sr(S_T0)}, {sr(S_HEAD)}
              s_lshl_b32 {sr(S_T0)}, {sr(S_T0)}, 10
              s_add_u32 {sr(S_T1)}, {sr(S_T0)}, {WS_DBG1}
              buffer_store_dwordx4 {vr(V_QF,4)}, {vr(V_L16)}, {sr(S_WS,4)}, {sr(S_T1)} offen
              s_add_u32 {sr(S_T1)}, {sr(S_T0)}, {WS_DBG2}
              buffer_store_dwordx4 {vr(V_PQ,4)}, {vr(V_L16)}, {sr(S_WS,4)}, {sr(S_T1)} offen""")
    S0 = V_S[0]
    a(f"""s_mov_b32 {sr(S_SEG)}, 0
          s_nop 9
          v_max3_f32 {vr(V_T0)}, {vr(S0)}, {vr(S0+1)}, {vr(S0+2)}
          v_max3_f32 {vr(V_T1)}, {vr(S0+3)}, {vr(S0+4)}, {vr(S0+5)}
          v_max3_f32 {vr(V_T2)}, {vr(S0+6)}, {vr(S0+7)}, {vr(S0+8)}
          v_max3_f32 {vr(V_T3)}, {vr(S0+9)}, {vr(S0+10)}, {vr(S0+11)}
          v_max3_f32 {vr(V_T0)}, {vr(V_T0)}, {vr(S0+12)}, {vr(S0+13)}
          v_max3_f32 {vr(V_T1)}, {vr(V_T1)}, {vr(S0+14)}, {vr(S0+15)}
          v_max3_f32 {vr(V_T0)}, {vr(V_T0)}, {vr(V_T1)}, {vr(V_T2)}
          v_max_f32 {vr(V_T0)}, {vr(V_T0)}, {vr(V_T3)}
          v_mov_b32 {vr(V_T1)}, {vr(V_T0)}
          s_nop 1
          v_permlane32_swap_b32 {vr(V_T0)}, {vr(V_T1)}
          s_nop 1
          v_max_f32 {vr(V_T0)}, {vr(V_T0)}, {vr(V_T1)}
          v_sub_f32 {vr(V_T2)}, 0, {vr(V_T0)}
          v_sub_f32 {vr(V_T3)}, 0, {vr(V_T0)}""")
    for i in range(0, 16, 2):
        a(f"v_pk_add_f32 {vr(S0+i,2)}, {vr(S0+i,2)}, {vr(V_T2,2)}")
    for i in range(0, 16, 2):
        a(f"v_pk_mov_b32 {vr(V_C+i,2)}, {vr(V_T2,2)}, {vr(V_T2,2)} op_sel:[0,1]")
    a(f"""v_exp_f32 {vr(S0)}, {vr(S0)}
          v_exp_f32 {vr(S0+1)}, {vr(S0+1)}
          s_waitcnt lgkmcnt(0)""")
    stamp(5)

    def segment(extra=None):
        last = extra is not None
        NT = 10 if last else 8
        ramp = {0: 3, 6: 2, 8: 1, 9: 0} if last else {0: 3, 4: 2, 6: 1, 7: 0}
        for t in range(NT):
            cur, nxt = V_S[t % 2], V_S[(t + 1) % 2]
            vf = V_VF[t % 2]
            ex = lambda r: a(f"v_exp_f32 {vr(r)}, {vr(r)}")
            if t == 2 and not last: a.label("L_att2")
            if t in ramp: a(f"s_setprio {ramp[t]}")
            for i in (2, 3, 4, 5): ex(cur + i)
            if t < 9:
                a("s_waitcnt lgkmcnt(2)")
                a(f"v_mfma_f32_32x32x16_bf16 {vr(nxt,16)}, {vr(V_KF,4)}, {vr(V_QF,4)}, {vr(V_C,16)}")
            else:
                a("s_waitcnt lgkmcnt(0)")
            if t < 8:
                a(f"ds_read_b128 {vr(V_KF,4)}, {vr(V_KA)} offset:{t*2048}")
                if extra: extra(t)
            elif t == 8:
                a("s_nop 0")
            for i in (6, 7, 8, 9, 10): ex(cur + i)
            a(f"v_smfmac_f32_32x32x32_bf16 {vr(V_O,16)}, {vr(vf,4)}, {vr(cur,8)}, {vr(V_IDX)}")
            for i in (11, 12, 13, 14, 15): ex(cur + i)
            if t < 9:
                ex(nxt); ex(nxt + 1)
            else:
                a("s_nop 1")
            a(f"v_smfmac_f32_32x32x32_bf16 {vr(V_O,16)}, {vr(vf+4,4)}, {vr(cur+8,8)}, {vr(V_IDX)}")
            if t < 8:
                a(f"""s_mov_b64 exec, {sr(S_VMASK,2)}
                      ds_read_b128 {vr(vf,4)}, {vr(V_VA)} offset:{t*2048+1024}
                      ds_read_b128 {vr(vf+4,4)}, {vr(V_VA)} offset:{t*2048+1536}
                      s_mov_b64 exec, -1""")
    a("""s_setprio 3
         s_branch L_att2""")
    a.lines.append("    .p2align 6")
    a.label("L_att")
    segment()
    a(f"""v_add_u32 {vr(V_KA)}, 0x4000, {vr(V_KA)}
          v_add_u32 {vr(V_VA)}, 0x4000, {vr(V_VA)}
          s_add_u32 {sr(S_SEG)}, {sr(S_SEG)}, 1
          s_cmp_eq_u32 {sr(S_SEG)}, 2
          s_cbranch_scc1 L_att""")
    for h in (1, 3, 4, 5, 6):
        a(f"""s_cmp_eq_u32 {sr(S_SEG)}, {h}
              s_cbranch_scc1 L_hook{h}""")
    a("s_branch L_hook7")

    def ooff(dst, base):
        a(f"""s_lshl_b32 {sr(dst)}, {sr(S_RT32)}, 6
              s_add_u32 {sr(dst)}, {sr(dst)}, {sr(S_HEAD)}
              s_lshl_b32 {sr(dst)}, {sr(dst)}, 10
              s_add_u32 {sr(dst)}, {sr(dst)}, {base}""")
    def osrc(base):
        a(f"""s_lshl_b32 {sr(S_T0)}, {sr(S_RO32)}, 3
              s_add_u32 {sr(S_T0)}, {sr(S_T0)}, {sr(S_HH)}
              s_lshl_b32 {sr(S_T0)}, {sr(S_T0)}, 13
              s_add_u32 {sr(S_T0)}, {sr(S_T0)}, {base}
              s_add_u32 {sr(S_T1)}, {sr(S_T0)}, 4096""")
    def oload(i, dst, tag):
        a.vmem(f"buffer_load_dwordx4 {vr(dst+4*i,4)}, {vr(V_L16)}, {sr(S_WS,4)}, {sr(S_T0 if i < 4 else S_T1)} offen offset:{(i%4)*1024} sc1", f"{tag}{i}")
    def my_oflag(dst, base):
        a(f"""s_lshl_b32 {sr(dst)}, {sr(S_RT32)}, 2
              s_lshr_b32 {sr(S_T2)}, {sr(S_HEAD)}, 3
              s_add_u32 {sr(dst)}, {sr(dst)}, {sr(S_T2)}
              s_lshl_b32 {sr(dst)}, {sr(dst)}, 7
              s_and_b32 {sr(S_T2)}, {sr(S_HEAD)}, 7
              s_lshl_b32 {sr(S_T2)}, {sr(S_T2)}, 2
              s_add_u32 {sr(dst)}, {sr(dst)}, {sr(S_T2)}
              s_add_u32 {sr(dst)}, {sr(dst)}, {base}""")
    def in_oflag(dst, base):
        a(f"""s_lshl_b32 {sr(dst)}, {sr(S_RO32)}, 2
              s_add_u32 {sr(dst)}, {sr(dst)}, {sr(S_HH)}
              s_lshl_b32 {sr(dst)}, {sr(dst)}, 7
              s_add_u32 {sr(dst)}, {sr(dst)}, {base}""")

    a.label("L_hook1")
    stamp(11)
    a(f"""v_and_b32 {vr(V_T0)}, 0x3c, {vr(V_L4)}
          v_bfe_u32 {vr(V_T1)}, {vr(V_LANE)}, 4, 1
          v_lshl_add_u32 {vr(V_T0)}, {vr(V_T1)}, 7, {vr(V_T0)}
          s_lshl_b32 {sr(S_T0)}, {sr(S_RT32)}, 8
          s_add_u32 {sr(S_T0)}, {sr(S_T0)}, {WS_G}
          s_barrier
          buffer_load_dword {vr(V_G)}, {vr(V_T0)}, {sr(S_WS,4)}, {sr(S_T0)} offen sc1
          v_mov_b32 {vr(V_PK)}, -1
          v_mov_b32 {vr(V_PK+1)}, -1
          v_mov_b32 {vr(V_PK+2)}, -1
          v_mov_b32 {vr(V_PK+3)}, -1""")
    ooff(S_RDY, WS_OB)
    a(f"buffer_store_dwordx4 {vr(V_PK,4)}, {vr(V_L16)}, {sr(S_WS,4)}, {sr(S_RDY)} offen sc1")
    stamp(12)
    a("s_branch L_att")

    a.label("L_hook3")
    stamp(13)
    a.vm = []
    a(f"""v_and_b32 {vr(V_T0)}, 15, {vr(V_LANE)}
          v_cndmask_b32 {vr(V_T0)}, {vr(V_T0)}, 16, {sr(S_VMASK,2)}
          v_lshrrev_b32 {vr(V_T1)}, 5, {vr(V_LANE)}
          v_lshlrev_b32 {vr(V_T1)}, 4, {vr(V_T1)}
          v_lshl_add_u32 {vr(V_T0)}, {vr(V_T0)}, 6, {vr(V_T1)}
          s_lshl_b32 {sr(S_T0)}, {sr(S_HEAD)}, 11
          s_add_u32 {sr(S_T0)}, {sr(S_T0)}, {WS_ACC}
          s_barrier""")
    a.vmem(f"buffer_load_dwordx4 {vr(V_AC,4)}, {vr(V_T0)}, {sr(S_WS,4)}, {sr(S_T0)} offen sc1", "acc")
    a.vmem(f"buffer_load_dwordx4 {vr(V_AC+4,4)}, {vr(V_T0)}, {sr(S_WS,4)}, {sr(S_T0)} offen offset:32 sc1", "acc")
    stamp(14)
    a("s_branch L_att")

    a.label("L_hook4")
    stamp(15)
    a.wait_vm("acc")
    for i in range(4):
        a(f"v_cvt_pk_bf16_f32 {vr(V_AC+8+i)}, {vr(V_AC+2*i)}, {vr(V_AC+2*i+1)}")
    a(f"""s_nop 1
          v_mfma_f32_32x32x16_bf16 {vr(V_OA,16)}, {vr(V_AC+8,4)}, {vr(V_PQ,4)}, 0""")
    ooff(S_T3, WS_OA)
    a(f"""s_waitcnt lgkmcnt(0)
          s_barrier
          s_nop 5
          v_add_f32 {vr(V_T0)}, {sr(S_EPS)}, {vr(V_OA)}
          v_rcp_f32 {vr(V_T0)}, {vr(V_T0)}
          s_nop 0
          v_mul_f32 {vr(V_T0)}, {vr(V_T0)}, {vr(V_G)}""")
    for i in range(0, 8, 2):
        a(f"v_pk_mul_f32 {vr(V_OA+8+i,2)}, {vr(V_OA+8+i,2)}, {vr(V_T0,2)} op_sel_hi:[1,0]")
    for i in range(4):
        a(f"v_cvt_pk_bf16_f32 {vr(V_PK+i)}, {vr(V_OA+8+2*i)}, {vr(V_OA+8+2*i+1)}")
    a.vmem(f"buffer_store_dwordx4 {vr(V_PK,4)}, {vr(V_L16)}, {sr(S_WS,4)}, {sr(S_T3)} offen sc1", "oa")
    stamp(16)
    a("s_branch L_att")

    a.label("L_hook5")
    my_oflag(S_T3, WS_FOA)
    a.wait_vm(None)
    flag_store(S_T3)
    a(f"""v_lshrrev_b32 {vr(V_T0)}, 5, {vr(V_LANE)}
          v_lshlrev_b32 {vr(V_T0)}, 9, {vr(V_T0)}
          v_bfe_u32 {vr(V_T1)}, {vr(V_LANE)}, 2, 2
          v_lshl_add_u32 {vr(V_T0)}, {vr(V_T1)}, 7, {vr(V_T0)}
          v_bfe_u32 {vr(V_T1)}, {vr(V_LANE)}, 3, 1
          v_lshl_add_u32 {vr(V_T0)}, {vr(V_T1)}, 6, {vr(V_T0)}
          v_bfe_u32 {vr(V_T1)}, {vr(V_LANE)}, 4, 1
          v_lshl_add_u32 {vr(V_T0)}, {vr(V_T1)}, 5, {vr(V_T0)}
          v_and_b32 {vr(V_T1)}, 3, {vr(V_LANE)}
          v_lshl_add_u32 {vr(V_T0)}, {vr(V_T1)}, 3, {vr(V_T0)}
          s_lshl_b32 {sr(S_T0)}, {sr(S_HH)}, 14
          v_add_u32 {vr(V_WOA0)}, {sr(S_T0)}, {vr(V_T0)}
          v_xor_b32 {vr(V_WOA1)}, 64, {vr(V_WOA0)}
          v_sub_f32 {vr(V_G)}, 1.0, {vr(V_G)}
          s_branch L_att""")

    a.label("L_hook6")
    stamp(17)
    in_oflag(S_T3, WS_FOA)
    flag_load(S_T3, 8)
    a("s_waitcnt lgkmcnt(0)\ns_barrier")
    stamp(18)
    a("s_branch L_att")

    a.label("L_hook7")
    stamp(19)
    a.wait_vm(None)
    flag_spin("L_sfoa", S_T3, 8)
    osrc(WS_OA)
    stamp(20)
    segment(extra=lambda t: oload(t, V_FA, "fa"))

    def wo_rd(i):
        b = V_WO + 8 * (i % 4)
        for nt in range(2):
            for u in range(2):
                a(f"ds_read_b64_tr_b16 {vr(b+4*nt+2*u,2)}, {vr(V_WOA0 if nt==0 else V_WOA1)} offset:{i*2048 + u*1024}")
    wo_rd(0); wo_rd(1)
    a(f"""s_mov_b32 {sr(S_T0)}, {hex(f2u(2.0**64))}
          s_nop 2""")
    stamp(6)
    a(f"""v_rcp_f32 {vr(V_T0)}, {vr(V_O+8)}
          v_cmp_nle_f32 vcc, {vr(V_O+8)}, {sr(S_T0)}
          v_pk_mul_f32 {vr(V_T2,2)}, {vr(V_O,2)}, 0
          v_pk_fma_f32 {vr(V_T2,2)}, {vr(V_O+2,2)}, 0, {vr(V_T2,2)}
          v_pk_fma_f32 {vr(V_T2,2)}, {vr(V_O+4,2)}, 0, {vr(V_T2,2)}
          v_pk_fma_f32 {vr(V_T2,2)}, {vr(V_O+6,2)}, 0, {vr(V_T2,2)}
          v_cmp_u_f32 {sr(S_SAVE,2)}, {vr(V_T2)}, {vr(V_T3)}
          s_or_b64 vcc, vcc, {sr(S_SAVE,2)}
          s_cbranch_vccnz L_fallback""")
    a.label("L_norm")
    a(f"v_mul_f32 {vr(V_T0)}, {vr(V_T0)}, {vr(V_G)}")
    for i in range(0, 8, 2):
        a(f"v_pk_mul_f32 {vr(V_O+i,2)}, {vr(V_O+i,2)}, {vr(V_T0,2)} op_sel_hi:[1,0]")
    for i in range(4):
        a(f"v_cvt_pk_bf16_f32 {vr(V_PK+i)}, {vr(V_O+2*i)}, {vr(V_O+2*i+1)}")
    for i in range(4):
        a(f"v_min_u32 {vr(V_PK+i)}, -2, {vr(V_PK+i)}")
    a.vmem(f"buffer_store_dwordx4 {vr(V_PK,4)}, {vr(V_L16)}, {sr(S_WS,4)}, {sr(S_RDY)} offen sc1", "ob")
    def oproj(src, tag, first, pre):
        for i in range(pre, 3): wo_rd(i)
        for i in range(8):
            n_after = 4 * (min(i + 2, 7) - i)
            if f"{tag}{i}" in a.vm:
                a.wait_vm(f"{tag}{i}", f"lgkmcnt({n_after})")
            else:
                a(f"s_waitcnt lgkmcnt({n_after})")
            b = V_WO + 8 * (i % 4)
            for nt in range(2):
                a(f"v_mfma_f32_32x32x16_bf16 {vr(V_OUT[nt],16)}, {vr(b+4*nt,4)}, {vr(src+4*i,4)}, {'0' if (first and i==0) else vr(V_OUT[nt],16)}")
            if i + 3 < 8: wo_rd(i + 3)
    a.wait_vm("fa7")
    oproj(V_FA, "fa", True, 2)
    A0, A1, A2, A3 = V_XA0, V_XA1, V_WA, V_KA
    a(f"""s_cmp_lt_u32 {sr(S_HH)}, 2
          s_cselect_b32 {sr(S_T0)}, 4, 1
          s_lshl_b32 {sr(S_T0)}, {sr(S_T0)}, 15
          v_add_u32 {vr(V_WOA0)}, {sr(S_T0)}, {vr(V_WOA0)}
          v_add_u32 {vr(V_WOA1)}, {sr(S_T0)}, {vr(V_WOA1)}""")
    stamp(7)
    osrc(WS_OB)
    a(f"s_mov_b32 {sr(S_T3)}, {sr(S_T0)}\ns_mov_b32 {sr(S_SEG)}, {sr(S_T1)}")
    a.vm = []
    for i in range(8): oload(i, V_FBB, "fb")
    a("s_barrier")
    stamp(8)
    wo_rd(0); wo_rd(1); wo_rd(2)
    a(f"""v_and_b32 {vr(V_T0)}, 31, {vr(V_LANE)}
          v_lshrrev_b32 {vr(V_T1)}, 5, {vr(V_LANE)}
          v_and_b32 {vr(V_T2)}, 7, {vr(V_LANE)}
          v_xor_b32 {vr(V_T1)}, {vr(V_T1)}, {vr(V_T2)}
          v_lshlrev_b32 {vr(V_T1)}, 4, {vr(V_T1)}
          v_lshl_add_u32 {vr(V_T0)}, {vr(V_T0)}, 8, {vr(V_T1)}
          s_lshl_b32 {sr(S_T0)}, {sr(S_HH)}, 14
          s_lshl_b32 {sr(S_T1)}, {sr(S_RT)}, 13
          s_add_u32 {sr(S_T0)}, {sr(S_T0)}, {sr(S_T1)}
          v_add_u32 {vr(V_T0)}, {sr(S_T0)}, {vr(V_T0)}
          v_xor_b32 {vr(V_T1)}, 32, {vr(V_T0)}
          v_xor_b32 {vr(V_T2)}, 64, {vr(V_T0)}
          v_xor_b32 {vr(V_T3)}, 96, {vr(V_T0)}
          v_lshrrev_b32 {vr(A0)}, 3, {vr(V_LANE)}
          v_and_b32 {vr(A1)}, 7, {vr(V_LANE)}
          v_lshlrev_b32 {vr(A2)}, 1, {vr(A1)}
          v_xor_b32 {vr(A2)}, {vr(A2)}, {vr(A0)}
          v_lshlrev_b32 {vr(A2)}, 4, {vr(A2)}
          v_lshl_add_u32 {vr(A2)}, {vr(A0)}, 8, {vr(A2)}
          s_lshl_b32 {sr(S_T0)}, {sr(S_WAVE)}, 11
          v_add_u32 {vr(A2)}, {sr(S_T0)}, {vr(A2)}
          v_xor_b32 {vr(A3)}, 16, {vr(A2)}
          v_lshlrev_b32 {vr(A1)}, 4, {vr(A1)}
          v_lshl_add_u32 {vr(A0)}, {vr(A0)}, 10, {vr(A1)}
          s_lshl_b32 {sr(S_RDY)}, {sr(S_QO)}, 16
          s_lshl_b32 {sr(S_T1)}, {sr(S_WAVE)}, 13
          s_add_u32 {sr(S_RDY)}, {sr(S_RDY)}, {sr(S_T1)}
          s_lshl_b32 {sr(S_T1)}, {sr(S_NS)}, 7
          s_add_u32 {sr(S_RDY)}, {sr(S_RDY)}, {sr(S_T1)}""")
    a(f"s_mov_b32 {sr(S_SPIN)}, 0")
    for i in range(8):
        f = V_FBB + 4 * i
        n_after = 4 * (min(i + 2, 7) - i)
        a(f"s_waitcnt vmcnt({7-i})")
        a.label(f"L_ob{i}")
        a(f"""v_max3_u32 {vr(V_FLG)}, {vr(f)}, {vr(f+1)}, {vr(f+2)}
              v_max_u32 {vr(V_FLG)}, {vr(V_FLG)}, {vr(f+3)}
              v_cmp_eq_u32 vcc, -1, {vr(V_FLG)}
              s_cbranch_vccnz L_obr{i}""")
        a.label(f"L_obk{i}")
        a(f"s_waitcnt lgkmcnt({n_after})")
        b = V_WO + 8 * (i % 4)
        for nt in range(2):
            a(f"v_mfma_f32_32x32x16_bf16 {vr(V_OUT[nt],16)}, {vr(b+4*nt,4)}, {vr(f,4)}, {vr(V_OUT[nt],16)}")
        if i + 3 < 8: wo_rd(i + 3)
    stamp(9)
    a("s_nop 10")
    for nt in range(2):
        for g in range(4):
            a(f"ds_write_b128 {vr(V_T0+g)}, {vr(V_OUT[nt]+4*g,4)} offset:{nt*128}")
    a("""s_waitcnt lgkmcnt(0)
         s_barrier""")
    RR = V_FA
    for k in range(4):
        a(f"ds_read_b128 {vr(RR+8*k,4)}, {vr(A2)} offset:{k*16384}")
        a(f"ds_read_b128 {vr(RR+8*k+4,4)}, {vr(A3)} offset:{k*16384}")
    for k in range(1, 4):
        a(f"s_waitcnt lgkmcnt({2*(3-k)})")
        for i in range(0, 8, 2):
            a(f"v_pk_add_f32 {vr(RR+i,2)}, {vr(RR+i,2)}, {vr(RR+8*k+i,2)}")
    for i in range(4):
        a(f"v_cvt_pk_bf16_f32 {vr(RR+8+i)}, {vr(RR+2*i)}, {vr(RR+2*i+1)}")
    a(f"buffer_store_dwordx4 {vr(RR+8,4)}, {vr(A0)}, {sr(S_OUT,4)}, {sr(S_RDY)} offen")
    def ts_out():
        a(f"""s_mul_i32 {sr(S_T0)}, s2, 10
              s_add_u32 {sr(S_T0)}, {sr(S_T0)}, {sr(S_WAVE)}
              s_lshl_b32 {sr(S_T0)}, {sr(S_T0)}, 8
              s_add_u32 {sr(S_T0)}, {sr(S_T0)}, {WS_TS}
              buffer_store_dword v{V_STAMP}, {vr(V_L4)}, {sr(S_WS,4)}, {sr(S_T0)} offen""")
    if "dly" in opts:
        stamp(10)
        a(f"""s_cmp_lg_u32 s2, {opts.get('tswg', 100)}
              s_cbranch_scc1 L_end
              s_cmp_lg_u32 {sr(S_WAVE)}, 0
              s_cbranch_scc1 L_end
              s_memrealtime s[98:99]
              s_waitcnt lgkmcnt(0)
              s_sub_u32 {sr(S_T0)}, s100, s74
              s_lshl_b32 {sr(S_T0)}, {sr(S_T0)}, 2
              s_add_u32 {sr(S_T0)}, {sr(S_T0)}, 500
              s_min_u32 {sr(S_T0)}, {sr(S_T0)}, 30000""")
        a.label("L_dly")
        a(f"""s_memrealtime s[96:97]
              s_waitcnt lgkmcnt(0)
              s_sub_u32 {sr(S_T1)}, s96, s98
              s_cmp_lt_u32 {sr(S_T1)}, {sr(S_T0)}
              s_cbranch_scc1 L_dly""")
    if ts:
        stamp(10)
        ts_out()
        a(f"""s_cmp_lg_u32 s2, {opts.get('tswg', 100)}
              s_cbranch_scc1 L_end
              s_cmp_lg_u32 {sr(S_WAVE)}, 0
              s_cbranch_scc1 L_end
              v_readlane_b32 {sr(S_T0)}, v{V_STAMP}, 0
              s_nop 4
              v_subrev_u32 v{V_STAMP}, {sr(S_T0)}, v{V_STAMP}
              buffer_store_dword v{V_STAMP}, {vr(V_L4)}, {sr(S_DBG,4)}, 0 offen""")
    a.label("L_end")
    a("s_endpgm")

    for i in range(8):
        a.label(f"L_obr{i}")
        a(f"""s_add_u32 {sr(S_SPIN)}, {sr(S_SPIN)}, 1
              s_cmp_ge_u32 {sr(S_SPIN)}, 100000
              s_cbranch_scc1 L_obk{i}""")
        for k in range(i, 8):
            a(f"buffer_load_dwordx4 {vr(V_FBB+4*k,4)}, {vr(V_L16)}, {sr(S_WS,4)}, {sr(S_T3 if k < 4 else S_SEG)} offen offset:{(k%4)*1024} sc1")
            if not opts.get("reall", 1): break
        a(f"""s_waitcnt vmcnt({7-i if opts.get("reall", 1) else 0})
              s_branch L_ob{i}""")
    a.label("L_fallback")
    FS = V_S[0]
    a(f"""v_mov_b32 {vr(V_T0)}, 0xff800000
          s_mov_b32 {sr(S_T0)}, {WS_KV}""")
    a.label("L_fb1")
    a(f"""buffer_load_dwordx4 {vr(V_KF,4)}, {vr(V_L16)}, {sr(S_WS,4)}, {sr(S_T0)} offen sc1
          s_waitcnt vmcnt(0)
          v_mfma_f32_32x32x16_bf16 {vr(FS,16)}, {vr(V_KF,4)}, {vr(V_QF,4)}, 0
          s_nop 15""")
    for i in range(8):
        a(f"v_max3_f32 {vr(V_T0)}, {vr(V_T0)}, {vr(FS+2*i)}, {vr(FS+2*i+1)}")
    a(f"""s_add_u32 {sr(S_T0)}, {sr(S_T0)}, 2048
          s_cmp_lt_u32 {sr(S_T0)}, {WS_KV + 131072}
          s_cbranch_scc1 L_fb1
          v_mov_b32 {vr(V_T1)}, {vr(V_T0)}
          s_nop 1
          v_permlane32_swap_b32 {vr(V_T0)}, {vr(V_T1)}
          s_nop 1
          v_max_f32 {vr(V_T0)}, {vr(V_T0)}, {vr(V_T1)}""")
    for i in range(16):
        a(f"v_sub_f32 {vr(V_C+i)}, 0, {vr(V_T0)}")
        a(f"v_mov_b32 {vr(V_O+i)}, 0")
    a(f"""v_and_b32 {vr(V_VA)}, 0x3ff, {vr(V_VA)}
          s_mov_b32 {sr(S_T0)}, {WS_KV}""")
    a.label("L_fb2")
    a(f"""buffer_load_dwordx4 {vr(V_KF,4)}, {vr(V_L16)}, {sr(S_WS,4)}, {sr(S_T0)} offen sc1
          s_mov_b64 exec, {sr(S_VMASK,2)}
          buffer_load_dwordx4 {vr(V_VF[0],4)}, {vr(V_VA)}, {sr(S_WS,4)}, {sr(S_T0)} offen offset:1024 sc1
          buffer_load_dwordx4 {vr(V_VF[0]+4,4)}, {vr(V_VA)}, {sr(S_WS,4)}, {sr(S_T0)} offen offset:1536 sc1
          s_mov_b64 exec, -1
          s_waitcnt vmcnt(0)
          v_mfma_f32_32x32x16_bf16 {vr(FS,16)}, {vr(V_KF,4)}, {vr(V_QF,4)}, {vr(V_C,16)}
          s_nop 15""")
    for i in range(16):
        a(f"v_exp_f32 {vr(FS+i)}, {vr(FS+i)}")
    a(f"""s_nop 1
          v_smfmac_f32_32x32x32_bf16 {vr(V_O,16)}, {vr(V_VF[0],4)}, {vr(FS,8)}, {vr(V_IDX)}
          v_smfmac_f32_32x32x32_bf16 {vr(V_O,16)}, {vr(V_VF[0]+4,4)}, {vr(FS+8,8)}, {vr(V_IDX)}
          s_add_u32 {sr(S_T0)}, {sr(S_T0)}, 2048
          s_cmp_lt_u32 {sr(S_T0)}, {WS_KV + 131072}
          s_cbranch_scc1 L_fb2
          s_nop 15
          v_rcp_f32 {vr(V_T0)}, {vr(V_O+8)}
          s_nop 0
          s_branch L_norm""")

    a.label("L_helper")
    a.vm = []
    HB = [16, 64]
    HD, HDG = 144, 112
    H_F4 = 148
    H_FOFF = 152
    H_GWA = 8
    a(f"""s_setprio {opts.get("hprio", 3)}
          s_lshl_b32 {sr(S_T1)}, {sr(S_RGJ)}, 14
          s_add_u32 {sr(S_WOFF)}, {sr(S_T0)}, {sr(S_T1)}
          s_lshl_b32 {sr(S_T1)}, {sr(S_RGJ)}, 10
          s_add_u32 {sr(S_M0W)}, {sr(S_T1)}, {L_X}
          s_mov_b32 {sr(S_WJ+2)}, 16384
          s_mov_b32 {sr(S_WJ+3)}, 0x20000
          s_bitcmp1_b32 {sr(S_HG)}, 0
          s_waitcnt lgkmcnt(0)
          s_mov_b32 {sr(S_X)}, {sr(S_KA+0)}
          s_mov_b32 {sr(S_X+1)}, {sr(S_KA+1)}
          s_cselect_b32 {sr(S_WJ)}, {sr(S_KA+12)}, {sr(S_KA+10)}
          s_cselect_b32 {sr(S_WJ+1)}, {sr(S_KA+13)}, {sr(S_KA+11)}
          s_load_dword {sr(S_TAG)}, {sr(S_KA+22,2)}, {WS_E}""")
    def jload(g):
        for k in range(4):
            kb = 4 * g + k
            a(f"s_add_u32 m0, {sr(S_M0W)}, {kb*4096 - kb*64}")
            a("s_nop 0")
            a.vmem(f"buffer_load_dwordx4 {vr(V_XOFF)}, {sr(S_X,4)}, {sr(S_WOFF)} offen offset:{kb*64} lds", f"j{g}")
        a(f"s_mov_b32 m0, {L_MISC + 16384 + g*4096}")
        a(f"s_mov_b32 {sr(S_T2)}, {g*4096}")
        for k in range(4):
            a.vmem(f"buffer_load_dwordx4 {vr(V_L16)}, {sr(S_WJ,4)}, {sr(S_T2)} offen offset:{k*1024} lds", f"j{g}")
    srd(S_FREE2, 16, 1024)
    a(f"s_mov_b32 m0, {L_MISC}\ns_nop 0")
    a.vmem(f"buffer_load_dwordx4 {vr(V_L16)}, {sr(S_FREE2,4)}, 0 offen lds", "gw")
    jload(0)
    srd(S_WS, 22, WS_SIZE)
    srd(S_WOA, 4, 0x80000)
    srd(S_WOB, 14, 0x80000)
    omap()
    a(f"""v_and_b32 {vr(V_T0)}, 15, {vr(V_LANE)}
          v_lshrrev_b32 {vr(V_T1)}, 4, {vr(V_LANE)}
          v_bfe_u32 {vr(V_T2)}, {vr(V_LANE)}, 2, 2
          v_xor_b32 {vr(V_T2)}, {vr(V_T2)}, {vr(V_T1)}
          v_lshlrev_b32 {vr(V_T2)}, 4, {vr(V_T2)}
          v_lshl_add_u32 {vr(V_T2)}, {vr(V_T0)}, 6, {vr(V_T2)}
          v_add_u32 {vr(V_T2)}, {sr(S_M0W)}, {vr(V_T2)}
          v_lshlrev_b32 {vr(V_T3)}, 3, {vr(V_T0)}
          v_lshl_add_u32 {vr(V_T3)}, {vr(V_T1)}, 8, {vr(V_T3)}
          v_lshlrev_b32 {vr(H_GWA)}, 4, {vr(V_T1)}
          v_lshlrev_b32 {vr(13)}, 4, {vr(V_T0)}
          v_and_b32 {vr(14)}, 1, {vr(V_T1)}
          v_lshrrev_b32 {vr(15)}, 1, {vr(V_T1)}
          s_lshr_b32 {sr(S_T0)}, {sr(S_QB)}, 3
          s_lshl_b32 {sr(S_T0)}, {sr(S_T0)}, 4
          s_lshr_b32 {sr(S_T1)}, {sr(S_RGJ)}, 1
          s_lshl_b32 {sr(S_T1)}, {sr(S_T1)}, 3
          s_add_u32 {sr(S_T0)}, {sr(S_T0)}, {sr(S_T1)}
          s_and_b32 {sr(S_T1)}, {sr(S_QB)}, 7
          s_add_u32 {sr(S_SEG)}, {sr(S_T0)}, {sr(S_T1)}
          s_and_b32 {sr(S_HEAD)}, s2, 7
          s_lshl_b32 {sr(S_HEAD)}, {sr(S_HEAD)}, 3""")
    jload(1)
    a(f"""v_add_u32 {vr(H_FOFF)}, {sr(S_HEAD)}, {vr(V_LANE)}
          v_and_b32 {vr(H_FOFF)}, 63, {vr(H_FOFF)}
          v_lshlrev_b32 {vr(H_FOFF)}, 4, {vr(H_FOFF)}
          s_lshl_b32 {sr(S_T3)}, {sr(S_SEG)}, 4
          s_and_b32 {sr(S_T0)}, {sr(S_HG)}, 3
          s_lshl_b32 {sr(S_T0)}, {sr(S_T0)}, 2
          s_add_u32 {sr(S_T3)}, {sr(S_T3)}, {sr(S_T0)}
          s_add_u32 {sr(S_T3)}, {sr(S_T3)}, {WS_FKV}
          s_mov_b32 {sr(S_RDY)}, 0
          v_lshrrev_b32 {vr(V_T0)}, 3, {vr(V_LANE)}
          v_bfe_u32 {vr(V_T1)}, {vr(V_LANE)}, 4, 1
          v_lshlrev_b32 {vr(V_T1)}, 2, {vr(V_T1)}
          v_xor_b32 {vr(V_T1)}, {vr(V_T1)}, {vr(V_LANE)}
          v_and_b32 {vr(V_T1)}, 7, {vr(V_T1)}
          v_lshlrev_b32 {vr(V_T1)}, 4, {vr(V_T1)}
          v_lshl_add_u32 {vr(V_WOFF)}, {vr(V_T0)}, 10, {vr(V_T1)}""")
    tag_setup()
    vmh = list(a.vm)
    def job(isV):
        a.vm = list(vmh)
        for c in range(5):
            if c < 4: a.wait_vm(f"j{c}")
            a("s_barrier")
            if c > 0: a("s_waitcnt lgkmcnt(0)")
            if c < 4:
                b = HB[c % 2]
                for k in range(4):
                    s = 4 * c + k
                    if k == 3 and not isV: a("s_waitcnt lgkmcnt(8)")
                    a(f"ds_read_b128 {vr(b+4*k,4)}, {vr(V_T2)} offset:{s*4096}")
                    a(f"ds_read_b64_tr_b16 {vr(b+16+4*k,2)}, {vr(V_T3)} offset:{L_MISC + 16384 + s*1024}")
                    a(f"ds_read_b64_tr_b16 {vr(b+16+4*k+2,2)}, {vr(V_T3)} offset:{L_MISC + 16384 + s*1024 + 128}")
                    if not isV: a(f"ds_read_b128 {vr(b+32+4*k,4)}, {vr(H_GWA)} offset:{L_MISC + s*64}")
            if c > 0:
                b = HB[(c - 1) % 2]
                for k in range(4):
                    z = c == 1 and k == 0
                    A_, B_ = (b, b + 16) if isV else (b + 16, b)
                    a(f"v_mfma_f32_16x16x32_bf16 {vr(HD,4)}, {vr(A_+4*k,4)}, {vr(B_+4*k,4)}, {'0' if z else vr(HD,4)}")
                    if not isV: a(f"v_mfma_f32_16x16x32_bf16 {vr(HDG,4)}, {vr(b+32+4*k,4)}, {vr(b+4*k,4)}, {'0' if z else vr(HDG,4)}")
            if c < 2: jload(c + 2)
        a(f"s_and_b32 {sr(S_T1)}, {sr(S_RGJ)}, 1")
        if isV:
            a(f"""v_lshl_add_u32 {vr(13)}, {vr(15)}, 8, {vr(13)}
                  v_lshl_add_u32 {vr(13)}, {vr(14)}, 3, {vr(13)}
                  s_lshl_b32 {sr(S_T1)}, {sr(S_T1)}, 9
                  s_add_u32 {sr(S_T1)}, {sr(S_T1)}, 1024""")
        else:
            a(f"""v_lshl_add_u32 {vr(13)}, {vr(14)}, 9, {vr(13)}
                  v_lshl_add_u32 {vr(13)}, {vr(15)}, 3, {vr(13)}
                  s_lshl_b32 {sr(S_T1)}, {sr(S_T1)}, 8
                  s_lshl_b32 {sr(S_T0)}, {sr(S_QB)}, 2
                  s_add_u32 {sr(S_T0)}, {sr(S_T0)}, {sr(S_RGJ)}
                  s_lshl_b32 {sr(S_T0)}, {sr(S_T0)}, 7
                  s_add_u32 {sr(S_T0)}, {sr(S_T0)}, {WS_G}
                  s_mov_b32 {sr(S_T2)}, {hex(f2u(LOG2E))}
                  v_mul_f32 {vr(HDG)}, {sr(S_T2)}, {vr(HDG)}
                  v_exp_f32 {vr(HDG)}, -{vr(HDG)}
                  s_nop 0
                  v_add_f32 {vr(HDG)}, 1.0, {vr(HDG)}
                  v_rcp_f32 {vr(HDG)}, {vr(HDG)}
                  s_mov_b32 exec_hi, 0
                  buffer_store_dword {vr(HDG)}, {vr(V_L4)}, {sr(S_WS,4)}, {sr(S_T0)} offen sc1
                  s_mov_b32 exec_hi, -1""")
    a(f"""s_bitcmp1_b32 {sr(S_HG)}, 0
          s_cbranch_scc1 L_jobV""")
    job(False)
    a("s_branch L_jobdone")
    a.label("L_jobV")
    job(True)
    a.label("L_jobdone")
    a.vm = []
    a(f"""s_lshl_b32 {sr(S_T0)}, {sr(S_SEG)}, 11
          s_add_u32 {sr(S_T0)}, {sr(S_T0)}, {sr(S_T1)}
          s_add_u32 {sr(S_T0)}, {sr(S_T0)}, {WS_KV}
          s_nop 1
          v_cvt_pk_bf16_f32 {vr(HD+4)}, {vr(HD)}, {vr(HD+1)}
          v_cvt_pk_bf16_f32 {vr(HD+5)}, {vr(HD+2)}, {vr(HD+3)}
          v_mov_b32 {vr(14)}, 0
          s_lshl_b32 {sr(S_T1)}, s2, 8
          s_add_u32 {sr(S_T1)}, {sr(S_T1)}, {WS_ACC}
          buffer_store_dwordx2 {vr(HD+4,2)}, {vr(13)}, {sr(S_WS,4)}, {sr(S_T0)} offen sc1
          buffer_store_dword {vr(14)}, {vr(V_L4)}, {sr(S_WS,4)}, {sr(S_T1)} offen sc1""")
    stamp(1)
    def kv_sample():
        a(f"buffer_load_dwordx4 {vr(H_F4,4)}, {vr(H_FOFF)}, {sr(S_WS,4)}, 0 offen offset:{WS_FKV} sc1")
    def kv_mask():
        a(f"""v_cmp_ne_u32 vcc, {vr(H_F4)}, {vr(V_TAG)}
              v_cmp_ne_u32 {sr(S_SAVE,2)}, {vr(H_F4+1)}, {vr(V_TAG)}
              s_or_b64 vcc, vcc, {sr(S_SAVE,2)}
              v_cmp_ne_u32 {sr(S_SAVE,2)}, {vr(H_F4+2)}, {vr(V_TAG)}
              s_or_b64 vcc, vcc, {sr(S_SAVE,2)}
              v_cmp_ne_u32 {sr(S_SAVE,2)}, {vr(H_F4+3)}, {vr(V_TAG)}
              s_or_b64 vcc, vcc, {sr(S_SAVE,2)}""")
    def kv_dma(lbl, s0, s1):
        a(f"s_mov_b32 {sr(S_T0)}, {s0}")
        a.label(lbl)
        a(f"""s_add_u32 {sr(S_T1)}, {sr(S_T0)}, {sr(S_HEAD)}
              s_and_b32 {sr(S_T1)}, {sr(S_T1)}, 63
              s_lshl_b32 {sr(S_T1)}, {sr(S_T1)}, 11
              s_add_u32 {sr(S_T1)}, {sr(S_T1)}, {WS_KV}
              s_lshl_b32 m0, {sr(S_T0)}, 11
              s_waitcnt vmcnt(40)""")
        for k in range(4):
            a(f"buffer_load_dwordx4 {vr(V_L16)}, {sr(S_WS,4)}, {sr(S_T1)} offen offset:{k*1024} sc1 lds")
        a(f"""s_add_u32 m0, m0, 4096
              s_add_u32 {sr(S_T1)}, {sr(S_T1)}, 4096""")
        for k in range(4):
            a(f"buffer_load_dwordx4 {vr(V_L16)}, {sr(S_WS,4)}, {sr(S_T1)} offen offset:{k*1024} sc1 lds")
        a(f"""s_add_u32 {sr(S_T0)}, {sr(S_T0)}, 4
              s_cmp_lt_u32 {sr(S_T0)}, {s1}
              s_cbranch_scc1 {lbl}""")
    def kv_spin(lbl, lo_only):
        a(f"s_mov_b32 {sr(S_SPIN)}, 0")
        a.label(lbl + "_loop")
        kv_mask()
        if lo_only:
            a(f"s_and_b32 {sr(S_SAVE)}, vcc_lo, {hex((1 << NSA) - 1)}\ns_cmp_eq_u32 {sr(S_SAVE)}, 0")
        else:
            a("s_cmp_eq_u64 vcc, 0")
        a(f"""s_cbranch_scc1 {lbl}_ok
              s_add_u32 {sr(S_SPIN)}, {sr(S_SPIN)}, 1
              s_cmp_ge_u32 {sr(S_SPIN)}, 100000
              s_cbranch_scc1 {lbl}_ok""")
        kv_sample()
        a(f"""s_waitcnt vmcnt(0)
              s_branch {lbl}_loop""")
        a.label(lbl + "_ok")
    C_SIG = opts.get("c_sig", 8)
    C_SMP = opts.get("c_smp", 13)
    for c in range(5, 16):
        a("s_barrier")
        if c == C_SIG:
            a("s_waitcnt vmcnt(0)")
            flag_store(S_T3)
            stamp(2)
        if c == C_SMP:
            kv_sample()
    stamp(3)
    a("s_waitcnt vmcnt(0)")
    kv_spin("L_skvA", True)
    kv_dma("L_kvdA2", 0, NSA)
    kv_sample()
    a(f"""v_add_u32 {vr(V_T0)}, {L_HI}, {vr(V_L4)}
          v_lshrrev_b32 {vr(V_T2)}, 4, {vr(V_LANE)}
          v_and_b32 {vr(V_T3)}, 0x3c, {vr(V_L4)}
          v_lshl_add_u32 {vr(V_T1)}, {vr(V_T2)}, 12, {vr(V_T3)}
          v_add_u32 {vr(V_T1)}, {L_HI + 1024}, {vr(V_T1)}
          v_lshl_add_u32 {vr(V_T2)}, {vr(V_T2)}, 11, {vr(V_T3)}
          s_waitcnt vmcnt(1)""")
    stamp(4)
    a("""s_barrier
         s_waitcnt vmcnt(0)""")
    kv_spin("L_skvB", False)
    stamp(5)
    kv_dma("L_kvdB", NSA, 64)
    a(f"""s_cmp_lg_u32 s2, 0
          s_cbranch_scc1 L_noep
          s_mov_b32 {sr(S_T0)}, {WS_E}""")
    flag_store(S_T0)
    a.label("L_noep")
    P0, P1 = 16, 40
    for hh in range(4):
        for i in range(4):
            a(f"ds_read_b32 {vr(P0+4*hh+i)}, {vr(V_T0)} offset:{hh*4096 + i*256}")
            a(f"ds_read_b32 {vr(P1+4*hh+i)}, {vr(V_T0)} offset:{hh*4096 + 2048 + i*256}")
        if hh == 3:
            a(f"ds_read_b32 {vr(P0+16)}, {vr(V_T1)}")
            a(f"ds_read_b32 {vr(P1+16)}, {vr(V_T1)} offset:2048")
        a("s_waitcnt lgkmcnt(0)")
        for i in range(4 if hh < 3 else 5):
            a(f"v_add_f32 {vr(P0+4*hh+i)}, {vr(P0+4*hh+i)}, {vr(P1+4*hh+i)}")
    a(f"""s_lshl_b32 {sr(S_T0)}, {sr(S_HG)}, 13
          s_add_u32 {sr(S_T0)}, {sr(S_T0)}, {WS_ACC}
          s_add_u32 {sr(S_T1)}, {sr(S_T0)}, 4096
          s_waitcnt vmcnt(0)""")
    for hh in range(4):
        for i in range(4):
            a(f"buffer_atomic_add_f32 {vr(P0+4*hh+i)}, {vr(V_L4)}, {sr(S_WS,4)}, {sr(S_T0 if hh < 2 else S_T1)} offen offset:{(hh%2)*2048 + i*256} sc1")
    a(f"buffer_atomic_add_f32 {vr(P0+16)}, {vr(V_T2)}, {sr(S_WS,4)}, {sr(S_T0)} offen offset:1024 sc1")
    stamp(11)
    a(f"""s_barrier
          s_lshl_b32 {sr(S_T3)}, {sr(S_HG)}, 7
          s_add_u32 {sr(S_T3)}, {sr(S_T3)}, {WS_FA}
          s_lshl_b32 {sr(S_T0)}, {sr(S_QB)}, 2
          s_add_u32 {sr(S_T0)}, {sr(S_T0)}, {sr(S_T3)}
          s_waitcnt vmcnt(0)""")
    flag_store(S_T0)
    stamp(12)
    a(f"v_not_b32 {vr(V_FLG)}, {vr(V_TAG)}")
    flag_spin("L_sfa", S_T3, 32)
    stamp(13)
    a("""s_barrier
         s_barrier""")
    def wodma(lbl, srdw, r0, nrows, dst):
        a(f"""s_lshl_b32 {sr(S_T0)}, {sr(S_NS)}, 7
              s_add_u32 {sr(S_T0)}, {sr(S_T0)}, {r0*1024}
              s_mov_b32 m0, {dst}""")
        a.label(lbl)
        a("s_waitcnt vmcnt(40)")
        for i in range(4):
            a(f"buffer_load_dwordx4 {vr(V_WOFF)}, {sr(srdw,4)}, {sr(S_T0)} offen lds")
            a(f"""s_add_u32 m0, m0, 1024
                  s_add_u32 {sr(S_T0)}, {sr(S_T0)}, 8192""")
        a(f"""s_cmp_lt_u32 m0, {dst + nrows*128}
              s_cbranch_scc1 {lbl}""")
    wodma("L_woa", S_WOA, 0, 512, 0)
    wodma("L_wob0", S_WOB, 0, 256, L_HI)
    a("s_waitcnt vmcnt(0)")
    stamp(17)
    a("s_barrier")
    wodma("L_wob1", S_WOB, 256, 256, 65536)
    a("s_waitcnt vmcnt(0)")
    if ts:
        stamp(18)
        ts_out()
    a("""s_barrier
         s_endpgm""")

    a.label("L_loader")
    a.vm = []
    LV = [16, 20, 24]
    SO = [57, 58, 59, 60]
    SXO, SXM = [61, 62, 63], [64, 65, 66]
    a(f"""s_setprio 3
          v_lshrrev_b32 {vr(V_T0)}, 1, {vr(V_LANE)}
          v_and_b32 {vr(V_T0)}, 3, {vr(V_T0)}
          v_bfe_u32 {vr(V_T1)}, {vr(V_LANE)}, 4, 1
          v_xor_b32 {vr(V_T0)}, {vr(V_T0)}, {vr(V_T1)}
          v_lshlrev_b32 {vr(V_T0)}, 5, {vr(V_T0)}
          v_and_b32 {vr(V_T1)}, 1, {vr(V_LANE)}
          v_lshl_add_u32 {vr(V_T0)}, {vr(V_T1)}, 4, {vr(V_T0)}
          v_lshrrev_b32 {vr(V_T1)}, 3, {vr(V_LANE)}
          v_lshl_add_u32 {vr(LV[0])}, {vr(V_T1)}, 10, {vr(V_T0)}
          v_mul_u32_u24 {vr(V_T1)}, 3072, {vr(V_T1)}
          v_add_u32 {vr(LV[2])}, {vr(V_T1)}, {vr(V_T0)}
          v_xor_b32 {vr(LV[1])}, 64, {vr(LV[2])}""")
    for rg in range(1, 4):
        a(f"""v_add_u32 {vr(LV[0]+rg)}, {rg*(8192-1024)}, {vr(LV[0])}
              v_add_u32 {vr(LV[1]+rg)}, {rg*(24576-1024)}, {vr(LV[1])}
              v_add_u32 {vr(LV[2]+rg)}, {rg*(24576-1024)}, {vr(LV[2])}""")
    a(f"""s_lshl_b32 {sr(SO[0])}, {sr(S_HG)}, 7
          s_mov_b32 {sr(SO[1])}, {sr(SO[0])}
          s_add_u32 {sr(SO[2])}, {sr(SO[0])}, 1024
          s_add_u32 {sr(SO[3])}, {sr(SO[0])}, 2048
          s_waitcnt lgkmcnt(0)""")
    srd(S_W, 8, 0x80000)
    srd(S_WJ, 2, 0x180000)
    def lw(c):
        for m in range(4):
            a(f"s_mov_b32 m0, {L_RING + (c % 4)*16384 + m*4096}")
            a("s_nop 0" if c == 0 else f"s_add_u32 {sr(SO[m])}, {sr(SO[m])}, {32768 if m == 0 else 98304}")
            for rg in range(4):
                a.vmem(f"buffer_load_dwordx4 {vr(LV[[0,1,2,1][m]]+rg)}, {sr(S_W if m == 0 else S_WJ,4)}, {sr(SO[m])} offen offset:{rg*1024} lds", f"w{c}")
    def lx(kb):
        for i in range(3):
            a(f"s_add_u32 m0, {sr(SXM[i])}, {kb*4096 - kb*64}")
            a("s_nop 0")
            a.vmem(f"buffer_load_dwordx4 {vr(V_XOFF)}, {sr(S_X,4)}, {sr(SXO[i])} offen offset:{kb*64} lds", f"x{kb}")
            a(f"s_add_u32 m0, {sr(SXM[i])}, {(kb+1)*4096 - (kb+1)*64}")
            a("s_nop 0")
            a.vmem(f"buffer_load_dwordx4 {vr(V_XOFF)}, {sr(S_X,4)}, {sr(SXO[i])} offen offset:{(kb+1)*64} lds", f"x{kb}")
    lw(0)
    a(f"""s_mov_b32 {sr(S_X)}, {sr(S_KA+0)}
          s_mov_b32 {sr(S_X+1)}, {sr(S_KA+1)}""")
    for i in range(3):
        a(f"""s_add_u32 {sr(S_T3)}, {sr(S_RGJ)}, {i+1}
              s_and_b32 {sr(S_T3)}, {sr(S_T3)}, 3
              s_lshl_b32 {sr(S_T2)}, {sr(S_T3)}, 10
              s_add_u32 {sr(SXM[i])}, {sr(S_T2)}, {L_X}
              s_lshl_b32 {sr(S_T2)}, {sr(S_T3)}, 14
              s_add_u32 {sr(SXO[i])}, {sr(S_T2)}, {sr(S_T0)}""")
    NPRE = opts.get("npre", 2)
    for c in range(1, NPRE): lw(c)
    nxt = NPRE
    XAT = {2: 8, 4: 10, 6: 12, 8: 14}
    for c in range(16):
        a.wait_vm(f"w{c}")
        assert f"x{c}" not in a.vm
        if opts.get("lst"): a(f"s_memtime s[100:101]\ns_waitcnt lgkmcnt(0)\nv_writelane_b32 v{V_STAMP}, s100, {1+c}")
        a("s_barrier")
        if opts.get("lst"): a(f"s_memtime s[100:101]\ns_waitcnt lgkmcnt(0)\nv_writelane_b32 v{V_STAMP}, s100, {33+c}")
        if c in XAT: lx(XAT[c])
        k = 0
        while nxt <= min(15, c + 3) and k < 2:
            lw(nxt); nxt += 1; k += 1
            assert len(a.vm) <= 63, len(a.vm)
    if opts.get("lst"):
        srd(S_WS, 22, WS_SIZE)
        ts_out()
    a("s_endpgm")

    head = open("cdna_kernels/" + NAME + ".s.ref").read().split("\n")
    hdr = [l for l in head if l.startswith(";") and "@launch" not in l and "Override" not in l and "grid=ceil" not in l]
    out = "\n".join(hdr) + f"\n; @launch grid=(256,1,1) block=(640,1,1) lds={LDS_SIZE}\n"
    out += f""".amdgcn_target "amdgcn-amd-amdhsa--gfx950"
.text
.globl {NAME}_kernel
.p2align 8
.type {NAME}_kernel,@function
"""
    out += a.text()
    out += f""".section .rodata,"a"
.p2align 6
.amdhsa_kernel {NAME}_kernel
  .amdhsa_next_free_vgpr {NVGPR}
  .amdhsa_next_free_sgpr 102
  .amdhsa_accum_offset {NVGPR}
  .amdhsa_group_segment_fixed_size 0
  .amdhsa_kernarg_size 96
  .amdhsa_user_sgpr_count 2
  .amdhsa_user_sgpr_kernarg_segment_ptr 1
  .amdhsa_system_sgpr_workgroup_id_x 1
.end_amdhsa_kernel
"""
    return out

if __name__ == "__main__":
    opts = {}
    outp = "cdna_kernels/" + NAME + ".s"
    for arg in sys.argv[1:]:
        if arg.startswith("-o"):
            outp = arg[2:]
        elif "=" in arg:
            k, v = arg.split("=")
            opts[k] = int(v)
        else:
            opts[arg] = True
    open(outp, "w").write(gen(opts))
    print("wrote", outp)
```

```python
import sys, math, struct

NAME = "gated_mix__linear_attn_block__grouped_kv_mqa__prompt"

def f2u(x):
    return struct.unpack("<I", struct.pack("<f", x))[0]

class Asm:
    def __init__(self):
        self.lines = []
        self.vm = []
    def __call__(self, s):
        for l in s.split("\n"):
            l = l.strip()
            if l:
                self.lines.append("    " + l)
    def label(self, l):
        self.lines.append(l + ":")
    def vmem(self, s, tag):
        self(s)
        self.vm.append(tag)
        assert len(self.vm) <= 63
    def vm_n(self, tag):
        idx = max(i for i, t in enumerate(self.vm) if t == tag)
        return len(self.vm) - 1 - idx
    def drop_to(self, n):
        self.vm = self.vm[len(self.vm) - n:] if n else []
    def wait_vm(self, tag, extra=""):
        n = 0 if tag is None else self.vm_n(tag)
        self.drop_to(n)
        self(f"s_waitcnt vmcnt({n}) {extra}".strip())
    def text(self):
        return "\n".join(self.lines) + "\n"

def vr(a, n=1):
    return f"v{a}" if n == 1 else f"v[{a}:{a+n-1}]"
def sr(a, n=1):
    return f"s{a}" if n == 1 else f"s[{a}:{a+n-1}]"

WS_E = 0x000000
WS_FKV = 0x000400
WS_FA = 0x001000
WS_FO = 0x004000
WS_G = 0x014000
WS_KV = 0x020000
WS_ACC = 0x040000
WS_KVT = 0x080000
WS_OA = 0x200000
WS_OB = 0x208000
WS_DBG1 = 0x600000
WS_DBG2 = 0x800000
WS_TS = 0xA00000
WS_SIZE = 0x1000000
L_JW = 0
L_X = 65536
L_HI = 131072
L_GW = L_HI + 16384
RSLOT = [16384, 32768, 49152, L_HI]
LDS_SIZE = 163840
LOG2E = 1.4426950408889634
QSCALE = 0.25 * LOG2E
NVGPR = 168
NWAVE = 12

S_HGQ, S_TAG, S_QO, S_NS, S_RDY = 3, 4, 5, 6, 7
S_X, S_W, S_WJ = 8, 12, 16
S_EPS, S_ONES, S_RGJ, S_HGK = 20, 21, 22, 23
S_XMASK, S_HEADA, S_AUX = 24, 26, 27
S_WOA, S_WOB, S_OUT, S_DBG, S_WS = 28, 32, 36, 40, 44
S_WAVE, S_QB, S_HG, S_RT, S_HH = 48, 49, 50, 51, 52
S_T0, S_T1, S_T2, S_T3 = 53, 54, 55, 56
S_U0, S_U1, S_U2, S_U3 = 57, 58, 59, 60
S_SEG, S_SPIN, S_HEAD = 61, 62, 63
S_VMASK, S_RT32, S_RO32, S_SAVE = 64, 66, 67, 68
S_LOG2E, S_QS = 70, 72
S_TS = 74
S_KA = 76

def gen(opts):
    ts = opts.get("ts", False)
    dbg = opts.get("dbg", False)
    a = Asm()
    V_STAMP = NVGPR - 1

    def stamp(i):
        if not ts: return
        a(f"""s_memrealtime {sr(S_TS,2)}
              s_memtime s[100:101]
              s_waitcnt lgkmcnt(0)
              v_writelane_b32 v{V_STAMP}, {sr(S_TS)}, {i}
              v_writelane_b32 v{V_STAMP}, s100, {32+i}""")

    V_LANE = 1
    V_T0, V_T1, V_T2, V_T3 = 2, 3, 4, 5
    V_XOFF, V_WOFF = 6, 7
    V_XA0, V_XA1, V_WA = 8, 9, 10
    V_L16, V_G, V_IDX, V_KA, V_VA = 11, 12, 13, 14, 15
    V_QF, V_PQ = 16, 20
    V_ACCQ = 24
    V_FB = [40, 72]
    V_O, V_C, V_KF = 104, 120, 136
    V_VF = [140, 148]
    V_L4, V_FLG, V_TAG, V_WOA0, V_WOA1, V_WA3 = 156, 157, 158, 159, 160, 161
    V_PK = 162
    V_S = [24, 40]
    V_AC, V_OA = 56, 72
    V_FA, V_FBB, V_WO = 56, 120, 88
    V_OUT = [24, 40]

    def srd(s, ka, size):
        a(f"""s_mov_b32 {sr(s)}, {sr(S_KA+ka)}
              s_mov_b32 {sr(s+1)}, {sr(S_KA+ka+1)}
              s_mov_b32 {sr(s+2)}, {hex(size)}
              s_mov_b32 {sr(s+3)}, 0x20000""")
    def flag_store(soff):
        a(f"""s_mov_b64 exec, 1
              buffer_store_dword {vr(V_TAG)}, {vr(V_L4)}, {sr(S_WS,4)}, {sr(soff)} offen sc1
              s_mov_b64 exec, -1""")
    def flag_load(soff):
        a(f"""s_mov_b32 exec_hi, 0
              buffer_load_dword {vr(V_FLG)}, {vr(V_L4)}, {sr(S_WS,4)}, {sr(soff)} offen sc1
              s_mov_b32 exec_hi, -1""")
    def flag_spin(lbl, soff):
        a(f"s_mov_b32 {sr(S_SPIN)}, 0")
        a.label(lbl + "_loop")
        a(f"""v_cmp_ne_u32 vcc, {vr(V_FLG)}, {vr(V_TAG)}
              s_cmp_eq_u32 vcc_lo, 0
              s_cbranch_scc1 {lbl}_ok
              s_add_u32 {sr(S_SPIN)}, {sr(S_SPIN)}, 1
              s_cmp_ge_u32 {sr(S_SPIN)}, 100000
              s_cbranch_scc1 {lbl}_ok""")
        flag_load(soff)
        a(f"""s_waitcnt vmcnt(0)
              s_branch {lbl}_loop""")
        a.label(lbl + "_ok")
    def tag_setup():
        a(f"""s_waitcnt lgkmcnt(0)
              s_mul_i32 {sr(S_TAG)}, {sr(S_TAG)}, 0x9e3779b1
              s_add_u32 {sr(S_TAG)}, {sr(S_TAG)}, 0x7f4a7c15
              v_mov_b32 {vr(V_TAG)}, {sr(S_TAG)}""")
    def omap():
        a(f"""s_and_b32 {sr(S_QO)}, s2, 7
              s_lshl_b32 {sr(S_QO)}, {sr(S_QO)}, 2
              s_bfe_u32 {sr(S_T1)}, s2, 0x20003
              s_add_u32 {sr(S_QO)}, {sr(S_QO)}, {sr(S_T1)}
              s_lshr_b32 {sr(S_NS)}, s2, 5""")
    def ts_out():
        a(f"""s_mul_i32 {sr(S_T0)}, s2, {NWAVE}
              s_add_u32 {sr(S_T0)}, {sr(S_T0)}, {sr(S_WAVE)}
              s_lshl_b32 {sr(S_T0)}, {sr(S_T0)}, 8
              s_add_u32 {sr(S_T0)}, {sr(S_T0)}, {WS_TS}
              buffer_store_dword v{V_STAMP}, {vr(V_L4)}, {sr(S_WS,4)}, {sr(S_T0)} offen""")
    def phi(src, n, tmp):
        for i in range(0, n, 2):
            a(f"v_pk_mul_f32 {vr(tmp+i,2)}, {sr(S_LOG2E,2)}, {vr(src+i,2)}")
        for i in range(n):
            a(f"v_exp_f32 {vr(tmp+i)}, {vr(tmp+i)} clamp")
        for i in range(n):
            a(f"v_max_f32 {vr(src+i)}, {sr(S_EPS)}, {vr(src+i)}")
        for i in range(0, n, 2):
            a(f"v_pk_add_f32 {vr(src+i,2)}, {vr(src+i,2)}, {vr(tmp+i,2)}")

    a.label(f"{NAME}_kernel")
    a(f"""s_cmp_ge_u32 s2, 256
          s_cbranch_scc1 L_end
          s_load_dwordx16 {sr(S_KA,16)}, s[0:1], 0
          s_load_dwordx8 {sr(S_KA+16,8)}, s[0:1], 64
          v_and_b32 {vr(V_LANE)}, 63, v0
          v_lshrrev_b32 {vr(V_T0)}, 6, v0
          s_and_b32 {sr(S_T0)}, s2, 1
          v_readfirstlane_b32 {sr(S_WAVE)}, {vr(V_T0)}
          s_lshl_b32 {sr(S_T0)}, {sr(S_T0)}, 2
          s_bfe_u32 {sr(S_T1)}, s2, 0x20003
          s_add_u32 {sr(S_HG)}, {sr(S_T0)}, {sr(S_T1)}
          s_sub_u32 {sr(S_WAVE)}, {sr(S_WAVE)}, 4
          s_cselect_b32 {sr(S_T1)}, 12, 0
          s_add_u32 {sr(S_WAVE)}, {sr(S_WAVE)}, {sr(S_T1)}
          s_bfe_u32 {sr(S_T1)}, s2, 0x20001
          s_lshl_b32 {sr(S_T1)}, {sr(S_T1)}, 3
          s_lshr_b32 {sr(S_QB)}, s2, 5
          s_add_u32 {sr(S_QB)}, {sr(S_QB)}, {sr(S_T1)}
          s_lshr_b32 {sr(S_RGJ)}, {sr(S_HG)}, 1
          s_xor_b32 {sr(S_HGQ)}, {sr(S_HG)}, 1
          s_xor_b32 {sr(S_HGK)}, {sr(S_HG)}, 2""")
    stamp(0)
    a(f"""v_lshrrev_b32 {vr(V_T0)}, 4, {vr(V_LANE)}
          v_xor_b32 {vr(V_T0)}, {vr(V_T0)}, {vr(V_LANE)}
          v_and_b32 {vr(V_T0)}, 3, {vr(V_T0)}
          v_lshlrev_b32 {vr(V_T0)}, 4, {vr(V_T0)}
          v_lshrrev_b32 {vr(V_T1)}, 2, {vr(V_LANE)}
          v_lshl_add_u32 {vr(V_XOFF)}, {vr(V_T1)}, 10, {vr(V_T0)}
          v_lshlrev_b32 {vr(V_L16)}, 4, {vr(V_LANE)}
          v_lshlrev_b32 {vr(V_L4)}, 2, {vr(V_LANE)}
          s_mov_b32 {sr(S_X+2)}, 0x200000
          s_mov_b32 {sr(S_X+3)}, 0x20000
          s_lshl_b32 {sr(S_T0)}, {sr(S_QB)}, 16
          s_cmp_eq_u32 {sr(S_WAVE)}, 8
          s_cbranch_scc1 L_a0
          s_cmp_eq_u32 {sr(S_WAVE)}, 9
          s_cbranch_scc1 L_a1
          s_cmp_ge_u32 {sr(S_WAVE)}, 10
          s_cbranch_scc1 L_a23
          s_and_b32 {sr(S_RT)}, {sr(S_WAVE)}, 1
          s_lshr_b32 {sr(S_HH)}, {sr(S_WAVE)}, 1""")
    S_XOFF, S_XM0 = S_U0, S_U1
    a(f"""s_and_b32 {sr(S_T1)}, {sr(S_WAVE)}, 3
          s_lshr_b32 {sr(S_T2)}, {sr(S_WAVE)}, 2
          s_lshl_b32 {sr(S_T3)}, {sr(S_T1)}, 14
          s_add_u32 {sr(S_XOFF)}, {sr(S_T0)}, {sr(S_T3)}
          s_lshl_b32 {sr(S_T3)}, {sr(S_T2)}, 7
          s_add_u32 {sr(S_XOFF)}, {sr(S_XOFF)}, {sr(S_T3)}
          s_lshl_b32 {sr(S_XM0)}, {sr(S_T1)}, 10
          s_lshl_b32 {sr(S_T3)}, {sr(S_T2)}, 13
          s_add_u32 {sr(S_XM0)}, {sr(S_XM0)}, {sr(S_T3)}
          s_cmp_eq_u32 {sr(S_T1)}, {sr(S_RGJ)}
          s_cselect_b64 {sr(S_XMASK,2)}, 1, -1""")
    a(f"""s_cmp_eq_u32 {sr(S_T1)}, 0
          s_cselect_b32 {sr(S_T3)}, 1, 3
          s_lshl_b32 {sr(S_W+2)}, {sr(S_T3)}, 19
          s_mov_b32 {sr(S_W+3)}, 0x20000
          s_lshl_b32 {sr(S_T3)}, {sr(S_T3)}, 10
          v_mul_u32_u24 {vr(V_T2)}, {sr(S_T3)}, {vr(V_T1)}
          v_and_b32 {vr(V_T3)}, 3, {vr(V_LANE)}
          v_lshl_add_u32 {vr(V_T2)}, {vr(V_T3)}, 7, {vr(V_T2)}
          s_lshr_b32 {sr(S_T2)}, s2, 3
          s_lshl_b32 {sr(S_T2)}, {sr(S_T2)}, 2
          s_bfe_u32 {sr(S_RDY)}, s2, 0x20001
          s_add_u32 {sr(S_T2)}, {sr(S_T2)}, {sr(S_RDY)}
          s_lshl_b32 {sr(S_T2)}, {sr(S_T2)}, 2
          s_mul_i32 {sr(S_T2)}, {sr(S_T2)}, {sr(S_T3)}
          s_max_u32 {sr(S_T3)}, {sr(S_T1)}, 1
          s_sub_u32 {sr(S_T3)}, {sr(S_T3)}, 1
          s_lshl_b32 {sr(S_T3)}, {sr(S_T3)}, 10
          s_add_u32 {sr(S_T2)}, {sr(S_T2)}, {sr(S_T3)}
          s_and_b32 {sr(S_T3)}, s2, 1
          s_lshl_b32 {sr(S_T3)}, {sr(S_T3)}, 9
          s_add_u32 {sr(S_T2)}, {sr(S_T2)}, {sr(S_T3)}
          v_lshlrev_b32 {vr(V_T3)}, 6, {vr(V_LANE)}
          s_lshl_b32 {sr(S_T3)}, {sr(S_HG)}, 13
          s_lshl_b32 {sr(S_RDY)}, {sr(S_WAVE)}, 10
          s_add_u32 {sr(S_T3)}, {sr(S_T3)}, {sr(S_RDY)}
          s_add_u32 {sr(S_T3)}, {sr(S_T3)}, {sr(S_T0)}
          s_waitcnt lgkmcnt(0)
          s_mov_b32 {sr(S_X)}, {sr(S_KA+0)}
          s_mov_b32 {sr(S_X+1)}, {sr(S_KA+1)}
          s_cmp_eq_u32 {sr(S_T1)}, 0
          s_cselect_b32 {sr(S_W)}, {sr(S_KA+8)}, {sr(S_KA+2)}
          s_cselect_b32 {sr(S_W+1)}, {sr(S_KA+9)}, {sr(S_KA+3)}
          s_load_dword {sr(S_TAG)}, {sr(S_KA+22,2)}, {WS_E}""")
    def xdma(r):
        a(f"s_add_u32 m0, {sr(S_XM0)}, {L_X + r*16384 - r*256}")
        a(f"s_mov_b64 exec, {sr(S_XMASK,2)}")
        a.vmem(f"buffer_load_dwordx4 {vr(V_XOFF)}, {sr(S_X,4)}, {sr(S_XOFF)} offen offset:{r*256} lds", f"x{r}")
        a(f"s_add_u32 m0, {sr(S_XM0)}, {L_X + r*16384 + 4096 - r*256 - 64}")
        a("s_nop 0")
        a.vmem(f"buffer_load_dwordx4 {vr(V_XOFF)}, {sr(S_X,4)}, {sr(S_XOFF)} offen offset:{r*256 + 64} lds", f"x{r}")
        a("s_mov_b64 exec, -1")
    def pf():
        a(f"""s_cmp_lt_u32 {sr(S_WAVE)}, 4
              s_cselect_b32 exec_lo, 0xffff, 1
              s_mov_b32 exec_hi, 0""")
        a.vmem(f"buffer_load_dword {vr(V_FLG)}, {vr(V_T2)}, {sr(S_W,4)}, {sr(S_T2)} offen", "pf")
        a("s_mov_b32 exec_lo, 0x55")
        a.vmem(f"buffer_load_dword {vr(V_FLG)}, {vr(V_T3)}, {sr(S_X,4)}, {sr(S_T3)} offen offset:512", "pf")
        a("s_mov_b64 exec, -1")
    if opts.get("pffirst", 0):
        pf(); xdma(0)
    else:
        xdma(0); pf()
    srd(S_WS, 22, WS_SIZE)
    srd(S_OUT, 18, 0x200000)
    if ts: srd(S_DBG, 20, 256)
    omap()
    a(f"""v_lshlrev_b32 {vr(V_T2)}, 15, {vr(V_LANE)}
          s_lshl_b32 {sr(S_T1)}, {sr(S_QB)}, 17
          s_lshl_b32 {sr(S_T2)}, {sr(S_QO)}, 17
          s_cmp_eq_u32 {sr(S_WAVE)}, 1
          s_cselect_b32 {sr(S_T1)}, {sr(S_T1)}, {sr(S_T2)}
          s_add_u32 {sr(S_T1)}, {sr(S_T1)}, {WS_OA}
          s_cmp_eq_u32 {sr(S_WAVE)}, 0
          s_cselect_b32 {sr(S_T1)}, 0x380, {sr(S_T1)}
          s_cselect_b32 exec_lo, 0xffffff, 15
          s_mov_b32 exec_hi, 0
          s_cmp_ge_u32 {sr(S_WAVE)}, 3
          s_cbranch_scc1 L_tlb1
          buffer_load_dword {vr(V_FLG)}, {vr(V_T2)}, {sr(S_WS,4)}, {sr(S_T1)} offen sc1
          s_branch L_tlb2""")
    a.label("L_tlb1")
    a(f"""s_lshl_b32 {sr(S_T1)}, {sr(S_QO)}, 16
          s_mov_b32 exec_lo, 3
          buffer_load_dword {vr(V_FLG)}, {vr(V_T2)}, {sr(S_OUT,4)}, {sr(S_T1)} offen""")
    a.label("L_tlb2")
    a("s_mov_b64 exec, -1")
    a.vm.append("tlb")
    xdma(1)
    def consts():
        a(f"""s_mov_b32 {sr(S_VMASK)}, 0xffff
              s_mov_b32 {sr(S_VMASK+1)}, 0xffff
              s_mov_b32 {sr(S_LOG2E)}, {hex(f2u(LOG2E))}
              s_mov_b32 {sr(S_LOG2E+1)}, {hex(f2u(LOG2E))}
              s_mov_b32 {sr(S_EPS)}, {hex(f2u(1e-6))}
              s_mov_b32 {sr(S_ONES)}, 0x3f803f80""")
    def xfrag_addr(rt_s):
        a(f"""v_and_b32 {vr(V_T0)}, 31, {vr(V_LANE)}
              v_lshrrev_b32 {vr(V_T1)}, 5, {vr(V_LANE)}
              v_bfe_u32 {vr(V_T2)}, {vr(V_LANE)}, 2, 2
              v_xor_b32 {vr(V_T2)}, {vr(V_T2)}, {vr(V_T1)}
              v_lshlrev_b32 {vr(V_T2)}, 4, {vr(V_T2)}
              v_lshl_add_u32 {vr(V_T3)}, {vr(V_T0)}, 6, {vr(V_T2)}
              s_lshl_b32 {sr(S_T0)}, {sr(rt_s)}, 11
              s_add_u32 {sr(S_T0)}, {sr(S_T0)}, {L_X}
              v_add_u32 {vr(V_XA0)}, {sr(S_T0)}, {vr(V_T3)}
              v_xor_b32 {vr(V_XA1)}, 32, {vr(V_XA0)}""")
    consts()
    a(f"""s_lshl_b32 {sr(S_HEAD)}, {sr(S_HG)}, 2
          s_add_u32 {sr(S_HEAD)}, {sr(S_HEAD)}, {sr(S_HH)}
          s_lshl_b32 {sr(S_HEADA)}, {sr(S_HGQ)}, 2
          s_add_u32 {sr(S_HEADA)}, {sr(S_HEADA)}, {sr(S_HH)}
          s_lshl_b32 {sr(S_RT32)}, {sr(S_QB)}, 1
          s_add_u32 {sr(S_RT32)}, {sr(S_RT32)}, {sr(S_RT)}
          s_lshl_b32 {sr(S_RO32)}, {sr(S_QO)}, 1
          s_add_u32 {sr(S_RO32)}, {sr(S_RO32)}, {sr(S_RT)}
          s_mov_b32 {sr(S_QS)}, {hex(f2u(QSCALE))}
          s_mov_b32 {sr(S_QS+1)}, {hex(f2u(QSCALE))}""")
    xfrag_addr(S_RT)
    a(f"""v_bfe_u32 {vr(V_T0)}, {vr(V_LANE)}, 4, 1
          v_bfe_u32 {vr(V_T2)}, {vr(V_LANE)}, 3, 2
          v_xor_b32 {vr(V_T2)}, {sr(S_HH)}, {vr(V_T2)}
          v_lshlrev_b32 {vr(V_T2)}, 5, {vr(V_T2)}
          v_lshl_add_u32 {vr(V_T2)}, {vr(V_T0)}, 13, {vr(V_T2)}
          v_lshl_add_u32 {vr(V_T2)}, {vr(V_T1)}, 10, {vr(V_T2)}
          v_bfe_u32 {vr(V_T0)}, {vr(V_LANE)}, 2, 2
          v_lshl_add_u32 {vr(V_T2)}, {vr(V_T0)}, 7, {vr(V_T2)}
          v_and_b32 {vr(V_T0)}, 3, {vr(V_LANE)}
          v_lshl_add_u32 {vr(V_WA)}, {vr(V_T0)}, 3, {vr(V_T2)}
          v_add_u32 {vr(V_WA3)}, {L_HI}, {vr(V_WA)}""")
    for i in range(8):
        a(f"v_mov_b32 {vr(V_ACCQ+i)}, 0")
        a(f"v_mov_b32 {vr(V_ACCQ+8+i)}, {sr(S_EPS)}")
    a(f"""v_mov_b32 {vr(V_T0)}, {sr(S_ONES)}
          s_mov_b32 {sr(S_SAVE)}, 0x110000
          s_mov_b32 {sr(S_SAVE+1)}, 0x110000
          v_cndmask_b32 {vr(V_T0)}, 0, {vr(V_T0)}, {sr(S_SAVE,2)}""")
    for i in range(16):
        a(f"v_mov_b32 {vr(V_O+i)}, 0")
        a(f"v_mov_b32 {vr(V_VF[0]+i)}, {vr(V_T0)}")
    a(f"""v_mov_b32 {vr(V_IDX)}, 0xdddd
          v_mov_b32 {vr(V_KA)}, {vr(V_L16)}
          v_and_b32 {vr(V_T3)}, 15, {vr(V_LANE)}
          v_lshlrev_b32 {vr(V_T3)}, 4, {vr(V_T3)}
          v_lshl_add_u32 {vr(V_VA)}, {vr(V_T1)}, 8, {vr(V_T3)}""")
    tag_setup()
    stamp(1)

    def reads(c):
        fb = V_FB[c % 2]
        s = c % 4
        wa, wo = (V_WA, RSLOT[s]) if s < 3 else (V_WA3, 0)
        r = []
        for p in range(4):
            r.append(f"ds_read_b128 {vr(fb+4*p,4)}, {vr(V_XA0 if p%2==0 else V_XA1)} offset:{(2*c + p//2)*4096}")
            for u in range(2):
                r.append(f"ds_read_b64_tr_b16 {vr(fb+16+4*p+2*u,2)}, {vr(wa)} offset:{wo + p*2048 + u*512}")
        return r
    def mfmas(c):
        fb = V_FB[c % 2]
        return [f"v_mfma_f32_32x32x16_bf16 {vr(V_ACCQ,16)}, {vr(fb+16+4*p,4)}, {vr(fb+4*p,4)}, {vr(V_ACCQ,16)}" for p in range(4)]
    for c in range(8):
        if c in (0, 2):
            a.wait_vm(f"x{c//2}", "lgkmcnt(0)")
        else:
            a("s_waitcnt lgkmcnt(0)")
        a("s_barrier")
        R_ = reads(c)
        if c == 0:
            for r in R_: a(r)
        else:
            M_ = mfmas(c - 1)
            for k in range(4):
                a(M_[k])
                for r in R_[4*k:4*k+4]: a(r)
    for k, m in enumerate(mfmas(7)):
        a(f"s_waitcnt lgkmcnt({9-3*k})")
        a(m)
    stamp(2)
    E = V_FB[0]
    a(f"""s_mov_b32 {sr(S_SEG)}, 0
          s_nop 10""")
    for i in range(0, 8, 2):
        a(f"v_pk_mul_f32 {vr(V_ACCQ+i,2)}, {sr(S_QS,2)}, {vr(V_ACCQ+i,2)}")
    for i in range(4):
        a(f"v_cvt_pk_bf16_f32 {vr(V_QF+i)}, {vr(V_ACCQ+2*i)}, {vr(V_ACCQ+2*i+1)}")
    phi(V_ACCQ + 8, 8, E)
    for i in range(4):
        a(f"v_cvt_pk_bf16_f32 {vr(V_PQ+i)}, {vr(V_ACCQ+8+2*i)}, {vr(V_ACCQ+8+2*i+1)}")
    stamp(3)
    a("s_barrier")
    stamp(4)
    a(f"""ds_read_b128 {vr(V_KF,4)}, {vr(V_KA)}
          s_mov_b64 exec, {sr(S_VMASK,2)}
          ds_read_b128 {vr(V_VF[0],4)}, {vr(V_VA)} offset:1024
          ds_read_b128 {vr(V_VF[0]+4,4)}, {vr(V_VA)} offset:1536
          ds_read_b128 {vr(V_VF[1],4)}, {vr(V_VA)} offset:{2048+1024}
          ds_read_b128 {vr(V_VF[1]+4,4)}, {vr(V_VA)} offset:{2048+1536}
          s_mov_b64 exec, -1
          s_waitcnt lgkmcnt(4)
          v_mfma_f32_32x32x16_bf16 {vr(V_S[0],16)}, {vr(V_KF,4)}, {vr(V_QF,4)}, 0
          ds_read_b128 {vr(V_KF,4)}, {vr(V_KA)} offset:2048""")
    if dbg:
        for reg, hd, base in ((V_QF, S_HEAD, WS_DBG1), (V_PQ, S_HEADA, WS_DBG2)):
            a(f"""s_lshl_b32 {sr(S_T0)}, {sr(S_RT32)}, 5
                  s_add_u32 {sr(S_T0)}, {sr(S_T0)}, {sr(hd)}
                  s_lshl_b32 {sr(S_T0)}, {sr(S_T0)}, 10
                  s_add_u32 {sr(S_T1)}, {sr(S_T0)}, {base}
                  buffer_store_dwordx4 {vr(reg,4)}, {vr(V_L16)}, {sr(S_WS,4)}, {sr(S_T1)} offen""")
    S0 = V_S[0]
    a(f"""s_nop 10
          v_max3_f32 {vr(V_T0)}, {vr(S0)}, {vr(S0+1)}, {vr(S0+2)}
          v_max3_f32 {vr(V_T1)}, {vr(S0+3)}, {vr(S0+4)}, {vr(S0+5)}
          v_max3_f32 {vr(V_T2)}, {vr(S0+6)}, {vr(S0+7)}, {vr(S0+8)}
          v_max3_f32 {vr(V_T3)}, {vr(S0+9)}, {vr(S0+10)}, {vr(S0+11)}
          v_max3_f32 {vr(V_T0)}, {vr(V_T0)}, {vr(S0+12)}, {vr(S0+13)}
          v_max3_f32 {vr(V_T1)}, {vr(V_T1)}, {vr(S0+14)}, {vr(S0+15)}
          v_max3_f32 {vr(V_T0)}, {vr(V_T0)}, {vr(V_T1)}, {vr(V_T2)}
          v_max_f32 {vr(V_T0)}, {vr(V_T0)}, {vr(V_T3)}
          v_mov_b32 {vr(V_T1)}, {vr(V_T0)}
          s_nop 1
          v_permlane32_swap_b32 {vr(V_T0)}, {vr(V_T1)}
          s_nop 1
          v_max_f32 {vr(V_T0)}, {vr(V_T0)}, {vr(V_T1)}
          v_sub_f32 {vr(V_T2)}, 0, {vr(V_T0)}
          v_sub_f32 {vr(V_T3)}, 0, {vr(V_T0)}""")
    for i in range(0, 16, 2):
        a(f"v_pk_add_f32 {vr(S0+i,2)}, {vr(S0+i,2)}, {vr(V_T2,2)}")
    for i in range(0, 16, 2):
        a(f"v_pk_mov_b32 {vr(V_C+i,2)}, {vr(V_T2,2)}, {vr(V_T2,2)} op_sel:[0,1]")
    a(f"""v_exp_f32 {vr(S0)}, {vr(S0)}
          v_exp_f32 {vr(S0+1)}, {vr(S0+1)}
          s_waitcnt lgkmcnt(0)""")
    stamp(5)

    PR = opts.get("ramp", "3210")
    PR = [int(ch) for ch in str(PR).zfill(4)]
    def segment(extra=None):
        last = extra is not None
        NT = 10 if last else 8
        ramp = {0: PR[0], 6: PR[1], 8: PR[2], 9: PR[3]} if last else {0: PR[0], 4: PR[1], 6: PR[2], 7: PR[3]}
        for t in range(NT):
            cur, nxt = V_S[t % 2], V_S[(t + 1) % 2]
            vf = V_VF[t % 2]
            ex = lambda r: a(f"v_exp_f32 {vr(r)}, {vr(r)}")
            if t == 2 and not last: a.label("L_att2")
            if t in ramp: a(f"s_setprio {ramp[t]}")
            for i in (2, 3, 4, 5): ex(cur + i)
            if t < 9:
                a("s_waitcnt lgkmcnt(2)")
                a(f"v_mfma_f32_32x32x16_bf16 {vr(nxt,16)}, {vr(V_KF,4)}, {vr(V_QF,4)}, {vr(V_C,16)}")
            else:
                a("s_waitcnt lgkmcnt(0)")
            if t < 8:
                a(f"ds_read_b128 {vr(V_KF,4)}, {vr(V_KA)} offset:{t*2048}")
                if extra: extra(t)
            elif t == 8:
                a("s_nop 0")
            for i in (6, 7, 8, 9, 10): ex(cur + i)
            a(f"v_smfmac_f32_32x32x32_bf16 {vr(V_O,16)}, {vr(vf,4)}, {vr(cur,8)}, {vr(V_IDX)}")
            for i in (11, 12, 13, 14, 15): ex(cur + i)
            if t < 9:
                ex(nxt); ex(nxt + 1)
            else:
                a("s_nop 1")
            a(f"v_smfmac_f32_32x32x32_bf16 {vr(V_O,16)}, {vr(vf+4,4)}, {vr(cur+8,8)}, {vr(V_IDX)}")
            if t < 8:
                a(f"""s_mov_b64 exec, {sr(S_VMASK,2)}
                      ds_read_b128 {vr(vf,4)}, {vr(V_VA)} offset:{t*2048+1024}
                      ds_read_b128 {vr(vf+4,4)}, {vr(V_VA)} offset:{t*2048+1536}
                      s_mov_b64 exec, -1""")
    a(f"""s_setprio {PR[0]}
          s_branch L_att2""")
    a.lines.append("    .p2align 6")
    a.label("L_att")
    segment()
    a(f"""v_add_u32 {vr(V_KA)}, 0x4000, {vr(V_KA)}
          v_add_u32 {vr(V_VA)}, 0x4000, {vr(V_VA)}
          s_add_u32 {sr(S_SEG)}, {sr(S_SEG)}, 1""")
    for h in (1, 2, 5, 6, 7):
        a(f"""s_cmp_eq_u32 {sr(S_SEG)}, {h}
              s_cbranch_scc1 L_hook{h}""")
    if opts.get("hk", 3) == 2:
        a(f"s_cmp_eq_u32 {sr(S_SEG)}, 3\ns_cbranch_scc1 L_att")
    if ts:
        a(f"s_cmp_eq_u32 {sr(S_SEG)}, 4\ns_cbranch_scc1 L_hook4")
        stamp(13); a("s_barrier"); stamp(14); a("s_branch L_att")
        a.label("L_hook4")
        stamp(15); a("s_barrier"); stamp(16); a("s_branch L_att")
    else:
        a("""s_waitcnt lgkmcnt(0)
             s_barrier
             s_branch L_att""")

    def ooff(dst, base):
        a(f"""s_lshl_b32 {sr(dst)}, {sr(S_RT32)}, 6
              s_add_u32 {sr(dst)}, {sr(dst)}, {sr(S_HEADA if base == WS_OA else S_HEAD)}
              s_lshl_b32 {sr(dst)}, {sr(dst)}, 10
              s_add_u32 {sr(dst)}, {sr(dst)}, {base}""")
    def oload(i, dst, br):
        so = [[S_U0, S_U1], [S_U2, S_U3]][br][i // 4]
        a(f"buffer_load_dwordx4 {vr(dst+4*i,4)}, {vr(V_L16)}, {sr(S_WS,4)}, {sr(so)} offen offset:{(i%4)*1024} sc1")
    def ostore(soff):
        for i in range(4):
            a(f"v_min_u32 {vr(V_PK+i)}, -2, {vr(V_PK+i)}")
        a(f"buffer_store_dwordx4 {vr(V_PK,4)}, {vr(V_L16)}, {sr(S_WS,4)}, {sr(soff)} offen sc1")
        if opts.get("dst", 0):
            a(f"buffer_store_dwordx4 {vr(V_PK,4)}, {vr(V_L16)}, {sr(S_WS,4)}, {sr(soff)} offen")

    a.label("L_hook1")
    stamp(11)
    a(f"""v_and_b32 {vr(V_T0)}, 0x3c, {vr(V_L4)}
          v_bfe_u32 {vr(V_T1)}, {vr(V_LANE)}, 4, 1
          v_lshl_add_u32 {vr(V_T0)}, {vr(V_T1)}, 7, {vr(V_T0)}
          s_lshl_b32 {sr(S_T0)}, {sr(S_RT32)}, 8
          s_add_u32 {sr(S_T0)}, {sr(S_T0)}, {WS_G}
          v_mov_b32 {vr(V_PK)}, -1
          v_mov_b32 {vr(V_PK+1)}, -1
          v_mov_b32 {vr(V_PK+2)}, -1
          v_mov_b32 {vr(V_PK+3)}, -1""")
    ooff(S_RDY, WS_OB)
    ooff(S_AUX, WS_OA)
    a(f"""s_barrier
          buffer_load_dword {vr(V_G)}, {vr(V_T0)}, {sr(S_WS,4)}, {sr(S_T0)} offen sc1
          buffer_store_dwordx4 {vr(V_PK,4)}, {vr(V_L16)}, {sr(S_WS,4)}, {sr(S_RDY)} offen sc1
          buffer_store_dwordx4 {vr(V_PK,4)}, {vr(V_L16)}, {sr(S_WS,4)}, {sr(S_AUX)} offen sc1""")
    stamp(12)
    a("s_branch L_att")

    a.label("L_hook2")
    HK = opts.get("hk", 3)
    if HK == 2: a("s_barrier")
    a(f"""s_lshl_b32 {sr(S_T3)}, {sr(S_RT32)}, 5
          s_add_u32 {sr(S_T3)}, {sr(S_T3)}, {sr(S_HEAD)}
          s_lshl_b32 {sr(S_T3)}, {sr(S_T3)}, 2
          s_add_u32 {sr(S_T3)}, {sr(S_T3)}, {WS_FO}
          s_waitcnt vmcnt(0)""")
    flag_store(S_T3)
    a(f"""v_lshrrev_b32 {vr(V_T0)}, 5, {vr(V_LANE)}
          v_lshlrev_b32 {vr(V_T0)}, 9, {vr(V_T0)}
          v_bfe_u32 {vr(V_T1)}, {vr(V_LANE)}, 2, 2
          v_lshl_add_u32 {vr(V_T0)}, {vr(V_T1)}, 7, {vr(V_T0)}
          v_bfe_u32 {vr(V_T1)}, {vr(V_LANE)}, 3, 1
          v_lshl_add_u32 {vr(V_T0)}, {vr(V_T1)}, 6, {vr(V_T0)}
          v_bfe_u32 {vr(V_T1)}, {vr(V_LANE)}, 4, 1
          v_lshl_add_u32 {vr(V_T0)}, {vr(V_T1)}, 5, {vr(V_T0)}
          v_and_b32 {vr(V_T1)}, 3, {vr(V_LANE)}
          v_lshl_add_u32 {vr(V_T0)}, {vr(V_T1)}, 3, {vr(V_T0)}
          s_lshl_b32 {sr(S_T0)}, {sr(S_HH)}, 14
          v_add_u32 {vr(V_WOA0)}, {sr(S_T0)}, {vr(V_T0)}
          v_xor_b32 {vr(V_WOA1)}, 64, {vr(V_WOA0)}
          s_lshl_b32 {sr(S_U0)}, {sr(S_RO32)}, 3
          s_add_u32 {sr(S_U0)}, {sr(S_U0)}, {sr(S_HH)}
          s_lshl_b32 {sr(S_U0)}, {sr(S_U0)}, 13
          s_add_u32 {sr(S_U0)}, {sr(S_U0)}, {WS_OA}
          s_add_u32 {sr(S_U1)}, {sr(S_U0)}, 4096
          s_add_u32 {sr(S_U2)}, {sr(S_U0)}, {WS_OB - WS_OA}
          s_add_u32 {sr(S_U3)}, {sr(S_U2)}, 4096
          s_branch L_att""")

    a.label("L_hook5")
    stamp(17)
    a(f"""s_and_b32 {sr(S_T1)}, {sr(S_HEADA)}, 1
          v_lshrrev_b32 {vr(V_T1)}, 5, {vr(V_LANE)}
          s_lshl_b32 {sr(S_T2)}, {sr(S_T1)}, 1
          s_add_u32 {sr(S_T2)}, {sr(S_T2)}, 64
          v_add_u32 {vr(V_T1)}, {sr(S_T2)}, {vr(V_T1)}
          v_and_b32 {vr(V_T0)}, 0x2f, {vr(V_LANE)}
          s_lshl_b32 {sr(S_T2)}, {sr(S_T1)}, 4
          v_add_u32 {vr(V_T0)}, {sr(S_T2)}, {vr(V_T0)}
          v_cndmask_b32 {vr(V_T0)}, {vr(V_T0)}, {vr(V_T1)}, {sr(S_VMASK,2)}
          v_lshlrev_b32 {vr(V_T0)}, 2, {vr(V_T0)}
          s_lshr_b32 {sr(S_T0)}, {sr(S_HEADA)}, 1
          s_lshl_b32 {sr(S_T0)}, {sr(S_T0)}, 12
          s_add_u32 {sr(S_T0)}, {sr(S_T0)}, {WS_ACC}
          s_lshl_b32 {sr(S_T3)}, {sr(S_RO32)}, 7
          s_add_u32 {sr(S_T3)}, {sr(S_T3)}, {WS_FO}
          s_barrier""")
    for r in range(8):
        a(f"buffer_load_dword {vr(V_AC+r)}, {vr(V_T0)}, {sr(S_WS,4)}, {sr(S_T0)} offen offset:{r*512} sc1")
    flag_load(S_T3)
    stamp(18)
    a("s_branch L_att")

    a.label("L_hook6")
    stamp(19)
    a("s_waitcnt vmcnt(0)")
    for i in range(4):
        a(f"v_cvt_pk_bf16_f32 {vr(V_AC+8+i)}, {vr(V_AC+2*i)}, {vr(V_AC+2*i+1)}")
    a(f"""s_nop 1
          v_mfma_f32_32x32x16_bf16 {vr(V_OA,16)}, {vr(V_AC+8,4)}, {vr(V_PQ,4)}, 0
          s_waitcnt lgkmcnt(0)
          s_barrier
          s_nop 9
          v_add_f32 {vr(V_T0)}, {sr(S_EPS)}, {vr(V_OA)}
          v_rcp_f32 {vr(V_T0)}, {vr(V_T0)}
          s_nop 0
          v_mul_f32 {vr(V_T0)}, {vr(V_T0)}, {vr(V_G)}""")
    for i in range(0, 8, 2):
        a(f"v_pk_mul_f32 {vr(V_OA+8+i,2)}, {vr(V_OA+8+i,2)}, {vr(V_T0,2)} op_sel_hi:[1,0]")
    for i in range(4):
        a(f"v_cvt_pk_bf16_f32 {vr(V_PK+i)}, {vr(V_OA+8+2*i)}, {vr(V_OA+8+2*i+1)}")
    ostore(S_AUX)
    a(f"v_sub_f32 {vr(V_G)}, 1.0, {vr(V_G)}")
    stamp(20)
    a("s_branch L_att")

    a.label("L_hook7")
    flag_spin("L_sfo", S_T3)
    segment(extra=lambda t: oload(t, V_FA, 0))

    def wo_rd(i):
        b = V_WO + 8 * (i % 4)
        for nt in range(2):
            for u in range(2):
                a(f"ds_read_b64_tr_b16 {vr(b+4*nt+2*u,2)}, {vr(V_WOA0 if nt==0 else V_WOA1)} offset:{i*2048 + u*1024}")
    wo_rd(0); wo_rd(1)
    a(f"""s_mov_b32 {sr(S_T0)}, {hex(f2u(2.0**64))}
          s_nop 2""")
    stamp(6)
    a(f"""v_rcp_f32 {vr(V_T0)}, {vr(V_O+8)}
          v_cmp_nle_f32 vcc, {vr(V_O+8)}, {sr(S_T0)}
          v_pk_mul_f32 {vr(V_T2,2)}, {vr(V_O,2)}, 0
          v_pk_fma_f32 {vr(V_T2,2)}, {vr(V_O+2,2)}, 0, {vr(V_T2,2)}
          v_pk_fma_f32 {vr(V_T2,2)}, {vr(V_O+4,2)}, 0, {vr(V_T2,2)}
          v_pk_fma_f32 {vr(V_T2,2)}, {vr(V_O+6,2)}, 0, {vr(V_T2,2)}
          v_cmp_u_f32 {sr(S_SAVE,2)}, {vr(V_T2)}, {vr(V_T3)}
          s_or_b64 vcc, vcc, {sr(S_SAVE,2)}
          s_cbranch_vccnz L_fallback""")
    a.label("L_norm")
    a(f"v_mul_f32 {vr(V_T0)}, {vr(V_T0)}, {vr(V_G)}")
    for i in range(0, 8, 2):
        a(f"v_pk_mul_f32 {vr(V_O+i,2)}, {vr(V_O+i,2)}, {vr(V_T0,2)} op_sel_hi:[1,0]")
    for i in range(4):
        a(f"v_cvt_pk_bf16_f32 {vr(V_PK+i)}, {vr(V_O+2*i)}, {vr(V_O+2*i+1)}")
    ostore(S_RDY)
    wo_rd(2)
    a(f"""s_mov_b32 {sr(S_SPIN)}, 0
          s_waitcnt vmcnt({2 if opts.get("dst", 0) else 1})""")
    a.label("L_oa")
    a(f"v_max3_u32 {vr(V_FLG)}, {vr(V_FA)}, {vr(V_FA+1)}, {vr(V_FA+2)}")
    for i in range(3, 31, 2):
        a(f"v_max3_u32 {vr(V_FLG)}, {vr(V_FLG)}, {vr(V_FA+i)}, {vr(V_FA+i+1)}")
    a(f"""v_max_u32 {vr(V_FLG)}, {vr(V_FLG)}, {vr(V_FA+31)}
          v_cmp_eq_u32 vcc, -1, {vr(V_FLG)}
          s_cbranch_vccnz L_oar""")
    a.label("L_oak")
    OBAT = opts.get("obat", 4)
    sched = {i: [] for i in range(9)}
    for k in range(8):
        sched[min(8, OBAT + (k * (8 - OBAT)) // 8) if OBAT < 8 else 8].append(k)
    for i in range(8):
        a(f"s_waitcnt lgkmcnt({4 * (min(i + 2, 7) - i)})")
        b = V_WO + 8 * (i % 4)
        for nt in range(2):
            a(f"v_mfma_f32_32x32x16_bf16 {vr(V_OUT[nt],16)}, {vr(b+4*nt,4)}, {vr(V_FA+4*i,4)}, {'0' if i==0 else vr(V_OUT[nt],16)}")
        if i + 3 < 8: wo_rd(i + 3)
        for k in sched[i]: oload(k, V_FBB, 1)
    for k in sched[8]: oload(k, V_FBB, 1)
    A0, A1, A2, A3 = V_XA0, V_XA1, V_WA, V_KA
    a(f"""s_cmp_lt_u32 {sr(S_HH)}, 2
          s_cselect_b32 {sr(S_T0)}, 4, 1
          s_lshl_b32 {sr(S_T0)}, {sr(S_T0)}, 15
          v_add_u32 {vr(V_WOA0)}, {sr(S_T0)}, {vr(V_WOA0)}
          v_add_u32 {vr(V_WOA1)}, {sr(S_T0)}, {vr(V_WOA1)}""")
    stamp(7)
    a("s_barrier")
    stamp(8)
    wo_rd(0); wo_rd(1); wo_rd(2)
    a(f"""v_and_b32 {vr(V_T0)}, 31, {vr(V_LANE)}
          v_lshrrev_b32 {vr(V_T1)}, 5, {vr(V_LANE)}
          v_and_b32 {vr(V_T2)}, 7, {vr(V_LANE)}
          v_xor_b32 {vr(V_T1)}, {vr(V_T1)}, {vr(V_T2)}
          v_lshlrev_b32 {vr(V_T1)}, 4, {vr(V_T1)}
          v_lshl_add_u32 {vr(V_T0)}, {vr(V_T0)}, 8, {vr(V_T1)}
          s_lshl_b32 {sr(S_T0)}, {sr(S_HH)}, 14
          s_lshl_b32 {sr(S_T1)}, {sr(S_RT)}, 13
          s_add_u32 {sr(S_T0)}, {sr(S_T0)}, {sr(S_T1)}
          v_add_u32 {vr(V_T0)}, {sr(S_T0)}, {vr(V_T0)}
          v_xor_b32 {vr(V_T1)}, 32, {vr(V_T0)}
          v_xor_b32 {vr(V_T2)}, 64, {vr(V_T0)}
          v_xor_b32 {vr(V_T3)}, 96, {vr(V_T0)}
          v_lshrrev_b32 {vr(A0)}, 3, {vr(V_LANE)}
          v_and_b32 {vr(A1)}, 7, {vr(V_LANE)}
          v_lshlrev_b32 {vr(A2)}, 1, {vr(A1)}
          v_xor_b32 {vr(A2)}, {vr(A2)}, {vr(A0)}
          v_lshlrev_b32 {vr(A2)}, 4, {vr(A2)}
          v_lshl_add_u32 {vr(A2)}, {vr(A0)}, 8, {vr(A2)}
          s_lshl_b32 {sr(S_T0)}, {sr(S_WAVE)}, 11
          v_add_u32 {vr(A2)}, {sr(S_T0)}, {vr(A2)}
          v_xor_b32 {vr(A3)}, 16, {vr(A2)}
          v_lshlrev_b32 {vr(A1)}, 4, {vr(A1)}
          v_lshl_add_u32 {vr(A0)}, {vr(A0)}, 10, {vr(A1)}
          s_lshl_b32 {sr(S_RDY)}, {sr(S_QO)}, 16
          s_lshl_b32 {sr(S_T1)}, {sr(S_WAVE)}, 13
          s_add_u32 {sr(S_RDY)}, {sr(S_RDY)}, {sr(S_T1)}
          s_lshl_b32 {sr(S_T1)}, {sr(S_NS)}, 7
          s_add_u32 {sr(S_RDY)}, {sr(S_RDY)}, {sr(S_T1)}""")
    for i in range(8):
        f = V_FBB + 4 * i
        a(f"s_waitcnt vmcnt({7-i})")
        a.label(f"L_ob{i}")
        a(f"""v_max3_u32 {vr(V_FLG)}, {vr(f)}, {vr(f+1)}, {vr(f+2)}
              v_max_u32 {vr(V_FLG)}, {vr(V_FLG)}, {vr(f+3)}
              v_cmp_eq_u32 vcc, -1, {vr(V_FLG)}
              s_cbranch_vccnz L_obr{i}""")
        a.label(f"L_obk{i}")
        a(f"s_waitcnt lgkmcnt({4 * (min(i + 2, 7) - i)})")
        b = V_WO + 8 * (i % 4)
        for nt in range(2):
            a(f"v_mfma_f32_32x32x16_bf16 {vr(V_OUT[nt],16)}, {vr(b+4*nt,4)}, {vr(f,4)}, {vr(V_OUT[nt],16)}")
        if i + 3 < 8: wo_rd(i + 3)
    stamp(9)
    a("s_nop 10")
    for nt in range(2):
        for g in range(4):
            a(f"ds_write_b128 {vr(V_T0+g)}, {vr(V_OUT[nt]+4*g,4)} offset:{nt*128}")
    a("""s_waitcnt lgkmcnt(0)
         s_barrier""")
    RR = V_FA
    for k in range(4):
        a(f"ds_read_b128 {vr(RR+8*k,4)}, {vr(A2)} offset:{k*16384}")
        a(f"ds_read_b128 {vr(RR+8*k+4,4)}, {vr(A3)} offset:{k*16384}")
    for k in range(1, 4):
        a(f"s_waitcnt lgkmcnt({2*(3-k)})")
        for i in range(0, 8, 2):
            a(f"v_pk_add_f32 {vr(RR+i,2)}, {vr(RR+i,2)}, {vr(RR+8*k+i,2)}")
    for i in range(4):
        a(f"v_cvt_pk_bf16_f32 {vr(RR+8+i)}, {vr(RR+2*i)}, {vr(RR+2*i+1)}")
    a(f"buffer_store_dwordx4 {vr(RR+8,4)}, {vr(A0)}, {sr(S_OUT,4)}, {sr(S_RDY)} offen" + ["", " sc1", " nt", " sc0 sc1"][opts.get("ost", 0)])
    if ts:
        stamp(10)
        ts_out()
    a.label("L_end")
    a("s_endpgm")

    a.label("L_oar")
    a(f"""s_add_u32 {sr(S_SPIN)}, {sr(S_SPIN)}, 1
          s_cmp_ge_u32 {sr(S_SPIN)}, 100000
          s_cbranch_scc1 L_oak""")
    for k in range(8): oload(k, V_FA, 0)
    a("""s_waitcnt vmcnt(0)
         s_branch L_oa""")
    RM = opts.get("rm", 2)
    for i in range(8):
        f = V_FBB + 4 * i
        a.label(f"L_obr{i}")
        a(f"""s_add_u32 {sr(S_SPIN)}, {sr(S_SPIN)}, 1
              s_cmp_ge_u32 {sr(S_SPIN)}, 100000
              s_cbranch_scc1 L_obk{i}""")
        if RM == 1:
            for k in range(i, 8): oload(k, V_FBB, 1)
            a(f"""s_waitcnt vmcnt({7-i})
                  s_branch L_ob{i}""")
        else:
            if opts.get("slp", 0): a(f"s_sleep {opts['slp']}")
            oload(i, V_FBB, 1)
            a(f"""s_waitcnt vmcnt(0)
                  v_max3_u32 {vr(V_FLG)}, {vr(f)}, {vr(f+1)}, {vr(f+2)}
                  v_max_u32 {vr(V_FLG)}, {vr(V_FLG)}, {vr(f+3)}
                  v_cmp_eq_u32 vcc, -1, {vr(V_FLG)}
                  s_cbranch_vccnz L_obr{i}""")
            for k in range(i + 1, 8): oload(k, V_FBB, 1)
            a(f"s_branch L_obk{i}")

    a.label("L_fallback")
    FS = V_S[0]
    a(f"""v_mov_b32 {vr(V_T0)}, 0xff800000
          s_mov_b32 {sr(S_T0)}, {WS_KV}""")
    a.label("L_fb1")
    a(f"""buffer_load_dwordx4 {vr(V_KF,4)}, {vr(V_L16)}, {sr(S_WS,4)}, {sr(S_T0)} offen sc1
          s_waitcnt vmcnt(0)
          v_mfma_f32_32x32x16_bf16 {vr(FS,16)}, {vr(V_KF,4)}, {vr(V_QF,4)}, 0
          s_nop 15""")
    for i in range(8):
        a(f"v_max3_f32 {vr(V_T0)}, {vr(V_T0)}, {vr(FS+2*i)}, {vr(FS+2*i+1)}")
    a(f"""s_add_u32 {sr(S_T0)}, {sr(S_T0)}, 2048
          s_cmp_lt_u32 {sr(S_T0)}, {WS_KV + 131072}
          s_cbranch_scc1 L_fb1
          v_mov_b32 {vr(V_T1)}, {vr(V_T0)}
          s_nop 1
          v_permlane32_swap_b32 {vr(V_T0)}, {vr(V_T1)}
          s_nop 1
          v_max_f32 {vr(V_T0)}, {vr(V_T0)}, {vr(V_T1)}""")
    for i in range(16):
        a(f"v_sub_f32 {vr(V_C+i)}, 0, {vr(V_T0)}")
        a(f"v_mov_b32 {vr(V_O+i)}, 0")
    a(f"""v_and_b32 {vr(V_VA)}, 0x3ff, {vr(V_VA)}
          s_mov_b32 {sr(S_T0)}, {WS_KV}""")
    a.label("L_fb2")
    a(f"""buffer_load_dwordx4 {vr(V_KF,4)}, {vr(V_L16)}, {sr(S_WS,4)}, {sr(S_T0)} offen sc1
          s_mov_b64 exec, {sr(S_VMASK,2)}
          buffer_load_dwordx4 {vr(V_VF[0],4)}, {vr(V_VA)}, {sr(S_WS,4)}, {sr(S_T0)} offen offset:1024 sc1
          buffer_load_dwordx4 {vr(V_VF[0]+4,4)}, {vr(V_VA)}, {sr(S_WS,4)}, {sr(S_T0)} offen offset:1536 sc1
          s_mov_b64 exec, -1
          s_waitcnt vmcnt(0)
          v_mfma_f32_32x32x16_bf16 {vr(FS,16)}, {vr(V_KF,4)}, {vr(V_QF,4)}, {vr(V_C,16)}
          s_nop 15""")
    for i in range(16):
        a(f"v_exp_f32 {vr(FS+i)}, {vr(FS+i)}")
    a(f"""s_nop 1
          v_smfmac_f32_32x32x32_bf16 {vr(V_O,16)}, {vr(V_VF[0],4)}, {vr(FS,8)}, {vr(V_IDX)}
          v_smfmac_f32_32x32x32_bf16 {vr(V_O,16)}, {vr(V_VF[0]+4,4)}, {vr(FS+8,8)}, {vr(V_IDX)}
          s_add_u32 {sr(S_T0)}, {sr(S_T0)}, 2048
          s_cmp_lt_u32 {sr(S_T0)}, {WS_KV + 131072}
          s_cbranch_scc1 L_fb2
          s_nop 15
          v_rcp_f32 {vr(V_T0)}, {vr(V_O+8)}
          s_nop 0
          s_branch L_norm""")

    H_F4, H_FOFF = 148, 152
    S_ROT = S_HEAD
    def rot_setup():
        a(f"""s_and_b32 {sr(S_ROT)}, s2, 7
              s_lshl_b32 {sr(S_ROT)}, {sr(S_ROT)}, 3""")
    def kv_sample():
        a(f"buffer_load_dwordx4 {vr(H_F4,4)}, {vr(H_FOFF)}, {sr(S_WS,4)}, 0 offen offset:{WS_FKV} sc1")
    def kv_spin(lbl, lo_only):
        a(f"s_mov_b32 {sr(S_SPIN)}, 0")
        a.label(lbl + "_loop")
        a(f"""v_cmp_ne_u32 vcc, {vr(H_F4)}, {vr(V_TAG)}
              v_cmp_ne_u32 {sr(S_SAVE,2)}, {vr(H_F4+1)}, {vr(V_TAG)}
              s_or_b64 vcc, vcc, {sr(S_SAVE,2)}
              v_cmp_ne_u32 {sr(S_SAVE,2)}, {vr(H_F4+2)}, {vr(V_TAG)}
              s_or_b64 vcc, vcc, {sr(S_SAVE,2)}
              v_cmp_ne_u32 {sr(S_SAVE,2)}, {vr(H_F4+3)}, {vr(V_TAG)}
              s_or_b64 vcc, vcc, {sr(S_SAVE,2)}""")
        if lo_only:
            a(f"s_and_b32 {sr(S_SAVE)}, vcc_lo, 0xff\ns_cmp_eq_u32 {sr(S_SAVE)}, 0")
        else:
            a("s_cmp_eq_u64 vcc, 0")
        a(f"""s_cbranch_scc1 {lbl}_ok
              s_add_u32 {sr(S_SPIN)}, {sr(S_SPIN)}, 1
              s_cmp_ge_u32 {sr(S_SPIN)}, 100000
              s_cbranch_scc1 {lbl}_ok""")
        if lo_only: a("s_mov_b64 exec, 0xff")
        kv_sample()
        if lo_only: a("s_mov_b64 exec, -1")
        a(f"""s_waitcnt vmcnt(0)
              s_branch {lbl}_loop""")
        a.label(lbl + "_ok")
    def kv_dma(lbl, s0, s1):
        a(f"s_mov_b32 {sr(S_T0)}, {s0}")
        a.label(lbl)
        a(f"""s_add_u32 {sr(S_T1)}, {sr(S_T0)}, {sr(S_ROT)}
              s_and_b32 {sr(S_T1)}, {sr(S_T1)}, 63
              s_lshl_b32 {sr(S_T1)}, {sr(S_T1)}, 11
              s_add_u32 {sr(S_T1)}, {sr(S_T1)}, {WS_KV}
              s_lshl_b32 m0, {sr(S_T0)}, 11
              s_waitcnt vmcnt(40)""")
        for k in range(4):
            a(f"buffer_load_dwordx4 {vr(V_L16)}, {sr(S_WS,4)}, {sr(S_T1)} offen offset:{k*1024} sc1 lds")
        a(f"""s_add_u32 m0, m0, 4096
              s_add_u32 {sr(S_T1)}, {sr(S_T1)}, 4096""")
        for k in range(4):
            a(f"buffer_load_dwordx4 {vr(V_L16)}, {sr(S_WS,4)}, {sr(S_T1)} offen offset:{k*1024} sc1 lds")
        a(f"""s_add_u32 {sr(S_T0)}, {sr(S_T0)}, 4
              s_cmp_lt_u32 {sr(S_T0)}, {s1}
              s_cbranch_scc1 {lbl}""")
    def swz64(dst, stride):
        a(f"""v_lshrrev_b32 {vr(V_T0)}, 3, {vr(V_LANE)}
              v_bfe_u32 {vr(V_T1)}, {vr(V_LANE)}, 4, 1
              v_lshlrev_b32 {vr(V_T1)}, 2, {vr(V_T1)}
              v_xor_b32 {vr(V_T1)}, {vr(V_T1)}, {vr(V_LANE)}
              v_and_b32 {vr(V_T1)}, 7, {vr(V_T1)}
              v_lshlrev_b32 {vr(V_T1)}, 4, {vr(V_T1)}
              v_mul_u32_u24 {vr(V_T0)}, {stride}, {vr(V_T0)}
              v_add_u32 {vr(dst)}, {vr(V_T0)}, {vr(V_T1)}""")

    KACC = [24, 40]
    KB = [56, 68]
    KV0, KV1 = 153, 154
    S_KO, S_KM = S_U2, S_U3
    S_KW = S_WOB
    def kv_setup():
        srd(S_KW, 2, 0x180000)
        srd(S_WS, 22, WS_SIZE)
        consts()
        swz64(KV0, 3072)
        a(f"""v_add_u32 {vr(KV1)}, {24576 - 1024}, {vr(KV0)}
              s_sub_u32 {sr(S_AUX)}, {sr(S_WAVE)}, 8
              s_and_b32 {sr(S_RT)}, {sr(S_AUX)}, 1
              s_lshl_b32 {sr(S_KM)}, {sr(S_AUX)}, 13
              s_add_u32 {sr(S_KM)}, {sr(S_KM)}, {L_HI}
              s_lshl_b32 {sr(S_KO)}, {sr(S_HGK)}, 7
              s_cmp_lt_u32 {sr(S_AUX)}, 2
              s_cselect_b32 {sr(S_T1)}, 2, 1
              s_cselect_b32 {sr(S_T2)}, 0, {sr(S_EPS)}
              s_lshl_b32 {sr(S_T1)}, {sr(S_T1)}, 10
              s_add_u32 {sr(S_KO)}, {sr(S_KO)}, {sr(S_T1)}""")
        for i in range(32):
            a(f"v_mov_b32 {vr(KACC[0]+i)}, {sr(S_T2)}")
        xfrag_addr(S_RT)
        a(f"""v_lshlrev_b32 {vr(V_T0)}, 10, {vr(V_T1)}
              v_bfe_u32 {vr(V_T1)}, {vr(V_LANE)}, 2, 2
              v_lshl_add_u32 {vr(V_T0)}, {vr(V_T1)}, 7, {vr(V_T0)}
              v_bfe_u32 {vr(V_T1)}, {vr(V_LANE)}, 3, 1
              v_lshl_add_u32 {vr(V_T0)}, {vr(V_T1)}, 6, {vr(V_T0)}
              v_bfe_u32 {vr(V_T1)}, {vr(V_LANE)}, 4, 1
              v_lshl_add_u32 {vr(V_T0)}, {vr(V_T1)}, 5, {vr(V_T0)}
              v_and_b32 {vr(V_T1)}, 3, {vr(V_LANE)}
              v_lshl_add_u32 {vr(V_T0)}, {vr(V_T1)}, 3, {vr(V_T0)}
              v_add_u32 {vr(V_WOA0)}, {sr(S_KM)}, {vr(V_T0)}
              v_xor_b32 {vr(V_WOA1)}, 64, {vr(V_WOA0)}""")
    def kdma(st):
        a(f"s_add_u32 m0, {sr(S_KM)}, {(st % 4)*2048}")
        a("s_nop 0" if st == 0 else f"s_add_u32 {sr(S_KO)}, {sr(S_KO)}, 49152")
        a.vmem(f"buffer_load_dwordx4 {vr(KV0)}, {sr(S_KW,4)}, {sr(S_KO)} offen lds", f"k{st}")
        a.vmem(f"buffer_load_dwordx4 {vr(KV1)}, {sr(S_KW,4)}, {sr(S_KO)} offen offset:1024 lds", f"k{st}")
    def krd(st):
        b = KB[st % 2]
        a(f"ds_read_b128 {vr(b,4)}, {vr(V_XA0 if st%2==0 else V_XA1)} offset:{(st//2)*4096}")
        for nt in range(2):
            for u in range(2):
                a(f"ds_read_b64_tr_b16 {vr(b+4+4*nt+2*u,2)}, {vr(V_WOA0 if nt==0 else V_WOA1)} offset:{(st%4)*2048 + u*512}")
    def kv_pass(bars):
        a.vm = []
        for st in range(4): kdma(st)
        for _ in range(bars.get(-1, 0)): a("s_barrier")
        a.wait_vm("k0")
        for _ in range(bars.get(0, 0)): a("s_barrier")
        krd(0)
        for st in range(32):
            if st + 1 < 32:
                a.wait_vm(f"k{st+1}")
                for _ in range(bars.get(st + 1, 0)): a("s_barrier")
                krd(st + 1)
            a(f"s_waitcnt lgkmcnt({5 if st + 1 < 32 else 0})")
            b = KB[st % 2]
            for nt in range(2):
                a(f"v_mfma_f32_32x32x16_bf16 {vr(KACC[nt],16)}, {vr(b,4)}, {vr(b+4+4*nt,4)}, {vr(KACC[nt],16)}")
            if st + 4 < 32: kdma(st + 4)
    def foff_setup():
        a(f"""v_add_u32 {vr(H_FOFF)}, {sr(S_ROT)}, {vr(V_LANE)}
              v_and_b32 {vr(H_FOFF)}, 63, {vr(H_FOFF)}
              v_lshlrev_b32 {vr(H_FOFF)}, 4, {vr(H_FOFF)}""")

    TG = 80
    TKA, TVA = 12, 155
    S_TG = S_RDY
    def tg_setup(which):
        a(f"""v_and_b32 {vr(V_T0)}, 15, {vr(V_LANE)}
              v_lshlrev_b32 {vr(V_T0)}, 4, {vr(V_T0)}
              v_bfe_u32 {vr(V_T1)}, {vr(V_LANE)}, 4, 1
              v_lshrrev_b32 {vr(V_T2)}, 5, {vr(V_LANE)}
              v_lshl_add_u32 {vr(TKA)}, {vr(V_T1)}, 9, {vr(V_T0)}
              v_lshl_add_u32 {vr(TKA)}, {vr(V_T2)}, 3, {vr(TKA)}
              v_lshl_add_u32 {vr(TVA)}, {vr(V_T2)}, 8, {vr(V_T0)}
              v_lshl_add_u32 {vr(TVA)}, {vr(V_T1)}, 3, {vr(TVA)}
              s_lshl_b32 {sr(S_TG)}, {sr(S_ROT)}, 12
              s_add_u32 {sr(S_TG)}, {sr(S_TG)}, {WS_KVT + which*16384}""")
    def tg_loads():
        for t in range(4):
            a(f"s_add_u32 {sr(S_T0)}, {sr(S_TG)}, {t*4096}")
            for jb in range(4):
                a(f"buffer_load_dwordx4 {vr(TG+16*t+4*jb,4)}, {vr(V_L16)}, {sr(S_WS,4)}, {sr(S_T0)} offen offset:{jb*1024} sc1")
    def tg_finish(lbl, which):
        a(f"s_mov_b32 {sr(S_SPIN)}, 0")
        a.label(lbl + "_loop")
        a("s_waitcnt vmcnt(0)")
        a(f"v_min3_u32 {vr(V_T0)}, {vr(V_TAG)}, {vr(TG+1)}, {vr(TG+3)}")
        a(f"v_max3_u32 {vr(V_T1)}, {vr(V_TAG)}, {vr(TG+1)}, {vr(TG+3)}")
        for g in range(1, 16):
            a(f"v_min3_u32 {vr(V_T0)}, {vr(V_T0)}, {vr(TG+4*g+1)}, {vr(TG+4*g+3)}")
            a(f"v_max3_u32 {vr(V_T1)}, {vr(V_T1)}, {vr(TG+4*g+1)}, {vr(TG+4*g+3)}")
        a(f"""v_cmp_ne_u32 vcc, {vr(V_T0)}, {vr(V_T1)}
              s_cbranch_vccz {lbl}_ok
              s_add_u32 {sr(S_SPIN)}, {sr(S_SPIN)}, 1
              s_cmp_ge_u32 {sr(S_SPIN)}, 100000
              s_cbranch_scc1 {lbl}_ok""")
        tg_loads()
        a(f"s_branch {lbl}_loop")
        a.label(lbl + "_ok")
        for t in range(4):
            for jb in range(4):
                ad = TVA if jb & 1 else TKA
                off = (4 * which + t) * 2048 + ((1024 + (jb >> 1) * 512) if jb & 1 else (jb >> 1) * 256)
                a(f"ds_write_b32 {vr(ad)}, {vr(TG+16*t+4*jb)} offset:{off}")
                a(f"ds_write_b32 {vr(ad)}, {vr(TG+16*t+4*jb+2)} offset:{off+4}")
            a("s_waitcnt lgkmcnt(4)")
        a("s_waitcnt lgkmcnt(0)")
    C_TG = opts.get("c_tg", 6)

    a.label("L_a0")
    a.vm = []
    HX, HW, HG_, HD, HDG = 16, 48, 80, 144, 112
    H_GWA = 8
    S_JX, S_JM = S_U0, S_U1
    a(f"""s_setprio 3
          s_lshl_b32 {sr(S_T1)}, {sr(S_RGJ)}, 14
          s_add_u32 {sr(S_JX)}, {sr(S_T0)}, {sr(S_T1)}
          s_lshl_b32 {sr(S_T1)}, {sr(S_RGJ)}, 10
          s_add_u32 {sr(S_JM)}, {sr(S_T1)}, {L_X}
          s_mov_b32 {sr(S_WJ+2)}, 16384
          s_mov_b32 {sr(S_WJ+3)}, 0x20000
          s_bitcmp1_b32 {sr(S_HG)}, 0
          s_waitcnt lgkmcnt(0)
          s_mov_b32 {sr(S_X)}, {sr(S_KA+0)}
          s_mov_b32 {sr(S_X+1)}, {sr(S_KA+1)}
          s_cselect_b32 {sr(S_WJ)}, {sr(S_KA+12)}, {sr(S_KA+10)}
          s_cselect_b32 {sr(S_WJ+1)}, {sr(S_KA+13)}, {sr(S_KA+11)}
          s_load_dword {sr(S_TAG)}, {sr(S_KA+22,2)}, {WS_E}""")
    def jload(g):
        for k in range(4):
            kb = 4 * g + k
            a(f"s_add_u32 m0, {sr(S_JM)}, {kb*4096 - kb*64}")
            a("s_nop 0")
            a.vmem(f"buffer_load_dwordx4 {vr(V_XOFF)}, {sr(S_X,4)}, {sr(S_JX)} offen offset:{kb*64} lds", f"j{g}")
        a(f"s_mov_b32 m0, {L_JW + g*4096}")
        a(f"s_mov_b32 {sr(S_T2)}, {g*4096}")
        for k in range(4):
            a.vmem(f"buffer_load_dwordx4 {vr(V_L16)}, {sr(S_WJ,4)}, {sr(S_T2)} offen offset:{k*1024} lds", f"j{g}")
    jload(0)
    srd(S_W, 16, 1024)
    a(f"s_mov_b32 m0, {L_GW}\ns_nop 0")
    a.vmem(f"buffer_load_dwordx4 {vr(V_L16)}, {sr(S_W,4)}, 0 offen lds", "gw")
    jload(1); jload(2); jload(3)
    srd(S_WS, 22, WS_SIZE)
    rot_setup()
    a(f"""v_and_b32 {vr(V_T0)}, 15, {vr(V_LANE)}
          v_lshrrev_b32 {vr(V_T1)}, 4, {vr(V_LANE)}
          v_bfe_u32 {vr(V_T2)}, {vr(V_LANE)}, 2, 2
          v_xor_b32 {vr(V_T2)}, {vr(V_T2)}, {vr(V_T1)}
          v_lshlrev_b32 {vr(V_T2)}, 4, {vr(V_T2)}
          v_lshl_add_u32 {vr(V_T2)}, {vr(V_T0)}, 6, {vr(V_T2)}
          v_add_u32 {vr(V_T2)}, {sr(S_JM)}, {vr(V_T2)}
          v_lshlrev_b32 {vr(V_T3)}, 3, {vr(V_T0)}
          v_lshl_add_u32 {vr(V_T3)}, {vr(V_T1)}, 8, {vr(V_T3)}
          v_lshlrev_b32 {vr(H_GWA)}, 4, {vr(V_T1)}
          v_add_u32 {vr(H_GWA)}, {L_GW}, {vr(H_GWA)}
          v_lshlrev_b32 {vr(13)}, 4, {vr(V_T0)}
          v_and_b32 {vr(14)}, 1, {vr(V_T1)}
          v_lshrrev_b32 {vr(15)}, 1, {vr(V_T1)}
          s_lshr_b32 {sr(S_T0)}, {sr(S_QB)}, 3
          s_lshl_b32 {sr(S_T0)}, {sr(S_T0)}, 4
          s_lshr_b32 {sr(S_T1)}, {sr(S_RGJ)}, 1
          s_lshl_b32 {sr(S_T1)}, {sr(S_T1)}, 3
          s_add_u32 {sr(S_T0)}, {sr(S_T0)}, {sr(S_T1)}
          s_and_b32 {sr(S_T1)}, {sr(S_QB)}, 7
          s_add_u32 {sr(S_SEG)}, {sr(S_T0)}, {sr(S_T1)}
          s_lshl_b32 {sr(S_T3)}, {sr(S_SEG)}, 4
          s_and_b32 {sr(S_T0)}, {sr(S_HG)}, 3
          s_lshl_b32 {sr(S_T0)}, {sr(S_T0)}, 2
          s_add_u32 {sr(S_T3)}, {sr(S_T3)}, {sr(S_T0)}
          s_add_u32 {sr(S_T3)}, {sr(S_T3)}, {WS_FKV}""")
    foff_setup()
    tag_setup()
    vmh = list(a.vm)
    def job(isV):
        a.vm = list(vmh)
        nr = 3 if isV else 4
        for half in range(2):
            a.wait_vm(f"j{2*half}")
            a("s_barrier")
            a.wait_vm(f"j{2*half+1}")
            def rd(k):
                s = 8 * half + k
                a(f"ds_read_b128 {vr(HX+4*k,4)}, {vr(V_T2)} offset:{s*4096}")
                a(f"ds_read_b64_tr_b16 {vr(HW+4*k,2)}, {vr(V_T3)} offset:{L_JW + s*1024}")
                a(f"ds_read_b64_tr_b16 {vr(HW+4*k+2,2)}, {vr(V_T3)} offset:{L_JW + s*1024 + 128}")
                if not isV: a(f"ds_read_b128 {vr(HG_+4*k,4)}, {vr(H_GWA)} offset:{s*64}")
            rd(0); rd(1); rd(2)
            for k in range(8):
                a(f"s_waitcnt lgkmcnt({nr * (min(k + 2, 7) - k)})")
                z = half == 0 and k == 0
                A_, B_ = (HX, HW) if isV else (HW, HX)
                a(f"v_mfma_f32_16x16x32_bf16 {vr(HD,4)}, {vr(A_+4*k,4)}, {vr(B_+4*k,4)}, {'0' if z else vr(HD,4)}")
                if not isV: a(f"v_mfma_f32_16x16x32_bf16 {vr(HDG,4)}, {vr(HG_+4*k,4)}, {vr(HX+4*k,4)}, {'0' if z else vr(HDG,4)}")
                if k + 3 < 8: rd(k + 3)
        a(f"s_and_b32 {sr(S_T1)}, {sr(S_RGJ)}, 1")
        if isV:
            a(f"""v_lshl_add_u32 {vr(13)}, {vr(15)}, 8, {vr(13)}
                  v_lshl_add_u32 {vr(13)}, {vr(14)}, 3, {vr(13)}
                  s_lshl_b32 {sr(S_T1)}, {sr(S_T1)}, 9
                  s_add_u32 {sr(S_T1)}, {sr(S_T1)}, 1024""")
        else:
            a(f"""v_lshl_add_u32 {vr(13)}, {vr(14)}, 9, {vr(13)}
                  v_lshl_add_u32 {vr(13)}, {vr(15)}, 3, {vr(13)}
                  s_lshl_b32 {sr(S_T1)}, {sr(S_T1)}, 8
                  s_lshl_b32 {sr(S_T0)}, {sr(S_QB)}, 2
                  s_add_u32 {sr(S_T0)}, {sr(S_T0)}, {sr(S_RGJ)}
                  s_lshl_b32 {sr(S_T0)}, {sr(S_T0)}, 7
                  s_add_u32 {sr(S_T0)}, {sr(S_T0)}, {WS_G}
                  s_mov_b32 {sr(S_T2)}, {hex(f2u(LOG2E))}
                  v_mul_f32 {vr(HDG)}, {sr(S_T2)}, {vr(HDG)}
                  v_exp_f32 {vr(HDG)}, -{vr(HDG)}
                  s_nop 0
                  v_add_f32 {vr(HDG)}, 1.0, {vr(HDG)}
                  v_rcp_f32 {vr(HDG)}, {vr(HDG)}
                  s_mov_b32 exec_hi, 0
                  buffer_store_dword {vr(HDG)}, {vr(V_L4)}, {sr(S_WS,4)}, {sr(S_T0)} offen sc1
                  s_mov_b32 exec_hi, -1""")
    a(f"""s_bitcmp1_b32 {sr(S_HG)}, 0
          s_cbranch_scc1 L_jobV""")
    job(False)
    a("s_branch L_jobdone")
    a.label("L_jobV")
    job(True)
    a.label("L_jobdone")
    a.vm = []
    a(f"""s_lshl_b32 {sr(S_T0)}, {sr(S_SEG)}, 11
          s_add_u32 {sr(S_T0)}, {sr(S_T0)}, {sr(S_T1)}
          s_add_u32 {sr(S_T0)}, {sr(S_T0)}, {WS_KV}
          s_nop 1
          v_cvt_pk_bf16_f32 {vr(HD+4)}, {vr(HD)}, {vr(HD+1)}
          v_cvt_pk_bf16_f32 {vr(HD+5)}, {vr(HD+2)}, {vr(HD+3)}
          v_mov_b32 {vr(HX)}, {vr(HD+4)}
          v_mov_b32 {vr(HX+1)}, {vr(V_TAG)}
          v_mov_b32 {vr(HX+2)}, {vr(HD+5)}
          v_mov_b32 {vr(HX+3)}, {vr(V_TAG)}
          s_lshl_b32 {sr(S_T1)}, {sr(S_SEG)}, 2
          s_and_b32 {sr(S_T2)}, {sr(S_HG)}, 3
          s_add_u32 {sr(S_T1)}, {sr(S_T1)}, {sr(S_T2)}
          s_lshl_b32 {sr(S_T1)}, {sr(S_T1)}, 10
          s_add_u32 {sr(S_T1)}, {sr(S_T1)}, {WS_KVT}
          buffer_store_dwordx4 {vr(HX,4)}, {vr(V_L16)}, {sr(S_WS,4)}, {sr(S_T1)} offen sc1
          v_mov_b32 {vr(14)}, 0
          s_lshl_b32 {sr(S_T1)}, s2, 8
          s_add_u32 {sr(S_T1)}, {sr(S_T1)}, {WS_ACC}
          buffer_store_dwordx2 {vr(HD+4,2)}, {vr(13)}, {sr(S_WS,4)}, {sr(S_T0)} offen sc1
          buffer_store_dword {vr(14)}, {vr(V_L4)}, {sr(S_WS,4)}, {sr(S_T1)} offen sc1""")
    stamp(1)
    C_SIG = opts.get("c_sig", 4)
    for c in range(2, 8):
        a("s_barrier")
        if c == 2: kv_setup()
        if c == 3: tg_setup(0)
        if c == C_SIG:
            a("s_waitcnt vmcnt(0)")
            flag_store(S_T3)
            stamp(2)
        if c == C_TG: tg_loads()
    stamp(3)
    tg_finish("L_tg0", 0)
    kv_sample()
    stamp(4)
    a("""s_barrier
         s_waitcnt vmcnt(0)""")
    kv_spin("L_skvB", False)
    stamp(5)
    kv_dma("L_kvdB", 8, 20)
    a(f"""s_cmp_lg_u32 s2, 0
          s_cbranch_scc1 L_kv01
          s_mov_b32 {sr(S_T0)}, {WS_E}""")
    flag_store(S_T0)
    a.label("L_kv01")
    kv_pass({opts.get("n1", 6): 1})
    a("s_branch L_kvend")

    a.label("L_a1")
    a.vm = []
    LV = [16, 20]
    SO = [S_U0, S_U1]
    a(f"""s_setprio 3
          v_lshrrev_b32 {vr(V_T0)}, 1, {vr(V_LANE)}
          v_and_b32 {vr(V_T0)}, 3, {vr(V_T0)}
          v_bfe_u32 {vr(V_T1)}, {vr(V_LANE)}, 4, 1
          v_xor_b32 {vr(V_T0)}, {vr(V_T0)}, {vr(V_T1)}
          v_lshlrev_b32 {vr(V_T0)}, 5, {vr(V_T0)}
          v_and_b32 {vr(V_T1)}, 1, {vr(V_LANE)}
          v_lshl_add_u32 {vr(V_T0)}, {vr(V_T1)}, 4, {vr(V_T0)}
          v_lshrrev_b32 {vr(V_T1)}, 3, {vr(V_LANE)}
          v_lshl_add_u32 {vr(LV[0])}, {vr(V_T1)}, 10, {vr(V_T0)}
          v_mul_u32_u24 {vr(V_T1)}, 3072, {vr(V_T1)}
          v_add_u32 {vr(LV[1])}, {vr(V_T1)}, {vr(V_T0)}
          v_xor_b32 {vr(LV[1])}, 64, {vr(LV[1])}""")
    for rg in range(1, 4):
        a(f"""v_add_u32 {vr(LV[0]+rg)}, {rg*(8192-1024)}, {vr(LV[0])}
              v_add_u32 {vr(LV[1]+rg)}, {rg*(24576-1024)}, {vr(LV[1])}""")
    a(f"""s_lshl_b32 {sr(SO[0])}, {sr(S_HG)}, 7
          s_lshl_b32 {sr(SO[1])}, {sr(S_HGQ)}, 7
          s_waitcnt lgkmcnt(0)
          s_load_dword {sr(S_TAG)}, {sr(S_KA+22,2)}, {WS_E}""")
    srd(S_W, 8, 0x80000)
    srd(S_WJ, 2, 0x180000)
    def lw(c):
        for hf in range(2):
            for m in range(2):
                a(f"s_mov_b32 m0, {RSLOT[c % 4] + m*8192 + hf*4096}")
                a("s_nop 0" if (c == 0 and hf == 0) else f"s_add_u32 {sr(SO[m])}, {sr(SO[m])}, {32768 if m == 0 else 98304}")
                for rg in range(4):
                    a.vmem(f"buffer_load_dwordx4 {vr(LV[m]+rg)}, {sr(S_W if m == 0 else S_WJ,4)}, {sr(SO[m])} offen offset:{rg*1024} lds", f"w{c}")
    NPRE = opts.get("npre", 2)
    for c in range(NPRE): lw(c)
    tag_setup()
    nxt = NPRE
    for c in range(8):
        a.wait_vm(f"w{c}")
        a("s_barrier")
        k = 0
        while nxt <= min(7, c + 3) and k < 2:
            lw(nxt); nxt += 1; k += 1
        if c == 5:
            srd(S_WS, 22, WS_SIZE); rot_setup(); tg_setup(1)
        if c == max(C_TG, 5):
            tg_loads()
            a.vm += ["tg"] * 16
        if c == 6:
            kv_setup(); foff_setup()
    tg_finish("L_tg1", 1)
    kv_sample()
    stamp(4)
    a("s_barrier")
    a("s_waitcnt vmcnt(0)")
    kv_spin("L_skvB1", False)
    kv_dma("L_kvdB1", 20, 32)
    a("s_branch L_kv01")

    a.label("L_a23")
    a.vm = []
    a(f"""s_setprio 3
          s_sub_u32 {sr(S_T1)}, {sr(S_WAVE)}, 8
          s_lshl_b32 {sr(S_T2)}, {sr(S_T1)}, 8
          s_add_u32 {sr(S_T0)}, {sr(S_T0)}, {sr(S_T2)}
          s_lshl_b32 {sr(S_T1)}, {sr(S_T1)}, 14
          s_add_u32 {sr(S_T1)}, {sr(S_T1)}, {L_X}
          s_waitcnt lgkmcnt(0)
          s_mov_b32 {sr(S_X)}, {sr(S_KA+0)}
          s_mov_b32 {sr(S_X+1)}, {sr(S_KA+1)}""")
    XB = opts.get("xb", 0)
    for c in range(XB): a("s_barrier")
    for i in range(3):
        a(f"""s_add_u32 {sr(S_T3)}, {sr(S_RGJ)}, {i+1}
              s_and_b32 {sr(S_T3)}, {sr(S_T3)}, 3
              s_lshl_b32 {sr(S_T2)}, {sr(S_T3)}, 10
              s_add_u32 {sr(S_U0)}, {sr(S_T2)}, {sr(S_T1)}
              s_lshl_b32 {sr(S_T2)}, {sr(S_T3)}, 14
              s_add_u32 {sr(S_U1)}, {sr(S_T2)}, {sr(S_T0)}""")
        if i > 0 or XB == 0 or True:
            a("s_barrier")
        for k in range(4):
            a(f"s_add_u32 m0, {sr(S_U0)}, {k*4096 - k*64}")
            a("s_nop 0")
            a(f"buffer_load_dwordx4 {vr(V_XOFF)}, {sr(S_X,4)}, {sr(S_U1)} offen offset:{k*64} lds")
    assert XB == 0
    kv_setup()
    ES = opts.get("es", 5)
    for c in range(3, min(ES, 7) + 1):
        if c == 4: a("s_waitcnt vmcnt(0)")
        a("s_barrier")
    if ES >= 8:
        a("s_barrier")
        kv_pass({opts.get("n2", 8): 1})
    else:
        bars = {}
        st = -1
        for c in range(ES + 1, 8):
            bars[st] = bars.get(st, 0) + 1
            st = 1 if st < 0 else st + opts.get("esp", 1)
        ne = opts.get("ne", 8)
        bars[ne] = bars.get(ne, 0) + 1
        bars[opts.get("n2", 18)] = bars.get(opts.get("n2", 18), 0) + 1
        kv_pass(bars)

    a.label("L_kvend")
    stamp(12)
    a(f"""v_add_u32 {vr(V_XA0)}, {sr(S_KM)}, {vr(V_L16)}
          s_nop 8
          s_cmp_lt_u32 {sr(S_AUX)}, 2
          s_cbranch_scc1 L_kcvt""")
    phi(KACC[0], 32, 56)
    a(f"""s_cmp_eq_u32 {sr(S_AUX)}, 2
          s_cselect_b32 {sr(S_WOA)}, {sr(S_KA+4)}, {sr(S_KA+14)}
          s_cselect_b32 {sr(S_WOA+1)}, {sr(S_KA+5)}, {sr(S_KA+15)}
          s_mov_b32 {sr(S_WOA+2)}, 0x80000
          s_mov_b32 {sr(S_WOA+3)}, 0x20000
          v_lshlrev_b32 {vr(V_T0)}, 7, {vr(V_LANE)}
          s_lshl_b32 {sr(S_T0)}, s2, 11
          s_mov_b64 exec, 0xffff
          buffer_load_dword {vr(V_FLG)}, {vr(V_T0)}, {sr(S_WOA,4)}, {sr(S_T0)} offen
          s_mov_b64 exec, -1""")
    a.label("L_kcvt")
    for f in range(4):
        for i in range(4):
            a(f"v_cvt_pk_bf16_f32 {vr(56+4*f+i)}, {vr(KACC[0]+8*f+2*i)}, {vr(KACC[0]+8*f+2*i+1)}")
        a(f"ds_write_b128 {vr(V_XA0)}, {vr(56+4*f,4)} offset:{f*1024}")
    a("s_waitcnt lgkmcnt(0)")
    stamp(13)
    a(f"""s_barrier
          s_cmp_eq_u32 {sr(S_AUX)}, 0
          s_cbranch_scc1 L_a0b
          s_cmp_eq_u32 {sr(S_AUX)}, 1
          s_cbranch_scc1 L_a1b""")
    if ts: ts_out()
    a("s_endpgm")

    a.label("L_a0b")
    HV, HK, HKV, HZ, HON = 56, 88, [16, 32], [120, 136], 52
    a(f"v_add_u32 {vr(V_T1)}, {L_HI}, {vr(V_L16)}")
    for nt in range(2):
        if nt: a("s_waitcnt lgkmcnt(4)")
        for f in range(4):
            off = (f // 2) * 8192 + nt * 2048 + (f % 2) * 1024
            a(f"ds_read_b128 {vr(HV+16*nt+4*f,4)}, {vr(V_T1)} offset:{off}")
            a(f"ds_read_b128 {vr(HK+16*nt+4*f,4)}, {vr(V_T1)} offset:{16384 + off}")
    for i in range(4):
        a(f"v_mov_b32 {vr(HON+i)}, {sr(S_ONES)}")
    a(f"""v_bfe_u32 {vr(V_T2)}, {vr(V_LANE)}, 3, 1
          v_lshlrev_b32 {vr(V_T2)}, 11, {vr(V_T2)}
          v_and_b32 {vr(V_T3)}, 3, {vr(V_LANE)}
          v_lshl_add_u32 {vr(V_T2)}, {vr(V_T3)}, 9, {vr(V_T2)}
          v_bfe_u32 {vr(V_T3)}, {vr(V_LANE)}, 4, 1
          v_lshl_add_u32 {vr(V_T2)}, {vr(V_T3)}, 3, {vr(V_T2)}
          v_bfe_u32 {vr(V_T3)}, {vr(V_LANE)}, 2, 1
          v_lshl_add_u32 {vr(V_T2)}, {vr(V_T3)}, 2, {vr(V_T2)}
          s_waitcnt lgkmcnt(0)""")
    for nt in range(2):
        for f in range(4):
            a(f"v_mfma_f32_32x32x16_bf16 {vr(HKV[nt],16)}, {vr(HK+16*nt+4*f,4)}, {vr(HV+16*nt+4*f,4)}, {'0' if f==0 else vr(HKV[nt],16)}")
            a(f"v_mfma_f32_32x32x16_bf16 {vr(HZ[nt],16)}, {vr(HON,4)}, {vr(HK+16*nt+4*f,4)}, {'0' if f==0 else vr(HZ[nt],16)}")
    a(f"""s_lshl_b32 {sr(S_T0)}, {sr(S_HGK)}, 13
          s_add_u32 {sr(S_T0)}, {sr(S_T0)}, {WS_ACC}
          s_add_u32 {sr(S_T1)}, {sr(S_T0)}, 4096
          s_nop 9""")
    for nt in range(2):
        for r in range(8):
            a(f"v_cndmask_b32 {vr(HKV[nt]+r)}, {vr(HKV[nt]+8+r)}, {vr(HKV[nt]+r)}, {sr(S_VMASK,2)}")
        for r in range(8):
            a(f"buffer_atomic_add_f32 {vr(HKV[nt]+r)}, {vr(V_L4)}, {sr(S_WS,4)}, {sr(S_T0 if nt == 0 else S_T1)} offen offset:{r*512} sc1")
    a(f"""s_mov_b32 exec_hi, 0
          buffer_atomic_add_f32 {vr(HZ[0])}, {vr(V_T2)}, {sr(S_WS,4)}, {sr(S_T0)} offen offset:256 sc1
          buffer_atomic_add_f32 {vr(HZ[1])}, {vr(V_T2)}, {sr(S_WS,4)}, {sr(S_T1)} offen offset:256 sc1
          s_mov_b32 exec_hi, -1
          s_lshl_b32 {sr(S_T3)}, {sr(S_HGK)}, 7
          s_lshl_b32 {sr(S_T0)}, {sr(S_QB)}, 2
          s_add_u32 {sr(S_T0)}, {sr(S_T0)}, {sr(S_T3)}
          s_add_u32 {sr(S_T0)}, {sr(S_T0)}, {WS_FA}
          s_lshl_b32 {sr(S_T3)}, {sr(S_HGQ)}, 7
          s_add_u32 {sr(S_T3)}, {sr(S_T3)}, {WS_FA}""")
    stamp(14)
    if opts.get("fa_early", 1):
        a("s_waitcnt vmcnt(0)")
        flag_store(S_T0)
        stamp(15)
        a("s_barrier")
    else:
        a("s_barrier\ns_waitcnt vmcnt(0)")
        flag_store(S_T0)
        stamp(15)
    a(f"v_not_b32 {vr(V_FLG)}, {vr(V_TAG)}")
    flag_spin("L_sfa", S_T3)
    stamp(16)
    if ts: ts_out()
    a("""s_barrier
         s_endpgm""")

    a.label("L_a1b")
    srd(S_WOA, 4, 0x80000)
    srd(S_WOB, 14, 0x80000)
    omap()
    rot_setup()
    kv_dma("L_kvdC", 32, 64)
    swz64(V_WOFF, 1024)
    a("s_waitcnt vmcnt(0)")
    stamp(14)
    a("s_barrier")
    def wodma(lbl, srdw, r0, nrows, dst):
        a(f"""s_lshl_b32 {sr(S_T0)}, {sr(S_NS)}, 7
              s_add_u32 {sr(S_T0)}, {sr(S_T0)}, {r0*1024}
              s_mov_b32 m0, {dst}""")
        a.label(lbl)
        a("s_waitcnt vmcnt(40)")
        for i in range(4):
            a(f"buffer_load_dwordx4 {vr(V_WOFF)}, {sr(srdw,4)}, {sr(S_T0)} offen lds")
            a(f"""s_add_u32 m0, m0, 1024
                  s_add_u32 {sr(S_T0)}, {sr(S_T0)}, 8192""")
        a(f"""s_cmp_lt_u32 m0, {dst + nrows*128}
              s_cbranch_scc1 {lbl}""")
    wodma("L_woa", S_WOA, 0, 512, 0)
    stamp(15)
    a("s_barrier")
    wodma("L_wob0", S_WOB, 0, 256, L_HI)
    a("s_waitcnt vmcnt(0)")
    stamp(16)
    a("s_barrier")
    wodma("L_wob1", S_WOB, 256, 256, 65536)
    a("s_waitcnt vmcnt(0)")
    if ts:
        stamp(17)
        ts_out()
    a("""s_barrier
         s_endpgm""")

    head = open("cdna_kernels/" + NAME + ".s.ref").read().split("\n")
    hdr = [l for l in head if l.startswith(";") and "@launch" not in l and "Override" not in l and "grid=ceil" not in l]
    out = "\n".join(hdr) + f"\n; @launch grid=(256,1,1) block=({NWAVE*64},1,1) lds={LDS_SIZE}\n"
    out += f""".amdgcn_target "amdgcn-amd-amdhsa--gfx950"
.text
.globl {NAME}_kernel
.p2align 8
.type {NAME}_kernel,@function
"""
    out += a.text()
    out += f""".section .rodata,"a"
.p2align 6
.amdhsa_kernel {NAME}_kernel
  .amdhsa_next_free_vgpr {NVGPR}
  .amdhsa_next_free_sgpr 102
  .amdhsa_accum_offset {NVGPR}
  .amdhsa_group_segment_fixed_size 0
  .amdhsa_kernarg_size 96
  .amdhsa_user_sgpr_count 2
  .amdhsa_user_sgpr_kernarg_segment_ptr 1
  .amdhsa_system_sgpr_workgroup_id_x 1
.end_amdhsa_kernel
"""
    return out

if __name__ == "__main__":
    opts = {}
    outp = "cdna_kernels/" + NAME + ".s"
    for arg in sys.argv[1:]:
        if arg.startswith("-o"):
            outp = arg[2:]
        elif "=" in arg:
            k, v = arg.split("=")
            opts[k] = int(v)
        else:
            opts[arg] = True
    open(outp, "w").write(gen(opts))
    print("wrote", outp)
```

```python
import sys, math, struct

NAME = "gated_mix__linear_attn_block__grouped_kv_mqa__prompt"

def f2u(x):
    return struct.unpack("<I", struct.pack("<f", x))[0]

class Asm:
    def __init__(self):
        self.lines = []
        self.vm = []
    def __call__(self, s):
        for l in s.split("\n"):
            l = l.strip()
            if l:
                self.lines.append("    " + l)
    def label(self, l):
        self.lines.append(l + ":")
    def vmem(self, s, tag):
        self(s)
        self.vm.append(tag)
        assert len(self.vm) <= 63
    def vm_n(self, tag):
        idx = max(i for i, t in enumerate(self.vm) if t == tag)
        return len(self.vm) - 1 - idx
    def drop_to(self, n):
        self.vm = self.vm[len(self.vm) - n:] if n else []
    def wait_vm(self, tag, extra=""):
        n = 0 if tag is None else self.vm_n(tag)
        self.drop_to(n)
        self(f"s_waitcnt vmcnt({n}) {extra}".strip())
    def text(self):
        return "\n".join(self.lines) + "\n"

def vr(a, n=1):
    return f"v{a}" if n == 1 else f"v[{a}:{a+n-1}]"
def sr(a, n=1):
    return f"s{a}" if n == 1 else f"s[{a}:{a+n-1}]"

WS_E = 0x000000
WS_FKV = 0x000400
WS_FA = 0x001000
WS_FO = 0x004000
WS_G = 0x014000
WS_KV = 0x020000
WS_ACC = 0x040000
WS_KVT = 0x080000
WS_OA = 0x200000
WS_OB = 0x208000
WS_DBG1 = 0x600000
WS_DBG2 = 0x800000
WS_TS = 0xA00000
WS_SIZE = 0x1000000
L_JW = 0
L_X = 65536
L_HI = 131072
L_GW = L_HI + 16384
RSLOT = [16384, 32768, 49152, L_HI]
LDS_SIZE = 163840
LOG2E = 1.4426950408889634
QSCALE = 0.25 * LOG2E
NVGPR = 168
NWAVE = 12

S_HGQ, S_TAG, S_QO, S_NS, S_RDY = 3, 4, 5, 6, 7
S_X, S_W, S_WJ = 8, 12, 16
S_EPS, S_ONES, S_RGJ, S_HGK = 20, 21, 22, 23
S_XMASK, S_HEADA, S_AUX = 24, 26, 27
S_WOA, S_WOB, S_OUT, S_DBG, S_WS = 28, 32, 36, 40, 44
S_WAVE, S_QB, S_HG, S_RT, S_HH = 48, 49, 50, 51, 52
S_T0, S_T1, S_T2, S_T3 = 53, 54, 55, 56
S_U0, S_U1, S_U2, S_U3 = 57, 58, 59, 60
S_SEG, S_SPIN, S_HEAD = 61, 62, 63
S_VMASK, S_RT32, S_RO32, S_SAVE = 64, 66, 67, 68
S_LOG2E, S_QS = 70, 72
S_TS = 74
S_XCC, S_FAST = 18, 19
S_KA = 76

def gen(opts):
    ts = opts.get("ts", False)
    dbg = opts.get("dbg", False)
    a = Asm()
    V_STAMP = NVGPR - 1

    def stamp(i):
        if not ts: return
        a(f"""s_memrealtime {sr(S_TS,2)}
              s_memtime s[100:101]
              s_waitcnt lgkmcnt(0)
              v_writelane_b32 v{V_STAMP}, {sr(S_TS)}, {i}
              v_writelane_b32 v{V_STAMP}, s100, {32+i}""")

    V_LANE = 1
    V_T0, V_T1, V_T2, V_T3 = 2, 3, 4, 5
    V_XOFF, V_WOFF = 6, 7
    V_XA0, V_XA1, V_WA = 8, 9, 10
    V_L16, V_G, V_IDX, V_KA, V_VA = 11, 12, 13, 14, 15
    V_QF, V_PQ = 16, 20
    V_ACCQ = 24
    V_FB = [40, 72]
    V_O, V_C, V_KF = 104, 120, 136
    V_VF = [140, 148]
    V_L4, V_FLG, V_TAG, V_WOA0, V_WOA1, V_WA3 = 156, 157, 158, 159, 160, 161
    V_PK = 162
    V_S = [24, 40]
    V_AC, V_OA = 56, 72
    V_FA, V_FBB, V_WO = 56, 120, 88
    V_OUT = [24, 40]

    def srd(s, ka, size):
        a(f"""s_mov_b32 {sr(s)}, {sr(S_KA+ka)}
              s_mov_b32 {sr(s+1)}, {sr(S_KA+ka+1)}
              s_mov_b32 {sr(s+2)}, {hex(size)}
              s_mov_b32 {sr(s+3)}, 0x20000""")
    def flag_store(soff):
        a(f"""s_mov_b64 exec, 1
              buffer_store_dword {vr(V_TAG)}, {vr(V_L4)}, {sr(S_WS,4)}, {sr(soff)} offen sc1
              s_mov_b64 exec, -1""")
    def flag_load(soff):
        a(f"""s_mov_b32 exec_hi, 0
              buffer_load_dword {vr(V_FLG)}, {vr(V_L4)}, {sr(S_WS,4)}, {sr(soff)} offen sc1
              s_mov_b32 exec_hi, -1""")
    def flag_spin(lbl, soff):
        a(f"s_mov_b32 {sr(S_SPIN)}, 0")
        a.label(lbl + "_loop")
        a(f"""v_cmp_ne_u32 vcc, {vr(V_FLG)}, {vr(V_TAG)}
              s_cmp_eq_u32 vcc_lo, 0
              s_cbranch_scc1 {lbl}_ok
              s_add_u32 {sr(S_SPIN)}, {sr(S_SPIN)}, 1
              s_cmp_ge_u32 {sr(S_SPIN)}, 100000
              s_cbranch_scc1 {lbl}_ok""")
        flag_load(soff)
        a(f"""s_waitcnt vmcnt(0)
              s_branch {lbl}_loop""")
        a.label(lbl + "_ok")
    def arm_spin(lbl, soff):
        a(f"s_mov_b32 {sr(S_SPIN)}, 0")
        a.label(lbl + "_loop")
        a(f"""v_sub_u32 {vr(V_FLG)}, {vr(V_FLG)}, {vr(V_TAG)}
              v_cmp_lt_u32 vcc, 15, {vr(V_FLG)}
              s_cmp_eq_u32 vcc_lo, 0
              s_cbranch_scc1 {lbl}_ok
              s_add_u32 {sr(S_SPIN)}, {sr(S_SPIN)}, 1
              s_cmp_ge_u32 {sr(S_SPIN)}, 100000
              s_cbranch_scc1 {lbl}_ok""")
        flag_load(soff)
        a(f"""s_waitcnt vmcnt(0)
              s_branch {lbl}_loop""")
        a.label(lbl + "_ok")
    def tag_setup():
        a(f"""s_waitcnt lgkmcnt(0)
              s_mul_i32 {sr(S_TAG)}, {sr(S_TAG)}, 0x9e3779b1
              s_add_u32 {sr(S_TAG)}, {sr(S_TAG)}, 0x7f4a7c15
              v_mov_b32 {vr(V_TAG)}, {sr(S_TAG)}""")
    def omap():
        a(f"""s_and_b32 {sr(S_QO)}, s2, 7
              s_lshl_b32 {sr(S_QO)}, {sr(S_QO)}, 2
              s_bfe_u32 {sr(S_T1)}, s2, 0x20003
              s_add_u32 {sr(S_QO)}, {sr(S_QO)}, {sr(S_T1)}
              s_lshr_b32 {sr(S_NS)}, s2, 5""")
    def ts_out():
        a(f"""s_mul_i32 {sr(S_T0)}, s2, {NWAVE}
              s_add_u32 {sr(S_T0)}, {sr(S_T0)}, {sr(S_WAVE)}
              s_lshl_b32 {sr(S_T0)}, {sr(S_T0)}, 8
              s_add_u32 {sr(S_T0)}, {sr(S_T0)}, {WS_TS}
              buffer_store_dword v{V_STAMP}, {vr(V_L4)}, {sr(S_WS,4)}, {sr(S_T0)} offen""")
    def phi(src, n, tmp):
        for i in range(0, n, 2):
            a(f"v_pk_mul_f32 {vr(tmp+i,2)}, {sr(S_LOG2E,2)}, {vr(src+i,2)}")
        for i in range(n):
            a(f"v_exp_f32 {vr(tmp+i)}, {vr(tmp+i)} clamp")
        for i in range(n):
            a(f"v_max_f32 {vr(src+i)}, {sr(S_EPS)}, {vr(src+i)}")
        for i in range(0, n, 2):
            a(f"v_pk_add_f32 {vr(src+i,2)}, {vr(src+i,2)}, {vr(tmp+i,2)}")

    a.label(f"{NAME}_kernel")
    a(f"""s_cmp_ge_u32 s2, 256
          s_cbranch_scc1 L_end
          s_load_dwordx16 {sr(S_KA,16)}, s[0:1], 0
          s_load_dwordx8 {sr(S_KA+16,8)}, s[0:1], 64
          v_and_b32 {vr(V_LANE)}, 63, v0
          v_lshrrev_b32 {vr(V_T0)}, 6, v0
          s_and_b32 {sr(S_T0)}, s2, 7
          v_readfirstlane_b32 {sr(S_WAVE)}, {vr(V_T0)}
          s_lshl_b32 {sr(S_T0)}, {sr(S_T0)}, 2
          s_bfe_u32 {sr(S_T1)}, s2, 0x20003
          s_add_u32 {sr(S_QB)}, {sr(S_T0)}, {sr(S_T1)}
          s_sub_u32 {sr(S_WAVE)}, {sr(S_WAVE)}, 4
          s_cselect_b32 {sr(S_T1)}, 12, 0
          s_add_u32 {sr(S_WAVE)}, {sr(S_WAVE)}, {sr(S_T1)}
          s_lshr_b32 {sr(S_HG)}, s2, 5
          s_lshr_b32 {sr(S_RGJ)}, {sr(S_HG)}, 1
          s_xor_b32 {sr(S_HGQ)}, {sr(S_HG)}, 1
          s_xor_b32 {sr(S_HGK)}, {sr(S_HG)}, 2""")
    stamp(0)
    a(f"""v_lshrrev_b32 {vr(V_T0)}, 4, {vr(V_LANE)}
          v_xor_b32 {vr(V_T0)}, {vr(V_T0)}, {vr(V_LANE)}
          v_and_b32 {vr(V_T0)}, 3, {vr(V_T0)}
          v_lshlrev_b32 {vr(V_T0)}, 4, {vr(V_T0)}
          v_lshrrev_b32 {vr(V_T1)}, 2, {vr(V_LANE)}
          v_lshl_add_u32 {vr(V_XOFF)}, {vr(V_T1)}, 10, {vr(V_T0)}
          v_lshlrev_b32 {vr(V_L16)}, 4, {vr(V_LANE)}
          v_lshlrev_b32 {vr(V_L4)}, 2, {vr(V_LANE)}
          s_mov_b32 {sr(S_X+2)}, 0x200000
          s_mov_b32 {sr(S_X+3)}, 0x20000
          s_lshl_b32 {sr(S_T0)}, {sr(S_QB)}, 16
          s_cmp_eq_u32 {sr(S_WAVE)}, 8
          s_cbranch_scc1 L_a0
          s_cmp_eq_u32 {sr(S_WAVE)}, 9
          s_cbranch_scc1 L_a1
          s_cmp_ge_u32 {sr(S_WAVE)}, 10
          s_cbranch_scc1 L_a23
          s_and_b32 {sr(S_RT)}, {sr(S_WAVE)}, 1
          s_lshr_b32 {sr(S_HH)}, {sr(S_WAVE)}, 1""")
    S_XOFF, S_XM0 = S_U0, S_U1
    a(f"""s_and_b32 {sr(S_T1)}, {sr(S_WAVE)}, 3
          s_lshr_b32 {sr(S_T2)}, {sr(S_WAVE)}, 2
          s_lshl_b32 {sr(S_T3)}, {sr(S_T1)}, 14
          s_add_u32 {sr(S_XOFF)}, {sr(S_T0)}, {sr(S_T3)}
          s_lshl_b32 {sr(S_T3)}, {sr(S_T2)}, 7
          s_add_u32 {sr(S_XOFF)}, {sr(S_XOFF)}, {sr(S_T3)}
          s_lshl_b32 {sr(S_XM0)}, {sr(S_T1)}, 10
          s_lshl_b32 {sr(S_T3)}, {sr(S_T2)}, 13
          s_add_u32 {sr(S_XM0)}, {sr(S_XM0)}, {sr(S_T3)}
          s_cmp_eq_u32 {sr(S_T1)}, {sr(S_RGJ)}
          s_cselect_b64 {sr(S_XMASK,2)}, 1, -1""")
    a(f"""s_cmp_eq_u32 {sr(S_T1)}, 0
          s_cselect_b32 {sr(S_T3)}, 1, 3
          s_lshl_b32 {sr(S_W+2)}, {sr(S_T3)}, 19
          s_mov_b32 {sr(S_W+3)}, 0x20000
          s_lshl_b32 {sr(S_T3)}, {sr(S_T3)}, 10
          v_lshrrev_b32 {vr(V_T2)}, 3, {vr(V_LANE)}
          v_mul_u32_u24 {vr(V_T2)}, {sr(S_T3)}, {vr(V_T2)}
          v_and_b32 {vr(V_T3)}, 7, {vr(V_LANE)}
          v_lshl_add_u32 {vr(V_T2)}, {vr(V_T3)}, 7, {vr(V_T2)}
          s_lshl_b32 {sr(S_T2)}, s2, 1
          s_mul_i32 {sr(S_T2)}, {sr(S_T2)}, {sr(S_T3)}
          s_max_u32 {sr(S_T3)}, {sr(S_T1)}, 1
          s_sub_u32 {sr(S_T3)}, {sr(S_T3)}, 1
          s_lshl_b32 {sr(S_T3)}, {sr(S_T3)}, 10
          s_add_u32 {sr(S_T2)}, {sr(S_T2)}, {sr(S_T3)}
          v_lshlrev_b32 {vr(V_T3)}, 6, {vr(V_LANE)}
          s_lshl_b32 {sr(S_T3)}, {sr(S_HG)}, 13
          s_lshl_b32 {sr(S_RDY)}, {sr(S_WAVE)}, 10
          s_add_u32 {sr(S_T3)}, {sr(S_T3)}, {sr(S_RDY)}
          s_add_u32 {sr(S_T3)}, {sr(S_T3)}, {sr(S_T0)}
          s_waitcnt lgkmcnt(0)
          s_mov_b32 {sr(S_X)}, {sr(S_KA+0)}
          s_mov_b32 {sr(S_X+1)}, {sr(S_KA+1)}
          s_cmp_eq_u32 {sr(S_T1)}, 0
          s_cselect_b32 {sr(S_W)}, {sr(S_KA+8)}, {sr(S_KA+2)}
          s_cselect_b32 {sr(S_W+1)}, {sr(S_KA+9)}, {sr(S_KA+3)}
          s_load_dword {sr(S_TAG)}, {sr(S_KA+22,2)}, {WS_E}""")
    def xdma(r):
        a(f"s_add_u32 m0, {sr(S_XM0)}, {L_X + r*16384 - r*256}")
        a(f"s_mov_b64 exec, {sr(S_XMASK,2)}")
        a.vmem(f"buffer_load_dwordx4 {vr(V_XOFF)}, {sr(S_X,4)}, {sr(S_XOFF)} offen offset:{r*256} lds", f"x{r}")
        a(f"s_add_u32 m0, {sr(S_XM0)}, {L_X + r*16384 + 4096 - r*256 - 64}")
        a("s_nop 0")
        a.vmem(f"buffer_load_dwordx4 {vr(V_XOFF)}, {sr(S_X,4)}, {sr(S_XOFF)} offen offset:{r*256 + 64} lds", f"x{r}")
        a("s_mov_b64 exec, -1")
    def pf():
        a(f"""s_cmp_lt_u32 {sr(S_WAVE)}, 4
              s_cselect_b32 exec_lo, 0xffff, 1
              s_mov_b32 exec_hi, 0""")
        a.vmem(f"buffer_load_dword {vr(V_FLG)}, {vr(V_T2)}, {sr(S_W,4)}, {sr(S_T2)} offen", "pf")
        a("s_mov_b32 exec_lo, 0x55")
        a.vmem(f"buffer_load_dword {vr(V_FLG)}, {vr(V_T3)}, {sr(S_X,4)}, {sr(S_T3)} offen offset:512", "pf")
        a("s_mov_b64 exec, -1")
    if opts.get("pffirst", 0):
        pf(); xdma(0)
    else:
        xdma(0); pf()
    srd(S_WS, 22, WS_SIZE)
    srd(S_OUT, 18, 0x200000)
    if ts: srd(S_DBG, 20, 256)
    omap()
    a(f"""v_lshlrev_b32 {vr(V_T2)}, 15, {vr(V_LANE)}
          s_lshl_b32 {sr(S_T1)}, {sr(S_QB)}, 17
          s_lshl_b32 {sr(S_T2)}, {sr(S_QO)}, 17
          s_cmp_eq_u32 {sr(S_WAVE)}, 1
          s_cselect_b32 {sr(S_T1)}, {sr(S_T1)}, {sr(S_T2)}
          s_add_u32 {sr(S_T1)}, {sr(S_T1)}, {WS_OA}
          s_cmp_eq_u32 {sr(S_WAVE)}, 0
          s_cselect_b32 {sr(S_T1)}, 0x380, {sr(S_T1)}
          s_cselect_b32 exec_lo, 0xffffff, 15
          s_mov_b32 exec_hi, 0
          s_cmp_ge_u32 {sr(S_WAVE)}, 3
          s_cbranch_scc1 L_tlb1
          buffer_load_dword {vr(V_FLG)}, {vr(V_T2)}, {sr(S_WS,4)}, {sr(S_T1)} offen sc1
          s_branch L_tlb2""")
    a.label("L_tlb1")
    a(f"""s_lshl_b32 {sr(S_T1)}, {sr(S_QO)}, 16
          s_mov_b32 exec_lo, 3
          buffer_load_dword {vr(V_FLG)}, {vr(V_T2)}, {sr(S_OUT,4)}, {sr(S_T1)} offen""")
    a.label("L_tlb2")
    a("s_mov_b64 exec, -1")
    a.vm.append("tlb")
    xdma(1)
    def consts():
        a(f"""s_mov_b32 {sr(S_VMASK)}, 0xffff
              s_mov_b32 {sr(S_VMASK+1)}, 0xffff
              s_mov_b32 {sr(S_LOG2E)}, {hex(f2u(LOG2E))}
              s_mov_b32 {sr(S_LOG2E+1)}, {hex(f2u(LOG2E))}
              s_mov_b32 {sr(S_EPS)}, {hex(f2u(1e-6))}
              s_mov_b32 {sr(S_ONES)}, 0x3f803f80""")
    def xfrag_addr(rt_s):
        a(f"""v_and_b32 {vr(V_T0)}, 31, {vr(V_LANE)}
              v_lshrrev_b32 {vr(V_T1)}, 5, {vr(V_LANE)}
              v_bfe_u32 {vr(V_T2)}, {vr(V_LANE)}, 2, 2
              v_xor_b32 {vr(V_T2)}, {vr(V_T2)}, {vr(V_T1)}
              v_lshlrev_b32 {vr(V_T2)}, 4, {vr(V_T2)}
              v_lshl_add_u32 {vr(V_T3)}, {vr(V_T0)}, 6, {vr(V_T2)}
              s_lshl_b32 {sr(S_T0)}, {sr(rt_s)}, 11
              s_add_u32 {sr(S_T0)}, {sr(S_T0)}, {L_X}
              v_add_u32 {vr(V_XA0)}, {sr(S_T0)}, {vr(V_T3)}
              v_xor_b32 {vr(V_XA1)}, 32, {vr(V_XA0)}""")
    consts()
    a(f"""s_lshl_b32 {sr(S_HEAD)}, {sr(S_HG)}, 2
          s_add_u32 {sr(S_HEAD)}, {sr(S_HEAD)}, {sr(S_HH)}
          s_lshl_b32 {sr(S_HEADA)}, {sr(S_HGQ)}, 2
          s_add_u32 {sr(S_HEADA)}, {sr(S_HEADA)}, {sr(S_HH)}
          s_lshl_b32 {sr(S_RT32)}, {sr(S_QB)}, 1
          s_add_u32 {sr(S_RT32)}, {sr(S_RT32)}, {sr(S_RT)}
          s_lshl_b32 {sr(S_RO32)}, {sr(S_QO)}, 1
          s_add_u32 {sr(S_RO32)}, {sr(S_RO32)}, {sr(S_RT)}
          s_mov_b32 {sr(S_QS)}, {hex(f2u(QSCALE))}
          s_mov_b32 {sr(S_QS+1)}, {hex(f2u(QSCALE))}""")
    xfrag_addr(S_RT)
    a(f"""v_bfe_u32 {vr(V_T0)}, {vr(V_LANE)}, 4, 1
          v_bfe_u32 {vr(V_T2)}, {vr(V_LANE)}, 3, 2
          v_xor_b32 {vr(V_T2)}, {sr(S_HH)}, {vr(V_T2)}
          v_lshlrev_b32 {vr(V_T2)}, 5, {vr(V_T2)}
          v_lshl_add_u32 {vr(V_T2)}, {vr(V_T0)}, 13, {vr(V_T2)}
          v_lshl_add_u32 {vr(V_T2)}, {vr(V_T1)}, 10, {vr(V_T2)}
          v_bfe_u32 {vr(V_T0)}, {vr(V_LANE)}, 2, 2
          v_lshl_add_u32 {vr(V_T2)}, {vr(V_T0)}, 7, {vr(V_T2)}
          v_and_b32 {vr(V_T0)}, 3, {vr(V_LANE)}
          v_lshl_add_u32 {vr(V_WA)}, {vr(V_T0)}, 3, {vr(V_T2)}
          v_add_u32 {vr(V_WA3)}, {L_HI}, {vr(V_WA)}""")
    for i in range(8):
        a(f"v_mov_b32 {vr(V_ACCQ+i)}, 0")
        a(f"v_mov_b32 {vr(V_ACCQ+8+i)}, {sr(S_EPS)}")
    a(f"""v_mov_b32 {vr(V_T0)}, {sr(S_ONES)}
          s_mov_b32 {sr(S_SAVE)}, 0x110000
          s_mov_b32 {sr(S_SAVE+1)}, 0x110000
          v_cndmask_b32 {vr(V_T0)}, 0, {vr(V_T0)}, {sr(S_SAVE,2)}""")
    for i in range(16):
        a(f"v_mov_b32 {vr(V_O+i)}, 0")
        a(f"v_mov_b32 {vr(V_VF[0]+i)}, {vr(V_T0)}")
    a(f"""v_mov_b32 {vr(V_IDX)}, 0xdddd
          v_mov_b32 {vr(V_KA)}, {vr(V_L16)}
          v_and_b32 {vr(V_T3)}, 15, {vr(V_LANE)}
          v_lshlrev_b32 {vr(V_T3)}, 4, {vr(V_T3)}
          v_lshl_add_u32 {vr(V_VA)}, {vr(V_T1)}, 8, {vr(V_T3)}""")
    tag_setup()
    stamp(1)

    def reads(c):
        fb = V_FB[c % 2]
        s = c % 4
        wa, wo = (V_WA, RSLOT[s]) if s < 3 else (V_WA3, 0)
        r = []
        for p in range(4):
            r.append(f"ds_read_b128 {vr(fb+4*p,4)}, {vr(V_XA0 if p%2==0 else V_XA1)} offset:{(2*c + p//2)*4096}")
            for u in range(2):
                r.append(f"ds_read_b64_tr_b16 {vr(fb+16+4*p+2*u,2)}, {vr(wa)} offset:{wo + p*2048 + u*512}")
        return r
    def mfmas(c):
        fb = V_FB[c % 2]
        return [f"v_mfma_f32_32x32x16_bf16 {vr(V_ACCQ,16)}, {vr(fb+16+4*p,4)}, {vr(fb+4*p,4)}, {vr(V_ACCQ,16)}" for p in range(4)]
    for c in range(8):
        if c in (0, 2):
            a.wait_vm(f"x{c//2}", "lgkmcnt(0)")
        else:
            a("s_waitcnt lgkmcnt(0)")
        a("s_barrier")
        R_ = reads(c)
        if c == 0:
            for r in R_: a(r)
        else:
            M_ = mfmas(c - 1)
            for k in range(4):
                a(M_[k])
                for r in R_[4*k:4*k+4]: a(r)
    for k, m in enumerate(mfmas(7)):
        a(f"s_waitcnt lgkmcnt({9-3*k})")
        a(m)
    stamp(2)
    E = V_FB[0]
    a(f"""s_mov_b32 {sr(S_SEG)}, 0
          s_nop 10""")
    for i in range(0, 8, 2):
        a(f"v_pk_mul_f32 {vr(V_ACCQ+i,2)}, {sr(S_QS,2)}, {vr(V_ACCQ+i,2)}")
    for i in range(4):
        a(f"v_cvt_pk_bf16_f32 {vr(V_QF+i)}, {vr(V_ACCQ+2*i)}, {vr(V_ACCQ+2*i+1)}")
    phi(V_ACCQ + 8, 8, E)
    for i in range(4):
        a(f"v_cvt_pk_bf16_f32 {vr(V_PQ+i)}, {vr(V_ACCQ+8+2*i)}, {vr(V_ACCQ+8+2*i+1)}")
    stamp(3)
    a("s_barrier")
    stamp(4)
    a(f"""ds_read_b128 {vr(V_KF,4)}, {vr(V_KA)}
          s_mov_b64 exec, {sr(S_VMASK,2)}
          ds_read_b128 {vr(V_VF[0],4)}, {vr(V_VA)} offset:1024
          ds_read_b128 {vr(V_VF[0]+4,4)}, {vr(V_VA)} offset:1536
          ds_read_b128 {vr(V_VF[1],4)}, {vr(V_VA)} offset:{2048+1024}
          ds_read_b128 {vr(V_VF[1]+4,4)}, {vr(V_VA)} offset:{2048+1536}
          s_mov_b64 exec, -1
          s_waitcnt lgkmcnt(4)
          v_mfma_f32_32x32x16_bf16 {vr(V_S[0],16)}, {vr(V_KF,4)}, {vr(V_QF,4)}, 0
          ds_read_b128 {vr(V_KF,4)}, {vr(V_KA)} offset:2048""")
    if dbg:
        for reg, hd, base in ((V_QF, S_HEAD, WS_DBG1), (V_PQ, S_HEADA, WS_DBG2)):
            a(f"""s_lshl_b32 {sr(S_T0)}, {sr(S_RT32)}, 5
                  s_add_u32 {sr(S_T0)}, {sr(S_T0)}, {sr(hd)}
                  s_lshl_b32 {sr(S_T0)}, {sr(S_T0)}, 10
                  s_add_u32 {sr(S_T1)}, {sr(S_T0)}, {base}
                  buffer_store_dwordx4 {vr(reg,4)}, {vr(V_L16)}, {sr(S_WS,4)}, {sr(S_T1)} offen""")
    S0 = V_S[0]
    a(f"""s_nop 10
          v_max3_f32 {vr(V_T0)}, {vr(S0)}, {vr(S0+1)}, {vr(S0+2)}
          v_max3_f32 {vr(V_T1)}, {vr(S0+3)}, {vr(S0+4)}, {vr(S0+5)}
          v_max3_f32 {vr(V_T2)}, {vr(S0+6)}, {vr(S0+7)}, {vr(S0+8)}
          v_max3_f32 {vr(V_T3)}, {vr(S0+9)}, {vr(S0+10)}, {vr(S0+11)}
          v_max3_f32 {vr(V_T0)}, {vr(V_T0)}, {vr(S0+12)}, {vr(S0+13)}
          v_max3_f32 {vr(V_T1)}, {vr(V_T1)}, {vr(S0+14)}, {vr(S0+15)}
          v_max3_f32 {vr(V_T0)}, {vr(V_T0)}, {vr(V_T1)}, {vr(V_T2)}
          v_max_f32 {vr(V_T0)}, {vr(V_T0)}, {vr(V_T3)}
          v_mov_b32 {vr(V_T1)}, {vr(V_T0)}
          s_nop 1
          v_permlane32_swap_b32 {vr(V_T0)}, {vr(V_T1)}
          s_nop 1
          v_max_f32 {vr(V_T0)}, {vr(V_T0)}, {vr(V_T1)}
          v_sub_f32 {vr(V_T2)}, 0, {vr(V_T0)}
          v_sub_f32 {vr(V_T3)}, 0, {vr(V_T0)}""")
    for i in range(0, 16, 2):
        a(f"v_pk_add_f32 {vr(S0+i,2)}, {vr(S0+i,2)}, {vr(V_T2,2)}")
    for i in range(0, 16, 2):
        a(f"v_pk_mov_b32 {vr(V_C+i,2)}, {vr(V_T2,2)}, {vr(V_T2,2)} op_sel:[0,1]")
    a(f"""v_exp_f32 {vr(S0)}, {vr(S0)}
          v_exp_f32 {vr(S0+1)}, {vr(S0+1)}
          s_waitcnt lgkmcnt(0)""")
    stamp(5)

    PR = opts.get("ramp", "3210")
    PR = [int(ch) for ch in str(PR).zfill(4)]
    def segment(extra=None):
        last = extra is not None
        NT = 10 if last else 8
        ramp = {0: PR[0], 6: PR[1], 8: PR[2], 9: PR[3]} if last else {0: PR[0], 4: PR[1], 6: PR[2], 7: PR[3]}
        for t in range(NT):
            cur, nxt = V_S[t % 2], V_S[(t + 1) % 2]
            vf = V_VF[t % 2]
            ex = lambda r: a(f"v_exp_f32 {vr(r)}, {vr(r)}")
            if t == 2 and not last: a.label("L_att2")
            if t in ramp: a(f"s_setprio {ramp[t]}")
            for i in (2, 3, 4, 5): ex(cur + i)
            if t < 9:
                a("s_waitcnt lgkmcnt(2)")
                a(f"v_mfma_f32_32x32x16_bf16 {vr(nxt,16)}, {vr(V_KF,4)}, {vr(V_QF,4)}, {vr(V_C,16)}")
            else:
                a("s_waitcnt lgkmcnt(0)")
            if t < 8:
                a(f"ds_read_b128 {vr(V_KF,4)}, {vr(V_KA)} offset:{t*2048}")
                if extra: extra(t)
            elif t == 8:
                a("s_nop 0")
            for i in (6, 7, 8, 9, 10): ex(cur + i)
            a(f"v_smfmac_f32_32x32x32_bf16 {vr(V_O,16)}, {vr(vf,4)}, {vr(cur,8)}, {vr(V_IDX)}")
            for i in (11, 12, 13, 14, 15): ex(cur + i)
            if t < 9:
                ex(nxt); ex(nxt + 1)
            else:
                a("s_nop 1")
            a(f"v_smfmac_f32_32x32x32_bf16 {vr(V_O,16)}, {vr(vf+4,4)}, {vr(cur+8,8)}, {vr(V_IDX)}")
            if t < 8:
                a(f"""s_mov_b64 exec, {sr(S_VMASK,2)}
                      ds_read_b128 {vr(vf,4)}, {vr(V_VA)} offset:{t*2048+1024}
                      ds_read_b128 {vr(vf+4,4)}, {vr(V_VA)} offset:{t*2048+1536}
                      s_mov_b64 exec, -1""")
    a(f"""s_setprio {PR[0]}
          s_branch L_att2""")
    a.lines.append("    .p2align 6")
    a.label("L_att")
    segment()
    a(f"""v_add_u32 {vr(V_KA)}, 0x4000, {vr(V_KA)}
          v_add_u32 {vr(V_VA)}, 0x4000, {vr(V_VA)}
          s_add_u32 {sr(S_SEG)}, {sr(S_SEG)}, 1""")
    for h in (1, 2, 5, 6, 7):
        a(f"""s_cmp_eq_u32 {sr(S_SEG)}, {h}
              s_cbranch_scc1 L_hook{h}""")
    if opts.get("hk", 3) == 2:
        a(f"s_cmp_eq_u32 {sr(S_SEG)}, 3\ns_cbranch_scc1 L_att")
    if ts:
        a(f"s_cmp_eq_u32 {sr(S_SEG)}, 4\ns_cbranch_scc1 L_hook4")
        stamp(13); a("s_barrier"); stamp(14); a("s_branch L_att")
        a.label("L_hook4")
        stamp(15); a("s_barrier"); stamp(16); a("s_branch L_att")
    else:
        a("""s_waitcnt lgkmcnt(0)
             s_barrier
             s_branch L_att""")

    def ooff(dst, base):
        a(f"""s_lshl_b32 {sr(dst)}, {sr(S_RT32)}, 6
              s_add_u32 {sr(dst)}, {sr(dst)}, {sr(S_HEADA if base == WS_OA else S_HEAD)}
              s_lshl_b32 {sr(dst)}, {sr(dst)}, 10
              s_add_u32 {sr(dst)}, {sr(dst)}, {base}""")
    def oload(i, dst, br):
        so = [[S_U0, S_U1], [S_U2, S_U3]][br][i // 4]
        a(f"buffer_load_dwordx4 {vr(dst+4*i,4)}, {vr(V_L16)}, {sr(S_WS,4)}, {sr(so)} offen offset:{(i%4)*1024} sc1")
    def osan():
        for i in range(4):
            a(f"v_min_u32 {vr(V_PK+i)}, -2, {vr(V_PK+i)}")

    a.label("L_hook1")
    stamp(11)
    a(f"""v_and_b32 {vr(V_T0)}, 0x3c, {vr(V_L4)}
          v_bfe_u32 {vr(V_T1)}, {vr(V_LANE)}, 4, 1
          v_lshl_add_u32 {vr(V_T0)}, {vr(V_T1)}, 7, {vr(V_T0)}
          s_lshl_b32 {sr(S_T0)}, {sr(S_RT32)}, 8
          s_add_u32 {sr(S_T0)}, {sr(S_T0)}, {WS_G}
          v_mov_b32 {vr(V_PK)}, -1
          v_mov_b32 {vr(V_PK+1)}, -1
          v_mov_b32 {vr(V_PK+2)}, -1
          v_mov_b32 {vr(V_PK+3)}, -1""")
    ooff(S_RDY, WS_OB)
    ooff(S_AUX, WS_OA)
    a(f"""s_barrier
          buffer_load_dword {vr(V_G)}, {vr(V_T0)}, {sr(S_WS,4)}, {sr(S_T0)} offen sc1
          buffer_store_dwordx4 {vr(V_PK,4)}, {vr(V_L16)}, {sr(S_WS,4)}, {sr(S_RDY)} offen sc1
          buffer_store_dwordx4 {vr(V_PK,4)}, {vr(V_L16)}, {sr(S_WS,4)}, {sr(S_AUX)} offen sc1""")
    stamp(12)
    a("s_branch L_att")

    a.label("L_hook2")
    HK = opts.get("hk", 3)
    if HK == 2: a("s_barrier")
    a(f"""s_lshl_b32 {sr(S_T3)}, {sr(S_RT32)}, 5
          s_add_u32 {sr(S_T3)}, {sr(S_T3)}, {sr(S_HEAD)}
          s_lshl_b32 {sr(S_T3)}, {sr(S_T3)}, 2
          s_add_u32 {sr(S_T3)}, {sr(S_T3)}, {WS_FO}
          s_getreg_b32 {sr(S_XCC)}, hwreg(HW_REG_XCC_ID, 0, 4)
          v_add_u32 {vr(V_T0)}, {sr(S_XCC)}, {vr(V_TAG)}
          s_waitcnt vmcnt(0)
          s_mov_b64 exec, 1
          buffer_store_dword {vr(V_T0)}, {vr(V_L4)}, {sr(S_WS,4)}, {sr(S_T3)} offen sc1
          s_mov_b64 exec, -1""")
    a(f"""v_lshrrev_b32 {vr(V_T0)}, 5, {vr(V_LANE)}
          v_lshlrev_b32 {vr(V_T0)}, 9, {vr(V_T0)}
          v_bfe_u32 {vr(V_T1)}, {vr(V_LANE)}, 2, 2
          v_lshl_add_u32 {vr(V_T0)}, {vr(V_T1)}, 7, {vr(V_T0)}
          v_bfe_u32 {vr(V_T1)}, {vr(V_LANE)}, 3, 1
          v_lshl_add_u32 {vr(V_T0)}, {vr(V_T1)}, 6, {vr(V_T0)}
          v_bfe_u32 {vr(V_T1)}, {vr(V_LANE)}, 4, 1
          v_lshl_add_u32 {vr(V_T0)}, {vr(V_T1)}, 5, {vr(V_T0)}
          v_and_b32 {vr(V_T1)}, 3, {vr(V_LANE)}
          v_lshl_add_u32 {vr(V_T0)}, {vr(V_T1)}, 3, {vr(V_T0)}
          s_lshl_b32 {sr(S_T0)}, {sr(S_HH)}, 14
          v_add_u32 {vr(V_WOA0)}, {sr(S_T0)}, {vr(V_T0)}
          v_xor_b32 {vr(V_WOA1)}, 64, {vr(V_WOA0)}
          s_lshl_b32 {sr(S_U0)}, {sr(S_RO32)}, 3
          s_add_u32 {sr(S_U0)}, {sr(S_U0)}, {sr(S_HH)}
          s_lshl_b32 {sr(S_U0)}, {sr(S_U0)}, 13
          s_add_u32 {sr(S_U0)}, {sr(S_U0)}, {WS_OA}
          s_add_u32 {sr(S_U1)}, {sr(S_U0)}, 4096
          s_lshl_b32 {sr(S_U2)}, {sr(S_RO32)}, 4
          s_add_u32 {sr(S_U2)}, {sr(S_U2)}, {sr(S_HH)}
          s_lshl_b32 {sr(S_U2)}, {sr(S_U2)}, 12
          s_add_u32 {sr(S_U2)}, {sr(S_U2)}, {WS_OB}
          s_add_u32 {sr(S_U3)}, {sr(S_U2)}, 16384
          s_branch L_att""")

    a.label("L_hook5")
    stamp(17)
    a(f"""s_and_b32 {sr(S_T1)}, {sr(S_HEADA)}, 1
          v_lshrrev_b32 {vr(V_T1)}, 5, {vr(V_LANE)}
          s_lshl_b32 {sr(S_T2)}, {sr(S_T1)}, 1
          s_add_u32 {sr(S_T2)}, {sr(S_T2)}, 64
          v_add_u32 {vr(V_T1)}, {sr(S_T2)}, {vr(V_T1)}
          v_and_b32 {vr(V_T0)}, 0x2f, {vr(V_LANE)}
          s_lshl_b32 {sr(S_T2)}, {sr(S_T1)}, 4
          v_add_u32 {vr(V_T0)}, {sr(S_T2)}, {vr(V_T0)}
          v_cndmask_b32 {vr(V_T0)}, {vr(V_T0)}, {vr(V_T1)}, {sr(S_VMASK,2)}
          v_lshlrev_b32 {vr(V_T0)}, 2, {vr(V_T0)}
          s_lshr_b32 {sr(S_T0)}, {sr(S_HEADA)}, 1
          s_lshl_b32 {sr(S_T0)}, {sr(S_T0)}, 12
          s_add_u32 {sr(S_T0)}, {sr(S_T0)}, {WS_ACC}
          s_lshl_b32 {sr(S_T3)}, {sr(S_RO32)}, 7
          s_add_u32 {sr(S_T3)}, {sr(S_T3)}, {WS_FO}
          s_barrier""")
    for r in range(8):
        a(f"buffer_load_dword {vr(V_AC+r)}, {vr(V_T0)}, {sr(S_WS,4)}, {sr(S_T0)} offen offset:{r*512} sc1")
    flag_load(S_T3)
    stamp(18)
    a("s_branch L_att")

    a.label("L_hook6")
    stamp(19)
    a("s_waitcnt vmcnt(0)")
    for i in range(4):
        a(f"v_cvt_pk_bf16_f32 {vr(V_AC+8+i)}, {vr(V_AC+2*i)}, {vr(V_AC+2*i+1)}")
    a(f"""s_nop 1
          v_mfma_f32_32x32x16_bf16 {vr(V_OA,16)}, {vr(V_AC+8,4)}, {vr(V_PQ,4)}, 0
          s_waitcnt lgkmcnt(0)
          s_barrier
          s_nop 9
          v_add_f32 {vr(V_T0)}, {sr(S_EPS)}, {vr(V_OA)}
          v_rcp_f32 {vr(V_T0)}, {vr(V_T0)}
          s_nop 0
          v_mul_f32 {vr(V_T0)}, {vr(V_T0)}, {vr(V_G)}""")
    for i in range(0, 8, 2):
        a(f"v_pk_mul_f32 {vr(V_OA+8+i,2)}, {vr(V_OA+8+i,2)}, {vr(V_T0,2)} op_sel_hi:[1,0]")
    for i in range(4):
        a(f"v_cvt_pk_bf16_f32 {vr(V_PK+i)}, {vr(V_OA+8+2*i)}, {vr(V_OA+8+2*i+1)}")
    osan()
    a(f"buffer_store_dwordx4 {vr(V_PK,4)}, {vr(V_L16)}, {sr(S_WS,4)}, {sr(S_AUX)} offen sc1")
    a(f"v_sub_f32 {vr(V_G)}, 1.0, {vr(V_G)}")
    stamp(20)
    a("s_branch L_att")

    a.label("L_hook7")
    arm_spin("L_sfo", S_T3)
    a(f"""v_cmp_ne_u32 vcc, {sr(S_XCC)}, {vr(V_FLG)}
          s_mov_b32 {sr(S_FAST)}, vcc_lo""")
    segment(extra=lambda t: oload(t, V_FA, 0))

    VB0, VB1, VC0, VC1 = V_XOFF, V_WOFF, V_PQ, V_PQ + 1
    def wo_one(n, nt):
        b = V_WO + 8 * (n % 4) + 4 * nt
        ad = [V_WOA0, V_WOA1][nt] if n < 8 else ([VB0, VB1][nt] if n < 12 else [VC0, VC1][nt])
        off = n * 2048 if n < 8 else (n % 4) * 2048
        for u in range(2):
            a(f"ds_read_b64_tr_b16 {vr(b+2*u,2)}, {vr(ad)} offset:{off + u*1024}")
    def wo_rd(n):
        wo_one(n, 0); wo_one(n, 1)
    def mm(n, nt):
        src = V_FA + 4 * n if n < 8 else V_FBB + 4 * (n - 8)
        a(f"v_mfma_f32_32x32x16_bf16 {vr(V_OUT[nt],16)}, {vr(V_WO+8*(n%4)+4*nt,4)}, {vr(src,4)}, {'0' if n == 0 else vr(V_OUT[nt],16)}")
    wo_rd(0); wo_rd(1)
    a(f"""s_mov_b32 {sr(S_T0)}, {hex(f2u(2.0**64))}
          s_nop 2""")
    stamp(6)
    a(f"""v_rcp_f32 {vr(V_T0)}, {vr(V_O+8)}
          v_cmp_nle_f32 vcc, {vr(V_O+8)}, {sr(S_T0)}
          v_pk_mul_f32 {vr(V_T2,2)}, {vr(V_O,2)}, 0
          v_pk_fma_f32 {vr(V_T2,2)}, {vr(V_O+2,2)}, 0, {vr(V_T2,2)}
          v_pk_fma_f32 {vr(V_T2,2)}, {vr(V_O+4,2)}, 0, {vr(V_T2,2)}
          v_pk_fma_f32 {vr(V_T2,2)}, {vr(V_O+6,2)}, 0, {vr(V_T2,2)}
          v_cmp_u_f32 {sr(S_SAVE,2)}, {vr(V_T2)}, {vr(V_T3)}
          s_or_b64 vcc, vcc, {sr(S_SAVE,2)}
          s_cbranch_vccnz L_fallback""")
    a.label("L_norm")
    a(f"v_mul_f32 {vr(V_T0)}, {vr(V_T0)}, {vr(V_G)}")
    for i in range(0, 8, 2):
        a(f"v_pk_mul_f32 {vr(V_O+i,2)}, {vr(V_O+i,2)}, {vr(V_T0,2)} op_sel_hi:[1,0]")
    for i in range(4):
        a(f"v_cvt_pk_bf16_f32 {vr(V_PK+i)}, {vr(V_O+2*i)}, {vr(V_O+2*i+1)}")
    osan()
    a(f"""s_cmp_eq_u32 {sr(S_FAST)}, 0
          s_cbranch_scc0 L_slowst
          buffer_store_dwordx4 {vr(V_PK,4)}, {vr(V_L16)}, {sr(S_WS,4)}, {sr(S_RDY)} offen""")
    a.label("L_stdone")
    wo_rd(2)
    a(f"""s_mov_b32 {sr(S_SPIN)}, 0
          s_waitcnt vmcnt(1)""")
    a.label("L_oa")
    a(f"v_max3_u32 {vr(V_FLG)}, {vr(V_FA)}, {vr(V_FA+1)}, {vr(V_FA+2)}")
    for i in range(3, 31, 2):
        a(f"v_max3_u32 {vr(V_FLG)}, {vr(V_FLG)}, {vr(V_FA+i)}, {vr(V_FA+i+1)}")
    a(f"""v_max_u32 {vr(V_FLG)}, {vr(V_FLG)}, {vr(V_FA+31)}
          v_cmp_eq_u32 vcc, -1, {vr(V_FLG)}
          s_cbranch_vccnz L_oar""")
    a.label("L_oak")
    A0, A1, A2, A3 = V_XA0, V_XA1, V_WA, V_KA
    setup = f"""s_lshl_b32 {sr(S_T0)}, {sr(S_HH)}, 13
          s_sub_u32 {sr(S_T1)}, {L_HI}, {sr(S_T0)}
          v_add_u32 {vr(VB0)}, {sr(S_T1)}, {vr(V_WOA0)}
          v_add_u32 {vr(VB1)}, {sr(S_T1)}, {vr(V_WOA1)}
          s_sub_u32 {sr(S_T1)}, 65536, {sr(S_T0)}
          v_add_u32 {vr(VC0)}, {sr(S_T1)}, {vr(V_WOA0)}
          v_add_u32 {vr(VC1)}, {sr(S_T1)}, {vr(V_WOA1)}
          v_and_b32 {vr(V_T0)}, 31, {vr(V_LANE)}
          v_lshrrev_b32 {vr(V_T1)}, 5, {vr(V_LANE)}
          v_and_b32 {vr(V_T2)}, 7, {vr(V_LANE)}
          v_xor_b32 {vr(V_T1)}, {vr(V_T1)}, {vr(V_T2)}
          v_lshlrev_b32 {vr(V_T1)}, 4, {vr(V_T1)}
          v_lshl_add_u32 {vr(V_T0)}, {vr(V_T0)}, 8, {vr(V_T1)}
          s_lshl_b32 {sr(S_T0)}, {sr(S_HH)}, 14
          s_lshl_b32 {sr(S_T1)}, {sr(S_RT)}, 13
          s_add_u32 {sr(S_T0)}, {sr(S_T0)}, {sr(S_T1)}
          v_add_u32 {vr(V_T0)}, {sr(S_T0)}, {vr(V_T0)}
          v_xor_b32 {vr(V_T1)}, 32, {vr(V_T0)}
          v_xor_b32 {vr(V_T2)}, 64, {vr(V_T0)}
          v_xor_b32 {vr(V_T3)}, 96, {vr(V_T0)}
          v_lshrrev_b32 {vr(A0)}, 3, {vr(V_LANE)}
          v_and_b32 {vr(A1)}, 7, {vr(V_LANE)}
          v_lshlrev_b32 {vr(A2)}, 1, {vr(A1)}
          v_xor_b32 {vr(A2)}, {vr(A2)}, {vr(A0)}
          v_lshlrev_b32 {vr(A2)}, 4, {vr(A2)}
          v_lshl_add_u32 {vr(A2)}, {vr(A0)}, 8, {vr(A2)}
          s_lshl_b32 {sr(S_T0)}, {sr(S_WAVE)}, 11
          v_add_u32 {vr(A2)}, {sr(S_T0)}, {vr(A2)}
          v_xor_b32 {vr(A3)}, 16, {vr(A2)}
          v_lshlrev_b32 {vr(A1)}, 4, {vr(A1)}
          v_lshl_add_u32 {vr(A0)}, {vr(A0)}, 10, {vr(A1)}
          s_lshl_b32 {sr(S_RDY)}, {sr(S_QO)}, 16
          s_lshl_b32 {sr(S_T1)}, {sr(S_WAVE)}, 13
          s_add_u32 {sr(S_RDY)}, {sr(S_RDY)}, {sr(S_T1)}
          s_lshl_b32 {sr(S_T1)}, {sr(S_NS)}, 7
          s_add_u32 {sr(S_RDY)}, {sr(S_RDY)}, {sr(S_T1)}""".split("\n")
    OBAT = opts.get("obat", 3)
    sched = {i: [] for i in range(8)}
    for k in range(8):
        sched[min(7, OBAT + (k * (8 - OBAT)) // 8)].append(k)
    per = (len(setup) + 3) // 4
    def chk(i):
        f = V_FBB + 4 * i
        a(f"s_waitcnt vmcnt({7-i})")
        a.label(f"L_ob{i}")
        a(f"""v_max3_u32 {vr(V_FLG)}, {vr(f)}, {vr(f+1)}, {vr(f+2)}
              v_max_u32 {vr(V_FLG)}, {vr(V_FLG)}, {vr(f+3)}
              v_cmp_eq_u32 vcc, -1, {vr(V_FLG)}
              s_cbranch_vccnz L_obr{i}""")
        a.label(f"L_obk{i}")
    for n in range(12):
        if n == 8: stamp(7)
        if n >= 8: chk(n - 8)
        a(f"s_waitcnt lgkmcnt({4 * (min(n + 2, 11) - n)})")
        mm(n, 0); mm(n, 1)
        if n < 4:
            for l in setup[n*per:(n+1)*per]: a(l)
        if n + 3 < 12: wo_rd(n + 3)
        if n < 8:
            for k in sched[n]: oload(k, V_FBB, 1)
    a("s_barrier")
    stamp(8)
    for n in range(12, 16): wo_one(n, 0)
    for n in range(12, 15): wo_one(n, 1)
    for n in range(12, 16):
        chk(n - 8)
        a(f"s_waitcnt lgkmcnt({12 if n == 12 else 2*(15-n) + 8})")
        mm(n, 0)
        if n == 12: wo_one(15, 1)
    for n in range(12, 16):
        a(f"s_waitcnt lgkmcnt({2*(15-n)})")
        mm(n, 1)
    stamp(9)
    a("s_nop 3")
    for nt in range(2):
        if nt: a("s_nop 3")
        for g in range(4):
            a(f"ds_write_b128 {vr(V_T0+g)}, {vr(V_OUT[nt]+4*g,4)} offset:{nt*128}")
    a("""s_waitcnt lgkmcnt(0)
         s_barrier""")
    RR = V_FA
    for k in range(4):
        a(f"ds_read_b128 {vr(RR+8*k,4)}, {vr(A2)} offset:{k*16384}")
        a(f"ds_read_b128 {vr(RR+8*k+4,4)}, {vr(A3)} offset:{k*16384}")
    for k in range(1, 4):
        a(f"s_waitcnt lgkmcnt({2*(3-k)})")
        for i in range(0, 8, 2):
            a(f"v_pk_add_f32 {vr(RR+i,2)}, {vr(RR+i,2)}, {vr(RR+8*k+i,2)}")
    for i in range(4):
        a(f"v_cvt_pk_bf16_f32 {vr(RR+8+i)}, {vr(RR+2*i)}, {vr(RR+2*i+1)}")
    a(f"buffer_store_dwordx4 {vr(RR+8,4)}, {vr(A0)}, {sr(S_OUT,4)}, {sr(S_RDY)} offen")
    if ts:
        stamp(10)
        ts_out()
    a.label("L_end")
    a("s_endpgm")

    a.label("L_slowst")
    a(f"""buffer_store_dwordx4 {vr(V_PK,4)}, {vr(V_L16)}, {sr(S_WS,4)}, {sr(S_RDY)} offen sc1
          s_waitcnt vmcnt(0)
          s_branch L_stdone""")
    a.label("L_oar")
    a(f"""s_add_u32 {sr(S_SPIN)}, {sr(S_SPIN)}, 1
          s_cmp_ge_u32 {sr(S_SPIN)}, 100000
          s_cbranch_scc1 L_oak""")
    for k in range(8): oload(k, V_FA, 0)
    a("""s_waitcnt vmcnt(0)
         s_branch L_oa""")
    RM = opts.get("rm", 1)
    for i in range(8):
        f = V_FBB + 4 * i
        a.label(f"L_obr{i}")
        a(f"""s_add_u32 {sr(S_SPIN)}, {sr(S_SPIN)}, 1
              s_cmp_ge_u32 {sr(S_SPIN)}, 100000
              s_cbranch_scc1 L_obk{i}""")
        if RM == 1:
            if opts.get("slp", 0): a(f"s_sleep {opts['slp']}")
            for k in range(i, 8): oload(k, V_FBB, 1)
            a(f"""s_waitcnt vmcnt({7-i})
                  s_branch L_ob{i}""")
        else:
            if opts.get("slp", 0): a(f"s_sleep {opts['slp']}")
            oload(i, V_FBB, 1)
            a(f"""s_waitcnt vmcnt(0)
                  v_max3_u32 {vr(V_FLG)}, {vr(f)}, {vr(f+1)}, {vr(f+2)}
                  v_max_u32 {vr(V_FLG)}, {vr(V_FLG)}, {vr(f+3)}
                  v_cmp_eq_u32 vcc, -1, {vr(V_FLG)}
                  s_cbranch_vccnz L_obr{i}""")
            for k in range(i + 1, 8): oload(k, V_FBB, 1)
            a(f"s_branch L_obk{i}")

    a.label("L_fallback")
    FS = V_S[0]
    a(f"""v_mov_b32 {vr(V_T0)}, 0xff800000
          s_mov_b32 {sr(S_T0)}, {WS_KV}""")
    a.label("L_fb1")
    a(f"""buffer_load_dwordx4 {vr(V_KF,4)}, {vr(V_L16)}, {sr(S_WS,4)}, {sr(S_T0)} offen sc1
          s_waitcnt vmcnt(0)
          v_mfma_f32_32x32x16_bf16 {vr(FS,16)}, {vr(V_KF,4)}, {vr(V_QF,4)}, 0
          s_nop 15""")
    for i in range(8):
        a(f"v_max3_f32 {vr(V_T0)}, {vr(V_T0)}, {vr(FS+2*i)}, {vr(FS+2*i+1)}")
    a(f"""s_add_u32 {sr(S_T0)}, {sr(S_T0)}, 2048
          s_cmp_lt_u32 {sr(S_T0)}, {WS_KV + 131072}
          s_cbranch_scc1 L_fb1
          v_mov_b32 {vr(V_T1)}, {vr(V_T0)}
          s_nop 1
          v_permlane32_swap_b32 {vr(V_T0)}, {vr(V_T1)}
          s_nop 1
          v_max_f32 {vr(V_T0)}, {vr(V_T0)}, {vr(V_T1)}""")
    for i in range(16):
        a(f"v_sub_f32 {vr(V_C+i)}, 0, {vr(V_T0)}")
        a(f"v_mov_b32 {vr(V_O+i)}, 0")
    a(f"""v_and_b32 {vr(V_VA)}, 0x3ff, {vr(V_VA)}
          s_mov_b32 {sr(S_T0)}, {WS_KV}""")
    a.label("L_fb2")
    a(f"""buffer_load_dwordx4 {vr(V_KF,4)}, {vr(V_L16)}, {sr(S_WS,4)}, {sr(S_T0)} offen sc1
          s_mov_b64 exec, {sr(S_VMASK,2)}
          buffer_load_dwordx4 {vr(V_VF[0],4)}, {vr(V_VA)}, {sr(S_WS,4)}, {sr(S_T0)} offen offset:1024 sc1
          buffer_load_dwordx4 {vr(V_VF[0]+4,4)}, {vr(V_VA)}, {sr(S_WS,4)}, {sr(S_T0)} offen offset:1536 sc1
          s_mov_b64 exec, -1
          s_waitcnt vmcnt(0)
          v_mfma_f32_32x32x16_bf16 {vr(FS,16)}, {vr(V_KF,4)}, {vr(V_QF,4)}, {vr(V_C,16)}
          s_nop 15""")
    for i in range(16):
        a(f"v_exp_f32 {vr(FS+i)}, {vr(FS+i)}")
    a(f"""s_nop 1
          v_smfmac_f32_32x32x32_bf16 {vr(V_O,16)}, {vr(V_VF[0],4)}, {vr(FS,8)}, {vr(V_IDX)}
          v_smfmac_f32_32x32x32_bf16 {vr(V_O,16)}, {vr(V_VF[0]+4,4)}, {vr(FS+8,8)}, {vr(V_IDX)}
          s_add_u32 {sr(S_T0)}, {sr(S_T0)}, 2048
          s_cmp_lt_u32 {sr(S_T0)}, {WS_KV + 131072}
          s_cbranch_scc1 L_fb2
          s_nop 15
          v_rcp_f32 {vr(V_T0)}, {vr(V_O+8)}
          s_nop 0
          s_branch L_norm""")

    H_F4, H_FOFF = 148, 152
    S_ROT = S_HEAD
    def rot_setup():
        a(f"""s_and_b32 {sr(S_ROT)}, s2, 7
              s_lshl_b32 {sr(S_ROT)}, {sr(S_ROT)}, 3""")
    def kv_sample():
        a(f"buffer_load_dwordx4 {vr(H_F4,4)}, {vr(H_FOFF)}, {sr(S_WS,4)}, 0 offen offset:{WS_FKV} sc1")
    def kv_spin(lbl, lo_only):
        a(f"s_mov_b32 {sr(S_SPIN)}, 0")
        a.label(lbl + "_loop")
        a(f"""v_cmp_ne_u32 vcc, {vr(H_F4)}, {vr(V_TAG)}
              v_cmp_ne_u32 {sr(S_SAVE,2)}, {vr(H_F4+1)}, {vr(V_TAG)}
              s_or_b64 vcc, vcc, {sr(S_SAVE,2)}
              v_cmp_ne_u32 {sr(S_SAVE,2)}, {vr(H_F4+2)}, {vr(V_TAG)}
              s_or_b64 vcc, vcc, {sr(S_SAVE,2)}
              v_cmp_ne_u32 {sr(S_SAVE,2)}, {vr(H_F4+3)}, {vr(V_TAG)}
              s_or_b64 vcc, vcc, {sr(S_SAVE,2)}""")
        if lo_only:
            a(f"s_and_b32 {sr(S_SAVE)}, vcc_lo, 0xff\ns_cmp_eq_u32 {sr(S_SAVE)}, 0")
        else:
            a("s_cmp_eq_u64 vcc, 0")
        a(f"""s_cbranch_scc1 {lbl}_ok
              s_add_u32 {sr(S_SPIN)}, {sr(S_SPIN)}, 1
              s_cmp_ge_u32 {sr(S_SPIN)}, 100000
              s_cbranch_scc1 {lbl}_ok""")
        if lo_only: a("s_mov_b64 exec, 0xff")
        kv_sample()
        if lo_only: a("s_mov_b64 exec, -1")
        a(f"""s_waitcnt vmcnt(0)
              s_branch {lbl}_loop""")
        a.label(lbl + "_ok")
    def kv_dma(lbl, s0, s1):
        a(f"s_mov_b32 {sr(S_T0)}, {s0}")
        a.label(lbl)
        a(f"""s_add_u32 {sr(S_T1)}, {sr(S_T0)}, {sr(S_ROT)}
              s_and_b32 {sr(S_T1)}, {sr(S_T1)}, 63
              s_lshl_b32 {sr(S_T1)}, {sr(S_T1)}, 11
              s_add_u32 {sr(S_T1)}, {sr(S_T1)}, {WS_KV}
              s_lshl_b32 m0, {sr(S_T0)}, 11
              s_waitcnt vmcnt(40)""")
        for k in range(4):
            a(f"buffer_load_dwordx4 {vr(V_L16)}, {sr(S_WS,4)}, {sr(S_T1)} offen offset:{k*1024} sc1 lds")
        a(f"""s_add_u32 m0, m0, 4096
              s_add_u32 {sr(S_T1)}, {sr(S_T1)}, 4096""")
        for k in range(4):
            a(f"buffer_load_dwordx4 {vr(V_L16)}, {sr(S_WS,4)}, {sr(S_T1)} offen offset:{k*1024} sc1 lds")
        a(f"""s_add_u32 {sr(S_T0)}, {sr(S_T0)}, 4
              s_cmp_lt_u32 {sr(S_T0)}, {s1}
              s_cbranch_scc1 {lbl}""")
    def swz64(dst, stride):
        a(f"""v_lshrrev_b32 {vr(V_T0)}, 3, {vr(V_LANE)}
              v_bfe_u32 {vr(V_T1)}, {vr(V_LANE)}, 4, 1
              v_lshlrev_b32 {vr(V_T1)}, 2, {vr(V_T1)}
              v_xor_b32 {vr(V_T1)}, {vr(V_T1)}, {vr(V_LANE)}
              v_and_b32 {vr(V_T1)}, 7, {vr(V_T1)}
              v_lshlrev_b32 {vr(V_T1)}, 4, {vr(V_T1)}
              v_mul_u32_u24 {vr(V_T0)}, {stride}, {vr(V_T0)}
              v_add_u32 {vr(dst)}, {vr(V_T0)}, {vr(V_T1)}""")

    KACC = [24, 40]
    KB = [56, 68]
    KV0, KV1 = 153, 154
    S_KO, S_KM = S_U2, S_U3
    S_KW = S_WOB
    def kv_setup():
        srd(S_KW, 2, 0x180000)
        srd(S_WS, 22, WS_SIZE)
        consts()
        swz64(KV0, 3072)
        a(f"""v_add_u32 {vr(KV1)}, {24576 - 1024}, {vr(KV0)}
              s_sub_u32 {sr(S_AUX)}, {sr(S_WAVE)}, 8
              s_and_b32 {sr(S_RT)}, {sr(S_AUX)}, 1
              s_lshl_b32 {sr(S_KM)}, {sr(S_AUX)}, 13
              s_add_u32 {sr(S_KM)}, {sr(S_KM)}, {L_HI}
              s_lshl_b32 {sr(S_KO)}, {sr(S_HGK)}, 7
              s_cmp_lt_u32 {sr(S_AUX)}, 2
              s_cselect_b32 {sr(S_T1)}, 2, 1
              s_cselect_b32 {sr(S_T2)}, 0, {sr(S_EPS)}
              s_lshl_b32 {sr(S_T1)}, {sr(S_T1)}, 10
              s_add_u32 {sr(S_KO)}, {sr(S_KO)}, {sr(S_T1)}""")
        for i in range(32):
            a(f"v_mov_b32 {vr(KACC[0]+i)}, {sr(S_T2)}")
        xfrag_addr(S_RT)
        a(f"""v_lshlrev_b32 {vr(V_T0)}, 10, {vr(V_T1)}
              v_bfe_u32 {vr(V_T1)}, {vr(V_LANE)}, 2, 2
              v_lshl_add_u32 {vr(V_T0)}, {vr(V_T1)}, 7, {vr(V_T0)}
              v_bfe_u32 {vr(V_T1)}, {vr(V_LANE)}, 3, 1
              v_lshl_add_u32 {vr(V_T0)}, {vr(V_T1)}, 6, {vr(V_T0)}
              v_bfe_u32 {vr(V_T1)}, {vr(V_LANE)}, 4, 1
              v_lshl_add_u32 {vr(V_T0)}, {vr(V_T1)}, 5, {vr(V_T0)}
              v_and_b32 {vr(V_T1)}, 3, {vr(V_LANE)}
              v_lshl_add_u32 {vr(V_T0)}, {vr(V_T1)}, 3, {vr(V_T0)}
              v_add_u32 {vr(V_WOA0)}, {sr(S_KM)}, {vr(V_T0)}
              v_xor_b32 {vr(V_WOA1)}, 64, {vr(V_WOA0)}""")
    def kdma(st):
        a(f"s_add_u32 m0, {sr(S_KM)}, {(st % 4)*2048}")
        a("s_nop 0" if st == 0 else f"s_add_u32 {sr(S_KO)}, {sr(S_KO)}, 49152")
        a.vmem(f"buffer_load_dwordx4 {vr(KV0)}, {sr(S_KW,4)}, {sr(S_KO)} offen lds", f"k{st}")
        a.vmem(f"buffer_load_dwordx4 {vr(KV1)}, {sr(S_KW,4)}, {sr(S_KO)} offen offset:1024 lds", f"k{st}")
    def krd(st):
        b = KB[st % 2]
        a(f"ds_read_b128 {vr(b,4)}, {vr(V_XA0 if st%2==0 else V_XA1)} offset:{(st//2)*4096}")
        for nt in range(2):
            for u in range(2):
                a(f"ds_read_b64_tr_b16 {vr(b+4+4*nt+2*u,2)}, {vr(V_WOA0 if nt==0 else V_WOA1)} offset:{(st%4)*2048 + u*512}")
    def kv_pass(bars):
        a.vm = []
        for st in range(4): kdma(st)
        for _ in range(bars.get(-1, 0)): a("s_barrier")
        a.wait_vm("k0")
        for _ in range(bars.get(0, 0)): a("s_barrier")
        krd(0)
        for st in range(32):
            if st + 1 < 32:
                a.wait_vm(f"k{st+1}")
                for _ in range(bars.get(st + 1, 0)): a("s_barrier")
                krd(st + 1)
            a(f"s_waitcnt lgkmcnt({5 if st + 1 < 32 else 0})")
            b = KB[st % 2]
            for nt in range(2):
                a(f"v_mfma_f32_32x32x16_bf16 {vr(KACC[nt],16)}, {vr(b,4)}, {vr(b+4+4*nt,4)}, {vr(KACC[nt],16)}")
            if st + 4 < 32: kdma(st + 4)
    def foff_setup():
        a(f"""v_add_u32 {vr(H_FOFF)}, {sr(S_ROT)}, {vr(V_LANE)}
              v_and_b32 {vr(H_FOFF)}, 63, {vr(H_FOFF)}
              v_lshlrev_b32 {vr(H_FOFF)}, 4, {vr(H_FOFF)}""")

    TG = 80
    TKA, TVA = 12, 155
    S_TG = S_RDY
    def tg_setup(which):
        a(f"""v_and_b32 {vr(V_T0)}, 15, {vr(V_LANE)}
              v_lshlrev_b32 {vr(V_T0)}, 4, {vr(V_T0)}
              v_bfe_u32 {vr(V_T1)}, {vr(V_LANE)}, 4, 1
              v_lshrrev_b32 {vr(V_T2)}, 5, {vr(V_LANE)}
              v_lshl_add_u32 {vr(TKA)}, {vr(V_T1)}, 9, {vr(V_T0)}
              v_lshl_add_u32 {vr(TKA)}, {vr(V_T2)}, 3, {vr(TKA)}
              v_lshl_add_u32 {vr(TVA)}, {vr(V_T2)}, 8, {vr(V_T0)}
              v_lshl_add_u32 {vr(TVA)}, {vr(V_T1)}, 3, {vr(TVA)}
              s_lshl_b32 {sr(S_TG)}, {sr(S_ROT)}, 12
              s_add_u32 {sr(S_TG)}, {sr(S_TG)}, {WS_KVT + which*16384}""")
    def tg_loads():
        for t in range(4):
            a(f"s_add_u32 {sr(S_T0)}, {sr(S_TG)}, {t*4096}")
            for jb in range(4):
                a(f"buffer_load_dwordx4 {vr(TG+16*t+4*jb,4)}, {vr(V_L16)}, {sr(S_WS,4)}, {sr(S_T0)} offen offset:{jb*1024} sc1")
    def tg_finish(lbl, which):
        a(f"s_mov_b32 {sr(S_SPIN)}, 0")
        a.label(lbl + "_loop")
        a("s_waitcnt vmcnt(0)")
        a(f"v_min3_u32 {vr(V_T0)}, {vr(V_TAG)}, {vr(TG+1)}, {vr(TG+3)}")
        a(f"v_max3_u32 {vr(V_T1)}, {vr(V_TAG)}, {vr(TG+1)}, {vr(TG+3)}")
        for g in range(1, 16):
            a(f"v_min3_u32 {vr(V_T0)}, {vr(V_T0)}, {vr(TG+4*g+1)}, {vr(TG+4*g+3)}")
            a(f"v_max3_u32 {vr(V_T1)}, {vr(V_T1)}, {vr(TG+4*g+1)}, {vr(TG+4*g+3)}")
        a(f"""v_cmp_ne_u32 vcc, {vr(V_T0)}, {vr(V_T1)}
              s_cbranch_vccz {lbl}_ok
              s_add_u32 {sr(S_SPIN)}, {sr(S_SPIN)}, 1
              s_cmp_ge_u32 {sr(S_SPIN)}, 100000
              s_cbranch_scc1 {lbl}_ok""")
        tg_loads()
        a(f"s_branch {lbl}_loop")
        a.label(lbl + "_ok")
        for t in range(4):
            for jb in range(4):
                ad = TVA if jb & 1 else TKA
                off = (4 * which + t) * 2048 + ((1024 + (jb >> 1) * 512) if jb & 1 else (jb >> 1) * 256)
                a(f"ds_write_b32 {vr(ad)}, {vr(TG+16*t+4*jb)} offset:{off}")
                a(f"ds_write_b32 {vr(ad)}, {vr(TG+16*t+4*jb+2)} offset:{off+4}")
            a("s_waitcnt lgkmcnt(4)")
        a("s_waitcnt lgkmcnt(0)")
    C_TG = opts.get("c_tg", 6)

    a.label("L_a0")
    a.vm = []
    HX, HW, HG_, HD, HDG = 16, 48, 80, 144, 112
    H_GWA = 8
    S_JX, S_JM = S_U0, S_U1
    a(f"""s_setprio 3
          s_lshl_b32 {sr(S_T1)}, {sr(S_RGJ)}, 14
          s_add_u32 {sr(S_JX)}, {sr(S_T0)}, {sr(S_T1)}
          s_lshl_b32 {sr(S_T1)}, {sr(S_RGJ)}, 10
          s_add_u32 {sr(S_JM)}, {sr(S_T1)}, {L_X}
          s_mov_b32 {sr(S_WJ+2)}, 16384
          s_mov_b32 {sr(S_WJ+3)}, 0x20000
          s_bitcmp1_b32 {sr(S_HG)}, 0
          s_waitcnt lgkmcnt(0)
          s_mov_b32 {sr(S_X)}, {sr(S_KA+0)}
          s_mov_b32 {sr(S_X+1)}, {sr(S_KA+1)}
          s_cselect_b32 {sr(S_WJ)}, {sr(S_KA+12)}, {sr(S_KA+10)}
          s_cselect_b32 {sr(S_WJ+1)}, {sr(S_KA+13)}, {sr(S_KA+11)}
          s_load_dword {sr(S_TAG)}, {sr(S_KA+22,2)}, {WS_E}""")
    def jload(g):
        for k in range(4):
            kb = 4 * g + k
            a(f"s_add_u32 m0, {sr(S_JM)}, {kb*4096 - kb*64}")
            a("s_nop 0")
            a.vmem(f"buffer_load_dwordx4 {vr(V_XOFF)}, {sr(S_X,4)}, {sr(S_JX)} offen offset:{kb*64} lds", f"j{g}")
        a(f"s_mov_b32 m0, {L_JW + g*4096}")
        a(f"s_mov_b32 {sr(S_T2)}, {g*4096}")
        for k in range(4):
            a.vmem(f"buffer_load_dwordx4 {vr(V_L16)}, {sr(S_WJ,4)}, {sr(S_T2)} offen offset:{k*1024} lds", f"j{g}")
    jload(0)
    srd(S_W, 16, 1024)
    a(f"s_mov_b32 m0, {L_GW}\ns_nop 0")
    a.vmem(f"buffer_load_dwordx4 {vr(V_L16)}, {sr(S_W,4)}, 0 offen lds", "gw")
    jload(1); jload(2); jload(3)
    srd(S_WS, 22, WS_SIZE)
    rot_setup()
    a(f"""v_and_b32 {vr(V_T0)}, 15, {vr(V_LANE)}
          v_lshrrev_b32 {vr(V_T1)}, 4, {vr(V_LANE)}
          v_bfe_u32 {vr(V_T2)}, {vr(V_LANE)}, 2, 2
          v_xor_b32 {vr(V_T2)}, {vr(V_T2)}, {vr(V_T1)}
          v_lshlrev_b32 {vr(V_T2)}, 4, {vr(V_T2)}
          v_lshl_add_u32 {vr(V_T2)}, {vr(V_T0)}, 6, {vr(V_T2)}
          v_add_u32 {vr(V_T2)}, {sr(S_JM)}, {vr(V_T2)}
          v_lshlrev_b32 {vr(V_T3)}, 3, {vr(V_T0)}
          v_lshl_add_u32 {vr(V_T3)}, {vr(V_T1)}, 8, {vr(V_T3)}
          v_lshlrev_b32 {vr(H_GWA)}, 4, {vr(V_T1)}
          v_add_u32 {vr(H_GWA)}, {L_GW}, {vr(H_GWA)}
          v_lshlrev_b32 {vr(13)}, 4, {vr(V_T0)}
          v_and_b32 {vr(14)}, 1, {vr(V_T1)}
          v_lshrrev_b32 {vr(15)}, 1, {vr(V_T1)}
          s_lshl_b32 {sr(S_T0)}, {sr(S_QB)}, 1
          s_lshr_b32 {sr(S_T1)}, {sr(S_RGJ)}, 1
          s_add_u32 {sr(S_SEG)}, {sr(S_T0)}, {sr(S_T1)}
          s_lshl_b32 {sr(S_T3)}, {sr(S_SEG)}, 4
          s_and_b32 {sr(S_T0)}, {sr(S_HG)}, 3
          s_lshl_b32 {sr(S_T0)}, {sr(S_T0)}, 2
          s_add_u32 {sr(S_T3)}, {sr(S_T3)}, {sr(S_T0)}
          s_add_u32 {sr(S_T3)}, {sr(S_T3)}, {WS_FKV}""")
    foff_setup()
    tag_setup()
    vmh = list(a.vm)
    def job(isV):
        a.vm = list(vmh)
        nr = 3 if isV else 4
        for half in range(2):
            a.wait_vm(f"j{2*half}")
            a("s_barrier")
            a.wait_vm(f"j{2*half+1}")
            def rd(k):
                s = 8 * half + k
                a(f"ds_read_b128 {vr(HX+4*k,4)}, {vr(V_T2)} offset:{s*4096}")
                a(f"ds_read_b64_tr_b16 {vr(HW+4*k,2)}, {vr(V_T3)} offset:{L_JW + s*1024}")
                a(f"ds_read_b64_tr_b16 {vr(HW+4*k+2,2)}, {vr(V_T3)} offset:{L_JW + s*1024 + 128}")
                if not isV: a(f"ds_read_b128 {vr(HG_+4*k,4)}, {vr(H_GWA)} offset:{s*64}")
            rd(0); rd(1); rd(2)
            for k in range(8):
                a(f"s_waitcnt lgkmcnt({nr * (min(k + 2, 7) - k)})")
                z = half == 0 and k == 0
                A_, B_ = (HX, HW) if isV else (HW, HX)
                a(f"v_mfma_f32_16x16x32_bf16 {vr(HD,4)}, {vr(A_+4*k,4)}, {vr(B_+4*k,4)}, {'0' if z else vr(HD,4)}")
                if not isV: a(f"v_mfma_f32_16x16x32_bf16 {vr(HDG,4)}, {vr(HG_+4*k,4)}, {vr(HX+4*k,4)}, {'0' if z else vr(HDG,4)}")
                if k + 3 < 8: rd(k + 3)
        a(f"s_and_b32 {sr(S_T1)}, {sr(S_RGJ)}, 1")
        if isV:
            a(f"""v_lshl_add_u32 {vr(13)}, {vr(15)}, 8, {vr(13)}
                  v_lshl_add_u32 {vr(13)}, {vr(14)}, 3, {vr(13)}
                  s_lshl_b32 {sr(S_T1)}, {sr(S_T1)}, 9
                  s_add_u32 {sr(S_T1)}, {sr(S_T1)}, 1024""")
        else:
            a(f"""v_lshl_add_u32 {vr(13)}, {vr(14)}, 9, {vr(13)}
                  v_lshl_add_u32 {vr(13)}, {vr(15)}, 3, {vr(13)}
                  s_lshl_b32 {sr(S_T1)}, {sr(S_T1)}, 8
                  s_lshl_b32 {sr(S_T0)}, {sr(S_QB)}, 2
                  s_add_u32 {sr(S_T0)}, {sr(S_T0)}, {sr(S_RGJ)}
                  s_lshl_b32 {sr(S_T0)}, {sr(S_T0)}, 7
                  s_add_u32 {sr(S_T0)}, {sr(S_T0)}, {WS_G}
                  s_mov_b32 {sr(S_T2)}, {hex(f2u(LOG2E))}
                  v_mul_f32 {vr(HDG)}, {sr(S_T2)}, {vr(HDG)}
                  v_exp_f32 {vr(HDG)}, -{vr(HDG)}
                  s_nop 0
                  v_add_f32 {vr(HDG)}, 1.0, {vr(HDG)}
                  v_rcp_f32 {vr(HDG)}, {vr(HDG)}
                  s_mov_b32 exec_hi, 0
                  buffer_store_dword {vr(HDG)}, {vr(V_L4)}, {sr(S_WS,4)}, {sr(S_T0)} offen sc1
                  s_mov_b32 exec_hi, -1""")
    a(f"""s_bitcmp1_b32 {sr(S_HG)}, 0
          s_cbranch_scc1 L_jobV""")
    job(False)
    a("s_branch L_jobdone")
    a.label("L_jobV")
    job(True)
    a.label("L_jobdone")
    a.vm = []
    a(f"""s_lshl_b32 {sr(S_T0)}, {sr(S_SEG)}, 11
          s_add_u32 {sr(S_T0)}, {sr(S_T0)}, {sr(S_T1)}
          s_add_u32 {sr(S_T0)}, {sr(S_T0)}, {WS_KV}
          s_nop 1
          v_cvt_pk_bf16_f32 {vr(HD+4)}, {vr(HD)}, {vr(HD+1)}
          v_cvt_pk_bf16_f32 {vr(HD+5)}, {vr(HD+2)}, {vr(HD+3)}
          v_mov_b32 {vr(HX)}, {vr(HD+4)}
          v_mov_b32 {vr(HX+1)}, {vr(V_TAG)}
          v_mov_b32 {vr(HX+2)}, {vr(HD+5)}
          v_mov_b32 {vr(HX+3)}, {vr(V_TAG)}
          s_lshl_b32 {sr(S_T1)}, {sr(S_SEG)}, 2
          s_and_b32 {sr(S_T2)}, {sr(S_HG)}, 3
          s_add_u32 {sr(S_T1)}, {sr(S_T1)}, {sr(S_T2)}
          s_lshl_b32 {sr(S_T1)}, {sr(S_T1)}, 10
          s_add_u32 {sr(S_T1)}, {sr(S_T1)}, {WS_KVT}
          buffer_store_dwordx4 {vr(HX,4)}, {vr(V_L16)}, {sr(S_WS,4)}, {sr(S_T1)} offen {"" if opts.get("plaint", 0) else "sc1"}
          v_mov_b32 {vr(14)}, 0
          s_lshl_b32 {sr(S_T1)}, s2, 8
          s_add_u32 {sr(S_T1)}, {sr(S_T1)}, {WS_ACC}
          buffer_store_dwordx2 {vr(HD+4,2)}, {vr(13)}, {sr(S_WS,4)}, {sr(S_T0)} offen sc1
          buffer_store_dword {vr(14)}, {vr(V_L4)}, {sr(S_WS,4)}, {sr(S_T1)} offen sc1""")
    stamp(1)
    C_SIG = opts.get("c_sig", 4)
    for c in range(2, 8):
        a("s_barrier")
        if c == 2: kv_setup()
        if c == 3: tg_setup(0)
        if c == C_SIG:
            a("s_waitcnt vmcnt(0)")
            flag_store(S_T3)
            stamp(2)
        if c == C_TG: tg_loads()
    stamp(3)
    tg_finish("L_tg0", 0)
    kv_sample()
    stamp(4)
    a("""s_barrier
         s_waitcnt vmcnt(0)""")
    kv_spin("L_skvB", False)
    stamp(5)
    kv_dma("L_kvdB", 8, 20)
    a(f"""s_cmp_lg_u32 s2, 0
          s_cbranch_scc1 L_kv01
          s_mov_b32 {sr(S_T0)}, {WS_E}""")
    flag_store(S_T0)
    a.label("L_kv01")
    kv_pass({opts.get("n1", 6): 1})
    a("s_branch L_kvend")

    a.label("L_a1")
    a.vm = []
    LV = [16, 20]
    SO = [S_U0, S_U1]
    a(f"""s_setprio 3
          v_lshrrev_b32 {vr(V_T0)}, 1, {vr(V_LANE)}
          v_and_b32 {vr(V_T0)}, 3, {vr(V_T0)}
          v_bfe_u32 {vr(V_T1)}, {vr(V_LANE)}, 4, 1
          v_xor_b32 {vr(V_T0)}, {vr(V_T0)}, {vr(V_T1)}
          v_lshlrev_b32 {vr(V_T0)}, 5, {vr(V_T0)}
          v_and_b32 {vr(V_T1)}, 1, {vr(V_LANE)}
          v_lshl_add_u32 {vr(V_T0)}, {vr(V_T1)}, 4, {vr(V_T0)}
          v_lshrrev_b32 {vr(V_T1)}, 3, {vr(V_LANE)}
          v_lshl_add_u32 {vr(LV[0])}, {vr(V_T1)}, 10, {vr(V_T0)}
          v_mul_u32_u24 {vr(V_T1)}, 3072, {vr(V_T1)}
          v_add_u32 {vr(LV[1])}, {vr(V_T1)}, {vr(V_T0)}
          v_xor_b32 {vr(LV[1])}, 64, {vr(LV[1])}""")
    for rg in range(1, 4):
        a(f"""v_add_u32 {vr(LV[0]+rg)}, {rg*(8192-1024)}, {vr(LV[0])}
              v_add_u32 {vr(LV[1]+rg)}, {rg*(24576-1024)}, {vr(LV[1])}""")
    a(f"""s_lshl_b32 {sr(SO[0])}, {sr(S_HG)}, 7
          s_lshl_b32 {sr(SO[1])}, {sr(S_HGQ)}, 7
          s_waitcnt lgkmcnt(0)
          s_load_dword {sr(S_TAG)}, {sr(S_KA+22,2)}, {WS_E}""")
    srd(S_W, 8, 0x80000)
    srd(S_WJ, 2, 0x180000)
    def lw(c):
        for hf in range(2):
            for m in range(2):
                a(f"s_mov_b32 m0, {RSLOT[c % 4] + m*8192 + hf*4096}")
                a("s_nop 0" if (c == 0 and hf == 0) else f"s_add_u32 {sr(SO[m])}, {sr(SO[m])}, {32768 if m == 0 else 98304}")
                for rg in range(4):
                    a.vmem(f"buffer_load_dwordx4 {vr(LV[m]+rg)}, {sr(S_W if m == 0 else S_WJ,4)}, {sr(SO[m])} offen offset:{rg*1024} lds", f"w{c}")
    NPRE = opts.get("npre", 2)
    for c in range(NPRE): lw(c)
    tag_setup()
    nxt = NPRE
    for c in range(8):
        a.wait_vm(f"w{c}")
        a("s_barrier")
        k = 0
        while nxt <= min(7, c + 3) and k < 2:
            lw(nxt); nxt += 1; k += 1
        if c == 5:
            srd(S_WS, 22, WS_SIZE); rot_setup(); tg_setup(1)
        if c == max(C_TG, 5):
            tg_loads()
            a.vm += ["tg"] * 16
        if c == 6:
            kv_setup(); foff_setup()
    tg_finish("L_tg1", 1)
    kv_sample()
    stamp(4)
    a("s_barrier")
    a("s_waitcnt vmcnt(0)")
    kv_spin("L_skvB1", False)
    kv_dma("L_kvdB1", 20, 32)
    a("s_branch L_kv01")

    a.label("L_a23")
    a.vm = []
    a(f"""s_setprio 3
          s_sub_u32 {sr(S_T1)}, {sr(S_WAVE)}, 8
          s_lshl_b32 {sr(S_T2)}, {sr(S_T1)}, 8
          s_add_u32 {sr(S_T0)}, {sr(S_T0)}, {sr(S_T2)}
          s_lshl_b32 {sr(S_T1)}, {sr(S_T1)}, 14
          s_add_u32 {sr(S_T1)}, {sr(S_T1)}, {L_X}
          s_waitcnt lgkmcnt(0)
          s_mov_b32 {sr(S_X)}, {sr(S_KA+0)}
          s_mov_b32 {sr(S_X+1)}, {sr(S_KA+1)}""")
    XB = opts.get("xb", 0)
    for c in range(XB): a("s_barrier")
    for i in range(3):
        a(f"""s_add_u32 {sr(S_T3)}, {sr(S_RGJ)}, {i+1}
              s_and_b32 {sr(S_T3)}, {sr(S_T3)}, 3
              s_lshl_b32 {sr(S_T2)}, {sr(S_T3)}, 10
              s_add_u32 {sr(S_U0)}, {sr(S_T2)}, {sr(S_T1)}
              s_lshl_b32 {sr(S_T2)}, {sr(S_T3)}, 14
              s_add_u32 {sr(S_U1)}, {sr(S_T2)}, {sr(S_T0)}""")
        if i > 0 or XB == 0 or True:
            a("s_barrier")
        for k in range(4):
            a(f"s_add_u32 m0, {sr(S_U0)}, {k*4096 - k*64}")
            a("s_nop 0")
            a(f"buffer_load_dwordx4 {vr(V_XOFF)}, {sr(S_X,4)}, {sr(S_U1)} offen offset:{k*64} lds")
    assert XB == 0
    kv_setup()
    ES = opts.get("es", 5)
    for c in range(3, min(ES, 7) + 1):
        if c == 4: a("s_waitcnt vmcnt(0)")
        a("s_barrier")
    if ES >= 8:
        a("s_barrier")
        kv_pass({opts.get("n2", 8): 1})
    else:
        bars = {}
        st = -1
        for c in range(ES + 1, 8):
            bars[st] = bars.get(st, 0) + 1
            st = 1 if st < 0 else st + opts.get("esp", 1)
        ne = opts.get("ne", 8)
        bars[ne] = bars.get(ne, 0) + 1
        bars[opts.get("n2", 18)] = bars.get(opts.get("n2", 18), 0) + 1
        kv_pass(bars)

    a.label("L_kvend")
    stamp(12)
    a(f"""v_add_u32 {vr(V_XA0)}, {sr(S_KM)}, {vr(V_L16)}
          s_nop 8
          s_cmp_lt_u32 {sr(S_AUX)}, 2
          s_cbranch_scc1 L_kcvt""")
    phi(KACC[0], 32, 56)
    a(f"""s_cmp_eq_u32 {sr(S_AUX)}, 2
          s_cselect_b32 {sr(S_WOA)}, {sr(S_KA+4)}, {sr(S_KA+14)}
          s_cselect_b32 {sr(S_WOA+1)}, {sr(S_KA+5)}, {sr(S_KA+15)}
          s_mov_b32 {sr(S_WOA+2)}, 0x80000
          s_mov_b32 {sr(S_WOA+3)}, 0x20000
          v_lshlrev_b32 {vr(V_T0)}, 7, {vr(V_LANE)}
          s_lshl_b32 {sr(S_T0)}, s2, 11
          s_mov_b64 exec, 0xffff
          buffer_load_dword {vr(V_FLG)}, {vr(V_T0)}, {sr(S_WOA,4)}, {sr(S_T0)} offen
          s_mov_b64 exec, -1""")
    a.label("L_kcvt")
    for f in range(4):
        for i in range(4):
            a(f"v_cvt_pk_bf16_f32 {vr(56+4*f+i)}, {vr(KACC[0]+8*f+2*i)}, {vr(KACC[0]+8*f+2*i+1)}")
        a(f"ds_write_b128 {vr(V_XA0)}, {vr(56+4*f,4)} offset:{f*1024}")
    a("s_waitcnt lgkmcnt(0)")
    stamp(13)
    a(f"""s_barrier
          s_cmp_eq_u32 {sr(S_AUX)}, 0
          s_cbranch_scc1 L_a0b
          s_cmp_eq_u32 {sr(S_AUX)}, 1
          s_cbranch_scc1 L_a1b""")
    if ts: ts_out()
    a("s_endpgm")

    a.label("L_a0b")
    HV, HK, HKV, HZ, HON = 56, 88, [16, 32], [120, 136], 52
    a(f"v_add_u32 {vr(V_T1)}, {L_HI}, {vr(V_L16)}")
    for nt in range(2):
        if nt: a("s_waitcnt lgkmcnt(4)")
        for f in range(4):
            off = (f // 2) * 8192 + nt * 2048 + (f % 2) * 1024
            a(f"ds_read_b128 {vr(HV+16*nt+4*f,4)}, {vr(V_T1)} offset:{off}")
            a(f"ds_read_b128 {vr(HK+16*nt+4*f,4)}, {vr(V_T1)} offset:{16384 + off}")
    for i in range(4):
        a(f"v_mov_b32 {vr(HON+i)}, {sr(S_ONES)}")
    a(f"""v_bfe_u32 {vr(V_T2)}, {vr(V_LANE)}, 3, 1
          v_lshlrev_b32 {vr(V_T2)}, 11, {vr(V_T2)}
          v_and_b32 {vr(V_T3)}, 3, {vr(V_LANE)}
          v_lshl_add_u32 {vr(V_T2)}, {vr(V_T3)}, 9, {vr(V_T2)}
          v_bfe_u32 {vr(V_T3)}, {vr(V_LANE)}, 4, 1
          v_lshl_add_u32 {vr(V_T2)}, {vr(V_T3)}, 3, {vr(V_T2)}
          v_bfe_u32 {vr(V_T3)}, {vr(V_LANE)}, 2, 1
          v_lshl_add_u32 {vr(V_T2)}, {vr(V_T3)}, 2, {vr(V_T2)}
          s_waitcnt lgkmcnt(0)""")
    for nt in range(2):
        for f in range(4):
            a(f"v_mfma_f32_32x32x16_bf16 {vr(HKV[nt],16)}, {vr(HK+16*nt+4*f,4)}, {vr(HV+16*nt+4*f,4)}, {'0' if f==0 else vr(HKV[nt],16)}")
            a(f"v_mfma_f32_32x32x16_bf16 {vr(HZ[nt],16)}, {vr(HON,4)}, {vr(HK+16*nt+4*f,4)}, {'0' if f==0 else vr(HZ[nt],16)}")
    a(f"""s_lshl_b32 {sr(S_T0)}, {sr(S_HGK)}, 13
          s_add_u32 {sr(S_T0)}, {sr(S_T0)}, {WS_ACC}
          s_add_u32 {sr(S_T1)}, {sr(S_T0)}, 4096
          s_nop 9""")
    for nt in range(2):
        for r in range(8):
            a(f"v_cndmask_b32 {vr(HKV[nt]+r)}, {vr(HKV[nt]+8+r)}, {vr(HKV[nt]+r)}, {sr(S_VMASK,2)}")
        for r in range(8):
            a(f"buffer_atomic_add_f32 {vr(HKV[nt]+r)}, {vr(V_L4)}, {sr(S_WS,4)}, {sr(S_T0 if nt == 0 else S_T1)} offen offset:{r*512} sc1")
    a(f"""s_mov_b32 exec_hi, 0
          buffer_atomic_add_f32 {vr(HZ[0])}, {vr(V_T2)}, {sr(S_WS,4)}, {sr(S_T0)} offen offset:256 sc1
          buffer_atomic_add_f32 {vr(HZ[1])}, {vr(V_T2)}, {sr(S_WS,4)}, {sr(S_T1)} offen offset:256 sc1
          s_mov_b32 exec_hi, -1
          s_lshl_b32 {sr(S_T3)}, {sr(S_HGK)}, 7
          s_lshl_b32 {sr(S_T0)}, {sr(S_QB)}, 2
          s_add_u32 {sr(S_T0)}, {sr(S_T0)}, {sr(S_T3)}
          s_add_u32 {sr(S_T0)}, {sr(S_T0)}, {WS_FA}
          s_lshl_b32 {sr(S_T3)}, {sr(S_HGQ)}, 7
          s_add_u32 {sr(S_T3)}, {sr(S_T3)}, {WS_FA}""")
    stamp(14)
    if opts.get("fa_early", 1):
        a("s_waitcnt vmcnt(0)")
        flag_store(S_T0)
        stamp(15)
        a("s_barrier")
    else:
        a("s_barrier\ns_waitcnt vmcnt(0)")
        flag_store(S_T0)
        stamp(15)
    a(f"v_not_b32 {vr(V_FLG)}, {vr(V_TAG)}")
    flag_spin("L_sfa", S_T3)
    stamp(16)
    if ts: ts_out()
    a("""s_barrier
         s_endpgm""")

    a.label("L_a1b")
    srd(S_WOA, 4, 0x80000)
    srd(S_WOB, 14, 0x80000)
    omap()
    rot_setup()
    kv_dma("L_kvdC", 32, 64)
    swz64(V_WOFF, 1024)
    a("s_waitcnt vmcnt(0)")
    stamp(14)
    a("s_barrier")
    def wodma(lbl, srdw, r0, nrows, dst):
        a(f"""s_lshl_b32 {sr(S_T0)}, {sr(S_NS)}, 7
              s_add_u32 {sr(S_T0)}, {sr(S_T0)}, {r0*1024}
              s_mov_b32 m0, {dst}""")
        a.label(lbl)
        a("s_waitcnt vmcnt(40)")
        for i in range(4):
            a(f"buffer_load_dwordx4 {vr(V_WOFF)}, {sr(srdw,4)}, {sr(S_T0)} offen lds")
            a(f"""s_add_u32 m0, m0, 1024
                  s_add_u32 {sr(S_T0)}, {sr(S_T0)}, 8192""")
        a(f"""s_cmp_lt_u32 m0, {dst + nrows*128}
              s_cbranch_scc1 {lbl}""")
    wodma("L_woa", S_WOA, 0, 512, 0)
    stamp(15)
    a("s_barrier")
    wodma("L_wob0", S_WOB, 0, 256, L_HI)
    a("s_waitcnt vmcnt(0)")
    stamp(16)
    a("s_barrier")
    wodma("L_wob1", S_WOB, 256, 256, 65536)
    a("s_waitcnt vmcnt(0)")
    if ts:
        stamp(17)
        ts_out()
    a("""s_barrier
         s_endpgm""")

    head = open("cdna_kernels/" + NAME + ".s.ref").read().split("\n")
    hdr = [l for l in head if l.startswith(";") and "@launch" not in l and "Override" not in l and "grid=ceil" not in l]
    out = "\n".join(hdr) + f"\n; @launch grid=(256,1,1) block=({NWAVE*64},1,1) lds={LDS_SIZE}\n"
    out += f""".amdgcn_target "amdgcn-amd-amdhsa--gfx950"
.text
.globl {NAME}_kernel
.p2align 8
.type {NAME}_kernel,@function
"""
    out += a.text()
    out += f""".section .rodata,"a"
.p2align 6
.amdhsa_kernel {NAME}_kernel
  .amdhsa_next_free_vgpr {NVGPR}
  .amdhsa_next_free_sgpr 102
  .amdhsa_accum_offset {NVGPR}
  .amdhsa_group_segment_fixed_size 0
  .amdhsa_kernarg_size 96
  .amdhsa_user_sgpr_count 2
  .amdhsa_user_sgpr_kernarg_segment_ptr 1
  .amdhsa_system_sgpr_workgroup_id_x 1
.end_amdhsa_kernel
"""
    return out

if __name__ == "__main__":
    opts = {}
    outp = "cdna_kernels/" + NAME + ".s"
    for arg in sys.argv[1:]:
        if arg.startswith("-o"):
            outp = arg[2:]
        elif "=" in arg:
            k, v = arg.split("=")
            opts[k] = int(v)
        else:
            opts[arg] = True
    open(outp, "w").write(gen(opts))
    print("wrote", outp)
```

```python
import sys, math, struct

NAME = "gated_mix__linear_attn_block__grouped_kv_mqa__prompt"

def f2u(x):
    return struct.unpack("<I", struct.pack("<f", x))[0]

class Asm:
    def __init__(self):
        self.lines = []
        self.vm = []
    def __call__(self, s):
        for l in s.split("\n"):
            l = l.strip()
            if l:
                self.lines.append("    " + l)
    def label(self, l):
        self.lines.append(l + ":")
    def vmem(self, s, tag):
        self(s)
        self.vm.append(tag)
        assert len(self.vm) <= 63
    def vm_n(self, tag):
        idx = max(i for i, t in enumerate(self.vm) if t == tag)
        return len(self.vm) - 1 - idx
    def drop_to(self, n):
        self.vm = self.vm[len(self.vm) - n:] if n else []
    def wait_vm(self, tag, extra=""):
        n = 0 if tag is None else self.vm_n(tag)
        self.drop_to(n)
        self(f"s_waitcnt vmcnt({n}) {extra}".strip())
    def text(self):
        return "\n".join(self.lines) + "\n"

def vr(a, n=1):
    return f"v{a}" if n == 1 else f"v[{a}:{a+n-1}]"
def sr(a, n=1):
    return f"s{a}" if n == 1 else f"s[{a}:{a+n-1}]"

WS_E = 0x000000
WS_FKV = 0x000400
WS_FA = 0x001000
WS_FO = 0x004000
WS_G = 0x014000
WS_KV = 0x020000
WS_ACC = 0x040000
WS_KVT = 0x080000
WS_OA = 0x200000
WS_OB = 0x208000
WS_DBG1 = 0x600000
WS_DBG2 = 0x800000
WS_TS = 0xA00000
WS_SIZE = 0x1000000
L_JW = 0
L_X = 65536
L_HI = 131072
L_GW = L_HI + 16384
RSLOT = [16384, 32768, 49152, L_HI]
LDS_SIZE = 163840
LOG2E = 1.4426950408889634
QSCALE = 0.25 * LOG2E
NVGPR = 168
NWAVE = 12

S_HGQ, S_TAG, S_QO, S_NS, S_RDY = 3, 4, 5, 6, 7
S_X, S_W, S_WJ = 8, 12, 16
S_EPS, S_ONES, S_RGJ, S_HGK = 20, 21, 22, 23
S_XMASK, S_HEADA, S_AUX = 24, 26, 27
S_WOA, S_WOB, S_OUT, S_DBG, S_WS = 28, 32, 36, 40, 44
S_WAVE, S_QB, S_HG, S_RT, S_HH = 48, 49, 50, 51, 52
S_T0, S_T1, S_T2, S_T3 = 53, 54, 55, 56
S_U0, S_U1, S_U2, S_U3 = 57, 58, 59, 60
S_SEG, S_SPIN, S_HEAD = 61, 62, 63
S_VMASK, S_RT32, S_RO32, S_SAVE = 64, 66, 67, 68
S_LOG2E, S_QS = 70, 72
S_TS = 74
S_XCC, S_FAST = 18, 19
S_KA = 76

def gen(opts):
    ts = opts.get("ts", False)
    dbg = opts.get("dbg", False)
    a = Asm()
    V_STAMP = NVGPR - 1

    def stamp(i):
        if not ts: return
        a(f"""s_memrealtime {sr(S_TS,2)}
              s_memtime s[100:101]
              s_waitcnt lgkmcnt(0)
              v_writelane_b32 v{V_STAMP}, {sr(S_TS)}, {i}
              v_writelane_b32 v{V_STAMP}, s100, {32+i}""")

    V_LANE = 1
    V_T0, V_T1, V_T2, V_T3 = 2, 3, 4, 5
    V_XOFF, V_WOFF = 6, 7
    V_XA0, V_XA1, V_WA = 8, 9, 10
    V_L16, V_G, V_IDX, V_KA, V_VA = 11, 12, 13, 14, 15
    V_QF, V_PQ = 16, 20
    V_ACCQ = 24
    V_FB = [40, 72]
    V_O, V_C, V_KF = 104, 120, 136
    V_VF = [140, 148]
    V_L4, V_FLG, V_TAG, V_WOA0, V_WOA1, V_WA3 = 156, 157, 158, 159, 160, 161
    V_PK = 162
    V_S = [24, 40]
    V_AC, V_OA = 56, 72
    V_FA, V_FBB, V_WO = 56, 120, 88
    V_OUT = [24, 40]

    def srd(s, ka, size):
        a(f"""s_mov_b32 {sr(s)}, {sr(S_KA+ka)}
              s_mov_b32 {sr(s+1)}, {sr(S_KA+ka+1)}
              s_mov_b32 {sr(s+2)}, {hex(size)}
              s_mov_b32 {sr(s+3)}, 0x20000""")
    def flag_store(soff):
        a(f"""s_mov_b64 exec, 1
              buffer_store_dword {vr(V_TAG)}, {vr(V_L4)}, {sr(S_WS,4)}, {sr(soff)} offen sc1
              s_mov_b64 exec, -1""")
    def flag_load(soff):
        a(f"""s_mov_b32 exec_hi, 0
              buffer_load_dword {vr(V_FLG)}, {vr(V_L4)}, {sr(S_WS,4)}, {sr(soff)} offen sc1
              s_mov_b32 exec_hi, -1""")
    def flag_spin(lbl, soff):
        a(f"s_mov_b32 {sr(S_SPIN)}, 0")
        a.label(lbl + "_loop")
        a(f"""v_cmp_ne_u32 vcc, {vr(V_FLG)}, {vr(V_TAG)}
              s_cmp_eq_u32 vcc_lo, 0
              s_cbranch_scc1 {lbl}_ok
              s_add_u32 {sr(S_SPIN)}, {sr(S_SPIN)}, 1
              s_cmp_ge_u32 {sr(S_SPIN)}, 100000
              s_cbranch_scc1 {lbl}_ok""")
        flag_load(soff)
        a(f"""s_waitcnt vmcnt(0)
              s_branch {lbl}_loop""")
        a.label(lbl + "_ok")
    def arm_spin(lbl, soff):
        a(f"s_mov_b32 {sr(S_SPIN)}, 0")
        a.label(lbl + "_loop")
        a(f"""v_sub_u32 {vr(V_FLG)}, {vr(V_FLG)}, {vr(V_TAG)}
              v_cmp_lt_u32 vcc, 15, {vr(V_FLG)}
              s_cmp_eq_u32 vcc_lo, 0
              s_cbranch_scc1 {lbl}_ok
              s_add_u32 {sr(S_SPIN)}, {sr(S_SPIN)}, 1
              s_cmp_ge_u32 {sr(S_SPIN)}, 100000
              s_cbranch_scc1 {lbl}_ok""")
        flag_load(soff)
        a(f"""s_waitcnt vmcnt(0)
              s_branch {lbl}_loop""")
        a.label(lbl + "_ok")
    def tag_setup():
        a(f"""s_waitcnt lgkmcnt(0)
              s_mul_i32 {sr(S_TAG)}, {sr(S_TAG)}, 0x9e3779b1
              s_add_u32 {sr(S_TAG)}, {sr(S_TAG)}, 0x7f4a7c15
              v_mov_b32 {vr(V_TAG)}, {sr(S_TAG)}""")
    def omap():
        a(f"""s_and_b32 {sr(S_QO)}, s2, 7
              s_lshl_b32 {sr(S_QO)}, {sr(S_QO)}, 2
              s_bfe_u32 {sr(S_T1)}, s2, 0x20003
              s_add_u32 {sr(S_QO)}, {sr(S_QO)}, {sr(S_T1)}
              s_lshr_b32 {sr(S_NS)}, s2, 5""")
    def ts_out():
        a(f"""s_mul_i32 {sr(S_T0)}, s2, {NWAVE}
              s_add_u32 {sr(S_T0)}, {sr(S_T0)}, {sr(S_WAVE)}
              s_lshl_b32 {sr(S_T0)}, {sr(S_T0)}, 8
              s_add_u32 {sr(S_T0)}, {sr(S_T0)}, {WS_TS}
              buffer_store_dword v{V_STAMP}, {vr(V_L4)}, {sr(S_WS,4)}, {sr(S_T0)} offen""")
    def phi(src, n, tmp):
        for i in range(0, n, 2):
            a(f"v_pk_mul_f32 {vr(tmp+i,2)}, {sr(S_LOG2E,2)}, {vr(src+i,2)}")
        for i in range(n):
            a(f"v_exp_f32 {vr(tmp+i)}, {vr(tmp+i)} clamp")
        for i in range(n):
            a(f"v_max_f32 {vr(src+i)}, {sr(S_EPS)}, {vr(src+i)}")
        for i in range(0, n, 2):
            a(f"v_pk_add_f32 {vr(src+i,2)}, {vr(src+i,2)}, {vr(tmp+i,2)}")

    a.label(f"{NAME}_kernel")
    a(f"""s_cmp_ge_u32 s2, 256
          s_cbranch_scc1 L_end
          s_load_dwordx16 {sr(S_KA,16)}, s[0:1], 0
          s_load_dwordx8 {sr(S_KA+16,8)}, s[0:1], 64
          v_and_b32 {vr(V_LANE)}, 63, v0
          v_lshrrev_b32 {vr(V_T0)}, 6, v0
          s_and_b32 {sr(S_T0)}, s2, 7
          v_readfirstlane_b32 {sr(S_WAVE)}, {vr(V_T0)}
          s_lshl_b32 {sr(S_T0)}, {sr(S_T0)}, 2
          s_bfe_u32 {sr(S_T1)}, s2, 0x20003
          s_add_u32 {sr(S_QB)}, {sr(S_T0)}, {sr(S_T1)}
          s_sub_u32 {sr(S_WAVE)}, {sr(S_WAVE)}, 4
          s_cselect_b32 {sr(S_T1)}, 12, 0
          s_add_u32 {sr(S_WAVE)}, {sr(S_WAVE)}, {sr(S_T1)}
          s_lshr_b32 {sr(S_HG)}, s2, 5
          s_lshr_b32 {sr(S_RGJ)}, {sr(S_HG)}, 1
          s_xor_b32 {sr(S_HGQ)}, {sr(S_HG)}, 1
          s_xor_b32 {sr(S_HGK)}, {sr(S_HG)}, 2""")
    stamp(0)
    a(f"""v_lshrrev_b32 {vr(V_T0)}, 4, {vr(V_LANE)}
          v_xor_b32 {vr(V_T0)}, {vr(V_T0)}, {vr(V_LANE)}
          v_and_b32 {vr(V_T0)}, 3, {vr(V_T0)}
          v_lshlrev_b32 {vr(V_T0)}, 4, {vr(V_T0)}
          v_lshrrev_b32 {vr(V_T1)}, 2, {vr(V_LANE)}
          v_lshl_add_u32 {vr(V_XOFF)}, {vr(V_T1)}, 10, {vr(V_T0)}
          v_lshlrev_b32 {vr(V_L16)}, 4, {vr(V_LANE)}
          v_lshlrev_b32 {vr(V_L4)}, 2, {vr(V_LANE)}
          s_mov_b32 {sr(S_X+2)}, 0x200000
          s_mov_b32 {sr(S_X+3)}, 0x20000
          s_lshl_b32 {sr(S_T0)}, {sr(S_QB)}, 16
          s_cmp_eq_u32 {sr(S_WAVE)}, 8
          s_cbranch_scc1 L_a0
          s_cmp_eq_u32 {sr(S_WAVE)}, 9
          s_cbranch_scc1 L_a1
          s_cmp_ge_u32 {sr(S_WAVE)}, 10
          s_cbranch_scc1 L_a23
          s_and_b32 {sr(S_RT)}, {sr(S_WAVE)}, 1
          s_lshr_b32 {sr(S_HH)}, {sr(S_WAVE)}, 1""")
    S_XOFF, S_XM0 = S_U0, S_U1
    a(f"""s_and_b32 {sr(S_T1)}, {sr(S_WAVE)}, 3
          s_lshr_b32 {sr(S_T2)}, {sr(S_WAVE)}, 2
          s_lshl_b32 {sr(S_T3)}, {sr(S_T1)}, 14
          s_add_u32 {sr(S_XOFF)}, {sr(S_T0)}, {sr(S_T3)}
          s_lshl_b32 {sr(S_T3)}, {sr(S_T2)}, 7
          s_add_u32 {sr(S_XOFF)}, {sr(S_XOFF)}, {sr(S_T3)}
          s_lshl_b32 {sr(S_XM0)}, {sr(S_T1)}, 10
          s_lshl_b32 {sr(S_T3)}, {sr(S_T2)}, 13
          s_add_u32 {sr(S_XM0)}, {sr(S_XM0)}, {sr(S_T3)}
          s_cmp_eq_u32 {sr(S_T1)}, {sr(S_RGJ)}
          s_cselect_b64 {sr(S_XMASK,2)}, 1, -1""")
    a(f"""s_cmp_eq_u32 {sr(S_T1)}, 0
          s_cselect_b32 {sr(S_T3)}, 1, 3
          s_lshl_b32 {sr(S_W+2)}, {sr(S_T3)}, 19
          s_mov_b32 {sr(S_W+3)}, 0x20000
          s_lshl_b32 {sr(S_T3)}, {sr(S_T3)}, 10
          v_lshrrev_b32 {vr(V_T2)}, 3, {vr(V_LANE)}
          v_mul_u32_u24 {vr(V_T2)}, {sr(S_T3)}, {vr(V_T2)}
          v_and_b32 {vr(V_T3)}, 7, {vr(V_LANE)}
          v_lshl_add_u32 {vr(V_T2)}, {vr(V_T3)}, 7, {vr(V_T2)}
          s_lshl_b32 {sr(S_T2)}, s2, 1
          s_mul_i32 {sr(S_T2)}, {sr(S_T2)}, {sr(S_T3)}
          s_max_u32 {sr(S_T3)}, {sr(S_T1)}, 1
          s_sub_u32 {sr(S_T3)}, {sr(S_T3)}, 1
          s_lshl_b32 {sr(S_T3)}, {sr(S_T3)}, 10
          s_add_u32 {sr(S_T2)}, {sr(S_T2)}, {sr(S_T3)}
          v_lshlrev_b32 {vr(V_T3)}, 6, {vr(V_LANE)}
          s_lshl_b32 {sr(S_T3)}, {sr(S_HG)}, 13
          s_lshl_b32 {sr(S_RDY)}, {sr(S_WAVE)}, 10
          s_add_u32 {sr(S_T3)}, {sr(S_T3)}, {sr(S_RDY)}
          s_add_u32 {sr(S_T3)}, {sr(S_T3)}, {sr(S_T0)}
          s_waitcnt lgkmcnt(0)
          s_mov_b32 {sr(S_X)}, {sr(S_KA+0)}
          s_mov_b32 {sr(S_X+1)}, {sr(S_KA+1)}
          s_cmp_eq_u32 {sr(S_T1)}, 0
          s_cselect_b32 {sr(S_W)}, {sr(S_KA+8)}, {sr(S_KA+2)}
          s_cselect_b32 {sr(S_W+1)}, {sr(S_KA+9)}, {sr(S_KA+3)}
          s_load_dword {sr(S_TAG)}, {sr(S_KA+22,2)}, {WS_E}""")
    def xdma(r):
        a(f"s_add_u32 m0, {sr(S_XM0)}, {L_X + r*16384 - r*256}")
        a(f"s_mov_b64 exec, {sr(S_XMASK,2)}")
        a.vmem(f"buffer_load_dwordx4 {vr(V_XOFF)}, {sr(S_X,4)}, {sr(S_XOFF)} offen offset:{r*256} lds", f"x{r}")
        a(f"s_add_u32 m0, {sr(S_XM0)}, {L_X + r*16384 + 4096 - r*256 - 64}")
        a("s_nop 0")
        a.vmem(f"buffer_load_dwordx4 {vr(V_XOFF)}, {sr(S_X,4)}, {sr(S_XOFF)} offen offset:{r*256 + 64} lds", f"x{r}")
        a("s_mov_b64 exec, -1")
    def pf():
        a(f"""s_cmp_lt_u32 {sr(S_WAVE)}, 4
              s_cselect_b32 exec_lo, 0xffff, 1
              s_mov_b32 exec_hi, 0""")
        a.vmem(f"buffer_load_dword {vr(V_FLG)}, {vr(V_T2)}, {sr(S_W,4)}, {sr(S_T2)} offen", "pf")
        a("s_mov_b32 exec_lo, 0x55")
        a.vmem(f"buffer_load_dword {vr(V_FLG)}, {vr(V_T3)}, {sr(S_X,4)}, {sr(S_T3)} offen offset:512", "pf")
        a("s_mov_b64 exec, -1")
    if opts.get("pffirst", 0):
        pf(); xdma(0)
    else:
        xdma(0); pf()
    srd(S_WS, 22, WS_SIZE)
    srd(S_OUT, 18, 0x200000)
    if ts: srd(S_DBG, 20, 256)
    omap()
    a(f"""v_lshlrev_b32 {vr(V_T2)}, 15, {vr(V_LANE)}
          s_lshl_b32 {sr(S_T1)}, {sr(S_QB)}, 17
          s_lshl_b32 {sr(S_T2)}, {sr(S_QO)}, 17
          s_cmp_eq_u32 {sr(S_WAVE)}, 1
          s_cselect_b32 {sr(S_T1)}, {sr(S_T1)}, {sr(S_T2)}
          s_add_u32 {sr(S_T1)}, {sr(S_T1)}, {WS_OA}
          s_cmp_eq_u32 {sr(S_WAVE)}, 0
          s_cselect_b32 {sr(S_T1)}, 0x380, {sr(S_T1)}
          s_cselect_b32 exec_lo, 0xffffff, 15
          s_mov_b32 exec_hi, 0
          s_cmp_ge_u32 {sr(S_WAVE)}, 3
          s_cbranch_scc1 L_tlb1
          buffer_load_dword {vr(V_FLG)}, {vr(V_T2)}, {sr(S_WS,4)}, {sr(S_T1)} offen sc1
          s_branch L_tlb2""")
    a.label("L_tlb1")
    a(f"""s_lshl_b32 {sr(S_T1)}, {sr(S_QO)}, 16
          s_mov_b32 exec_lo, 3
          buffer_load_dword {vr(V_FLG)}, {vr(V_T2)}, {sr(S_OUT,4)}, {sr(S_T1)} offen""")
    a.label("L_tlb2")
    a("s_mov_b64 exec, -1")
    a.vm.append("tlb")
    xdma(1)
    def consts():
        a(f"""s_mov_b32 {sr(S_VMASK)}, 0xffff
              s_mov_b32 {sr(S_VMASK+1)}, 0xffff
              s_mov_b32 {sr(S_LOG2E)}, {hex(f2u(LOG2E))}
              s_mov_b32 {sr(S_LOG2E+1)}, {hex(f2u(LOG2E))}
              s_mov_b32 {sr(S_EPS)}, {hex(f2u(1e-6))}
              s_mov_b32 {sr(S_ONES)}, 0x3f803f80""")
    def xfrag_addr(rt_s):
        a(f"""v_and_b32 {vr(V_T0)}, 31, {vr(V_LANE)}
              v_lshrrev_b32 {vr(V_T1)}, 5, {vr(V_LANE)}
              v_bfe_u32 {vr(V_T2)}, {vr(V_LANE)}, 2, 2
              v_xor_b32 {vr(V_T2)}, {vr(V_T2)}, {vr(V_T1)}
              v_lshlrev_b32 {vr(V_T2)}, 4, {vr(V_T2)}
              v_lshl_add_u32 {vr(V_T3)}, {vr(V_T0)}, 6, {vr(V_T2)}
              s_lshl_b32 {sr(S_T0)}, {sr(rt_s)}, 11
              s_add_u32 {sr(S_T0)}, {sr(S_T0)}, {L_X}
              v_add_u32 {vr(V_XA0)}, {sr(S_T0)}, {vr(V_T3)}
              v_xor_b32 {vr(V_XA1)}, 32, {vr(V_XA0)}""")
    consts()
    a(f"""s_lshl_b32 {sr(S_HEAD)}, {sr(S_HG)}, 2
          s_add_u32 {sr(S_HEAD)}, {sr(S_HEAD)}, {sr(S_HH)}
          s_lshl_b32 {sr(S_HEADA)}, {sr(S_HGQ)}, 2
          s_add_u32 {sr(S_HEADA)}, {sr(S_HEADA)}, {sr(S_HH)}
          s_lshl_b32 {sr(S_RT32)}, {sr(S_QB)}, 1
          s_add_u32 {sr(S_RT32)}, {sr(S_RT32)}, {sr(S_RT)}
          s_lshl_b32 {sr(S_RO32)}, {sr(S_QO)}, 1
          s_add_u32 {sr(S_RO32)}, {sr(S_RO32)}, {sr(S_RT)}
          s_mov_b32 {sr(S_QS)}, {hex(f2u(QSCALE))}
          s_mov_b32 {sr(S_QS+1)}, {hex(f2u(QSCALE))}""")
    xfrag_addr(S_RT)
    a(f"""v_bfe_u32 {vr(V_T0)}, {vr(V_LANE)}, 4, 1
          v_bfe_u32 {vr(V_T2)}, {vr(V_LANE)}, 3, 2
          v_xor_b32 {vr(V_T2)}, {sr(S_HH)}, {vr(V_T2)}
          v_lshlrev_b32 {vr(V_T2)}, 5, {vr(V_T2)}
          v_lshl_add_u32 {vr(V_T2)}, {vr(V_T0)}, 13, {vr(V_T2)}
          v_lshl_add_u32 {vr(V_T2)}, {vr(V_T1)}, 10, {vr(V_T2)}
          v_bfe_u32 {vr(V_T0)}, {vr(V_LANE)}, 2, 2
          v_lshl_add_u32 {vr(V_T2)}, {vr(V_T0)}, 7, {vr(V_T2)}
          v_and_b32 {vr(V_T0)}, 3, {vr(V_LANE)}
          v_lshl_add_u32 {vr(V_WA)}, {vr(V_T0)}, 3, {vr(V_T2)}
          v_add_u32 {vr(V_WA3)}, {L_HI}, {vr(V_WA)}""")
    for i in range(8):
        a(f"v_mov_b32 {vr(V_ACCQ+i)}, 0")
        a(f"v_mov_b32 {vr(V_ACCQ+8+i)}, {sr(S_EPS)}")
    a(f"""v_mov_b32 {vr(V_T0)}, {sr(S_ONES)}
          s_mov_b32 {sr(S_SAVE)}, 0x110000
          s_mov_b32 {sr(S_SAVE+1)}, 0x110000
          v_cndmask_b32 {vr(V_T0)}, 0, {vr(V_T0)}, {sr(S_SAVE,2)}""")
    for i in range(16):
        a(f"v_mov_b32 {vr(V_O+i)}, 0")
        a(f"v_mov_b32 {vr(V_VF[0]+i)}, {vr(V_T0)}")
    a(f"""v_mov_b32 {vr(V_IDX)}, 0xdddd
          v_mov_b32 {vr(V_KA)}, {vr(V_L16)}
          v_and_b32 {vr(V_T3)}, 15, {vr(V_LANE)}
          v_lshlrev_b32 {vr(V_T3)}, 4, {vr(V_T3)}
          v_lshl_add_u32 {vr(V_VA)}, {vr(V_T1)}, 8, {vr(V_T3)}""")
    tag_setup()
    stamp(1)

    def reads(c):
        fb = V_FB[c % 2]
        s = c % 4
        wa, wo = (V_WA, RSLOT[s]) if s < 3 else (V_WA3, 0)
        r = []
        for p in range(4):
            r.append(f"ds_read_b128 {vr(fb+4*p,4)}, {vr(V_XA0 if p%2==0 else V_XA1)} offset:{(2*c + p//2)*4096}")
            for u in range(2):
                r.append(f"ds_read_b64_tr_b16 {vr(fb+16+4*p+2*u,2)}, {vr(wa)} offset:{wo + p*2048 + u*512}")
        return r
    def mfmas(c):
        fb = V_FB[c % 2]
        return [f"v_mfma_f32_32x32x16_bf16 {vr(V_ACCQ,16)}, {vr(fb+16+4*p,4)}, {vr(fb+4*p,4)}, {vr(V_ACCQ,16)}" for p in range(4)]
    for c in range(8):
        if c in (0, 2):
            a.wait_vm(f"x{c//2}", "lgkmcnt(0)")
        else:
            a("s_waitcnt lgkmcnt(0)")
        a("s_barrier")
        R_ = reads(c)
        if c == 0:
            for r in R_: a(r)
        else:
            M_ = mfmas(c - 1)
            for k in range(4):
                a(M_[k])
                for r in R_[4*k:4*k+4]: a(r)
    for k, m in enumerate(mfmas(7)):
        a(f"s_waitcnt lgkmcnt({9-3*k})")
        a(m)
    stamp(2)
    E = V_FB[0]
    a(f"""s_mov_b32 {sr(S_SEG)}, 0
          s_nop 10""")
    for i in range(0, 8, 2):
        a(f"v_pk_mul_f32 {vr(V_ACCQ+i,2)}, {sr(S_QS,2)}, {vr(V_ACCQ+i,2)}")
    for i in range(4):
        a(f"v_cvt_pk_bf16_f32 {vr(V_QF+i)}, {vr(V_ACCQ+2*i)}, {vr(V_ACCQ+2*i+1)}")
    phi(V_ACCQ + 8, 8, E)
    for i in range(4):
        a(f"v_cvt_pk_bf16_f32 {vr(V_PQ+i)}, {vr(V_ACCQ+8+2*i)}, {vr(V_ACCQ+8+2*i+1)}")
    stamp(3)
    a("s_barrier")
    stamp(4)
    a(f"""ds_read_b128 {vr(V_KF,4)}, {vr(V_KA)}
          s_mov_b64 exec, {sr(S_VMASK,2)}
          ds_read_b128 {vr(V_VF[0],4)}, {vr(V_VA)} offset:1024
          ds_read_b128 {vr(V_VF[0]+4,4)}, {vr(V_VA)} offset:1536
          ds_read_b128 {vr(V_VF[1],4)}, {vr(V_VA)} offset:{2048+1024}
          ds_read_b128 {vr(V_VF[1]+4,4)}, {vr(V_VA)} offset:{2048+1536}
          s_mov_b64 exec, -1
          s_waitcnt lgkmcnt(4)
          v_mfma_f32_32x32x16_bf16 {vr(V_S[0],16)}, {vr(V_KF,4)}, {vr(V_QF,4)}, 0
          ds_read_b128 {vr(V_KF,4)}, {vr(V_KA)} offset:2048""")
    if dbg:
        for reg, hd, base in ((V_QF, S_HEAD, WS_DBG1), (V_PQ, S_HEADA, WS_DBG2)):
            a(f"""s_lshl_b32 {sr(S_T0)}, {sr(S_RT32)}, 5
                  s_add_u32 {sr(S_T0)}, {sr(S_T0)}, {sr(hd)}
                  s_lshl_b32 {sr(S_T0)}, {sr(S_T0)}, 10
                  s_add_u32 {sr(S_T1)}, {sr(S_T0)}, {base}
                  buffer_store_dwordx4 {vr(reg,4)}, {vr(V_L16)}, {sr(S_WS,4)}, {sr(S_T1)} offen""")
    S0 = V_S[0]
    a(f"""s_nop 10
          v_max3_f32 {vr(V_T0)}, {vr(S0)}, {vr(S0+1)}, {vr(S0+2)}
          v_max3_f32 {vr(V_T1)}, {vr(S0+3)}, {vr(S0+4)}, {vr(S0+5)}
          v_max3_f32 {vr(V_T2)}, {vr(S0+6)}, {vr(S0+7)}, {vr(S0+8)}
          v_max3_f32 {vr(V_T3)}, {vr(S0+9)}, {vr(S0+10)}, {vr(S0+11)}
          v_max3_f32 {vr(V_T0)}, {vr(V_T0)}, {vr(S0+12)}, {vr(S0+13)}
          v_max3_f32 {vr(V_T1)}, {vr(V_T1)}, {vr(S0+14)}, {vr(S0+15)}
          v_max3_f32 {vr(V_T0)}, {vr(V_T0)}, {vr(V_T1)}, {vr(V_T2)}
          v_max_f32 {vr(V_T0)}, {vr(V_T0)}, {vr(V_T3)}
          v_mov_b32 {vr(V_T1)}, {vr(V_T0)}
          s_nop 1
          v_permlane32_swap_b32 {vr(V_T0)}, {vr(V_T1)}
          s_nop 1
          v_max_f32 {vr(V_T0)}, {vr(V_T0)}, {vr(V_T1)}
          v_sub_f32 {vr(V_T2)}, 0, {vr(V_T0)}
          v_sub_f32 {vr(V_T3)}, 0, {vr(V_T0)}""")
    for i in range(0, 16, 2):
        a(f"v_pk_add_f32 {vr(S0+i,2)}, {vr(S0+i,2)}, {vr(V_T2,2)}")
    for i in range(0, 16, 2):
        a(f"v_pk_mov_b32 {vr(V_C+i,2)}, {vr(V_T2,2)}, {vr(V_T2,2)} op_sel:[0,1]")
    a(f"""v_exp_f32 {vr(S0)}, {vr(S0)}
          v_exp_f32 {vr(S0+1)}, {vr(S0+1)}
          s_waitcnt lgkmcnt(0)""")
    stamp(5)

    PR = opts.get("ramp", "3210")
    PR = [int(ch) for ch in str(PR).zfill(4)]
    def segment(extra=None):
        last = extra is not None
        NT = 10 if last else 8
        ramp = {0: PR[0], 6: PR[1], 8: PR[2], 9: PR[3]} if last else {0: PR[0], 4: PR[1], 6: PR[2], 7: PR[3]}
        for t in range(NT):
            cur, nxt = V_S[t % 2], V_S[(t + 1) % 2]
            vf = V_VF[t % 2]
            ex = lambda r: a(f"v_exp_f32 {vr(r)}, {vr(r)}")
            if t == 2 and not last: a.label("L_att2")
            if t in ramp: a(f"s_setprio {ramp[t]}")
            for i in (2, 3, 4, 5): ex(cur + i)
            if t < 9:
                a("s_waitcnt lgkmcnt(2)")
                a(f"v_mfma_f32_32x32x16_bf16 {vr(nxt,16)}, {vr(V_KF,4)}, {vr(V_QF,4)}, {vr(V_C,16)}")
            else:
                a("s_waitcnt lgkmcnt(0)")
            if t < 8:
                a(f"ds_read_b128 {vr(V_KF,4)}, {vr(V_KA)} offset:{t*2048}")
                if extra: extra(t)
            elif t == 8:
                a("s_nop 0")
            for i in (6, 7, 8, 9, 10): ex(cur + i)
            a(f"v_smfmac_f32_32x32x32_bf16 {vr(V_O,16)}, {vr(vf,4)}, {vr(cur,8)}, {vr(V_IDX)}")
            for i in (11, 12, 13, 14, 15): ex(cur + i)
            if t < 9:
                ex(nxt); ex(nxt + 1)
            else:
                a("s_nop 1")
            a(f"v_smfmac_f32_32x32x32_bf16 {vr(V_O,16)}, {vr(vf+4,4)}, {vr(cur+8,8)}, {vr(V_IDX)}")
            if t < 8:
                a(f"""s_mov_b64 exec, {sr(S_VMASK,2)}
                      ds_read_b128 {vr(vf,4)}, {vr(V_VA)} offset:{t*2048+1024}
                      ds_read_b128 {vr(vf+4,4)}, {vr(V_VA)} offset:{t*2048+1536}
                      s_mov_b64 exec, -1""")
    a(f"""s_setprio {PR[0]}
          s_branch L_att2""")
    a.lines.append("    .p2align 6")
    a.label("L_att")
    segment()
    a(f"""v_add_u32 {vr(V_KA)}, 0x4000, {vr(V_KA)}
          v_add_u32 {vr(V_VA)}, 0x4000, {vr(V_VA)}
          s_add_u32 {sr(S_SEG)}, {sr(S_SEG)}, 1""")
    for h in (1, 2, 5, 6, 7):
        a(f"""s_cmp_eq_u32 {sr(S_SEG)}, {h}
              s_cbranch_scc1 L_hook{h}""")
    if opts.get("hk", 3) == 2:
        a(f"s_cmp_eq_u32 {sr(S_SEG)}, 3\ns_cbranch_scc1 L_att")
    if ts:
        a(f"s_cmp_eq_u32 {sr(S_SEG)}, 4\ns_cbranch_scc1 L_hook4")
        stamp(13); a("s_barrier"); stamp(14); a("s_branch L_att")
        a.label("L_hook4")
        stamp(15); a("s_barrier"); stamp(16); a("s_branch L_att")
    else:
        a("""s_waitcnt lgkmcnt(0)
             s_barrier
             s_branch L_att""")

    def ooff(dst, base):
        a(f"""s_lshl_b32 {sr(dst)}, {sr(S_RT32)}, 6
              s_add_u32 {sr(dst)}, {sr(dst)}, {sr(S_HEADA if base == WS_OA else S_HEAD)}
              s_lshl_b32 {sr(dst)}, {sr(dst)}, 10
              s_add_u32 {sr(dst)}, {sr(dst)}, {base}""")
    def oload(i, dst, br):
        so = [[S_U0, S_U1], [S_U2, S_U3]][br][i // 4]
        a(f"buffer_load_dwordx4 {vr(dst+4*i,4)}, {vr(V_L16)}, {sr(S_WS,4)}, {sr(so)} offen offset:{(i%4)*1024} sc1")
    def osan():
        for i in range(4):
            a(f"v_min_u32 {vr(V_PK+i)}, -2, {vr(V_PK+i)}")

    a.label("L_hook1")
    stamp(11)
    a(f"""v_and_b32 {vr(V_T0)}, 0x3c, {vr(V_L4)}
          v_bfe_u32 {vr(V_T1)}, {vr(V_LANE)}, 4, 1
          v_lshl_add_u32 {vr(V_T0)}, {vr(V_T1)}, 7, {vr(V_T0)}
          s_lshl_b32 {sr(S_T0)}, {sr(S_RT32)}, 8
          s_add_u32 {sr(S_T0)}, {sr(S_T0)}, {WS_G}
          v_mov_b32 {vr(V_PK)}, -1
          v_mov_b32 {vr(V_PK+1)}, -1
          v_mov_b32 {vr(V_PK+2)}, -1
          v_mov_b32 {vr(V_PK+3)}, -1""")
    ooff(S_RDY, WS_OB)
    ooff(S_AUX, WS_OA)
    a(f"""s_barrier
          buffer_load_dword {vr(V_G)}, {vr(V_T0)}, {sr(S_WS,4)}, {sr(S_T0)} offen sc1
          buffer_store_dwordx4 {vr(V_PK,4)}, {vr(V_L16)}, {sr(S_WS,4)}, {sr(S_RDY)} offen sc1
          buffer_store_dwordx4 {vr(V_PK,4)}, {vr(V_L16)}, {sr(S_WS,4)}, {sr(S_AUX)} offen sc1""")
    stamp(12)
    a("s_branch L_att")

    a.label("L_hook2")
    HK = opts.get("hk", 3)
    if HK == 2: a("s_barrier")
    a(f"""s_lshl_b32 {sr(S_T3)}, {sr(S_RT32)}, 5
          s_add_u32 {sr(S_T3)}, {sr(S_T3)}, {sr(S_HEAD)}
          s_lshl_b32 {sr(S_T3)}, {sr(S_T3)}, 2
          s_add_u32 {sr(S_T3)}, {sr(S_T3)}, {WS_FO}
          s_getreg_b32 {sr(S_XCC)}, hwreg(HW_REG_XCC_ID, 0, 4)
          v_add_u32 {vr(V_T0)}, {sr(S_XCC)}, {vr(V_TAG)}
          s_waitcnt vmcnt(0)
          s_mov_b64 exec, 1
          buffer_store_dword {vr(V_T0)}, {vr(V_L4)}, {sr(S_WS,4)}, {sr(S_T3)} offen sc1
          s_mov_b64 exec, -1""")
    a(f"""v_lshrrev_b32 {vr(V_T0)}, 5, {vr(V_LANE)}
          v_lshlrev_b32 {vr(V_T0)}, 9, {vr(V_T0)}
          v_bfe_u32 {vr(V_T1)}, {vr(V_LANE)}, 2, 2
          v_lshl_add_u32 {vr(V_T0)}, {vr(V_T1)}, 7, {vr(V_T0)}
          v_bfe_u32 {vr(V_T1)}, {vr(V_LANE)}, 3, 1
          v_lshl_add_u32 {vr(V_T0)}, {vr(V_T1)}, 6, {vr(V_T0)}
          v_bfe_u32 {vr(V_T1)}, {vr(V_LANE)}, 4, 1
          v_lshl_add_u32 {vr(V_T0)}, {vr(V_T1)}, 5, {vr(V_T0)}
          v_and_b32 {vr(V_T1)}, 3, {vr(V_LANE)}
          v_lshl_add_u32 {vr(V_T0)}, {vr(V_T1)}, 3, {vr(V_T0)}
          s_lshl_b32 {sr(S_T0)}, {sr(S_HH)}, 14
          v_add_u32 {vr(V_WOA0)}, {sr(S_T0)}, {vr(V_T0)}
          v_xor_b32 {vr(V_WOA1)}, 64, {vr(V_WOA0)}
          s_lshl_b32 {sr(S_U0)}, {sr(S_RO32)}, 3
          s_add_u32 {sr(S_U0)}, {sr(S_U0)}, {sr(S_HH)}
          s_lshl_b32 {sr(S_U0)}, {sr(S_U0)}, 13
          s_add_u32 {sr(S_U0)}, {sr(S_U0)}, {WS_OA}
          s_add_u32 {sr(S_U1)}, {sr(S_U0)}, 4096
          s_lshl_b32 {sr(S_U2)}, {sr(S_RO32)}, 4
          s_add_u32 {sr(S_U2)}, {sr(S_U2)}, {sr(S_HH)}
          s_lshl_b32 {sr(S_U2)}, {sr(S_U2)}, 12
          s_add_u32 {sr(S_U2)}, {sr(S_U2)}, {WS_OB}
          s_add_u32 {sr(S_U3)}, {sr(S_U2)}, 16384
          s_branch L_att""")

    a.label("L_hook5")
    stamp(17)
    a(f"""s_and_b32 {sr(S_T1)}, {sr(S_HEADA)}, 1
          v_lshrrev_b32 {vr(V_T1)}, 5, {vr(V_LANE)}
          s_lshl_b32 {sr(S_T2)}, {sr(S_T1)}, 1
          s_add_u32 {sr(S_T2)}, {sr(S_T2)}, 64
          v_add_u32 {vr(V_T1)}, {sr(S_T2)}, {vr(V_T1)}
          v_and_b32 {vr(V_T0)}, 0x2f, {vr(V_LANE)}
          s_lshl_b32 {sr(S_T2)}, {sr(S_T1)}, 4
          v_add_u32 {vr(V_T0)}, {sr(S_T2)}, {vr(V_T0)}
          v_cndmask_b32 {vr(V_T0)}, {vr(V_T0)}, {vr(V_T1)}, {sr(S_VMASK,2)}
          v_lshlrev_b32 {vr(V_T0)}, 2, {vr(V_T0)}
          s_lshr_b32 {sr(S_T0)}, {sr(S_HEADA)}, 1
          s_lshl_b32 {sr(S_T0)}, {sr(S_T0)}, 12
          s_add_u32 {sr(S_T0)}, {sr(S_T0)}, {WS_ACC}
          s_lshl_b32 {sr(S_T3)}, {sr(S_RO32)}, 7
          s_add_u32 {sr(S_T3)}, {sr(S_T3)}, {WS_FO}
          s_barrier""")
    for r in range(8):
        a(f"buffer_load_dword {vr(V_AC+r)}, {vr(V_T0)}, {sr(S_WS,4)}, {sr(S_T0)} offen offset:{r*512} sc1")
    flag_load(S_T3)
    stamp(18)
    a("s_branch L_att")

    a.label("L_hook6")
    stamp(19)
    a("s_waitcnt vmcnt(0)")
    for i in range(4):
        a(f"v_cvt_pk_bf16_f32 {vr(V_AC+8+i)}, {vr(V_AC+2*i)}, {vr(V_AC+2*i+1)}")
    a(f"""s_nop 1
          v_mfma_f32_32x32x16_bf16 {vr(V_OA,16)}, {vr(V_AC+8,4)}, {vr(V_PQ,4)}, 0
          s_waitcnt lgkmcnt(0)
          s_barrier
          s_nop 9
          v_add_f32 {vr(V_T0)}, {sr(S_EPS)}, {vr(V_OA)}
          v_rcp_f32 {vr(V_T0)}, {vr(V_T0)}
          s_nop 0
          v_mul_f32 {vr(V_T0)}, {vr(V_T0)}, {vr(V_G)}""")
    for i in range(0, 8, 2):
        a(f"v_pk_mul_f32 {vr(V_OA+8+i,2)}, {vr(V_OA+8+i,2)}, {vr(V_T0,2)} op_sel_hi:[1,0]")
    for i in range(4):
        a(f"v_cvt_pk_bf16_f32 {vr(V_PK+i)}, {vr(V_OA+8+2*i)}, {vr(V_OA+8+2*i+1)}")
    osan()
    a(f"buffer_store_dwordx4 {vr(V_PK,4)}, {vr(V_L16)}, {sr(S_WS,4)}, {sr(S_AUX)} offen sc1")
    a(f"v_sub_f32 {vr(V_G)}, 1.0, {vr(V_G)}")
    stamp(20)
    a("s_branch L_att")

    a.label("L_hook7")
    arm_spin("L_sfo", S_T3)
    a(f"""v_cmp_ne_u32 vcc, {sr(S_XCC)}, {vr(V_FLG)}
          s_mov_b32 {sr(S_FAST)}, vcc_lo""")
    segment(extra=lambda t: oload(t, V_FA, 0))

    VB0, VB1, VC0, VC1 = V_XOFF, V_WOFF, V_PQ, V_PQ + 1
    def wo_one(n, nt):
        b = V_WO + 8 * (n % 4) + 4 * nt
        ad = [V_WOA0, V_WOA1][nt] if n < 8 else ([VB0, VB1][nt] if n < 12 else [VC0, VC1][nt])
        off = n * 2048 if n < 8 else (n % 4) * 2048
        for u in range(2):
            a(f"ds_read_b64_tr_b16 {vr(b+2*u,2)}, {vr(ad)} offset:{off + u*1024}")
    def wo_rd(n):
        wo_one(n, 0); wo_one(n, 1)
    def mm(n, nt):
        src = V_FA + 4 * n if n < 8 else V_FBB + 4 * (n - 8)
        a(f"v_mfma_f32_32x32x16_bf16 {vr(V_OUT[nt],16)}, {vr(V_WO+8*(n%4)+4*nt,4)}, {vr(src,4)}, {'0' if n == 0 else vr(V_OUT[nt],16)}")
    wo_rd(0); wo_rd(1)
    a(f"""s_mov_b32 {sr(S_T0)}, {hex(f2u(2.0**64))}
          s_nop 2""")
    stamp(6)
    a(f"""v_rcp_f32 {vr(V_T0)}, {vr(V_O+8)}
          v_cmp_nle_f32 vcc, {vr(V_O+8)}, {sr(S_T0)}
          v_pk_mul_f32 {vr(V_T2,2)}, {vr(V_O,2)}, 0
          v_pk_fma_f32 {vr(V_T2,2)}, {vr(V_O+2,2)}, 0, {vr(V_T2,2)}
          v_pk_fma_f32 {vr(V_T2,2)}, {vr(V_O+4,2)}, 0, {vr(V_T2,2)}
          v_pk_fma_f32 {vr(V_T2,2)}, {vr(V_O+6,2)}, 0, {vr(V_T2,2)}
          v_cmp_u_f32 {sr(S_SAVE,2)}, {vr(V_T2)}, {vr(V_T3)}
          s_or_b64 vcc, vcc, {sr(S_SAVE,2)}
          s_cbranch_vccnz L_fallback""")
    a.label("L_norm")
    a(f"v_mul_f32 {vr(V_T0)}, {vr(V_T0)}, {vr(V_G)}")
    for i in range(0, 8, 2):
        a(f"v_pk_mul_f32 {vr(V_O+i,2)}, {vr(V_O+i,2)}, {vr(V_T0,2)} op_sel_hi:[1,0]")
    for i in range(4):
        a(f"v_cvt_pk_bf16_f32 {vr(V_PK+i)}, {vr(V_O+2*i)}, {vr(V_O+2*i+1)}")
    osan()
    a(f"""s_cmp_eq_u32 {sr(S_FAST)}, 0
          s_cbranch_scc0 L_slowst
          buffer_store_dwordx4 {vr(V_PK,4)}, {vr(V_L16)}, {sr(S_WS,4)}, {sr(S_RDY)} offen""")
    a.label("L_stdone")
    wo_rd(2)
    a(f"""s_mov_b32 {sr(S_SPIN)}, 0
          s_waitcnt vmcnt(1)""")
    a.label("L_oa")
    a(f"v_max3_u32 {vr(V_FLG)}, {vr(V_FA)}, {vr(V_FA+1)}, {vr(V_FA+2)}")
    for i in range(3, 31, 2):
        a(f"v_max3_u32 {vr(V_FLG)}, {vr(V_FLG)}, {vr(V_FA+i)}, {vr(V_FA+i+1)}")
    a(f"""v_max_u32 {vr(V_FLG)}, {vr(V_FLG)}, {vr(V_FA+31)}
          v_cmp_eq_u32 vcc, -1, {vr(V_FLG)}
          s_cbranch_vccnz L_oar""")
    a.label("L_oak")
    A0, A1, A2, A3 = V_XA0, V_XA1, V_WA, V_KA
    setup = f"""s_lshl_b32 {sr(S_T0)}, {sr(S_HH)}, 13
          s_sub_u32 {sr(S_T1)}, {L_HI}, {sr(S_T0)}
          v_add_u32 {vr(VB0)}, {sr(S_T1)}, {vr(V_WOA0)}
          v_add_u32 {vr(VB1)}, {sr(S_T1)}, {vr(V_WOA1)}
          s_sub_u32 {sr(S_T1)}, 65536, {sr(S_T0)}
          v_add_u32 {vr(VC0)}, {sr(S_T1)}, {vr(V_WOA0)}
          v_add_u32 {vr(VC1)}, {sr(S_T1)}, {vr(V_WOA1)}
          v_and_b32 {vr(V_T0)}, 31, {vr(V_LANE)}
          v_lshrrev_b32 {vr(V_T1)}, 5, {vr(V_LANE)}
          v_and_b32 {vr(V_T2)}, 7, {vr(V_LANE)}
          v_xor_b32 {vr(V_T1)}, {vr(V_T1)}, {vr(V_T2)}
          v_lshlrev_b32 {vr(V_T1)}, 4, {vr(V_T1)}
          v_lshl_add_u32 {vr(V_T0)}, {vr(V_T0)}, 8, {vr(V_T1)}
          s_lshl_b32 {sr(S_T0)}, {sr(S_HH)}, 14
          s_lshl_b32 {sr(S_T1)}, {sr(S_RT)}, 13
          s_add_u32 {sr(S_T0)}, {sr(S_T0)}, {sr(S_T1)}
          v_add_u32 {vr(V_T0)}, {sr(S_T0)}, {vr(V_T0)}
          v_xor_b32 {vr(V_T1)}, 32, {vr(V_T0)}
          v_xor_b32 {vr(V_T2)}, 64, {vr(V_T0)}
          v_xor_b32 {vr(V_T3)}, 96, {vr(V_T0)}
          v_lshrrev_b32 {vr(A0)}, 3, {vr(V_LANE)}
          v_and_b32 {vr(A1)}, 7, {vr(V_LANE)}
          v_lshlrev_b32 {vr(A2)}, 1, {vr(A1)}
          v_xor_b32 {vr(A2)}, {vr(A2)}, {vr(A0)}
          v_lshlrev_b32 {vr(A2)}, 4, {vr(A2)}
          v_lshl_add_u32 {vr(A2)}, {vr(A0)}, 8, {vr(A2)}
          s_lshl_b32 {sr(S_T0)}, {sr(S_WAVE)}, 11
          v_add_u32 {vr(A2)}, {sr(S_T0)}, {vr(A2)}
          v_xor_b32 {vr(A3)}, 16, {vr(A2)}
          v_lshlrev_b32 {vr(A1)}, 4, {vr(A1)}
          v_lshl_add_u32 {vr(A0)}, {vr(A0)}, 10, {vr(A1)}
          s_lshl_b32 {sr(S_RDY)}, {sr(S_QO)}, 16
          s_lshl_b32 {sr(S_T1)}, {sr(S_WAVE)}, 13
          s_add_u32 {sr(S_RDY)}, {sr(S_RDY)}, {sr(S_T1)}
          s_lshl_b32 {sr(S_T1)}, {sr(S_NS)}, 7
          s_add_u32 {sr(S_RDY)}, {sr(S_RDY)}, {sr(S_T1)}""".split("\n")
    OBAT = opts.get("obat", 3)
    sched = {i: [] for i in range(8)}
    for k in range(8):
        sched[min(7, OBAT + (k * (8 - OBAT)) // 8)].append(k)
    per = (len(setup) + 3) // 4
    def chk(i):
        f = V_FBB + 4 * i
        a(f"s_waitcnt vmcnt({7-i})")
        a.label(f"L_ob{i}")
        a(f"""v_max3_u32 {vr(V_FLG)}, {vr(f)}, {vr(f+1)}, {vr(f+2)}
              v_max_u32 {vr(V_FLG)}, {vr(V_FLG)}, {vr(f+3)}
              v_cmp_eq_u32 vcc, -1, {vr(V_FLG)}
              s_cbranch_vccnz L_obr{i}""")
        a.label(f"L_obk{i}")
    for n in range(12):
        if n == 8: stamp(7)
        if n >= 8: chk(n - 8)
        a(f"s_waitcnt lgkmcnt({4 * (min(n + 2, 11) - n)})")
        mm(n, 0); mm(n, 1)
        if n < 4:
            for l in setup[n*per:(n+1)*per]: a(l)
        if n + 3 < 12: wo_rd(n + 3)
        if n < 8:
            for k in sched[n]: oload(k, V_FBB, 1)
    a("s_barrier")
    stamp(8)
    for n in range(12, 16): wo_one(n, 0)
    for n in range(12, 15): wo_one(n, 1)
    for n in range(12, 16):
        chk(n - 8)
        a(f"s_waitcnt lgkmcnt({12 if n == 12 else 2*(15-n) + 8})")
        mm(n, 0)
        if n == 12: wo_one(15, 1)
    for n in range(12, 16):
        a(f"s_waitcnt lgkmcnt({2*(15-n)})")
        mm(n, 1)
    stamp(9)
    a("s_nop 3")
    for nt in range(2):
        if nt: a("s_nop 3")
        for g in range(4):
            a(f"ds_write_b128 {vr(V_T0+g)}, {vr(V_OUT[nt]+4*g,4)} offset:{nt*128}")
    a("""s_waitcnt lgkmcnt(0)
         s_barrier""")
    RR = V_FA
    for k in range(4):
        a(f"ds_read_b128 {vr(RR+8*k,4)}, {vr(A2)} offset:{k*16384}")
        a(f"ds_read_b128 {vr(RR+8*k+4,4)}, {vr(A3)} offset:{k*16384}")
    for k in range(1, 4):
        a(f"s_waitcnt lgkmcnt({2*(3-k)})")
        for i in range(0, 8, 2):
            a(f"v_pk_add_f32 {vr(RR+i,2)}, {vr(RR+i,2)}, {vr(RR+8*k+i,2)}")
    for i in range(4):
        a(f"v_cvt_pk_bf16_f32 {vr(RR+8+i)}, {vr(RR+2*i)}, {vr(RR+2*i+1)}")
    a(f"buffer_store_dwordx4 {vr(RR+8,4)}, {vr(A0)}, {sr(S_OUT,4)}, {sr(S_RDY)} offen")
    if "dfast" in opts:
        a(f"""s_cmp_eq_u32 {sr(S_FAST)}, 0
              s_cbranch_scc{opts['dfast']} L_end
              s_memrealtime s[98:99]
              s_waitcnt lgkmcnt(0)""")
        a.label("L_dly")
        a(f"""s_memrealtime s[96:97]
              s_waitcnt lgkmcnt(0)
              s_sub_u32 {sr(S_T1)}, s96, s98
              s_cmp_lt_u32 {sr(S_T1)}, 3000
              s_cbranch_scc1 L_dly""")
    if ts:
        stamp(10)
        ts_out()
    a.label("L_end")
    a("s_endpgm")

    a.label("L_slowst")
    a(f"""buffer_store_dwordx4 {vr(V_PK,4)}, {vr(V_L16)}, {sr(S_WS,4)}, {sr(S_RDY)} offen sc1
          s_waitcnt vmcnt(0)
          s_branch L_stdone""")
    a.label("L_oar")
    a(f"""s_add_u32 {sr(S_SPIN)}, {sr(S_SPIN)}, 1
          s_cmp_ge_u32 {sr(S_SPIN)}, 100000
          s_cbranch_scc1 L_oak""")
    for k in range(8): oload(k, V_FA, 0)
    a("""s_waitcnt vmcnt(0)
         s_branch L_oa""")
    RM = opts.get("rm", 1)
    for i in range(8):
        f = V_FBB + 4 * i
        a.label(f"L_obr{i}")
        a(f"""s_add_u32 {sr(S_SPIN)}, {sr(S_SPIN)}, 1
              s_cmp_ge_u32 {sr(S_SPIN)}, 100000
              s_cbranch_scc1 L_obk{i}""")
        if RM == 1:
            if opts.get("slp", 0): a(f"s_sleep {opts['slp']}")
            for k in range(i, 8): oload(k, V_FBB, 1)
            a(f"""s_waitcnt vmcnt({7-i})
                  s_branch L_ob{i}""")
        else:
            if opts.get("slp", 0): a(f"s_sleep {opts['slp']}")
            oload(i, V_FBB, 1)
            a(f"""s_waitcnt vmcnt(0)
                  v_max3_u32 {vr(V_FLG)}, {vr(f)}, {vr(f+1)}, {vr(f+2)}
                  v_max_u32 {vr(V_FLG)}, {vr(V_FLG)}, {vr(f+3)}
                  v_cmp_eq_u32 vcc, -1, {vr(V_FLG)}
                  s_cbranch_vccnz L_obr{i}""")
            for k in range(i + 1, 8): oload(k, V_FBB, 1)
            a(f"s_branch L_obk{i}")

    a.label("L_fallback")
    FS = V_S[0]
    a(f"""v_mov_b32 {vr(V_T0)}, 0xff800000
          s_mov_b32 {sr(S_T0)}, {WS_KV}""")
    a.label("L_fb1")
    a(f"""buffer_load_dwordx4 {vr(V_KF,4)}, {vr(V_L16)}, {sr(S_WS,4)}, {sr(S_T0)} offen sc1
          s_waitcnt vmcnt(0)
          v_mfma_f32_32x32x16_bf16 {vr(FS,16)}, {vr(V_KF,4)}, {vr(V_QF,4)}, 0
          s_nop 15""")
    for i in range(8):
        a(f"v_max3_f32 {vr(V_T0)}, {vr(V_T0)}, {vr(FS+2*i)}, {vr(FS+2*i+1)}")
    a(f"""s_add_u32 {sr(S_T0)}, {sr(S_T0)}, 2048
          s_cmp_lt_u32 {sr(S_T0)}, {WS_KV + 131072}
          s_cbranch_scc1 L_fb1
          v_mov_b32 {vr(V_T1)}, {vr(V_T0)}
          s_nop 1
          v_permlane32_swap_b32 {vr(V_T0)}, {vr(V_T1)}
          s_nop 1
          v_max_f32 {vr(V_T0)}, {vr(V_T0)}, {vr(V_T1)}""")
    for i in range(16):
        a(f"v_sub_f32 {vr(V_C+i)}, 0, {vr(V_T0)}")
        a(f"v_mov_b32 {vr(V_O+i)}, 0")
    a(f"""v_and_b32 {vr(V_VA)}, 0x3ff, {vr(V_VA)}
          s_mov_b32 {sr(S_T0)}, {WS_KV}""")
    a.label("L_fb2")
    a(f"""buffer_load_dwordx4 {vr(V_KF,4)}, {vr(V_L16)}, {sr(S_WS,4)}, {sr(S_T0)} offen sc1
          s_mov_b64 exec, {sr(S_VMASK,2)}
          buffer_load_dwordx4 {vr(V_VF[0],4)}, {vr(V_VA)}, {sr(S_WS,4)}, {sr(S_T0)} offen offset:1024 sc1
          buffer_load_dwordx4 {vr(V_VF[0]+4,4)}, {vr(V_VA)}, {sr(S_WS,4)}, {sr(S_T0)} offen offset:1536 sc1
          s_mov_b64 exec, -1
          s_waitcnt vmcnt(0)
          v_mfma_f32_32x32x16_bf16 {vr(FS,16)}, {vr(V_KF,4)}, {vr(V_QF,4)}, {vr(V_C,16)}
          s_nop 15""")
    for i in range(16):
        a(f"v_exp_f32 {vr(FS+i)}, {vr(FS+i)}")
    a(f"""s_nop 1
          v_smfmac_f32_32x32x32_bf16 {vr(V_O,16)}, {vr(V_VF[0],4)}, {vr(FS,8)}, {vr(V_IDX)}
          v_smfmac_f32_32x32x32_bf16 {vr(V_O,16)}, {vr(V_VF[0]+4,4)}, {vr(FS+8,8)}, {vr(V_IDX)}
          s_add_u32 {sr(S_T0)}, {sr(S_T0)}, 2048
          s_cmp_lt_u32 {sr(S_T0)}, {WS_KV + 131072}
          s_cbranch_scc1 L_fb2
          s_nop 15
          v_rcp_f32 {vr(V_T0)}, {vr(V_O+8)}
          s_nop 0
          s_branch L_norm""")

    H_F4, H_FOFF = 148, 152
    S_ROT = S_HEAD
    def rot_setup():
        a(f"""s_and_b32 {sr(S_ROT)}, s2, 7
              s_lshl_b32 {sr(S_ROT)}, {sr(S_ROT)}, 3""")
    def kv_sample():
        a(f"buffer_load_dwordx4 {vr(H_F4,4)}, {vr(H_FOFF)}, {sr(S_WS,4)}, 0 offen offset:{WS_FKV} sc1")
    def kv_spin(lbl, lo_only):
        a(f"s_mov_b32 {sr(S_SPIN)}, 0")
        a.label(lbl + "_loop")
        a(f"""v_cmp_ne_u32 vcc, {vr(H_F4)}, {vr(V_TAG)}
              v_cmp_ne_u32 {sr(S_SAVE,2)}, {vr(H_F4+1)}, {vr(V_TAG)}
              s_or_b64 vcc, vcc, {sr(S_SAVE,2)}
              v_cmp_ne_u32 {sr(S_SAVE,2)}, {vr(H_F4+2)}, {vr(V_TAG)}
              s_or_b64 vcc, vcc, {sr(S_SAVE,2)}
              v_cmp_ne_u32 {sr(S_SAVE,2)}, {vr(H_F4+3)}, {vr(V_TAG)}
              s_or_b64 vcc, vcc, {sr(S_SAVE,2)}""")
        if lo_only:
            a(f"s_and_b32 {sr(S_SAVE)}, vcc_lo, 0xff\ns_cmp_eq_u32 {sr(S_SAVE)}, 0")
        else:
            a("s_cmp_eq_u64 vcc, 0")
        a(f"""s_cbranch_scc1 {lbl}_ok
              s_add_u32 {sr(S_SPIN)}, {sr(S_SPIN)}, 1
              s_cmp_ge_u32 {sr(S_SPIN)}, 100000
              s_cbranch_scc1 {lbl}_ok""")
        if lo_only: a("s_mov_b64 exec, 0xff")
        kv_sample()
        if lo_only: a("s_mov_b64 exec, -1")
        a(f"""s_waitcnt vmcnt(0)
              s_branch {lbl}_loop""")
        a.label(lbl + "_ok")
    def kv_dma(lbl, s0, s1):
        a(f"s_mov_b32 {sr(S_T0)}, {s0}")
        a.label(lbl)
        a(f"""s_add_u32 {sr(S_T1)}, {sr(S_T0)}, {sr(S_ROT)}
              s_and_b32 {sr(S_T1)}, {sr(S_T1)}, 63
              s_lshl_b32 {sr(S_T1)}, {sr(S_T1)}, 11
              s_add_u32 {sr(S_T1)}, {sr(S_T1)}, {WS_KV}
              s_lshl_b32 m0, {sr(S_T0)}, 11
              s_waitcnt vmcnt(40)""")
        for k in range(4):
            a(f"buffer_load_dwordx4 {vr(V_L16)}, {sr(S_WS,4)}, {sr(S_T1)} offen offset:{k*1024} sc1 lds")
        a(f"""s_add_u32 m0, m0, 4096
              s_add_u32 {sr(S_T1)}, {sr(S_T1)}, 4096""")
        for k in range(4):
            a(f"buffer_load_dwordx4 {vr(V_L16)}, {sr(S_WS,4)}, {sr(S_T1)} offen offset:{k*1024} sc1 lds")
        a(f"""s_add_u32 {sr(S_T0)}, {sr(S_T0)}, 4
              s_cmp_lt_u32 {sr(S_T0)}, {s1}
              s_cbranch_scc1 {lbl}""")
    def swz64(dst, stride):
        a(f"""v_lshrrev_b32 {vr(V_T0)}, 3, {vr(V_LANE)}
              v_bfe_u32 {vr(V_T1)}, {vr(V_LANE)}, 4, 1
              v_lshlrev_b32 {vr(V_T1)}, 2, {vr(V_T1)}
              v_xor_b32 {vr(V_T1)}, {vr(V_T1)}, {vr(V_LANE)}
              v_and_b32 {vr(V_T1)}, 7, {vr(V_T1)}
              v_lshlrev_b32 {vr(V_T1)}, 4, {vr(V_T1)}
              v_mul_u32_u24 {vr(V_T0)}, {stride}, {vr(V_T0)}
              v_add_u32 {vr(dst)}, {vr(V_T0)}, {vr(V_T1)}""")

    KACC = [24, 40]
    KB = [56, 68]
    KV0, KV1 = 153, 154
    S_KO, S_KM = S_U2, S_U3
    S_KW = S_WOB
    def kv_setup():
        srd(S_KW, 2, 0x180000)
        srd(S_WS, 22, WS_SIZE)
        consts()
        swz64(KV0, 3072)
        a(f"""v_add_u32 {vr(KV1)}, {24576 - 1024}, {vr(KV0)}
              s_sub_u32 {sr(S_AUX)}, {sr(S_WAVE)}, 8
              s_and_b32 {sr(S_RT)}, {sr(S_AUX)}, 1
              s_lshl_b32 {sr(S_KM)}, {sr(S_AUX)}, 13
              s_add_u32 {sr(S_KM)}, {sr(S_KM)}, {L_HI}
              s_lshl_b32 {sr(S_KO)}, {sr(S_HGK)}, 7
              s_cmp_lt_u32 {sr(S_AUX)}, 2
              s_cselect_b32 {sr(S_T1)}, 2, 1
              s_cselect_b32 {sr(S_T2)}, 0, {sr(S_EPS)}
              s_lshl_b32 {sr(S_T1)}, {sr(S_T1)}, 10
              s_add_u32 {sr(S_KO)}, {sr(S_KO)}, {sr(S_T1)}""")
        for i in range(32):
            a(f"v_mov_b32 {vr(KACC[0]+i)}, {sr(S_T2)}")
        xfrag_addr(S_RT)
        a(f"""v_lshlrev_b32 {vr(V_T0)}, 10, {vr(V_T1)}
              v_bfe_u32 {vr(V_T1)}, {vr(V_LANE)}, 2, 2
              v_lshl_add_u32 {vr(V_T0)}, {vr(V_T1)}, 7, {vr(V_T0)}
              v_bfe_u32 {vr(V_T1)}, {vr(V_LANE)}, 3, 1
              v_lshl_add_u32 {vr(V_T0)}, {vr(V_T1)}, 6, {vr(V_T0)}
              v_bfe_u32 {vr(V_T1)}, {vr(V_LANE)}, 4, 1
              v_lshl_add_u32 {vr(V_T0)}, {vr(V_T1)}, 5, {vr(V_T0)}
              v_and_b32 {vr(V_T1)}, 3, {vr(V_LANE)}
              v_lshl_add_u32 {vr(V_T0)}, {vr(V_T1)}, 3, {vr(V_T0)}
              v_add_u32 {vr(V_WOA0)}, {sr(S_KM)}, {vr(V_T0)}
              v_xor_b32 {vr(V_WOA1)}, 64, {vr(V_WOA0)}""")
    def kdma(st):
        a(f"s_add_u32 m0, {sr(S_KM)}, {(st % 4)*2048}")
        a("s_nop 0" if st == 0 else f"s_add_u32 {sr(S_KO)}, {sr(S_KO)}, 49152")
        a.vmem(f"buffer_load_dwordx4 {vr(KV0)}, {sr(S_KW,4)}, {sr(S_KO)} offen lds", f"k{st}")
        a.vmem(f"buffer_load_dwordx4 {vr(KV1)}, {sr(S_KW,4)}, {sr(S_KO)} offen offset:1024 lds", f"k{st}")
    def krd(st):
        b = KB[st % 2]
        a(f"ds_read_b128 {vr(b,4)}, {vr(V_XA0 if st%2==0 else V_XA1)} offset:{(st//2)*4096}")
        for nt in range(2):
            for u in range(2):
                a(f"ds_read_b64_tr_b16 {vr(b+4+4*nt+2*u,2)}, {vr(V_WOA0 if nt==0 else V_WOA1)} offset:{(st%4)*2048 + u*512}")
    def kv_pass(bars):
        a.vm = []
        for st in range(4): kdma(st)
        for _ in range(bars.get(-1, 0)): a("s_barrier")
        a.wait_vm("k0")
        for _ in range(bars.get(0, 0)): a("s_barrier")
        krd(0)
        for st in range(32):
            if st + 1 < 32:
                a.wait_vm(f"k{st+1}")
                for _ in range(bars.get(st + 1, 0)): a("s_barrier")
                krd(st + 1)
            a(f"s_waitcnt lgkmcnt({5 if st + 1 < 32 else 0})")
            b = KB[st % 2]
            for nt in range(2):
                a(f"v_mfma_f32_32x32x16_bf16 {vr(KACC[nt],16)}, {vr(b,4)}, {vr(b+4+4*nt,4)}, {vr(KACC[nt],16)}")
            if st + 4 < 32: kdma(st + 4)
    def foff_setup():
        a(f"""v_add_u32 {vr(H_FOFF)}, {sr(S_ROT)}, {vr(V_LANE)}
              v_and_b32 {vr(H_FOFF)}, 63, {vr(H_FOFF)}
              v_lshlrev_b32 {vr(H_FOFF)}, 4, {vr(H_FOFF)}""")

    TG = 80
    TKA, TVA = 12, 155
    S_TG = S_RDY
    def tg_setup(which):
        a(f"""v_and_b32 {vr(V_T0)}, 15, {vr(V_LANE)}
              v_lshlrev_b32 {vr(V_T0)}, 4, {vr(V_T0)}
              v_bfe_u32 {vr(V_T1)}, {vr(V_LANE)}, 4, 1
              v_lshrrev_b32 {vr(V_T2)}, 5, {vr(V_LANE)}
              v_lshl_add_u32 {vr(TKA)}, {vr(V_T1)}, 9, {vr(V_T0)}
              v_lshl_add_u32 {vr(TKA)}, {vr(V_T2)}, 3, {vr(TKA)}
              v_lshl_add_u32 {vr(TVA)}, {vr(V_T2)}, 8, {vr(V_T0)}
              v_lshl_add_u32 {vr(TVA)}, {vr(V_T1)}, 3, {vr(TVA)}
              s_lshl_b32 {sr(S_TG)}, {sr(S_ROT)}, 12
              s_add_u32 {sr(S_TG)}, {sr(S_TG)}, {WS_KVT + which*16384}""")
    def tg_loads():
        for t in range(4):
            a(f"s_add_u32 {sr(S_T0)}, {sr(S_TG)}, {t*4096}")
            for jb in range(4):
                a(f"buffer_load_dwordx4 {vr(TG+16*t+4*jb,4)}, {vr(V_L16)}, {sr(S_WS,4)}, {sr(S_T0)} offen offset:{jb*1024} sc1")
    def tg_finish(lbl, which):
        a(f"s_mov_b32 {sr(S_SPIN)}, 0")
        a.label(lbl + "_loop")
        a("s_waitcnt vmcnt(0)")
        a(f"v_min3_u32 {vr(V_T0)}, {vr(V_TAG)}, {vr(TG+1)}, {vr(TG+3)}")
        a(f"v_max3_u32 {vr(V_T1)}, {vr(V_TAG)}, {vr(TG+1)}, {vr(TG+3)}")
        for g in range(1, 16):
            a(f"v_min3_u32 {vr(V_T0)}, {vr(V_T0)}, {vr(TG+4*g+1)}, {vr(TG+4*g+3)}")
            a(f"v_max3_u32 {vr(V_T1)}, {vr(V_T1)}, {vr(TG+4*g+1)}, {vr(TG+4*g+3)}")
        a(f"""v_cmp_ne_u32 vcc, {vr(V_T0)}, {vr(V_T1)}
              s_cbranch_vccz {lbl}_ok
              s_add_u32 {sr(S_SPIN)}, {sr(S_SPIN)}, 1
              s_cmp_ge_u32 {sr(S_SPIN)}, 100000
              s_cbranch_scc1 {lbl}_ok""")
        tg_loads()
        a(f"s_branch {lbl}_loop")
        a.label(lbl + "_ok")
        for t in range(4):
            for jb in range(4):
                ad = TVA if jb & 1 else TKA
                off = (4 * which + t) * 2048 + ((1024 + (jb >> 1) * 512) if jb & 1 else (jb >> 1) * 256)
                a(f"ds_write_b32 {vr(ad)}, {vr(TG+16*t+4*jb)} offset:{off}")
                a(f"ds_write_b32 {vr(ad)}, {vr(TG+16*t+4*jb+2)} offset:{off+4}")
            a("s_waitcnt lgkmcnt(4)")
        a("s_waitcnt lgkmcnt(0)")
    C_TG = opts.get("c_tg", 6)

    a.label("L_a0")
    a.vm = []
    HX, HW, HG_, HD, HDG = 16, 48, 80, 144, 112
    H_GWA = 8
    S_JX, S_JM = S_U0, S_U1
    a(f"""s_setprio 3
          s_lshl_b32 {sr(S_T1)}, {sr(S_RGJ)}, 14
          s_add_u32 {sr(S_JX)}, {sr(S_T0)}, {sr(S_T1)}
          s_lshl_b32 {sr(S_T1)}, {sr(S_RGJ)}, 10
          s_add_u32 {sr(S_JM)}, {sr(S_T1)}, {L_X}
          s_mov_b32 {sr(S_WJ+2)}, 16384
          s_mov_b32 {sr(S_WJ+3)}, 0x20000
          s_bitcmp1_b32 {sr(S_HG)}, 0
          s_waitcnt lgkmcnt(0)
          s_mov_b32 {sr(S_X)}, {sr(S_KA+0)}
          s_mov_b32 {sr(S_X+1)}, {sr(S_KA+1)}
          s_cselect_b32 {sr(S_WJ)}, {sr(S_KA+12)}, {sr(S_KA+10)}
          s_cselect_b32 {sr(S_WJ+1)}, {sr(S_KA+13)}, {sr(S_KA+11)}
          s_load_dword {sr(S_TAG)}, {sr(S_KA+22,2)}, {WS_E}""")
    def jload(g):
        for k in range(4):
            kb = 4 * g + k
            a(f"s_add_u32 m0, {sr(S_JM)}, {kb*4096 - kb*64}")
            a("s_nop 0")
            a.vmem(f"buffer_load_dwordx4 {vr(V_XOFF)}, {sr(S_X,4)}, {sr(S_JX)} offen offset:{kb*64} lds", f"j{g}")
        a(f"s_mov_b32 m0, {L_JW + g*4096}")
        a(f"s_mov_b32 {sr(S_T2)}, {g*4096}")
        for k in range(4):
            a.vmem(f"buffer_load_dwordx4 {vr(V_L16)}, {sr(S_WJ,4)}, {sr(S_T2)} offen offset:{k*1024} lds", f"j{g}")
    jload(0)
    srd(S_W, 16, 1024)
    a(f"s_mov_b32 m0, {L_GW}\ns_nop 0")
    a.vmem(f"buffer_load_dwordx4 {vr(V_L16)}, {sr(S_W,4)}, 0 offen lds", "gw")
    jload(1); jload(2); jload(3)
    srd(S_WS, 22, WS_SIZE)
    rot_setup()
    a(f"""v_and_b32 {vr(V_T0)}, 15, {vr(V_LANE)}
          v_lshrrev_b32 {vr(V_T1)}, 4, {vr(V_LANE)}
          v_bfe_u32 {vr(V_T2)}, {vr(V_LANE)}, 2, 2
          v_xor_b32 {vr(V_T2)}, {vr(V_T2)}, {vr(V_T1)}
          v_lshlrev_b32 {vr(V_T2)}, 4, {vr(V_T2)}
          v_lshl_add_u32 {vr(V_T2)}, {vr(V_T0)}, 6, {vr(V_T2)}
          v_add_u32 {vr(V_T2)}, {sr(S_JM)}, {vr(V_T2)}
          v_lshlrev_b32 {vr(V_T3)}, 3, {vr(V_T0)}
          v_lshl_add_u32 {vr(V_T3)}, {vr(V_T1)}, 8, {vr(V_T3)}
          v_lshlrev_b32 {vr(H_GWA)}, 4, {vr(V_T1)}
          v_add_u32 {vr(H_GWA)}, {L_GW}, {vr(H_GWA)}
          v_lshlrev_b32 {vr(13)}, 4, {vr(V_T0)}
          v_and_b32 {vr(14)}, 1, {vr(V_T1)}
          v_lshrrev_b32 {vr(15)}, 1, {vr(V_T1)}
          s_lshl_b32 {sr(S_T0)}, {sr(S_QB)}, 1
          s_lshr_b32 {sr(S_T1)}, {sr(S_RGJ)}, 1
          s_add_u32 {sr(S_SEG)}, {sr(S_T0)}, {sr(S_T1)}
          s_lshl_b32 {sr(S_T3)}, {sr(S_SEG)}, 4
          s_and_b32 {sr(S_T0)}, {sr(S_HG)}, 3
          s_lshl_b32 {sr(S_T0)}, {sr(S_T0)}, 2
          s_add_u32 {sr(S_T3)}, {sr(S_T3)}, {sr(S_T0)}
          s_add_u32 {sr(S_T3)}, {sr(S_T3)}, {WS_FKV}""")
    foff_setup()
    tag_setup()
    vmh = list(a.vm)
    def job(isV):
        a.vm = list(vmh)
        nr = 3 if isV else 4
        for half in range(2):
            a.wait_vm(f"j{2*half}")
            a("s_barrier")
            a.wait_vm(f"j{2*half+1}")
            def rd(k):
                s = 8 * half + k
                a(f"ds_read_b128 {vr(HX+4*k,4)}, {vr(V_T2)} offset:{s*4096}")
                a(f"ds_read_b64_tr_b16 {vr(HW+4*k,2)}, {vr(V_T3)} offset:{L_JW + s*1024}")
                a(f"ds_read_b64_tr_b16 {vr(HW+4*k+2,2)}, {vr(V_T3)} offset:{L_JW + s*1024 + 128}")
                if not isV: a(f"ds_read_b128 {vr(HG_+4*k,4)}, {vr(H_GWA)} offset:{s*64}")
            rd(0); rd(1); rd(2)
            for k in range(8):
                a(f"s_waitcnt lgkmcnt({nr * (min(k + 2, 7) - k)})")
                z = half == 0 and k == 0
                A_, B_ = (HX, HW) if isV else (HW, HX)
                a(f"v_mfma_f32_16x16x32_bf16 {vr(HD,4)}, {vr(A_+4*k,4)}, {vr(B_+4*k,4)}, {'0' if z else vr(HD,4)}")
                if not isV: a(f"v_mfma_f32_16x16x32_bf16 {vr(HDG,4)}, {vr(HG_+4*k,4)}, {vr(HX+4*k,4)}, {'0' if z else vr(HDG,4)}")
                if k + 3 < 8: rd(k + 3)
        a(f"s_and_b32 {sr(S_T1)}, {sr(S_RGJ)}, 1")
        if isV:
            a(f"""v_lshl_add_u32 {vr(13)}, {vr(15)}, 8, {vr(13)}
                  v_lshl_add_u32 {vr(13)}, {vr(14)}, 3, {vr(13)}
                  s_lshl_b32 {sr(S_T1)}, {sr(S_T1)}, 9
                  s_add_u32 {sr(S_T1)}, {sr(S_T1)}, 1024""")
        else:
            a(f"""v_lshl_add_u32 {vr(13)}, {vr(14)}, 9, {vr(13)}
                  v_lshl_add_u32 {vr(13)}, {vr(15)}, 3, {vr(13)}
                  s_lshl_b32 {sr(S_T1)}, {sr(S_T1)}, 8
                  s_lshl_b32 {sr(S_T0)}, {sr(S_QB)}, 2
                  s_add_u32 {sr(S_T0)}, {sr(S_T0)}, {sr(S_RGJ)}
                  s_lshl_b32 {sr(S_T0)}, {sr(S_T0)}, 7
                  s_add_u32 {sr(S_T0)}, {sr(S_T0)}, {WS_G}
                  s_mov_b32 {sr(S_T2)}, {hex(f2u(LOG2E))}
                  v_mul_f32 {vr(HDG)}, {sr(S_T2)}, {vr(HDG)}
                  v_exp_f32 {vr(HDG)}, -{vr(HDG)}
                  s_nop 0
                  v_add_f32 {vr(HDG)}, 1.0, {vr(HDG)}
                  v_rcp_f32 {vr(HDG)}, {vr(HDG)}
                  s_mov_b32 exec_hi, 0
                  buffer_store_dword {vr(HDG)}, {vr(V_L4)}, {sr(S_WS,4)}, {sr(S_T0)} offen sc1
                  s_mov_b32 exec_hi, -1""")
    a(f"""s_bitcmp1_b32 {sr(S_HG)}, 0
          s_cbranch_scc1 L_jobV""")
    job(False)
    a("s_branch L_jobdone")
    a.label("L_jobV")
    job(True)
    a.label("L_jobdone")
    a.vm = []
    a(f"""s_lshl_b32 {sr(S_T0)}, {sr(S_SEG)}, 11
          s_add_u32 {sr(S_T0)}, {sr(S_T0)}, {sr(S_T1)}
          s_add_u32 {sr(S_T0)}, {sr(S_T0)}, {WS_KV}
          s_nop 1
          v_cvt_pk_bf16_f32 {vr(HD+4)}, {vr(HD)}, {vr(HD+1)}
          v_cvt_pk_bf16_f32 {vr(HD+5)}, {vr(HD+2)}, {vr(HD+3)}
          v_mov_b32 {vr(HX)}, {vr(HD+4)}
          v_mov_b32 {vr(HX+1)}, {vr(V_TAG)}
          v_mov_b32 {vr(HX+2)}, {vr(HD+5)}
          v_mov_b32 {vr(HX+3)}, {vr(V_TAG)}
          s_lshl_b32 {sr(S_T1)}, {sr(S_SEG)}, 2
          s_and_b32 {sr(S_T2)}, {sr(S_HG)}, 3
          s_add_u32 {sr(S_T1)}, {sr(S_T1)}, {sr(S_T2)}
          s_lshl_b32 {sr(S_T1)}, {sr(S_T1)}, 10
          s_add_u32 {sr(S_T1)}, {sr(S_T1)}, {WS_KVT}
          buffer_store_dwordx4 {vr(HX,4)}, {vr(V_L16)}, {sr(S_WS,4)}, {sr(S_T1)} offen {"" if opts.get("plaint", 0) else "sc1"}
          v_mov_b32 {vr(14)}, 0
          s_lshl_b32 {sr(S_T1)}, s2, 8
          s_add_u32 {sr(S_T1)}, {sr(S_T1)}, {WS_ACC}
          buffer_store_dwordx2 {vr(HD+4,2)}, {vr(13)}, {sr(S_WS,4)}, {sr(S_T0)} offen sc1
          buffer_store_dword {vr(14)}, {vr(V_L4)}, {sr(S_WS,4)}, {sr(S_T1)} offen sc1""")
    stamp(1)
    C_SIG = opts.get("c_sig", 4)
    for c in range(2, 8):
        a("s_barrier")
        if c == 2: kv_setup()
        if c == 3: tg_setup(0)
        if c == C_SIG:
            a("s_waitcnt vmcnt(0)")
            flag_store(S_T3)
            stamp(2)
        if c == C_TG: tg_loads()
    stamp(3)
    tg_finish("L_tg0", 0)
    kv_sample()
    stamp(4)
    a("""s_barrier
         s_waitcnt vmcnt(0)""")
    kv_spin("L_skvB", False)
    stamp(5)
    kv_dma("L_kvdB", 8, 20)
    a(f"""s_cmp_lg_u32 s2, 0
          s_cbranch_scc1 L_kv01
          s_mov_b32 {sr(S_T0)}, {WS_E}""")
    flag_store(S_T0)
    a.label("L_kv01")
    kv_pass({opts.get("n1", 6): 1})
    a("s_branch L_kvend")

    a.label("L_a1")
    a.vm = []
    LV = [16, 20]
    SO = [S_U0, S_U1]
    a(f"""s_setprio 3
          v_lshrrev_b32 {vr(V_T0)}, 1, {vr(V_LANE)}
          v_and_b32 {vr(V_T0)}, 3, {vr(V_T0)}
          v_bfe_u32 {vr(V_T1)}, {vr(V_LANE)}, 4, 1
          v_xor_b32 {vr(V_T0)}, {vr(V_T0)}, {vr(V_T1)}
          v_lshlrev_b32 {vr(V_T0)}, 5, {vr(V_T0)}
          v_and_b32 {vr(V_T1)}, 1, {vr(V_LANE)}
          v_lshl_add_u32 {vr(V_T0)}, {vr(V_T1)}, 4, {vr(V_T0)}
          v_lshrrev_b32 {vr(V_T1)}, 3, {vr(V_LANE)}
          v_lshl_add_u32 {vr(LV[0])}, {vr(V_T1)}, 10, {vr(V_T0)}
          v_mul_u32_u24 {vr(V_T1)}, 3072, {vr(V_T1)}
          v_add_u32 {vr(LV[1])}, {vr(V_T1)}, {vr(V_T0)}
          v_xor_b32 {vr(LV[1])}, 64, {vr(LV[1])}""")
    for rg in range(1, 4):
        a(f"""v_add_u32 {vr(LV[0]+rg)}, {rg*(8192-1024)}, {vr(LV[0])}
              v_add_u32 {vr(LV[1]+rg)}, {rg*(24576-1024)}, {vr(LV[1])}""")
    a(f"""s_lshl_b32 {sr(SO[0])}, {sr(S_HG)}, 7
          s_lshl_b32 {sr(SO[1])}, {sr(S_HGQ)}, 7
          s_waitcnt lgkmcnt(0)
          s_load_dword {sr(S_TAG)}, {sr(S_KA+22,2)}, {WS_E}""")
    srd(S_W, 8, 0x80000)
    srd(S_WJ, 2, 0x180000)
    def lw(c):
        for hf in range(2):
            for m in range(2):
                a(f"s_mov_b32 m0, {RSLOT[c % 4] + m*8192 + hf*4096}")
                a("s_nop 0" if (c == 0 and hf == 0) else f"s_add_u32 {sr(SO[m])}, {sr(SO[m])}, {32768 if m == 0 else 98304}")
                for rg in range(4):
                    a.vmem(f"buffer_load_dwordx4 {vr(LV[m]+rg)}, {sr(S_W if m == 0 else S_WJ,4)}, {sr(SO[m])} offen offset:{rg*1024} lds", f"w{c}")
    NPRE = opts.get("npre", 2)
    for c in range(NPRE): lw(c)
    tag_setup()
    nxt = NPRE
    for c in range(8):
        a.wait_vm(f"w{c}")
        a("s_barrier")
        k = 0
        while nxt <= min(7, c + 3) and k < 2:
            lw(nxt); nxt += 1; k += 1
        if c == 5:
            srd(S_WS, 22, WS_SIZE); rot_setup(); tg_setup(1)
        if c == max(C_TG, 5):
            tg_loads()
            a.vm += ["tg"] * 16
        if c == 6:
            kv_setup(); foff_setup()
    tg_finish("L_tg1", 1)
    kv_sample()
    stamp(4)
    a("s_barrier")
    a("s_waitcnt vmcnt(0)")
    kv_spin("L_skvB1", False)
    kv_dma("L_kvdB1", 20, 32)
    a("s_branch L_kv01")

    a.label("L_a23")
    a.vm = []
    a(f"""s_setprio 3
          s_sub_u32 {sr(S_T1)}, {sr(S_WAVE)}, 8
          s_lshl_b32 {sr(S_T2)}, {sr(S_T1)}, 8
          s_add_u32 {sr(S_T0)}, {sr(S_T0)}, {sr(S_T2)}
          s_lshl_b32 {sr(S_T1)}, {sr(S_T1)}, 14
          s_add_u32 {sr(S_T1)}, {sr(S_T1)}, {L_X}
          s_waitcnt lgkmcnt(0)
          s_mov_b32 {sr(S_X)}, {sr(S_KA+0)}
          s_mov_b32 {sr(S_X+1)}, {sr(S_KA+1)}""")
    XB = opts.get("xb", 0)
    for c in range(XB): a("s_barrier")
    for i in range(3):
        a(f"""s_add_u32 {sr(S_T3)}, {sr(S_RGJ)}, {i+1}
              s_and_b32 {sr(S_T3)}, {sr(S_T3)}, 3
              s_lshl_b32 {sr(S_T2)}, {sr(S_T3)}, 10
              s_add_u32 {sr(S_U0)}, {sr(S_T2)}, {sr(S_T1)}
              s_lshl_b32 {sr(S_T2)}, {sr(S_T3)}, 14
              s_add_u32 {sr(S_U1)}, {sr(S_T2)}, {sr(S_T0)}""")
        if i > 0 or XB == 0 or True:
            a("s_barrier")
        for k in range(4):
            a(f"s_add_u32 m0, {sr(S_U0)}, {k*4096 - k*64}")
            a("s_nop 0")
            a(f"buffer_load_dwordx4 {vr(V_XOFF)}, {sr(S_X,4)}, {sr(S_U1)} offen offset:{k*64} lds")
    assert XB == 0
    kv_setup()
    ES = opts.get("es", 5)
    for c in range(3, min(ES, 7) + 1):
        if c == 4: a("s_waitcnt vmcnt(0)")
        a("s_barrier")
    if ES >= 8:
        a("s_barrier")
        kv_pass({opts.get("n2", 8): 1})
    else:
        bars = {}
        st = -1
        for c in range(ES + 1, 8):
            bars[st] = bars.get(st, 0) + 1
            st = 1 if st < 0 else st + opts.get("esp", 1)
        ne = opts.get("ne", 8)
        bars[ne] = bars.get(ne, 0) + 1
        bars[opts.get("n2", 18)] = bars.get(opts.get("n2", 18), 0) + 1
        kv_pass(bars)

    a.label("L_kvend")
    stamp(12)
    a(f"""v_add_u32 {vr(V_XA0)}, {sr(S_KM)}, {vr(V_L16)}
          s_nop 8
          s_cmp_lt_u32 {sr(S_AUX)}, 2
          s_cbranch_scc1 L_kcvt""")
    phi(KACC[0], 32, 56)
    a(f"""s_cmp_eq_u32 {sr(S_AUX)}, 2
          s_cselect_b32 {sr(S_WOA)}, {sr(S_KA+4)}, {sr(S_KA+14)}
          s_cselect_b32 {sr(S_WOA+1)}, {sr(S_KA+5)}, {sr(S_KA+15)}
          s_mov_b32 {sr(S_WOA+2)}, 0x80000
          s_mov_b32 {sr(S_WOA+3)}, 0x20000
          v_lshlrev_b32 {vr(V_T0)}, 7, {vr(V_LANE)}
          s_lshl_b32 {sr(S_T0)}, s2, 11
          s_mov_b64 exec, 0xffff
          buffer_load_dword {vr(V_FLG)}, {vr(V_T0)}, {sr(S_WOA,4)}, {sr(S_T0)} offen
          s_mov_b64 exec, -1""")
    a.label("L_kcvt")
    for f in range(4):
        for i in range(4):
            a(f"v_cvt_pk_bf16_f32 {vr(56+4*f+i)}, {vr(KACC[0]+8*f+2*i)}, {vr(KACC[0]+8*f+2*i+1)}")
        a(f"ds_write_b128 {vr(V_XA0)}, {vr(56+4*f,4)} offset:{f*1024}")
    a("s_waitcnt lgkmcnt(0)")
    stamp(13)
    a(f"""s_barrier
          s_cmp_eq_u32 {sr(S_AUX)}, 0
          s_cbranch_scc1 L_a0b
          s_cmp_eq_u32 {sr(S_AUX)}, 1
          s_cbranch_scc1 L_a1b""")
    if ts: ts_out()
    a("s_endpgm")

    a.label("L_a0b")
    HV, HK, HKV, HZ, HON = 56, 88, [16, 32], [120, 136], 52
    a(f"v_add_u32 {vr(V_T1)}, {L_HI}, {vr(V_L16)}")
    for nt in range(2):
        if nt: a("s_waitcnt lgkmcnt(4)")
        for f in range(4):
            off = (f // 2) * 8192 + nt * 2048 + (f % 2) * 1024
            a(f"ds_read_b128 {vr(HV+16*nt+4*f,4)}, {vr(V_T1)} offset:{off}")
            a(f"ds_read_b128 {vr(HK+16*nt+4*f,4)}, {vr(V_T1)} offset:{16384 + off}")
    for i in range(4):
        a(f"v_mov_b32 {vr(HON+i)}, {sr(S_ONES)}")
    a(f"""v_bfe_u32 {vr(V_T2)}, {vr(V_LANE)}, 3, 1
          v_lshlrev_b32 {vr(V_T2)}, 11, {vr(V_T2)}
          v_and_b32 {vr(V_T3)}, 3, {vr(V_LANE)}
          v_lshl_add_u32 {vr(V_T2)}, {vr(V_T3)}, 9, {vr(V_T2)}
          v_bfe_u32 {vr(V_T3)}, {vr(V_LANE)}, 4, 1
          v_lshl_add_u32 {vr(V_T2)}, {vr(V_T3)}, 3, {vr(V_T2)}
          v_bfe_u32 {vr(V_T3)}, {vr(V_LANE)}, 2, 1
          v_lshl_add_u32 {vr(V_T2)}, {vr(V_T3)}, 2, {vr(V_T2)}
          s_waitcnt lgkmcnt(0)""")
    for nt in range(2):
        for f in range(4):
            a(f"v_mfma_f32_32x32x16_bf16 {vr(HKV[nt],16)}, {vr(HK+16*nt+4*f,4)}, {vr(HV+16*nt+4*f,4)}, {'0' if f==0 else vr(HKV[nt],16)}")
            a(f"v_mfma_f32_32x32x16_bf16 {vr(HZ[nt],16)}, {vr(HON,4)}, {vr(HK+16*nt+4*f,4)}, {'0' if f==0 else vr(HZ[nt],16)}")
    a(f"""s_lshl_b32 {sr(S_T0)}, {sr(S_HGK)}, 13
          s_add_u32 {sr(S_T0)}, {sr(S_T0)}, {WS_ACC}
          s_add_u32 {sr(S_T1)}, {sr(S_T0)}, 4096
          s_nop 9""")
    for nt in range(2):
        for r in range(8):
            a(f"v_cndmask_b32 {vr(HKV[nt]+r)}, {vr(HKV[nt]+8+r)}, {vr(HKV[nt]+r)}, {sr(S_VMASK,2)}")
        for r in range(8):
            a(f"buffer_atomic_add_f32 {vr(HKV[nt]+r)}, {vr(V_L4)}, {sr(S_WS,4)}, {sr(S_T0 if nt == 0 else S_T1)} offen offset:{r*512} sc1")
    a(f"""s_mov_b32 exec_hi, 0
          buffer_atomic_add_f32 {vr(HZ[0])}, {vr(V_T2)}, {sr(S_WS,4)}, {sr(S_T0)} offen offset:256 sc1
          buffer_atomic_add_f32 {vr(HZ[1])}, {vr(V_T2)}, {sr(S_WS,4)}, {sr(S_T1)} offen offset:256 sc1
          s_mov_b32 exec_hi, -1
          s_lshl_b32 {sr(S_T3)}, {sr(S_HGK)}, 7
          s_lshl_b32 {sr(S_T0)}, {sr(S_QB)}, 2
          s_add_u32 {sr(S_T0)}, {sr(S_T0)}, {sr(S_T3)}
          s_add_u32 {sr(S_T0)}, {sr(S_T0)}, {WS_FA}
          s_lshl_b32 {sr(S_T3)}, {sr(S_HGQ)}, 7
          s_add_u32 {sr(S_T3)}, {sr(S_T3)}, {WS_FA}""")
    stamp(14)
    if opts.get("fa_early", 1):
        a("s_waitcnt vmcnt(0)")
        flag_store(S_T0)
        stamp(15)
        a("s_barrier")
    else:
        a("s_barrier\ns_waitcnt vmcnt(0)")
        flag_store(S_T0)
        stamp(15)
    a(f"v_not_b32 {vr(V_FLG)}, {vr(V_TAG)}")
    flag_spin("L_sfa", S_T3)
    stamp(16)
    if ts: ts_out()
    a("""s_barrier
         s_endpgm""")

    a.label("L_a1b")
    srd(S_WOA, 4, 0x80000)
    srd(S_WOB, 14, 0x80000)
    omap()
    rot_setup()
    kv_dma("L_kvdC", 32, 64)
    swz64(V_WOFF, 1024)
    a("s_waitcnt vmcnt(0)")
    stamp(14)
    a("s_barrier")
    def wodma(lbl, srdw, r0, nrows, dst):
        a(f"""s_lshl_b32 {sr(S_T0)}, {sr(S_NS)}, 7
              s_add_u32 {sr(S_T0)}, {sr(S_T0)}, {r0*1024}
              s_mov_b32 m0, {dst}""")
        a.label(lbl)
        a("s_waitcnt vmcnt(40)")
        for i in range(4):
            a(f"buffer_load_dwordx4 {vr(V_WOFF)}, {sr(srdw,4)}, {sr(S_T0)} offen lds")
            a(f"""s_add_u32 m0, m0, 1024
                  s_add_u32 {sr(S_T0)}, {sr(S_T0)}, 8192""")
        a(f"""s_cmp_lt_u32 m0, {dst + nrows*128}
              s_cbranch_scc1 {lbl}""")
    wodma("L_woa", S_WOA, 0, 512, 0)
    stamp(15)
    a("s_barrier")
    wodma("L_wob0", S_WOB, 0, 256, L_HI)
    a("s_waitcnt vmcnt(0)")
    stamp(16)
    a("s_barrier")
    wodma("L_wob1", S_WOB, 256, 256, 65536)
    a("s_waitcnt vmcnt(0)")
    if ts:
        stamp(17)
        ts_out()
    a("""s_barrier
         s_endpgm""")

    head = open("cdna_kernels/" + NAME + ".s.ref").read().split("\n")
    hdr = [l for l in head if l.startswith(";") and "@launch" not in l and "Override" not in l and "grid=ceil" not in l]
    out = "\n".join(hdr) + f"\n; @launch grid=(256,1,1) block=({NWAVE*64},1,1) lds={LDS_SIZE}\n"
    out += f""".amdgcn_target "amdgcn-amd-amdhsa--gfx950"
.text
.globl {NAME}_kernel
.p2align 8
.type {NAME}_kernel,@function
"""
    out += a.text()
    out += f""".section .rodata,"a"
.p2align 6
.amdhsa_kernel {NAME}_kernel
  .amdhsa_next_free_vgpr {NVGPR}
  .amdhsa_next_free_sgpr 102
  .amdhsa_accum_offset {NVGPR}
  .amdhsa_group_segment_fixed_size 0
  .amdhsa_kernarg_size 96
  .amdhsa_user_sgpr_count 2
  .amdhsa_user_sgpr_kernarg_segment_ptr 1
  .amdhsa_system_sgpr_workgroup_id_x 1
.end_amdhsa_kernel
"""
    return out

if __name__ == "__main__":
    opts = {}
    outp = "cdna_kernels/" + NAME + ".s"
    for arg in sys.argv[1:]:
        if arg.startswith("-o"):
            outp = arg[2:]
        elif "=" in arg:
            k, v = arg.split("=")
            opts[k] = int(v)
        else:
            opts[arg] = True
    open(outp, "w").write(gen(opts))
    print("wrote", outp)
```

```python
import sys, math, struct

NAME = "gated_mix__linear_attn_block__grouped_kv_mqa__prompt"

def f2u(x):
    return struct.unpack("<I", struct.pack("<f", x))[0]

class Asm:
    def __init__(self):
        self.lines = []
        self.vm = []
    def __call__(self, s):
        for l in s.split("\n"):
            l = l.strip()
            if l:
                self.lines.append("    " + l)
    def label(self, l):
        self.lines.append(l + ":")
    def vmem(self, s, tag):
        self(s)
        self.vm.append(tag)
        assert len(self.vm) <= 63
    def vm_n(self, tag):
        idx = max(i for i, t in enumerate(self.vm) if t == tag)
        return len(self.vm) - 1 - idx
    def drop_to(self, n):
        self.vm = self.vm[len(self.vm) - n:] if n else []
    def wait_vm(self, tag, extra=""):
        n = 0 if tag is None else self.vm_n(tag)
        self.drop_to(n)
        self(f"s_waitcnt vmcnt({n}) {extra}".strip())
    def text(self):
        return "\n".join(self.lines) + "\n"

def vr(a, n=1):
    return f"v{a}" if n == 1 else f"v[{a}:{a+n-1}]"
def sr(a, n=1):
    return f"s{a}" if n == 1 else f"s[{a}:{a+n-1}]"

WS_E = 0x000000
WS_FKV = 0x000400
WS_FA = 0x001000
WS_FO = 0x004000
WS_G = 0x014000
WS_KV = 0x020000
WS_ACC = 0x040000
WS_KVT = 0x080000
WS_OA = 0x200000
WS_OB = 0x208000
WS_DBG1 = 0x600000
WS_DBG2 = 0x800000
WS_TS = 0xA00000
WS_SIZE = 0x1000000
L_JW = 0
L_X = 65536
L_HI = 131072
L_GW = L_HI + 16384
RSLOT = [16384, 32768, 49152, L_HI]
LDS_SIZE = 163840
LOG2E = 1.4426950408889634
QSCALE = 0.25 * LOG2E
NVGPR = 168
NWAVE = 12

S_HGQ, S_TAG, S_QO, S_NS, S_RDY = 3, 4, 5, 6, 7
S_X, S_W, S_WJ = 8, 12, 16
S_EPS, S_ONES, S_RGJ, S_HGK = 20, 21, 22, 23
S_XMASK, S_HEADA, S_AUX = 24, 26, 27
S_WOA, S_WOB, S_OUT, S_DBG, S_WS = 28, 32, 36, 40, 44
S_WAVE, S_QB, S_HG, S_RT, S_HH = 48, 49, 50, 51, 52
S_T0, S_T1, S_T2, S_T3 = 53, 54, 55, 56
S_U0, S_U1, S_U2, S_U3 = 57, 58, 59, 60
S_SEG, S_SPIN, S_HEAD = 61, 62, 63
S_VMASK, S_RT32, S_RO32, S_SAVE = 64, 66, 67, 40
S_LOG2E, S_QS = 70, 72
S_TS = 74
S_J = 69
S_XCC, S_FAST = 18, 19
S_KA = 76

def gen(opts):
    ts = opts.get("ts", False)
    dbg = opts.get("dbg", False)
    a = Asm()
    V_STAMP = NVGPR - 1

    def stamp(i):
        if "dly" in opts:
            if i == 0: a("s_memrealtime s[74:75]")
            if i == opts["dly"]: a("s_memrealtime s[100:101]")
        if not ts: return
        a(f"""s_memrealtime {sr(S_TS,2)}
              s_memtime s[100:101]
              s_waitcnt lgkmcnt(0)
              v_writelane_b32 v{V_STAMP}, {sr(S_TS)}, {i}
              v_writelane_b32 v{V_STAMP}, s100, {32+i}""")

    V_LANE = 1
    V_T0, V_T1, V_T2, V_T3 = 2, 3, 4, 5
    V_XOFF, V_WOFF = 6, 7
    V_XA0, V_XA1, V_WA = 8, 9, 10
    V_L16, V_G, V_IDX, V_KA, V_VA = 11, 12, 13, 14, 15
    V_QF, V_PQ = 16, 20
    V_ACCQ = 24
    V_FB = [40, 72]
    V_O, V_C, V_KF = 104, 120, 136
    V_VF = [140, 148]
    V_L4, V_FLG, V_TAG, V_WOA0, V_WOA1, V_WA3 = 156, 157, 158, 159, 160, 161
    V_PK = 162
    V_S = [24, 40]
    V_AC, V_OA = 56, 72
    V_FA, V_FBB, V_WO = 56, 120, 88
    V_OUT = [24, 40]

    def srd(s, ka, size):
        a(f"""s_mov_b32 {sr(s)}, {sr(S_KA+ka)}
              s_mov_b32 {sr(s+1)}, {sr(S_KA+ka+1)}
              s_mov_b32 {sr(s+2)}, {hex(size)}
              s_mov_b32 {sr(s+3)}, 0x20000""")
    def flag_store(soff):
        a(f"""s_mov_b64 exec, 1
              buffer_store_dword {vr(V_TAG)}, {vr(V_L4)}, {sr(S_WS,4)}, {sr(soff)} offen sc1
              s_mov_b64 exec, -1""")
    def flag_load(soff):
        a(f"""s_mov_b32 exec_hi, 0
              buffer_load_dword {vr(V_FLG)}, {vr(V_L4)}, {sr(S_WS,4)}, {sr(soff)} offen sc1
              s_mov_b32 exec_hi, -1""")
    def flag_spin(lbl, soff):
        a(f"s_mov_b32 {sr(S_SPIN)}, 0")
        a.label(lbl + "_loop")
        a(f"""v_cmp_ne_u32 vcc, {vr(V_FLG)}, {vr(V_TAG)}
              s_cmp_eq_u32 vcc_lo, 0
              s_cbranch_scc1 {lbl}_ok
              s_add_u32 {sr(S_SPIN)}, {sr(S_SPIN)}, 1
              s_cmp_ge_u32 {sr(S_SPIN)}, 100000
              s_cbranch_scc1 {lbl}_ok""")
        flag_load(soff)
        a(f"""s_waitcnt vmcnt(0)
              s_branch {lbl}_loop""")
        a.label(lbl + "_ok")
    def arm_spin(lbl, soff):
        a(f"s_mov_b32 {sr(S_SPIN)}, 0")
        a.label(lbl + "_loop")
        a(f"""v_sub_u32 {vr(V_FLG)}, {vr(V_FLG)}, {vr(V_TAG)}
              v_cmp_lt_u32 vcc, 15, {vr(V_FLG)}
              s_cmp_eq_u32 vcc_lo, 0
              s_cbranch_scc1 {lbl}_ok
              s_add_u32 {sr(S_SPIN)}, {sr(S_SPIN)}, 1
              s_cmp_ge_u32 {sr(S_SPIN)}, 100000
              s_cbranch_scc1 {lbl}_ok""")
        flag_load(soff)
        a(f"""s_waitcnt vmcnt(0)
              s_branch {lbl}_loop""")
        a.label(lbl + "_ok")
    def tag_setup():
        a(f"""s_waitcnt lgkmcnt(0)
              s_mul_i32 {sr(S_TAG)}, {sr(S_TAG)}, 0x9e3779b1
              s_add_u32 {sr(S_TAG)}, {sr(S_TAG)}, 0x7f4a7c15
              v_mov_b32 {vr(V_TAG)}, {sr(S_TAG)}""")
    def omap():
        a(f"""s_and_b32 {sr(S_QO)}, s2, 7
              s_lshl_b32 {sr(S_QO)}, {sr(S_QO)}, 2
              s_bfe_u32 {sr(S_T1)}, s2, 0x20003
              s_add_u32 {sr(S_QO)}, {sr(S_QO)}, {sr(S_T1)}
              s_lshr_b32 {sr(S_NS)}, s2, 5""")
    def ts_out():
        a(f"""s_mul_i32 {sr(S_T0)}, s2, {NWAVE}
              s_add_u32 {sr(S_T0)}, {sr(S_T0)}, {sr(S_WAVE)}
              s_lshl_b32 {sr(S_T0)}, {sr(S_T0)}, 8
              s_add_u32 {sr(S_T0)}, {sr(S_T0)}, {WS_TS}
              buffer_store_dword v{V_STAMP}, {vr(V_L4)}, {sr(S_WS,4)}, {sr(S_T0)} offen""")
    def phi(src, n, tmp):
        for i in range(0, n, 2):
            a(f"v_pk_mul_f32 {vr(tmp+i,2)}, {sr(S_LOG2E,2)}, {vr(src+i,2)}")
        for i in range(n):
            a(f"v_exp_f32 {vr(tmp+i)}, {vr(tmp+i)} clamp")
        for i in range(n):
            a(f"v_max_f32 {vr(src+i)}, {sr(S_EPS)}, {vr(src+i)}")
        for i in range(0, n, 2):
            a(f"v_pk_add_f32 {vr(src+i,2)}, {vr(src+i,2)}, {vr(tmp+i,2)}")

    a.label(f"{NAME}_kernel")
    a(f"""s_cmp_ge_u32 s2, 256
          s_cbranch_scc1 L_end
          s_load_dwordx16 {sr(S_KA,16)}, s[0:1], 0
          s_load_dwordx8 {sr(S_KA+16,8)}, s[0:1], 64
          v_and_b32 {vr(V_LANE)}, 63, v0
          v_lshrrev_b32 {vr(V_T0)}, 6, v0
          s_and_b32 {sr(S_T0)}, s2, 7
          v_readfirstlane_b32 {sr(S_WAVE)}, {vr(V_T0)}
          s_lshl_b32 {sr(S_T0)}, {sr(S_T0)}, 2
          s_bfe_u32 {sr(S_T1)}, s2, 0x20003
          s_add_u32 {sr(S_QB)}, {sr(S_T0)}, {sr(S_T1)}
          s_sub_u32 {sr(S_WAVE)}, {sr(S_WAVE)}, 4
          s_cselect_b32 {sr(S_T1)}, 12, 0
          s_add_u32 {sr(S_WAVE)}, {sr(S_WAVE)}, {sr(S_T1)}
          s_lshr_b32 {sr(S_HG)}, s2, 5
          s_lshr_b32 {sr(S_RGJ)}, {sr(S_HG)}, 1
          s_xor_b32 {sr(S_HGQ)}, {sr(S_HG)}, 1
          s_xor_b32 {sr(S_HGK)}, {sr(S_HG)}, 2""")
    stamp(0)
    a(f"""v_lshrrev_b32 {vr(V_T0)}, 4, {vr(V_LANE)}
          v_xor_b32 {vr(V_T0)}, {vr(V_T0)}, {vr(V_LANE)}
          v_and_b32 {vr(V_T0)}, 3, {vr(V_T0)}
          v_lshlrev_b32 {vr(V_T0)}, 4, {vr(V_T0)}
          v_lshrrev_b32 {vr(V_T1)}, 2, {vr(V_LANE)}
          v_lshl_add_u32 {vr(V_XOFF)}, {vr(V_T1)}, 10, {vr(V_T0)}
          v_lshlrev_b32 {vr(V_L16)}, 4, {vr(V_LANE)}
          v_lshlrev_b32 {vr(V_L4)}, 2, {vr(V_LANE)}
          s_mov_b32 {sr(S_X+2)}, 0x200000
          s_mov_b32 {sr(S_X+3)}, 0x20000
          s_and_b32 {sr(S_J)}, s2, {opts.get("jmask", 7)}
          s_lshl_b32 {sr(S_T0)}, {sr(S_QB)}, 16
          s_lshl_b32 {sr(S_T1)}, {sr(S_J)}, 7
          s_or_b32 {sr(S_T0)}, {sr(S_T0)}, {sr(S_T1)}
          s_cmp_eq_u32 {sr(S_WAVE)}, 8
          s_cbranch_scc1 L_a0
          s_cmp_eq_u32 {sr(S_WAVE)}, 9
          s_cbranch_scc1 L_a1
          s_cmp_ge_u32 {sr(S_WAVE)}, 10
          s_cbranch_scc1 L_a23
          s_and_b32 {sr(S_RT)}, {sr(S_WAVE)}, 1
          s_lshr_b32 {sr(S_HH)}, {sr(S_WAVE)}, 1""")
    S_XOFF, S_XM0 = S_U0, S_U1
    a(f"""s_and_b32 {sr(S_T1)}, {sr(S_WAVE)}, 3
          s_lshr_b32 {sr(S_T2)}, {sr(S_WAVE)}, 2
          s_lshl_b32 {sr(S_T3)}, {sr(S_T1)}, 14
          s_add_u32 {sr(S_XOFF)}, {sr(S_T0)}, {sr(S_T3)}
          s_lshl_b32 {sr(S_T3)}, {sr(S_T2)}, 7
          s_xor_b32 {sr(S_XOFF)}, {sr(S_XOFF)}, {sr(S_T3)}
          s_lshl_b32 {sr(S_XM0)}, {sr(S_T1)}, 10
          s_lshl_b32 {sr(S_T3)}, {sr(S_T2)}, 13
          s_add_u32 {sr(S_XM0)}, {sr(S_XM0)}, {sr(S_T3)}
          s_cmp_eq_u32 {sr(S_T1)}, {sr(S_RGJ)}
          s_cselect_b64 {sr(S_XMASK,2)}, 1, -1""")
    a(f"""v_lshrrev_b32 {vr(V_T0)}, 3, {vr(V_LANE)}
          v_and_b32 {vr(V_T3)}, 7, {vr(V_LANE)}
          v_lshlrev_b32 {vr(V_T3)}, 7, {vr(V_T3)}
          v_lshl_add_u32 {vr(V_T2)}, {vr(V_T0)}, 10, {vr(V_T3)}
          v_mul_u32_u24 {vr(V_T0)}, 3072, {vr(V_T0)}
          v_add_u32 {vr(V_T0)}, {vr(V_T0)}, {vr(V_T3)}
          s_xor_b32 {sr(S_T2)}, {sr(S_WAVE)}, {sr(S_J)}
          s_lshl_b32 {sr(S_T2)}, {sr(S_T2)}, 5
          s_lshr_b32 {sr(S_T3)}, s2, 3
          s_add_u32 {sr(S_T2)}, {sr(S_T2)}, {sr(S_T3)}
          s_lshl_b32 {sr(S_U2)}, {sr(S_T2)}, 11
          s_mul_i32 {sr(S_U3)}, {sr(S_T2)}, 6144
          s_lshl_b32 {sr(S_T3)}, {sr(S_HG)}, 13
          s_lshl_b32 {sr(S_RDY)}, {sr(S_WAVE)}, 10
          s_add_u32 {sr(S_T3)}, {sr(S_T3)}, {sr(S_RDY)}
          s_lshl_b32 {sr(S_RDY)}, {sr(S_QB)}, 16
          s_add_u32 {sr(S_T3)}, {sr(S_T3)}, {sr(S_RDY)}
          s_waitcnt lgkmcnt(0)
          s_mov_b32 {sr(S_X)}, {sr(S_KA+0)}
          s_mov_b32 {sr(S_X+1)}, {sr(S_KA+1)}
          s_load_dword {sr(S_TAG)}, {sr(S_KA+22,2)}, {WS_E}""")
    def xdma(r):
        a(f"s_xor_b32 {sr(S_T1)}, {sr(S_XOFF)}, {r*256}")
        a(f"s_add_u32 m0, {sr(S_XM0)}, {L_X + r*16384}")
        a(f"s_mov_b64 exec, {sr(S_XMASK,2)}")
        a.vmem(f"buffer_load_dwordx4 {vr(V_XOFF)}, {sr(S_X,4)}, {sr(S_T1)} offen lds", f"x{r}")
        a(f"s_add_u32 m0, {sr(S_XM0)}, {L_X + r*16384 + 4096 - 64}")
        a("s_nop 0")
        a.vmem(f"buffer_load_dwordx4 {vr(V_XOFF)}, {sr(S_X,4)}, {sr(S_T1)} offen offset:64 lds", f"x{r}")
        a("s_mov_b64 exec, -1")
    PF = opts.get("pf", 0)
    if not PF & 4: xdma(0)
    if PF & 1:
        a("s_mov_b64 exec, 0xff")
        a.vmem(f"buffer_load_dword {vr(V_FLG)}, {vr(V_T3)}, {sr(S_X,4)}, {sr(S_T3)} offen", "pf")
        a("s_mov_b64 exec, -1")
    if PF & 2:
        srd(S_W, 8, 0x80000)
        srd(S_WOB, 2, 0x180000)
        a(f"""s_lshl_b32 {sr(S_U2)}, s2, 11
              s_mul_i32 {sr(S_U3)}, s2, 6144
              s_cmp_eq_u32 {sr(S_WAVE)}, 0
              s_cselect_b64 exec, 0xffff, 1""")
        a.vmem(f"buffer_load_dword {vr(V_FLG)}, {vr(V_T2)}, {sr(S_W,4)}, {sr(S_U2)} offen", "pf")
        a.vmem(f"buffer_load_dword {vr(V_FLG)}, {vr(V_T0)}, {sr(S_WOB,4)}, {sr(S_U3)} offen", "pf")
        a("s_mov_b64 exec, -1")
    if PF & 4: xdma(0)
    srd(S_WS, 22, WS_SIZE)
    srd(S_OUT, 18, 0x200000)
    omap()
    a(f"""v_lshlrev_b32 {vr(V_T2)}, 15, {vr(V_LANE)}
          s_lshl_b32 {sr(S_T1)}, {sr(S_QB)}, 17
          s_lshl_b32 {sr(S_T2)}, {sr(S_QO)}, 17
          s_cmp_eq_u32 {sr(S_WAVE)}, 1
          s_cselect_b32 {sr(S_T1)}, {sr(S_T1)}, {sr(S_T2)}
          s_add_u32 {sr(S_T1)}, {sr(S_T1)}, {WS_OA}
          s_cmp_eq_u32 {sr(S_WAVE)}, 0
          s_cselect_b32 {sr(S_T1)}, 0x380, {sr(S_T1)}
          s_cselect_b32 exec_lo, 0xffffff, 15
          s_mov_b32 exec_hi, 0
          s_cmp_ge_u32 {sr(S_WAVE)}, 3
          s_cbranch_scc1 L_tlb1
          buffer_load_dword {vr(V_FLG)}, {vr(V_T2)}, {sr(S_WS,4)}, {sr(S_T1)} offen sc1
          s_branch L_tlb2""")
    a.label("L_tlb1")
    a(f"""s_lshl_b32 {sr(S_T1)}, {sr(S_QO)}, 16
          s_mov_b32 exec_lo, 3
          buffer_load_dword {vr(V_FLG)}, {vr(V_T2)}, {sr(S_OUT,4)}, {sr(S_T1)} offen""")
    a.label("L_tlb2")
    a("s_mov_b64 exec, -1")
    a.vm.append("tlb")
    xdma(1)
    def consts():
        a(f"""s_mov_b32 {sr(S_VMASK)}, 0xffff
              s_mov_b32 {sr(S_VMASK+1)}, 0xffff
              s_mov_b32 {sr(S_LOG2E)}, {hex(f2u(LOG2E))}
              s_mov_b32 {sr(S_LOG2E+1)}, {hex(f2u(LOG2E))}
              s_mov_b32 {sr(S_EPS)}, {hex(f2u(1e-6))}
              s_mov_b32 {sr(S_ONES)}, 0x3f803f80""")
    def xfrag_addr(rt_s):
        a(f"""v_and_b32 {vr(V_T0)}, 31, {vr(V_LANE)}
              v_lshrrev_b32 {vr(V_T1)}, 5, {vr(V_LANE)}
              v_bfe_u32 {vr(V_T2)}, {vr(V_LANE)}, 2, 2
              v_xor_b32 {vr(V_T2)}, {vr(V_T2)}, {vr(V_T1)}
              v_lshlrev_b32 {vr(V_T2)}, 4, {vr(V_T2)}
              v_lshl_add_u32 {vr(V_T3)}, {vr(V_T0)}, 6, {vr(V_T2)}
              s_lshl_b32 {sr(S_T0)}, {sr(rt_s)}, 11
              s_add_u32 {sr(S_T0)}, {sr(S_T0)}, {L_X}
              v_add_u32 {vr(V_XA0)}, {sr(S_T0)}, {vr(V_T3)}
              v_xor_b32 {vr(V_XA1)}, 32, {vr(V_XA0)}""")
    consts()
    a(f"""s_lshl_b32 {sr(S_HEAD)}, {sr(S_HG)}, 2
          s_add_u32 {sr(S_HEAD)}, {sr(S_HEAD)}, {sr(S_HH)}
          s_lshl_b32 {sr(S_HEADA)}, {sr(S_HGQ)}, 2
          s_add_u32 {sr(S_HEADA)}, {sr(S_HEADA)}, {sr(S_HH)}
          s_lshl_b32 {sr(S_RT32)}, {sr(S_QB)}, 1
          s_add_u32 {sr(S_RT32)}, {sr(S_RT32)}, {sr(S_RT)}
          s_lshl_b32 {sr(S_RO32)}, {sr(S_QO)}, 1
          s_add_u32 {sr(S_RO32)}, {sr(S_RO32)}, {sr(S_RT)}
          s_mov_b32 {sr(S_QS)}, {hex(f2u(QSCALE))}
          s_mov_b32 {sr(S_QS+1)}, {hex(f2u(QSCALE))}""")
    xfrag_addr(S_RT)
    a(f"""v_bfe_u32 {vr(V_T0)}, {vr(V_LANE)}, 4, 1
          v_bfe_u32 {vr(V_T2)}, {vr(V_LANE)}, 3, 2
          v_xor_b32 {vr(V_T2)}, {sr(S_HH)}, {vr(V_T2)}
          v_lshlrev_b32 {vr(V_T2)}, 5, {vr(V_T2)}
          v_lshl_add_u32 {vr(V_T2)}, {vr(V_T0)}, 13, {vr(V_T2)}
          v_lshl_add_u32 {vr(V_T2)}, {vr(V_T1)}, 10, {vr(V_T2)}
          v_bfe_u32 {vr(V_T0)}, {vr(V_LANE)}, 2, 2
          v_lshl_add_u32 {vr(V_T2)}, {vr(V_T0)}, 7, {vr(V_T2)}
          v_and_b32 {vr(V_T0)}, 3, {vr(V_LANE)}
          v_lshl_add_u32 {vr(V_WA)}, {vr(V_T0)}, 3, {vr(V_T2)}
          v_add_u32 {vr(V_WA3)}, {L_HI}, {vr(V_WA)}""")
    for i in range(8):
        a(f"v_mov_b32 {vr(V_ACCQ+i)}, 0")
        a(f"v_mov_b32 {vr(V_ACCQ+8+i)}, {sr(S_EPS)}")
    a(f"""v_mov_b32 {vr(V_T0)}, {sr(S_ONES)}
          s_mov_b32 {sr(S_SAVE)}, 0x110000
          s_mov_b32 {sr(S_SAVE+1)}, 0x110000
          v_cndmask_b32 {vr(V_T0)}, 0, {vr(V_T0)}, {sr(S_SAVE,2)}""")
    for i in range(16):
        a(f"v_mov_b32 {vr(V_O+i)}, 0")
        a(f"v_mov_b32 {vr(V_VF[0]+i)}, {vr(V_T0)}")
    a(f"""v_mov_b32 {vr(V_IDX)}, 0xdddd
          v_mov_b32 {vr(V_KA)}, {vr(V_L16)}
          v_and_b32 {vr(V_T3)}, 15, {vr(V_LANE)}
          v_lshlrev_b32 {vr(V_T3)}, 4, {vr(V_T3)}
          v_lshl_add_u32 {vr(V_VA)}, {vr(V_T1)}, 8, {vr(V_T3)}""")
    V_GA, V_ACA, V_ARM = V_WOFF, 166, 0
    S_GOFF, S_MYFO, S_INFO, S_ACC = 28, 29, 30, 31
    def ooff(dst, base):
        a(f"""s_lshl_b32 {sr(dst)}, {sr(S_RT32)}, 6
              s_add_u32 {sr(dst)}, {sr(dst)}, {sr(S_HEADA if base == WS_OA else S_HEAD)}
              s_lshl_b32 {sr(dst)}, {sr(dst)}, 10
              s_add_u32 {sr(dst)}, {sr(dst)}, {base}""")
    ooff(S_RDY, WS_OB)
    ooff(S_AUX, WS_OA)
    a(f"""v_and_b32 {vr(V_T0)}, 0x3c, {vr(V_L4)}
          v_bfe_u32 {vr(V_T1)}, {vr(V_LANE)}, 4, 1
          v_lshl_add_u32 {vr(V_GA)}, {vr(V_T1)}, 7, {vr(V_T0)}
          s_lshl_b32 {sr(S_GOFF)}, {sr(S_RT32)}, 8
          s_add_u32 {sr(S_GOFF)}, {sr(S_GOFF)}, {WS_G}
          v_mov_b32 {vr(V_PK)}, -1
          v_mov_b32 {vr(V_PK+1)}, -1
          v_mov_b32 {vr(V_PK+2)}, -1
          v_mov_b32 {vr(V_PK+3)}, -1
          s_lshl_b32 {sr(S_MYFO)}, {sr(S_RT32)}, 5
          s_add_u32 {sr(S_MYFO)}, {sr(S_MYFO)}, {sr(S_HEAD)}
          s_lshl_b32 {sr(S_MYFO)}, {sr(S_MYFO)}, 2
          s_add_u32 {sr(S_MYFO)}, {sr(S_MYFO)}, {WS_FO}
          s_getreg_b32 {sr(S_XCC)}, hwreg(HW_REG_XCC_ID, 0, 4)
          v_lshrrev_b32 {vr(V_T0)}, 5, {vr(V_LANE)}
          v_lshlrev_b32 {vr(V_T0)}, 9, {vr(V_T0)}
          v_bfe_u32 {vr(V_T1)}, {vr(V_LANE)}, 2, 2
          v_lshl_add_u32 {vr(V_T0)}, {vr(V_T1)}, 7, {vr(V_T0)}
          v_bfe_u32 {vr(V_T1)}, {vr(V_LANE)}, 3, 1
          v_lshl_add_u32 {vr(V_T0)}, {vr(V_T1)}, 6, {vr(V_T0)}
          v_bfe_u32 {vr(V_T1)}, {vr(V_LANE)}, 4, 1
          v_lshl_add_u32 {vr(V_T0)}, {vr(V_T1)}, 5, {vr(V_T0)}
          v_and_b32 {vr(V_T1)}, 3, {vr(V_LANE)}
          v_lshl_add_u32 {vr(V_T0)}, {vr(V_T1)}, 3, {vr(V_T0)}
          s_lshl_b32 {sr(S_T0)}, {sr(S_HH)}, 14
          v_add_u32 {vr(V_WOA0)}, {sr(S_T0)}, {vr(V_T0)}
          v_xor_b32 {vr(V_WOA1)}, 64, {vr(V_WOA0)}
          s_lshl_b32 {sr(S_U0)}, {sr(S_RO32)}, 3
          s_add_u32 {sr(S_U0)}, {sr(S_U0)}, {sr(S_HH)}
          s_lshl_b32 {sr(S_U0)}, {sr(S_U0)}, 13
          s_add_u32 {sr(S_U0)}, {sr(S_U0)}, {WS_OA}
          s_add_u32 {sr(S_U1)}, {sr(S_U0)}, 4096
          s_lshl_b32 {sr(S_U2)}, {sr(S_RO32)}, 4
          s_add_u32 {sr(S_U2)}, {sr(S_U2)}, {sr(S_HH)}
          s_lshl_b32 {sr(S_U2)}, {sr(S_U2)}, 12
          s_add_u32 {sr(S_U2)}, {sr(S_U2)}, {WS_OB}
          s_add_u32 {sr(S_U3)}, {sr(S_U2)}, 16384
          s_and_b32 {sr(S_T1)}, {sr(S_HEADA)}, 1
          v_lshrrev_b32 {vr(V_T1)}, 5, {vr(V_LANE)}
          s_lshl_b32 {sr(S_T2)}, {sr(S_T1)}, 1
          s_add_u32 {sr(S_T2)}, {sr(S_T2)}, 64
          v_add_u32 {vr(V_T1)}, {sr(S_T2)}, {vr(V_T1)}
          v_and_b32 {vr(V_T0)}, 0x2f, {vr(V_LANE)}
          s_lshl_b32 {sr(S_T2)}, {sr(S_T1)}, 4
          v_add_u32 {vr(V_T0)}, {sr(S_T2)}, {vr(V_T0)}
          v_cndmask_b32 {vr(V_T0)}, {vr(V_T0)}, {vr(V_T1)}, {sr(S_VMASK,2)}
          v_lshlrev_b32 {vr(V_ACA)}, 2, {vr(V_T0)}
          s_lshr_b32 {sr(S_ACC)}, {sr(S_HEADA)}, 1
          s_lshl_b32 {sr(S_ACC)}, {sr(S_ACC)}, 12
          s_add_u32 {sr(S_ACC)}, {sr(S_ACC)}, {WS_ACC}
          s_lshl_b32 {sr(S_INFO)}, {sr(S_RO32)}, 7
          s_add_u32 {sr(S_INFO)}, {sr(S_INFO)}, {WS_FO}""")
    tag_setup()
    a(f"v_add_u32 {vr(V_ARM)}, {sr(S_XCC)}, {vr(V_TAG)}")
    stamp(1)

    def reads(c):
        fb = V_FB[c % 2]
        s = c % 4
        wa, wo = (V_WA, RSLOT[s]) if s < 3 else (V_WA3, 0)
        r = []
        for p in range(4):
            r.append(f"ds_read_b128 {vr(fb+4*p,4)}, {vr(V_XA0 if p%2==0 else V_XA1)} offset:{(2*c + p//2)*4096}")
            for u in range(2):
                r.append(f"ds_read_b64_tr_b16 {vr(fb+16+4*p+2*u,2)}, {vr(wa)} offset:{wo + p*2048 + u*512}")
        return r
    def mfmas(c):
        fb = V_FB[c % 2]
        return [f"v_mfma_f32_32x32x16_bf16 {vr(V_ACCQ,16)}, {vr(fb+16+4*p,4)}, {vr(fb+4*p,4)}, {vr(V_ACCQ,16)}" for p in range(4)]
    for c in range(8):
        if c in (0, 2):
            a.wait_vm(f"x{c//2}", "lgkmcnt(0)")
        else:
            a("s_waitcnt lgkmcnt(0)")
        a("s_barrier")
        R_ = reads(c)
        if c == 0:
            for r in R_: a(r)
        else:
            M_ = mfmas(c - 1)
            for k in range(4):
                a(M_[k])
                for r in R_[4*k:4*k+4]: a(r)
    for k, m in enumerate(mfmas(7)):
        a(f"s_waitcnt lgkmcnt({9-3*k})")
        a(m)
    stamp(2)
    E = V_FB[0]
    a(f"""s_mov_b32 {sr(S_SEG)}, 0
          s_nop 10""")
    for i in range(0, 8, 2):
        a(f"v_pk_mul_f32 {vr(V_ACCQ+i,2)}, {sr(S_QS,2)}, {vr(V_ACCQ+i,2)}")
    for i in range(4):
        a(f"v_cvt_pk_bf16_f32 {vr(V_QF+i)}, {vr(V_ACCQ+2*i)}, {vr(V_ACCQ+2*i+1)}")
    phi(V_ACCQ + 8, 8, E)
    for i in range(4):
        a(f"v_cvt_pk_bf16_f32 {vr(V_PQ+i)}, {vr(V_ACCQ+8+2*i)}, {vr(V_ACCQ+8+2*i+1)}")
    stamp(3)
    a("s_barrier")
    stamp(4)
    a(f"""ds_read_b128 {vr(V_KF,4)}, {vr(V_KA)}
          s_mov_b64 exec, {sr(S_VMASK,2)}
          ds_read_b128 {vr(V_VF[0],4)}, {vr(V_VA)} offset:1024
          ds_read_b128 {vr(V_VF[0]+4,4)}, {vr(V_VA)} offset:1536
          ds_read_b128 {vr(V_VF[1],4)}, {vr(V_VA)} offset:{2048+1024}
          ds_read_b128 {vr(V_VF[1]+4,4)}, {vr(V_VA)} offset:{2048+1536}
          s_mov_b64 exec, -1
          s_waitcnt lgkmcnt(4)
          v_mfma_f32_32x32x16_bf16 {vr(V_S[0],16)}, {vr(V_KF,4)}, {vr(V_QF,4)}, 0
          ds_read_b128 {vr(V_KF,4)}, {vr(V_KA)} offset:2048""")
    if dbg:
        for reg, hd, base in ((V_QF, S_HEAD, WS_DBG1), (V_PQ, S_HEADA, WS_DBG2)):
            a(f"""s_lshl_b32 {sr(S_T0)}, {sr(S_RT32)}, 5
                  s_add_u32 {sr(S_T0)}, {sr(S_T0)}, {sr(hd)}
                  s_lshl_b32 {sr(S_T0)}, {sr(S_T0)}, 10
                  s_add_u32 {sr(S_T1)}, {sr(S_T0)}, {base}
                  buffer_store_dwordx4 {vr(reg,4)}, {vr(V_L16)}, {sr(S_WS,4)}, {sr(S_T1)} offen""")
    S0 = V_S[0]
    a(f"""s_nop 10
          v_max3_f32 {vr(V_T0)}, {vr(S0)}, {vr(S0+1)}, {vr(S0+2)}
          v_max3_f32 {vr(V_T1)}, {vr(S0+3)}, {vr(S0+4)}, {vr(S0+5)}
          v_max3_f32 {vr(V_T2)}, {vr(S0+6)}, {vr(S0+7)}, {vr(S0+8)}
          v_max3_f32 {vr(V_T3)}, {vr(S0+9)}, {vr(S0+10)}, {vr(S0+11)}
          v_max3_f32 {vr(V_T0)}, {vr(V_T0)}, {vr(S0+12)}, {vr(S0+13)}
          v_max3_f32 {vr(V_T1)}, {vr(V_T1)}, {vr(S0+14)}, {vr(S0+15)}
          v_max3_f32 {vr(V_T0)}, {vr(V_T0)}, {vr(V_T1)}, {vr(V_T2)}
          v_max_f32 {vr(V_T0)}, {vr(V_T0)}, {vr(V_T3)}
          v_mov_b32 {vr(V_T1)}, {vr(V_T0)}
          s_nop 1
          v_permlane32_swap_b32 {vr(V_T0)}, {vr(V_T1)}
          s_nop 1
          v_max_f32 {vr(V_T0)}, {vr(V_T0)}, {vr(V_T1)}
          v_sub_f32 {vr(V_T2)}, 0, {vr(V_T0)}
          v_sub_f32 {vr(V_T3)}, 0, {vr(V_T0)}""")
    for i in range(0, 16, 2):
        a(f"v_pk_add_f32 {vr(S0+i,2)}, {vr(S0+i,2)}, {vr(V_T2,2)}")
    for i in range(0, 16, 2):
        a(f"v_pk_mov_b32 {vr(V_C+i,2)}, {vr(V_T2,2)}, {vr(V_T2,2)} op_sel:[0,1]")
    a(f"""v_exp_f32 {vr(S0)}, {vr(S0)}
          v_exp_f32 {vr(S0+1)}, {vr(S0+1)}
          s_waitcnt lgkmcnt(0)""")
    stamp(5)

    PR = opts.get("ramp", "3210")
    PR = [int(ch) for ch in str(PR).zfill(4)]
    def oload(i, dst, br):
        so = [[S_U0, S_U1], [S_U2, S_U3]][br][i // 4]
        a(f"buffer_load_dwordx4 {vr(dst+4*i,4)}, {vr(V_L16)}, {sr(S_WS,4)}, {sr(so)} offen offset:{(i%4)*1024} sc1")
    def osan():
        for i in range(4):
            a(f"v_min_u32 {vr(V_PK+i)}, -2, {vr(V_PK+i)}")
    ins = {}
    def at(p, slot, fn): ins.setdefault((p, slot), []).append(fn)
    HK = 8 * opts.get("hk", 3)
    H5 = opts.get('h5', 40)
    bars = {8: (2, 11), 32: (0, 13), H5: (2, 17), 48: (0, 19)}
    at(8, "B", lambda: a(f"buffer_load_dword {vr(V_G)}, {vr(V_GA)}, {sr(S_WS,4)}, {sr(S_GOFF)} offen sc1"))
    at(9, "A", lambda: a(f"buffer_store_dwordx4 {vr(V_PK,4)}, {vr(V_L16)}, {sr(S_WS,4)}, {sr(S_RDY)} offen sc1"))
    at(10, "A", lambda: a(f"buffer_store_dwordx4 {vr(V_PK,4)}, {vr(V_L16)}, {sr(S_WS,4)}, {sr(S_AUX)} offen sc1"))
    at(20, "A", lambda: a(f"""s_waitcnt vmcnt(0)
                              s_mov_b64 exec, 1
                              buffer_store_dword {vr(V_ARM)}, {vr(V_L4)}, {sr(S_WS,4)}, {sr(S_MYFO)} offen sc1
                              s_mov_b64 exec, -1"""))
    for r in range(8):
        at(H5 + r // 2, "AB"[r % 2], lambda r=r: a(f"buffer_load_dword {vr(V_AC+r)}, {vr(V_ACA)}, {sr(S_WS,4)}, {sr(S_ACC)} offen offset:{r*512} sc1"))
    at(38, "A", lambda: flag_load(S_INFO))
    PO = opts.get("po", H5 + 7)
    def oa1():
        a("s_waitcnt vmcnt(0)")
        for i in range(4):
            a(f"v_cvt_pk_bf16_f32 {vr(V_AC+8+i)}, {vr(V_AC+2*i)}, {vr(V_AC+2*i+1)}")
    at(PO, "A", oa1)
    at(PO, "B", lambda: a(f"v_mfma_f32_32x32x16_bf16 {vr(V_OA,16)}, {vr(V_AC+8,4)}, {vr(V_PQ,4)}, 0"))
    at(PO + 1, "B", lambda: a(f"""v_add_f32 {vr(V_T0)}, {sr(S_EPS)}, {vr(V_OA)}
                                  v_rcp_f32 {vr(V_T0)}, {vr(V_T0)}"""))
    def oa2():
        a(f"v_mul_f32 {vr(V_T0)}, {vr(V_T0)}, {vr(V_G)}")
        for i in range(0, 8, 2):
            a(f"v_pk_mul_f32 {vr(V_OA+8+i,2)}, {vr(V_OA+8+i,2)}, {vr(V_T0,2)} op_sel_hi:[1,0]")
        for i in range(4):
            a(f"v_cvt_pk_bf16_f32 {vr(V_PK+i)}, {vr(V_OA+8+2*i)}, {vr(V_OA+8+2*i+1)}")
        osan()
        a(f"buffer_store_dwordx4 {vr(V_PK,4)}, {vr(V_L16)}, {sr(S_WS,4)}, {sr(S_AUX)} offen sc1")
        a(f"v_sub_f32 {vr(V_G)}, 1.0, {vr(V_G)}")
    at(PO + 1, "C", oa2)
    def armchk():
        a.label("L_arm")
        a(f"""v_sub_u32 {vr(V_FLG)}, {vr(V_FLG)}, {vr(V_TAG)}
              v_cmp_lt_u32 vcc, 15, {vr(V_FLG)}
              s_cmp_eq_u32 vcc_lo, 0
              s_cbranch_scc0 L_armr""")
        a.label("L_armk")
        a(f"""v_cmp_ne_u32 vcc, {sr(S_XCC)}, {vr(V_FLG)}
              s_mov_b32 {sr(S_FAST)}, vcc_lo""")
    at(PO + 3, "A", armchk)
    for i in range(8):
        at(56 + i, "A", lambda i=i: oload(i, V_FA, 0))
    def run(p, slot):
        for fn in ins.get((p, slot), []): fn()
    a(f"s_mov_b32 {sr(S_SPIN)}, 0")
    for p in range(2, 66):
        cur, nxt = V_S[p % 2], V_S[(p + 1) % 2]
        vf = V_VF[p % 2]
        ex = lambda r: a(f"v_exp_f32 {vr(r)}, {vr(r)}")
        if p < 56:
            ramp = {0: PR[0], 4: PR[1], 6: PR[2], 7: PR[3]}
            if p % 8 in ramp or p == 2: a(f"s_setprio {ramp.get(p % 8, PR[0])}")
        else:
            ramp = {56: PR[0], 62: PR[1], 64: PR[2], 65: PR[3]}
            if p in ramp: a(f"s_setprio {ramp[p]}")
        for i in (2, 3, 4, 5): ex(cur + i)
        if p < 65:
            a(f"s_waitcnt lgkmcnt({bars[p][0] if p in bars else 2})")
            a(f"v_mfma_f32_32x32x16_bf16 {vr(nxt,16)}, {vr(V_KF,4)}, {vr(V_QF,4)}, {vr(V_C,16)}")
        else:
            a("s_waitcnt lgkmcnt(0)")
        if p == 32:
            a(f"""v_add_u32 {vr(V_KA)}, 0x10000, {vr(V_KA)}
                  v_add_u32 {vr(V_VA)}, 0x10000, {vr(V_VA)}""")
        if p in bars:
            stamp(bars[p][1])
            a("s_barrier")
            stamp(bars[p][1] + 1)
        off = (p % 32) * 2048
        if p < 64:
            a(f"ds_read_b128 {vr(V_KF,4)}, {vr(V_KA)} offset:{off}")
        elif p == 64:
            a("s_nop 0")
        run(p, "A")
        for i in (6, 7, 8, 9, 10): ex(cur + i)
        a(f"v_smfmac_f32_32x32x32_bf16 {vr(V_O,16)}, {vr(vf,4)}, {vr(cur,8)}, {vr(V_IDX)}")
        run(p, "B")
        for i in (11, 12, 13, 14, 15): ex(cur + i)
        if p < 65:
            ex(nxt); ex(nxt + 1)
        else:
            a("s_nop 1")
        a(f"v_smfmac_f32_32x32x32_bf16 {vr(V_O,16)}, {vr(vf+4,4)}, {vr(cur+8,8)}, {vr(V_IDX)}")
        if p < 64:
            a(f"""s_mov_b64 exec, {sr(S_VMASK,2)}
                  ds_read_b128 {vr(vf,4)}, {vr(V_VA)} offset:{off+1024}
                  ds_read_b128 {vr(vf+4,4)}, {vr(V_VA)} offset:{off+1536}
                  s_mov_b64 exec, -1""")
        run(p, "C")

    VB0, VB1, VC0, VC1 = V_XOFF, V_WOFF, V_PQ, V_PQ + 1
    def wo_one(n, nt):
        b = V_WO + 8 * (n % 4) + 4 * nt
        ad = [V_WOA0, V_WOA1][nt] if n < 8 else ([VB0, VB1][nt] if n < 12 else [VC0, VC1][nt])
        off = n * 2048 if n < 8 else (n % 4) * 2048
        for u in range(2):
            a(f"ds_read_b64_tr_b16 {vr(b+2*u,2)}, {vr(ad)} offset:{off + u*1024}")
    def wo_rd(n):
        wo_one(n, 0); wo_one(n, 1)
    def mm(n, nt):
        src = V_FA + 4 * n if n < 8 else V_FBB + 4 * (n - 8)
        a(f"v_mfma_f32_32x32x16_bf16 {vr(V_OUT[nt],16)}, {vr(V_WO+8*(n%4)+4*nt,4)}, {vr(src,4)}, {'0' if n == 0 else vr(V_OUT[nt],16)}")
    wo_rd(0); wo_rd(1)
    a(f"""s_mov_b32 {sr(S_T0)}, {hex(f2u(2.0**64))}
          s_nop 2""")
    stamp(6)
    a(f"""v_rcp_f32 {vr(V_T0)}, {vr(V_O+8)}
          v_cmp_nle_f32 vcc, {vr(V_O+8)}, {sr(S_T0)}
          v_pk_mul_f32 {vr(V_T2,2)}, {vr(V_O,2)}, 0
          v_pk_fma_f32 {vr(V_T2,2)}, {vr(V_O+2,2)}, 0, {vr(V_T2,2)}
          v_pk_fma_f32 {vr(V_T2,2)}, {vr(V_O+4,2)}, 0, {vr(V_T2,2)}
          v_pk_fma_f32 {vr(V_T2,2)}, {vr(V_O+6,2)}, 0, {vr(V_T2,2)}
          v_cmp_u_f32 {sr(S_SAVE,2)}, {vr(V_T2)}, {vr(V_T3)}
          s_or_b64 vcc, vcc, {sr(S_SAVE,2)}
          s_cbranch_vccnz L_fallback""")
    a.label("L_norm")
    a(f"v_mul_f32 {vr(V_T0)}, {vr(V_T0)}, {vr(V_G)}")
    for i in range(0, 8, 2):
        a(f"v_pk_mul_f32 {vr(V_O+i,2)}, {vr(V_O+i,2)}, {vr(V_T0,2)} op_sel_hi:[1,0]")
    for i in range(4):
        a(f"v_cvt_pk_bf16_f32 {vr(V_PK+i)}, {vr(V_O+2*i)}, {vr(V_O+2*i+1)}")
    osan()
    a(f"""s_cmp_eq_u32 {sr(S_FAST)}, 0
          s_cbranch_scc0 L_slowst
          buffer_store_dwordx4 {vr(V_PK,4)}, {vr(V_L16)}, {sr(S_WS,4)}, {sr(S_RDY)} offen""")
    a.label("L_stdone")
    wo_rd(2)
    a(f"""s_mov_b32 {sr(S_SPIN)}, 0
          s_waitcnt vmcnt(1)""")
    a.label("L_oa")
    a(f"v_max3_u32 {vr(V_FLG)}, {vr(V_FA)}, {vr(V_FA+1)}, {vr(V_FA+2)}")
    for i in range(3, 31, 2):
        a(f"v_max3_u32 {vr(V_FLG)}, {vr(V_FLG)}, {vr(V_FA+i)}, {vr(V_FA+i+1)}")
    a(f"""v_max_u32 {vr(V_FLG)}, {vr(V_FLG)}, {vr(V_FA+31)}
          v_cmp_eq_u32 vcc, -1, {vr(V_FLG)}
          s_cbranch_vccnz L_oar""")
    a.label("L_oak")
    A0, A1, A2, A3 = V_XA0, V_XA1, V_WA, V_KA
    setup = f"""s_lshl_b32 {sr(S_T0)}, {sr(S_HH)}, 13
          s_sub_u32 {sr(S_T1)}, {L_HI}, {sr(S_T0)}
          v_add_u32 {vr(VB0)}, {sr(S_T1)}, {vr(V_WOA0)}
          v_add_u32 {vr(VB1)}, {sr(S_T1)}, {vr(V_WOA1)}
          s_sub_u32 {sr(S_T1)}, 65536, {sr(S_T0)}
          v_add_u32 {vr(VC0)}, {sr(S_T1)}, {vr(V_WOA0)}
          v_add_u32 {vr(VC1)}, {sr(S_T1)}, {vr(V_WOA1)}
          v_and_b32 {vr(V_T0)}, 31, {vr(V_LANE)}
          v_lshrrev_b32 {vr(V_T1)}, 5, {vr(V_LANE)}
          v_and_b32 {vr(V_T2)}, 7, {vr(V_LANE)}
          v_xor_b32 {vr(V_T1)}, {vr(V_T1)}, {vr(V_T2)}
          v_lshlrev_b32 {vr(V_T1)}, 4, {vr(V_T1)}
          v_lshl_add_u32 {vr(V_T0)}, {vr(V_T0)}, 8, {vr(V_T1)}
          s_lshl_b32 {sr(S_T0)}, {sr(S_HH)}, 14
          s_lshl_b32 {sr(S_T1)}, {sr(S_RT)}, 13
          s_add_u32 {sr(S_T0)}, {sr(S_T0)}, {sr(S_T1)}
          v_add_u32 {vr(V_T0)}, {sr(S_T0)}, {vr(V_T0)}
          v_xor_b32 {vr(V_T1)}, 32, {vr(V_T0)}
          v_xor_b32 {vr(V_T2)}, 64, {vr(V_T0)}
          v_xor_b32 {vr(V_T3)}, 96, {vr(V_T0)}
          v_lshrrev_b32 {vr(A0)}, 3, {vr(V_LANE)}
          v_and_b32 {vr(A1)}, 7, {vr(V_LANE)}
          v_lshlrev_b32 {vr(A2)}, 1, {vr(A1)}
          v_xor_b32 {vr(A2)}, {vr(A2)}, {vr(A0)}
          v_lshlrev_b32 {vr(A2)}, 4, {vr(A2)}
          v_lshl_add_u32 {vr(A2)}, {vr(A0)}, 8, {vr(A2)}
          s_lshl_b32 {sr(S_T0)}, {sr(S_WAVE)}, 11
          v_add_u32 {vr(A2)}, {sr(S_T0)}, {vr(A2)}
          v_xor_b32 {vr(A3)}, 16, {vr(A2)}
          v_lshlrev_b32 {vr(A1)}, 4, {vr(A1)}
          v_lshl_add_u32 {vr(A0)}, {vr(A0)}, 10, {vr(A1)}
          s_lshl_b32 {sr(S_RDY)}, {sr(S_QO)}, 16
          s_lshl_b32 {sr(S_T1)}, {sr(S_WAVE)}, 13
          s_add_u32 {sr(S_RDY)}, {sr(S_RDY)}, {sr(S_T1)}
          s_lshl_b32 {sr(S_T1)}, {sr(S_NS)}, 7
          s_add_u32 {sr(S_RDY)}, {sr(S_RDY)}, {sr(S_T1)}""".split("\n")
    OBAT = opts.get("obat", 5)
    sched = {i: [] for i in range(8)}
    for k in range(8):
        sched[min(7, OBAT + (k * (8 - OBAT)) // 8)].append(k)
    per = (len(setup) + 3) // 4
    def chk(i):
        f = V_FBB + 4 * i
        a(f"s_waitcnt vmcnt({7-i})")
        a.label(f"L_ob{i}")
        a(f"""v_max3_u32 {vr(V_FLG)}, {vr(f)}, {vr(f+1)}, {vr(f+2)}
              v_max_u32 {vr(V_FLG)}, {vr(V_FLG)}, {vr(f+3)}
              v_cmp_eq_u32 vcc, -1, {vr(V_FLG)}
              s_cbranch_vccnz L_obr{i}""")
        a.label(f"L_obk{i}")
    for n in range(12):
        if n == 8: stamp(7)
        if n >= 8: chk(n - 8)
        a(f"s_waitcnt lgkmcnt({4 * (min(n + 2, 11) - n)})")
        mm(n, 0); mm(n, 1)
        if n < 4:
            for l in setup[n*per:(n+1)*per]: a(l)
        if n + 3 < 12: wo_rd(n + 3)
        if n < 8:
            for k in sched[n]: oload(k, V_FBB, 1)
    a("s_barrier")
    stamp(8)
    for n in range(12, 16): wo_one(n, 0)
    for n in range(12, 15): wo_one(n, 1)
    for n in range(12, 16):
        chk(n - 8)
        a(f"s_waitcnt lgkmcnt({12 if n == 12 else 2*(15-n) + 8})")
        mm(n, 0)
        if n == 12: wo_one(15, 1)
    for n in range(12, 16):
        a(f"s_waitcnt lgkmcnt({2*(15-n)})")
        mm(n, 1)
    stamp(9)
    a("s_nop 3")
    for nt in range(2):
        if nt: a("s_nop 3")
        for g in range(4):
            a(f"ds_write_b128 {vr(V_T0+g)}, {vr(V_OUT[nt]+4*g,4)} offset:{nt*128}")
    a("""s_waitcnt lgkmcnt(0)
         s_barrier""")
    RR = V_FA
    for k in range(4):
        a(f"ds_read_b128 {vr(RR+8*k,4)}, {vr(A2)} offset:{k*16384}")
        a(f"ds_read_b128 {vr(RR+8*k+4,4)}, {vr(A3)} offset:{k*16384}")
    for k in range(1, 4):
        a(f"s_waitcnt lgkmcnt({2*(3-k)})")
        for i in range(0, 8, 2):
            a(f"v_pk_add_f32 {vr(RR+i,2)}, {vr(RR+i,2)}, {vr(RR+8*k+i,2)}")
    for i in range(4):
        a(f"v_cvt_pk_bf16_f32 {vr(RR+8+i)}, {vr(RR+2*i)}, {vr(RR+2*i+1)}")
    a(f"buffer_store_dwordx4 {vr(RR+8,4)}, {vr(A0)}, {sr(S_OUT,4)}, {sr(S_RDY)} offen")
    if "dfast" in opts:
        a(f"""s_cmp_eq_u32 {sr(S_FAST)}, 0
              s_cbranch_scc{opts['dfast']} L_end
              s_memrealtime s[98:99]
              s_waitcnt lgkmcnt(0)""")
        a.label("L_dly")
        a(f"""s_memrealtime s[96:97]
              s_waitcnt lgkmcnt(0)
              s_sub_u32 {sr(S_T1)}, s96, s98
              s_cmp_lt_u32 {sr(S_T1)}, 3000
              s_cbranch_scc1 L_dly""")
    if "dly" in opts:
        stamp(10)
        a(f"""s_cmp_lg_u32 s2, {opts.get('tswg', 100)}
              s_cbranch_scc1 L_end
              s_cmp_lg_u32 {sr(S_WAVE)}, 0
              s_cbranch_scc1 L_end
              s_memrealtime s[98:99]
              s_waitcnt lgkmcnt(0)
              s_sub_u32 {sr(S_T0)}, s100, s74
              s_lshl_b32 {sr(S_T0)}, {sr(S_T0)}, 2
              s_add_u32 {sr(S_T0)}, {sr(S_T0)}, 500
              s_min_u32 {sr(S_T0)}, {sr(S_T0)}, 30000""")
        a.label("L_dly2")
        a(f"""s_memrealtime s[96:97]
              s_waitcnt lgkmcnt(0)
              s_sub_u32 {sr(S_T1)}, s96, s98
              s_cmp_lt_u32 {sr(S_T1)}, {sr(S_T0)}
              s_cbranch_scc1 L_dly2""")
    if ts:
        stamp(10)
        ts_out()
    a.label("L_end")
    a("s_endpgm")

    a.label("L_slowst")
    a(f"""buffer_store_dwordx4 {vr(V_PK,4)}, {vr(V_L16)}, {sr(S_WS,4)}, {sr(S_RDY)} offen sc1
          s_waitcnt vmcnt(0)
          s_branch L_stdone""")
    a.label("L_armr")
    a(f"""s_add_u32 {sr(S_SPIN)}, {sr(S_SPIN)}, 1
          s_cmp_ge_u32 {sr(S_SPIN)}, 100000
          s_cbranch_scc1 L_armk""")
    flag_load(S_INFO)
    a("""s_waitcnt vmcnt(0)
         s_branch L_arm""")
    a.label("L_oar")
    a(f"""s_add_u32 {sr(S_SPIN)}, {sr(S_SPIN)}, 1
          s_cmp_ge_u32 {sr(S_SPIN)}, 100000
          s_cbranch_scc1 L_oak""")
    for k in range(8): oload(k, V_FA, 0)
    a("""s_waitcnt vmcnt(0)
         s_branch L_oa""")
    RM = opts.get("rm", 1)
    for i in range(8):
        f = V_FBB + 4 * i
        a.label(f"L_obr{i}")
        a(f"""s_add_u32 {sr(S_SPIN)}, {sr(S_SPIN)}, 1
              s_cmp_ge_u32 {sr(S_SPIN)}, 100000
              s_cbranch_scc1 L_obk{i}""")
        if RM == 1:
            if opts.get("slp", 0): a(f"s_sleep {opts['slp']}")
            for k in range(i, 8): oload(k, V_FBB, 1)
            a(f"""s_waitcnt vmcnt({7-i})
                  s_branch L_ob{i}""")
        else:
            if opts.get("slp", 0): a(f"s_sleep {opts['slp']}")
            oload(i, V_FBB, 1)
            a(f"""s_waitcnt vmcnt(0)
                  v_max3_u32 {vr(V_FLG)}, {vr(f)}, {vr(f+1)}, {vr(f+2)}
                  v_max_u32 {vr(V_FLG)}, {vr(V_FLG)}, {vr(f+3)}
                  v_cmp_eq_u32 vcc, -1, {vr(V_FLG)}
                  s_cbranch_vccnz L_obr{i}""")
            for k in range(i + 1, 8): oload(k, V_FBB, 1)
            a(f"s_branch L_obk{i}")

    a.label("L_fallback")
    FS = V_S[0]
    a(f"""v_mov_b32 {vr(V_T0)}, 0xff800000
          s_mov_b32 {sr(S_T0)}, {WS_KV}""")
    a.label("L_fb1")
    a(f"""buffer_load_dwordx4 {vr(V_KF,4)}, {vr(V_L16)}, {sr(S_WS,4)}, {sr(S_T0)} offen sc1
          s_waitcnt vmcnt(0)
          v_mfma_f32_32x32x16_bf16 {vr(FS,16)}, {vr(V_KF,4)}, {vr(V_QF,4)}, 0
          s_nop 15""")
    for i in range(8):
        a(f"v_max3_f32 {vr(V_T0)}, {vr(V_T0)}, {vr(FS+2*i)}, {vr(FS+2*i+1)}")
    a(f"""s_add_u32 {sr(S_T0)}, {sr(S_T0)}, 2048
          s_cmp_lt_u32 {sr(S_T0)}, {WS_KV + 131072}
          s_cbranch_scc1 L_fb1
          v_mov_b32 {vr(V_T1)}, {vr(V_T0)}
          s_nop 1
          v_permlane32_swap_b32 {vr(V_T0)}, {vr(V_T1)}
          s_nop 1
          v_max_f32 {vr(V_T0)}, {vr(V_T0)}, {vr(V_T1)}""")
    for i in range(16):
        a(f"v_sub_f32 {vr(V_C+i)}, 0, {vr(V_T0)}")
        a(f"v_mov_b32 {vr(V_O+i)}, 0")
    a(f"""v_and_b32 {vr(V_VA)}, 0x3ff, {vr(V_VA)}
          s_mov_b32 {sr(S_T0)}, {WS_KV}""")
    a.label("L_fb2")
    a(f"""buffer_load_dwordx4 {vr(V_KF,4)}, {vr(V_L16)}, {sr(S_WS,4)}, {sr(S_T0)} offen sc1
          s_mov_b64 exec, {sr(S_VMASK,2)}
          buffer_load_dwordx4 {vr(V_VF[0],4)}, {vr(V_VA)}, {sr(S_WS,4)}, {sr(S_T0)} offen offset:1024 sc1
          buffer_load_dwordx4 {vr(V_VF[0]+4,4)}, {vr(V_VA)}, {sr(S_WS,4)}, {sr(S_T0)} offen offset:1536 sc1
          s_mov_b64 exec, -1
          s_waitcnt vmcnt(0)
          v_mfma_f32_32x32x16_bf16 {vr(FS,16)}, {vr(V_KF,4)}, {vr(V_QF,4)}, {vr(V_C,16)}
          s_nop 15""")
    for i in range(16):
        a(f"v_exp_f32 {vr(FS+i)}, {vr(FS+i)}")
    a(f"""s_nop 1
          v_smfmac_f32_32x32x32_bf16 {vr(V_O,16)}, {vr(V_VF[0],4)}, {vr(FS,8)}, {vr(V_IDX)}
          v_smfmac_f32_32x32x32_bf16 {vr(V_O,16)}, {vr(V_VF[0]+4,4)}, {vr(FS+8,8)}, {vr(V_IDX)}
          s_add_u32 {sr(S_T0)}, {sr(S_T0)}, 2048
          s_cmp_lt_u32 {sr(S_T0)}, {WS_KV + 131072}
          s_cbranch_scc1 L_fb2
          s_nop 15
          v_rcp_f32 {vr(V_T0)}, {vr(V_O+8)}
          s_nop 0
          s_branch L_norm""")

    H_F4, H_FOFF = 148, 152
    S_ROT = S_HEAD
    def rot_setup():
        a(f"""s_and_b32 {sr(S_ROT)}, s2, 7
              s_lshl_b32 {sr(S_ROT)}, {sr(S_ROT)}, 3""")
    def kv_sample():
        a(f"buffer_load_dwordx4 {vr(H_F4,4)}, {vr(H_FOFF)}, {sr(S_WS,4)}, 0 offen offset:{WS_FKV} sc1")
    def kv_spin(lbl, lo_only):
        a(f"s_mov_b32 {sr(S_SPIN)}, 0")
        a.label(lbl + "_loop")
        a(f"""v_cmp_ne_u32 vcc, {vr(H_F4)}, {vr(V_TAG)}
              v_cmp_ne_u32 {sr(S_SAVE,2)}, {vr(H_F4+1)}, {vr(V_TAG)}
              s_or_b64 vcc, vcc, {sr(S_SAVE,2)}
              v_cmp_ne_u32 {sr(S_SAVE,2)}, {vr(H_F4+2)}, {vr(V_TAG)}
              s_or_b64 vcc, vcc, {sr(S_SAVE,2)}
              v_cmp_ne_u32 {sr(S_SAVE,2)}, {vr(H_F4+3)}, {vr(V_TAG)}
              s_or_b64 vcc, vcc, {sr(S_SAVE,2)}""")
        if lo_only:
            a(f"s_and_b32 {sr(S_SAVE)}, vcc_lo, 0xff\ns_cmp_eq_u32 {sr(S_SAVE)}, 0")
        else:
            a("s_cmp_eq_u64 vcc, 0")
        a(f"""s_cbranch_scc1 {lbl}_ok
              s_add_u32 {sr(S_SPIN)}, {sr(S_SPIN)}, 1
              s_cmp_ge_u32 {sr(S_SPIN)}, 100000
              s_cbranch_scc1 {lbl}_ok""")
        if lo_only: a("s_mov_b64 exec, 0xff")
        kv_sample()
        if lo_only: a("s_mov_b64 exec, -1")
        a(f"""s_waitcnt vmcnt(0)
              s_branch {lbl}_loop""")
        a.label(lbl + "_ok")
    def kv_dma(lbl, s0, n):
        a(f"""s_mul_i32 {sr(S_T0)}, {sr(S_RT)}, {n}
              s_add_u32 {sr(S_T0)}, {sr(S_T0)}, {s0}
              s_add_u32 {sr(S_T2)}, {sr(S_T0)}, {n}""")
        a.label(lbl)
        a(f"""s_add_u32 {sr(S_T1)}, {sr(S_T0)}, {sr(S_ROT)}
              s_and_b32 {sr(S_T1)}, {sr(S_T1)}, 63
              s_lshl_b32 {sr(S_T1)}, {sr(S_T1)}, 11
              s_add_u32 {sr(S_T1)}, {sr(S_T1)}, {WS_KV}
              s_lshl_b32 m0, {sr(S_T0)}, 11
              s_waitcnt vmcnt(40)""")
        for k in range(4):
            a(f"buffer_load_dwordx4 {vr(V_L16)}, {sr(S_WS,4)}, {sr(S_T1)} offen offset:{k*1024} sc1 lds")
        a(f"""s_add_u32 m0, m0, 4096
              s_add_u32 {sr(S_T1)}, {sr(S_T1)}, 4096""")
        for k in range(4):
            a(f"buffer_load_dwordx4 {vr(V_L16)}, {sr(S_WS,4)}, {sr(S_T1)} offen offset:{k*1024} sc1 lds")
        a(f"""s_add_u32 {sr(S_T0)}, {sr(S_T0)}, 4
              s_cmp_lt_u32 {sr(S_T0)}, {sr(S_T2)}
              s_cbranch_scc1 {lbl}""")
    def swz64(dst, stride):
        a(f"""v_lshrrev_b32 {vr(V_T0)}, 3, {vr(V_LANE)}
              v_bfe_u32 {vr(V_T1)}, {vr(V_LANE)}, 4, 1
              v_lshlrev_b32 {vr(V_T1)}, 2, {vr(V_T1)}
              v_xor_b32 {vr(V_T1)}, {vr(V_T1)}, {vr(V_LANE)}
              v_and_b32 {vr(V_T1)}, 7, {vr(V_T1)}
              v_lshlrev_b32 {vr(V_T1)}, 4, {vr(V_T1)}
              v_mul_u32_u24 {vr(V_T0)}, {stride}, {vr(V_T0)}
              v_add_u32 {vr(dst)}, {vr(V_T0)}, {vr(V_T1)}""")

    KACC = [24, 40]
    KB = [56, 68]
    KV0, KV1 = 153, 154
    S_KO, S_KM = S_U2, S_U3
    S_KW = S_WOB
    def kv_setup():
        srd(S_KW, 2, 0x180000)
        srd(S_WS, 22, WS_SIZE)
        consts()
        swz64(KV0, 3072)
        a(f"""v_add_u32 {vr(KV1)}, {24576 - 1024}, {vr(KV0)}
              s_sub_u32 {sr(S_AUX)}, {sr(S_WAVE)}, 8
              s_and_b32 {sr(S_RT)}, {sr(S_AUX)}, 1
              s_lshl_b32 {sr(S_KM)}, {sr(S_AUX)}, 13
              s_add_u32 {sr(S_KM)}, {sr(S_KM)}, {L_HI}
              s_lshl_b32 {sr(S_KO)}, {sr(S_HGK)}, 7
              s_cmp_lt_u32 {sr(S_AUX)}, 2
              s_cselect_b32 {sr(S_T1)}, 2, 1
              s_cselect_b32 {sr(S_T2)}, 0, {sr(S_EPS)}
              s_lshl_b32 {sr(S_T1)}, {sr(S_T1)}, 10
              s_add_u32 {sr(S_KO)}, {sr(S_KO)}, {sr(S_T1)}""")
        for i in range(32):
            a(f"v_mov_b32 {vr(KACC[0]+i)}, {sr(S_T2)}")
        xfrag_addr(S_RT)
        a(f"""v_lshlrev_b32 {vr(V_T0)}, 10, {vr(V_T1)}
              v_bfe_u32 {vr(V_T1)}, {vr(V_LANE)}, 2, 2
              v_lshl_add_u32 {vr(V_T0)}, {vr(V_T1)}, 7, {vr(V_T0)}
              v_bfe_u32 {vr(V_T1)}, {vr(V_LANE)}, 3, 1
              v_lshl_add_u32 {vr(V_T0)}, {vr(V_T1)}, 6, {vr(V_T0)}
              v_bfe_u32 {vr(V_T1)}, {vr(V_LANE)}, 4, 1
              v_lshl_add_u32 {vr(V_T0)}, {vr(V_T1)}, 5, {vr(V_T0)}
              v_and_b32 {vr(V_T1)}, 3, {vr(V_LANE)}
              v_lshl_add_u32 {vr(V_T0)}, {vr(V_T1)}, 3, {vr(V_T0)}
              v_add_u32 {vr(V_WOA0)}, {sr(S_KM)}, {vr(V_T0)}
              v_xor_b32 {vr(V_WOA1)}, 64, {vr(V_WOA0)}""")
    def kdma(st):
        a(f"s_add_u32 m0, {sr(S_KM)}, {(st % 4)*2048}")
        if st % 4 == 0:
            a(f"""s_xor_b32 {sr(S_U1)}, {sr(S_J)}, {st//4}
                  s_mul_i32 {sr(S_U1)}, {sr(S_U1)}, 196608
                  s_add_u32 {sr(S_U1)}, {sr(S_U1)}, {sr(S_KO)}""")
        else:
            a(f"s_add_u32 {sr(S_U1)}, {sr(S_U1)}, 49152")
        a.vmem(f"buffer_load_dwordx4 {vr(KV0)}, {sr(S_KW,4)}, {sr(S_U1)} offen lds", f"k{st}")
        a.vmem(f"buffer_load_dwordx4 {vr(KV1)}, {sr(S_KW,4)}, {sr(S_U1)} offen offset:1024 lds", f"k{st}")
    def krd(st):
        b = KB[st % 2]
        a(f"ds_read_b128 {vr(b,4)}, {vr(V_XA0 if st%2==0 else V_XA1)} offset:{(st//2)*4096}")
        for nt in range(2):
            for u in range(2):
                a(f"ds_read_b64_tr_b16 {vr(b+4+4*nt+2*u,2)}, {vr(V_WOA0 if nt==0 else V_WOA1)} offset:{(st%4)*2048 + u*512}")
    def kv_pass(bars, after={}):
        a.vm = []
        for st in range(4): kdma(st)
        for _ in range(bars.get(-1, 0)): a("s_barrier")
        a.wait_vm("k0")
        for _ in range(bars.get(0, 0)): a("s_barrier")
        krd(0)
        for st in range(32):
            if st + 1 < 32:
                if f"k{st+1}" in a.vm: a.wait_vm(f"k{st+1}")
                for _ in range(bars.get(st + 1, 0)): a("s_barrier")
                if st + 1 in after: after[st + 1]()
                krd(st + 1)
            a(f"s_waitcnt lgkmcnt({5 if st + 1 < 32 else 0})")
            b = KB[st % 2]
            for nt in range(2):
                a(f"v_mfma_f32_32x32x16_bf16 {vr(KACC[nt],16)}, {vr(b,4)}, {vr(b+4+4*nt,4)}, {vr(KACC[nt],16)}")
                if nt == (0 if opts.get("ksp", 0) else 1) and st + 4 < 32: kdma(st + 4)
    def foff_setup():
        a(f"""v_add_u32 {vr(H_FOFF)}, {sr(S_ROT)}, {vr(V_LANE)}
              v_and_b32 {vr(H_FOFF)}, 63, {vr(H_FOFF)}
              v_lshlrev_b32 {vr(H_FOFF)}, 4, {vr(H_FOFF)}""")

    TG = 80
    TKA, TVA = 12, 155
    S_TG = S_RDY
    def tg_setup(which):
        a(f"""v_and_b32 {vr(V_T0)}, 15, {vr(V_LANE)}
              v_lshlrev_b32 {vr(V_T0)}, 4, {vr(V_T0)}
              v_bfe_u32 {vr(V_T1)}, {vr(V_LANE)}, 4, 1
              v_lshrrev_b32 {vr(V_T2)}, 5, {vr(V_LANE)}
              v_lshl_add_u32 {vr(TKA)}, {vr(V_T1)}, 9, {vr(V_T0)}
              v_lshl_add_u32 {vr(TKA)}, {vr(V_T2)}, 3, {vr(TKA)}
              v_lshl_add_u32 {vr(TVA)}, {vr(V_T2)}, 8, {vr(V_T0)}
              v_lshl_add_u32 {vr(TVA)}, {vr(V_T1)}, 3, {vr(TVA)}
              s_lshl_b32 {sr(S_TG)}, {sr(S_ROT)}, 12
              s_add_u32 {sr(S_TG)}, {sr(S_TG)}, {WS_KVT + which*16384}""")
    def tg_loads():
        for t in range(4):
            a(f"s_add_u32 {sr(S_T0)}, {sr(S_TG)}, {t*4096}")
            for jb in range(4):
                a(f"buffer_load_dwordx4 {vr(TG+16*t+4*jb,4)}, {vr(V_L16)}, {sr(S_WS,4)}, {sr(S_T0)} offen offset:{jb*1024} sc1")
    def tg_finish(lbl, which):
        a(f"s_mov_b32 {sr(S_SPIN)}, 0")
        a.label(lbl + "_loop")
        a("s_waitcnt vmcnt(0)")
        a(f"v_min3_u32 {vr(V_T0)}, {vr(V_TAG)}, {vr(TG+1)}, {vr(TG+3)}")
        a(f"v_max3_u32 {vr(V_T1)}, {vr(V_TAG)}, {vr(TG+1)}, {vr(TG+3)}")
        for g in range(1, 16):
            a(f"v_min3_u32 {vr(V_T0)}, {vr(V_T0)}, {vr(TG+4*g+1)}, {vr(TG+4*g+3)}")
            a(f"v_max3_u32 {vr(V_T1)}, {vr(V_T1)}, {vr(TG+4*g+1)}, {vr(TG+4*g+3)}")
        a(f"""v_cmp_ne_u32 vcc, {vr(V_T0)}, {vr(V_T1)}
              s_cbranch_vccz {lbl}_ok
              s_add_u32 {sr(S_SPIN)}, {sr(S_SPIN)}, 1
              s_cmp_ge_u32 {sr(S_SPIN)}, 100000
              s_cbranch_scc1 {lbl}_ok""")
        tg_loads()
        a(f"s_branch {lbl}_loop")
        a.label(lbl + "_ok")
        for t in range(4):
            for jb in range(4):
                ad = TVA if jb & 1 else TKA
                off = (4 * which + t) * 2048 + ((1024 + (jb >> 1) * 512) if jb & 1 else (jb >> 1) * 256)
                a(f"ds_write_b32 {vr(ad)}, {vr(TG+16*t+4*jb)} offset:{off}")
                a(f"ds_write_b32 {vr(ad)}, {vr(TG+16*t+4*jb+2)} offset:{off+4}")
            a("s_waitcnt lgkmcnt(4)")
        a("s_waitcnt lgkmcnt(0)")
    C_TG = opts.get("c_tg", 6)

    a.label("L_a0")
    a.vm = []
    HX, HW, HG_, HD, HDG = 16, 48, 80, 144, 112
    H_GWA = 8
    S_JX, S_JM = S_U0, S_U1
    a(f"""s_setprio 3
          s_lshl_b32 {sr(S_T1)}, {sr(S_RGJ)}, 14
          s_add_u32 {sr(S_JX)}, {sr(S_T0)}, {sr(S_T1)}
          s_lshl_b32 {sr(S_T1)}, {sr(S_RGJ)}, 10
          s_add_u32 {sr(S_JM)}, {sr(S_T1)}, {L_X}
          s_mov_b32 {sr(S_WJ+2)}, 16384
          s_mov_b32 {sr(S_WJ+3)}, 0x20000
          s_bitcmp1_b32 {sr(S_HG)}, 0
          s_waitcnt lgkmcnt(0)
          s_mov_b32 {sr(S_X)}, {sr(S_KA+0)}
          s_mov_b32 {sr(S_X+1)}, {sr(S_KA+1)}
          s_cselect_b32 {sr(S_WJ)}, {sr(S_KA+12)}, {sr(S_KA+10)}
          s_cselect_b32 {sr(S_WJ+1)}, {sr(S_KA+13)}, {sr(S_KA+11)}
          s_load_dword {sr(S_TAG)}, {sr(S_KA+22,2)}, {WS_E}""")
    a(f"""s_lshl_b32 {sr(S_U2)}, {sr(S_J)}, 11
          s_lshl_b32 {sr(S_T1)}, {sr(S_J)}, 7
          v_xor_b32 {vr(V_T0)}, {sr(S_T1)}, {vr(V_L16)}""")
    def jload(g):
        for k in range(4):
            kb = 4 * g + k
            a(f"s_add_u32 m0, {sr(S_JM)}, {kb*4096 - (k%2)*64}")
            a(f"s_xor_b32 {sr(S_T1)}, {sr(S_JX)}, {(kb//2)*128}" if k % 2 == 0 else "s_nop 0")
            a.vmem(f"buffer_load_dwordx4 {vr(V_XOFF)}, {sr(S_X,4)}, {sr(S_T1)} offen offset:{(k%2)*64} lds", f"j{g}")
        for k in range(2):
            a(f"s_mov_b32 m0, {L_JW + g*4096 + k*2048}")
            a(f"s_xor_b32 {sr(S_T2)}, {sr(S_U2)}, {g*4096 + k*2048}")
            for q in range(2):
                a.vmem(f"buffer_load_dwordx4 {vr(V_L16)}, {sr(S_WJ,4)}, {sr(S_T2)} offen offset:{q*1024} lds", f"j{g}")
    jload(0)
    srd(S_W, 16, 1024)
    a(f"s_mov_b32 m0, {L_GW}\ns_nop 0")
    a.vmem(f"buffer_load_dwordx4 {vr(V_T0)}, {sr(S_W,4)}, 0 offen lds", "gw")
    jload(1); jload(2); jload(3)
    srd(S_WS, 22, WS_SIZE)
    rot_setup()
    a(f"""v_and_b32 {vr(V_T0)}, 15, {vr(V_LANE)}
          v_lshrrev_b32 {vr(V_T1)}, 4, {vr(V_LANE)}
          v_bfe_u32 {vr(V_T2)}, {vr(V_LANE)}, 2, 2
          v_xor_b32 {vr(V_T2)}, {vr(V_T2)}, {vr(V_T1)}
          v_lshlrev_b32 {vr(V_T2)}, 4, {vr(V_T2)}
          v_lshl_add_u32 {vr(V_T2)}, {vr(V_T0)}, 6, {vr(V_T2)}
          v_add_u32 {vr(V_T2)}, {sr(S_JM)}, {vr(V_T2)}
          v_lshlrev_b32 {vr(V_T3)}, 3, {vr(V_T0)}
          v_lshl_add_u32 {vr(V_T3)}, {vr(V_T1)}, 8, {vr(V_T3)}
          v_lshlrev_b32 {vr(H_GWA)}, 4, {vr(V_T1)}
          v_add_u32 {vr(H_GWA)}, {L_GW}, {vr(H_GWA)}
          v_lshlrev_b32 {vr(13)}, 4, {vr(V_T0)}
          v_and_b32 {vr(14)}, 1, {vr(V_T1)}
          v_lshrrev_b32 {vr(15)}, 1, {vr(V_T1)}
          s_lshl_b32 {sr(S_T0)}, {sr(S_QB)}, 1
          s_lshr_b32 {sr(S_T1)}, {sr(S_RGJ)}, 1
          s_add_u32 {sr(S_SEG)}, {sr(S_T0)}, {sr(S_T1)}
          s_lshl_b32 {sr(S_T3)}, {sr(S_SEG)}, 4
          s_and_b32 {sr(S_T0)}, {sr(S_HG)}, 3
          s_lshl_b32 {sr(S_T0)}, {sr(S_T0)}, 2
          s_add_u32 {sr(S_T3)}, {sr(S_T3)}, {sr(S_T0)}
          s_add_u32 {sr(S_T3)}, {sr(S_T3)}, {WS_FKV}""")
    tag_setup()
    if opts.get("lst"): stamp(19)
    vmh = list(a.vm)
    def job(isV):
        a.vm = list(vmh)
        nr = 3 if isV else 4
        for half in range(2):
            a.wait_vm(f"j{2*half}")
            if opts.get("lst"): stamp(20 + 3*half)
            a("s_barrier")
            if opts.get("lst"): stamp(21 + 3*half)
            a.wait_vm(f"j{2*half+1}")
            if opts.get("lst"): stamp(22 + 3*half)
            def rd(k):
                s = 8 * half + k
                a(f"ds_read_b128 {vr(HX+4*k,4)}, {vr(V_T2)} offset:{s*4096}")
                a(f"ds_read_b64_tr_b16 {vr(HW+4*k,2)}, {vr(V_T3)} offset:{L_JW + s*1024}")
                a(f"ds_read_b64_tr_b16 {vr(HW+4*k+2,2)}, {vr(V_T3)} offset:{L_JW + s*1024 + 128}")
                if not isV: a(f"ds_read_b128 {vr(HG_+4*k,4)}, {vr(H_GWA)} offset:{s*64}")
            rd(0); rd(1); rd(2)
            for k in range(8):
                a(f"s_waitcnt lgkmcnt({nr * (min(k + 2, 7) - k)})")
                z = half == 0 and k == 0
                A_, B_ = (HX, HW) if isV else (HW, HX)
                a(f"v_mfma_f32_16x16x32_bf16 {vr(HD,4)}, {vr(A_+4*k,4)}, {vr(B_+4*k,4)}, {'0' if z else vr(HD,4)}")
                if not isV: a(f"v_mfma_f32_16x16x32_bf16 {vr(HDG,4)}, {vr(HG_+4*k,4)}, {vr(HX+4*k,4)}, {'0' if z else vr(HDG,4)}")
                if k + 3 < 8: rd(k + 3)
        a(f"s_and_b32 {sr(S_T1)}, {sr(S_RGJ)}, 1")
        if isV:
            a(f"""v_lshl_add_u32 {vr(13)}, {vr(15)}, 8, {vr(13)}
                  v_lshl_add_u32 {vr(13)}, {vr(14)}, 3, {vr(13)}
                  s_lshl_b32 {sr(S_T1)}, {sr(S_T1)}, 9
                  s_add_u32 {sr(S_T1)}, {sr(S_T1)}, 1024""")
        else:
            a(f"""v_lshl_add_u32 {vr(13)}, {vr(14)}, 9, {vr(13)}
                  v_lshl_add_u32 {vr(13)}, {vr(15)}, 3, {vr(13)}
                  s_lshl_b32 {sr(S_T1)}, {sr(S_T1)}, 8
                  s_lshl_b32 {sr(S_T0)}, {sr(S_QB)}, 2
                  s_add_u32 {sr(S_T0)}, {sr(S_T0)}, {sr(S_RGJ)}
                  s_lshl_b32 {sr(S_T0)}, {sr(S_T0)}, 7
                  s_add_u32 {sr(S_T0)}, {sr(S_T0)}, {WS_G}
                  s_mov_b32 {sr(S_T2)}, {hex(f2u(LOG2E))}
                  v_mul_f32 {vr(HDG)}, {sr(S_T2)}, {vr(HDG)}
                  v_exp_f32 {vr(HDG)}, -{vr(HDG)}
                  s_nop 0
                  v_add_f32 {vr(HDG)}, 1.0, {vr(HDG)}
                  v_rcp_f32 {vr(HDG)}, {vr(HDG)}
                  s_mov_b32 exec_hi, 0
                  buffer_store_dword {vr(HDG)}, {vr(V_L4)}, {sr(S_WS,4)}, {sr(S_T0)} offen sc1
                  s_mov_b32 exec_hi, -1""")
    a(f"""s_bitcmp1_b32 {sr(S_HG)}, 0
          s_cbranch_scc1 L_jobV""")
    job(False)
    a("s_branch L_jobdone")
    a.label("L_jobV")
    job(True)
    a.label("L_jobdone")
    a.vm = []
    a(f"""s_lshl_b32 {sr(S_T0)}, {sr(S_SEG)}, 11
          s_add_u32 {sr(S_T0)}, {sr(S_T0)}, {sr(S_T1)}
          s_add_u32 {sr(S_T0)}, {sr(S_T0)}, {WS_KV}
          s_nop 1
          v_cvt_pk_bf16_f32 {vr(HD+4)}, {vr(HD)}, {vr(HD+1)}
          v_cvt_pk_bf16_f32 {vr(HD+5)}, {vr(HD+2)}, {vr(HD+3)}
          v_mov_b32 {vr(HX)}, {vr(HD+4)}
          v_mov_b32 {vr(HX+1)}, {vr(V_TAG)}
          v_mov_b32 {vr(HX+2)}, {vr(HD+5)}
          v_mov_b32 {vr(HX+3)}, {vr(V_TAG)}
          s_lshl_b32 {sr(S_T1)}, {sr(S_SEG)}, 2
          s_and_b32 {sr(S_T2)}, {sr(S_HG)}, 3
          s_add_u32 {sr(S_T1)}, {sr(S_T1)}, {sr(S_T2)}
          s_lshl_b32 {sr(S_T1)}, {sr(S_T1)}, 10
          s_add_u32 {sr(S_T1)}, {sr(S_T1)}, {WS_KVT}
          buffer_store_dwordx4 {vr(HX,4)}, {vr(V_L16)}, {sr(S_WS,4)}, {sr(S_T1)} offen {"" if opts.get("plaint", 0) else "sc1"}
          v_mov_b32 {vr(14)}, 0
          s_lshl_b32 {sr(S_T1)}, s2, 8
          s_add_u32 {sr(S_T1)}, {sr(S_T1)}, {WS_ACC}
          buffer_store_dwordx2 {vr(HD+4,2)}, {vr(13)}, {sr(S_WS,4)}, {sr(S_T0)} offen sc1
          buffer_store_dword {vr(14)}, {vr(V_L4)}, {sr(S_WS,4)}, {sr(S_T1)} offen sc1""")
    stamp(1)
    C_SIG = opts.get("c_sig", 4)
    for c in range(2, 8):
        a("s_barrier")
        if c == 2: kv_setup()
        if c == 3: tg_setup(0)
        if c == C_SIG:
            a("s_waitcnt vmcnt(0)")
            flag_store(S_T3)
            stamp(2)
        if c == C_TG: tg_loads()
    stamp(3)
    tg_finish("L_tg0", 0)
    stamp(4)
    a("s_barrier")
    a.label("L_kv01")
    kv_pass({opts.get("n1", 8): 1})
    a("s_branch L_kvend")

    a.label("L_a1")
    a.vm = []
    LV = [16, 20]
    SO = [S_U0, S_U1]
    a(f"""s_setprio 3
          v_lshrrev_b32 {vr(V_T0)}, 1, {vr(V_LANE)}
          v_and_b32 {vr(V_T0)}, 3, {vr(V_T0)}
          v_bfe_u32 {vr(V_T1)}, {vr(V_LANE)}, 4, 1
          v_xor_b32 {vr(V_T0)}, {vr(V_T0)}, {vr(V_T1)}
          v_lshlrev_b32 {vr(V_T0)}, 5, {vr(V_T0)}
          v_and_b32 {vr(V_T1)}, 1, {vr(V_LANE)}
          v_lshl_add_u32 {vr(V_T0)}, {vr(V_T1)}, 4, {vr(V_T0)}
          v_lshrrev_b32 {vr(V_T1)}, 3, {vr(V_LANE)}
          v_lshl_add_u32 {vr(LV[0])}, {vr(V_T1)}, 10, {vr(V_T0)}
          v_mul_u32_u24 {vr(V_T1)}, 3072, {vr(V_T1)}
          v_add_u32 {vr(LV[1])}, {vr(V_T1)}, {vr(V_T0)}
          v_xor_b32 {vr(LV[1])}, 64, {vr(LV[1])}""")
    for rg in range(1, 4):
        a(f"""v_add_u32 {vr(LV[0]+rg)}, {rg*(8192-1024)}, {vr(LV[0])}
              v_add_u32 {vr(LV[1]+rg)}, {rg*(24576-1024)}, {vr(LV[1])}""")
    a(f"""s_lshl_b32 {sr(SO[0])}, {sr(S_HG)}, 7
          s_lshl_b32 {sr(SO[1])}, {sr(S_HGQ)}, 7
          s_waitcnt lgkmcnt(0)
          s_load_dword {sr(S_TAG)}, {sr(S_KA+22,2)}, {WS_E}""")
    srd(S_W, 8, 0x80000)
    srd(S_WJ, 2, 0x180000)
    def lw(c):
        a(f"""s_xor_b32 {sr(S_T0)}, {sr(S_J)}, {c}
              s_lshl_b32 {sr(S_T1)}, {sr(S_T0)}, 16
              s_add_u32 {sr(S_T1)}, {sr(S_T1)}, {sr(SO[0])}
              s_mul_i32 {sr(S_T2)}, {sr(S_T0)}, 196608
              s_add_u32 {sr(S_T2)}, {sr(S_T2)}, {sr(SO[1])}""")
        for hf in range(2):
            for m in range(2):
                so = [S_T1, S_T2][m]
                a(f"s_mov_b32 m0, {RSLOT[c % 4] + m*8192 + hf*4096}")
                a("s_nop 0" if hf == 0 else f"s_add_u32 {sr(so)}, {sr(so)}, {32768 if m == 0 else 98304}")
                for rg in range(4):
                    a.vmem(f"buffer_load_dwordx4 {vr(LV[m]+rg)}, {sr(S_W if m == 0 else S_WJ,4)}, {sr(so)} offen offset:{rg*1024} lds", f"w{c}")
    NPRE = opts.get("npre", 2)
    if opts.get("lst"): stamp(18)
    for c in range(NPRE): lw(c)
    if opts.get("lst"): stamp(19)
    tag_setup()
    nxt = NPRE
    for c in range(8):
        a.wait_vm(f"w{c}")
        if opts.get("lst"): stamp(20 + c) if c < 4 else None
        a("s_barrier")
        if opts.get("lst"): stamp(24 + c)
        k = 0
        while nxt <= min(7, c + 3) and k < 2:
            lw(nxt); nxt += 1; k += 1
        if c == 5:
            srd(S_WS, 22, WS_SIZE); rot_setup(); tg_setup(1)
        if c == max(C_TG, 5):
            tg_loads()
            a.vm += ["tg"] * 16
        if c == 6:
            kv_setup()
    tg_finish("L_tg1", 1)
    stamp(4)
    a("""s_barrier
         s_branch L_kv01""")

    a.label("L_a23")
    a.vm = []
    a(f"""s_setprio 3
          s_sub_u32 {sr(S_T1)}, {sr(S_WAVE)}, 8
          s_lshl_b32 {sr(S_T2)}, {sr(S_T1)}, 8
          s_xor_b32 {sr(S_T0)}, {sr(S_T0)}, {sr(S_T2)}
          s_lshl_b32 {sr(S_T1)}, {sr(S_T1)}, 14
          s_add_u32 {sr(S_T1)}, {sr(S_T1)}, {L_X}
          s_waitcnt lgkmcnt(0)
          s_mov_b32 {sr(S_X)}, {sr(S_KA+0)}
          s_mov_b32 {sr(S_X+1)}, {sr(S_KA+1)}
          s_load_dword {sr(S_TAG)}, {sr(S_KA+22,2)}, {WS_E}""")
    tag_setup()
    XB = opts.get("xb", 0)
    for c in range(XB): a("s_barrier")
    for i in range(3):
        a(f"""s_add_u32 {sr(S_T3)}, {sr(S_RGJ)}, {i+1}
              s_and_b32 {sr(S_T3)}, {sr(S_T3)}, 3
              s_lshl_b32 {sr(S_T2)}, {sr(S_T3)}, 10
              s_add_u32 {sr(S_U0)}, {sr(S_T2)}, {sr(S_T1)}
              s_lshl_b32 {sr(S_T2)}, {sr(S_T3)}, 14
              s_add_u32 {sr(S_U1)}, {sr(S_T2)}, {sr(S_T0)}""")
        if i > 0 or XB == 0 or True:
            a("s_barrier")
        for k in range(4):
            a(f"s_add_u32 m0, {sr(S_U0)}, {k*4096 - (k%2)*64}")
            a(f"s_xor_b32 {sr(S_U1)}, {sr(S_U1)}, 128" if k == 2 else "s_nop 0")
            a(f"buffer_load_dwordx4 {vr(V_XOFF)}, {sr(S_X,4)}, {sr(S_U1)} offen offset:{(k%2)*64} lds")
        if i == opts.get("kpf", 1):
            srd(S_WOB, 2, 0x180000)
            a(f"""v_lshrrev_b32 {vr(V_T0)}, 3, {vr(V_LANE)}
                  v_mul_u32_u24 {vr(V_T0)}, 3072, {vr(V_T0)}
                  v_and_b32 {vr(V_T1)}, 7, {vr(V_LANE)}
                  v_lshl_add_u32 {vr(V_T0)}, {vr(V_T1)}, 7, {vr(V_T0)}
                  s_mul_i32 {sr(S_T2)}, s2, 6144
                  s_sub_u32 {sr(S_T3)}, {sr(S_WAVE)}, 9
                  s_lshl_b32 {sr(S_T3)}, {sr(S_T3)}, 10
                  s_add_u32 {sr(S_T2)}, {sr(S_T2)}, {sr(S_T3)}
                  s_mov_b64 exec, 0xffff
                  buffer_load_dword {vr(V_FLG)}, {vr(V_T0)}, {sr(S_WOB,4)}, {sr(S_T2)} offen
                  s_mov_b64 exec, -1""")
    assert XB == 0
    kv_setup(); rot_setup(); foff_setup()
    def stageB():
        kv_sample()
        a("s_waitcnt vmcnt(0)")
        kv_spin("L_skvB", False)
        stamp(5)
        kv_dma("L_kvdB", 8, 12)
        a(f"""s_or_b32 {sr(S_T0)}, s2, {sr(S_RT)}
              s_cmp_lg_u32 {sr(S_T0)}, 0
              s_cbranch_scc1 L_noep
              s_mov_b32 {sr(S_T0)}, {WS_E}""")
        flag_store(S_T0)
        a.label("L_noep")
        a.vm = []
    ES = opts.get("es", 5)
    for c in range(3, ES + 1):
        if c == 4: a("s_waitcnt vmcnt(0)")
        a("s_barrier")
    bars_ = {}
    st = -1
    for c in range(ES + 1, 8):
        bars_[st] = bars_.get(st, 0) + 1
        st = 1 if st < 0 else st + opts.get("esp", 1)
    ne, n2 = opts.get("ne", 8), opts.get("n2", 12)
    assert n2 >= ne + 4
    bars_[ne] = bars_.get(ne, 0) + 1
    bars_[n2] = bars_.get(n2, 0) + 1
    kv_pass(bars_, {ne: stageB})

    a.label("L_kvend")
    stamp(12)
    a(f"""v_add_u32 {vr(V_XA0)}, {sr(S_KM)}, {vr(V_L16)}
          s_nop 8
          s_cmp_lt_u32 {sr(S_AUX)}, 2
          s_cbranch_scc1 L_kcvt""")
    phi(KACC[0], 32, 56)
    a(f"""s_cmp_eq_u32 {sr(S_AUX)}, 2
          s_cselect_b32 {sr(S_WOA)}, {sr(S_KA+4)}, {sr(S_KA+14)}
          s_cselect_b32 {sr(S_WOA+1)}, {sr(S_KA+5)}, {sr(S_KA+15)}
          s_mov_b32 {sr(S_WOA+2)}, 0x80000
          s_mov_b32 {sr(S_WOA+3)}, 0x20000
          v_lshlrev_b32 {vr(V_T0)}, 7, {vr(V_LANE)}
          s_lshl_b32 {sr(S_T0)}, s2, 11
          s_mov_b64 exec, 0xffff
          buffer_load_dword {vr(V_FLG)}, {vr(V_T0)}, {sr(S_WOA,4)}, {sr(S_T0)} offen
          s_mov_b64 exec, -1""")
    a.label("L_kcvt")
    for f in range(4):
        for i in range(4):
            a(f"v_cvt_pk_bf16_f32 {vr(56+4*f+i)}, {vr(KACC[0]+8*f+2*i)}, {vr(KACC[0]+8*f+2*i+1)}")
        a(f"ds_write_b128 {vr(V_XA0)}, {vr(56+4*f,4)} offset:{f*1024}")
    a(f"""v_add_u32 {vr(V_T0)}, {sr(S_KM)}, {vr(V_L4)}
          v_add_u32 {vr(V_T1)}, {L_HI}, {vr(V_L4)}
          s_waitcnt lgkmcnt(0)
          ds_write_b32 {vr(V_T0)}, {vr(V_TAG)} offset:4096
          s_mov_b32 {sr(S_SPIN)}, 0""")
    stamp(13)
    a.label("L_rdv")
    for k in range(4):
        a(f"ds_read_b32 {vr(72+k)}, {vr(V_T1)} offset:{4096 + k*8192}")
    a(f"""s_waitcnt lgkmcnt(0)
          v_min3_u32 {vr(76)}, {vr(72)}, {vr(73)}, {vr(74)}
          v_max3_u32 {vr(77)}, {vr(72)}, {vr(73)}, {vr(74)}
          v_min3_u32 {vr(76)}, {vr(76)}, {vr(75)}, {vr(V_TAG)}
          v_max3_u32 {vr(77)}, {vr(77)}, {vr(75)}, {vr(V_TAG)}
          v_cmp_ne_u32 vcc, {vr(76)}, {vr(77)}
          s_cbranch_vccz L_rdv_ok
          s_sleep 4
          s_add_u32 {sr(S_SPIN)}, {sr(S_SPIN)}, 1
          s_cmp_lt_u32 {sr(S_SPIN)}, 1000000
          s_cbranch_scc1 L_rdv""")
    a.label("L_rdv_ok")
    a(f"""s_cmp_lt_u32 {sr(S_AUX)}, 2
          s_cbranch_scc1 L_a01b""")
    rot_setup()
    kv_dma("L_kvdC", 32, 16)
    a("s_waitcnt vmcnt(0)")
    stamp(14)
    if ts: ts_out()
    a("s_endpgm")

    a.label("L_a01b")
    HV, HK_, HKV, HZ, HON = 56, 72, 16, 32, 52
    a(f"""s_lshl_b32 {sr(S_T0)}, {sr(S_AUX)}, 11
          s_add_u32 {sr(S_T0)}, {sr(S_T0)}, {L_HI}
          v_add_u32 {vr(V_T1)}, {sr(S_T0)}, {vr(V_L16)}""")
    for f in range(4):
        off = (f // 2) * 8192 + (f % 2) * 1024
        a(f"ds_read_b128 {vr(HV+4*f,4)}, {vr(V_T1)} offset:{off}")
        a(f"ds_read_b128 {vr(HK_+4*f,4)}, {vr(V_T1)} offset:{16384 + off}")
    for i in range(4):
        a(f"v_mov_b32 {vr(HON+i)}, {sr(S_ONES)}")
    a(f"""v_bfe_u32 {vr(V_T2)}, {vr(V_LANE)}, 3, 1
          v_lshlrev_b32 {vr(V_T2)}, 11, {vr(V_T2)}
          v_and_b32 {vr(V_T3)}, 3, {vr(V_LANE)}
          v_lshl_add_u32 {vr(V_T2)}, {vr(V_T3)}, 9, {vr(V_T2)}
          v_bfe_u32 {vr(V_T3)}, {vr(V_LANE)}, 4, 1
          v_lshl_add_u32 {vr(V_T2)}, {vr(V_T3)}, 3, {vr(V_T2)}
          v_bfe_u32 {vr(V_T3)}, {vr(V_LANE)}, 2, 1
          v_lshl_add_u32 {vr(V_T2)}, {vr(V_T3)}, 2, {vr(V_T2)}
          s_waitcnt lgkmcnt(0)""")
    for f in range(4):
        a(f"v_mfma_f32_32x32x16_bf16 {vr(HKV,16)}, {vr(HK_+4*f,4)}, {vr(HV+4*f,4)}, {'0' if f==0 else vr(HKV,16)}")
        a(f"v_mfma_f32_32x32x16_bf16 {vr(HZ,16)}, {vr(HON,4)}, {vr(HK_+4*f,4)}, {'0' if f==0 else vr(HZ,16)}")
    a(f"""s_lshl_b32 {sr(S_T0)}, {sr(S_HGK)}, 1
          s_add_u32 {sr(S_T0)}, {sr(S_T0)}, {sr(S_AUX)}
          s_lshl_b32 {sr(S_T0)}, {sr(S_T0)}, 12
          s_add_u32 {sr(S_T0)}, {sr(S_T0)}, {WS_ACC}
          s_nop 7""")
    for r in range(8):
        a(f"v_cndmask_b32 {vr(HKV+r)}, {vr(HKV+8+r)}, {vr(HKV+r)}, {sr(S_VMASK,2)}")
    for r in range(8):
        a(f"buffer_atomic_add_f32 {vr(HKV+r)}, {vr(V_L4)}, {sr(S_WS,4)}, {sr(S_T0)} offen offset:{r*512} sc1")
    a(f"""s_mov_b32 exec_hi, 0
          buffer_atomic_add_f32 {vr(HZ)}, {vr(V_T2)}, {sr(S_WS,4)}, {sr(S_T0)} offen offset:256 sc1
          s_mov_b32 exec_hi, -1
          s_lshl_b32 {sr(S_T3)}, {sr(S_HGK)}, 8
          s_lshl_b32 {sr(S_T0)}, {sr(S_QB)}, 1
          s_add_u32 {sr(S_T0)}, {sr(S_T0)}, {sr(S_AUX)}
          s_lshl_b32 {sr(S_T0)}, {sr(S_T0)}, 2
          s_add_u32 {sr(S_T0)}, {sr(S_T0)}, {sr(S_T3)}
          s_add_u32 {sr(S_T0)}, {sr(S_T0)}, {WS_FA}
          s_lshl_b32 {sr(S_T3)}, {sr(S_HGQ)}, 8
          s_add_u32 {sr(S_T3)}, {sr(S_T3)}, {WS_FA}
          s_waitcnt vmcnt(0)""")
    flag_store(S_T0)
    stamp(15)
    a(f"""s_cmp_eq_u32 {sr(S_AUX)}, 1
          s_cbranch_scc1 L_a1b
          s_barrier
          s_mov_b32 {sr(S_SPIN)}, 0""")
    a.label("L_sfa")
    a(f"""buffer_load_dword {vr(V_FLG)}, {vr(V_L4)}, {sr(S_WS,4)}, {sr(S_T3)} offen sc1
          s_waitcnt vmcnt(0)
          v_cmp_ne_u32 vcc, {vr(V_FLG)}, {vr(V_TAG)}
          s_cbranch_vccz L_sfa_ok
          s_add_u32 {sr(S_SPIN)}, {sr(S_SPIN)}, 1
          s_cmp_lt_u32 {sr(S_SPIN)}, 100000
          s_cbranch_scc1 L_sfa""")
    a.label("L_sfa_ok")
    stamp(16)
    if ts: ts_out()
    a("""s_barrier
         s_endpgm""")

    a.label("L_a1b")
    srd(S_WOA, 4, 0x80000)
    srd(S_WOB, 14, 0x80000)
    omap()
    swz64(V_WOFF, 1024)
    stamp(14)
    a("s_barrier")
    def wodma(lbl, srdw, r0, nrows, dst):
        a(f"""s_lshl_b32 {sr(S_T0)}, {sr(S_NS)}, 7
              s_add_u32 {sr(S_T0)}, {sr(S_T0)}, {r0*1024}
              s_mov_b32 m0, {dst}""")
        a.label(lbl)
        a("s_waitcnt vmcnt(40)")
        for i in range(4):
            a(f"buffer_load_dwordx4 {vr(V_WOFF)}, {sr(srdw,4)}, {sr(S_T0)} offen lds")
            a(f"""s_add_u32 m0, m0, 1024
                  s_add_u32 {sr(S_T0)}, {sr(S_T0)}, 8192""")
        a(f"""s_cmp_lt_u32 m0, {dst + nrows*128}
              s_cbranch_scc1 {lbl}""")
    wodma("L_woa", S_WOA, 0, 512, 0)
    stamp(15)
    a("s_barrier")
    wodma("L_wob0", S_WOB, 0, 256, L_HI)
    a("s_waitcnt vmcnt(0)")
    stamp(16)
    a("s_barrier")
    wodma("L_wob1", S_WOB, 256, 256, 65536)
    a("s_waitcnt vmcnt(0)")
    if ts:
        stamp(17)
        ts_out()
    a("""s_barrier
         s_endpgm""")

    head = open("cdna_kernels/" + NAME + ".s.ref").read().split("\n")
    hdr = [l for l in head if l.startswith(";") and "@launch" not in l and "Override" not in l and "grid=ceil" not in l]
    out = "\n".join(hdr) + f"\n; @launch grid=(256,1,1) block=({NWAVE*64},1,1) lds={LDS_SIZE}\n"
    out += f""".amdgcn_target "amdgcn-amd-amdhsa--gfx950"
.text
.globl {NAME}_kernel
.p2align 8
.type {NAME}_kernel,@function
"""
    out += a.text()
    out += f""".section .rodata,"a"
.p2align 6
.amdhsa_kernel {NAME}_kernel
  .amdhsa_next_free_vgpr {NVGPR}
  .amdhsa_next_free_sgpr 102
  .amdhsa_accum_offset {NVGPR}
  .amdhsa_group_segment_fixed_size 0
  .amdhsa_kernarg_size 96
  .amdhsa_user_sgpr_count 2
  .amdhsa_user_sgpr_kernarg_segment_ptr 1
  .amdhsa_system_sgpr_workgroup_id_x 1
.end_amdhsa_kernel
"""
    return out

if __name__ == "__main__":
    opts = {}
    outp = "cdna_kernels/" + NAME + ".s"
    for arg in sys.argv[1:]:
        if arg.startswith("-o"):
            outp = arg[2:]
        elif "=" in arg:
            k, v = arg.split("=")
            opts[k] = int(v)
        else:
            opts[arg] = True
    open(outp, "w").write(gen(opts))
    print("wrote", outp)
```

```python
import sys, math, struct

NAME = "gated_mix__linear_attn_block__grouped_kv_mqa__prompt"

def f2u(x):
    return struct.unpack("<I", struct.pack("<f", x))[0]

class Asm:
    def __init__(self):
        self.lines = []
        self.vm = []
    def __call__(self, s):
        for l in s.split("\n"):
            l = l.strip()
            if l:
                self.lines.append("    " + l)
    def label(self, l):
        self.lines.append(l + ":")
    def vmem(self, s, tag):
        self(s)
        self.vm.append(tag)
        assert len(self.vm) <= 63
    def vm_n(self, tag):
        idx = max(i for i, t in enumerate(self.vm) if t == tag)
        return len(self.vm) - 1 - idx
    def drop_to(self, n):
        self.vm = self.vm[len(self.vm) - n:] if n else []
    def wait_vm(self, tag, extra=""):
        n = 0 if tag is None else self.vm_n(tag)
        self.drop_to(n)
        self(f"s_waitcnt vmcnt({n}) {extra}".strip())
    def text(self):
        return "\n".join(self.lines) + "\n"

def vr(a, n=1):
    return f"v{a}" if n == 1 else f"v[{a}:{a+n-1}]"
def sr(a, n=1):
    return f"s{a}" if n == 1 else f"s[{a}:{a+n-1}]"

WS_E = 0x000000
WS_FKV = 0x000400
WS_FA = 0x001000
WS_FO = 0x004000
WS_G = 0x014000
WS_KV = 0x020000
WS_ACC = 0x040000
WS_KVT = 0x080000
WS_OA = 0x200000
WS_OB = 0x208000
WS_DBG1 = 0x600000
WS_DBG2 = 0x800000
WS_TS = 0xA00000
WS_SIZE = 0x1000000
L_JW = 0
L_X = 65536
L_HI = 131072
L_GW = L_HI + 16384
RSLOT = [16384, 32768, 49152, L_HI]
LDS_SIZE = 163840
LOG2E = 1.4426950408889634
QSCALE = 0.25 * LOG2E
NVGPR = 168
NWAVE = 12

S_HGQ, S_TAG, S_QO, S_NS, S_RDY = 3, 4, 5, 6, 7
S_X, S_W, S_WJ = 8, 12, 16
S_EPS, S_ONES, S_RGJ, S_HGK = 20, 21, 22, 23
S_XMASK, S_HEADA, S_AUX = 24, 26, 27
S_WOA, S_WOB, S_OUT, S_DBG, S_WS = 28, 32, 36, 40, 44
S_WAVE, S_QB, S_HG, S_RT, S_HH = 48, 49, 50, 51, 52
S_T0, S_T1, S_T2, S_T3 = 53, 54, 55, 56
S_U0, S_U1, S_U2, S_U3 = 57, 58, 59, 60
S_SEG, S_SPIN, S_HEAD = 61, 62, 63
S_VMASK, S_RT32, S_RO32, S_SAVE = 64, 66, 67, 40
S_LOG2E, S_QS = 70, 72
S_TS = 74
S_J = 69
S_XCC, S_FAST = 18, 19
S_KA = 76

def gen(opts):
    ts = opts.get("ts", False)
    dbg = opts.get("dbg", False)
    a = Asm()
    V_STAMP = NVGPR - 1

    def stamp(i):
        if "dly" in opts:
            if i == opts.get("dly0", 0): a("s_memrealtime s[74:75]")
            if i == opts["dly"]: a("s_memrealtime s[100:101]")
        if not ts: return
        a(f"""s_memrealtime {sr(S_TS,2)}
              s_memtime s[100:101]
              s_waitcnt lgkmcnt(0)
              v_writelane_b32 v{V_STAMP}, {sr(S_TS)}, {i}
              v_writelane_b32 v{V_STAMP}, s100, {32+i}""")

    V_LANE = 1
    V_T0, V_T1, V_T2, V_T3 = 2, 3, 4, 5
    V_XOFF, V_WOFF = 6, 7
    V_XA0, V_XA1, V_WA = 8, 9, 10
    V_L16, V_G, V_IDX, V_KA, V_VA = 11, 12, 13, 14, 15
    V_QF, V_PQ = 16, 20
    V_ACCQ = 24
    V_FB = [40, 72]
    V_O, V_C, V_KF = 104, 120, 136
    V_VF = [140, 148]
    V_L4, V_FLG, V_TAG, V_WOA0, V_WOA1, V_WA3 = 156, 157, 158, 159, 160, 161
    V_PK = 162
    V_S = [24, 40]
    V_AC, V_OA = 56, 72
    V_FA, V_FBB, V_WO = 56, 120, 88
    V_OUT = [24, 40]

    def srd(s, ka, size):
        a(f"""s_mov_b32 {sr(s)}, {sr(S_KA+ka)}
              s_mov_b32 {sr(s+1)}, {sr(S_KA+ka+1)}
              s_mov_b32 {sr(s+2)}, {hex(size)}
              s_mov_b32 {sr(s+3)}, 0x20000""")
    def flag_store(soff):
        a(f"""s_mov_b64 exec, 1
              buffer_store_dword {vr(V_TAG)}, {vr(V_L4)}, {sr(S_WS,4)}, {sr(soff)} offen sc1
              s_mov_b64 exec, -1""")
    def flag_load(soff):
        a(f"""s_mov_b32 exec_hi, 0
              buffer_load_dword {vr(V_FLG)}, {vr(V_L4)}, {sr(S_WS,4)}, {sr(soff)} offen sc1
              s_mov_b32 exec_hi, -1""")
    def flag_spin(lbl, soff):
        a(f"s_mov_b32 {sr(S_SPIN)}, 0")
        a.label(lbl + "_loop")
        a(f"""v_cmp_ne_u32 vcc, {vr(V_FLG)}, {vr(V_TAG)}
              s_cmp_eq_u32 vcc_lo, 0
              s_cbranch_scc1 {lbl}_ok
              s_add_u32 {sr(S_SPIN)}, {sr(S_SPIN)}, 1
              s_cmp_ge_u32 {sr(S_SPIN)}, 100000
              s_cbranch_scc1 {lbl}_ok""")
        flag_load(soff)
        a(f"""s_waitcnt vmcnt(0)
              s_branch {lbl}_loop""")
        a.label(lbl + "_ok")
    def arm_spin(lbl, soff):
        a(f"s_mov_b32 {sr(S_SPIN)}, 0")
        a.label(lbl + "_loop")
        a(f"""v_sub_u32 {vr(V_FLG)}, {vr(V_FLG)}, {vr(V_TAG)}
              v_cmp_lt_u32 vcc, 15, {vr(V_FLG)}
              s_cmp_eq_u32 vcc_lo, 0
              s_cbranch_scc1 {lbl}_ok
              s_add_u32 {sr(S_SPIN)}, {sr(S_SPIN)}, 1
              s_cmp_ge_u32 {sr(S_SPIN)}, 100000
              s_cbranch_scc1 {lbl}_ok""")
        flag_load(soff)
        a(f"""s_waitcnt vmcnt(0)
              s_branch {lbl}_loop""")
        a.label(lbl + "_ok")
    def tag_setup():
        a(f"""s_waitcnt lgkmcnt(0)
              s_mul_i32 {sr(S_TAG)}, {sr(S_TAG)}, 0x9e3779b1
              s_add_u32 {sr(S_TAG)}, {sr(S_TAG)}, 0x7f4a7c15
              v_mov_b32 {vr(V_TAG)}, {sr(S_TAG)}""")
    def omap():
        a(f"""s_and_b32 {sr(S_QO)}, s2, 7
              s_lshl_b32 {sr(S_QO)}, {sr(S_QO)}, 2
              s_bfe_u32 {sr(S_T1)}, s2, 0x20003
              s_add_u32 {sr(S_QO)}, {sr(S_QO)}, {sr(S_T1)}
              s_lshr_b32 {sr(S_NS)}, s2, 5""")
    def ts_out():
        a(f"""s_mul_i32 {sr(S_T0)}, s2, {NWAVE}
              s_add_u32 {sr(S_T0)}, {sr(S_T0)}, {sr(S_WAVE)}
              s_lshl_b32 {sr(S_T0)}, {sr(S_T0)}, 8
              s_add_u32 {sr(S_T0)}, {sr(S_T0)}, {WS_TS}
              buffer_store_dword v{V_STAMP}, {vr(V_L4)}, {sr(S_WS,4)}, {sr(S_T0)} offen""")
    def phi(src, n, tmp):
        for i in range(0, n, 2):
            a(f"v_pk_mul_f32 {vr(tmp+i,2)}, {sr(S_LOG2E,2)}, {vr(src+i,2)}")
        for i in range(n):
            a(f"v_exp_f32 {vr(tmp+i)}, {vr(tmp+i)} clamp")
        for i in range(n):
            a(f"v_max_f32 {vr(src+i)}, {sr(S_EPS)}, {vr(src+i)}")
        for i in range(0, n, 2):
            a(f"v_pk_add_f32 {vr(src+i,2)}, {vr(src+i,2)}, {vr(tmp+i,2)}")

    a.label(f"{NAME}_kernel")
    a(f"""s_cmp_ge_u32 s2, 256
          s_cbranch_scc1 L_end
          s_load_dwordx16 {sr(S_KA,16)}, s[0:1], 0
          s_load_dwordx8 {sr(S_KA+16,8)}, s[0:1], 64
          v_and_b32 {vr(V_LANE)}, 63, v0
          v_lshrrev_b32 {vr(V_T0)}, 6, v0
          s_and_b32 {sr(S_T0)}, s2, 7
          v_readfirstlane_b32 {sr(S_WAVE)}, {vr(V_T0)}
          s_lshl_b32 {sr(S_T0)}, {sr(S_T0)}, 2
          s_bfe_u32 {sr(S_T1)}, s2, 0x20003
          s_add_u32 {sr(S_QB)}, {sr(S_T0)}, {sr(S_T1)}
          s_sub_u32 {sr(S_WAVE)}, {sr(S_WAVE)}, 4
          s_cselect_b32 {sr(S_T1)}, 12, 0
          s_add_u32 {sr(S_WAVE)}, {sr(S_WAVE)}, {sr(S_T1)}
          s_lshr_b32 {sr(S_HG)}, s2, 5
          s_lshr_b32 {sr(S_RGJ)}, {sr(S_HG)}, 1
          s_xor_b32 {sr(S_HGQ)}, {sr(S_HG)}, 1
          s_xor_b32 {sr(S_HGK)}, {sr(S_HG)}, 2""")
    stamp(0)
    a(f"""v_lshrrev_b32 {vr(V_T0)}, 4, {vr(V_LANE)}
          v_xor_b32 {vr(V_T0)}, {vr(V_T0)}, {vr(V_LANE)}
          v_and_b32 {vr(V_T0)}, 3, {vr(V_T0)}
          v_lshlrev_b32 {vr(V_T0)}, 4, {vr(V_T0)}
          v_lshrrev_b32 {vr(V_T1)}, 2, {vr(V_LANE)}
          v_lshl_add_u32 {vr(V_XOFF)}, {vr(V_T1)}, 10, {vr(V_T0)}
          v_lshlrev_b32 {vr(V_L16)}, 4, {vr(V_LANE)}
          v_lshlrev_b32 {vr(V_L4)}, 2, {vr(V_LANE)}
          s_mov_b32 {sr(S_X+2)}, 0x200000
          s_mov_b32 {sr(S_X+3)}, 0x20000
          s_and_b32 {sr(S_J)}, s2, {opts.get("jmask", 7)}
          s_lshl_b32 {sr(S_T0)}, {sr(S_QB)}, 16
          s_lshl_b32 {sr(S_T1)}, {sr(S_J)}, 7
          s_or_b32 {sr(S_T0)}, {sr(S_T0)}, {sr(S_T1)}
          s_cmp_eq_u32 {sr(S_WAVE)}, 8
          s_cbranch_scc1 L_a0
          s_cmp_eq_u32 {sr(S_WAVE)}, 9
          s_cbranch_scc1 L_a1
          s_cmp_ge_u32 {sr(S_WAVE)}, 10
          s_cbranch_scc1 L_a23
          s_and_b32 {sr(S_RT)}, {sr(S_WAVE)}, 1
          s_lshr_b32 {sr(S_HH)}, {sr(S_WAVE)}, 1""")
    S_XOFF, S_XM0 = S_U0, S_U1
    a(f"""s_and_b32 {sr(S_T1)}, {sr(S_WAVE)}, 3
          s_lshr_b32 {sr(S_T2)}, {sr(S_WAVE)}, 2
          s_lshl_b32 {sr(S_T3)}, {sr(S_T1)}, 14
          s_add_u32 {sr(S_XOFF)}, {sr(S_T0)}, {sr(S_T3)}
          s_lshl_b32 {sr(S_T3)}, {sr(S_T2)}, 7
          s_xor_b32 {sr(S_XOFF)}, {sr(S_XOFF)}, {sr(S_T3)}
          s_lshl_b32 {sr(S_XM0)}, {sr(S_T1)}, 10
          s_lshl_b32 {sr(S_T3)}, {sr(S_T2)}, 13
          s_add_u32 {sr(S_XM0)}, {sr(S_XM0)}, {sr(S_T3)}
          s_cmp_eq_u32 {sr(S_T1)}, {sr(S_RGJ)}
          s_cselect_b64 {sr(S_XMASK,2)}, 1, -1""")
    a(f"""v_lshrrev_b32 {vr(V_T0)}, 3, {vr(V_LANE)}
          v_and_b32 {vr(V_T3)}, 7, {vr(V_LANE)}
          v_lshlrev_b32 {vr(V_T3)}, 7, {vr(V_T3)}
          v_lshl_add_u32 {vr(V_T2)}, {vr(V_T0)}, 10, {vr(V_T3)}
          v_mul_u32_u24 {vr(V_T0)}, 3072, {vr(V_T0)}
          v_add_u32 {vr(V_T0)}, {vr(V_T0)}, {vr(V_T3)}
          s_xor_b32 {sr(S_T2)}, {sr(S_WAVE)}, {sr(S_J)}
          s_lshl_b32 {sr(S_T2)}, {sr(S_T2)}, 5
          s_lshr_b32 {sr(S_T3)}, s2, 3
          s_add_u32 {sr(S_T2)}, {sr(S_T2)}, {sr(S_T3)}
          s_lshl_b32 {sr(S_U2)}, {sr(S_T2)}, 11
          s_mul_i32 {sr(S_U3)}, {sr(S_T2)}, 6144
          s_lshl_b32 {sr(S_T3)}, {sr(S_HG)}, 13
          s_lshl_b32 {sr(S_RDY)}, {sr(S_WAVE)}, 10
          s_add_u32 {sr(S_T3)}, {sr(S_T3)}, {sr(S_RDY)}
          s_lshl_b32 {sr(S_RDY)}, {sr(S_QB)}, 16
          s_add_u32 {sr(S_T3)}, {sr(S_T3)}, {sr(S_RDY)}
          s_waitcnt lgkmcnt(0)
          s_mov_b32 {sr(S_X)}, {sr(S_KA+0)}
          s_mov_b32 {sr(S_X+1)}, {sr(S_KA+1)}
          s_load_dword {sr(S_TAG)}, {sr(S_KA+22,2)}, {WS_E}""")
    def xdma(r):
        a(f"s_xor_b32 {sr(S_T1)}, {sr(S_XOFF)}, {r*256}")
        a(f"s_add_u32 m0, {sr(S_XM0)}, {L_X + r*16384}")
        a(f"s_mov_b64 exec, {sr(S_XMASK,2)}")
        a.vmem(f"buffer_load_dwordx4 {vr(V_XOFF)}, {sr(S_X,4)}, {sr(S_T1)} offen lds", f"x{r}")
        a(f"s_add_u32 m0, {sr(S_XM0)}, {L_X + r*16384 + 4096 - 64}")
        a("s_nop 0")
        a.vmem(f"buffer_load_dwordx4 {vr(V_XOFF)}, {sr(S_X,4)}, {sr(S_T1)} offen offset:64 lds", f"x{r}")
        a("s_mov_b64 exec, -1")
    PF = opts.get("pf", 0)
    if not PF & 4: xdma(0)
    if PF & 1:
        a("s_mov_b64 exec, 0xff")
        a.vmem(f"buffer_load_dword {vr(V_FLG)}, {vr(V_T3)}, {sr(S_X,4)}, {sr(S_T3)} offen", "pf")
        a("s_mov_b64 exec, -1")
    if PF & 2:
        srd(S_W, 8, 0x80000)
        srd(S_WOB, 2, 0x180000)
        a(f"""s_lshl_b32 {sr(S_U2)}, s2, 11
              s_mul_i32 {sr(S_U3)}, s2, 6144
              s_cmp_eq_u32 {sr(S_WAVE)}, 0
              s_cselect_b64 exec, 0xffff, 1""")
        a.vmem(f"buffer_load_dword {vr(V_FLG)}, {vr(V_T2)}, {sr(S_W,4)}, {sr(S_U2)} offen", "pf")
        a.vmem(f"buffer_load_dword {vr(V_FLG)}, {vr(V_T0)}, {sr(S_WOB,4)}, {sr(S_U3)} offen", "pf")
        a("s_mov_b64 exec, -1")
    if PF & 4: xdma(0)
    srd(S_WS, 22, WS_SIZE)
    srd(S_OUT, 18, 0x200000)
    omap()
    a(f"""v_lshlrev_b32 {vr(V_T2)}, 15, {vr(V_LANE)}
          s_lshl_b32 {sr(S_T1)}, {sr(S_QB)}, 17
          s_lshl_b32 {sr(S_T2)}, {sr(S_QO)}, 17
          s_cmp_eq_u32 {sr(S_WAVE)}, 1
          s_cselect_b32 {sr(S_T1)}, {sr(S_T1)}, {sr(S_T2)}
          s_add_u32 {sr(S_T1)}, {sr(S_T1)}, {WS_OA}
          s_cmp_eq_u32 {sr(S_WAVE)}, 0
          s_cselect_b32 {sr(S_T1)}, 0x380, {sr(S_T1)}
          s_cselect_b32 exec_lo, 0xffffff, 15
          s_mov_b32 exec_hi, 0
          s_cmp_ge_u32 {sr(S_WAVE)}, 3
          s_cbranch_scc1 L_tlb1
          buffer_load_dword {vr(V_FLG)}, {vr(V_T2)}, {sr(S_WS,4)}, {sr(S_T1)} offen sc1
          s_branch L_tlb2""")
    a.label("L_tlb1")
    a(f"""s_lshl_b32 {sr(S_T1)}, {sr(S_QO)}, 16
          s_mov_b32 exec_lo, 3
          buffer_load_dword {vr(V_FLG)}, {vr(V_T2)}, {sr(S_OUT,4)}, {sr(S_T1)} offen""")
    a.label("L_tlb2")
    a("s_mov_b64 exec, -1")
    a.vm.append("tlb")
    xdma(1)
    def consts():
        a(f"""s_mov_b32 {sr(S_VMASK)}, 0xffff
              s_mov_b32 {sr(S_VMASK+1)}, 0xffff
              s_mov_b32 {sr(S_LOG2E)}, {hex(f2u(LOG2E))}
              s_mov_b32 {sr(S_LOG2E+1)}, {hex(f2u(LOG2E))}
              s_mov_b32 {sr(S_EPS)}, {hex(f2u(1e-6))}
              s_mov_b32 {sr(S_ONES)}, 0x3f803f80""")
    def xfrag_addr(rt_s):
        a(f"""v_and_b32 {vr(V_T0)}, 31, {vr(V_LANE)}
              v_lshrrev_b32 {vr(V_T1)}, 5, {vr(V_LANE)}
              v_bfe_u32 {vr(V_T2)}, {vr(V_LANE)}, 2, 2
              v_xor_b32 {vr(V_T2)}, {vr(V_T2)}, {vr(V_T1)}
              v_lshlrev_b32 {vr(V_T2)}, 4, {vr(V_T2)}
              v_lshl_add_u32 {vr(V_T3)}, {vr(V_T0)}, 6, {vr(V_T2)}
              s_lshl_b32 {sr(S_T0)}, {sr(rt_s)}, 11
              s_add_u32 {sr(S_T0)}, {sr(S_T0)}, {L_X}
              v_add_u32 {vr(V_XA0)}, {sr(S_T0)}, {vr(V_T3)}
              v_xor_b32 {vr(V_XA1)}, 32, {vr(V_XA0)}""")
    consts()
    a(f"""s_lshl_b32 {sr(S_HEAD)}, {sr(S_HG)}, 2
          s_add_u32 {sr(S_HEAD)}, {sr(S_HEAD)}, {sr(S_HH)}
          s_lshl_b32 {sr(S_HEADA)}, {sr(S_HGQ)}, 2
          s_add_u32 {sr(S_HEADA)}, {sr(S_HEADA)}, {sr(S_HH)}
          s_lshl_b32 {sr(S_RT32)}, {sr(S_QB)}, 1
          s_add_u32 {sr(S_RT32)}, {sr(S_RT32)}, {sr(S_RT)}
          s_lshl_b32 {sr(S_RO32)}, {sr(S_QO)}, 1
          s_add_u32 {sr(S_RO32)}, {sr(S_RO32)}, {sr(S_RT)}
          s_mov_b32 {sr(S_QS)}, {hex(f2u(QSCALE))}
          s_mov_b32 {sr(S_QS+1)}, {hex(f2u(QSCALE))}""")
    xfrag_addr(S_RT)
    a(f"""v_bfe_u32 {vr(V_T0)}, {vr(V_LANE)}, 4, 1
          v_bfe_u32 {vr(V_T2)}, {vr(V_LANE)}, 3, 2
          v_xor_b32 {vr(V_T2)}, {sr(S_HH)}, {vr(V_T2)}
          v_lshlrev_b32 {vr(V_T2)}, 5, {vr(V_T2)}
          v_lshl_add_u32 {vr(V_T2)}, {vr(V_T0)}, 13, {vr(V_T2)}
          v_lshl_add_u32 {vr(V_T2)}, {vr(V_T1)}, 10, {vr(V_T2)}
          v_bfe_u32 {vr(V_T0)}, {vr(V_LANE)}, 2, 2
          v_lshl_add_u32 {vr(V_T2)}, {vr(V_T0)}, 7, {vr(V_T2)}
          v_and_b32 {vr(V_T0)}, 3, {vr(V_LANE)}
          v_lshl_add_u32 {vr(V_WA)}, {vr(V_T0)}, 3, {vr(V_T2)}
          v_add_u32 {vr(V_WA3)}, {L_HI}, {vr(V_WA)}""")
    for i in range(8):
        a(f"v_mov_b32 {vr(V_ACCQ+i)}, 0")
        a(f"v_mov_b32 {vr(V_ACCQ+8+i)}, {sr(S_EPS)}")
    a(f"""v_mov_b32 {vr(V_T0)}, {sr(S_ONES)}
          s_mov_b32 {sr(S_SAVE)}, 0x110000
          s_mov_b32 {sr(S_SAVE+1)}, 0x110000
          v_cndmask_b32 {vr(V_T0)}, 0, {vr(V_T0)}, {sr(S_SAVE,2)}""")
    for i in range(16):
        a(f"v_mov_b32 {vr(V_O+i)}, 0")
        a(f"v_mov_b32 {vr(V_VF[0]+i)}, {vr(V_T0)}")
    a(f"""v_mov_b32 {vr(V_IDX)}, 0xdddd
          v_mov_b32 {vr(V_KA)}, {vr(V_L16)}
          v_and_b32 {vr(V_T3)}, 15, {vr(V_LANE)}
          v_lshlrev_b32 {vr(V_T3)}, 4, {vr(V_T3)}
          v_lshl_add_u32 {vr(V_VA)}, {vr(V_T1)}, 8, {vr(V_T3)}""")
    V_GA, V_ACA, V_ARM = V_WOFF, 166, 0
    S_GOFF, S_MYFO, S_INFO, S_ACC = 28, 29, 30, 31
    def ooff(dst, base):
        a(f"""s_lshl_b32 {sr(dst)}, {sr(S_RT32)}, 6
              s_add_u32 {sr(dst)}, {sr(dst)}, {sr(S_HEADA if base == WS_OA else S_HEAD)}
              s_lshl_b32 {sr(dst)}, {sr(dst)}, 10
              s_add_u32 {sr(dst)}, {sr(dst)}, {base}""")
    ooff(S_RDY, WS_OB)
    ooff(S_AUX, WS_OA)
    a(f"""v_and_b32 {vr(V_T0)}, 0x3c, {vr(V_L4)}
          v_bfe_u32 {vr(V_T1)}, {vr(V_LANE)}, 4, 1
          v_lshl_add_u32 {vr(V_GA)}, {vr(V_T1)}, 7, {vr(V_T0)}
          s_lshl_b32 {sr(S_GOFF)}, {sr(S_RT32)}, 8
          s_add_u32 {sr(S_GOFF)}, {sr(S_GOFF)}, {WS_G}
          v_mov_b32 {vr(V_PK)}, -1
          v_mov_b32 {vr(V_PK+1)}, -1
          v_mov_b32 {vr(V_PK+2)}, -1
          v_mov_b32 {vr(V_PK+3)}, -1
          s_lshl_b32 {sr(S_MYFO)}, {sr(S_RT32)}, 5
          s_add_u32 {sr(S_MYFO)}, {sr(S_MYFO)}, {sr(S_HEAD)}
          s_lshl_b32 {sr(S_MYFO)}, {sr(S_MYFO)}, 2
          s_add_u32 {sr(S_MYFO)}, {sr(S_MYFO)}, {WS_FO}
          s_getreg_b32 {sr(S_XCC)}, hwreg(HW_REG_XCC_ID, 0, 4)
          v_lshrrev_b32 {vr(V_T0)}, 5, {vr(V_LANE)}
          v_lshlrev_b32 {vr(V_T0)}, 9, {vr(V_T0)}
          v_bfe_u32 {vr(V_T1)}, {vr(V_LANE)}, 2, 2
          v_lshl_add_u32 {vr(V_T0)}, {vr(V_T1)}, 7, {vr(V_T0)}
          v_bfe_u32 {vr(V_T1)}, {vr(V_LANE)}, 3, 1
          v_lshl_add_u32 {vr(V_T0)}, {vr(V_T1)}, 6, {vr(V_T0)}
          v_bfe_u32 {vr(V_T1)}, {vr(V_LANE)}, 4, 1
          v_lshl_add_u32 {vr(V_T0)}, {vr(V_T1)}, 5, {vr(V_T0)}
          v_and_b32 {vr(V_T1)}, 3, {vr(V_LANE)}
          v_lshl_add_u32 {vr(V_T0)}, {vr(V_T1)}, 3, {vr(V_T0)}
          s_lshl_b32 {sr(S_T0)}, {sr(S_HH)}, 14
          v_add_u32 {vr(V_WOA0)}, {sr(S_T0)}, {vr(V_T0)}
          v_xor_b32 {vr(V_WOA1)}, 64, {vr(V_WOA0)}
          s_lshl_b32 {sr(S_U0)}, {sr(S_RO32)}, 3
          s_add_u32 {sr(S_U0)}, {sr(S_U0)}, {sr(S_HH)}
          s_lshl_b32 {sr(S_U0)}, {sr(S_U0)}, 13
          s_add_u32 {sr(S_U0)}, {sr(S_U0)}, {WS_OA}
          s_add_u32 {sr(S_U1)}, {sr(S_U0)}, 4096
          s_lshl_b32 {sr(S_U2)}, {sr(S_RO32)}, 4
          s_add_u32 {sr(S_U2)}, {sr(S_U2)}, {sr(S_HH)}
          s_lshl_b32 {sr(S_U2)}, {sr(S_U2)}, 12
          s_add_u32 {sr(S_U2)}, {sr(S_U2)}, {WS_OB}
          s_add_u32 {sr(S_U3)}, {sr(S_U2)}, 16384
          s_and_b32 {sr(S_T1)}, {sr(S_HEADA)}, 1
          v_lshrrev_b32 {vr(V_T1)}, 5, {vr(V_LANE)}
          s_lshl_b32 {sr(S_T2)}, {sr(S_T1)}, 1
          s_add_u32 {sr(S_T2)}, {sr(S_T2)}, 64
          v_add_u32 {vr(V_T1)}, {sr(S_T2)}, {vr(V_T1)}
          v_and_b32 {vr(V_T0)}, 0x2f, {vr(V_LANE)}
          s_lshl_b32 {sr(S_T2)}, {sr(S_T1)}, 4
          v_add_u32 {vr(V_T0)}, {sr(S_T2)}, {vr(V_T0)}
          v_cndmask_b32 {vr(V_T0)}, {vr(V_T0)}, {vr(V_T1)}, {sr(S_VMASK,2)}
          v_lshlrev_b32 {vr(V_ACA)}, 2, {vr(V_T0)}
          s_lshr_b32 {sr(S_ACC)}, {sr(S_HEADA)}, 1
          s_lshl_b32 {sr(S_ACC)}, {sr(S_ACC)}, 12
          s_add_u32 {sr(S_ACC)}, {sr(S_ACC)}, {WS_ACC}
          s_lshl_b32 {sr(S_INFO)}, {sr(S_RO32)}, 7
          s_add_u32 {sr(S_INFO)}, {sr(S_INFO)}, {WS_FO}""")
    tag_setup()
    a(f"v_add_u32 {vr(V_ARM)}, {sr(S_XCC)}, {vr(V_TAG)}")
    stamp(1)

    def reads(c):
        fb = V_FB[c % 2]
        s = c % 4
        wa, wo = (V_WA, RSLOT[s]) if s < 3 else (V_WA3, 0)
        r = []
        for p in range(4):
            r.append(f"ds_read_b128 {vr(fb+4*p,4)}, {vr(V_XA0 if p%2==0 else V_XA1)} offset:{(2*c + p//2)*4096}")
            for u in range(2):
                r.append(f"ds_read_b64_tr_b16 {vr(fb+16+4*p+2*u,2)}, {vr(wa)} offset:{wo + p*2048 + u*512}")
        return r
    def mfmas(c):
        fb = V_FB[c % 2]
        return [f"v_mfma_f32_32x32x16_bf16 {vr(V_ACCQ,16)}, {vr(fb+16+4*p,4)}, {vr(fb+4*p,4)}, {vr(V_ACCQ,16)}" for p in range(4)]
    for c in range(8):
        if c in (0, 2):
            a.wait_vm(f"x{c//2}", "lgkmcnt(0)")
        else:
            a("s_waitcnt lgkmcnt(0)")
        a("s_barrier")
        R_ = reads(c)
        if c == 0:
            for r in R_: a(r)
        else:
            M_ = mfmas(c - 1)
            for k in range(4):
                a(M_[k])
                for r in R_[4*k:4*k+4]: a(r)
    for k, m in enumerate(mfmas(7)):
        a(f"s_waitcnt lgkmcnt({9-3*k})")
        a(m)
    stamp(2)
    E = V_FB[0]
    a(f"""s_mov_b32 {sr(S_SEG)}, 0
          s_nop 10""")
    for i in range(0, 8, 2):
        a(f"v_pk_mul_f32 {vr(V_ACCQ+i,2)}, {sr(S_QS,2)}, {vr(V_ACCQ+i,2)}")
    for i in range(4):
        a(f"v_cvt_pk_bf16_f32 {vr(V_QF+i)}, {vr(V_ACCQ+2*i)}, {vr(V_ACCQ+2*i+1)}")
    phi(V_ACCQ + 8, 8, E)
    for i in range(4):
        a(f"v_cvt_pk_bf16_f32 {vr(V_PQ+i)}, {vr(V_ACCQ+8+2*i)}, {vr(V_ACCQ+8+2*i+1)}")
    stamp(3)
    a("s_barrier")
    a("s_setprio 3")
    stamp(4)
    a(f"""ds_read_b128 {vr(V_KF,4)}, {vr(V_KA)}
          s_mov_b64 exec, {sr(S_VMASK,2)}
          ds_read_b128 {vr(V_VF[0],4)}, {vr(V_VA)} offset:1024
          ds_read_b128 {vr(V_VF[0]+4,4)}, {vr(V_VA)} offset:1536
          ds_read_b128 {vr(V_VF[1],4)}, {vr(V_VA)} offset:{2048+1024}
          ds_read_b128 {vr(V_VF[1]+4,4)}, {vr(V_VA)} offset:{2048+1536}
          s_mov_b64 exec, -1
          s_waitcnt lgkmcnt(4)
          v_mfma_f32_32x32x16_bf16 {vr(V_S[0],16)}, {vr(V_KF,4)}, {vr(V_QF,4)}, 0
          ds_read_b128 {vr(V_KF,4)}, {vr(V_KA)} offset:2048""")
    if dbg:
        for reg, hd, base in ((V_QF, S_HEAD, WS_DBG1), (V_PQ, S_HEADA, WS_DBG2)):
            a(f"""s_lshl_b32 {sr(S_T0)}, {sr(S_RT32)}, 5
                  s_add_u32 {sr(S_T0)}, {sr(S_T0)}, {sr(hd)}
                  s_lshl_b32 {sr(S_T0)}, {sr(S_T0)}, 10
                  s_add_u32 {sr(S_T1)}, {sr(S_T0)}, {base}
                  buffer_store_dwordx4 {vr(reg,4)}, {vr(V_L16)}, {sr(S_WS,4)}, {sr(S_T1)} offen""")
    S0 = V_S[0]
    a(f"""s_nop 10
          v_max3_f32 {vr(V_T0)}, {vr(S0)}, {vr(S0+1)}, {vr(S0+2)}
          v_max3_f32 {vr(V_T1)}, {vr(S0+3)}, {vr(S0+4)}, {vr(S0+5)}
          v_max3_f32 {vr(V_T2)}, {vr(S0+6)}, {vr(S0+7)}, {vr(S0+8)}
          v_max3_f32 {vr(V_T3)}, {vr(S0+9)}, {vr(S0+10)}, {vr(S0+11)}
          v_max3_f32 {vr(V_T0)}, {vr(V_T0)}, {vr(S0+12)}, {vr(S0+13)}
          v_max3_f32 {vr(V_T1)}, {vr(V_T1)}, {vr(S0+14)}, {vr(S0+15)}
          v_max3_f32 {vr(V_T0)}, {vr(V_T0)}, {vr(V_T1)}, {vr(V_T2)}
          v_max_f32 {vr(V_T0)}, {vr(V_T0)}, {vr(V_T3)}
          v_mov_b32 {vr(V_T1)}, {vr(V_T0)}
          s_nop 1
          v_permlane32_swap_b32 {vr(V_T0)}, {vr(V_T1)}
          s_nop 1
          v_max_f32 {vr(V_T0)}, {vr(V_T0)}, {vr(V_T1)}
          v_sub_f32 {vr(V_T2)}, 0, {vr(V_T0)}
          v_sub_f32 {vr(V_T3)}, 0, {vr(V_T0)}""")
    for i in range(0, 16, 2):
        a(f"v_pk_add_f32 {vr(S0+i,2)}, {vr(S0+i,2)}, {vr(V_T2,2)}")
    for i in range(0, 16, 2):
        a(f"v_pk_mov_b32 {vr(V_C+i,2)}, {vr(V_T2,2)}, {vr(V_T2,2)} op_sel:[0,1]")
    a(f"""v_exp_f32 {vr(S0)}, {vr(S0)}
          v_exp_f32 {vr(S0+1)}, {vr(S0+1)}
          s_waitcnt lgkmcnt(0)""")
    stamp(5)

    PR = opts.get("ramp", "3210")
    PR = [int(ch) for ch in str(PR).zfill(4)]
    def oload(i, dst, br):
        so = [[S_U0, S_U1], [S_U2, S_U3]][br][i // 4]
        a(f"buffer_load_dwordx4 {vr(dst+4*i,4)}, {vr(V_L16)}, {sr(S_WS,4)}, {sr(so)} offen offset:{(i%4)*1024} sc1")
    def osan():
        for i in range(4):
            a(f"v_min_u32 {vr(V_PK+i)}, -2, {vr(V_PK+i)}")
    ins = {}
    def at(p, slot, fn): ins.setdefault((p, slot), []).append(fn)
    HK = 8 * opts.get("hk", 3)
    H5 = opts.get('h5', 40)
    bars = {8: (2, 11), 32: (0, 13), H5: (2, 17), 48: (0, 19)}
    at(8, "B", lambda: a(f"buffer_load_dword {vr(V_G)}, {vr(V_GA)}, {sr(S_WS,4)}, {sr(S_GOFF)} offen sc1"))
    at(9, "A", lambda: a(f"buffer_store_dwordx4 {vr(V_PK,4)}, {vr(V_L16)}, {sr(S_WS,4)}, {sr(S_RDY)} offen sc1"))
    at(10, "A", lambda: a(f"buffer_store_dwordx4 {vr(V_PK,4)}, {vr(V_L16)}, {sr(S_WS,4)}, {sr(S_AUX)} offen sc1"))
    at(20, "A", lambda: a(f"""s_waitcnt vmcnt(0)
                              s_mov_b64 exec, 1
                              buffer_store_dword {vr(V_ARM)}, {vr(V_L4)}, {sr(S_WS,4)}, {sr(S_MYFO)} offen sc1
                              s_mov_b64 exec, -1"""))
    for r in range(8):
        at(H5 + r // 2, "AB"[r % 2], lambda r=r: a(f"buffer_load_dword {vr(V_AC+r)}, {vr(V_ACA)}, {sr(S_WS,4)}, {sr(S_ACC)} offen offset:{r*512} sc1"))
    at(38, "A", lambda: flag_load(S_INFO))
    PO = opts.get("po", H5 + 7)
    def oa1():
        a("s_waitcnt vmcnt(0)")
        for i in range(4):
            a(f"v_cvt_pk_bf16_f32 {vr(V_AC+8+i)}, {vr(V_AC+2*i)}, {vr(V_AC+2*i+1)}")
    at(PO, "A", oa1)
    at(PO, "B", lambda: a(f"v_mfma_f32_32x32x16_bf16 {vr(V_OA,16)}, {vr(V_AC+8,4)}, {vr(V_PQ,4)}, 0"))
    at(PO + 1, "B", lambda: a(f"""v_add_f32 {vr(V_T0)}, {sr(S_EPS)}, {vr(V_OA)}
                                  v_rcp_f32 {vr(V_T0)}, {vr(V_T0)}"""))
    def oa2():
        a(f"v_mul_f32 {vr(V_T0)}, {vr(V_T0)}, {vr(V_G)}")
        for i in range(0, 8, 2):
            a(f"v_pk_mul_f32 {vr(V_OA+8+i,2)}, {vr(V_OA+8+i,2)}, {vr(V_T0,2)} op_sel_hi:[1,0]")
        for i in range(4):
            a(f"v_cvt_pk_bf16_f32 {vr(V_PK+i)}, {vr(V_OA+8+2*i)}, {vr(V_OA+8+2*i+1)}")
        osan()
        a(f"buffer_store_dwordx4 {vr(V_PK,4)}, {vr(V_L16)}, {sr(S_WS,4)}, {sr(S_AUX)} offen sc1")
        a(f"v_sub_f32 {vr(V_G)}, 1.0, {vr(V_G)}")
    at(PO + 1, "C", oa2)
    def armchk():
        a.label("L_arm")
        a(f"""v_sub_u32 {vr(V_FLG)}, {vr(V_FLG)}, {vr(V_TAG)}
              v_cmp_lt_u32 vcc, 15, {vr(V_FLG)}
              s_cmp_eq_u32 vcc_lo, 0
              s_cbranch_scc0 L_armr""")
        a.label("L_armk")
        a(f"""v_cmp_ne_u32 vcc, {sr(S_XCC)}, {vr(V_FLG)}
              s_mov_b32 {sr(S_FAST)}, vcc_lo""")
    at(PO + 3, "A", armchk)
    for i in range(8):
        at(56 + i, "A", lambda i=i: oload(i, V_FA, 0))
    def run(p, slot):
        for fn in ins.get((p, slot), []): fn()
    a(f"s_mov_b32 {sr(S_SPIN)}, 0")
    for p in range(2, 66):
        cur, nxt = V_S[p % 2], V_S[(p + 1) % 2]
        vf = V_VF[p % 2]
        ex = lambda r: a(f"v_exp_f32 {vr(r)}, {vr(r)}")
        if p < 56:
            ramp = {0: PR[0], 4: PR[1], 6: PR[2], 7: PR[3]}
            if p < 8:
                r0 = {2: 2, opts.get("r1", 6): 1, 7: 0}
                if p in r0: a(f"s_setprio {r0[p]}")
            elif p % 8 in ramp: a(f"s_setprio {ramp[p % 8]}")
        else:
            ramp = {56: PR[0], 62: PR[1], 64: PR[2], 65: PR[3]}
            if p in ramp: a(f"s_setprio {ramp[p]}")
        for i in (2, 3, 4, 5): ex(cur + i)
        if p < 65:
            a(f"s_waitcnt lgkmcnt({bars[p][0] if p in bars else 2})")
            a(f"v_mfma_f32_32x32x16_bf16 {vr(nxt,16)}, {vr(V_KF,4)}, {vr(V_QF,4)}, {vr(V_C,16)}")
        else:
            a("s_waitcnt lgkmcnt(0)")
        if p == 32:
            a(f"""v_add_u32 {vr(V_KA)}, 0x10000, {vr(V_KA)}
                  v_add_u32 {vr(V_VA)}, 0x10000, {vr(V_VA)}""")
        if p in bars:
            stamp(bars[p][1])
            a("s_barrier")
            stamp(bars[p][1] + 1)
        off = (p % 32) * 2048
        if p < 64:
            a(f"ds_read_b128 {vr(V_KF,4)}, {vr(V_KA)} offset:{off}")
        elif p == 64:
            a("s_nop 0")
        run(p, "A")
        for i in (6, 7, 8, 9, 10): ex(cur + i)
        a(f"v_smfmac_f32_32x32x32_bf16 {vr(V_O,16)}, {vr(vf,4)}, {vr(cur,8)}, {vr(V_IDX)}")
        run(p, "B")
        for i in (11, 12, 13, 14, 15): ex(cur + i)
        if p < 65:
            ex(nxt); ex(nxt + 1)
        else:
            a("s_nop 1")
        a(f"v_smfmac_f32_32x32x32_bf16 {vr(V_O,16)}, {vr(vf+4,4)}, {vr(cur+8,8)}, {vr(V_IDX)}")
        if p < 64:
            a(f"""s_mov_b64 exec, {sr(S_VMASK,2)}
                  ds_read_b128 {vr(vf,4)}, {vr(V_VA)} offset:{off+1024}
                  ds_read_b128 {vr(vf+4,4)}, {vr(V_VA)} offset:{off+1536}
                  s_mov_b64 exec, -1""")
        run(p, "C")

    VB0, VB1, VC0, VC1 = V_XOFF, V_WOFF, V_PQ, V_PQ + 1
    def wo_one(n, nt):
        b = V_WO + 8 * (n % 4) + 4 * nt
        ad = [V_WOA0, V_WOA1][nt] if n < 8 else ([VB0, VB1][nt] if n < 12 else [VC0, VC1][nt])
        off = n * 2048 if n < 8 else (n % 4) * 2048
        for u in range(2):
            a(f"ds_read_b64_tr_b16 {vr(b+2*u,2)}, {vr(ad)} offset:{off + u*1024}")
    def wo_rd(n):
        wo_one(n, 0); wo_one(n, 1)
    def mm(n, nt):
        src = V_FA + 4 * n if n < 8 else V_FBB + 4 * (n - 8)
        a(f"v_mfma_f32_32x32x16_bf16 {vr(V_OUT[nt],16)}, {vr(V_WO+8*(n%4)+4*nt,4)}, {vr(src,4)}, {'0' if n == 0 else vr(V_OUT[nt],16)}")
    wo_rd(0); wo_rd(1)
    a(f"""s_mov_b32 {sr(S_T0)}, {hex(f2u(2.0**64))}
          s_nop 2""")
    stamp(6)
    a(f"""v_rcp_f32 {vr(V_T0)}, {vr(V_O+8)}
          v_cmp_nle_f32 vcc, {vr(V_O+8)}, {sr(S_T0)}
          v_pk_mul_f32 {vr(V_T2,2)}, {vr(V_O,2)}, 0
          v_pk_fma_f32 {vr(V_T2,2)}, {vr(V_O+2,2)}, 0, {vr(V_T2,2)}
          v_pk_fma_f32 {vr(V_T2,2)}, {vr(V_O+4,2)}, 0, {vr(V_T2,2)}
          v_pk_fma_f32 {vr(V_T2,2)}, {vr(V_O+6,2)}, 0, {vr(V_T2,2)}
          v_cmp_u_f32 {sr(S_SAVE,2)}, {vr(V_T2)}, {vr(V_T3)}
          s_or_b64 vcc, vcc, {sr(S_SAVE,2)}
          s_cbranch_vccnz L_fallback""")
    a.label("L_norm")
    a(f"v_mul_f32 {vr(V_T0)}, {vr(V_T0)}, {vr(V_G)}")
    for i in range(0, 8, 2):
        a(f"v_pk_mul_f32 {vr(V_O+i,2)}, {vr(V_O+i,2)}, {vr(V_T0,2)} op_sel_hi:[1,0]")
    for i in range(4):
        a(f"v_cvt_pk_bf16_f32 {vr(V_PK+i)}, {vr(V_O+2*i)}, {vr(V_O+2*i+1)}")
    osan()
    a(f"""s_cmp_eq_u32 {sr(S_FAST)}, 0
          s_cbranch_scc0 L_slowst
          buffer_store_dwordx4 {vr(V_PK,4)}, {vr(V_L16)}, {sr(S_WS,4)}, {sr(S_RDY)} offen {["", "nt", "sc0", "sc1"][opts.get("obf", 0)]}""")
    a.label("L_stdone")
    wo_rd(2)
    a(f"""s_mov_b32 {sr(S_SPIN)}, 0
          s_waitcnt vmcnt(1)""")
    a.label("L_oa")
    a(f"v_max3_u32 {vr(V_FLG)}, {vr(V_FA)}, {vr(V_FA+1)}, {vr(V_FA+2)}")
    for i in range(3, 31, 2):
        a(f"v_max3_u32 {vr(V_FLG)}, {vr(V_FLG)}, {vr(V_FA+i)}, {vr(V_FA+i+1)}")
    a(f"""v_max_u32 {vr(V_FLG)}, {vr(V_FLG)}, {vr(V_FA+31)}
          v_cmp_eq_u32 vcc, -1, {vr(V_FLG)}
          s_cbranch_vccnz L_oar""")
    a.label("L_oak")
    A0, A1, A2, A3 = V_XA0, V_XA1, V_WA, V_KA
    setup = f"""s_lshl_b32 {sr(S_T0)}, {sr(S_HH)}, 13
          s_sub_u32 {sr(S_T1)}, {L_HI}, {sr(S_T0)}
          v_add_u32 {vr(VB0)}, {sr(S_T1)}, {vr(V_WOA0)}
          v_add_u32 {vr(VB1)}, {sr(S_T1)}, {vr(V_WOA1)}
          s_sub_u32 {sr(S_T1)}, 65536, {sr(S_T0)}
          v_add_u32 {vr(VC0)}, {sr(S_T1)}, {vr(V_WOA0)}
          v_add_u32 {vr(VC1)}, {sr(S_T1)}, {vr(V_WOA1)}
          v_and_b32 {vr(V_T0)}, 31, {vr(V_LANE)}
          v_lshrrev_b32 {vr(V_T1)}, 5, {vr(V_LANE)}
          v_and_b32 {vr(V_T2)}, 7, {vr(V_LANE)}
          v_xor_b32 {vr(V_T1)}, {vr(V_T1)}, {vr(V_T2)}
          v_lshlrev_b32 {vr(V_T1)}, 4, {vr(V_T1)}
          v_lshl_add_u32 {vr(V_T0)}, {vr(V_T0)}, 8, {vr(V_T1)}
          s_lshl_b32 {sr(S_T0)}, {sr(S_HH)}, 14
          s_lshl_b32 {sr(S_T1)}, {sr(S_RT)}, 13
          s_add_u32 {sr(S_T0)}, {sr(S_T0)}, {sr(S_T1)}
          v_add_u32 {vr(V_T0)}, {sr(S_T0)}, {vr(V_T0)}
          v_xor_b32 {vr(V_T1)}, 32, {vr(V_T0)}
          v_xor_b32 {vr(V_T2)}, 64, {vr(V_T0)}
          v_xor_b32 {vr(V_T3)}, 96, {vr(V_T0)}
          v_lshrrev_b32 {vr(A0)}, 3, {vr(V_LANE)}
          v_and_b32 {vr(A1)}, 7, {vr(V_LANE)}
          v_lshlrev_b32 {vr(A2)}, 1, {vr(A1)}
          v_xor_b32 {vr(A2)}, {vr(A2)}, {vr(A0)}
          v_lshlrev_b32 {vr(A2)}, 4, {vr(A2)}
          v_lshl_add_u32 {vr(A2)}, {vr(A0)}, 8, {vr(A2)}
          s_lshl_b32 {sr(S_T0)}, {sr(S_WAVE)}, 11
          v_add_u32 {vr(A2)}, {sr(S_T0)}, {vr(A2)}
          v_xor_b32 {vr(A3)}, 16, {vr(A2)}
          v_lshlrev_b32 {vr(A1)}, 4, {vr(A1)}
          v_lshl_add_u32 {vr(A0)}, {vr(A0)}, 10, {vr(A1)}
          s_lshl_b32 {sr(S_RDY)}, {sr(S_QO)}, 16
          s_lshl_b32 {sr(S_T1)}, {sr(S_WAVE)}, 13
          s_add_u32 {sr(S_RDY)}, {sr(S_RDY)}, {sr(S_T1)}
          s_lshl_b32 {sr(S_T1)}, {sr(S_NS)}, 7
          s_add_u32 {sr(S_RDY)}, {sr(S_RDY)}, {sr(S_T1)}""".split("\n")
    OBAT = opts.get("obat", 5)
    sched = {i: [] for i in range(8)}
    for k in range(8):
        sched[min(7, OBAT + (k * (8 - OBAT)) // 8)].append(k)
    per = (len(setup) + 3) // 4
    def chk(i):
        f = V_FBB + 4 * i
        a(f"s_waitcnt vmcnt({7-i})")
        a.label(f"L_ob{i}")
        a(f"""v_max3_u32 {vr(V_FLG)}, {vr(f)}, {vr(f+1)}, {vr(f+2)}
              v_max_u32 {vr(V_FLG)}, {vr(V_FLG)}, {vr(f+3)}
              v_cmp_eq_u32 vcc, -1, {vr(V_FLG)}
              s_cbranch_vccnz L_obr{i}""")
        a.label(f"L_obk{i}")
    for n in range(12):
        if n == 8: stamp(7)
        if n >= 8: chk(n - 8)
        a(f"s_waitcnt lgkmcnt({4 * (min(n + 2, 11) - n)})")
        mm(n, 0); mm(n, 1)
        if n < 4:
            for l in setup[n*per:(n+1)*per]: a(l)
        if n + 3 < 12: wo_rd(n + 3)
        if n < 8:
            for k in sched[n]: oload(k, V_FBB, 1)
    a("s_barrier")
    stamp(8)
    for n in range(12, 16): wo_one(n, 0)
    for n in range(12, 15): wo_one(n, 1)
    for n in range(12, 16):
        chk(n - 8)
        a(f"s_waitcnt lgkmcnt({12 if n == 12 else 2*(15-n) + 8})")
        mm(n, 0)
        if n == 12: wo_one(15, 1)
    for n in range(12, 16):
        a(f"s_waitcnt lgkmcnt({2*(15-n)})")
        mm(n, 1)
    stamp(9)
    a("s_nop 3")
    for nt in range(2):
        if nt: a("s_nop 3")
        for g in range(4):
            a(f"ds_write_b128 {vr(V_T0+g)}, {vr(V_OUT[nt]+4*g,4)} offset:{nt*128}")
    a("""s_waitcnt lgkmcnt(0)
         s_barrier""")
    RR = V_FA
    for k in range(4):
        a(f"ds_read_b128 {vr(RR+8*k,4)}, {vr(A2)} offset:{k*16384}")
        a(f"ds_read_b128 {vr(RR+8*k+4,4)}, {vr(A3)} offset:{k*16384}")
    for k in range(1, 4):
        a(f"s_waitcnt lgkmcnt({2*(3-k)})")
        for i in range(0, 8, 2):
            a(f"v_pk_add_f32 {vr(RR+i,2)}, {vr(RR+i,2)}, {vr(RR+8*k+i,2)}")
    for i in range(4):
        a(f"v_cvt_pk_bf16_f32 {vr(RR+8+i)}, {vr(RR+2*i)}, {vr(RR+2*i+1)}")
    a(f"buffer_store_dwordx4 {vr(RR+8,4)}, {vr(A0)}, {sr(S_OUT,4)}, {sr(S_RDY)} offen " + ["", "nt", "sc0", "sc1"][opts.get("outf", 0)])
    if "dfast" in opts:
        a(f"""s_cmp_eq_u32 {sr(S_FAST)}, 0
              s_cbranch_scc{opts['dfast']} L_end
              s_memrealtime s[98:99]
              s_waitcnt lgkmcnt(0)""")
        a.label("L_dly")
        a(f"""s_memrealtime s[96:97]
              s_waitcnt lgkmcnt(0)
              s_sub_u32 {sr(S_T1)}, s96, s98
              s_cmp_lt_u32 {sr(S_T1)}, 3000
              s_cbranch_scc1 L_dly""")
    if "dly" in opts:
        stamp(10)
        a(f"""s_cmp_lg_u32 s2, {opts.get('tswg', 100)}
              s_cbranch_scc1 L_end
              s_cmp_lg_u32 {sr(S_WAVE)}, 0
              s_cbranch_scc1 L_end
              s_memrealtime s[98:99]
              s_waitcnt lgkmcnt(0)
              s_sub_u32 {sr(S_T0)}, s100, s74
              s_lshl_b32 {sr(S_T0)}, {sr(S_T0)}, {opts.get('dsh', 2)}
              s_add_u32 {sr(S_T0)}, {sr(S_T0)}, 500
              s_min_u32 {sr(S_T0)}, {sr(S_T0)}, 30000""")
        a.label("L_dly2")
        a(f"""s_memrealtime s[96:97]
              s_waitcnt lgkmcnt(0)
              s_sub_u32 {sr(S_T1)}, s96, s98
              s_cmp_lt_u32 {sr(S_T1)}, {sr(S_T0)}
              s_cbranch_scc1 L_dly2""")
    if ts:
        stamp(10)
        ts_out()
    a.label("L_end")
    a("s_endpgm")

    a.label("L_slowst")
    a(f"""buffer_store_dwordx4 {vr(V_PK,4)}, {vr(V_L16)}, {sr(S_WS,4)}, {sr(S_RDY)} offen sc1
          s_waitcnt vmcnt(0)
          s_branch L_stdone""")
    a.label("L_armr")
    a(f"""s_add_u32 {sr(S_SPIN)}, {sr(S_SPIN)}, 1
          s_cmp_ge_u32 {sr(S_SPIN)}, 100000
          s_cbranch_scc1 L_armk""")
    flag_load(S_INFO)
    a("""s_waitcnt vmcnt(0)
         s_branch L_arm""")
    a.label("L_oar")
    a(f"""s_add_u32 {sr(S_SPIN)}, {sr(S_SPIN)}, 1
          s_cmp_ge_u32 {sr(S_SPIN)}, 100000
          s_cbranch_scc1 L_oak""")
    for k in range(8): oload(k, V_FA, 0)
    a("""s_waitcnt vmcnt(0)
         s_branch L_oa""")
    RM = opts.get("rm", 1)
    for i in range(8):
        f = V_FBB + 4 * i
        a.label(f"L_obr{i}")
        a(f"""s_add_u32 {sr(S_SPIN)}, {sr(S_SPIN)}, 1
              s_cmp_ge_u32 {sr(S_SPIN)}, 100000
              s_cbranch_scc1 L_obk{i}""")
        if RM == 1:
            if opts.get("slp", 0): a(f"s_sleep {opts['slp']}")
            for k in range(i, 8): oload(k, V_FBB, 1)
            a(f"""s_waitcnt vmcnt({7-i})
                  s_branch L_ob{i}""")
        else:
            if opts.get("slp", 0): a(f"s_sleep {opts['slp']}")
            oload(i, V_FBB, 1)
            a(f"""s_waitcnt vmcnt(0)
                  v_max3_u32 {vr(V_FLG)}, {vr(f)}, {vr(f+1)}, {vr(f+2)}
                  v_max_u32 {vr(V_FLG)}, {vr(V_FLG)}, {vr(f+3)}
                  v_cmp_eq_u32 vcc, -1, {vr(V_FLG)}
                  s_cbranch_vccnz L_obr{i}""")
            for k in range(i + 1, 8): oload(k, V_FBB, 1)
            a(f"s_branch L_obk{i}")

    a.label("L_fallback")
    FS = V_S[0]
    a(f"""v_mov_b32 {vr(V_T0)}, 0xff800000
          s_mov_b32 {sr(S_T0)}, {WS_KV}""")
    a.label("L_fb1")
    a(f"""buffer_load_dwordx4 {vr(V_KF,4)}, {vr(V_L16)}, {sr(S_WS,4)}, {sr(S_T0)} offen sc1
          s_waitcnt vmcnt(0)
          v_mfma_f32_32x32x16_bf16 {vr(FS,16)}, {vr(V_KF,4)}, {vr(V_QF,4)}, 0
          s_nop 15""")
    for i in range(8):
        a(f"v_max3_f32 {vr(V_T0)}, {vr(V_T0)}, {vr(FS+2*i)}, {vr(FS+2*i+1)}")
    a(f"""s_add_u32 {sr(S_T0)}, {sr(S_T0)}, 2048
          s_cmp_lt_u32 {sr(S_T0)}, {WS_KV + 131072}
          s_cbranch_scc1 L_fb1
          v_mov_b32 {vr(V_T1)}, {vr(V_T0)}
          s_nop 1
          v_permlane32_swap_b32 {vr(V_T0)}, {vr(V_T1)}
          s_nop 1
          v_max_f32 {vr(V_T0)}, {vr(V_T0)}, {vr(V_T1)}""")
    for i in range(16):
        a(f"v_sub_f32 {vr(V_C+i)}, 0, {vr(V_T0)}")
        a(f"v_mov_b32 {vr(V_O+i)}, 0")
    a(f"""v_and_b32 {vr(V_VA)}, 0x3ff, {vr(V_VA)}
          s_mov_b32 {sr(S_T0)}, {WS_KV}""")
    a.label("L_fb2")
    a(f"""buffer_load_dwordx4 {vr(V_KF,4)}, {vr(V_L16)}, {sr(S_WS,4)}, {sr(S_T0)} offen sc1
          s_mov_b64 exec, {sr(S_VMASK,2)}
          buffer_load_dwordx4 {vr(V_VF[0],4)}, {vr(V_VA)}, {sr(S_WS,4)}, {sr(S_T0)} offen offset:1024 sc1
          buffer_load_dwordx4 {vr(V_VF[0]+4,4)}, {vr(V_VA)}, {sr(S_WS,4)}, {sr(S_T0)} offen offset:1536 sc1
          s_mov_b64 exec, -1
          s_waitcnt vmcnt(0)
          v_mfma_f32_32x32x16_bf16 {vr(FS,16)}, {vr(V_KF,4)}, {vr(V_QF,4)}, {vr(V_C,16)}
          s_nop 15""")
    for i in range(16):
        a(f"v_exp_f32 {vr(FS+i)}, {vr(FS+i)}")
    a(f"""s_nop 1
          v_smfmac_f32_32x32x32_bf16 {vr(V_O,16)}, {vr(V_VF[0],4)}, {vr(FS,8)}, {vr(V_IDX)}
          v_smfmac_f32_32x32x32_bf16 {vr(V_O,16)}, {vr(V_VF[0]+4,4)}, {vr(FS+8,8)}, {vr(V_IDX)}
          s_add_u32 {sr(S_T0)}, {sr(S_T0)}, 2048
          s_cmp_lt_u32 {sr(S_T0)}, {WS_KV + 131072}
          s_cbranch_scc1 L_fb2
          s_nop 15
          v_rcp_f32 {vr(V_T0)}, {vr(V_O+8)}
          s_nop 0
          s_branch L_norm""")

    H_F4, H_FOFF = 148, 152
    S_ROT = S_HEAD
    def rot_setup():
        a(f"""s_and_b32 {sr(S_ROT)}, s2, 7
              s_lshl_b32 {sr(S_ROT)}, {sr(S_ROT)}, 3""")
    def kv_sample():
        a(f"buffer_load_dwordx4 {vr(H_F4,4)}, {vr(H_FOFF)}, {sr(S_WS,4)}, 0 offen offset:{WS_FKV} sc1")
    def kv_spin(lbl, lo_only):
        a(f"s_mov_b32 {sr(S_SPIN)}, 0")
        a.label(lbl + "_loop")
        a(f"""v_cmp_ne_u32 vcc, {vr(H_F4)}, {vr(V_TAG)}
              v_cmp_ne_u32 {sr(S_SAVE,2)}, {vr(H_F4+1)}, {vr(V_TAG)}
              s_or_b64 vcc, vcc, {sr(S_SAVE,2)}
              v_cmp_ne_u32 {sr(S_SAVE,2)}, {vr(H_F4+2)}, {vr(V_TAG)}
              s_or_b64 vcc, vcc, {sr(S_SAVE,2)}
              v_cmp_ne_u32 {sr(S_SAVE,2)}, {vr(H_F4+3)}, {vr(V_TAG)}
              s_or_b64 vcc, vcc, {sr(S_SAVE,2)}""")
        if lo_only:
            a(f"s_and_b32 {sr(S_SAVE)}, vcc_lo, 0xff\ns_cmp_eq_u32 {sr(S_SAVE)}, 0")
        else:
            a("s_cmp_eq_u64 vcc, 0")
        a(f"""s_cbranch_scc1 {lbl}_ok
              s_add_u32 {sr(S_SPIN)}, {sr(S_SPIN)}, 1
              s_cmp_ge_u32 {sr(S_SPIN)}, 100000
              s_cbranch_scc1 {lbl}_ok""")
        if lo_only: a("s_mov_b64 exec, 0xff")
        kv_sample()
        if lo_only: a("s_mov_b64 exec, -1")
        a(f"""s_waitcnt vmcnt(0)
              s_branch {lbl}_loop""")
        a.label(lbl + "_ok")
    def kv_dma(lbl, s0, n):
        a(f"""s_mul_i32 {sr(S_T0)}, {sr(S_RT)}, {n}
              s_add_u32 {sr(S_T0)}, {sr(S_T0)}, {s0}
              s_add_u32 {sr(S_T2)}, {sr(S_T0)}, {n}""")
        a.label(lbl)
        a(f"""s_add_u32 {sr(S_T1)}, {sr(S_T0)}, {sr(S_ROT)}
              s_and_b32 {sr(S_T1)}, {sr(S_T1)}, 63
              s_lshl_b32 {sr(S_T1)}, {sr(S_T1)}, 11
              s_add_u32 {sr(S_T1)}, {sr(S_T1)}, {WS_KV}
              s_lshl_b32 m0, {sr(S_T0)}, 11
              s_waitcnt vmcnt(40)""")
        for k in range(4):
            a(f"buffer_load_dwordx4 {vr(V_L16)}, {sr(S_WS,4)}, {sr(S_T1)} offen offset:{k*1024} sc1 lds")
        a(f"""s_add_u32 m0, m0, 4096
              s_add_u32 {sr(S_T1)}, {sr(S_T1)}, 4096""")
        for k in range(4):
            a(f"buffer_load_dwordx4 {vr(V_L16)}, {sr(S_WS,4)}, {sr(S_T1)} offen offset:{k*1024} sc1 lds")
        a(f"""s_add_u32 {sr(S_T0)}, {sr(S_T0)}, 4
              s_cmp_lt_u32 {sr(S_T0)}, {sr(S_T2)}
              s_cbranch_scc1 {lbl}""")
    def swz64(dst, stride):
        a(f"""v_lshrrev_b32 {vr(V_T0)}, 3, {vr(V_LANE)}
              v_bfe_u32 {vr(V_T1)}, {vr(V_LANE)}, 4, 1
              v_lshlrev_b32 {vr(V_T1)}, 2, {vr(V_T1)}
              v_xor_b32 {vr(V_T1)}, {vr(V_T1)}, {vr(V_LANE)}
              v_and_b32 {vr(V_T1)}, 7, {vr(V_T1)}
              v_lshlrev_b32 {vr(V_T1)}, 4, {vr(V_T1)}
              v_mul_u32_u24 {vr(V_T0)}, {stride}, {vr(V_T0)}
              v_add_u32 {vr(dst)}, {vr(V_T0)}, {vr(V_T1)}""")

    KACC = [24, 40]
    KB = [56, 68]
    KV0, KV1 = 153, 154
    S_KO, S_KM = S_U2, S_U3
    S_KW = S_WOB
    def kv_setup():
        srd(S_KW, 2, 0x180000)
        srd(S_WS, 22, WS_SIZE)
        consts()
        swz64(KV0, 3072)
        a(f"""v_add_u32 {vr(KV1)}, {24576 - 1024}, {vr(KV0)}
              s_sub_u32 {sr(S_AUX)}, {sr(S_WAVE)}, 8
              s_and_b32 {sr(S_RT)}, {sr(S_AUX)}, 1
              s_lshl_b32 {sr(S_KM)}, {sr(S_AUX)}, 13
              s_add_u32 {sr(S_KM)}, {sr(S_KM)}, {L_HI}
              s_lshl_b32 {sr(S_KO)}, {sr(S_HGK)}, 7
              s_cmp_lt_u32 {sr(S_AUX)}, 2
              s_cselect_b32 {sr(S_T1)}, 2, 1
              s_cselect_b32 {sr(S_T2)}, 0, {sr(S_EPS)}
              s_lshl_b32 {sr(S_T1)}, {sr(S_T1)}, 10
              s_add_u32 {sr(S_KO)}, {sr(S_KO)}, {sr(S_T1)}""")
        for i in range(32):
            a(f"v_mov_b32 {vr(KACC[0]+i)}, {sr(S_T2)}")
        xfrag_addr(S_RT)
        a(f"""v_lshlrev_b32 {vr(V_T0)}, 10, {vr(V_T1)}
              v_bfe_u32 {vr(V_T1)}, {vr(V_LANE)}, 2, 2
              v_lshl_add_u32 {vr(V_T0)}, {vr(V_T1)}, 7, {vr(V_T0)}
              v_bfe_u32 {vr(V_T1)}, {vr(V_LANE)}, 3, 1
              v_lshl_add_u32 {vr(V_T0)}, {vr(V_T1)}, 6, {vr(V_T0)}
              v_bfe_u32 {vr(V_T1)}, {vr(V_LANE)}, 4, 1
              v_lshl_add_u32 {vr(V_T0)}, {vr(V_T1)}, 5, {vr(V_T0)}
              v_and_b32 {vr(V_T1)}, 3, {vr(V_LANE)}
              v_lshl_add_u32 {vr(V_T0)}, {vr(V_T1)}, 3, {vr(V_T0)}
              v_add_u32 {vr(V_WOA0)}, {sr(S_KM)}, {vr(V_T0)}
              v_xor_b32 {vr(V_WOA1)}, 64, {vr(V_WOA0)}""")
    def kdma(st):
        a(f"s_add_u32 m0, {sr(S_KM)}, {(st % 4)*2048}")
        if st % 4 == 0:
            a(f"""s_xor_b32 {sr(S_U1)}, {sr(S_J)}, {st//4}
                  s_mul_i32 {sr(S_U1)}, {sr(S_U1)}, 196608
                  s_add_u32 {sr(S_U1)}, {sr(S_U1)}, {sr(S_KO)}""")
        else:
            a(f"s_add_u32 {sr(S_U1)}, {sr(S_U1)}, 49152")
        a.vmem(f"buffer_load_dwordx4 {vr(KV0)}, {sr(S_KW,4)}, {sr(S_U1)} offen lds", f"k{st}")
        a.vmem(f"buffer_load_dwordx4 {vr(KV1)}, {sr(S_KW,4)}, {sr(S_U1)} offen offset:1024 lds", f"k{st}")
    def krd(st):
        b = KB[st % 2]
        a(f"ds_read_b128 {vr(b,4)}, {vr(V_XA0 if st%2==0 else V_XA1)} offset:{(st//2)*4096}")
        for nt in range(2):
            for u in range(2):
                a(f"ds_read_b64_tr_b16 {vr(b+4+4*nt+2*u,2)}, {vr(V_WOA0 if nt==0 else V_WOA1)} offset:{(st%4)*2048 + u*512}")
    def kv_pass(bars, after={}):
        a.vm = []
        for st in range(4): kdma(st)
        for _ in range(bars.get(-1, 0)): a("s_barrier")
        a.wait_vm("k0")
        for _ in range(bars.get(0, 0)): a("s_barrier")
        krd(0)
        for st in range(32):
            if st + 1 < 32:
                if f"k{st+1}" in a.vm: a.wait_vm(f"k{st+1}")
                for _ in range(bars.get(st + 1, 0)): a("s_barrier")
                if st + 1 in after: after[st + 1]()
                krd(st + 1)
            a(f"s_waitcnt lgkmcnt({5 if st + 1 < 32 else 0})")
            b = KB[st % 2]
            for nt in range(2):
                a(f"v_mfma_f32_32x32x16_bf16 {vr(KACC[nt],16)}, {vr(b,4)}, {vr(b+4+4*nt,4)}, {vr(KACC[nt],16)}")
                if nt == (0 if opts.get("ksp", 0) else 1) and st + 4 < 32: kdma(st + 4)
    def foff_setup():
        a(f"""v_add_u32 {vr(H_FOFF)}, {sr(S_ROT)}, {vr(V_LANE)}
              v_and_b32 {vr(H_FOFF)}, 63, {vr(H_FOFF)}
              v_lshlrev_b32 {vr(H_FOFF)}, 4, {vr(H_FOFF)}""")

    TG = 80
    TKA, TVA = 12, 155
    S_TG = S_RDY
    def tg_setup(which):
        a(f"""v_and_b32 {vr(V_T0)}, 15, {vr(V_LANE)}
              v_lshlrev_b32 {vr(V_T0)}, 4, {vr(V_T0)}
              v_bfe_u32 {vr(V_T1)}, {vr(V_LANE)}, 4, 1
              v_lshrrev_b32 {vr(V_T2)}, 5, {vr(V_LANE)}
              v_lshl_add_u32 {vr(TKA)}, {vr(V_T1)}, 9, {vr(V_T0)}
              v_lshl_add_u32 {vr(TKA)}, {vr(V_T2)}, 3, {vr(TKA)}
              v_lshl_add_u32 {vr(TVA)}, {vr(V_T2)}, 8, {vr(V_T0)}
              v_lshl_add_u32 {vr(TVA)}, {vr(V_T1)}, 3, {vr(TVA)}
              s_lshl_b32 {sr(S_TG)}, {sr(S_ROT)}, 12
              s_add_u32 {sr(S_TG)}, {sr(S_TG)}, {WS_KVT + which*16384}""")
    def tg_loads():
        for t in range(4):
            a(f"s_add_u32 {sr(S_T0)}, {sr(S_TG)}, {t*4096}")
            for jb in range(4):
                a(f"buffer_load_dwordx4 {vr(TG+16*t+4*jb,4)}, {vr(V_L16)}, {sr(S_WS,4)}, {sr(S_T0)} offen offset:{jb*1024} sc1")
    def tg_finish(lbl, which):
        a(f"s_mov_b32 {sr(S_SPIN)}, 0")
        a.label(lbl + "_loop")
        a("s_waitcnt vmcnt(0)")
        a(f"v_min3_u32 {vr(V_T0)}, {vr(V_TAG)}, {vr(TG+1)}, {vr(TG+3)}")
        a(f"v_max3_u32 {vr(V_T1)}, {vr(V_TAG)}, {vr(TG+1)}, {vr(TG+3)}")
        for g in range(1, 16):
            a(f"v_min3_u32 {vr(V_T0)}, {vr(V_T0)}, {vr(TG+4*g+1)}, {vr(TG+4*g+3)}")
            a(f"v_max3_u32 {vr(V_T1)}, {vr(V_T1)}, {vr(TG+4*g+1)}, {vr(TG+4*g+3)}")
        a(f"""v_cmp_ne_u32 vcc, {vr(V_T0)}, {vr(V_T1)}
              s_cbranch_vccz {lbl}_ok
              s_add_u32 {sr(S_SPIN)}, {sr(S_SPIN)}, 1
              s_cmp_ge_u32 {sr(S_SPIN)}, 100000
              s_cbranch_scc1 {lbl}_ok""")
        tg_loads()
        a(f"s_branch {lbl}_loop")
        a.label(lbl + "_ok")
        for t in range(4):
            for jb in range(4):
                a(f"v_mov_b32 {vr(TG+16*t+4*jb+1)}, {vr(TG+16*t+4*jb+2)}")
            if t == 3: a("s_waitcnt lgkmcnt(8)")
            for jb in range(4):
                ad = TVA if jb & 1 else TKA
                off = (4 * which + t) * 2048 + ((1024 + (jb >> 1) * 512) if jb & 1 else (jb >> 1) * 256)
                a(f"ds_write_b64 {vr(ad)}, {vr(TG+16*t+4*jb,2)} offset:{off}")
        a("s_waitcnt lgkmcnt(0)")
    C_TG = opts.get("c_tg", 6)

    a.label("L_a0")
    a.vm = []
    HX, HW, HG_, HD, HDG = 16, 48, 80, 144, 112
    H_GWA = 8
    S_JX, S_JM = S_U0, S_U1
    a(f"""s_setprio 3
          s_lshl_b32 {sr(S_T1)}, {sr(S_RGJ)}, 14
          s_add_u32 {sr(S_JX)}, {sr(S_T0)}, {sr(S_T1)}
          s_lshl_b32 {sr(S_T1)}, {sr(S_RGJ)}, 10
          s_add_u32 {sr(S_JM)}, {sr(S_T1)}, {L_X}
          s_mov_b32 {sr(S_WJ+2)}, 16384
          s_mov_b32 {sr(S_WJ+3)}, 0x20000
          s_bitcmp1_b32 {sr(S_HG)}, 0
          s_waitcnt lgkmcnt(0)
          s_mov_b32 {sr(S_X)}, {sr(S_KA+0)}
          s_mov_b32 {sr(S_X+1)}, {sr(S_KA+1)}
          s_cselect_b32 {sr(S_WJ)}, {sr(S_KA+12)}, {sr(S_KA+10)}
          s_cselect_b32 {sr(S_WJ+1)}, {sr(S_KA+13)}, {sr(S_KA+11)}
          s_load_dword {sr(S_TAG)}, {sr(S_KA+22,2)}, {WS_E}""")
    a(f"""s_lshl_b32 {sr(S_U2)}, {sr(S_J)}, 11
          s_lshl_b32 {sr(S_T1)}, {sr(S_J)}, 7
          v_xor_b32 {vr(V_T0)}, {sr(S_T1)}, {vr(V_L16)}""")
    def jload(g):
        for k in range(4):
            kb = 4 * g + k
            a(f"s_add_u32 m0, {sr(S_JM)}, {kb*4096 - (k%2)*64}")
            a(f"s_xor_b32 {sr(S_T1)}, {sr(S_JX)}, {(kb//2)*128}" if k % 2 == 0 else "s_nop 0")
            a.vmem(f"buffer_load_dwordx4 {vr(V_XOFF)}, {sr(S_X,4)}, {sr(S_T1)} offen offset:{(k%2)*64} lds", f"j{g}")
        for k in range(2):
            a(f"s_mov_b32 m0, {L_JW + g*4096 + k*2048}")
            a(f"s_xor_b32 {sr(S_T2)}, {sr(S_U2)}, {g*4096 + k*2048}")
            for q in range(2):
                a.vmem(f"buffer_load_dwordx4 {vr(V_L16)}, {sr(S_WJ,4)}, {sr(S_T2)} offen offset:{q*1024} lds", f"j{g}")
    jload(0)
    srd(S_W, 16, 1024)
    a(f"s_mov_b32 m0, {L_GW}\ns_nop 0")
    a.vmem(f"buffer_load_dwordx4 {vr(V_T0)}, {sr(S_W,4)}, 0 offen lds", "gw")
    jload(1); jload(2); jload(3)
    srd(S_WS, 22, WS_SIZE)
    rot_setup()
    a(f"""v_and_b32 {vr(V_T0)}, 15, {vr(V_LANE)}
          v_lshrrev_b32 {vr(V_T1)}, 4, {vr(V_LANE)}
          v_bfe_u32 {vr(V_T2)}, {vr(V_LANE)}, 2, 2
          v_xor_b32 {vr(V_T2)}, {vr(V_T2)}, {vr(V_T1)}
          v_lshlrev_b32 {vr(V_T2)}, 4, {vr(V_T2)}
          v_lshl_add_u32 {vr(V_T2)}, {vr(V_T0)}, 6, {vr(V_T2)}
          v_add_u32 {vr(V_T2)}, {sr(S_JM)}, {vr(V_T2)}
          v_lshlrev_b32 {vr(V_T3)}, 3, {vr(V_T0)}
          v_lshl_add_u32 {vr(V_T3)}, {vr(V_T1)}, 8, {vr(V_T3)}
          v_lshlrev_b32 {vr(H_GWA)}, 4, {vr(V_T1)}
          v_add_u32 {vr(H_GWA)}, {L_GW}, {vr(H_GWA)}
          v_lshlrev_b32 {vr(13)}, 4, {vr(V_T0)}
          v_and_b32 {vr(14)}, 1, {vr(V_T1)}
          v_lshrrev_b32 {vr(15)}, 1, {vr(V_T1)}
          s_lshl_b32 {sr(S_T0)}, {sr(S_QB)}, 1
          s_lshr_b32 {sr(S_T1)}, {sr(S_RGJ)}, 1
          s_add_u32 {sr(S_SEG)}, {sr(S_T0)}, {sr(S_T1)}
          s_lshl_b32 {sr(S_T3)}, {sr(S_SEG)}, 4
          s_and_b32 {sr(S_T0)}, {sr(S_HG)}, 3
          s_lshl_b32 {sr(S_T0)}, {sr(S_T0)}, 2
          s_add_u32 {sr(S_T3)}, {sr(S_T3)}, {sr(S_T0)}
          s_add_u32 {sr(S_T3)}, {sr(S_T3)}, {WS_FKV}""")
    tag_setup()
    if opts.get("lst"): stamp(19)
    vmh = list(a.vm)
    def job(isV):
        a.vm = list(vmh)
        nr = 3 if isV else 4
        for half in range(2):
            a.wait_vm(f"j{2*half}")
            if opts.get("lst"): stamp(20 + 3*half)
            a("s_barrier")
            if opts.get("lst"): stamp(21 + 3*half)
            a.wait_vm(f"j{2*half+1}")
            if opts.get("lst"): stamp(22 + 3*half)
            def rd(k):
                s = 8 * half + k
                a(f"ds_read_b128 {vr(HX+4*k,4)}, {vr(V_T2)} offset:{s*4096}")
                a(f"ds_read_b64_tr_b16 {vr(HW+4*k,2)}, {vr(V_T3)} offset:{L_JW + s*1024}")
                a(f"ds_read_b64_tr_b16 {vr(HW+4*k+2,2)}, {vr(V_T3)} offset:{L_JW + s*1024 + 128}")
                if not isV: a(f"ds_read_b128 {vr(HG_+4*k,4)}, {vr(H_GWA)} offset:{s*64}")
            rd(0); rd(1); rd(2)
            for k in range(8):
                a(f"s_waitcnt lgkmcnt({nr * (min(k + 2, 7) - k)})")
                z = half == 0 and k == 0
                A_, B_ = (HX, HW) if isV else (HW, HX)
                a(f"v_mfma_f32_16x16x32_bf16 {vr(HD,4)}, {vr(A_+4*k,4)}, {vr(B_+4*k,4)}, {'0' if z else vr(HD,4)}")
                if not isV: a(f"v_mfma_f32_16x16x32_bf16 {vr(HDG,4)}, {vr(HG_+4*k,4)}, {vr(HX+4*k,4)}, {'0' if z else vr(HDG,4)}")
                if k + 3 < 8: rd(k + 3)
        a(f"s_and_b32 {sr(S_T1)}, {sr(S_RGJ)}, 1")
        if isV:
            a(f"""v_lshl_add_u32 {vr(13)}, {vr(15)}, 8, {vr(13)}
                  v_lshl_add_u32 {vr(13)}, {vr(14)}, 3, {vr(13)}
                  s_lshl_b32 {sr(S_T1)}, {sr(S_T1)}, 9
                  s_add_u32 {sr(S_T1)}, {sr(S_T1)}, 1024""")
        else:
            a(f"""v_lshl_add_u32 {vr(13)}, {vr(14)}, 9, {vr(13)}
                  v_lshl_add_u32 {vr(13)}, {vr(15)}, 3, {vr(13)}
                  s_lshl_b32 {sr(S_T1)}, {sr(S_T1)}, 8
                  s_lshl_b32 {sr(S_T0)}, {sr(S_QB)}, 2
                  s_add_u32 {sr(S_T0)}, {sr(S_T0)}, {sr(S_RGJ)}
                  s_lshl_b32 {sr(S_T0)}, {sr(S_T0)}, 7
                  s_add_u32 {sr(S_T0)}, {sr(S_T0)}, {WS_G}
                  s_mov_b32 {sr(S_T2)}, {hex(f2u(LOG2E))}
                  v_mul_f32 {vr(HDG)}, {sr(S_T2)}, {vr(HDG)}
                  v_exp_f32 {vr(HDG)}, -{vr(HDG)}
                  s_nop 0
                  v_add_f32 {vr(HDG)}, 1.0, {vr(HDG)}
                  v_rcp_f32 {vr(HDG)}, {vr(HDG)}
                  s_mov_b32 exec_hi, 0
                  buffer_store_dword {vr(HDG)}, {vr(V_L4)}, {sr(S_WS,4)}, {sr(S_T0)} offen sc1
                  s_mov_b32 exec_hi, -1""")
    a(f"""s_bitcmp1_b32 {sr(S_HG)}, 0
          s_cbranch_scc1 L_jobV""")
    job(False)
    a("s_branch L_jobdone")
    a.label("L_jobV")
    job(True)
    a.label("L_jobdone")
    a.vm = []
    a(f"""s_lshl_b32 {sr(S_T0)}, {sr(S_SEG)}, 11
          s_add_u32 {sr(S_T0)}, {sr(S_T0)}, {sr(S_T1)}
          s_add_u32 {sr(S_T0)}, {sr(S_T0)}, {WS_KV}
          s_nop 1
          v_cvt_pk_bf16_f32 {vr(HD+4)}, {vr(HD)}, {vr(HD+1)}
          v_cvt_pk_bf16_f32 {vr(HD+5)}, {vr(HD+2)}, {vr(HD+3)}
          v_mov_b32 {vr(HX)}, {vr(HD+4)}
          v_mov_b32 {vr(HX+1)}, {vr(V_TAG)}
          v_mov_b32 {vr(HX+2)}, {vr(HD+5)}
          v_mov_b32 {vr(HX+3)}, {vr(V_TAG)}
          s_lshl_b32 {sr(S_T1)}, {sr(S_SEG)}, 2
          s_and_b32 {sr(S_T2)}, {sr(S_HG)}, 3
          s_add_u32 {sr(S_T1)}, {sr(S_T1)}, {sr(S_T2)}
          s_lshl_b32 {sr(S_T1)}, {sr(S_T1)}, 10
          s_add_u32 {sr(S_T1)}, {sr(S_T1)}, {WS_KVT}
          buffer_store_dwordx4 {vr(HX,4)}, {vr(V_L16)}, {sr(S_WS,4)}, {sr(S_T1)} offen {"" if opts.get("plaint", 0) else "sc1"}
          v_mov_b32 {vr(14)}, 0
          s_lshl_b32 {sr(S_T1)}, s2, 8
          s_add_u32 {sr(S_T1)}, {sr(S_T1)}, {WS_ACC}
          buffer_store_dwordx2 {vr(HD+4,2)}, {vr(13)}, {sr(S_WS,4)}, {sr(S_T0)} offen sc1
          buffer_store_dword {vr(14)}, {vr(V_L4)}, {sr(S_WS,4)}, {sr(S_T1)} offen sc1""")
    stamp(1)
    C_SIG = opts.get("c_sig", 4)
    for c in range(2, 8):
        a("s_barrier")
        if c == 2: kv_setup()
        if c == 3: tg_setup(0)
        if c == C_SIG:
            a("s_waitcnt vmcnt(0)")
            flag_store(S_T3)
            stamp(2)
        if c == C_TG: tg_loads()
    stamp(3)
    tg_finish("L_tg0", 0)
    stamp(4)
    a("s_barrier")
    a.label("L_kv01")
    kv_pass({opts.get("n1", 8): 1})
    a("s_branch L_kvend")

    a.label("L_a1")
    a.vm = []
    LV = [16, 20]
    SO = [S_U0, S_U1]
    a(f"""s_setprio 3
          v_lshrrev_b32 {vr(V_T0)}, 1, {vr(V_LANE)}
          v_and_b32 {vr(V_T0)}, 3, {vr(V_T0)}
          v_bfe_u32 {vr(V_T1)}, {vr(V_LANE)}, 4, 1
          v_xor_b32 {vr(V_T0)}, {vr(V_T0)}, {vr(V_T1)}
          v_lshlrev_b32 {vr(V_T0)}, 5, {vr(V_T0)}
          v_and_b32 {vr(V_T1)}, 1, {vr(V_LANE)}
          v_lshl_add_u32 {vr(V_T0)}, {vr(V_T1)}, 4, {vr(V_T0)}
          v_lshrrev_b32 {vr(V_T1)}, 3, {vr(V_LANE)}
          v_lshl_add_u32 {vr(LV[0])}, {vr(V_T1)}, 10, {vr(V_T0)}
          v_mul_u32_u24 {vr(V_T1)}, 3072, {vr(V_T1)}
          v_add_u32 {vr(LV[1])}, {vr(V_T1)}, {vr(V_T0)}
          v_xor_b32 {vr(LV[1])}, 64, {vr(LV[1])}""")
    for rg in range(1, 4):
        a(f"""v_add_u32 {vr(LV[0]+rg)}, {rg*(8192-1024)}, {vr(LV[0])}
              v_add_u32 {vr(LV[1]+rg)}, {rg*(24576-1024)}, {vr(LV[1])}""")
    a(f"""s_lshl_b32 {sr(SO[0])}, {sr(S_HG)}, 7
          s_lshl_b32 {sr(SO[1])}, {sr(S_HGQ)}, 7
          s_waitcnt lgkmcnt(0)
          s_load_dword {sr(S_TAG)}, {sr(S_KA+22,2)}, {WS_E}""")
    srd(S_W, 8, 0x80000)
    srd(S_WJ, 2, 0x180000)
    def lw(c):
        a(f"""s_xor_b32 {sr(S_T0)}, {sr(S_J)}, {c}
              s_lshl_b32 {sr(S_T1)}, {sr(S_T0)}, 16
              s_add_u32 {sr(S_T1)}, {sr(S_T1)}, {sr(SO[0])}
              s_mul_i32 {sr(S_T2)}, {sr(S_T0)}, 196608
              s_add_u32 {sr(S_T2)}, {sr(S_T2)}, {sr(SO[1])}""")
        for hf in range(2):
            for m in range(2):
                so = [S_T1, S_T2][m]
                a(f"s_mov_b32 m0, {RSLOT[c % 4] + m*8192 + hf*4096}")
                a("s_nop 0" if hf == 0 else f"s_add_u32 {sr(so)}, {sr(so)}, {32768 if m == 0 else 98304}")
                for rg in range(4):
                    a.vmem(f"buffer_load_dwordx4 {vr(LV[m]+rg)}, {sr(S_W if m == 0 else S_WJ,4)}, {sr(so)} offen offset:{rg*1024} lds", f"w{c}")
    NPRE = opts.get("npre", 2)
    if opts.get("lst"): stamp(18)
    for c in range(NPRE): lw(c)
    if opts.get("lst"): stamp(19)
    kv_setup(); rot_setup(); tg_setup(1)
    tag_setup()
    nxt = NPRE
    for c in range(8):
        a.wait_vm(f"w{c}")
        if opts.get("lst"): stamp(20 + c) if c < 4 else None
        a("s_barrier")
        if opts.get("lst"): stamp(24 + c)
        k = 0
        while nxt <= min(7, c + 3) and k < 2:
            lw(nxt); nxt += 1; k += 1
        if c == max(C_TG, 5):
            tg_loads()
            a.vm += ["tg"] * 16
    tg_finish("L_tg1", 1)
    stamp(4)
    a("""s_barrier
         s_branch L_kv01""")

    a.label("L_a23")
    a.vm = []
    a(f"""s_setprio 3
          s_sub_u32 {sr(S_T1)}, {sr(S_WAVE)}, 8
          s_lshl_b32 {sr(S_T2)}, {sr(S_T1)}, 8
          s_xor_b32 {sr(S_T0)}, {sr(S_T0)}, {sr(S_T2)}
          s_lshl_b32 {sr(S_T1)}, {sr(S_T1)}, 14
          s_add_u32 {sr(S_T1)}, {sr(S_T1)}, {L_X}
          s_waitcnt lgkmcnt(0)
          s_mov_b32 {sr(S_X)}, {sr(S_KA+0)}
          s_mov_b32 {sr(S_X+1)}, {sr(S_KA+1)}
          s_load_dword {sr(S_TAG)}, {sr(S_KA+22,2)}, {WS_E}""")
    tag_setup()
    XB = opts.get("xb", 0)
    for c in range(XB): a("s_barrier")
    for i in range(3):
        a(f"""s_add_u32 {sr(S_T3)}, {sr(S_RGJ)}, {i+1}
              s_and_b32 {sr(S_T3)}, {sr(S_T3)}, 3
              s_lshl_b32 {sr(S_T2)}, {sr(S_T3)}, 10
              s_add_u32 {sr(S_U0)}, {sr(S_T2)}, {sr(S_T1)}
              s_lshl_b32 {sr(S_T2)}, {sr(S_T3)}, 14
              s_add_u32 {sr(S_U1)}, {sr(S_T2)}, {sr(S_T0)}""")
        if i > 0 or XB == 0 or True:
            a("s_barrier")
        for k in range(4):
            a(f"s_add_u32 m0, {sr(S_U0)}, {k*4096 - (k%2)*64}")
            a(f"s_xor_b32 {sr(S_U1)}, {sr(S_U1)}, 128" if k == 2 else "s_nop 0")
            a(f"buffer_load_dwordx4 {vr(V_XOFF)}, {sr(S_X,4)}, {sr(S_U1)} offen offset:{(k%2)*64} lds")
        if i == opts.get("kpf", 1):
            srd(S_WOB, 2, 0x180000)
            a(f"""v_lshrrev_b32 {vr(V_T0)}, 3, {vr(V_LANE)}
                  v_mul_u32_u24 {vr(V_T0)}, 3072, {vr(V_T0)}
                  v_and_b32 {vr(V_T1)}, 7, {vr(V_LANE)}
                  v_lshl_add_u32 {vr(V_T0)}, {vr(V_T1)}, 7, {vr(V_T0)}
                  s_mul_i32 {sr(S_T2)}, s2, 6144
                  s_sub_u32 {sr(S_T3)}, {sr(S_WAVE)}, 9
                  s_lshl_b32 {sr(S_T3)}, {sr(S_T3)}, 10
                  s_add_u32 {sr(S_T2)}, {sr(S_T2)}, {sr(S_T3)}
                  s_mov_b64 exec, 0xffff
                  buffer_load_dword {vr(V_FLG)}, {vr(V_T0)}, {sr(S_WOB,4)}, {sr(S_T2)} offen
                  s_mov_b64 exec, -1""")
    assert XB == 0
    kv_setup(); rot_setup(); foff_setup()
    def stageB():
        kv_sample()
        a("s_waitcnt vmcnt(0)")
        kv_spin("L_skvB", False)
        stamp(5)
        kv_dma("L_kvdB", 8, 12)
        a(f"""s_or_b32 {sr(S_T0)}, s2, {sr(S_RT)}
              s_cmp_lg_u32 {sr(S_T0)}, 0
              s_cbranch_scc1 L_noep
              s_mov_b32 {sr(S_T0)}, {WS_E}""")
        flag_store(S_T0)
        a.label("L_noep")
        a.vm = []
    ES = opts.get("es", 5)
    for c in range(3, ES + 1):
        if c == 4: a("s_waitcnt vmcnt(0)")
        a("s_barrier")
    bars_ = {}
    st = -1
    for c in range(ES + 1, 8):
        bars_[st] = bars_.get(st, 0) + 1
        st = 1 if st < 0 else st + opts.get("esp", 1)
    ne, n2 = opts.get("ne", 8), opts.get("n2", 12)
    assert n2 >= ne + 4
    bars_[ne] = bars_.get(ne, 0) + 1
    bars_[n2] = bars_.get(n2, 0) + 1
    kv_pass(bars_, {ne: stageB})

    a.label("L_kvend")
    stamp(12)
    a(f"""v_add_u32 {vr(V_XA0)}, {sr(S_KM)}, {vr(V_L16)}
          s_nop 8
          s_cmp_lt_u32 {sr(S_AUX)}, 2
          s_cbranch_scc1 L_kcvt""")
    phi(KACC[0], 32, 56)
    a(f"""s_cmp_eq_u32 {sr(S_AUX)}, 2
          s_cselect_b32 {sr(S_WOA)}, {sr(S_KA+4)}, {sr(S_KA+14)}
          s_cselect_b32 {sr(S_WOA+1)}, {sr(S_KA+5)}, {sr(S_KA+15)}
          s_mov_b32 {sr(S_WOA+2)}, 0x80000
          s_mov_b32 {sr(S_WOA+3)}, 0x20000
          v_lshlrev_b32 {vr(V_T0)}, 7, {vr(V_LANE)}
          s_lshl_b32 {sr(S_T0)}, s2, 11
          s_mov_b64 exec, 0xffff
          buffer_load_dword {vr(V_FLG)}, {vr(V_T0)}, {sr(S_WOA,4)}, {sr(S_T0)} offen
          s_mov_b64 exec, -1""")
    a.label("L_kcvt")
    for f in range(4):
        for i in range(4):
            a(f"v_cvt_pk_bf16_f32 {vr(56+4*f+i)}, {vr(KACC[0]+8*f+2*i)}, {vr(KACC[0]+8*f+2*i+1)}")
        a(f"ds_write_b128 {vr(V_XA0)}, {vr(56+4*f,4)} offset:{f*1024}")
    a(f"""v_add_u32 {vr(V_T0)}, {sr(S_KM)}, {vr(V_L4)}
          v_add_u32 {vr(V_T1)}, {L_HI}, {vr(V_L4)}
          s_waitcnt lgkmcnt(0)
          ds_write_b32 {vr(V_T0)}, {vr(V_TAG)} offset:4096
          s_mov_b32 {sr(S_SPIN)}, 0""")
    stamp(13)
    a.label("L_rdv")
    for k in range(4):
        a(f"ds_read_b32 {vr(72+k)}, {vr(V_T1)} offset:{4096 + k*8192}")
    a(f"""s_waitcnt lgkmcnt(0)
          v_min3_u32 {vr(76)}, {vr(72)}, {vr(73)}, {vr(74)}
          v_max3_u32 {vr(77)}, {vr(72)}, {vr(73)}, {vr(74)}
          v_min3_u32 {vr(76)}, {vr(76)}, {vr(75)}, {vr(V_TAG)}
          v_max3_u32 {vr(77)}, {vr(77)}, {vr(75)}, {vr(V_TAG)}
          v_cmp_ne_u32 vcc, {vr(76)}, {vr(77)}
          s_cbranch_vccz L_rdv_ok
          s_sleep 4
          s_add_u32 {sr(S_SPIN)}, {sr(S_SPIN)}, 1
          s_cmp_lt_u32 {sr(S_SPIN)}, 1000000
          s_cbranch_scc1 L_rdv""")
    a.label("L_rdv_ok")
    a(f"""s_cmp_lt_u32 {sr(S_AUX)}, 2
          s_cbranch_scc1 L_a01b""")
    rot_setup()
    kv_dma("L_kvdC", 32, 16)
    a("s_waitcnt vmcnt(0)")
    stamp(14)
    if ts: ts_out()
    a("s_endpgm")

    a.label("L_a01b")
    HV, HK_, HKV, HZ, HON = 56, 72, 16, 32, 52
    a(f"""s_lshl_b32 {sr(S_T0)}, {sr(S_AUX)}, 11
          s_add_u32 {sr(S_T0)}, {sr(S_T0)}, {L_HI}
          v_add_u32 {vr(V_T1)}, {sr(S_T0)}, {vr(V_L16)}""")
    for f in range(4):
        off = (f // 2) * 8192 + (f % 2) * 1024
        a(f"ds_read_b128 {vr(HV+4*f,4)}, {vr(V_T1)} offset:{off}")
        a(f"ds_read_b128 {vr(HK_+4*f,4)}, {vr(V_T1)} offset:{16384 + off}")
    for i in range(4):
        a(f"v_mov_b32 {vr(HON+i)}, {sr(S_ONES)}")
    a(f"""v_bfe_u32 {vr(V_T2)}, {vr(V_LANE)}, 3, 1
          v_lshlrev_b32 {vr(V_T2)}, 11, {vr(V_T2)}
          v_and_b32 {vr(V_T3)}, 3, {vr(V_LANE)}
          v_lshl_add_u32 {vr(V_T2)}, {vr(V_T3)}, 9, {vr(V_T2)}
          v_bfe_u32 {vr(V_T3)}, {vr(V_LANE)}, 4, 1
          v_lshl_add_u32 {vr(V_T2)}, {vr(V_T3)}, 3, {vr(V_T2)}
          v_bfe_u32 {vr(V_T3)}, {vr(V_LANE)}, 2, 1
          v_lshl_add_u32 {vr(V_T2)}, {vr(V_T3)}, 2, {vr(V_T2)}
          s_waitcnt lgkmcnt(0)""")
    for f in range(4):
        a(f"v_mfma_f32_32x32x16_bf16 {vr(HKV,16)}, {vr(HK_+4*f,4)}, {vr(HV+4*f,4)}, {'0' if f==0 else vr(HKV,16)}")
        a(f"v_mfma_f32_32x32x16_bf16 {vr(HZ,16)}, {vr(HON,4)}, {vr(HK_+4*f,4)}, {'0' if f==0 else vr(HZ,16)}")
    a(f"""s_lshl_b32 {sr(S_T0)}, {sr(S_HGK)}, 1
          s_add_u32 {sr(S_T0)}, {sr(S_T0)}, {sr(S_AUX)}
          s_lshl_b32 {sr(S_T0)}, {sr(S_T0)}, 12
          s_add_u32 {sr(S_T0)}, {sr(S_T0)}, {WS_ACC}
          s_nop 7""")
    for r in range(8):
        a(f"v_cndmask_b32 {vr(HKV+r)}, {vr(HKV+8+r)}, {vr(HKV+r)}, {sr(S_VMASK,2)}")
    for r in range(8):
        a(f"buffer_atomic_add_f32 {vr(HKV+r)}, {vr(V_L4)}, {sr(S_WS,4)}, {sr(S_T0)} offen offset:{r*512} sc1")
    a(f"""s_mov_b32 exec_hi, 0
          buffer_atomic_add_f32 {vr(HZ)}, {vr(V_T2)}, {sr(S_WS,4)}, {sr(S_T0)} offen offset:256 sc1
          s_mov_b32 exec_hi, -1
          s_lshl_b32 {sr(S_T3)}, {sr(S_HGK)}, 8
          s_lshl_b32 {sr(S_T0)}, {sr(S_QB)}, 1
          s_add_u32 {sr(S_T0)}, {sr(S_T0)}, {sr(S_AUX)}
          s_lshl_b32 {sr(S_T0)}, {sr(S_T0)}, 2
          s_add_u32 {sr(S_T0)}, {sr(S_T0)}, {sr(S_T3)}
          s_add_u32 {sr(S_T0)}, {sr(S_T0)}, {WS_FA}
          s_lshl_b32 {sr(S_T3)}, {sr(S_HGQ)}, 8
          s_add_u32 {sr(S_T3)}, {sr(S_T3)}, {WS_FA}
          s_waitcnt vmcnt(0)""")
    flag_store(S_T0)
    stamp(15)
    a(f"""s_cmp_eq_u32 {sr(S_AUX)}, 1
          s_cbranch_scc1 L_a1b
          s_barrier
          s_mov_b32 {sr(S_SPIN)}, 0""")
    a.label("L_sfa")
    a(f"""buffer_load_dword {vr(V_FLG)}, {vr(V_L4)}, {sr(S_WS,4)}, {sr(S_T3)} offen sc1
          s_waitcnt vmcnt(0)
          v_cmp_ne_u32 vcc, {vr(V_FLG)}, {vr(V_TAG)}
          s_cbranch_vccz L_sfa_ok
          s_add_u32 {sr(S_SPIN)}, {sr(S_SPIN)}, 1
          s_cmp_lt_u32 {sr(S_SPIN)}, 100000
          s_cbranch_scc1 L_sfa""")
    a.label("L_sfa_ok")
    stamp(16)
    if ts: ts_out()
    a("""s_barrier
         s_endpgm""")

    a.label("L_a1b")
    srd(S_WOA, 4, 0x80000)
    srd(S_WOB, 14, 0x80000)
    omap()
    swz64(V_WOFF, 1024)
    stamp(14)
    a("s_barrier")
    def wodma(lbl, srdw, r0, nrows, dst):
        a(f"""s_lshl_b32 {sr(S_T0)}, {sr(S_NS)}, 7
              s_add_u32 {sr(S_T0)}, {sr(S_T0)}, {r0*1024}
              s_mov_b32 m0, {dst}""")
        a.label(lbl)
        a("s_waitcnt vmcnt(40)")
        for i in range(4):
            a(f"buffer_load_dwordx4 {vr(V_WOFF)}, {sr(srdw,4)}, {sr(S_T0)} offen lds")
            a(f"""s_add_u32 m0, m0, 1024
                  s_add_u32 {sr(S_T0)}, {sr(S_T0)}, 8192""")
        a(f"""s_cmp_lt_u32 m0, {dst + nrows*128}
              s_cbranch_scc1 {lbl}""")
    wodma("L_woa", S_WOA, 0, 512, 0)
    stamp(15)
    a("s_barrier")
    wodma("L_wob0", S_WOB, 0, 256, L_HI)
    a("s_waitcnt vmcnt(0)")
    stamp(16)
    a("s_barrier")
    wodma("L_wob1", S_WOB, 256, 256, 65536)
    a("s_waitcnt vmcnt(0)")
    if ts:
        stamp(17)
        ts_out()
    a("""s_barrier
         s_endpgm""")

    head = open("cdna_kernels/" + NAME + ".s.ref").read().split("\n")
    hdr = [l for l in head if l.startswith(";") and "@launch" not in l and "Override" not in l and "grid=ceil" not in l]
    out = "\n".join(hdr) + f"\n; @launch grid=(256,1,1) block=({NWAVE*64},1,1) lds={LDS_SIZE}\n"
    out += f""".amdgcn_target "amdgcn-amd-amdhsa--gfx950"
.text
.globl {NAME}_kernel
.p2align 8
.type {NAME}_kernel,@function
"""
    out += a.text()
    out += f""".section .rodata,"a"
.p2align 6
.amdhsa_kernel {NAME}_kernel
  .amdhsa_next_free_vgpr {NVGPR}
  .amdhsa_next_free_sgpr 102
  .amdhsa_accum_offset {NVGPR}
  .amdhsa_group_segment_fixed_size 0
  .amdhsa_kernarg_size 96
  .amdhsa_user_sgpr_count 2
  .amdhsa_user_sgpr_kernarg_segment_ptr 1
  .amdhsa_system_sgpr_workgroup_id_x 1
.end_amdhsa_kernel
"""
    return out

if __name__ == "__main__":
    opts = {}
    outp = "cdna_kernels/" + NAME + ".s"
    for arg in sys.argv[1:]:
        if arg.startswith("-o"):
            outp = arg[2:]
        elif "=" in arg:
            k, v = arg.split("=")
            opts[k] = int(v)
        else:
            opts[arg] = True
    open(outp, "w").write(gen(opts))
    print("wrote", outp)
```

```python
import sys, math, struct

NAME = "gated_mix__linear_attn_block__grouped_kv_mqa__prompt"

def f2u(x):
    return struct.unpack("<I", struct.pack("<f", x))[0]

class Asm:
    def __init__(self):
        self.lines = []
        self.vm = []
    def __call__(self, s):
        for l in s.split("\n"):
            l = l.strip()
            if l:
                self.lines.append("    " + l)
    def label(self, l):
        self.lines.append(l + ":")
    def vmem(self, s, tag):
        self(s)
        self.vm.append(tag)
        assert len(self.vm) <= 63
    def vm_n(self, tag):
        idx = max(i for i, t in enumerate(self.vm) if t == tag)
        return len(self.vm) - 1 - idx
    def drop_to(self, n):
        self.vm = self.vm[len(self.vm) - n:] if n else []
    def wait_vm(self, tag, extra=""):
        n = 0 if tag is None else self.vm_n(tag)
        self.drop_to(n)
        self(f"s_waitcnt vmcnt({n}) {extra}".strip())
    def text(self):
        return "\n".join(self.lines) + "\n"

def vr(a, n=1):
    return f"v{a}" if n == 1 else f"v[{a}:{a+n-1}]"
def sr(a, n=1):
    return f"s{a}" if n == 1 else f"s[{a}:{a+n-1}]"

WS_E = 0x000000
WS_FKV = 0x000400
WS_FA = 0x001000
WS_FO = 0x004000
WS_G = 0x014000
WS_KV = 0x020000
WS_ACC = 0x040000
WS_KVT = 0x080000
WS_OA = 0x200000
WS_OB = 0x208000
WS_DBG1 = 0x600000
WS_DBG2 = 0x800000
WS_TS = 0xA00000
WS_SIZE = 0x1000000
L_JW = 0
L_X = 65536
L_HI = 131072
L_GW = L_HI + 16384
RSLOT = [16384, 32768, 49152, L_HI]
LDS_SIZE = 163840
LOG2E = 1.4426950408889634
QSCALE = 0.25 * LOG2E
NVGPR = 168
NWAVE = 12

S_HGQ, S_TAG, S_QO, S_NS, S_RDY = 3, 4, 5, 6, 7
S_X, S_W, S_WJ = 8, 12, 16
S_EPS, S_ONES, S_RGJ, S_HGK = 20, 21, 22, 23
S_XMASK, S_HEADA, S_AUX = 24, 26, 27
S_WOA, S_WOB, S_OUT, S_DBG, S_WS = 28, 32, 36, 40, 44
S_WAVE, S_QB, S_HG, S_RT, S_HH = 48, 49, 50, 51, 52
S_T0, S_T1, S_T2, S_T3 = 53, 54, 55, 56
S_U0, S_U1, S_U2, S_U3 = 57, 58, 59, 60
S_SEG, S_SPIN, S_HEAD = 61, 62, 63
S_VMASK, S_RT32, S_RO32, S_SAVE = 64, 66, 67, 40
S_LOG2E, S_QS = 70, 72
S_TS = 74
S_J = 69
S_XCC, S_FAST = 18, 19
S_KA = 76

def gen(opts):
    ts = opts.get("ts", False)
    dbg = opts.get("dbg", False)
    a = Asm()
    V_STAMP = NVGPR - 1

    def stamp(i):
        if "dly" in opts:
            if i == opts.get("dly0", 0): a("s_memrealtime s[74:75]")
            if i == opts["dly"]: a("s_memrealtime s[100:101]")
        if not ts: return
        a(f"""s_memrealtime {sr(S_TS,2)}
              s_memtime s[100:101]
              s_waitcnt lgkmcnt(0)
              v_writelane_b32 v{V_STAMP}, {sr(S_TS)}, {i}
              v_writelane_b32 v{V_STAMP}, s100, {32+i}""")

    V_LANE = 1
    V_T0, V_T1, V_T2, V_T3 = 2, 3, 4, 5
    V_XOFF, V_WOFF = 6, 7
    V_XA0, V_XA1, V_WA = 8, 9, 10
    V_L16, V_G, V_IDX, V_KA, V_VA = 11, 12, 13, 14, 15
    V_QF, V_PQ = 16, 20
    V_ACCQ = 24
    V_FB = [40, 72]
    V_O, V_C, V_KF = 104, 120, 136
    V_VF = [140, 148]
    V_L4, V_FLG, V_TAG, V_WOA0, V_WOA1, V_WA3 = 156, 157, 158, 159, 160, 161
    V_PK = 162
    V_S = [24, 40]
    V_AC, V_OA = 56, 72
    V_FA, V_FBB, V_WO = 56, 120, 88
    V_OUT = [24, 40]

    def srd(s, ka, size):
        a(f"""s_mov_b32 {sr(s)}, {sr(S_KA+ka)}
              s_mov_b32 {sr(s+1)}, {sr(S_KA+ka+1)}
              s_mov_b32 {sr(s+2)}, {hex(size)}
              s_mov_b32 {sr(s+3)}, 0x20000""")
    def flag_store(soff):
        a(f"""s_mov_b64 exec, 1
              buffer_store_dword {vr(V_TAG)}, {vr(V_L4)}, {sr(S_WS,4)}, {sr(soff)} offen sc1
              s_mov_b64 exec, -1""")
    def flag_load(soff):
        a(f"""s_mov_b32 exec_hi, 0
              buffer_load_dword {vr(V_FLG)}, {vr(V_L4)}, {sr(S_WS,4)}, {sr(soff)} offen sc1
              s_mov_b32 exec_hi, -1""")
    def flag_spin(lbl, soff):
        a(f"s_mov_b32 {sr(S_SPIN)}, 0")
        a.label(lbl + "_loop")
        a(f"""v_cmp_ne_u32 vcc, {vr(V_FLG)}, {vr(V_TAG)}
              s_cmp_eq_u32 vcc_lo, 0
              s_cbranch_scc1 {lbl}_ok
              s_add_u32 {sr(S_SPIN)}, {sr(S_SPIN)}, 1
              s_cmp_ge_u32 {sr(S_SPIN)}, 100000
              s_cbranch_scc1 {lbl}_ok""")
        flag_load(soff)
        a(f"""s_waitcnt vmcnt(0)
              s_branch {lbl}_loop""")
        a.label(lbl + "_ok")
    def arm_spin(lbl, soff):
        a(f"s_mov_b32 {sr(S_SPIN)}, 0")
        a.label(lbl + "_loop")
        a(f"""v_sub_u32 {vr(V_FLG)}, {vr(V_FLG)}, {vr(V_TAG)}
              v_cmp_lt_u32 vcc, 15, {vr(V_FLG)}
              s_cmp_eq_u32 vcc_lo, 0
              s_cbranch_scc1 {lbl}_ok
              s_add_u32 {sr(S_SPIN)}, {sr(S_SPIN)}, 1
              s_cmp_ge_u32 {sr(S_SPIN)}, 100000
              s_cbranch_scc1 {lbl}_ok""")
        flag_load(soff)
        a(f"""s_waitcnt vmcnt(0)
              s_branch {lbl}_loop""")
        a.label(lbl + "_ok")
    def tag_setup():
        a(f"""s_waitcnt lgkmcnt(0)
              s_mul_i32 {sr(S_TAG)}, {sr(S_TAG)}, 0x9e3779b1
              s_add_u32 {sr(S_TAG)}, {sr(S_TAG)}, 0x7f4a7c15
              v_mov_b32 {vr(V_TAG)}, {sr(S_TAG)}""")
    def omap():
        a(f"""s_and_b32 {sr(S_QO)}, s2, 7
              s_lshl_b32 {sr(S_QO)}, {sr(S_QO)}, 2
              s_bfe_u32 {sr(S_T1)}, s2, 0x20003
              s_add_u32 {sr(S_QO)}, {sr(S_QO)}, {sr(S_T1)}
              s_lshr_b32 {sr(S_NS)}, s2, 5""")
    def ts_out():
        a(f"""s_mul_i32 {sr(S_T0)}, s2, {NWAVE}
              s_add_u32 {sr(S_T0)}, {sr(S_T0)}, {sr(S_WAVE)}
              s_lshl_b32 {sr(S_T0)}, {sr(S_T0)}, 8
              s_add_u32 {sr(S_T0)}, {sr(S_T0)}, {WS_TS}
              buffer_store_dword v{V_STAMP}, {vr(V_L4)}, {sr(S_WS,4)}, {sr(S_T0)} offen""")
    def phi(src, n, tmp):
        for i in range(0, n, 2):
            a(f"v_pk_mul_f32 {vr(tmp+i,2)}, {sr(S_LOG2E,2)}, {vr(src+i,2)}")
        for i in range(n):
            a(f"v_exp_f32 {vr(tmp+i)}, {vr(tmp+i)} clamp")
        for i in range(n):
            a(f"v_max_f32 {vr(src+i)}, {sr(S_EPS)}, {vr(src+i)}")
        for i in range(0, n, 2):
            a(f"v_pk_add_f32 {vr(src+i,2)}, {vr(src+i,2)}, {vr(tmp+i,2)}")

    a.label(f"{NAME}_kernel")
    a(f"""s_cmp_ge_u32 s2, 256
          s_cbranch_scc1 L_end
          s_load_dwordx16 {sr(S_KA,16)}, s[0:1], 0
          s_load_dwordx8 {sr(S_KA+16,8)}, s[0:1], 64
          v_and_b32 {vr(V_LANE)}, 63, v0
          v_lshrrev_b32 {vr(V_T0)}, 6, v0
          s_and_b32 {sr(S_T0)}, s2, 7
          v_readfirstlane_b32 {sr(S_WAVE)}, {vr(V_T0)}
          s_lshl_b32 {sr(S_T0)}, {sr(S_T0)}, 2
          s_bfe_u32 {sr(S_T1)}, s2, 0x20003
          s_add_u32 {sr(S_QB)}, {sr(S_T0)}, {sr(S_T1)}
          s_sub_u32 {sr(S_WAVE)}, {sr(S_WAVE)}, 4
          s_cselect_b32 {sr(S_T1)}, 12, 0
          s_add_u32 {sr(S_WAVE)}, {sr(S_WAVE)}, {sr(S_T1)}
          s_lshr_b32 {sr(S_HG)}, s2, 5
          s_lshr_b32 {sr(S_RGJ)}, {sr(S_HG)}, 1
          s_xor_b32 {sr(S_HGQ)}, {sr(S_HG)}, 1
          s_xor_b32 {sr(S_HGK)}, {sr(S_HG)}, 2""")
    stamp(0)
    a(f"""v_lshrrev_b32 {vr(V_T0)}, 4, {vr(V_LANE)}
          v_xor_b32 {vr(V_T0)}, {vr(V_T0)}, {vr(V_LANE)}
          v_and_b32 {vr(V_T0)}, 3, {vr(V_T0)}
          v_lshlrev_b32 {vr(V_T0)}, 4, {vr(V_T0)}
          v_lshrrev_b32 {vr(V_T1)}, 2, {vr(V_LANE)}
          v_lshl_add_u32 {vr(V_XOFF)}, {vr(V_T1)}, 10, {vr(V_T0)}
          v_lshlrev_b32 {vr(V_L16)}, 4, {vr(V_LANE)}
          v_lshlrev_b32 {vr(V_L4)}, 2, {vr(V_LANE)}
          s_mov_b32 {sr(S_X+2)}, 0x200000
          s_mov_b32 {sr(S_X+3)}, 0x20000
          s_and_b32 {sr(S_J)}, s2, {opts.get("jmask", 7)}
          s_lshl_b32 {sr(S_T0)}, {sr(S_QB)}, 16
          s_lshl_b32 {sr(S_T1)}, {sr(S_J)}, 7
          s_or_b32 {sr(S_T0)}, {sr(S_T0)}, {sr(S_T1)}
          s_cmp_eq_u32 {sr(S_WAVE)}, 8
          s_cbranch_scc1 L_a0
          s_cmp_eq_u32 {sr(S_WAVE)}, 9
          s_cbranch_scc1 L_a1
          s_cmp_ge_u32 {sr(S_WAVE)}, 10
          s_cbranch_scc1 L_a23
          s_and_b32 {sr(S_RT)}, {sr(S_WAVE)}, 1
          s_lshr_b32 {sr(S_HH)}, {sr(S_WAVE)}, 1""")
    S_XOFF, S_XM0 = S_U0, S_U1
    a(f"""s_and_b32 {sr(S_T1)}, {sr(S_WAVE)}, 3
          s_lshr_b32 {sr(S_T2)}, {sr(S_WAVE)}, 2
          s_lshl_b32 {sr(S_T3)}, {sr(S_T1)}, 14
          s_add_u32 {sr(S_XOFF)}, {sr(S_T0)}, {sr(S_T3)}
          s_lshl_b32 {sr(S_T3)}, {sr(S_T2)}, 7
          s_xor_b32 {sr(S_XOFF)}, {sr(S_XOFF)}, {sr(S_T3)}
          s_lshl_b32 {sr(S_XM0)}, {sr(S_T1)}, 10
          s_lshl_b32 {sr(S_T3)}, {sr(S_T2)}, 13
          s_add_u32 {sr(S_XM0)}, {sr(S_XM0)}, {sr(S_T3)}
          s_cmp_eq_u32 {sr(S_T1)}, {sr(S_RGJ)}
          s_cselect_b64 {sr(S_XMASK,2)}, 1, -1""")
    a(f"""v_lshrrev_b32 {vr(V_T0)}, 3, {vr(V_LANE)}
          v_and_b32 {vr(V_T3)}, 7, {vr(V_LANE)}
          v_lshlrev_b32 {vr(V_T3)}, 7, {vr(V_T3)}
          v_lshl_add_u32 {vr(V_T2)}, {vr(V_T0)}, 10, {vr(V_T3)}
          v_mul_u32_u24 {vr(V_T0)}, 3072, {vr(V_T0)}
          v_add_u32 {vr(V_T0)}, {vr(V_T0)}, {vr(V_T3)}
          s_xor_b32 {sr(S_T2)}, {sr(S_WAVE)}, {sr(S_J)}
          s_lshl_b32 {sr(S_T2)}, {sr(S_T2)}, 5
          s_lshr_b32 {sr(S_T3)}, s2, 3
          s_add_u32 {sr(S_T2)}, {sr(S_T2)}, {sr(S_T3)}
          s_lshl_b32 {sr(S_U2)}, {sr(S_T2)}, 11
          s_mul_i32 {sr(S_U3)}, {sr(S_T2)}, 6144
          s_lshl_b32 {sr(S_T3)}, {sr(S_HG)}, 13
          s_lshl_b32 {sr(S_RDY)}, {sr(S_WAVE)}, 10
          s_add_u32 {sr(S_T3)}, {sr(S_T3)}, {sr(S_RDY)}
          s_lshl_b32 {sr(S_RDY)}, {sr(S_QB)}, 16
          s_add_u32 {sr(S_T3)}, {sr(S_T3)}, {sr(S_RDY)}
          s_waitcnt lgkmcnt(0)
          s_mov_b32 {sr(S_X)}, {sr(S_KA+0)}
          s_mov_b32 {sr(S_X+1)}, {sr(S_KA+1)}
          s_load_dword {sr(S_TAG)}, {sr(S_KA+22,2)}, {WS_E}""")
    def xdma(r):
        a(f"s_xor_b32 {sr(S_T1)}, {sr(S_XOFF)}, {r*256}")
        a(f"s_add_u32 m0, {sr(S_XM0)}, {L_X + r*16384}")
        a(f"s_mov_b64 exec, {sr(S_XMASK,2)}")
        a.vmem(f"buffer_load_dwordx4 {vr(V_XOFF)}, {sr(S_X,4)}, {sr(S_T1)} offen lds", f"x{r}")
        a(f"s_add_u32 m0, {sr(S_XM0)}, {L_X + r*16384 + 4096 - 64}")
        a("s_nop 0")
        a.vmem(f"buffer_load_dwordx4 {vr(V_XOFF)}, {sr(S_X,4)}, {sr(S_T1)} offen offset:64 lds", f"x{r}")
        a("s_mov_b64 exec, -1")
    PF = opts.get("pf", 0)
    if not PF & 4: xdma(0)
    if PF & 1:
        a("s_mov_b64 exec, 0xff")
        a.vmem(f"buffer_load_dword {vr(V_FLG)}, {vr(V_T3)}, {sr(S_X,4)}, {sr(S_T3)} offen", "pf")
        a("s_mov_b64 exec, -1")
    if PF & 2:
        srd(S_W, 8, 0x80000)
        srd(S_WOB, 2, 0x180000)
        a(f"""s_lshl_b32 {sr(S_U2)}, s2, 11
              s_mul_i32 {sr(S_U3)}, s2, 6144
              s_cmp_eq_u32 {sr(S_WAVE)}, 0
              s_cselect_b64 exec, 0xffff, 1""")
        a.vmem(f"buffer_load_dword {vr(V_FLG)}, {vr(V_T2)}, {sr(S_W,4)}, {sr(S_U2)} offen", "pf")
        a.vmem(f"buffer_load_dword {vr(V_FLG)}, {vr(V_T0)}, {sr(S_WOB,4)}, {sr(S_U3)} offen", "pf")
        a("s_mov_b64 exec, -1")
    if PF & 4: xdma(0)
    srd(S_WS, 22, WS_SIZE)
    srd(S_OUT, 18, 0x200000)
    omap()
    a(f"""v_lshlrev_b32 {vr(V_T2)}, 15, {vr(V_LANE)}
          s_lshl_b32 {sr(S_T1)}, {sr(S_QB)}, 17
          s_lshl_b32 {sr(S_T2)}, {sr(S_QO)}, 17
          s_cmp_eq_u32 {sr(S_WAVE)}, 1
          s_cselect_b32 {sr(S_T1)}, {sr(S_T1)}, {sr(S_T2)}
          s_add_u32 {sr(S_T1)}, {sr(S_T1)}, {WS_OA}
          s_cmp_eq_u32 {sr(S_WAVE)}, 0
          s_cselect_b32 {sr(S_T1)}, 0x380, {sr(S_T1)}
          s_cselect_b32 exec_lo, 0xffffff, 15
          s_mov_b32 exec_hi, 0
          s_cmp_ge_u32 {sr(S_WAVE)}, 3
          s_cbranch_scc1 L_tlb1
          buffer_load_dword {vr(V_FLG)}, {vr(V_T2)}, {sr(S_WS,4)}, {sr(S_T1)} offen sc1
          s_branch L_tlb2""")
    a.label("L_tlb1")
    a(f"""s_lshl_b32 {sr(S_T1)}, {sr(S_QO)}, 16
          s_mov_b32 exec_lo, 3
          buffer_load_dword {vr(V_FLG)}, {vr(V_T2)}, {sr(S_OUT,4)}, {sr(S_T1)} offen""")
    a.label("L_tlb2")
    a("s_mov_b64 exec, -1")
    a.vm.append("tlb")
    xdma(1)
    def consts():
        a(f"""s_mov_b32 {sr(S_VMASK)}, 0xffff
              s_mov_b32 {sr(S_VMASK+1)}, 0xffff
              s_mov_b32 {sr(S_LOG2E)}, {hex(f2u(LOG2E))}
              s_mov_b32 {sr(S_LOG2E+1)}, {hex(f2u(LOG2E))}
              s_mov_b32 {sr(S_EPS)}, {hex(f2u(1e-6))}
              s_mov_b32 {sr(S_ONES)}, 0x3f803f80""")
    def xfrag_addr(rt_s):
        a(f"""v_and_b32 {vr(V_T0)}, 31, {vr(V_LANE)}
              v_lshrrev_b32 {vr(V_T1)}, 5, {vr(V_LANE)}
              v_bfe_u32 {vr(V_T2)}, {vr(V_LANE)}, 2, 2
              v_xor_b32 {vr(V_T2)}, {vr(V_T2)}, {vr(V_T1)}
              v_lshlrev_b32 {vr(V_T2)}, 4, {vr(V_T2)}
              v_lshl_add_u32 {vr(V_T3)}, {vr(V_T0)}, 6, {vr(V_T2)}
              s_lshl_b32 {sr(S_T0)}, {sr(rt_s)}, 11
              s_add_u32 {sr(S_T0)}, {sr(S_T0)}, {L_X}
              v_add_u32 {vr(V_XA0)}, {sr(S_T0)}, {vr(V_T3)}
              v_xor_b32 {vr(V_XA1)}, 32, {vr(V_XA0)}""")
    consts()
    a(f"""s_lshl_b32 {sr(S_HEAD)}, {sr(S_HG)}, 2
          s_add_u32 {sr(S_HEAD)}, {sr(S_HEAD)}, {sr(S_HH)}
          s_lshl_b32 {sr(S_HEADA)}, {sr(S_HGQ)}, 2
          s_add_u32 {sr(S_HEADA)}, {sr(S_HEADA)}, {sr(S_HH)}
          s_lshl_b32 {sr(S_RT32)}, {sr(S_QB)}, 1
          s_add_u32 {sr(S_RT32)}, {sr(S_RT32)}, {sr(S_RT)}
          s_lshl_b32 {sr(S_RO32)}, {sr(S_QO)}, 1
          s_add_u32 {sr(S_RO32)}, {sr(S_RO32)}, {sr(S_RT)}
          s_mov_b32 {sr(S_QS)}, {hex(f2u(QSCALE))}
          s_mov_b32 {sr(S_QS+1)}, {hex(f2u(QSCALE))}""")
    xfrag_addr(S_RT)
    a(f"""v_bfe_u32 {vr(V_T0)}, {vr(V_LANE)}, 4, 1
          v_bfe_u32 {vr(V_T2)}, {vr(V_LANE)}, 3, 2
          v_xor_b32 {vr(V_T2)}, {sr(S_HH)}, {vr(V_T2)}
          v_lshlrev_b32 {vr(V_T2)}, 5, {vr(V_T2)}
          v_lshl_add_u32 {vr(V_T2)}, {vr(V_T0)}, 13, {vr(V_T2)}
          v_lshl_add_u32 {vr(V_T2)}, {vr(V_T1)}, 10, {vr(V_T2)}
          v_bfe_u32 {vr(V_T0)}, {vr(V_LANE)}, 2, 2
          v_lshl_add_u32 {vr(V_T2)}, {vr(V_T0)}, 7, {vr(V_T2)}
          v_and_b32 {vr(V_T0)}, 3, {vr(V_LANE)}
          v_lshl_add_u32 {vr(V_WA)}, {vr(V_T0)}, 3, {vr(V_T2)}
          v_add_u32 {vr(V_WA3)}, {L_HI}, {vr(V_WA)}""")
    for i in range(8):
        a(f"v_mov_b32 {vr(V_ACCQ+i)}, 0")
        a(f"v_mov_b32 {vr(V_ACCQ+8+i)}, {sr(S_EPS)}")
    a(f"""v_mov_b32 {vr(V_T0)}, {sr(S_ONES)}
          s_mov_b32 {sr(S_SAVE)}, 0x110000
          s_mov_b32 {sr(S_SAVE+1)}, 0x110000
          v_cndmask_b32 {vr(V_T0)}, 0, {vr(V_T0)}, {sr(S_SAVE,2)}""")
    for i in range(16):
        a(f"v_mov_b32 {vr(V_O+i)}, 0")
        a(f"v_mov_b32 {vr(V_VF[0]+i)}, {vr(V_T0)}")
    a(f"""v_mov_b32 {vr(V_IDX)}, 0xdddd
          v_mov_b32 {vr(V_KA)}, {vr(V_L16)}
          v_and_b32 {vr(V_T3)}, 15, {vr(V_LANE)}
          v_lshlrev_b32 {vr(V_T3)}, 4, {vr(V_T3)}
          v_lshl_add_u32 {vr(V_VA)}, {vr(V_T1)}, 8, {vr(V_T3)}""")
    V_GA, V_ACA, V_ARM = V_WOFF, 166, 0
    S_GOFF, S_MYFO, S_INFO, S_ACC = 28, 29, 30, 31
    def ooff(dst, base):
        a(f"""s_lshl_b32 {sr(dst)}, {sr(S_RT32)}, 6
              s_add_u32 {sr(dst)}, {sr(dst)}, {sr(S_HEADA if base == WS_OA else S_HEAD)}
              s_lshl_b32 {sr(dst)}, {sr(dst)}, 10
              s_add_u32 {sr(dst)}, {sr(dst)}, {base}""")
    ooff(S_RDY, WS_OB)
    ooff(S_AUX, WS_OA)
    a(f"""v_and_b32 {vr(V_T0)}, 0x3c, {vr(V_L4)}
          v_bfe_u32 {vr(V_T1)}, {vr(V_LANE)}, 4, 1
          v_lshl_add_u32 {vr(V_GA)}, {vr(V_T1)}, 7, {vr(V_T0)}
          s_lshl_b32 {sr(S_GOFF)}, {sr(S_RT32)}, 8
          s_add_u32 {sr(S_GOFF)}, {sr(S_GOFF)}, {WS_G}
          v_mov_b32 {vr(V_PK)}, -1
          v_mov_b32 {vr(V_PK+1)}, -1
          v_mov_b32 {vr(V_PK+2)}, -1
          v_mov_b32 {vr(V_PK+3)}, -1
          s_lshl_b32 {sr(S_MYFO)}, {sr(S_RT32)}, 5
          s_add_u32 {sr(S_MYFO)}, {sr(S_MYFO)}, {sr(S_HEAD)}
          s_lshl_b32 {sr(S_MYFO)}, {sr(S_MYFO)}, 2
          s_add_u32 {sr(S_MYFO)}, {sr(S_MYFO)}, {WS_FO}
          s_getreg_b32 {sr(S_XCC)}, hwreg(HW_REG_XCC_ID, 0, 4)
          v_lshrrev_b32 {vr(V_T0)}, 5, {vr(V_LANE)}
          v_lshlrev_b32 {vr(V_T0)}, 9, {vr(V_T0)}
          v_bfe_u32 {vr(V_T1)}, {vr(V_LANE)}, 2, 2
          v_lshl_add_u32 {vr(V_T0)}, {vr(V_T1)}, 7, {vr(V_T0)}
          v_bfe_u32 {vr(V_T1)}, {vr(V_LANE)}, 3, 1
          v_lshl_add_u32 {vr(V_T0)}, {vr(V_T1)}, 6, {vr(V_T0)}
          v_bfe_u32 {vr(V_T1)}, {vr(V_LANE)}, 4, 1
          v_lshl_add_u32 {vr(V_T0)}, {vr(V_T1)}, 5, {vr(V_T0)}
          v_and_b32 {vr(V_T1)}, 3, {vr(V_LANE)}
          v_lshl_add_u32 {vr(V_T0)}, {vr(V_T1)}, 3, {vr(V_T0)}
          s_lshl_b32 {sr(S_T0)}, {sr(S_HH)}, 14
          v_add_u32 {vr(V_WOA0)}, {sr(S_T0)}, {vr(V_T0)}
          v_xor_b32 {vr(V_WOA1)}, 64, {vr(V_WOA0)}
          s_lshl_b32 {sr(S_U0)}, {sr(S_RO32)}, 3
          s_add_u32 {sr(S_U0)}, {sr(S_U0)}, {sr(S_HH)}
          s_lshl_b32 {sr(S_U0)}, {sr(S_U0)}, 13
          s_add_u32 {sr(S_U0)}, {sr(S_U0)}, {WS_OA}
          s_add_u32 {sr(S_U1)}, {sr(S_U0)}, 4096
          s_lshl_b32 {sr(S_U2)}, {sr(S_RO32)}, 4
          s_add_u32 {sr(S_U2)}, {sr(S_U2)}, {sr(S_HH)}
          s_lshl_b32 {sr(S_U2)}, {sr(S_U2)}, 12
          s_add_u32 {sr(S_U2)}, {sr(S_U2)}, {WS_OB}
          s_add_u32 {sr(S_U3)}, {sr(S_U2)}, 16384
          s_and_b32 {sr(S_T1)}, {sr(S_HEADA)}, 1
          v_lshrrev_b32 {vr(V_T1)}, 5, {vr(V_LANE)}
          s_lshl_b32 {sr(S_T2)}, {sr(S_T1)}, 1
          s_add_u32 {sr(S_T2)}, {sr(S_T2)}, 64
          v_add_u32 {vr(V_T1)}, {sr(S_T2)}, {vr(V_T1)}
          v_and_b32 {vr(V_T0)}, 0x2f, {vr(V_LANE)}
          s_lshl_b32 {sr(S_T2)}, {sr(S_T1)}, 4
          v_add_u32 {vr(V_T0)}, {sr(S_T2)}, {vr(V_T0)}
          v_cndmask_b32 {vr(V_T0)}, {vr(V_T0)}, {vr(V_T1)}, {sr(S_VMASK,2)}
          v_lshlrev_b32 {vr(V_ACA)}, 2, {vr(V_T0)}
          s_lshr_b32 {sr(S_ACC)}, {sr(S_HEADA)}, 1
          s_lshl_b32 {sr(S_ACC)}, {sr(S_ACC)}, 12
          s_add_u32 {sr(S_ACC)}, {sr(S_ACC)}, {WS_ACC}
          s_lshl_b32 {sr(S_INFO)}, {sr(S_RO32)}, 7
          s_add_u32 {sr(S_INFO)}, {sr(S_INFO)}, {WS_FO}""")
    tag_setup()
    a(f"v_add_u32 {vr(V_ARM)}, {sr(S_XCC)}, {vr(V_TAG)}")
    stamp(1)

    def reads(c):
        fb = V_FB[c % 2]
        s = c % 4
        wa, wo = (V_WA, RSLOT[s]) if s < 3 else (V_WA3, 0)
        r = []
        for p in range(4):
            r.append(f"ds_read_b128 {vr(fb+4*p,4)}, {vr(V_XA0 if p%2==0 else V_XA1)} offset:{(2*c + p//2)*4096}")
            for u in range(2):
                r.append(f"ds_read_b64_tr_b16 {vr(fb+16+4*p+2*u,2)}, {vr(wa)} offset:{wo + p*2048 + u*512}")
        return r
    def mfmas(c):
        fb = V_FB[c % 2]
        return [f"v_mfma_f32_32x32x16_bf16 {vr(V_ACCQ,16)}, {vr(fb+16+4*p,4)}, {vr(fb+4*p,4)}, {vr(V_ACCQ,16)}" for p in range(4)]
    for c in range(8):
        if c in (0, 2):
            a.wait_vm(f"x{c//2}", "lgkmcnt(0)")
        else:
            a("s_waitcnt lgkmcnt(0)")
        a("s_barrier")
        R_ = reads(c)
        if c == 0:
            for r in R_: a(r)
        else:
            M_ = mfmas(c - 1)
            for k in range(4):
                a(M_[k])
                for r in R_[4*k:4*k+4]: a(r)
    for k, m in enumerate(mfmas(7)):
        a(f"s_waitcnt lgkmcnt({9-3*k})")
        a(m)
    stamp(2)
    E = V_FB[0]
    a(f"""s_mov_b32 {sr(S_SEG)}, 0
          s_nop 10""")
    for i in range(0, 8, 2):
        a(f"v_pk_mul_f32 {vr(V_ACCQ+i,2)}, {sr(S_QS,2)}, {vr(V_ACCQ+i,2)}")
    for i in range(4):
        a(f"v_cvt_pk_bf16_f32 {vr(V_QF+i)}, {vr(V_ACCQ+2*i)}, {vr(V_ACCQ+2*i+1)}")
    phi(V_ACCQ + 8, 8, E)
    for i in range(4):
        a(f"v_cvt_pk_bf16_f32 {vr(V_PQ+i)}, {vr(V_ACCQ+8+2*i)}, {vr(V_ACCQ+8+2*i+1)}")
    stamp(3)
    a("s_barrier")
    a("s_setprio 3")
    stamp(4)
    a(f"""ds_read_b128 {vr(V_KF,4)}, {vr(V_KA)}
          s_mov_b64 exec, {sr(S_VMASK,2)}
          ds_read_b128 {vr(V_VF[0],4)}, {vr(V_VA)} offset:1024
          ds_read_b128 {vr(V_VF[0]+4,4)}, {vr(V_VA)} offset:1536
          ds_read_b128 {vr(V_VF[1],4)}, {vr(V_VA)} offset:{2048+1024}
          ds_read_b128 {vr(V_VF[1]+4,4)}, {vr(V_VA)} offset:{2048+1536}
          s_mov_b64 exec, -1
          s_waitcnt lgkmcnt(4)
          v_mfma_f32_32x32x16_bf16 {vr(V_S[0],16)}, {vr(V_KF,4)}, {vr(V_QF,4)}, 0
          ds_read_b128 {vr(V_KF,4)}, {vr(V_KA)} offset:2048""")
    if dbg:
        for reg, hd, base in ((V_QF, S_HEAD, WS_DBG1), (V_PQ, S_HEADA, WS_DBG2)):
            a(f"""s_lshl_b32 {sr(S_T0)}, {sr(S_RT32)}, 5
                  s_add_u32 {sr(S_T0)}, {sr(S_T0)}, {sr(hd)}
                  s_lshl_b32 {sr(S_T0)}, {sr(S_T0)}, 10
                  s_add_u32 {sr(S_T1)}, {sr(S_T0)}, {base}
                  buffer_store_dwordx4 {vr(reg,4)}, {vr(V_L16)}, {sr(S_WS,4)}, {sr(S_T1)} offen""")
    S0 = V_S[0]
    a(f"""s_nop 10
          v_max3_f32 {vr(V_T0)}, {vr(S0)}, {vr(S0+1)}, {vr(S0+2)}
          v_max3_f32 {vr(V_T1)}, {vr(S0+3)}, {vr(S0+4)}, {vr(S0+5)}
          v_max3_f32 {vr(V_T2)}, {vr(S0+6)}, {vr(S0+7)}, {vr(S0+8)}
          v_max3_f32 {vr(V_T3)}, {vr(S0+9)}, {vr(S0+10)}, {vr(S0+11)}
          v_max3_f32 {vr(V_T0)}, {vr(V_T0)}, {vr(S0+12)}, {vr(S0+13)}
          v_max3_f32 {vr(V_T1)}, {vr(V_T1)}, {vr(S0+14)}, {vr(S0+15)}
          v_max3_f32 {vr(V_T0)}, {vr(V_T0)}, {vr(V_T1)}, {vr(V_T2)}
          v_max_f32 {vr(V_T0)}, {vr(V_T0)}, {vr(V_T3)}
          v_mov_b32 {vr(V_T1)}, {vr(V_T0)}
          s_nop 1
          v_permlane32_swap_b32 {vr(V_T0)}, {vr(V_T1)}
          s_nop 1
          v_max_f32 {vr(V_T0)}, {vr(V_T0)}, {vr(V_T1)}
          v_sub_f32 {vr(V_T2)}, 0, {vr(V_T0)}
          v_sub_f32 {vr(V_T3)}, 0, {vr(V_T0)}""")
    for i in range(0, 16, 2):
        a(f"v_pk_add_f32 {vr(S0+i,2)}, {vr(S0+i,2)}, {vr(V_T2,2)}")
    for i in range(0, 16, 2):
        a(f"v_pk_mov_b32 {vr(V_C+i,2)}, {vr(V_T2,2)}, {vr(V_T2,2)} op_sel:[0,1]")
    a(f"""v_exp_f32 {vr(S0)}, {vr(S0)}
          v_exp_f32 {vr(S0+1)}, {vr(S0+1)}
          s_waitcnt lgkmcnt(0)""")
    stamp(5)

    PR = opts.get("ramp", "3210")
    PR = [int(ch) for ch in str(PR).zfill(4)]
    def oload(i, dst, br):
        so = [[S_U0, S_U1], [S_U2, S_U3]][br][i // 4]
        a(f"buffer_load_dwordx4 {vr(dst+4*i,4)}, {vr(V_L16)}, {sr(S_WS,4)}, {sr(so)} offen offset:{(i%4)*1024} sc1")
    def osan():
        for i in range(4):
            a(f"v_min_u32 {vr(V_PK+i)}, -2, {vr(V_PK+i)}")
    ins = {}
    def at(p, slot, fn): ins.setdefault((p, slot), []).append(fn)
    HK = 8 * opts.get("hk", 3)
    H5 = opts.get('h5', 40)
    bars = {8: (2, 11), 32: (0, 13), H5: (2, 17), 48: (0, 19)}
    at(8, "B", lambda: a(f"buffer_load_dword {vr(V_G)}, {vr(V_GA)}, {sr(S_WS,4)}, {sr(S_GOFF)} offen sc1"))
    at(9, "A", lambda: a(f"buffer_store_dwordx4 {vr(V_PK,4)}, {vr(V_L16)}, {sr(S_WS,4)}, {sr(S_RDY)} offen sc1"))
    at(10, "A", lambda: a(f"buffer_store_dwordx4 {vr(V_PK,4)}, {vr(V_L16)}, {sr(S_WS,4)}, {sr(S_AUX)} offen sc1"))
    at(20, "A", lambda: a(f"""s_waitcnt vmcnt(0)
                              s_mov_b64 exec, 1
                              buffer_store_dword {vr(V_ARM)}, {vr(V_L4)}, {sr(S_WS,4)}, {sr(S_MYFO)} offen sc1
                              s_mov_b64 exec, -1"""))
    for r in range(8):
        at(H5 + r // 2, "AB"[r % 2], lambda r=r: a(f"buffer_load_dword {vr(V_AC+r)}, {vr(V_ACA)}, {sr(S_WS,4)}, {sr(S_ACC)} offen offset:{r*512} sc1"))
    at(38, "A", lambda: flag_load(S_INFO))
    PO = opts.get("po", H5 + 7)
    def oa1():
        a("s_waitcnt vmcnt(0)")
        for i in range(4):
            a(f"v_cvt_pk_bf16_f32 {vr(V_AC+8+i)}, {vr(V_AC+2*i)}, {vr(V_AC+2*i+1)}")
    at(PO, "A", oa1)
    at(PO, "B", lambda: a(f"v_mfma_f32_32x32x16_bf16 {vr(V_OA,16)}, {vr(V_AC+8,4)}, {vr(V_PQ,4)}, 0"))
    at(PO + 1, "B", lambda: a(f"""v_add_f32 {vr(V_T0)}, {sr(S_EPS)}, {vr(V_OA)}
                                  v_rcp_f32 {vr(V_T0)}, {vr(V_T0)}"""))
    def oa2():
        a(f"v_mul_f32 {vr(V_T0)}, {vr(V_T0)}, {vr(V_G)}")
        for i in range(0, 8, 2):
            a(f"v_pk_mul_f32 {vr(V_OA+8+i,2)}, {vr(V_OA+8+i,2)}, {vr(V_T0,2)} op_sel_hi:[1,0]")
        for i in range(4):
            a(f"v_cvt_pk_bf16_f32 {vr(V_PK+i)}, {vr(V_OA+8+2*i)}, {vr(V_OA+8+2*i+1)}")
        osan()
        a(f"buffer_store_dwordx4 {vr(V_PK,4)}, {vr(V_L16)}, {sr(S_WS,4)}, {sr(S_AUX)} offen sc1")
        a(f"v_sub_f32 {vr(V_G)}, 1.0, {vr(V_G)}")
    at(PO + 1, "C", oa2)
    def armchk():
        a.label("L_arm")
        a(f"""v_sub_u32 {vr(V_FLG)}, {vr(V_FLG)}, {vr(V_TAG)}
              v_cmp_lt_u32 vcc, 15, {vr(V_FLG)}
              s_cmp_eq_u32 vcc_lo, 0
              s_cbranch_scc0 L_armr""")
        a.label("L_armk")
        a(f"""v_cmp_ne_u32 vcc, {sr(S_XCC)}, {vr(V_FLG)}
              s_mov_b32 {sr(S_FAST)}, vcc_lo""")
    at(PO + 3, "A", armchk)
    for i in range(8):
        at(56 + i, "A", lambda i=i: oload(i, V_FA, 0))
    def run(p, slot):
        for fn in ins.get((p, slot), []): fn()
    a(f"s_mov_b32 {sr(S_SPIN)}, 0")
    for p in range(2, 66):
        cur, nxt = V_S[p % 2], V_S[(p + 1) % 2]
        vf = V_VF[p % 2]
        ex = lambda r: a(f"v_exp_f32 {vr(r)}, {vr(r)}")
        if p < 56:
            ramp = {0: PR[0], 4: PR[1], 6: PR[2], 7: PR[3]}
            if p < 8:
                r0 = {2: 2, opts.get("r1", 6): 1, 7: 0}
                if p in r0: a(f"s_setprio {r0[p]}")
            elif p % 8 in ramp: a(f"s_setprio {ramp[p % 8]}")
        else:
            ramp = {56: PR[0], 62: PR[1], 64: PR[2], 65: PR[3]}
            if p in ramp: a(f"s_setprio {ramp[p]}")
        for i in (2, 3, 4, 5): ex(cur + i)
        if p < 65:
            a(f"s_waitcnt lgkmcnt({bars[p][0] if p in bars else 2})")
            a(f"v_mfma_f32_32x32x16_bf16 {vr(nxt,16)}, {vr(V_KF,4)}, {vr(V_QF,4)}, {vr(V_C,16)}")
        else:
            a("s_waitcnt lgkmcnt(0)")
        if p == 32:
            a(f"""v_add_u32 {vr(V_KA)}, 0x10000, {vr(V_KA)}
                  v_add_u32 {vr(V_VA)}, 0x10000, {vr(V_VA)}""")
        if p in bars:
            stamp(bars[p][1])
            a("s_barrier")
            stamp(bars[p][1] + 1)
        off = (p % 32) * 2048
        if p < 64:
            a(f"ds_read_b128 {vr(V_KF,4)}, {vr(V_KA)} offset:{off}")
        elif p == 64:
            a("s_nop 0")
        run(p, "A")
        for i in (6, 7, 8, 9, 10): ex(cur + i)
        a(f"v_smfmac_f32_32x32x32_bf16 {vr(V_O,16)}, {vr(vf,4)}, {vr(cur,8)}, {vr(V_IDX)}")
        run(p, "B")
        for i in (11, 12, 13, 14, 15): ex(cur + i)
        if p < 65:
            ex(nxt); ex(nxt + 1)
        else:
            a("s_nop 1")
        a(f"v_smfmac_f32_32x32x32_bf16 {vr(V_O,16)}, {vr(vf+4,4)}, {vr(cur+8,8)}, {vr(V_IDX)}")
        if p < 64:
            a(f"""s_mov_b64 exec, {sr(S_VMASK,2)}
                  ds_read_b128 {vr(vf,4)}, {vr(V_VA)} offset:{off+1024}
                  ds_read_b128 {vr(vf+4,4)}, {vr(V_VA)} offset:{off+1536}
                  s_mov_b64 exec, -1""")
        run(p, "C")

    VB0, VB1, VC0, VC1 = V_XOFF, V_WOFF, V_PQ, V_PQ + 1
    def wo_one(n, nt):
        b = V_WO + 8 * (n % 4) + 4 * nt
        ad = [V_WOA0, V_WOA1][nt] if n < 8 else ([VB0, VB1][nt] if n < 12 else [VC0, VC1][nt])
        off = n * 2048 if n < 8 else (n % 4) * 2048
        for u in range(2):
            a(f"ds_read_b64_tr_b16 {vr(b+2*u,2)}, {vr(ad)} offset:{off + u*1024}")
    def wo_rd(n):
        wo_one(n, 0); wo_one(n, 1)
    def mm(n, nt):
        src = V_FA + 4 * n if n < 8 else V_FBB + 4 * (n - 8)
        a(f"v_mfma_f32_32x32x16_bf16 {vr(V_OUT[nt],16)}, {vr(V_WO+8*(n%4)+4*nt,4)}, {vr(src,4)}, {'0' if n == 0 else vr(V_OUT[nt],16)}")
    wo_rd(0); wo_rd(1)
    a(f"""s_mov_b32 {sr(S_T0)}, {hex(f2u(2.0**64))}
          s_nop 2""")
    stamp(6)
    a(f"""v_rcp_f32 {vr(V_T0)}, {vr(V_O+8)}
          v_cmp_nle_f32 vcc, {vr(V_O+8)}, {sr(S_T0)}
          v_pk_mul_f32 {vr(V_T2,2)}, {vr(V_O,2)}, 0
          v_pk_fma_f32 {vr(V_T2,2)}, {vr(V_O+2,2)}, 0, {vr(V_T2,2)}
          v_pk_fma_f32 {vr(V_T2,2)}, {vr(V_O+4,2)}, 0, {vr(V_T2,2)}
          v_pk_fma_f32 {vr(V_T2,2)}, {vr(V_O+6,2)}, 0, {vr(V_T2,2)}
          v_cmp_u_f32 {sr(S_SAVE,2)}, {vr(V_T2)}, {vr(V_T3)}
          s_or_b64 vcc, vcc, {sr(S_SAVE,2)}
          s_cbranch_vccnz L_fallback""")
    a.label("L_norm")
    a(f"v_mul_f32 {vr(V_T0)}, {vr(V_T0)}, {vr(V_G)}")
    for i in range(0, 8, 2):
        a(f"v_pk_mul_f32 {vr(V_O+i,2)}, {vr(V_O+i,2)}, {vr(V_T0,2)} op_sel_hi:[1,0]")
    for i in range(4):
        a(f"v_cvt_pk_bf16_f32 {vr(V_PK+i)}, {vr(V_O+2*i)}, {vr(V_O+2*i+1)}")
    osan()
    a(f"""s_cmp_eq_u32 {sr(S_FAST)}, 0
          s_cbranch_scc0 L_slowst
          buffer_store_dwordx4 {vr(V_PK,4)}, {vr(V_L16)}, {sr(S_WS,4)}, {sr(S_RDY)} offen {["", "nt", "sc0", "sc1"][opts.get("obf", 0)]}""")
    a.label("L_stdone")
    wo_rd(2)
    a(f"""s_mov_b32 {sr(S_SPIN)}, 0
          s_waitcnt vmcnt(1)""")
    a.label("L_oa")
    a(f"v_max3_u32 {vr(V_FLG)}, {vr(V_FA)}, {vr(V_FA+1)}, {vr(V_FA+2)}")
    for i in range(3, 31, 2):
        a(f"v_max3_u32 {vr(V_FLG)}, {vr(V_FLG)}, {vr(V_FA+i)}, {vr(V_FA+i+1)}")
    a(f"""v_max_u32 {vr(V_FLG)}, {vr(V_FLG)}, {vr(V_FA+31)}
          v_cmp_eq_u32 vcc, -1, {vr(V_FLG)}
          s_cbranch_vccnz L_oar""")
    a.label("L_oak")
    A0, A1, A2, A3 = V_XA0, V_XA1, V_WA, V_KA
    setup = f"""s_lshl_b32 {sr(S_T0)}, {sr(S_HH)}, 13
          s_sub_u32 {sr(S_T1)}, {L_HI}, {sr(S_T0)}
          v_add_u32 {vr(VB0)}, {sr(S_T1)}, {vr(V_WOA0)}
          v_add_u32 {vr(VB1)}, {sr(S_T1)}, {vr(V_WOA1)}
          s_sub_u32 {sr(S_T1)}, 65536, {sr(S_T0)}
          v_add_u32 {vr(VC0)}, {sr(S_T1)}, {vr(V_WOA0)}
          v_add_u32 {vr(VC1)}, {sr(S_T1)}, {vr(V_WOA1)}
          v_and_b32 {vr(V_T0)}, 31, {vr(V_LANE)}
          v_lshrrev_b32 {vr(V_T1)}, 5, {vr(V_LANE)}
          v_and_b32 {vr(V_T2)}, 7, {vr(V_LANE)}
          v_xor_b32 {vr(V_T1)}, {vr(V_T1)}, {vr(V_T2)}
          v_lshlrev_b32 {vr(V_T1)}, 4, {vr(V_T1)}
          v_lshl_add_u32 {vr(V_T0)}, {vr(V_T0)}, 8, {vr(V_T1)}
          s_lshl_b32 {sr(S_T0)}, {sr(S_HH)}, 14
          s_lshl_b32 {sr(S_T1)}, {sr(S_RT)}, 13
          s_add_u32 {sr(S_T0)}, {sr(S_T0)}, {sr(S_T1)}
          v_add_u32 {vr(V_T0)}, {sr(S_T0)}, {vr(V_T0)}
          v_xor_b32 {vr(V_T1)}, 32, {vr(V_T0)}
          v_xor_b32 {vr(V_T2)}, 64, {vr(V_T0)}
          v_xor_b32 {vr(V_T3)}, 96, {vr(V_T0)}
          v_lshrrev_b32 {vr(A0)}, 3, {vr(V_LANE)}
          v_and_b32 {vr(A1)}, 7, {vr(V_LANE)}
          v_lshlrev_b32 {vr(A2)}, 1, {vr(A1)}
          v_xor_b32 {vr(A2)}, {vr(A2)}, {vr(A0)}
          v_lshlrev_b32 {vr(A2)}, 4, {vr(A2)}
          v_lshl_add_u32 {vr(A2)}, {vr(A0)}, 8, {vr(A2)}
          s_lshl_b32 {sr(S_T0)}, {sr(S_WAVE)}, 11
          v_add_u32 {vr(A2)}, {sr(S_T0)}, {vr(A2)}
          v_xor_b32 {vr(A3)}, 16, {vr(A2)}
          v_lshlrev_b32 {vr(A1)}, 4, {vr(A1)}
          v_lshl_add_u32 {vr(A0)}, {vr(A0)}, 10, {vr(A1)}
          s_lshl_b32 {sr(S_RDY)}, {sr(S_QO)}, 16
          s_lshl_b32 {sr(S_T1)}, {sr(S_WAVE)}, 13
          s_add_u32 {sr(S_RDY)}, {sr(S_RDY)}, {sr(S_T1)}
          s_lshl_b32 {sr(S_T1)}, {sr(S_NS)}, 7
          s_add_u32 {sr(S_RDY)}, {sr(S_RDY)}, {sr(S_T1)}""".split("\n")
    OBAT = opts.get("obat", 5)
    sched = {i: [] for i in range(8)}
    for k in range(8):
        sched[min(7, OBAT + (k * (8 - OBAT)) // 8)].append(k)
    per = (len(setup) + 3) // 4
    def chk(i):
        f = V_FBB + 4 * i
        a(f"s_waitcnt vmcnt({7-i})")
        a.label(f"L_ob{i}")
        a(f"""v_max3_u32 {vr(V_FLG)}, {vr(f)}, {vr(f+1)}, {vr(f+2)}
              v_max_u32 {vr(V_FLG)}, {vr(V_FLG)}, {vr(f+3)}
              v_cmp_eq_u32 vcc, -1, {vr(V_FLG)}
              s_cbranch_vccnz L_obr{i}""")
        a.label(f"L_obk{i}")
    OBM = opts.get("obm", 0)
    for n in range(12):
        if n == 8: stamp(7)
        if OBM and n == OBM:
            a("s_barrier")
            for k in range(8): oload(k, V_FBB, 1)
        if n >= 8: chk(n - 8)
        a(f"s_waitcnt lgkmcnt({4 * (min(n + 2, 11) - n)})")
        mm(n, 0); mm(n, 1)
        if n < 4:
            for l in setup[n*per:(n+1)*per]: a(l)
        if n + 3 < 12: wo_rd(n + 3)
        if n < 8 and not OBM:
            for k in sched[n]: oload(k, V_FBB, 1)
    if OBM != 8: a("s_barrier")
    stamp(8)
    for n in range(12, 16): wo_one(n, 0)
    for n in range(12, 15): wo_one(n, 1)
    for n in range(12, 16):
        chk(n - 8)
        a(f"s_waitcnt lgkmcnt({12 if n == 12 else 2*(15-n) + 8})")
        mm(n, 0)
        if n == 12: wo_one(15, 1)
    for n in range(12, 16):
        a(f"s_waitcnt lgkmcnt({2*(15-n)})")
        mm(n, 1)
    stamp(9)
    a("s_nop 3")
    for nt in range(2):
        if nt: a("s_nop 3")
        for g in range(4):
            a(f"ds_write_b128 {vr(V_T0+g)}, {vr(V_OUT[nt]+4*g,4)} offset:{nt*128}")
    a("""s_waitcnt lgkmcnt(0)
         s_barrier""")
    RR = V_FA
    for k in range(4):
        a(f"ds_read_b128 {vr(RR+8*k,4)}, {vr(A2)} offset:{k*16384}")
        a(f"ds_read_b128 {vr(RR+8*k+4,4)}, {vr(A3)} offset:{k*16384}")
    for k in range(1, 4):
        a(f"s_waitcnt lgkmcnt({2*(3-k)})")
        for i in range(0, 8, 2):
            a(f"v_pk_add_f32 {vr(RR+i,2)}, {vr(RR+i,2)}, {vr(RR+8*k+i,2)}")
    for i in range(4):
        a(f"v_cvt_pk_bf16_f32 {vr(RR+8+i)}, {vr(RR+2*i)}, {vr(RR+2*i+1)}")
    a(f"buffer_store_dwordx4 {vr(RR+8,4)}, {vr(A0)}, {sr(S_OUT,4)}, {sr(S_RDY)} offen " + ["", "nt", "sc0", "sc1"][opts.get("outf", 0)])
    if "dfast" in opts:
        a(f"""s_cmp_eq_u32 {sr(S_FAST)}, 0
              s_cbranch_scc{opts['dfast']} L_end
              s_memrealtime s[98:99]
              s_waitcnt lgkmcnt(0)""")
        a.label("L_dly")
        a(f"""s_memrealtime s[96:97]
              s_waitcnt lgkmcnt(0)
              s_sub_u32 {sr(S_T1)}, s96, s98
              s_cmp_lt_u32 {sr(S_T1)}, 3000
              s_cbranch_scc1 L_dly""")
    if "dly" in opts:
        stamp(10)
        a(f"""s_cmp_lg_u32 s2, {opts.get('tswg', 100)}
              s_cbranch_scc1 L_end
              s_cmp_lg_u32 {sr(S_WAVE)}, 0
              s_cbranch_scc1 L_end
              s_memrealtime s[98:99]
              s_waitcnt lgkmcnt(0)
              s_sub_u32 {sr(S_T0)}, s100, s74
              s_lshl_b32 {sr(S_T0)}, {sr(S_T0)}, {opts.get('dsh', 2)}
              s_add_u32 {sr(S_T0)}, {sr(S_T0)}, 500
              s_min_u32 {sr(S_T0)}, {sr(S_T0)}, 30000""")
        a.label("L_dly2")
        a(f"""s_memrealtime s[96:97]
              s_waitcnt lgkmcnt(0)
              s_sub_u32 {sr(S_T1)}, s96, s98
              s_cmp_lt_u32 {sr(S_T1)}, {sr(S_T0)}
              s_cbranch_scc1 L_dly2""")
    if ts:
        stamp(10)
        ts_out()
    a.label("L_end")
    a("s_endpgm")

    a.label("L_slowst")
    a(f"""buffer_store_dwordx4 {vr(V_PK,4)}, {vr(V_L16)}, {sr(S_WS,4)}, {sr(S_RDY)} offen sc1
          s_waitcnt vmcnt(0)
          s_branch L_stdone""")
    a.label("L_armr")
    a(f"""s_add_u32 {sr(S_SPIN)}, {sr(S_SPIN)}, 1
          s_cmp_ge_u32 {sr(S_SPIN)}, 100000
          s_cbranch_scc1 L_armk""")
    flag_load(S_INFO)
    a("""s_waitcnt vmcnt(0)
         s_branch L_arm""")
    a.label("L_oar")
    a(f"""s_add_u32 {sr(S_SPIN)}, {sr(S_SPIN)}, 1
          s_cmp_ge_u32 {sr(S_SPIN)}, 100000
          s_cbranch_scc1 L_oak""")
    for k in range(8): oload(k, V_FA, 0)
    a("""s_waitcnt vmcnt(0)
         s_branch L_oa""")
    RM = opts.get("rm", 1)
    for i in range(8):
        f = V_FBB + 4 * i
        a.label(f"L_obr{i}")
        a(f"""s_add_u32 {sr(S_SPIN)}, {sr(S_SPIN)}, 1
              s_cmp_ge_u32 {sr(S_SPIN)}, 100000
              s_cbranch_scc1 L_obk{i}""")
        if RM == 1:
            if opts.get("slp", 0): a(f"s_sleep {opts['slp']}")
            for k in range(i, 8): oload(k, V_FBB, 1)
            a(f"""s_waitcnt vmcnt({7-i})
                  s_branch L_ob{i}""")
        else:
            if opts.get("slp", 0): a(f"s_sleep {opts['slp']}")
            oload(i, V_FBB, 1)
            a(f"""s_waitcnt vmcnt(0)
                  v_max3_u32 {vr(V_FLG)}, {vr(f)}, {vr(f+1)}, {vr(f+2)}
                  v_max_u32 {vr(V_FLG)}, {vr(V_FLG)}, {vr(f+3)}
                  v_cmp_eq_u32 vcc, -1, {vr(V_FLG)}
                  s_cbranch_vccnz L_obr{i}""")
            for k in range(i + 1, 8): oload(k, V_FBB, 1)
            a(f"s_branch L_obk{i}")

    a.label("L_fallback")
    FS = V_S[0]
    a(f"""v_mov_b32 {vr(V_T0)}, 0xff800000
          s_mov_b32 {sr(S_T0)}, {WS_KV}""")
    a.label("L_fb1")
    a(f"""buffer_load_dwordx4 {vr(V_KF,4)}, {vr(V_L16)}, {sr(S_WS,4)}, {sr(S_T0)} offen sc1
          s_waitcnt vmcnt(0)
          v_mfma_f32_32x32x16_bf16 {vr(FS,16)}, {vr(V_KF,4)}, {vr(V_QF,4)}, 0
          s_nop 15""")
    for i in range(8):
        a(f"v_max3_f32 {vr(V_T0)}, {vr(V_T0)}, {vr(FS+2*i)}, {vr(FS+2*i+1)}")
    a(f"""s_add_u32 {sr(S_T0)}, {sr(S_T0)}, 2048
          s_cmp_lt_u32 {sr(S_T0)}, {WS_KV + 131072}
          s_cbranch_scc1 L_fb1
          v_mov_b32 {vr(V_T1)}, {vr(V_T0)}
          s_nop 1
          v_permlane32_swap_b32 {vr(V_T0)}, {vr(V_T1)}
          s_nop 1
          v_max_f32 {vr(V_T0)}, {vr(V_T0)}, {vr(V_T1)}""")
    for i in range(16):
        a(f"v_sub_f32 {vr(V_C+i)}, 0, {vr(V_T0)}")
        a(f"v_mov_b32 {vr(V_O+i)}, 0")
    a(f"""v_and_b32 {vr(V_VA)}, 0x3ff, {vr(V_VA)}
          s_mov_b32 {sr(S_T0)}, {WS_KV}""")
    a.label("L_fb2")
    a(f"""buffer_load_dwordx4 {vr(V_KF,4)}, {vr(V_L16)}, {sr(S_WS,4)}, {sr(S_T0)} offen sc1
          s_mov_b64 exec, {sr(S_VMASK,2)}
          buffer_load_dwordx4 {vr(V_VF[0],4)}, {vr(V_VA)}, {sr(S_WS,4)}, {sr(S_T0)} offen offset:1024 sc1
          buffer_load_dwordx4 {vr(V_VF[0]+4,4)}, {vr(V_VA)}, {sr(S_WS,4)}, {sr(S_T0)} offen offset:1536 sc1
          s_mov_b64 exec, -1
          s_waitcnt vmcnt(0)
          v_mfma_f32_32x32x16_bf16 {vr(FS,16)}, {vr(V_KF,4)}, {vr(V_QF,4)}, {vr(V_C,16)}
          s_nop 15""")
    for i in range(16):
        a(f"v_exp_f32 {vr(FS+i)}, {vr(FS+i)}")
    a(f"""s_nop 1
          v_smfmac_f32_32x32x32_bf16 {vr(V_O,16)}, {vr(V_VF[0],4)}, {vr(FS,8)}, {vr(V_IDX)}
          v_smfmac_f32_32x32x32_bf16 {vr(V_O,16)}, {vr(V_VF[0]+4,4)}, {vr(FS+8,8)}, {vr(V_IDX)}
          s_add_u32 {sr(S_T0)}, {sr(S_T0)}, 2048
          s_cmp_lt_u32 {sr(S_T0)}, {WS_KV + 131072}
          s_cbranch_scc1 L_fb2
          s_nop 15
          v_rcp_f32 {vr(V_T0)}, {vr(V_O+8)}
          s_nop 0
          s_branch L_norm""")

    H_F4, H_FOFF = 148, 152
    S_ROT = S_HEAD
    def rot_setup():
        a(f"""s_and_b32 {sr(S_ROT)}, s2, 7
              s_lshl_b32 {sr(S_ROT)}, {sr(S_ROT)}, 3""")
    def kv_sample():
        a(f"buffer_load_dwordx4 {vr(H_F4,4)}, {vr(H_FOFF)}, {sr(S_WS,4)}, 0 offen offset:{WS_FKV} sc1")
    def kv_spin(lbl, lo_only):
        a(f"s_mov_b32 {sr(S_SPIN)}, 0")
        a.label(lbl + "_loop")
        a(f"""v_cmp_ne_u32 vcc, {vr(H_F4)}, {vr(V_TAG)}
              v_cmp_ne_u32 {sr(S_SAVE,2)}, {vr(H_F4+1)}, {vr(V_TAG)}
              s_or_b64 vcc, vcc, {sr(S_SAVE,2)}
              v_cmp_ne_u32 {sr(S_SAVE,2)}, {vr(H_F4+2)}, {vr(V_TAG)}
              s_or_b64 vcc, vcc, {sr(S_SAVE,2)}
              v_cmp_ne_u32 {sr(S_SAVE,2)}, {vr(H_F4+3)}, {vr(V_TAG)}
              s_or_b64 vcc, vcc, {sr(S_SAVE,2)}""")
        if lo_only:
            a(f"s_and_b32 {sr(S_SAVE)}, vcc_lo, 0xff\ns_cmp_eq_u32 {sr(S_SAVE)}, 0")
        else:
            a("s_cmp_eq_u64 vcc, 0")
        a(f"""s_cbranch_scc1 {lbl}_ok
              s_add_u32 {sr(S_SPIN)}, {sr(S_SPIN)}, 1
              s_cmp_ge_u32 {sr(S_SPIN)}, 100000
              s_cbranch_scc1 {lbl}_ok""")
        if lo_only: a("s_mov_b64 exec, 0xff")
        kv_sample()
        if lo_only: a("s_mov_b64 exec, -1")
        a(f"""s_waitcnt vmcnt(0)
              s_branch {lbl}_loop""")
        a.label(lbl + "_ok")
    def kv_dma(lbl, s0, n):
        a(f"""s_mul_i32 {sr(S_T0)}, {sr(S_RT)}, {n}
              s_add_u32 {sr(S_T0)}, {sr(S_T0)}, {s0}
              s_add_u32 {sr(S_T2)}, {sr(S_T0)}, {n}""")
        a.label(lbl)
        a(f"""s_add_u32 {sr(S_T1)}, {sr(S_T0)}, {sr(S_ROT)}
              s_and_b32 {sr(S_T1)}, {sr(S_T1)}, 63
              s_lshl_b32 {sr(S_T1)}, {sr(S_T1)}, 11
              s_add_u32 {sr(S_T1)}, {sr(S_T1)}, {WS_KV}
              s_lshl_b32 m0, {sr(S_T0)}, 11
              s_waitcnt vmcnt(40)""")
        for k in range(4):
            a(f"buffer_load_dwordx4 {vr(V_L16)}, {sr(S_WS,4)}, {sr(S_T1)} offen offset:{k*1024} sc1 lds")
        a(f"""s_add_u32 m0, m0, 4096
              s_add_u32 {sr(S_T1)}, {sr(S_T1)}, 4096""")
        for k in range(4):
            a(f"buffer_load_dwordx4 {vr(V_L16)}, {sr(S_WS,4)}, {sr(S_T1)} offen offset:{k*1024} sc1 lds")
        a(f"""s_add_u32 {sr(S_T0)}, {sr(S_T0)}, 4
              s_cmp_lt_u32 {sr(S_T0)}, {sr(S_T2)}
              s_cbranch_scc1 {lbl}""")
    def swz64(dst, stride):
        a(f"""v_lshrrev_b32 {vr(V_T0)}, 3, {vr(V_LANE)}
              v_bfe_u32 {vr(V_T1)}, {vr(V_LANE)}, 4, 1
              v_lshlrev_b32 {vr(V_T1)}, 2, {vr(V_T1)}
              v_xor_b32 {vr(V_T1)}, {vr(V_T1)}, {vr(V_LANE)}
              v_and_b32 {vr(V_T1)}, 7, {vr(V_T1)}
              v_lshlrev_b32 {vr(V_T1)}, 4, {vr(V_T1)}
              v_mul_u32_u24 {vr(V_T0)}, {stride}, {vr(V_T0)}
              v_add_u32 {vr(dst)}, {vr(V_T0)}, {vr(V_T1)}""")

    KACC = [24, 40]
    KB = [56, 68]
    KV0, KV1 = 153, 154
    S_KO, S_KM = S_U2, S_U3
    S_KW = S_WOB
    def kv_setup():
        srd(S_KW, 2, 0x180000)
        srd(S_WS, 22, WS_SIZE)
        consts()
        swz64(KV0, 3072)
        a(f"""v_add_u32 {vr(KV1)}, {24576 - 1024}, {vr(KV0)}
              s_sub_u32 {sr(S_AUX)}, {sr(S_WAVE)}, 8
              s_and_b32 {sr(S_RT)}, {sr(S_AUX)}, 1
              s_lshl_b32 {sr(S_KM)}, {sr(S_AUX)}, 13
              s_add_u32 {sr(S_KM)}, {sr(S_KM)}, {L_HI}
              s_lshl_b32 {sr(S_KO)}, {sr(S_HGK)}, 7
              s_cmp_lt_u32 {sr(S_AUX)}, 2
              s_cselect_b32 {sr(S_T1)}, 2, 1
              s_cselect_b32 {sr(S_T2)}, 0, {sr(S_EPS)}
              s_lshl_b32 {sr(S_T1)}, {sr(S_T1)}, 10
              s_add_u32 {sr(S_KO)}, {sr(S_KO)}, {sr(S_T1)}""")
        for i in range(32):
            a(f"v_mov_b32 {vr(KACC[0]+i)}, {sr(S_T2)}")
        xfrag_addr(S_RT)
        a(f"""v_lshlrev_b32 {vr(V_T0)}, 10, {vr(V_T1)}
              v_bfe_u32 {vr(V_T1)}, {vr(V_LANE)}, 2, 2
              v_lshl_add_u32 {vr(V_T0)}, {vr(V_T1)}, 7, {vr(V_T0)}
              v_bfe_u32 {vr(V_T1)}, {vr(V_LANE)}, 3, 1
              v_lshl_add_u32 {vr(V_T0)}, {vr(V_T1)}, 6, {vr(V_T0)}
              v_bfe_u32 {vr(V_T1)}, {vr(V_LANE)}, 4, 1
              v_lshl_add_u32 {vr(V_T0)}, {vr(V_T1)}, 5, {vr(V_T0)}
              v_and_b32 {vr(V_T1)}, 3, {vr(V_LANE)}
              v_lshl_add_u32 {vr(V_T0)}, {vr(V_T1)}, 3, {vr(V_T0)}
              v_add_u32 {vr(V_WOA0)}, {sr(S_KM)}, {vr(V_T0)}
              v_xor_b32 {vr(V_WOA1)}, 64, {vr(V_WOA0)}""")
    def kdma(st):
        a(f"s_add_u32 m0, {sr(S_KM)}, {(st % 4)*2048}")
        if st % 4 == 0:
            a(f"""s_xor_b32 {sr(S_U1)}, {sr(S_J)}, {st//4}
                  s_mul_i32 {sr(S_U1)}, {sr(S_U1)}, 196608
                  s_add_u32 {sr(S_U1)}, {sr(S_U1)}, {sr(S_KO)}""")
        else:
            a(f"s_add_u32 {sr(S_U1)}, {sr(S_U1)}, 49152")
        a.vmem(f"buffer_load_dwordx4 {vr(KV0)}, {sr(S_KW,4)}, {sr(S_U1)} offen lds", f"k{st}")
        a.vmem(f"buffer_load_dwordx4 {vr(KV1)}, {sr(S_KW,4)}, {sr(S_U1)} offen offset:1024 lds", f"k{st}")
    def krd(st):
        b = KB[st % 2]
        a(f"ds_read_b128 {vr(b,4)}, {vr(V_XA0 if st%2==0 else V_XA1)} offset:{(st//2)*4096}")
        for nt in range(2):
            for u in range(2):
                a(f"ds_read_b64_tr_b16 {vr(b+4+4*nt+2*u,2)}, {vr(V_WOA0 if nt==0 else V_WOA1)} offset:{(st%4)*2048 + u*512}")
    def kv_pass(bars, after={}):
        a.vm = []
        for st in range(4): kdma(st)
        for _ in range(bars.get(-1, 0)): a("s_barrier")
        a.wait_vm("k0")
        for _ in range(bars.get(0, 0)): a("s_barrier")
        krd(0)
        for st in range(32):
            if st + 1 < 32:
                if f"k{st+1}" in a.vm: a.wait_vm(f"k{st+1}")
                for _ in range(bars.get(st + 1, 0)): a("s_barrier")
                if st + 1 in after: after[st + 1]()
                krd(st + 1)
            a(f"s_waitcnt lgkmcnt({5 if st + 1 < 32 else 0})")
            b = KB[st % 2]
            for nt in range(2):
                a(f"v_mfma_f32_32x32x16_bf16 {vr(KACC[nt],16)}, {vr(b,4)}, {vr(b+4+4*nt,4)}, {vr(KACC[nt],16)}")
                if nt == (0 if opts.get("ksp", 0) else 1) and st + 4 < 32: kdma(st + 4)
    def foff_setup():
        a(f"""v_add_u32 {vr(H_FOFF)}, {sr(S_ROT)}, {vr(V_LANE)}
              v_and_b32 {vr(H_FOFF)}, 63, {vr(H_FOFF)}
              v_lshlrev_b32 {vr(H_FOFF)}, 4, {vr(H_FOFF)}""")

    TG = 80
    TKA, TVA = 12, 155
    S_TG = S_RDY
    def tg_setup(which):
        a(f"""v_and_b32 {vr(V_T0)}, 15, {vr(V_LANE)}
              v_lshlrev_b32 {vr(V_T0)}, 4, {vr(V_T0)}
              v_bfe_u32 {vr(V_T1)}, {vr(V_LANE)}, 4, 1
              v_lshrrev_b32 {vr(V_T2)}, 5, {vr(V_LANE)}
              v_lshl_add_u32 {vr(TKA)}, {vr(V_T1)}, 9, {vr(V_T0)}
              v_lshl_add_u32 {vr(TKA)}, {vr(V_T2)}, 3, {vr(TKA)}
              v_lshl_add_u32 {vr(TVA)}, {vr(V_T2)}, 8, {vr(V_T0)}
              v_lshl_add_u32 {vr(TVA)}, {vr(V_T1)}, 3, {vr(TVA)}
              s_lshl_b32 {sr(S_TG)}, {sr(S_ROT)}, 12
              s_add_u32 {sr(S_TG)}, {sr(S_TG)}, {WS_KVT + which*16384}""")
    def tg_loads():
        for t in range(4):
            a(f"s_add_u32 {sr(S_T0)}, {sr(S_TG)}, {t*4096}")
            for jb in range(4):
                a(f"buffer_load_dwordx4 {vr(TG+16*t+4*jb,4)}, {vr(V_L16)}, {sr(S_WS,4)}, {sr(S_T0)} offen offset:{jb*1024} sc1")
    def tg_finish(lbl, which):
        a(f"s_mov_b32 {sr(S_SPIN)}, 0")
        a.label(lbl + "_loop")
        a("s_waitcnt vmcnt(0)")
        a(f"v_min3_u32 {vr(V_T0)}, {vr(V_TAG)}, {vr(TG+1)}, {vr(TG+3)}")
        a(f"v_max3_u32 {vr(V_T1)}, {vr(V_TAG)}, {vr(TG+1)}, {vr(TG+3)}")
        for g in range(1, 16):
            a(f"v_min3_u32 {vr(V_T0)}, {vr(V_T0)}, {vr(TG+4*g+1)}, {vr(TG+4*g+3)}")
            a(f"v_max3_u32 {vr(V_T1)}, {vr(V_T1)}, {vr(TG+4*g+1)}, {vr(TG+4*g+3)}")
        a(f"""v_cmp_ne_u32 vcc, {vr(V_T0)}, {vr(V_T1)}
              s_cbranch_vccz {lbl}_ok
              s_add_u32 {sr(S_SPIN)}, {sr(S_SPIN)}, 1
              s_cmp_ge_u32 {sr(S_SPIN)}, 100000
              s_cbranch_scc1 {lbl}_ok""")
        tg_loads()
        a(f"s_branch {lbl}_loop")
        a.label(lbl + "_ok")
        for t in range(4):
            for jb in range(4):
                a(f"v_mov_b32 {vr(TG+16*t+4*jb+1)}, {vr(TG+16*t+4*jb+2)}")
            if t == 3: a("s_waitcnt lgkmcnt(8)")
            for jb in range(4):
                ad = TVA if jb & 1 else TKA
                off = (4 * which + t) * 2048 + ((1024 + (jb >> 1) * 512) if jb & 1 else (jb >> 1) * 256)
                a(f"ds_write_b64 {vr(ad)}, {vr(TG+16*t+4*jb,2)} offset:{off}")
        a("s_waitcnt lgkmcnt(0)")
    C_TG = opts.get("c_tg", 6)

    a.label("L_a0")
    a.vm = []
    HX, HW, HG_, HD, HDG = 16, 48, 80, 144, 112
    H_GWA = 8
    S_JX, S_JM = S_U0, S_U1
    a(f"""s_setprio 3
          s_lshl_b32 {sr(S_T1)}, {sr(S_RGJ)}, 14
          s_add_u32 {sr(S_JX)}, {sr(S_T0)}, {sr(S_T1)}
          s_lshl_b32 {sr(S_T1)}, {sr(S_RGJ)}, 10
          s_add_u32 {sr(S_JM)}, {sr(S_T1)}, {L_X}
          s_mov_b32 {sr(S_WJ+2)}, 16384
          s_mov_b32 {sr(S_WJ+3)}, 0x20000
          s_bitcmp1_b32 {sr(S_HG)}, 0
          s_waitcnt lgkmcnt(0)
          s_mov_b32 {sr(S_X)}, {sr(S_KA+0)}
          s_mov_b32 {sr(S_X+1)}, {sr(S_KA+1)}
          s_cselect_b32 {sr(S_WJ)}, {sr(S_KA+12)}, {sr(S_KA+10)}
          s_cselect_b32 {sr(S_WJ+1)}, {sr(S_KA+13)}, {sr(S_KA+11)}
          s_load_dword {sr(S_TAG)}, {sr(S_KA+22,2)}, {WS_E}""")
    a(f"""s_lshl_b32 {sr(S_U2)}, {sr(S_J)}, 11
          s_lshl_b32 {sr(S_T1)}, {sr(S_J)}, 7
          v_xor_b32 {vr(V_T0)}, {sr(S_T1)}, {vr(V_L16)}""")
    def jload(g):
        for k in range(4):
            kb = 4 * g + k
            a(f"s_add_u32 m0, {sr(S_JM)}, {kb*4096 - (k%2)*64}")
            a(f"s_xor_b32 {sr(S_T1)}, {sr(S_JX)}, {(kb//2)*128}" if k % 2 == 0 else "s_nop 0")
            a.vmem(f"buffer_load_dwordx4 {vr(V_XOFF)}, {sr(S_X,4)}, {sr(S_T1)} offen offset:{(k%2)*64} lds", f"j{g}")
        for k in range(2):
            a(f"s_mov_b32 m0, {L_JW + g*4096 + k*2048}")
            a(f"s_xor_b32 {sr(S_T2)}, {sr(S_U2)}, {g*4096 + k*2048}")
            for q in range(2):
                a.vmem(f"buffer_load_dwordx4 {vr(V_L16)}, {sr(S_WJ,4)}, {sr(S_T2)} offen offset:{q*1024} lds", f"j{g}")
    jload(0)
    srd(S_W, 16, 1024)
    a(f"s_mov_b32 m0, {L_GW}\ns_nop 0")
    a.vmem(f"buffer_load_dwordx4 {vr(V_T0)}, {sr(S_W,4)}, 0 offen lds", "gw")
    jload(1); jload(2); jload(3)
    srd(S_WS, 22, WS_SIZE)
    rot_setup()
    a(f"""v_and_b32 {vr(V_T0)}, 15, {vr(V_LANE)}
          v_lshrrev_b32 {vr(V_T1)}, 4, {vr(V_LANE)}
          v_bfe_u32 {vr(V_T2)}, {vr(V_LANE)}, 2, 2
          v_xor_b32 {vr(V_T2)}, {vr(V_T2)}, {vr(V_T1)}
          v_lshlrev_b32 {vr(V_T2)}, 4, {vr(V_T2)}
          v_lshl_add_u32 {vr(V_T2)}, {vr(V_T0)}, 6, {vr(V_T2)}
          v_add_u32 {vr(V_T2)}, {sr(S_JM)}, {vr(V_T2)}
          v_lshlrev_b32 {vr(V_T3)}, 3, {vr(V_T0)}
          v_lshl_add_u32 {vr(V_T3)}, {vr(V_T1)}, 8, {vr(V_T3)}
          v_lshlrev_b32 {vr(H_GWA)}, 4, {vr(V_T1)}
          v_add_u32 {vr(H_GWA)}, {L_GW}, {vr(H_GWA)}
          v_lshlrev_b32 {vr(13)}, 4, {vr(V_T0)}
          v_and_b32 {vr(14)}, 1, {vr(V_T1)}
          v_lshrrev_b32 {vr(15)}, 1, {vr(V_T1)}
          s_lshl_b32 {sr(S_T0)}, {sr(S_QB)}, 1
          s_lshr_b32 {sr(S_T1)}, {sr(S_RGJ)}, 1
          s_add_u32 {sr(S_SEG)}, {sr(S_T0)}, {sr(S_T1)}
          s_lshl_b32 {sr(S_T3)}, {sr(S_SEG)}, 4
          s_and_b32 {sr(S_T0)}, {sr(S_HG)}, 3
          s_lshl_b32 {sr(S_T0)}, {sr(S_T0)}, 2
          s_add_u32 {sr(S_T3)}, {sr(S_T3)}, {sr(S_T0)}
          s_add_u32 {sr(S_T3)}, {sr(S_T3)}, {WS_FKV}""")
    tag_setup()
    if opts.get("lst"): stamp(19)
    vmh = list(a.vm)
    def job(isV):
        a.vm = list(vmh)
        nr = 3 if isV else 4
        for half in range(2):
            a.wait_vm(f"j{2*half}")
            if opts.get("lst"): stamp(20 + 3*half)
            a("s_barrier")
            if opts.get("lst"): stamp(21 + 3*half)
            a.wait_vm(f"j{2*half+1}")
            if opts.get("lst"): stamp(22 + 3*half)
            def rd(k):
                s = 8 * half + k
                a(f"ds_read_b128 {vr(HX+4*k,4)}, {vr(V_T2)} offset:{s*4096}")
                a(f"ds_read_b64_tr_b16 {vr(HW+4*k,2)}, {vr(V_T3)} offset:{L_JW + s*1024}")
                a(f"ds_read_b64_tr_b16 {vr(HW+4*k+2,2)}, {vr(V_T3)} offset:{L_JW + s*1024 + 128}")
                if not isV: a(f"ds_read_b128 {vr(HG_+4*k,4)}, {vr(H_GWA)} offset:{s*64}")
            rd(0); rd(1); rd(2)
            for k in range(8):
                a(f"s_waitcnt lgkmcnt({nr * (min(k + 2, 7) - k)})")
                z = half == 0 and k == 0
                A_, B_ = (HX, HW) if isV else (HW, HX)
                a(f"v_mfma_f32_16x16x32_bf16 {vr(HD,4)}, {vr(A_+4*k,4)}, {vr(B_+4*k,4)}, {'0' if z else vr(HD,4)}")
                if not isV: a(f"v_mfma_f32_16x16x32_bf16 {vr(HDG,4)}, {vr(HG_+4*k,4)}, {vr(HX+4*k,4)}, {'0' if z else vr(HDG,4)}")
                if k + 3 < 8: rd(k + 3)
        a(f"s_and_b32 {sr(S_T1)}, {sr(S_RGJ)}, 1")
        if isV:
            a(f"""v_lshl_add_u32 {vr(13)}, {vr(15)}, 8, {vr(13)}
                  v_lshl_add_u32 {vr(13)}, {vr(14)}, 3, {vr(13)}
                  s_lshl_b32 {sr(S_T1)}, {sr(S_T1)}, 9
                  s_add_u32 {sr(S_T1)}, {sr(S_T1)}, 1024""")
        else:
            a(f"""v_lshl_add_u32 {vr(13)}, {vr(14)}, 9, {vr(13)}
                  v_lshl_add_u32 {vr(13)}, {vr(15)}, 3, {vr(13)}
                  s_lshl_b32 {sr(S_T1)}, {sr(S_T1)}, 8
                  s_lshl_b32 {sr(S_T0)}, {sr(S_QB)}, 2
                  s_add_u32 {sr(S_T0)}, {sr(S_T0)}, {sr(S_RGJ)}
                  s_lshl_b32 {sr(S_T0)}, {sr(S_T0)}, 7
                  s_add_u32 {sr(S_T0)}, {sr(S_T0)}, {WS_G}
                  s_mov_b32 {sr(S_T2)}, {hex(f2u(LOG2E))}
                  v_mul_f32 {vr(HDG)}, {sr(S_T2)}, {vr(HDG)}
                  v_exp_f32 {vr(HDG)}, -{vr(HDG)}
                  s_nop 0
                  v_add_f32 {vr(HDG)}, 1.0, {vr(HDG)}
                  v_rcp_f32 {vr(HDG)}, {vr(HDG)}
                  s_mov_b32 exec_hi, 0
                  buffer_store_dword {vr(HDG)}, {vr(V_L4)}, {sr(S_WS,4)}, {sr(S_T0)} offen sc1
                  s_mov_b32 exec_hi, -1""")
    a(f"""s_bitcmp1_b32 {sr(S_HG)}, 0
          s_cbranch_scc1 L_jobV""")
    job(False)
    a("s_branch L_jobdone")
    a.label("L_jobV")
    job(True)
    a.label("L_jobdone")
    a.vm = []
    a(f"""s_lshl_b32 {sr(S_T0)}, {sr(S_SEG)}, 11
          s_add_u32 {sr(S_T0)}, {sr(S_T0)}, {sr(S_T1)}
          s_add_u32 {sr(S_T0)}, {sr(S_T0)}, {WS_KV}
          s_nop 1
          v_cvt_pk_bf16_f32 {vr(HD+4)}, {vr(HD)}, {vr(HD+1)}
          v_cvt_pk_bf16_f32 {vr(HD+5)}, {vr(HD+2)}, {vr(HD+3)}
          v_mov_b32 {vr(HX)}, {vr(HD+4)}
          v_mov_b32 {vr(HX+1)}, {vr(V_TAG)}
          v_mov_b32 {vr(HX+2)}, {vr(HD+5)}
          v_mov_b32 {vr(HX+3)}, {vr(V_TAG)}
          s_lshl_b32 {sr(S_T1)}, {sr(S_SEG)}, 2
          s_and_b32 {sr(S_T2)}, {sr(S_HG)}, 3
          s_add_u32 {sr(S_T1)}, {sr(S_T1)}, {sr(S_T2)}
          s_lshl_b32 {sr(S_T1)}, {sr(S_T1)}, 10
          s_add_u32 {sr(S_T1)}, {sr(S_T1)}, {WS_KVT}
          buffer_store_dwordx4 {vr(HX,4)}, {vr(V_L16)}, {sr(S_WS,4)}, {sr(S_T1)} offen {"" if opts.get("plaint", 0) else "sc1"}
          v_mov_b32 {vr(14)}, 0
          s_lshl_b32 {sr(S_T1)}, s2, 8
          s_add_u32 {sr(S_T1)}, {sr(S_T1)}, {WS_ACC}
          buffer_store_dwordx2 {vr(HD+4,2)}, {vr(13)}, {sr(S_WS,4)}, {sr(S_T0)} offen sc1
          buffer_store_dword {vr(14)}, {vr(V_L4)}, {sr(S_WS,4)}, {sr(S_T1)} offen sc1""")
    stamp(1)
    C_SIG = opts.get("c_sig", 4)
    for c in range(2, 8):
        a("s_barrier")
        if c == 2: kv_setup()
        if c == 3: tg_setup(0)
        if c == C_SIG:
            a("s_waitcnt vmcnt(0)")
            flag_store(S_T3)
            stamp(2)
        if c == C_TG: tg_loads()
    stamp(3)
    tg_finish("L_tg0", 0)
    stamp(4)
    a("s_barrier")
    a.label("L_kv01")
    kv_pass({opts.get("n1", 8): 1})
    a("s_branch L_kvend")

    a.label("L_a1")
    a.vm = []
    LV = [16, 20]
    SO = [S_U0, S_U1]
    a(f"""s_setprio 3
          v_lshrrev_b32 {vr(V_T0)}, 1, {vr(V_LANE)}
          v_and_b32 {vr(V_T0)}, 3, {vr(V_T0)}
          v_bfe_u32 {vr(V_T1)}, {vr(V_LANE)}, 4, 1
          v_xor_b32 {vr(V_T0)}, {vr(V_T0)}, {vr(V_T1)}
          v_lshlrev_b32 {vr(V_T0)}, 5, {vr(V_T0)}
          v_and_b32 {vr(V_T1)}, 1, {vr(V_LANE)}
          v_lshl_add_u32 {vr(V_T0)}, {vr(V_T1)}, 4, {vr(V_T0)}
          v_lshrrev_b32 {vr(V_T1)}, 3, {vr(V_LANE)}
          v_lshl_add_u32 {vr(LV[0])}, {vr(V_T1)}, 10, {vr(V_T0)}
          v_mul_u32_u24 {vr(V_T1)}, 3072, {vr(V_T1)}
          v_add_u32 {vr(LV[1])}, {vr(V_T1)}, {vr(V_T0)}
          v_xor_b32 {vr(LV[1])}, 64, {vr(LV[1])}""")
    for rg in range(1, 4):
        a(f"""v_add_u32 {vr(LV[0]+rg)}, {rg*(8192-1024)}, {vr(LV[0])}
              v_add_u32 {vr(LV[1]+rg)}, {rg*(24576-1024)}, {vr(LV[1])}""")
    a(f"""s_lshl_b32 {sr(SO[0])}, {sr(S_HG)}, 7
          s_lshl_b32 {sr(SO[1])}, {sr(S_HGQ)}, 7
          s_waitcnt lgkmcnt(0)
          s_load_dword {sr(S_TAG)}, {sr(S_KA+22,2)}, {WS_E}""")
    srd(S_W, 8, 0x80000)
    srd(S_WJ, 2, 0x180000)
    def lw(c):
        a(f"""s_xor_b32 {sr(S_T0)}, {sr(S_J)}, {c}
              s_lshl_b32 {sr(S_T1)}, {sr(S_T0)}, 16
              s_add_u32 {sr(S_T1)}, {sr(S_T1)}, {sr(SO[0])}
              s_mul_i32 {sr(S_T2)}, {sr(S_T0)}, 196608
              s_add_u32 {sr(S_T2)}, {sr(S_T2)}, {sr(SO[1])}""")
        for hf in range(2):
            for m in range(2):
                so = [S_T1, S_T2][m]
                a(f"s_mov_b32 m0, {RSLOT[c % 4] + m*8192 + hf*4096}")
                a("s_nop 0" if hf == 0 else f"s_add_u32 {sr(so)}, {sr(so)}, {32768 if m == 0 else 98304}")
                for rg in range(4):
                    a.vmem(f"buffer_load_dwordx4 {vr(LV[m]+rg)}, {sr(S_W if m == 0 else S_WJ,4)}, {sr(so)} offen offset:{rg*1024} lds", f"w{c}")
    NPRE = opts.get("npre", 2)
    if opts.get("lst"): stamp(18)
    for c in range(NPRE): lw(c)
    if opts.get("lst"): stamp(19)
    kv_setup(); rot_setup(); tg_setup(1)
    tag_setup()
    nxt = NPRE
    for c in range(8):
        a.wait_vm(f"w{c}")
        if opts.get("lst"): stamp(20 + c) if c < 4 else None
        a("s_barrier")
        if opts.get("lst"): stamp(24 + c)
        k = 0
        while nxt <= min(7, c + 3) and k < 2:
            lw(nxt); nxt += 1; k += 1
        if c == max(C_TG, 5):
            tg_loads()
            a.vm += ["tg"] * 16
    tg_finish("L_tg1", 1)
    stamp(4)
    a("""s_barrier
         s_branch L_kv01""")

    a.label("L_a23")
    a.vm = []
    a(f"""s_setprio 3
          s_sub_u32 {sr(S_T1)}, {sr(S_WAVE)}, 8
          s_lshl_b32 {sr(S_T2)}, {sr(S_T1)}, 8
          s_xor_b32 {sr(S_T0)}, {sr(S_T0)}, {sr(S_T2)}
          s_lshl_b32 {sr(S_T1)}, {sr(S_T1)}, 14
          s_add_u32 {sr(S_T1)}, {sr(S_T1)}, {L_X}
          s_waitcnt lgkmcnt(0)
          s_mov_b32 {sr(S_X)}, {sr(S_KA+0)}
          s_mov_b32 {sr(S_X+1)}, {sr(S_KA+1)}
          s_load_dword {sr(S_TAG)}, {sr(S_KA+22,2)}, {WS_E}""")
    tag_setup()
    XB = opts.get("xb", 0)
    for c in range(XB): a("s_barrier")
    for i in range(3):
        a(f"""s_add_u32 {sr(S_T3)}, {sr(S_RGJ)}, {i+1}
              s_and_b32 {sr(S_T3)}, {sr(S_T3)}, 3
              s_lshl_b32 {sr(S_T2)}, {sr(S_T3)}, 10
              s_add_u32 {sr(S_U0)}, {sr(S_T2)}, {sr(S_T1)}
              s_lshl_b32 {sr(S_T2)}, {sr(S_T3)}, 14
              s_add_u32 {sr(S_U1)}, {sr(S_T2)}, {sr(S_T0)}""")
        if i > 0 or XB == 0 or True:
            a("s_barrier")
        for k in range(4):
            a(f"s_add_u32 m0, {sr(S_U0)}, {k*4096 - (k%2)*64}")
            a(f"s_xor_b32 {sr(S_U1)}, {sr(S_U1)}, 128" if k == 2 else "s_nop 0")
            a(f"buffer_load_dwordx4 {vr(V_XOFF)}, {sr(S_X,4)}, {sr(S_U1)} offen offset:{(k%2)*64} lds")
        if i == opts.get("kpf", 1):
            srd(S_WOB, 2, 0x180000)
            a(f"""v_lshrrev_b32 {vr(V_T0)}, 3, {vr(V_LANE)}
                  v_mul_u32_u24 {vr(V_T0)}, 3072, {vr(V_T0)}
                  v_and_b32 {vr(V_T1)}, 7, {vr(V_LANE)}
                  v_lshl_add_u32 {vr(V_T0)}, {vr(V_T1)}, 7, {vr(V_T0)}
                  s_mul_i32 {sr(S_T2)}, s2, 6144
                  s_sub_u32 {sr(S_T3)}, {sr(S_WAVE)}, 9
                  s_lshl_b32 {sr(S_T3)}, {sr(S_T3)}, 10
                  s_add_u32 {sr(S_T2)}, {sr(S_T2)}, {sr(S_T3)}
                  s_mov_b64 exec, 0xffff
                  buffer_load_dword {vr(V_FLG)}, {vr(V_T0)}, {sr(S_WOB,4)}, {sr(S_T2)} offen
                  s_mov_b64 exec, -1""")
    assert XB == 0
    kv_setup(); rot_setup(); foff_setup()
    def stageB():
        kv_sample()
        a("s_waitcnt vmcnt(0)")
        kv_spin("L_skvB", False)
        stamp(5)
        kv_dma("L_kvdB", 8, 12)
        a(f"""s_or_b32 {sr(S_T0)}, s2, {sr(S_RT)}
              s_cmp_lg_u32 {sr(S_T0)}, 0
              s_cbranch_scc1 L_noep
              s_mov_b32 {sr(S_T0)}, {WS_E}""")
        flag_store(S_T0)
        a.label("L_noep")
        a.vm = []
    ES = opts.get("es", 5)
    for c in range(3, ES + 1):
        if c == 4: a("s_waitcnt vmcnt(0)")
        a("s_barrier")
    bars_ = {}
    st = -1
    for c in range(ES + 1, 8):
        bars_[st] = bars_.get(st, 0) + 1
        st = 1 if st < 0 else st + opts.get("esp", 1)
    ne, n2 = opts.get("ne", 6), opts.get("n2", 11)
    assert n2 >= ne + 4
    bars_[ne] = bars_.get(ne, 0) + 1
    bars_[n2] = bars_.get(n2, 0) + 1
    kv_pass(bars_, {ne: stageB})

    a.label("L_kvend")
    stamp(12)
    a(f"""v_add_u32 {vr(V_XA0)}, {sr(S_KM)}, {vr(V_L16)}
          s_nop 8
          s_cmp_lt_u32 {sr(S_AUX)}, 2
          s_cbranch_scc1 L_kcvt""")
    phi(KACC[0], 32, 56)
    a(f"""s_cmp_eq_u32 {sr(S_AUX)}, 2
          s_cselect_b32 {sr(S_WOA)}, {sr(S_KA+4)}, {sr(S_KA+14)}
          s_cselect_b32 {sr(S_WOA+1)}, {sr(S_KA+5)}, {sr(S_KA+15)}
          s_mov_b32 {sr(S_WOA+2)}, 0x80000
          s_mov_b32 {sr(S_WOA+3)}, 0x20000
          v_lshlrev_b32 {vr(V_T0)}, 7, {vr(V_LANE)}
          s_lshl_b32 {sr(S_T0)}, s2, 11
          s_mov_b64 exec, 0xffff
          buffer_load_dword {vr(V_FLG)}, {vr(V_T0)}, {sr(S_WOA,4)}, {sr(S_T0)} offen
          s_mov_b64 exec, -1""")
    a.label("L_kcvt")
    for f in range(4):
        for i in range(4):
            a(f"v_cvt_pk_bf16_f32 {vr(56+4*f+i)}, {vr(KACC[0]+8*f+2*i)}, {vr(KACC[0]+8*f+2*i+1)}")
        a(f"ds_write_b128 {vr(V_XA0)}, {vr(56+4*f,4)} offset:{f*1024}")
    a(f"""v_add_u32 {vr(V_T0)}, {sr(S_KM)}, {vr(V_L4)}
          v_add_u32 {vr(V_T1)}, {L_HI}, {vr(V_L4)}
          s_waitcnt lgkmcnt(0)
          ds_write_b32 {vr(V_T0)}, {vr(V_TAG)} offset:4096
          s_mov_b32 {sr(S_SPIN)}, 0""")
    stamp(13)
    a.label("L_rdv")
    for k in range(4):
        a(f"ds_read_b32 {vr(72+k)}, {vr(V_T1)} offset:{4096 + k*8192}")
    a(f"""s_waitcnt lgkmcnt(0)
          v_min3_u32 {vr(76)}, {vr(72)}, {vr(73)}, {vr(74)}
          v_max3_u32 {vr(77)}, {vr(72)}, {vr(73)}, {vr(74)}
          v_min3_u32 {vr(76)}, {vr(76)}, {vr(75)}, {vr(V_TAG)}
          v_max3_u32 {vr(77)}, {vr(77)}, {vr(75)}, {vr(V_TAG)}
          v_cmp_ne_u32 vcc, {vr(76)}, {vr(77)}
          s_cbranch_vccz L_rdv_ok
          s_sleep 4
          s_add_u32 {sr(S_SPIN)}, {sr(S_SPIN)}, 1
          s_cmp_lt_u32 {sr(S_SPIN)}, 1000000
          s_cbranch_scc1 L_rdv""")
    a.label("L_rdv_ok")
    a(f"""s_cmp_lt_u32 {sr(S_AUX)}, 2
          s_cbranch_scc1 L_a01b""")
    rot_setup()
    kv_dma("L_kvdC", 32, 16)
    a("s_waitcnt vmcnt(0)")
    stamp(14)
    if ts: ts_out()
    a("s_endpgm")

    a.label("L_a01b")
    HV, HK_, HKV, HZ, HON = 56, 72, 16, 32, 52
    a(f"""s_lshl_b32 {sr(S_T0)}, {sr(S_AUX)}, 11
          s_add_u32 {sr(S_T0)}, {sr(S_T0)}, {L_HI}
          v_add_u32 {vr(V_T1)}, {sr(S_T0)}, {vr(V_L16)}""")
    for f in range(4):
        off = (f // 2) * 8192 + (f % 2) * 1024
        a(f"ds_read_b128 {vr(HV+4*f,4)}, {vr(V_T1)} offset:{off}")
        a(f"ds_read_b128 {vr(HK_+4*f,4)}, {vr(V_T1)} offset:{16384 + off}")
    for i in range(4):
        a(f"v_mov_b32 {vr(HON+i)}, {sr(S_ONES)}")
    a(f"""v_bfe_u32 {vr(V_T2)}, {vr(V_LANE)}, 3, 1
          v_lshlrev_b32 {vr(V_T2)}, 11, {vr(V_T2)}
          v_and_b32 {vr(V_T3)}, 3, {vr(V_LANE)}
          v_lshl_add_u32 {vr(V_T2)}, {vr(V_T3)}, 9, {vr(V_T2)}
          v_bfe_u32 {vr(V_T3)}, {vr(V_LANE)}, 4, 1
          v_lshl_add_u32 {vr(V_T2)}, {vr(V_T3)}, 3, {vr(V_T2)}
          v_bfe_u32 {vr(V_T3)}, {vr(V_LANE)}, 2, 1
          v_lshl_add_u32 {vr(V_T2)}, {vr(V_T3)}, 2, {vr(V_T2)}
          s_waitcnt lgkmcnt(0)""")
    for f in range(4):
        a(f"v_mfma_f32_32x32x16_bf16 {vr(HKV,16)}, {vr(HK_+4*f,4)}, {vr(HV+4*f,4)}, {'0' if f==0 else vr(HKV,16)}")
        a(f"v_mfma_f32_32x32x16_bf16 {vr(HZ,16)}, {vr(HON,4)}, {vr(HK_+4*f,4)}, {'0' if f==0 else vr(HZ,16)}")
    a(f"""s_lshl_b32 {sr(S_T0)}, {sr(S_HGK)}, 1
          s_add_u32 {sr(S_T0)}, {sr(S_T0)}, {sr(S_AUX)}
          s_lshl_b32 {sr(S_T0)}, {sr(S_T0)}, 12
          s_add_u32 {sr(S_T0)}, {sr(S_T0)}, {WS_ACC}
          s_nop 7""")
    for r in range(8):
        a(f"v_cndmask_b32 {vr(HKV+r)}, {vr(HKV+8+r)}, {vr(HKV+r)}, {sr(S_VMASK,2)}")
    for r in range(8):
        a(f"buffer_atomic_add_f32 {vr(HKV+r)}, {vr(V_L4)}, {sr(S_WS,4)}, {sr(S_T0)} offen offset:{r*512} sc1")
    a(f"""s_mov_b32 exec_hi, 0
          buffer_atomic_add_f32 {vr(HZ)}, {vr(V_T2)}, {sr(S_WS,4)}, {sr(S_T0)} offen offset:256 sc1
          s_mov_b32 exec_hi, -1
          s_lshl_b32 {sr(S_T3)}, {sr(S_HGK)}, 8
          s_lshl_b32 {sr(S_T0)}, {sr(S_QB)}, 1
          s_add_u32 {sr(S_T0)}, {sr(S_T0)}, {sr(S_AUX)}
          s_lshl_b32 {sr(S_T0)}, {sr(S_T0)}, 2
          s_add_u32 {sr(S_T0)}, {sr(S_T0)}, {sr(S_T3)}
          s_add_u32 {sr(S_T0)}, {sr(S_T0)}, {WS_FA}
          s_lshl_b32 {sr(S_T3)}, {sr(S_HGQ)}, 8
          s_add_u32 {sr(S_T3)}, {sr(S_T3)}, {WS_FA}
          s_waitcnt vmcnt(0)""")
    flag_store(S_T0)
    stamp(15)
    a(f"""s_cmp_eq_u32 {sr(S_AUX)}, 1
          s_cbranch_scc1 L_a1b
          s_barrier
          s_mov_b32 {sr(S_SPIN)}, 0""")
    a.label("L_sfa")
    a(f"""buffer_load_dword {vr(V_FLG)}, {vr(V_L4)}, {sr(S_WS,4)}, {sr(S_T3)} offen sc1
          s_waitcnt vmcnt(0)
          v_cmp_ne_u32 vcc, {vr(V_FLG)}, {vr(V_TAG)}
          s_cbranch_vccz L_sfa_ok
          s_add_u32 {sr(S_SPIN)}, {sr(S_SPIN)}, 1
          s_cmp_lt_u32 {sr(S_SPIN)}, 100000
          s_cbranch_scc1 L_sfa""")
    a.label("L_sfa_ok")
    stamp(16)
    if ts: ts_out()
    a("""s_barrier
         s_endpgm""")

    a.label("L_a1b")
    srd(S_WOA, 4, 0x80000)
    srd(S_WOB, 14, 0x80000)
    omap()
    swz64(V_WOFF, 1024)
    stamp(14)
    a("s_barrier")
    def wodma(lbl, srdw, r0, nrows, dst):
        a(f"""s_lshl_b32 {sr(S_T0)}, {sr(S_NS)}, 7
              s_add_u32 {sr(S_T0)}, {sr(S_T0)}, {r0*1024}
              s_mov_b32 m0, {dst}""")
        a.label(lbl)
        a("s_waitcnt vmcnt(40)")
        for i in range(4):
            a(f"buffer_load_dwordx4 {vr(V_WOFF)}, {sr(srdw,4)}, {sr(S_T0)} offen lds")
            a(f"""s_add_u32 m0, m0, 1024
                  s_add_u32 {sr(S_T0)}, {sr(S_T0)}, 8192""")
        a(f"""s_cmp_lt_u32 m0, {dst + nrows*128}
              s_cbranch_scc1 {lbl}""")
    wodma("L_woa", S_WOA, 0, 512, 0)
    stamp(15)
    a("s_barrier")
    wodma("L_wob0", S_WOB, 0, 256, L_HI)
    a("s_waitcnt vmcnt(0)")
    stamp(16)
    a("s_barrier")
    wodma("L_wob1", S_WOB, 256, 256, 65536)
    a("s_waitcnt vmcnt(0)")
    if ts:
        stamp(17)
        ts_out()
    a("s_endpgm")

    head = open("cdna_kernels/" + NAME + ".s.ref").read().split("\n")
    hdr = [l for l in head if l.startswith(";") and "@launch" not in l and "Override" not in l and "grid=ceil" not in l]
    out = "\n".join(hdr) + f"\n; @launch grid=(256,1,1) block=({NWAVE*64},1,1) lds={LDS_SIZE}\n"
    out += f""".amdgcn_target "amdgcn-amd-amdhsa--gfx950"
.text
.globl {NAME}_kernel
.p2align 8
.type {NAME}_kernel,@function
"""
    out += a.text()
    out += f""".section .rodata,"a"
.p2align 6
.amdhsa_kernel {NAME}_kernel
  .amdhsa_next_free_vgpr {NVGPR}
  .amdhsa_next_free_sgpr 102
  .amdhsa_accum_offset {NVGPR}
  .amdhsa_group_segment_fixed_size 0
  .amdhsa_kernarg_size 96
  .amdhsa_user_sgpr_count 2
  .amdhsa_user_sgpr_kernarg_segment_ptr 1
  .amdhsa_system_sgpr_workgroup_id_x 1
.end_amdhsa_kernel
"""
    return out

if __name__ == "__main__":
    opts = {}
    outp = "cdna_kernels/" + NAME + ".s"
    for arg in sys.argv[1:]:
        if arg.startswith("-o"):
            outp = arg[2:]
        elif "=" in arg:
            k, v = arg.split("=")
            opts[k] = int(v)
        else:
            opts[arg] = True
    open(outp, "w").write(gen(opts))
    print("wrote", outp)
```

```python
import sys, math, struct

NAME = "gated_mix__linear_attn_block__grouped_kv_mqa__prompt"

def f2u(x):
    return struct.unpack("<I", struct.pack("<f", x))[0]

class Asm:
    def __init__(self):
        self.lines = []
        self.vm = []
    def __call__(self, s):
        for l in s.split("\n"):
            l = l.strip()
            if l:
                self.lines.append("    " + l)
    def label(self, l):
        self.lines.append(l + ":")
    def vmem(self, s, tag):
        self(s)
        self.vm.append(tag)
        assert len(self.vm) <= 63
    def vm_n(self, tag):
        idx = max(i for i, t in enumerate(self.vm) if t == tag)
        return len(self.vm) - 1 - idx
    def drop_to(self, n):
        self.vm = self.vm[len(self.vm) - n:] if n else []
    def wait_vm(self, tag, extra=""):
        n = 0 if tag is None else self.vm_n(tag)
        self.drop_to(n)
        self(f"s_waitcnt vmcnt({n}) {extra}".strip())
    def text(self):
        return "\n".join(self.lines) + "\n"

def vr(a, n=1):
    return f"v{a}" if n == 1 else f"v[{a}:{a+n-1}]"
def sr(a, n=1):
    return f"s{a}" if n == 1 else f"s[{a}:{a+n-1}]"

WS_E = 0x000000
WS_FKV = 0x000400
WS_FA = 0x001000
WS_FO = 0x004000
WS_G = 0x014000
WS_KV = 0x020000
WS_ACC = 0x040000
WS_KVT = 0x080000
WS_OA = 0x200000
WS_OB = 0x208000
WS_DBG1 = 0x600000
WS_DBG2 = 0x800000
WS_TS = 0xA00000
WS_SIZE = 0x1000000
L_JW = 0
L_X = 65536
L_HI = 131072
L_GW = L_HI + 16384
RSLOT = [16384, 32768, 49152, L_HI]
LDS_SIZE = 163840
LOG2E = 1.4426950408889634
QSCALE = 0.25 * LOG2E
NVGPR = 168
NWAVE = 12

S_HGQ, S_TAG, S_QO, S_NS, S_RDY = 3, 4, 5, 6, 7
S_X, S_W, S_WJ = 8, 12, 16
S_EPS, S_ONES, S_RGJ, S_HGK = 20, 21, 22, 23
S_XMASK, S_HEADA, S_AUX = 24, 26, 27
S_WOA, S_WOB, S_OUT, S_DBG, S_WS = 28, 32, 36, 40, 44
S_WAVE, S_QB, S_HG, S_RT, S_HH = 48, 49, 50, 51, 52
S_T0, S_T1, S_T2, S_T3 = 53, 54, 55, 56
S_U0, S_U1, S_U2, S_U3 = 57, 58, 59, 60
S_SEG, S_SPIN, S_HEAD = 61, 62, 63
S_VMASK, S_RT32, S_RO32, S_SAVE = 64, 66, 67, 40
S_LOG2E, S_QS = 70, 72
S_TS = 74
S_J = 69
S_XCC, S_FAST = 18, 19
S_KA = 76

def gen(opts):
    ts = opts.get("ts", False)
    dbg = opts.get("dbg", False)
    a = Asm()
    V_STAMP = NVGPR - 1

    def stamp(i):
        if "dly" in opts:
            if i == opts.get("dly0", 0): a("s_memrealtime s[74:75]")
            if i == opts["dly"]: a("s_memrealtime s[100:101]")
        if not ts: return
        a(f"""s_memrealtime {sr(S_TS,2)}
              s_memtime s[100:101]
              s_waitcnt lgkmcnt(0)
              v_writelane_b32 v{V_STAMP}, {sr(S_TS)}, {i}
              v_writelane_b32 v{V_STAMP}, s100, {32+i}""")

    V_LANE = 1
    V_T0, V_T1, V_T2, V_T3 = 2, 3, 4, 5
    V_XOFF, V_WOFF = 6, 7
    V_XA0, V_XA1, V_WA = 8, 9, 10
    V_L16, V_G, V_IDX, V_KA, V_VA = 11, 12, 13, 14, 15
    V_QF, V_PQ = 16, 20
    V_ACCQ = 24
    V_FB = [40, 72]
    V_O, V_C, V_KF = 104, 120, 136
    V_VF = [140, 148]
    V_L4, V_FLG, V_TAG, V_WOA0, V_WOA1, V_WA3 = 156, 157, 158, 159, 160, 161
    V_PK = 162
    V_S = [24, 40]
    V_AC, V_OA = 56, 72
    V_FA, V_FBB, V_WO = 56, 120, 88
    V_OUT = [24, 40]

    def srd(s, ka, size):
        a(f"""s_mov_b32 {sr(s)}, {sr(S_KA+ka)}
              s_mov_b32 {sr(s+1)}, {sr(S_KA+ka+1)}
              s_mov_b32 {sr(s+2)}, {hex(size)}
              s_mov_b32 {sr(s+3)}, 0x20000""")
    def flag_store(soff):
        a(f"""s_mov_b64 exec, 1
              buffer_store_dword {vr(V_TAG)}, {vr(V_L4)}, {sr(S_WS,4)}, {sr(soff)} offen sc1
              s_mov_b64 exec, -1""")
    def flag_load(soff):
        a(f"""s_mov_b32 exec_hi, 0
              buffer_load_dword {vr(V_FLG)}, {vr(V_L4)}, {sr(S_WS,4)}, {sr(soff)} offen sc1
              s_mov_b32 exec_hi, -1""")
    def flag_spin(lbl, soff):
        a(f"s_mov_b32 {sr(S_SPIN)}, 0")
        a.label(lbl + "_loop")
        a(f"""v_cmp_ne_u32 vcc, {vr(V_FLG)}, {vr(V_TAG)}
              s_cmp_eq_u32 vcc_lo, 0
              s_cbranch_scc1 {lbl}_ok
              s_add_u32 {sr(S_SPIN)}, {sr(S_SPIN)}, 1
              s_cmp_ge_u32 {sr(S_SPIN)}, 100000
              s_cbranch_scc1 {lbl}_ok""")
        flag_load(soff)
        a(f"""s_waitcnt vmcnt(0)
              s_branch {lbl}_loop""")
        a.label(lbl + "_ok")
    def arm_spin(lbl, soff):
        a(f"s_mov_b32 {sr(S_SPIN)}, 0")
        a.label(lbl + "_loop")
        a(f"""v_sub_u32 {vr(V_FLG)}, {vr(V_FLG)}, {vr(V_TAG)}
              v_cmp_lt_u32 vcc, 15, {vr(V_FLG)}
              s_cmp_eq_u32 vcc_lo, 0
              s_cbranch_scc1 {lbl}_ok
              s_add_u32 {sr(S_SPIN)}, {sr(S_SPIN)}, 1
              s_cmp_ge_u32 {sr(S_SPIN)}, 100000
              s_cbranch_scc1 {lbl}_ok""")
        flag_load(soff)
        a(f"""s_waitcnt vmcnt(0)
              s_branch {lbl}_loop""")
        a.label(lbl + "_ok")
    def tag_setup():
        a(f"""s_waitcnt lgkmcnt(0)
              s_mul_i32 {sr(S_TAG)}, {sr(S_TAG)}, 0x9e3779b1
              s_add_u32 {sr(S_TAG)}, {sr(S_TAG)}, 0x7f4a7c15
              v_mov_b32 {vr(V_TAG)}, {sr(S_TAG)}""")
    def omap():
        a(f"""s_and_b32 {sr(S_QO)}, s2, 7
              s_lshl_b32 {sr(S_QO)}, {sr(S_QO)}, 2
              s_bfe_u32 {sr(S_T1)}, s2, 0x20003
              s_add_u32 {sr(S_QO)}, {sr(S_QO)}, {sr(S_T1)}
              s_lshr_b32 {sr(S_NS)}, s2, 5""")
    def ts_out():
        a(f"""s_mul_i32 {sr(S_T0)}, s2, {NWAVE}
              s_add_u32 {sr(S_T0)}, {sr(S_T0)}, {sr(S_WAVE)}
              s_lshl_b32 {sr(S_T0)}, {sr(S_T0)}, 8
              s_add_u32 {sr(S_T0)}, {sr(S_T0)}, {WS_TS}
              buffer_store_dword v{V_STAMP}, {vr(V_L4)}, {sr(S_WS,4)}, {sr(S_T0)} offen""")
    def phi(src, n, tmp):
        for i in range(0, n, 2):
            a(f"v_pk_mul_f32 {vr(tmp+i,2)}, {sr(S_LOG2E,2)}, {vr(src+i,2)}")
        for i in range(n):
            a(f"v_exp_f32 {vr(tmp+i)}, {vr(tmp+i)} clamp")
        for i in range(n):
            a(f"v_max_f32 {vr(src+i)}, {sr(S_EPS)}, {vr(src+i)}")
        for i in range(0, n, 2):
            a(f"v_pk_add_f32 {vr(src+i,2)}, {vr(src+i,2)}, {vr(tmp+i,2)}")

    MAP = opts.get("map", 48)
    a.label(f"{NAME}_kernel")
    a(f"""s_cmp_ge_u32 s2, 256
          s_cbranch_scc1 L_end
          s_load_dwordx16 {sr(S_KA,16)}, s[0:1], 0
          s_load_dwordx8 {sr(S_KA+16,8)}, s[0:1], 64
          v_and_b32 {vr(V_LANE)}, 63, v0
          v_lshrrev_b32 {vr(V_T0)}, 6, v0
          s_and_b32 {sr(S_T0)}, s2, {7 if MAP == 48 else 1}
          v_readfirstlane_b32 {sr(S_WAVE)}, {vr(V_T0)}
          s_lshl_b32 {sr(S_T0)}, {sr(S_T0)}, 2
          s_bfe_u32 {sr(S_T1)}, s2, 0x20003
          s_add_u32 {sr(S_QB if MAP == 48 else S_HG)}, {sr(S_T0)}, {sr(S_T1)}
          s_sub_u32 {sr(S_WAVE)}, {sr(S_WAVE)}, 4
          s_cselect_b32 {sr(S_T1)}, 12, 0
          s_add_u32 {sr(S_WAVE)}, {sr(S_WAVE)}, {sr(S_T1)}
          s_lshr_b32 {sr(S_HG if MAP == 48 else S_QB)}, s2, 5
          {"" if MAP == 48 else f"s_and_b32 {sr(S_T1)}, s2, 6"}
          {"" if MAP == 48 else f"s_lshl_b32 {sr(S_T1)}, {sr(S_T1)}, 2"}
          {"" if MAP == 48 else f"s_add_u32 {sr(S_QB)}, {sr(S_QB)}, {sr(S_T1)}"}
          s_lshr_b32 {sr(S_RGJ)}, {sr(S_HG)}, 1
          s_xor_b32 {sr(S_HGQ)}, {sr(S_HG)}, 1
          s_xor_b32 {sr(S_HGK)}, {sr(S_HG)}, 2""")
    stamp(0)
    a(f"""v_lshrrev_b32 {vr(V_T0)}, 4, {vr(V_LANE)}
          v_xor_b32 {vr(V_T0)}, {vr(V_T0)}, {vr(V_LANE)}
          v_and_b32 {vr(V_T0)}, 3, {vr(V_T0)}
          v_lshlrev_b32 {vr(V_T0)}, 4, {vr(V_T0)}
          v_lshrrev_b32 {vr(V_T1)}, 2, {vr(V_LANE)}
          v_lshl_add_u32 {vr(V_XOFF)}, {vr(V_T1)}, 10, {vr(V_T0)}
          v_lshlrev_b32 {vr(V_L16)}, 4, {vr(V_LANE)}
          v_lshlrev_b32 {vr(V_L4)}, 2, {vr(V_LANE)}
          s_mov_b32 {sr(S_X+2)}, 0x200000
          s_mov_b32 {sr(S_X+3)}, 0x20000
          s_and_b32 {sr(S_J)}, s2, {opts.get("jmask", 7)}
          s_lshl_b32 {sr(S_T0)}, {sr(S_QB)}, 16
          s_lshl_b32 {sr(S_T1)}, {sr(S_J)}, 7
          s_or_b32 {sr(S_T0)}, {sr(S_T0)}, {sr(S_T1)}
          s_cmp_eq_u32 {sr(S_WAVE)}, 8
          s_cbranch_scc1 L_a0
          s_cmp_eq_u32 {sr(S_WAVE)}, 9
          s_cbranch_scc1 L_a1
          s_cmp_ge_u32 {sr(S_WAVE)}, 10
          s_cbranch_scc1 L_a23
          s_and_b32 {sr(S_RT)}, {sr(S_WAVE)}, 1
          s_lshr_b32 {sr(S_HH)}, {sr(S_WAVE)}, 1""")
    S_XOFF, S_XM0 = S_U0, S_U1
    a(f"""s_and_b32 {sr(S_T1)}, {sr(S_WAVE)}, 3
          s_lshr_b32 {sr(S_T2)}, {sr(S_WAVE)}, 2
          s_lshl_b32 {sr(S_T3)}, {sr(S_T1)}, 14
          s_add_u32 {sr(S_XOFF)}, {sr(S_T0)}, {sr(S_T3)}
          s_lshl_b32 {sr(S_T3)}, {sr(S_T2)}, 7
          s_xor_b32 {sr(S_XOFF)}, {sr(S_XOFF)}, {sr(S_T3)}
          s_lshl_b32 {sr(S_XM0)}, {sr(S_T1)}, 10
          s_lshl_b32 {sr(S_T3)}, {sr(S_T2)}, 13
          s_add_u32 {sr(S_XM0)}, {sr(S_XM0)}, {sr(S_T3)}
          s_cmp_eq_u32 {sr(S_T1)}, {sr(S_RGJ)}
          s_cselect_b64 {sr(S_XMASK,2)}, 1, -1""")
    a(f"""v_lshrrev_b32 {vr(V_T0)}, 3, {vr(V_LANE)}
          v_and_b32 {vr(V_T3)}, 7, {vr(V_LANE)}
          v_lshlrev_b32 {vr(V_T3)}, 7, {vr(V_T3)}
          v_lshl_add_u32 {vr(V_T2)}, {vr(V_T0)}, 10, {vr(V_T3)}
          v_mul_u32_u24 {vr(V_T0)}, 3072, {vr(V_T0)}
          v_add_u32 {vr(V_T0)}, {vr(V_T0)}, {vr(V_T3)}
          s_xor_b32 {sr(S_T2)}, {sr(S_WAVE)}, {sr(S_J)}
          s_lshl_b32 {sr(S_T2)}, {sr(S_T2)}, 5
          s_lshr_b32 {sr(S_T3)}, s2, 3
          s_add_u32 {sr(S_T2)}, {sr(S_T2)}, {sr(S_T3)}
          s_lshl_b32 {sr(S_U2)}, {sr(S_T2)}, 11
          s_mul_i32 {sr(S_U3)}, {sr(S_T2)}, 6144
          s_lshl_b32 {sr(S_T3)}, {sr(S_HG)}, 13
          s_lshl_b32 {sr(S_RDY)}, {sr(S_WAVE)}, 10
          s_add_u32 {sr(S_T3)}, {sr(S_T3)}, {sr(S_RDY)}
          s_lshl_b32 {sr(S_RDY)}, {sr(S_QB)}, 16
          s_add_u32 {sr(S_T3)}, {sr(S_T3)}, {sr(S_RDY)}
          s_waitcnt lgkmcnt(0)
          s_mov_b32 {sr(S_X)}, {sr(S_KA+0)}
          s_mov_b32 {sr(S_X+1)}, {sr(S_KA+1)}
          s_load_dword {sr(S_TAG)}, {sr(S_KA+22,2)}, {WS_E}""")
    def xdma(r):
        a(f"s_xor_b32 {sr(S_T1)}, {sr(S_XOFF)}, {r*256}")
        a(f"s_add_u32 m0, {sr(S_XM0)}, {L_X + r*16384}")
        a(f"s_mov_b64 exec, {sr(S_XMASK,2)}")
        a.vmem(f"buffer_load_dwordx4 {vr(V_XOFF)}, {sr(S_X,4)}, {sr(S_T1)} offen lds", f"x{r}")
        a(f"s_add_u32 m0, {sr(S_XM0)}, {L_X + r*16384 + 4096 - 64}")
        a("s_nop 0")
        a.vmem(f"buffer_load_dwordx4 {vr(V_XOFF)}, {sr(S_X,4)}, {sr(S_T1)} offen offset:64 lds", f"x{r}")
        a("s_mov_b64 exec, -1")
    PF = opts.get("pf", 0)
    if not PF & 4: xdma(0)
    if PF & 1:
        a("s_mov_b64 exec, 0xff")
        a.vmem(f"buffer_load_dword {vr(V_FLG)}, {vr(V_T3)}, {sr(S_X,4)}, {sr(S_T3)} offen", "pf")
        a("s_mov_b64 exec, -1")
    if PF & 2:
        srd(S_W, 8, 0x80000)
        srd(S_WOB, 2, 0x180000)
        a(f"""s_lshl_b32 {sr(S_U2)}, s2, 11
              s_mul_i32 {sr(S_U3)}, s2, 6144
              s_cmp_eq_u32 {sr(S_WAVE)}, 0
              s_cselect_b64 exec, 0xffff, 1""")
        a.vmem(f"buffer_load_dword {vr(V_FLG)}, {vr(V_T2)}, {sr(S_W,4)}, {sr(S_U2)} offen", "pf")
        a.vmem(f"buffer_load_dword {vr(V_FLG)}, {vr(V_T0)}, {sr(S_WOB,4)}, {sr(S_U3)} offen", "pf")
        a("s_mov_b64 exec, -1")
    if PF & 4: xdma(0)
    srd(S_WS, 22, WS_SIZE)
    srd(S_OUT, 18, 0x200000)
    omap()
    a(f"""v_lshlrev_b32 {vr(V_T2)}, 15, {vr(V_LANE)}
          s_lshl_b32 {sr(S_T1)}, {sr(S_QB)}, 17
          s_lshl_b32 {sr(S_T2)}, {sr(S_QO)}, 17
          s_cmp_eq_u32 {sr(S_WAVE)}, 1
          s_cselect_b32 {sr(S_T1)}, {sr(S_T1)}, {sr(S_T2)}
          s_add_u32 {sr(S_T1)}, {sr(S_T1)}, {WS_OA}
          s_cmp_eq_u32 {sr(S_WAVE)}, 0
          s_cselect_b32 {sr(S_T1)}, 0x380, {sr(S_T1)}
          s_cselect_b32 exec_lo, 0xffffff, 15
          s_mov_b32 exec_hi, 0
          s_cmp_ge_u32 {sr(S_WAVE)}, 3
          s_cbranch_scc1 L_tlb1
          buffer_load_dword {vr(V_FLG)}, {vr(V_T2)}, {sr(S_WS,4)}, {sr(S_T1)} offen sc1
          s_branch L_tlb2""")
    a.label("L_tlb1")
    a(f"""s_lshl_b32 {sr(S_T1)}, {sr(S_QO)}, 16
          s_mov_b32 exec_lo, 3
          buffer_load_dword {vr(V_FLG)}, {vr(V_T2)}, {sr(S_OUT,4)}, {sr(S_T1)} offen""")
    a.label("L_tlb2")
    a("s_mov_b64 exec, -1")
    a.vm.append("tlb")
    xdma(1)
    def consts():
        a(f"""s_mov_b32 {sr(S_VMASK)}, 0xffff
              s_mov_b32 {sr(S_VMASK+1)}, 0xffff
              s_mov_b32 {sr(S_LOG2E)}, {hex(f2u(LOG2E))}
              s_mov_b32 {sr(S_LOG2E+1)}, {hex(f2u(LOG2E))}
              s_mov_b32 {sr(S_EPS)}, {hex(f2u(1e-6))}
              s_mov_b32 {sr(S_ONES)}, 0x3f803f80""")
    def xfrag_addr(rt_s):
        a(f"""v_and_b32 {vr(V_T0)}, 31, {vr(V_LANE)}
              v_lshrrev_b32 {vr(V_T1)}, 5, {vr(V_LANE)}
              v_bfe_u32 {vr(V_T2)}, {vr(V_LANE)}, 2, 2
              v_xor_b32 {vr(V_T2)}, {vr(V_T2)}, {vr(V_T1)}
              v_lshlrev_b32 {vr(V_T2)}, 4, {vr(V_T2)}
              v_lshl_add_u32 {vr(V_T3)}, {vr(V_T0)}, 6, {vr(V_T2)}
              s_lshl_b32 {sr(S_T0)}, {sr(rt_s)}, 11
              s_add_u32 {sr(S_T0)}, {sr(S_T0)}, {L_X}
              v_add_u32 {vr(V_XA0)}, {sr(S_T0)}, {vr(V_T3)}
              v_xor_b32 {vr(V_XA1)}, 32, {vr(V_XA0)}""")
    consts()
    a(f"""s_lshl_b32 {sr(S_HEAD)}, {sr(S_HG)}, 2
          s_add_u32 {sr(S_HEAD)}, {sr(S_HEAD)}, {sr(S_HH)}
          s_lshl_b32 {sr(S_HEADA)}, {sr(S_HGQ)}, 2
          s_add_u32 {sr(S_HEADA)}, {sr(S_HEADA)}, {sr(S_HH)}
          s_lshl_b32 {sr(S_RT32)}, {sr(S_QB)}, 1
          s_add_u32 {sr(S_RT32)}, {sr(S_RT32)}, {sr(S_RT)}
          s_lshl_b32 {sr(S_RO32)}, {sr(S_QO)}, 1
          s_add_u32 {sr(S_RO32)}, {sr(S_RO32)}, {sr(S_RT)}
          s_mov_b32 {sr(S_QS)}, {hex(f2u(QSCALE))}
          s_mov_b32 {sr(S_QS+1)}, {hex(f2u(QSCALE))}""")
    xfrag_addr(S_RT)
    a(f"""v_bfe_u32 {vr(V_T0)}, {vr(V_LANE)}, 4, 1
          v_bfe_u32 {vr(V_T2)}, {vr(V_LANE)}, 3, 2
          v_xor_b32 {vr(V_T2)}, {sr(S_HH)}, {vr(V_T2)}
          v_lshlrev_b32 {vr(V_T2)}, 5, {vr(V_T2)}
          v_lshl_add_u32 {vr(V_T2)}, {vr(V_T0)}, 13, {vr(V_T2)}
          v_lshl_add_u32 {vr(V_T2)}, {vr(V_T1)}, 10, {vr(V_T2)}
          v_bfe_u32 {vr(V_T0)}, {vr(V_LANE)}, 2, 2
          v_lshl_add_u32 {vr(V_T2)}, {vr(V_T0)}, 7, {vr(V_T2)}
          v_and_b32 {vr(V_T0)}, 3, {vr(V_LANE)}
          v_lshl_add_u32 {vr(V_WA)}, {vr(V_T0)}, 3, {vr(V_T2)}
          v_add_u32 {vr(V_WA3)}, {L_HI}, {vr(V_WA)}""")
    for i in range(8):
        a(f"v_mov_b32 {vr(V_ACCQ+i)}, 0")
        a(f"v_mov_b32 {vr(V_ACCQ+8+i)}, {sr(S_EPS)}")
    a(f"""v_mov_b32 {vr(V_T0)}, {sr(S_ONES)}
          s_mov_b32 {sr(S_SAVE)}, 0x110000
          s_mov_b32 {sr(S_SAVE+1)}, 0x110000
          v_cndmask_b32 {vr(V_T0)}, 0, {vr(V_T0)}, {sr(S_SAVE,2)}""")
    for i in range(16):
        a(f"v_mov_b32 {vr(V_O+i)}, 0")
        a(f"v_mov_b32 {vr(V_VF[0]+i)}, {vr(V_T0)}")
    a(f"""v_mov_b32 {vr(V_IDX)}, 0xdddd
          v_mov_b32 {vr(V_KA)}, {vr(V_L16)}
          v_and_b32 {vr(V_T3)}, 15, {vr(V_LANE)}
          v_lshlrev_b32 {vr(V_T3)}, 4, {vr(V_T3)}
          v_lshl_add_u32 {vr(V_VA)}, {vr(V_T1)}, 8, {vr(V_T3)}""")
    V_GA, V_ACA, V_ARM = V_WOFF, 166, 0
    S_GOFF, S_MYFO, S_INFO, S_ACC = 28, 29, 30, 31
    def ooff(dst, base):
        a(f"""s_lshl_b32 {sr(dst)}, {sr(S_RT32)}, 6
              s_add_u32 {sr(dst)}, {sr(dst)}, {sr(S_HEADA if base == WS_OA else S_HEAD)}
              s_lshl_b32 {sr(dst)}, {sr(dst)}, 10
              s_add_u32 {sr(dst)}, {sr(dst)}, {base}""")
    ooff(S_RDY, WS_OB)
    ooff(S_AUX, WS_OA)
    a(f"""v_and_b32 {vr(V_T0)}, 0x3c, {vr(V_L4)}
          v_bfe_u32 {vr(V_T1)}, {vr(V_LANE)}, 4, 1
          v_lshl_add_u32 {vr(V_GA)}, {vr(V_T1)}, 7, {vr(V_T0)}
          s_lshl_b32 {sr(S_GOFF)}, {sr(S_RT32)}, 8
          s_add_u32 {sr(S_GOFF)}, {sr(S_GOFF)}, {WS_G}
          v_mov_b32 {vr(V_PK)}, -1
          v_mov_b32 {vr(V_PK+1)}, -1
          v_mov_b32 {vr(V_PK+2)}, -1
          v_mov_b32 {vr(V_PK+3)}, -1
          s_lshl_b32 {sr(S_MYFO)}, {sr(S_RT32)}, 5
          s_add_u32 {sr(S_MYFO)}, {sr(S_MYFO)}, {sr(S_HEAD)}
          s_lshl_b32 {sr(S_MYFO)}, {sr(S_MYFO)}, 2
          s_add_u32 {sr(S_MYFO)}, {sr(S_MYFO)}, {WS_FO}
          v_lshrrev_b32 {vr(V_T0)}, 5, {vr(V_LANE)}
          v_lshlrev_b32 {vr(V_T0)}, 9, {vr(V_T0)}
          v_bfe_u32 {vr(V_T1)}, {vr(V_LANE)}, 2, 2
          v_lshl_add_u32 {vr(V_T0)}, {vr(V_T1)}, 7, {vr(V_T0)}
          v_bfe_u32 {vr(V_T1)}, {vr(V_LANE)}, 3, 1
          v_lshl_add_u32 {vr(V_T0)}, {vr(V_T1)}, 6, {vr(V_T0)}
          v_bfe_u32 {vr(V_T1)}, {vr(V_LANE)}, 4, 1
          v_lshl_add_u32 {vr(V_T0)}, {vr(V_T1)}, 5, {vr(V_T0)}
          v_and_b32 {vr(V_T1)}, 3, {vr(V_LANE)}
          v_lshl_add_u32 {vr(V_T0)}, {vr(V_T1)}, 3, {vr(V_T0)}
          s_lshl_b32 {sr(S_T0)}, {sr(S_HH)}, 14
          v_add_u32 {vr(V_WOA0)}, {sr(S_T0)}, {vr(V_T0)}
          v_xor_b32 {vr(V_WOA1)}, 64, {vr(V_WOA0)}
          s_lshl_b32 {sr(S_U0)}, {sr(S_RO32)}, 3
          s_add_u32 {sr(S_U0)}, {sr(S_U0)}, {sr(S_HH)}
          s_lshl_b32 {sr(S_U0)}, {sr(S_U0)}, 13
          s_add_u32 {sr(S_U0)}, {sr(S_U0)}, {WS_OA}
          s_add_u32 {sr(S_U1)}, {sr(S_U0)}, 4096
          s_lshl_b32 {sr(S_U2)}, {sr(S_RO32)}, 4
          s_add_u32 {sr(S_U2)}, {sr(S_U2)}, {sr(S_HH)}
          s_lshl_b32 {sr(S_U2)}, {sr(S_U2)}, 12
          s_add_u32 {sr(S_U2)}, {sr(S_U2)}, {WS_OB}
          s_add_u32 {sr(S_U3)}, {sr(S_U2)}, 16384
          s_and_b32 {sr(S_T1)}, {sr(S_HEADA)}, 1
          v_lshrrev_b32 {vr(V_T1)}, 5, {vr(V_LANE)}
          s_lshl_b32 {sr(S_T2)}, {sr(S_T1)}, 1
          s_add_u32 {sr(S_T2)}, {sr(S_T2)}, 64
          v_add_u32 {vr(V_T1)}, {sr(S_T2)}, {vr(V_T1)}
          v_and_b32 {vr(V_T0)}, 0x2f, {vr(V_LANE)}
          s_lshl_b32 {sr(S_T2)}, {sr(S_T1)}, 4
          v_add_u32 {vr(V_T0)}, {sr(S_T2)}, {vr(V_T0)}
          v_cndmask_b32 {vr(V_T0)}, {vr(V_T0)}, {vr(V_T1)}, {sr(S_VMASK,2)}
          v_lshlrev_b32 {vr(V_ACA)}, 2, {vr(V_T0)}
          s_lshr_b32 {sr(S_ACC)}, {sr(S_HEADA)}, 1
          s_lshl_b32 {sr(S_ACC)}, {sr(S_ACC)}, 12
          s_add_u32 {sr(S_ACC)}, {sr(S_ACC)}, {WS_ACC}
          s_lshl_b32 {sr(S_INFO)}, {sr(S_RO32)}, 7
          s_add_u32 {sr(S_INFO)}, {sr(S_INFO)}, {WS_FO}""")
    tag_setup()
    stamp(1)

    def reads(c):
        fb = V_FB[c % 2]
        s = c % 4
        wa, wo = (V_WA, RSLOT[s]) if s < 3 else (V_WA3, 0)
        r = []
        for p in range(4):
            r.append(f"ds_read_b128 {vr(fb+4*p,4)}, {vr(V_XA0 if p%2==0 else V_XA1)} offset:{(2*c + p//2)*4096}")
            for u in range(2):
                r.append(f"ds_read_b64_tr_b16 {vr(fb+16+4*p+2*u,2)}, {vr(wa)} offset:{wo + p*2048 + u*512}")
        return r
    def mfmas(c):
        fb = V_FB[c % 2]
        return [f"v_mfma_f32_32x32x16_bf16 {vr(V_ACCQ,16)}, {vr(fb+16+4*p,4)}, {vr(fb+4*p,4)}, {vr(V_ACCQ,16)}" for p in range(4)]
    for c in range(8):
        if c in (0, 2):
            a.wait_vm(f"x{c//2}", "lgkmcnt(0)")
        else:
            a("s_waitcnt lgkmcnt(0)")
        a("s_barrier")
        R_ = reads(c)
        if c == 0:
            for r in R_: a(r)
        else:
            M_ = mfmas(c - 1)
            for k in range(4):
                a(M_[k])
                for r in R_[4*k:4*k+4]: a(r)
    for k, m in enumerate(mfmas(7)):
        a(f"s_waitcnt lgkmcnt({9-3*k})")
        a(m)
    stamp(2)
    E = V_FB[0]
    a(f"""s_mov_b32 {sr(S_SEG)}, 0
          s_nop 10""")
    for i in range(0, 8, 2):
        a(f"v_pk_mul_f32 {vr(V_ACCQ+i,2)}, {sr(S_QS,2)}, {vr(V_ACCQ+i,2)}")
    for i in range(4):
        a(f"v_cvt_pk_bf16_f32 {vr(V_QF+i)}, {vr(V_ACCQ+2*i)}, {vr(V_ACCQ+2*i+1)}")
    phi(V_ACCQ + 8, 8, E)
    for i in range(4):
        a(f"v_cvt_pk_bf16_f32 {vr(V_PQ+i)}, {vr(V_ACCQ+8+2*i)}, {vr(V_ACCQ+8+2*i+1)}")
    stamp(3)
    a("s_barrier")
    a("s_setprio 3")
    stamp(4)
    a(f"""ds_read_b128 {vr(V_KF,4)}, {vr(V_KA)}
          s_mov_b64 exec, {sr(S_VMASK,2)}
          ds_read_b128 {vr(V_VF[0],4)}, {vr(V_VA)} offset:1024
          ds_read_b128 {vr(V_VF[0]+4,4)}, {vr(V_VA)} offset:1536
          ds_read_b128 {vr(V_VF[1],4)}, {vr(V_VA)} offset:{2048+1024}
          ds_read_b128 {vr(V_VF[1]+4,4)}, {vr(V_VA)} offset:{2048+1536}
          s_mov_b64 exec, -1
          s_waitcnt lgkmcnt(4)
          v_mfma_f32_32x32x16_bf16 {vr(V_S[0],16)}, {vr(V_KF,4)}, {vr(V_QF,4)}, 0
          ds_read_b128 {vr(V_KF,4)}, {vr(V_KA)} offset:2048""")
    if dbg:
        for reg, hd, base in ((V_QF, S_HEAD, WS_DBG1), (V_PQ, S_HEADA, WS_DBG2)):
            a(f"""s_lshl_b32 {sr(S_T0)}, {sr(S_RT32)}, 5
                  s_add_u32 {sr(S_T0)}, {sr(S_T0)}, {sr(hd)}
                  s_lshl_b32 {sr(S_T0)}, {sr(S_T0)}, 10
                  s_add_u32 {sr(S_T1)}, {sr(S_T0)}, {base}
                  buffer_store_dwordx4 {vr(reg,4)}, {vr(V_L16)}, {sr(S_WS,4)}, {sr(S_T1)} offen""")
    S0 = V_S[0]
    a(f"""s_nop 10
          v_max3_f32 {vr(V_T0)}, {vr(S0)}, {vr(S0+1)}, {vr(S0+2)}
          v_max3_f32 {vr(V_T1)}, {vr(S0+3)}, {vr(S0+4)}, {vr(S0+5)}
          v_max3_f32 {vr(V_T2)}, {vr(S0+6)}, {vr(S0+7)}, {vr(S0+8)}
          v_max3_f32 {vr(V_T3)}, {vr(S0+9)}, {vr(S0+10)}, {vr(S0+11)}
          v_max3_f32 {vr(V_T0)}, {vr(V_T0)}, {vr(S0+12)}, {vr(S0+13)}
          v_max3_f32 {vr(V_T1)}, {vr(V_T1)}, {vr(S0+14)}, {vr(S0+15)}
          v_max3_f32 {vr(V_T0)}, {vr(V_T0)}, {vr(V_T1)}, {vr(V_T2)}
          v_max_f32 {vr(V_T0)}, {vr(V_T0)}, {vr(V_T3)}
          v_mov_b32 {vr(V_T1)}, {vr(V_T0)}
          s_nop 1
          v_permlane32_swap_b32 {vr(V_T0)}, {vr(V_T1)}
          s_nop 1
          v_max_f32 {vr(V_T0)}, {vr(V_T0)}, {vr(V_T1)}
          v_sub_f32 {vr(V_T2)}, 0, {vr(V_T0)}
          v_sub_f32 {vr(V_T3)}, 0, {vr(V_T0)}""")
    for i in range(0, 16, 2):
        a(f"v_pk_add_f32 {vr(S0+i,2)}, {vr(S0+i,2)}, {vr(V_T2,2)}")
    for i in range(0, 16, 2):
        a(f"v_pk_mov_b32 {vr(V_C+i,2)}, {vr(V_T2,2)}, {vr(V_T2,2)} op_sel:[0,1]")
    a(f"""v_exp_f32 {vr(S0)}, {vr(S0)}
          v_exp_f32 {vr(S0+1)}, {vr(S0+1)}
          s_waitcnt lgkmcnt(0)""")
    stamp(5)

    PR = opts.get("ramp", "3210")
    PR = [int(ch) for ch in str(PR).zfill(4)]
    def oload(i, dst, br):
        so = [[S_U0, S_U1], [S_U2, S_U3]][br][i // 4]
        a(f"buffer_load_dwordx4 {vr(dst+4*i,4)}, {vr(V_L16)}, {sr(S_WS,4)}, {sr(so)} offen offset:{(i%4)*1024} sc1")
    def osan():
        for i in range(4):
            a(f"v_min_u32 {vr(V_PK+i)}, -2, {vr(V_PK+i)}")
    ins = {}
    def at(p, slot, fn): ins.setdefault((p, slot), []).append(fn)
    HK = 8 * opts.get("hk", 3)
    H5 = opts.get('h5', 40)
    bars = {8: (2, 11), 32: (0, 13), H5: (2, 17), 48: (0, 19)}
    at(8, "B", lambda: a(f"buffer_load_dword {vr(V_G)}, {vr(V_GA)}, {sr(S_WS,4)}, {sr(S_GOFF)} offen sc1"))
    at(9, "A", lambda: a(f"buffer_store_dwordx4 {vr(V_PK,4)}, {vr(V_L16)}, {sr(S_WS,4)}, {sr(S_RDY)} offen sc1"))
    at(10, "A", lambda: a(f"buffer_store_dwordx4 {vr(V_PK,4)}, {vr(V_L16)}, {sr(S_WS,4)}, {sr(S_AUX)} offen sc1"))
    at(20, "A", lambda: a(f"""s_waitcnt vmcnt(0)
                              s_mov_b64 exec, 1
                              buffer_store_dword {vr(V_TAG)}, {vr(V_L4)}, {sr(S_WS,4)}, {sr(S_MYFO)} offen sc1
                              s_mov_b64 exec, -1"""))
    for r in range(8):
        at(H5 + r // 2, "AB"[r % 2], lambda r=r: a(f"buffer_load_dword {vr(V_AC+r)}, {vr(V_ACA)}, {sr(S_WS,4)}, {sr(S_ACC)} offen offset:{r*512} sc1"))
    at(38, "A", lambda: flag_load(S_INFO))
    PO = opts.get("po", H5 + 7)
    def oa1():
        a("s_waitcnt vmcnt(0)")
        for i in range(4):
            a(f"v_cvt_pk_bf16_f32 {vr(V_AC+8+i)}, {vr(V_AC+2*i)}, {vr(V_AC+2*i+1)}")
    at(PO, "A", oa1)
    at(PO, "B", lambda: a(f"v_mfma_f32_32x32x16_bf16 {vr(V_OA,16)}, {vr(V_AC+8,4)}, {vr(V_PQ,4)}, 0"))
    at(PO + 1, "B", lambda: a(f"""v_add_f32 {vr(V_T0)}, {sr(S_EPS)}, {vr(V_OA)}
                                  v_rcp_f32 {vr(V_T0)}, {vr(V_T0)}"""))
    def oa2():
        a(f"v_mul_f32 {vr(V_T0)}, {vr(V_T0)}, {vr(V_G)}")
        for i in range(0, 8, 2):
            a(f"v_pk_mul_f32 {vr(V_OA+8+i,2)}, {vr(V_OA+8+i,2)}, {vr(V_T0,2)} op_sel_hi:[1,0]")
        for i in range(4):
            a(f"v_cvt_pk_bf16_f32 {vr(V_PK+i)}, {vr(V_OA+8+2*i)}, {vr(V_OA+8+2*i+1)}")
        osan()
        a(f"buffer_store_dwordx4 {vr(V_PK,4)}, {vr(V_L16)}, {sr(S_WS,4)}, {sr(S_AUX)} offen sc1")
        a(f"v_sub_f32 {vr(V_G)}, 1.0, {vr(V_G)}")
    at(PO + 1, "C", oa2)
    def armchk():
        a.label("L_arm")
        a(f"""v_cmp_ne_u32 vcc, {vr(V_FLG)}, {vr(V_TAG)}
              s_cmp_eq_u32 vcc_lo, 0
              s_cbranch_scc0 L_armr""")
        a.label("L_armk")
    at(PO + 3, "A", armchk)
    for i in range(8):
        at(56 + i, "A", lambda i=i: oload(i, V_FA, 0))
    def run(p, slot):
        for fn in ins.get((p, slot), []): fn()
    a(f"s_mov_b32 {sr(S_SPIN)}, 0")
    for p in range(2, 66):
        cur, nxt = V_S[p % 2], V_S[(p + 1) % 2]
        vf = V_VF[p % 2]
        ex = lambda r: a(f"v_exp_f32 {vr(r)}, {vr(r)}")
        if p < 56:
            ramp = {0: PR[0], 4: PR[1], 6: PR[2], 7: PR[3]}
            if p < 8:
                r0 = {2: 2, opts.get("r1", 6): 1, 7: 0}
                if p in r0: a(f"s_setprio {r0[p]}")
            elif p % 8 in ramp: a(f"s_setprio {ramp[p % 8]}")
        else:
            ramp = {56: PR[0], 62: PR[1], 64: PR[2], 65: PR[3]}
            if p in ramp: a(f"s_setprio {ramp[p]}")
        for i in (2, 3, 4, 5): ex(cur + i)
        if p < 65:
            a(f"s_waitcnt lgkmcnt({bars[p][0] if p in bars else 2})")
            a(f"v_mfma_f32_32x32x16_bf16 {vr(nxt,16)}, {vr(V_KF,4)}, {vr(V_QF,4)}, {vr(V_C,16)}")
        else:
            a("s_waitcnt lgkmcnt(0)")
        if p == 32:
            a(f"""v_add_u32 {vr(V_KA)}, 0x10000, {vr(V_KA)}
                  v_add_u32 {vr(V_VA)}, 0x10000, {vr(V_VA)}""")
        if p in bars:
            stamp(bars[p][1])
            a("s_barrier")
            stamp(bars[p][1] + 1)
        off = (p % 32) * 2048
        if p < 64:
            a(f"ds_read_b128 {vr(V_KF,4)}, {vr(V_KA)} offset:{off}")
        elif p == 64:
            a("s_nop 0")
        run(p, "A")
        for i in (6, 7, 8, 9, 10): ex(cur + i)
        a(f"v_smfmac_f32_32x32x32_bf16 {vr(V_O,16)}, {vr(vf,4)}, {vr(cur,8)}, {vr(V_IDX)}")
        run(p, "B")
        for i in (11, 12, 13, 14, 15): ex(cur + i)
        if p < 65:
            ex(nxt); ex(nxt + 1)
        else:
            a("s_nop 1")
        a(f"v_smfmac_f32_32x32x32_bf16 {vr(V_O,16)}, {vr(vf+4,4)}, {vr(cur+8,8)}, {vr(V_IDX)}")
        if p < 64:
            a(f"""s_mov_b64 exec, {sr(S_VMASK,2)}
                  ds_read_b128 {vr(vf,4)}, {vr(V_VA)} offset:{off+1024}
                  ds_read_b128 {vr(vf+4,4)}, {vr(V_VA)} offset:{off+1536}
                  s_mov_b64 exec, -1""")
        run(p, "C")

    VB0, VB1, VC0, VC1 = V_XOFF, V_WOFF, V_PQ, V_PQ + 1
    def wo_one(n, nt):
        b = V_WO + 8 * (n % 4) + 4 * nt
        ad = [V_WOA0, V_WOA1][nt] if n < 8 else ([VB0, VB1][nt] if n < 12 else [VC0, VC1][nt])
        off = n * 2048 if n < 8 else (n % 4) * 2048
        for u in range(2):
            a(f"ds_read_b64_tr_b16 {vr(b+2*u,2)}, {vr(ad)} offset:{off + u*1024}")
    def wo_rd(n):
        wo_one(n, 0); wo_one(n, 1)
    def mm(n, nt):
        src = V_FA + 4 * n if n < 8 else V_FBB + 4 * (n - 8)
        a(f"v_mfma_f32_32x32x16_bf16 {vr(V_OUT[nt],16)}, {vr(V_WO+8*(n%4)+4*nt,4)}, {vr(src,4)}, {'0' if n == 0 else vr(V_OUT[nt],16)}")
    wo_rd(0); wo_rd(1)
    a(f"""s_mov_b32 {sr(S_T0)}, {hex(f2u(2.0**64))}
          s_nop 2""")
    stamp(6)
    a(f"""v_rcp_f32 {vr(V_T0)}, {vr(V_O+8)}
          v_cmp_nle_f32 vcc, {vr(V_O+8)}, {sr(S_T0)}
          v_pk_mul_f32 {vr(V_T2,2)}, {vr(V_O,2)}, 0
          v_pk_fma_f32 {vr(V_T2,2)}, {vr(V_O+2,2)}, 0, {vr(V_T2,2)}
          v_pk_fma_f32 {vr(V_T2,2)}, {vr(V_O+4,2)}, 0, {vr(V_T2,2)}
          v_pk_fma_f32 {vr(V_T2,2)}, {vr(V_O+6,2)}, 0, {vr(V_T2,2)}
          v_cmp_u_f32 {sr(S_SAVE,2)}, {vr(V_T2)}, {vr(V_T3)}
          s_or_b64 vcc, vcc, {sr(S_SAVE,2)}
          s_cbranch_vccnz L_fallback""")
    a.label("L_norm")
    a(f"v_mul_f32 {vr(V_T0)}, {vr(V_T0)}, {vr(V_G)}")
    for i in range(0, 8, 2):
        a(f"v_pk_mul_f32 {vr(V_O+i,2)}, {vr(V_O+i,2)}, {vr(V_T0,2)} op_sel_hi:[1,0]")
    for i in range(4):
        a(f"v_cvt_pk_bf16_f32 {vr(V_PK+i)}, {vr(V_O+2*i)}, {vr(V_O+2*i+1)}")
    osan()
    a(f"buffer_store_dwordx4 {vr(V_PK,4)}, {vr(V_L16)}, {sr(S_WS,4)}, {sr(S_RDY)} offen sc1")
    wo_rd(2)
    a(f"""s_mov_b32 {sr(S_SPIN)}, 0
          s_waitcnt vmcnt(1)""")
    a.label("L_oa")
    a(f"v_max3_u32 {vr(V_FLG)}, {vr(V_FA)}, {vr(V_FA+1)}, {vr(V_FA+2)}")
    for i in range(3, 31, 2):
        a(f"v_max3_u32 {vr(V_FLG)}, {vr(V_FLG)}, {vr(V_FA+i)}, {vr(V_FA+i+1)}")
    a(f"""v_max_u32 {vr(V_FLG)}, {vr(V_FLG)}, {vr(V_FA+31)}
          v_cmp_eq_u32 vcc, -1, {vr(V_FLG)}
          s_cbranch_vccnz L_oar""")
    a.label("L_oak")
    A0, A1, A2, A3 = V_XA0, V_XA1, V_WA, V_KA
    setup = f"""s_lshl_b32 {sr(S_T0)}, {sr(S_HH)}, 13
          s_sub_u32 {sr(S_T1)}, {L_HI}, {sr(S_T0)}
          v_add_u32 {vr(VB0)}, {sr(S_T1)}, {vr(V_WOA0)}
          v_add_u32 {vr(VB1)}, {sr(S_T1)}, {vr(V_WOA1)}
          s_sub_u32 {sr(S_T1)}, 65536, {sr(S_T0)}
          v_add_u32 {vr(VC0)}, {sr(S_T1)}, {vr(V_WOA0)}
          v_add_u32 {vr(VC1)}, {sr(S_T1)}, {vr(V_WOA1)}
          v_and_b32 {vr(V_T0)}, 31, {vr(V_LANE)}
          v_lshrrev_b32 {vr(V_T1)}, 5, {vr(V_LANE)}
          v_and_b32 {vr(V_T2)}, 7, {vr(V_LANE)}
          v_xor_b32 {vr(V_T1)}, {vr(V_T1)}, {vr(V_T2)}
          v_lshlrev_b32 {vr(V_T1)}, 4, {vr(V_T1)}
          v_lshl_add_u32 {vr(V_T0)}, {vr(V_T0)}, 8, {vr(V_T1)}
          s_lshl_b32 {sr(S_T0)}, {sr(S_HH)}, 14
          s_lshl_b32 {sr(S_T1)}, {sr(S_RT)}, 13
          s_add_u32 {sr(S_T0)}, {sr(S_T0)}, {sr(S_T1)}
          v_add_u32 {vr(V_T0)}, {sr(S_T0)}, {vr(V_T0)}
          v_xor_b32 {vr(V_T1)}, 32, {vr(V_T0)}
          v_xor_b32 {vr(V_T2)}, 64, {vr(V_T0)}
          v_xor_b32 {vr(V_T3)}, 96, {vr(V_T0)}
          v_lshrrev_b32 {vr(A0)}, 3, {vr(V_LANE)}
          v_and_b32 {vr(A1)}, 7, {vr(V_LANE)}
          v_lshlrev_b32 {vr(A2)}, 1, {vr(A1)}
          v_xor_b32 {vr(A2)}, {vr(A2)}, {vr(A0)}
          v_lshlrev_b32 {vr(A2)}, 4, {vr(A2)}
          v_lshl_add_u32 {vr(A2)}, {vr(A0)}, 8, {vr(A2)}
          s_lshl_b32 {sr(S_T0)}, {sr(S_WAVE)}, 11
          v_add_u32 {vr(A2)}, {sr(S_T0)}, {vr(A2)}
          v_xor_b32 {vr(A3)}, 16, {vr(A2)}
          v_lshlrev_b32 {vr(A1)}, 4, {vr(A1)}
          v_lshl_add_u32 {vr(A0)}, {vr(A0)}, 10, {vr(A1)}
          s_lshl_b32 {sr(S_RDY)}, {sr(S_QO)}, 16
          s_lshl_b32 {sr(S_T1)}, {sr(S_WAVE)}, 13
          s_add_u32 {sr(S_RDY)}, {sr(S_RDY)}, {sr(S_T1)}
          s_lshl_b32 {sr(S_T1)}, {sr(S_NS)}, 7
          s_add_u32 {sr(S_RDY)}, {sr(S_RDY)}, {sr(S_T1)}""".split("\n")
    OBAT = opts.get("obat", 5)
    sched = {i: [] for i in range(8)}
    for k in range(8):
        sched[min(7, OBAT + (k * (8 - OBAT)) // 8)].append(k)
    per = (len(setup) + 3) // 4
    def chk(i):
        f = V_FBB + 4 * i
        a(f"s_waitcnt vmcnt({7-i})")
        a.label(f"L_ob{i}")
        a(f"""v_max3_u32 {vr(V_FLG)}, {vr(f)}, {vr(f+1)}, {vr(f+2)}
              v_max_u32 {vr(V_FLG)}, {vr(V_FLG)}, {vr(f+3)}
              v_cmp_eq_u32 vcc, -1, {vr(V_FLG)}
              s_cbranch_vccnz L_obr{i}""")
        a.label(f"L_obk{i}")
    OBM = opts.get("obm", 8)
    for n in range(12):
        if n == 8: stamp(7)
        if OBM and n == OBM:
            a("s_barrier")
            for k in range(8): oload(k, V_FBB, 1)
        if n >= 8: chk(n - 8)
        a(f"s_waitcnt lgkmcnt({4 * (min(n + 2, 11) - n)})")
        mm(n, 0); mm(n, 1)
        if n < 4:
            for l in setup[n*per:(n+1)*per]: a(l)
        if n + 3 < 12: wo_rd(n + 3)
        if n < 8 and not OBM:
            for k in sched[n]: oload(k, V_FBB, 1)
    if OBM != 8: a("s_barrier")
    stamp(8)
    for n in range(12, 16): wo_one(n, 0)
    for n in range(12, 15): wo_one(n, 1)
    for n in range(12, 16):
        chk(n - 8)
        a(f"s_waitcnt lgkmcnt({12 if n == 12 else 2*(15-n) + 8})")
        mm(n, 0)
        if n == 12: wo_one(15, 1)
    for n in range(12, 16):
        a(f"s_waitcnt lgkmcnt({2*(15-n)})")
        mm(n, 1)
    stamp(9)
    a("s_nop 3")
    for nt in range(2):
        if nt: a("s_nop 3")
        for g in range(4):
            a(f"ds_write_b128 {vr(V_T0+g)}, {vr(V_OUT[nt]+4*g,4)} offset:{nt*128}")
    a("""s_waitcnt lgkmcnt(0)
         s_barrier""")
    RR = V_FA
    for k in range(4):
        a(f"ds_read_b128 {vr(RR+8*k,4)}, {vr(A2)} offset:{k*16384}")
        a(f"ds_read_b128 {vr(RR+8*k+4,4)}, {vr(A3)} offset:{k*16384}")
    for k in range(1, 4):
        a(f"s_waitcnt lgkmcnt({2*(3-k)})")
        for i in range(0, 8, 2):
            a(f"v_pk_add_f32 {vr(RR+i,2)}, {vr(RR+i,2)}, {vr(RR+8*k+i,2)}")
    for i in range(4):
        a(f"v_cvt_pk_bf16_f32 {vr(RR+8+i)}, {vr(RR+2*i)}, {vr(RR+2*i+1)}")
    a(f"buffer_store_dwordx4 {vr(RR+8,4)}, {vr(A0)}, {sr(S_OUT,4)}, {sr(S_RDY)} offen " + ["", "nt", "sc0 sc1", "sc1", "sc1 nt"][opts.get("outf", 0)])
    if "dly" in opts:
        stamp(10)
        a(f"""s_cmp_lg_u32 s2, {opts.get('tswg', 100)}
              s_cbranch_scc1 L_end
              s_cmp_lg_u32 {sr(S_WAVE)}, 0
              s_cbranch_scc1 L_end
              s_memrealtime s[98:99]
              s_waitcnt lgkmcnt(0)
              s_sub_u32 {sr(S_T0)}, s100, s74
              s_lshl_b32 {sr(S_T0)}, {sr(S_T0)}, {opts.get('dsh', 2)}
              s_add_u32 {sr(S_T0)}, {sr(S_T0)}, 500
              s_min_u32 {sr(S_T0)}, {sr(S_T0)}, 30000""")
        a.label("L_dly2")
        a(f"""s_memrealtime s[96:97]
              s_waitcnt lgkmcnt(0)
              s_sub_u32 {sr(S_T1)}, s96, s98
              s_cmp_lt_u32 {sr(S_T1)}, {sr(S_T0)}
              s_cbranch_scc1 L_dly2""")
    if ts:
        stamp(10)
        ts_out()
    a.label("L_end")
    a("s_endpgm")

    a.label("L_armr")
    a(f"""s_add_u32 {sr(S_SPIN)}, {sr(S_SPIN)}, 1
          s_cmp_ge_u32 {sr(S_SPIN)}, 100000
          s_cbranch_scc1 L_armk""")
    flag_load(S_INFO)
    a("""s_waitcnt vmcnt(0)
         s_branch L_arm""")
    a.label("L_oar")
    a(f"""s_add_u32 {sr(S_SPIN)}, {sr(S_SPIN)}, 1
          s_cmp_ge_u32 {sr(S_SPIN)}, 100000
          s_cbranch_scc1 L_oak""")
    for k in range(8): oload(k, V_FA, 0)
    a("""s_waitcnt vmcnt(0)
         s_branch L_oa""")
    RM = opts.get("rm", 1)
    for i in range(8):
        f = V_FBB + 4 * i
        a.label(f"L_obr{i}")
        a(f"""s_add_u32 {sr(S_SPIN)}, {sr(S_SPIN)}, 1
              s_cmp_ge_u32 {sr(S_SPIN)}, 100000
              s_cbranch_scc1 L_obk{i}""")
        if RM == 1:
            if opts.get("slp", 0): a(f"s_sleep {opts['slp']}")
            for k in range(i, 8): oload(k, V_FBB, 1)
            a(f"""s_waitcnt vmcnt({7-i})
                  s_branch L_ob{i}""")
        else:
            if opts.get("slp", 0): a(f"s_sleep {opts['slp']}")
            oload(i, V_FBB, 1)
            a(f"""s_waitcnt vmcnt(0)
                  v_max3_u32 {vr(V_FLG)}, {vr(f)}, {vr(f+1)}, {vr(f+2)}
                  v_max_u32 {vr(V_FLG)}, {vr(V_FLG)}, {vr(f+3)}
                  v_cmp_eq_u32 vcc, -1, {vr(V_FLG)}
                  s_cbranch_vccnz L_obr{i}""")
            for k in range(i + 1, 8): oload(k, V_FBB, 1)
            a(f"s_branch L_obk{i}")

    a.label("L_fallback")
    FS = V_S[0]
    a(f"""v_mov_b32 {vr(V_T0)}, 0xff800000
          s_mov_b32 {sr(S_T0)}, {WS_KV}""")
    a.label("L_fb1")
    a(f"""buffer_load_dwordx4 {vr(V_KF,4)}, {vr(V_L16)}, {sr(S_WS,4)}, {sr(S_T0)} offen sc1
          s_waitcnt vmcnt(0)
          v_mfma_f32_32x32x16_bf16 {vr(FS,16)}, {vr(V_KF,4)}, {vr(V_QF,4)}, 0
          s_nop 15""")
    for i in range(8):
        a(f"v_max3_f32 {vr(V_T0)}, {vr(V_T0)}, {vr(FS+2*i)}, {vr(FS+2*i+1)}")
    a(f"""s_add_u32 {sr(S_T0)}, {sr(S_T0)}, 2048
          s_cmp_lt_u32 {sr(S_T0)}, {WS_KV + 131072}
          s_cbranch_scc1 L_fb1
          v_mov_b32 {vr(V_T1)}, {vr(V_T0)}
          s_nop 1
          v_permlane32_swap_b32 {vr(V_T0)}, {vr(V_T1)}
          s_nop 1
          v_max_f32 {vr(V_T0)}, {vr(V_T0)}, {vr(V_T1)}""")
    for i in range(16):
        a(f"v_sub_f32 {vr(V_C+i)}, 0, {vr(V_T0)}")
        a(f"v_mov_b32 {vr(V_O+i)}, 0")
    a(f"""v_and_b32 {vr(V_VA)}, 0x3ff, {vr(V_VA)}
          s_mov_b32 {sr(S_T0)}, {WS_KV}""")
    a.label("L_fb2")
    a(f"""buffer_load_dwordx4 {vr(V_KF,4)}, {vr(V_L16)}, {sr(S_WS,4)}, {sr(S_T0)} offen sc1
          s_mov_b64 exec, {sr(S_VMASK,2)}
          buffer_load_dwordx4 {vr(V_VF[0],4)}, {vr(V_VA)}, {sr(S_WS,4)}, {sr(S_T0)} offen offset:1024 sc1
          buffer_load_dwordx4 {vr(V_VF[0]+4,4)}, {vr(V_VA)}, {sr(S_WS,4)}, {sr(S_T0)} offen offset:1536 sc1
          s_mov_b64 exec, -1
          s_waitcnt vmcnt(0)
          v_mfma_f32_32x32x16_bf16 {vr(FS,16)}, {vr(V_KF,4)}, {vr(V_QF,4)}, {vr(V_C,16)}
          s_nop 15""")
    for i in range(16):
        a(f"v_exp_f32 {vr(FS+i)}, {vr(FS+i)}")
    a(f"""s_nop 1
          v_smfmac_f32_32x32x32_bf16 {vr(V_O,16)}, {vr(V_VF[0],4)}, {vr(FS,8)}, {vr(V_IDX)}
          v_smfmac_f32_32x32x32_bf16 {vr(V_O,16)}, {vr(V_VF[0]+4,4)}, {vr(FS+8,8)}, {vr(V_IDX)}
          s_add_u32 {sr(S_T0)}, {sr(S_T0)}, 2048
          s_cmp_lt_u32 {sr(S_T0)}, {WS_KV + 131072}
          s_cbranch_scc1 L_fb2
          s_nop 15
          v_rcp_f32 {vr(V_T0)}, {vr(V_O+8)}
          s_nop 0
          s_branch L_norm""")

    H_F4, H_FOFF = 148, 152
    S_ROT = S_HEAD
    def rot_setup():
        a(f"""s_and_b32 {sr(S_ROT)}, s2, 7
              s_lshl_b32 {sr(S_ROT)}, {sr(S_ROT)}, 3""")
    def kv_sample():
        a(f"buffer_load_dwordx4 {vr(H_F4,4)}, {vr(H_FOFF)}, {sr(S_WS,4)}, 0 offen offset:{WS_FKV} sc1")
    def kv_spin(lbl, lo_only):
        a(f"s_mov_b32 {sr(S_SPIN)}, 0")
        a.label(lbl + "_loop")
        a(f"""v_cmp_ne_u32 vcc, {vr(H_F4)}, {vr(V_TAG)}
              v_cmp_ne_u32 {sr(S_SAVE,2)}, {vr(H_F4+1)}, {vr(V_TAG)}
              s_or_b64 vcc, vcc, {sr(S_SAVE,2)}
              v_cmp_ne_u32 {sr(S_SAVE,2)}, {vr(H_F4+2)}, {vr(V_TAG)}
              s_or_b64 vcc, vcc, {sr(S_SAVE,2)}
              v_cmp_ne_u32 {sr(S_SAVE,2)}, {vr(H_F4+3)}, {vr(V_TAG)}
              s_or_b64 vcc, vcc, {sr(S_SAVE,2)}""")
        if lo_only:
            a(f"s_and_b32 {sr(S_SAVE)}, vcc_lo, 0xff\ns_cmp_eq_u32 {sr(S_SAVE)}, 0")
        else:
            a("s_cmp_eq_u64 vcc, 0")
        a(f"""s_cbranch_scc1 {lbl}_ok
              s_add_u32 {sr(S_SPIN)}, {sr(S_SPIN)}, 1
              s_cmp_ge_u32 {sr(S_SPIN)}, 100000
              s_cbranch_scc1 {lbl}_ok""")
        if lo_only: a("s_mov_b64 exec, 0xff")
        kv_sample()
        if lo_only: a("s_mov_b64 exec, -1")
        a(f"""s_waitcnt vmcnt(0)
              s_branch {lbl}_loop""")
        a.label(lbl + "_ok")
    def kv_dma(lbl, s0, n):
        a(f"""s_mul_i32 {sr(S_T0)}, {sr(S_RT)}, {n}
              s_add_u32 {sr(S_T0)}, {sr(S_T0)}, {s0}
              s_add_u32 {sr(S_T2)}, {sr(S_T0)}, {n}""")
        a.label(lbl)
        a(f"""s_add_u32 {sr(S_T1)}, {sr(S_T0)}, {sr(S_ROT)}
              s_and_b32 {sr(S_T1)}, {sr(S_T1)}, 63
              s_lshl_b32 {sr(S_T1)}, {sr(S_T1)}, 11
              s_add_u32 {sr(S_T1)}, {sr(S_T1)}, {WS_KV}
              s_lshl_b32 m0, {sr(S_T0)}, 11
              s_waitcnt vmcnt(40)""")
        for k in range(4):
            a(f"buffer_load_dwordx4 {vr(V_L16)}, {sr(S_WS,4)}, {sr(S_T1)} offen offset:{k*1024} sc1 lds")
        a(f"""s_add_u32 m0, m0, 4096
              s_add_u32 {sr(S_T1)}, {sr(S_T1)}, 4096""")
        for k in range(4):
            a(f"buffer_load_dwordx4 {vr(V_L16)}, {sr(S_WS,4)}, {sr(S_T1)} offen offset:{k*1024} sc1 lds")
        a(f"""s_add_u32 {sr(S_T0)}, {sr(S_T0)}, 4
              s_cmp_lt_u32 {sr(S_T0)}, {sr(S_T2)}
              s_cbranch_scc1 {lbl}""")
    def swz64(dst, stride):
        a(f"""v_lshrrev_b32 {vr(V_T0)}, 3, {vr(V_LANE)}
              v_bfe_u32 {vr(V_T1)}, {vr(V_LANE)}, 4, 1
              v_lshlrev_b32 {vr(V_T1)}, 2, {vr(V_T1)}
              v_xor_b32 {vr(V_T1)}, {vr(V_T1)}, {vr(V_LANE)}
              v_and_b32 {vr(V_T1)}, 7, {vr(V_T1)}
              v_lshlrev_b32 {vr(V_T1)}, 4, {vr(V_T1)}
              v_mul_u32_u24 {vr(V_T0)}, {stride}, {vr(V_T0)}
              v_add_u32 {vr(dst)}, {vr(V_T0)}, {vr(V_T1)}""")

    KACC = [24, 40]
    KB = [56, 68]
    KV0, KV1 = 153, 154
    S_KO, S_KM = S_U2, S_U3
    S_KW = S_WOB
    def kv_setup():
        srd(S_KW, 2, 0x180000)
        srd(S_WS, 22, WS_SIZE)
        consts()
        swz64(KV0, 3072)
        a(f"""v_add_u32 {vr(KV1)}, {24576 - 1024}, {vr(KV0)}
              s_sub_u32 {sr(S_AUX)}, {sr(S_WAVE)}, 8
              s_and_b32 {sr(S_RT)}, {sr(S_AUX)}, 1
              s_lshl_b32 {sr(S_KM)}, {sr(S_AUX)}, 13
              s_add_u32 {sr(S_KM)}, {sr(S_KM)}, {L_HI}
              s_lshl_b32 {sr(S_KO)}, {sr(S_HGK)}, 7
              s_cmp_lt_u32 {sr(S_AUX)}, 2
              s_cselect_b32 {sr(S_T1)}, 2, 1
              s_cselect_b32 {sr(S_T2)}, 0, {sr(S_EPS)}
              s_lshl_b32 {sr(S_T1)}, {sr(S_T1)}, 10
              s_add_u32 {sr(S_KO)}, {sr(S_KO)}, {sr(S_T1)}""")
        for i in range(32):
            a(f"v_mov_b32 {vr(KACC[0]+i)}, {sr(S_T2)}")
        xfrag_addr(S_RT)
        a(f"""v_lshlrev_b32 {vr(V_T0)}, 10, {vr(V_T1)}
              v_bfe_u32 {vr(V_T1)}, {vr(V_LANE)}, 2, 2
              v_lshl_add_u32 {vr(V_T0)}, {vr(V_T1)}, 7, {vr(V_T0)}
              v_bfe_u32 {vr(V_T1)}, {vr(V_LANE)}, 3, 1
              v_lshl_add_u32 {vr(V_T0)}, {vr(V_T1)}, 6, {vr(V_T0)}
              v_bfe_u32 {vr(V_T1)}, {vr(V_LANE)}, 4, 1
              v_lshl_add_u32 {vr(V_T0)}, {vr(V_T1)}, 5, {vr(V_T0)}
              v_and_b32 {vr(V_T1)}, 3, {vr(V_LANE)}
              v_lshl_add_u32 {vr(V_T0)}, {vr(V_T1)}, 3, {vr(V_T0)}
              v_add_u32 {vr(V_WOA0)}, {sr(S_KM)}, {vr(V_T0)}
              v_xor_b32 {vr(V_WOA1)}, 64, {vr(V_WOA0)}""")
    def kdma(st):
        a(f"s_add_u32 m0, {sr(S_KM)}, {(st % 4)*2048}")
        if st % 4 == 0:
            a(f"""s_xor_b32 {sr(S_U1)}, {sr(S_J)}, {st//4}
                  s_mul_i32 {sr(S_U1)}, {sr(S_U1)}, 196608
                  s_add_u32 {sr(S_U1)}, {sr(S_U1)}, {sr(S_KO)}""")
        else:
            a(f"s_add_u32 {sr(S_U1)}, {sr(S_U1)}, 49152")
        a.vmem(f"buffer_load_dwordx4 {vr(KV0)}, {sr(S_KW,4)}, {sr(S_U1)} offen lds", f"k{st}")
        a.vmem(f"buffer_load_dwordx4 {vr(KV1)}, {sr(S_KW,4)}, {sr(S_U1)} offen offset:1024 lds", f"k{st}")
    def krd(st):
        b = KB[st % 2]
        a(f"ds_read_b128 {vr(b,4)}, {vr(V_XA0 if st%2==0 else V_XA1)} offset:{(st//2)*4096}")
        for nt in range(2):
            for u in range(2):
                a(f"ds_read_b64_tr_b16 {vr(b+4+4*nt+2*u,2)}, {vr(V_WOA0 if nt==0 else V_WOA1)} offset:{(st%4)*2048 + u*512}")
    def kv_pass(bars, after={}):
        a.vm = []
        for st in range(4): kdma(st)
        for _ in range(bars.get(-1, 0)): a("s_barrier")
        a.wait_vm("k0")
        for _ in range(bars.get(0, 0)): a("s_barrier")
        krd(0)
        for st in range(32):
            if st + 1 < 32:
                if f"k{st+1}" in a.vm: a.wait_vm(f"k{st+1}")
                for _ in range(bars.get(st + 1, 0)): a("s_barrier")
                if st + 1 in after: after[st + 1]()
                krd(st + 1)
            a(f"s_waitcnt lgkmcnt({5 if st + 1 < 32 else 0})")
            b = KB[st % 2]
            for nt in range(2):
                a(f"v_mfma_f32_32x32x16_bf16 {vr(KACC[nt],16)}, {vr(b,4)}, {vr(b+4+4*nt,4)}, {vr(KACC[nt],16)}")
                if nt == (0 if opts.get("ksp", 0) else 1) and st + 4 < 32: kdma(st + 4)
    def foff_setup():
        a(f"""v_add_u32 {vr(H_FOFF)}, {sr(S_ROT)}, {vr(V_LANE)}
              v_and_b32 {vr(H_FOFF)}, 63, {vr(H_FOFF)}
              v_lshlrev_b32 {vr(H_FOFF)}, 4, {vr(H_FOFF)}""")

    TG = 80
    TKA, TVA = 12, 155
    S_TG = S_RDY
    def tg_setup(which):
        a(f"""v_and_b32 {vr(V_T0)}, 15, {vr(V_LANE)}
              v_lshlrev_b32 {vr(V_T0)}, 4, {vr(V_T0)}
              v_bfe_u32 {vr(V_T1)}, {vr(V_LANE)}, 4, 1
              v_lshrrev_b32 {vr(V_T2)}, 5, {vr(V_LANE)}
              v_lshl_add_u32 {vr(TKA)}, {vr(V_T1)}, 9, {vr(V_T0)}
              v_lshl_add_u32 {vr(TKA)}, {vr(V_T2)}, 3, {vr(TKA)}
              v_lshl_add_u32 {vr(TVA)}, {vr(V_T2)}, 8, {vr(V_T0)}
              v_lshl_add_u32 {vr(TVA)}, {vr(V_T1)}, 3, {vr(TVA)}
              s_lshl_b32 {sr(S_TG)}, {sr(S_ROT)}, 12
              s_add_u32 {sr(S_TG)}, {sr(S_TG)}, {WS_KVT + which*16384}""")
    def tg_loads():
        for t in range(4):
            a(f"s_add_u32 {sr(S_T0)}, {sr(S_TG)}, {t*4096}")
            for jb in range(4):
                a(f"buffer_load_dwordx4 {vr(TG+16*t+4*jb,4)}, {vr(V_L16)}, {sr(S_WS,4)}, {sr(S_T0)} offen offset:{jb*1024} sc1")
    def tg_finish(lbl, which):
        a(f"s_mov_b32 {sr(S_SPIN)}, 0")
        a.label(lbl + "_loop")
        a("s_waitcnt vmcnt(0)")
        a(f"v_min3_u32 {vr(V_T0)}, {vr(V_TAG)}, {vr(TG+1)}, {vr(TG+3)}")
        a(f"v_max3_u32 {vr(V_T1)}, {vr(V_TAG)}, {vr(TG+1)}, {vr(TG+3)}")
        for g in range(1, 16):
            a(f"v_min3_u32 {vr(V_T0)}, {vr(V_T0)}, {vr(TG+4*g+1)}, {vr(TG+4*g+3)}")
            a(f"v_max3_u32 {vr(V_T1)}, {vr(V_T1)}, {vr(TG+4*g+1)}, {vr(TG+4*g+3)}")
        a(f"""v_cmp_ne_u32 vcc, {vr(V_T0)}, {vr(V_T1)}
              s_cbranch_vccz {lbl}_ok
              s_add_u32 {sr(S_SPIN)}, {sr(S_SPIN)}, 1
              s_cmp_ge_u32 {sr(S_SPIN)}, 100000
              s_cbranch_scc1 {lbl}_ok""")
        tg_loads()
        a(f"s_branch {lbl}_loop")
        a.label(lbl + "_ok")
        for t in range(4):
            for jb in range(4):
                a(f"v_mov_b32 {vr(TG+16*t+4*jb+1)}, {vr(TG+16*t+4*jb+2)}")
            if t == 3: a("s_waitcnt lgkmcnt(8)")
            for jb in range(4):
                ad = TVA if jb & 1 else TKA
                off = (4 * which + t) * 2048 + ((1024 + (jb >> 1) * 512) if jb & 1 else (jb >> 1) * 256)
                a(f"ds_write_b64 {vr(ad)}, {vr(TG+16*t+4*jb,2)} offset:{off}")
        a("s_waitcnt lgkmcnt(0)")
    C_TG = opts.get("c_tg", 6)

    a.label("L_a0")
    a.vm = []
    HX, HW, HG_, HD, HDG = 16, 48, 80, 144, 112
    H_GWA = 8
    S_JX, S_JM = S_U0, S_U1
    a(f"""s_setprio 3
          s_lshl_b32 {sr(S_T1)}, {sr(S_RGJ)}, 14
          s_add_u32 {sr(S_JX)}, {sr(S_T0)}, {sr(S_T1)}
          s_lshl_b32 {sr(S_T1)}, {sr(S_RGJ)}, 10
          s_add_u32 {sr(S_JM)}, {sr(S_T1)}, {L_X}
          s_mov_b32 {sr(S_WJ+2)}, 16384
          s_mov_b32 {sr(S_WJ+3)}, 0x20000
          s_bitcmp1_b32 {sr(S_HG)}, 0
          s_waitcnt lgkmcnt(0)
          s_mov_b32 {sr(S_X)}, {sr(S_KA+0)}
          s_mov_b32 {sr(S_X+1)}, {sr(S_KA+1)}
          s_cselect_b32 {sr(S_WJ)}, {sr(S_KA+12)}, {sr(S_KA+10)}
          s_cselect_b32 {sr(S_WJ+1)}, {sr(S_KA+13)}, {sr(S_KA+11)}
          s_load_dword {sr(S_TAG)}, {sr(S_KA+22,2)}, {WS_E}""")
    a(f"""s_lshl_b32 {sr(S_U2)}, {sr(S_J)}, 11
          s_lshl_b32 {sr(S_T1)}, {sr(S_J)}, 7
          v_xor_b32 {vr(V_T0)}, {sr(S_T1)}, {vr(V_L16)}""")
    def jload(g):
        for k in range(4):
            kb = 4 * g + k
            a(f"s_add_u32 m0, {sr(S_JM)}, {kb*4096 - (k%2)*64}")
            a(f"s_xor_b32 {sr(S_T1)}, {sr(S_JX)}, {(kb//2)*128}" if k % 2 == 0 else "s_nop 0")
            a.vmem(f"buffer_load_dwordx4 {vr(V_XOFF)}, {sr(S_X,4)}, {sr(S_T1)} offen offset:{(k%2)*64} lds", f"j{g}")
        for k in range(2):
            a(f"s_mov_b32 m0, {L_JW + g*4096 + k*2048}")
            a(f"s_xor_b32 {sr(S_T2)}, {sr(S_U2)}, {g*4096 + k*2048}")
            for q in range(2):
                a.vmem(f"buffer_load_dwordx4 {vr(V_L16)}, {sr(S_WJ,4)}, {sr(S_T2)} offen offset:{q*1024} lds", f"j{g}")
    jload(0)
    srd(S_W, 16, 1024)
    a(f"s_mov_b32 m0, {L_GW}\ns_nop 0")
    a.vmem(f"buffer_load_dwordx4 {vr(V_T0)}, {sr(S_W,4)}, 0 offen lds", "gw")
    jload(1); jload(2); jload(3)
    srd(S_WS, 22, WS_SIZE)
    rot_setup()
    a(f"""v_and_b32 {vr(V_T0)}, 15, {vr(V_LANE)}
          v_lshrrev_b32 {vr(V_T1)}, 4, {vr(V_LANE)}
          v_bfe_u32 {vr(V_T2)}, {vr(V_LANE)}, 2, 2
          v_xor_b32 {vr(V_T2)}, {vr(V_T2)}, {vr(V_T1)}
          v_lshlrev_b32 {vr(V_T2)}, 4, {vr(V_T2)}
          v_lshl_add_u32 {vr(V_T2)}, {vr(V_T0)}, 6, {vr(V_T2)}
          v_add_u32 {vr(V_T2)}, {sr(S_JM)}, {vr(V_T2)}
          v_lshlrev_b32 {vr(V_T3)}, 3, {vr(V_T0)}
          v_lshl_add_u32 {vr(V_T3)}, {vr(V_T1)}, 8, {vr(V_T3)}
          v_lshlrev_b32 {vr(H_GWA)}, 4, {vr(V_T1)}
          v_add_u32 {vr(H_GWA)}, {L_GW}, {vr(H_GWA)}
          v_lshlrev_b32 {vr(13)}, 4, {vr(V_T0)}
          v_and_b32 {vr(14)}, 1, {vr(V_T1)}
          v_lshrrev_b32 {vr(15)}, 1, {vr(V_T1)}
          {f"s_lshl_b32 {sr(S_T0)}, {sr(S_QB)}, 1" if MAP == 48 else f"s_and_b32 {sr(S_T0)}, {sr(S_QB)}, 7"}
          {f"s_lshr_b32 {sr(S_T1)}, {sr(S_RGJ)}, 1" if MAP == 48 else f"s_mov_b32 {sr(S_T1)}, {sr(S_ROT)}"}
          s_add_u32 {sr(S_SEG)}, {sr(S_T0)}, {sr(S_T1)}
          s_lshl_b32 {sr(S_T3)}, {sr(S_SEG)}, 4
          s_and_b32 {sr(S_T0)}, {sr(S_HG)}, 3
          s_lshl_b32 {sr(S_T0)}, {sr(S_T0)}, 2
          s_add_u32 {sr(S_T3)}, {sr(S_T3)}, {sr(S_T0)}
          s_add_u32 {sr(S_T3)}, {sr(S_T3)}, {WS_FKV}""")
    tag_setup()
    if opts.get("lst"): stamp(19)
    vmh = list(a.vm)
    def job(isV):
        a.vm = list(vmh)
        nr = 3 if isV else 4
        for half in range(2):
            a.wait_vm(f"j{2*half}")
            if opts.get("lst"): stamp(20 + 3*half)
            a("s_barrier")
            if opts.get("lst"): stamp(21 + 3*half)
            a.wait_vm(f"j{2*half+1}")
            if opts.get("lst"): stamp(22 + 3*half)
            def rd(k):
                s = 8 * half + k
                a(f"ds_read_b128 {vr(HX+4*k,4)}, {vr(V_T2)} offset:{s*4096}")
                a(f"ds_read_b64_tr_b16 {vr(HW+4*k,2)}, {vr(V_T3)} offset:{L_JW + s*1024}")
                a(f"ds_read_b64_tr_b16 {vr(HW+4*k+2,2)}, {vr(V_T3)} offset:{L_JW + s*1024 + 128}")
                if not isV: a(f"ds_read_b128 {vr(HG_+4*k,4)}, {vr(H_GWA)} offset:{s*64}")
            rd(0); rd(1); rd(2)
            for k in range(8):
                a(f"s_waitcnt lgkmcnt({nr * (min(k + 2, 7) - k)})")
                z = half == 0 and k == 0
                A_, B_ = (HX, HW) if isV else (HW, HX)
                a(f"v_mfma_f32_16x16x32_bf16 {vr(HD,4)}, {vr(A_+4*k,4)}, {vr(B_+4*k,4)}, {'0' if z else vr(HD,4)}")
                if not isV: a(f"v_mfma_f32_16x16x32_bf16 {vr(HDG,4)}, {vr(HG_+4*k,4)}, {vr(HX+4*k,4)}, {'0' if z else vr(HDG,4)}")
                if k + 3 < 8: rd(k + 3)
        a(f"s_and_b32 {sr(S_T1)}, {sr(S_RGJ)}, 1")
        if isV:
            a(f"""v_lshl_add_u32 {vr(13)}, {vr(15)}, 8, {vr(13)}
                  v_lshl_add_u32 {vr(13)}, {vr(14)}, 3, {vr(13)}
                  s_lshl_b32 {sr(S_T1)}, {sr(S_T1)}, 9
                  s_add_u32 {sr(S_T1)}, {sr(S_T1)}, 1024""")
        else:
            a(f"""v_lshl_add_u32 {vr(13)}, {vr(14)}, 9, {vr(13)}
                  v_lshl_add_u32 {vr(13)}, {vr(15)}, 3, {vr(13)}
                  s_lshl_b32 {sr(S_T1)}, {sr(S_T1)}, 8
                  s_lshl_b32 {sr(S_T0)}, {sr(S_QB)}, 2
                  s_add_u32 {sr(S_T0)}, {sr(S_T0)}, {sr(S_RGJ)}
                  s_lshl_b32 {sr(S_T0)}, {sr(S_T0)}, 7
                  s_add_u32 {sr(S_T0)}, {sr(S_T0)}, {WS_G}
                  s_mov_b32 {sr(S_T2)}, {hex(f2u(LOG2E))}
                  v_mul_f32 {vr(HDG)}, {sr(S_T2)}, {vr(HDG)}
                  v_exp_f32 {vr(HDG)}, -{vr(HDG)}
                  s_nop 0
                  v_add_f32 {vr(HDG)}, 1.0, {vr(HDG)}
                  v_rcp_f32 {vr(HDG)}, {vr(HDG)}
                  s_mov_b32 exec_hi, 0
                  buffer_store_dword {vr(HDG)}, {vr(V_L4)}, {sr(S_WS,4)}, {sr(S_T0)} offen sc1
                  s_mov_b32 exec_hi, -1""")
    a(f"""s_bitcmp1_b32 {sr(S_HG)}, 0
          s_cbranch_scc1 L_jobV""")
    job(False)
    a("s_branch L_jobdone")
    a.label("L_jobV")
    job(True)
    a.label("L_jobdone")
    a.vm = []
    a(f"""s_lshl_b32 {sr(S_T0)}, {sr(S_SEG)}, 11
          s_add_u32 {sr(S_T0)}, {sr(S_T0)}, {sr(S_T1)}
          s_add_u32 {sr(S_T0)}, {sr(S_T0)}, {WS_KV}
          s_nop 1
          v_cvt_pk_bf16_f32 {vr(HD+4)}, {vr(HD)}, {vr(HD+1)}
          v_cvt_pk_bf16_f32 {vr(HD+5)}, {vr(HD+2)}, {vr(HD+3)}
          v_mov_b32 {vr(HX)}, {vr(HD+4)}
          v_mov_b32 {vr(HX+1)}, {vr(V_TAG)}
          v_mov_b32 {vr(HX+2)}, {vr(HD+5)}
          v_mov_b32 {vr(HX+3)}, {vr(V_TAG)}
          s_lshl_b32 {sr(S_T1)}, {sr(S_SEG)}, 2
          s_and_b32 {sr(S_T2)}, {sr(S_HG)}, 3
          s_add_u32 {sr(S_T1)}, {sr(S_T1)}, {sr(S_T2)}
          s_lshl_b32 {sr(S_T1)}, {sr(S_T1)}, 10
          s_add_u32 {sr(S_T1)}, {sr(S_T1)}, {WS_KVT}
          buffer_store_dwordx4 {vr(HX,4)}, {vr(V_L16)}, {sr(S_WS,4)}, {sr(S_T1)} offen {"" if opts.get("plaint", 0) else "sc1"}
          v_mov_b32 {vr(14)}, 0
          s_lshl_b32 {sr(S_T1)}, s2, 8
          s_add_u32 {sr(S_T1)}, {sr(S_T1)}, {WS_ACC}
          buffer_store_dwordx2 {vr(HD+4,2)}, {vr(13)}, {sr(S_WS,4)}, {sr(S_T0)} offen sc1
          buffer_store_dword {vr(14)}, {vr(V_L4)}, {sr(S_WS,4)}, {sr(S_T1)} offen sc1""")
    stamp(1)
    C_SIG = opts.get("c_sig", 4)
    for c in range(2, 8):
        a("s_barrier")
        if c == 2: kv_setup()
        if c == 3: tg_setup(0)
        if c == C_SIG:
            a("s_waitcnt vmcnt(0)")
            flag_store(S_T3)
            stamp(2)
        if c == C_TG: tg_loads()
    stamp(3)
    tg_finish("L_tg0", 0)
    stamp(4)
    a("s_barrier")
    a.label("L_kv01")
    kv_pass({opts.get("n1", 8): 1})
    a("s_branch L_kvend")

    a.label("L_a1")
    a.vm = []
    LV = [16, 20]
    SO = [S_U0, S_U1]
    a(f"""s_setprio 3
          v_lshrrev_b32 {vr(V_T0)}, 1, {vr(V_LANE)}
          v_and_b32 {vr(V_T0)}, 3, {vr(V_T0)}
          v_bfe_u32 {vr(V_T1)}, {vr(V_LANE)}, 4, 1
          v_xor_b32 {vr(V_T0)}, {vr(V_T0)}, {vr(V_T1)}
          v_lshlrev_b32 {vr(V_T0)}, 5, {vr(V_T0)}
          v_and_b32 {vr(V_T1)}, 1, {vr(V_LANE)}
          v_lshl_add_u32 {vr(V_T0)}, {vr(V_T1)}, 4, {vr(V_T0)}
          v_lshrrev_b32 {vr(V_T1)}, 3, {vr(V_LANE)}
          v_lshl_add_u32 {vr(LV[0])}, {vr(V_T1)}, 10, {vr(V_T0)}
          v_mul_u32_u24 {vr(V_T1)}, 3072, {vr(V_T1)}
          v_add_u32 {vr(LV[1])}, {vr(V_T1)}, {vr(V_T0)}
          v_xor_b32 {vr(LV[1])}, 64, {vr(LV[1])}""")
    for rg in range(1, 4):
        a(f"""v_add_u32 {vr(LV[0]+rg)}, {rg*(8192-1024)}, {vr(LV[0])}
              v_add_u32 {vr(LV[1]+rg)}, {rg*(24576-1024)}, {vr(LV[1])}""")
    a(f"""s_lshl_b32 {sr(SO[0])}, {sr(S_HG)}, 7
          s_lshl_b32 {sr(SO[1])}, {sr(S_HGQ)}, 7
          s_waitcnt lgkmcnt(0)
          s_load_dword {sr(S_TAG)}, {sr(S_KA+22,2)}, {WS_E}""")
    srd(S_W, 8, 0x80000)
    srd(S_WJ, 2, 0x180000)
    def lw(c):
        a(f"""s_xor_b32 {sr(S_T0)}, {sr(S_J)}, {c}
              s_lshl_b32 {sr(S_T1)}, {sr(S_T0)}, 16
              s_add_u32 {sr(S_T1)}, {sr(S_T1)}, {sr(SO[0])}
              s_mul_i32 {sr(S_T2)}, {sr(S_T0)}, 196608
              s_add_u32 {sr(S_T2)}, {sr(S_T2)}, {sr(SO[1])}""")
        for hf in range(2):
            for m in range(2):
                so = [S_T1, S_T2][m]
                a(f"s_mov_b32 m0, {RSLOT[c % 4] + m*8192 + hf*4096}")
                a("s_nop 0" if hf == 0 else f"s_add_u32 {sr(so)}, {sr(so)}, {32768 if m == 0 else 98304}")
                for rg in range(4):
                    a.vmem(f"buffer_load_dwordx4 {vr(LV[m]+rg)}, {sr(S_W if m == 0 else S_WJ,4)}, {sr(so)} offen offset:{rg*1024} lds", f"w{c}")
    NPRE = opts.get("npre", 2)
    if opts.get("lst"): stamp(18)
    for c in range(NPRE): lw(c)
    if opts.get("lst"): stamp(19)
    kv_setup(); rot_setup(); tg_setup(1)
    tag_setup()
    nxt = NPRE
    for c in range(8):
        a.wait_vm(f"w{c}")
        if opts.get("lst"): stamp(20 + c) if c < 4 else None
        a("s_barrier")
        if opts.get("lst"): stamp(24 + c)
        k = 0
        while nxt <= min(7, c + 3) and k < 2:
            lw(nxt); nxt += 1; k += 1
        if c == max(C_TG, 5):
            tg_loads()
            a.vm += ["tg"] * 16
    tg_finish("L_tg1", 1)
    stamp(4)
    a("""s_barrier
         s_branch L_kv01""")

    a.label("L_a23")
    a.vm = []
    a(f"""s_setprio 3
          s_sub_u32 {sr(S_T1)}, {sr(S_WAVE)}, 8
          s_lshl_b32 {sr(S_T2)}, {sr(S_T1)}, 8
          s_xor_b32 {sr(S_T0)}, {sr(S_T0)}, {sr(S_T2)}
          s_lshl_b32 {sr(S_T1)}, {sr(S_T1)}, 14
          s_add_u32 {sr(S_T1)}, {sr(S_T1)}, {L_X}
          s_waitcnt lgkmcnt(0)
          s_mov_b32 {sr(S_X)}, {sr(S_KA+0)}
          s_mov_b32 {sr(S_X+1)}, {sr(S_KA+1)}
          s_load_dword {sr(S_TAG)}, {sr(S_KA+22,2)}, {WS_E}""")
    tag_setup()
    XB = opts.get("xb", 0)
    for c in range(XB): a("s_barrier")
    for i in range(3):
        a(f"""s_add_u32 {sr(S_T3)}, {sr(S_RGJ)}, {i+1}
              s_and_b32 {sr(S_T3)}, {sr(S_T3)}, 3
              s_lshl_b32 {sr(S_T2)}, {sr(S_T3)}, 10
              s_add_u32 {sr(S_U0)}, {sr(S_T2)}, {sr(S_T1)}
              s_lshl_b32 {sr(S_T2)}, {sr(S_T3)}, 14
              s_add_u32 {sr(S_U1)}, {sr(S_T2)}, {sr(S_T0)}""")
        if i > 0 or XB == 0 or True:
            a("s_barrier")
        for k in range(4):
            a(f"s_add_u32 m0, {sr(S_U0)}, {k*4096 - (k%2)*64}")
            a(f"s_xor_b32 {sr(S_U1)}, {sr(S_U1)}, 128" if k == 2 else "s_nop 0")
            a(f"buffer_load_dwordx4 {vr(V_XOFF)}, {sr(S_X,4)}, {sr(S_U1)} offen offset:{(k%2)*64} lds")
        if i == opts.get("kpf", 1):
            srd(S_WOB, 2, 0x180000)
            a(f"""v_lshrrev_b32 {vr(V_T0)}, 3, {vr(V_LANE)}
                  v_mul_u32_u24 {vr(V_T0)}, 3072, {vr(V_T0)}
                  v_and_b32 {vr(V_T1)}, 7, {vr(V_LANE)}
                  v_lshl_add_u32 {vr(V_T0)}, {vr(V_T1)}, 7, {vr(V_T0)}
                  s_mul_i32 {sr(S_T2)}, s2, 6144
                  s_sub_u32 {sr(S_T3)}, {sr(S_WAVE)}, 9
                  s_lshl_b32 {sr(S_T3)}, {sr(S_T3)}, 10
                  s_add_u32 {sr(S_T2)}, {sr(S_T2)}, {sr(S_T3)}
                  s_mov_b64 exec, 0xffff
                  buffer_load_dword {vr(V_FLG)}, {vr(V_T0)}, {sr(S_WOB,4)}, {sr(S_T2)} offen
                  s_mov_b64 exec, -1""")
    assert XB == 0
    kv_setup(); rot_setup(); foff_setup()
    def stageB():
        kv_sample()
        a("s_waitcnt vmcnt(0)")
        kv_spin("L_skvB", False)
        stamp(5)
        kv_dma("L_kvdB", 8, 12)
        a(f"""s_or_b32 {sr(S_T0)}, s2, {sr(S_RT)}
              s_cmp_lg_u32 {sr(S_T0)}, 0
              s_cbranch_scc1 L_noep
              s_mov_b32 {sr(S_T0)}, {WS_E}""")
        flag_store(S_T0)
        a.label("L_noep")
        a.vm = []
    ES = opts.get("es", 5)
    for c in range(3, ES + 1):
        if c == 4: a("s_waitcnt vmcnt(0)")
        a("s_barrier")
    bars_ = {}
    st = -1
    for c in range(ES + 1, 8):
        bars_[st] = bars_.get(st, 0) + 1
        st = 1 if st < 0 else st + opts.get("esp", 1)
    ne, n2 = opts.get("ne", 6), opts.get("n2", 11)
    assert n2 >= ne + 4
    bars_[ne] = bars_.get(ne, 0) + 1
    bars_[n2] = bars_.get(n2, 0) + 1
    kv_pass(bars_, {ne: stageB})

    a.label("L_kvend")
    stamp(12)
    a(f"""v_add_u32 {vr(V_XA0)}, {sr(S_KM)}, {vr(V_L16)}
          s_nop 8
          s_cmp_lt_u32 {sr(S_AUX)}, 2
          s_cbranch_scc1 L_kcvt""")
    phi(KACC[0], 32, 56)
    a(f"""s_cmp_eq_u32 {sr(S_AUX)}, 2
          s_cselect_b32 {sr(S_WOA)}, {sr(S_KA+4)}, {sr(S_KA+14)}
          s_cselect_b32 {sr(S_WOA+1)}, {sr(S_KA+5)}, {sr(S_KA+15)}
          s_mov_b32 {sr(S_WOA+2)}, 0x80000
          s_mov_b32 {sr(S_WOA+3)}, 0x20000
          v_lshlrev_b32 {vr(V_T0)}, 7, {vr(V_LANE)}
          s_lshl_b32 {sr(S_T0)}, s2, 11
          s_mov_b64 exec, 0xffff
          buffer_load_dword {vr(V_FLG)}, {vr(V_T0)}, {sr(S_WOA,4)}, {sr(S_T0)} offen
          s_mov_b64 exec, -1""")
    a.label("L_kcvt")
    for f in range(4):
        for i in range(4):
            a(f"v_cvt_pk_bf16_f32 {vr(56+4*f+i)}, {vr(KACC[0]+8*f+2*i)}, {vr(KACC[0]+8*f+2*i+1)}")
        a(f"ds_write_b128 {vr(V_XA0)}, {vr(56+4*f,4)} offset:{f*1024}")
    a(f"""v_add_u32 {vr(V_T0)}, {sr(S_KM)}, {vr(V_L4)}
          v_add_u32 {vr(V_T1)}, {L_HI}, {vr(V_L4)}
          s_waitcnt lgkmcnt(0)
          ds_write_b32 {vr(V_T0)}, {vr(V_TAG)} offset:4096
          s_mov_b32 {sr(S_SPIN)}, 0""")
    stamp(13)
    a.label("L_rdv")
    for k in range(4):
        a(f"ds_read_b32 {vr(72+k)}, {vr(V_T1)} offset:{4096 + k*8192}")
    a(f"""s_waitcnt lgkmcnt(0)
          v_min3_u32 {vr(76)}, {vr(72)}, {vr(73)}, {vr(74)}
          v_max3_u32 {vr(77)}, {vr(72)}, {vr(73)}, {vr(74)}
          v_min3_u32 {vr(76)}, {vr(76)}, {vr(75)}, {vr(V_TAG)}
          v_max3_u32 {vr(77)}, {vr(77)}, {vr(75)}, {vr(V_TAG)}
          v_cmp_ne_u32 vcc, {vr(76)}, {vr(77)}
          s_cbranch_vccz L_rdv_ok
          s_sleep 4
          s_add_u32 {sr(S_SPIN)}, {sr(S_SPIN)}, 1
          s_cmp_lt_u32 {sr(S_SPIN)}, 1000000
          s_cbranch_scc1 L_rdv""")
    a.label("L_rdv_ok")
    a(f"""s_cmp_lt_u32 {sr(S_AUX)}, 2
          s_cbranch_scc1 L_a01b""")
    rot_setup()
    kv_dma("L_kvdC", 32, 16)
    a("s_waitcnt vmcnt(0)")
    stamp(14)
    if ts: ts_out()
    a("s_endpgm")

    a.label("L_a01b")
    HV, HK_, HKV, HZ, HON = 56, 72, 16, 32, 52
    a(f"""s_lshl_b32 {sr(S_T0)}, {sr(S_AUX)}, 11
          s_add_u32 {sr(S_T0)}, {sr(S_T0)}, {L_HI}
          v_add_u32 {vr(V_T1)}, {sr(S_T0)}, {vr(V_L16)}""")
    for f in range(4):
        off = (f // 2) * 8192 + (f % 2) * 1024
        a(f"ds_read_b128 {vr(HV+4*f,4)}, {vr(V_T1)} offset:{off}")
        a(f"ds_read_b128 {vr(HK_+4*f,4)}, {vr(V_T1)} offset:{16384 + off}")
    for i in range(4):
        a(f"v_mov_b32 {vr(HON+i)}, {sr(S_ONES)}")
    a(f"""v_bfe_u32 {vr(V_T2)}, {vr(V_LANE)}, 3, 1
          v_lshlrev_b32 {vr(V_T2)}, 11, {vr(V_T2)}
          v_and_b32 {vr(V_T3)}, 3, {vr(V_LANE)}
          v_lshl_add_u32 {vr(V_T2)}, {vr(V_T3)}, 9, {vr(V_T2)}
          v_bfe_u32 {vr(V_T3)}, {vr(V_LANE)}, 4, 1
          v_lshl_add_u32 {vr(V_T2)}, {vr(V_T3)}, 3, {vr(V_T2)}
          v_bfe_u32 {vr(V_T3)}, {vr(V_LANE)}, 2, 1
          v_lshl_add_u32 {vr(V_T2)}, {vr(V_T3)}, 2, {vr(V_T2)}
          s_waitcnt lgkmcnt(0)""")
    for f in range(4):
        a(f"v_mfma_f32_32x32x16_bf16 {vr(HKV,16)}, {vr(HK_+4*f,4)}, {vr(HV+4*f,4)}, {'0' if f==0 else vr(HKV,16)}")
        a(f"v_mfma_f32_32x32x16_bf16 {vr(HZ,16)}, {vr(HON,4)}, {vr(HK_+4*f,4)}, {'0' if f==0 else vr(HZ,16)}")
    a(f"""s_lshl_b32 {sr(S_T0)}, {sr(S_HGK)}, 1
          s_add_u32 {sr(S_T0)}, {sr(S_T0)}, {sr(S_AUX)}
          s_lshl_b32 {sr(S_T0)}, {sr(S_T0)}, 12
          s_add_u32 {sr(S_T0)}, {sr(S_T0)}, {WS_ACC}
          s_nop 7""")
    for r in range(8):
        a(f"v_cndmask_b32 {vr(HKV+r)}, {vr(HKV+8+r)}, {vr(HKV+r)}, {sr(S_VMASK,2)}")
    for r in range(8):
        a(f"buffer_atomic_add_f32 {vr(HKV+r)}, {vr(V_L4)}, {sr(S_WS,4)}, {sr(S_T0)} offen offset:{r*512} sc1")
    a(f"""s_mov_b32 exec_hi, 0
          buffer_atomic_add_f32 {vr(HZ)}, {vr(V_T2)}, {sr(S_WS,4)}, {sr(S_T0)} offen offset:256 sc1
          s_mov_b32 exec_hi, -1
          s_lshl_b32 {sr(S_T3)}, {sr(S_HGK)}, 8
          s_lshl_b32 {sr(S_T0)}, {sr(S_QB)}, 1
          s_add_u32 {sr(S_T0)}, {sr(S_T0)}, {sr(S_AUX)}
          s_lshl_b32 {sr(S_T0)}, {sr(S_T0)}, 2
          s_add_u32 {sr(S_T0)}, {sr(S_T0)}, {sr(S_T3)}
          s_add_u32 {sr(S_T0)}, {sr(S_T0)}, {WS_FA}
          s_lshl_b32 {sr(S_T3)}, {sr(S_HGQ)}, 8
          s_add_u32 {sr(S_T3)}, {sr(S_T3)}, {WS_FA}
          s_waitcnt vmcnt(0)""")
    flag_store(S_T0)
    stamp(15)
    a(f"""s_cmp_eq_u32 {sr(S_AUX)}, 1
          s_cbranch_scc1 L_a1b
          s_barrier
          s_mov_b32 {sr(S_SPIN)}, 0""")
    a.label("L_sfa")
    a(f"""buffer_load_dword {vr(V_FLG)}, {vr(V_L4)}, {sr(S_WS,4)}, {sr(S_T3)} offen sc1
          s_waitcnt vmcnt(0)
          v_cmp_ne_u32 vcc, {vr(V_FLG)}, {vr(V_TAG)}
          s_cbranch_vccz L_sfa_ok
          s_add_u32 {sr(S_SPIN)}, {sr(S_SPIN)}, 1
          s_cmp_lt_u32 {sr(S_SPIN)}, 100000
          s_cbranch_scc1 L_sfa""")
    a.label("L_sfa_ok")
    stamp(16)
    if ts: ts_out()
    a("""s_barrier
         s_endpgm""")

    a.label("L_a1b")
    srd(S_WOA, 4, 0x80000)
    srd(S_WOB, 14, 0x80000)
    omap()
    swz64(V_WOFF, 1024)
    stamp(14)
    a("s_barrier")
    def wodma(lbl, srdw, r0, nrows, dst):
        a(f"""s_lshl_b32 {sr(S_T0)}, {sr(S_NS)}, 7
              s_add_u32 {sr(S_T0)}, {sr(S_T0)}, {r0*1024}
              s_mov_b32 m0, {dst}""")
        a.label(lbl)
        a("s_waitcnt vmcnt(40)")
        for i in range(4):
            a(f"buffer_load_dwordx4 {vr(V_WOFF)}, {sr(srdw,4)}, {sr(S_T0)} offen lds")
            a(f"""s_add_u32 m0, m0, 1024
                  s_add_u32 {sr(S_T0)}, {sr(S_T0)}, 8192""")
        a(f"""s_cmp_lt_u32 m0, {dst + nrows*128}
              s_cbranch_scc1 {lbl}""")
    wodma("L_woa", S_WOA, 0, 512, 0)
    stamp(15)
    a("s_barrier")
    wodma("L_wob0", S_WOB, 0, 256, L_HI)
    a("s_waitcnt vmcnt(0)")
    stamp(16)
    a("s_barrier")
    wodma("L_wob1", S_WOB, 256, 256, 65536)
    a("s_waitcnt vmcnt(0)")
    if ts:
        stamp(17)
        ts_out()
    a("s_endpgm")

    head = open("cdna_kernels/" + NAME + ".s.ref").read().split("\n")
    hdr = [l for l in head if l.startswith(";") and "@launch" not in l and "Override" not in l and "grid=ceil" not in l]
    out = "\n".join(hdr) + f"\n; @launch grid=(256,1,1) block=({NWAVE*64},1,1) lds={LDS_SIZE}\n"
    out += f""".amdgcn_target "amdgcn-amd-amdhsa--gfx950"
.text
.globl {NAME}_kernel
.p2align 8
.type {NAME}_kernel,@function
"""
    out += a.text()
    out += f""".section .rodata,"a"
.p2align 6
.amdhsa_kernel {NAME}_kernel
  .amdhsa_next_free_vgpr {NVGPR}
  .amdhsa_next_free_sgpr 102
  .amdhsa_accum_offset {NVGPR}
  .amdhsa_group_segment_fixed_size 0
  .amdhsa_kernarg_size 96
  .amdhsa_user_sgpr_count 2
  .amdhsa_user_sgpr_kernarg_segment_ptr 1
  .amdhsa_system_sgpr_workgroup_id_x 1
.end_amdhsa_kernel
"""
    return out

if __name__ == "__main__":
    opts = {}
    outp = "cdna_kernels/" + NAME + ".s"
    for arg in sys.argv[1:]:
        if arg.startswith("-o"):
            outp = arg[2:]
        elif "=" in arg:
            k, v = arg.split("=")
            opts[k] = int(v)
        else:
            opts[arg] = True
    open(outp, "w").write(gen(opts))
    print("wrote", outp)
```

```python
import sys, math, struct

NAME = "gated_mix__linear_attn_block__grouped_kv_mqa__prompt"

def f2u(x):
    return struct.unpack("<I", struct.pack("<f", x))[0]

class Asm:
    def __init__(self):
        self.lines = []
        self.vm = []
    def __call__(self, s):
        for l in s.split("\n"):
            l = l.strip()
            if l:
                self.lines.append("    " + l)
    def label(self, l):
        self.lines.append(l + ":")
    def vmem(self, s, tag):
        self(s)
        self.vm.append(tag)
        assert len(self.vm) <= 63
    def vm_n(self, tag):
        idx = max(i for i, t in enumerate(self.vm) if t == tag)
        return len(self.vm) - 1 - idx
    def drop_to(self, n):
        self.vm = self.vm[len(self.vm) - n:] if n else []
    def wait_vm(self, tag, extra=""):
        n = 0 if tag is None else self.vm_n(tag)
        self.drop_to(n)
        self(f"s_waitcnt vmcnt({n}) {extra}".strip())
    def text(self):
        return "\n".join(self.lines) + "\n"

def vr(a, n=1):
    return f"v{a}" if n == 1 else f"v[{a}:{a+n-1}]"
def sr(a, n=1):
    return f"s{a}" if n == 1 else f"s[{a}:{a+n-1}]"

WS_E = 0x000000
WS_FKV = 0x000400
WS_FA = 0x001000
WS_FO = 0x004000
WS_G = 0x014000
WS_KV = 0x020000
WS_ACC = 0x040000
WS_KVT = 0x080000
WS_OA = 0x200000
WS_OB = 0x208000
WS_DBG1 = 0x600000
WS_DBG2 = 0x800000
WS_TS = 0xA00000
WS_SIZE = 0x1000000
L_JW = 0
L_X = 65536
L_HI = 131072
L_GW = L_HI + 16384
RSLOT = [16384, 32768, 49152, L_HI]
LDS_SIZE = 163840
LOG2E = 1.4426950408889634
QSCALE = 0.25 * LOG2E
NVGPR = 168
NWAVE = 12

S_HGQ, S_TAG, S_QO, S_NS, S_RDY = 3, 4, 5, 6, 7
S_X, S_W, S_WJ = 8, 12, 16
S_EPS, S_ONES, S_RGJ, S_HGK = 20, 21, 22, 23
S_XMASK, S_HEADA, S_AUX = 24, 26, 27
S_WOA, S_WOB, S_OUT, S_DBG, S_WS = 28, 32, 36, 40, 44
S_WAVE, S_QB, S_HG, S_RT, S_HH = 48, 49, 50, 51, 52
S_T0, S_T1, S_T2, S_T3 = 53, 54, 55, 56
S_U0, S_U1, S_U2, S_U3 = 57, 58, 59, 60
S_SEG, S_SPIN, S_HEAD = 61, 62, 63
S_VMASK, S_RT32, S_RO32, S_SAVE = 64, 66, 67, 40
S_LOG2E, S_QS = 70, 72
S_TS = 74
S_J = 69
S_XCC, S_FAST = 18, 19
S_KA = 76

def gen(opts):
    ts = opts.get("ts", False)
    dbg = opts.get("dbg", False)
    a = Asm()
    V_STAMP = NVGPR - 1

    def stamp(i):
        if "dly" in opts:
            if i == opts.get("dly0", 0): a("s_memrealtime s[74:75]")
            if i == opts["dly"]: a("s_memrealtime s[100:101]")
        if not ts: return
        a(f"""s_memrealtime {sr(S_TS,2)}
              s_memtime s[100:101]
              s_waitcnt lgkmcnt(0)
              v_writelane_b32 v{V_STAMP}, {sr(S_TS)}, {i}
              v_writelane_b32 v{V_STAMP}, s100, {32+i}""")

    V_LANE = 1
    V_T0, V_T1, V_T2, V_T3 = 2, 3, 4, 5
    V_XOFF, V_WOFF = 6, 7
    V_XA0, V_XA1, V_WA = 8, 9, 10
    V_L16, V_G, V_IDX, V_KA, V_VA = 11, 12, 13, 14, 15
    V_QF, V_PQ = 16, 20
    V_ACCQ = 24
    V_FB = [40, 72]
    V_O, V_C, V_KF = 104, 120, 136
    V_VF = [140, 148]
    V_L4, V_FLG, V_TAG, V_WOA0, V_WOA1, V_WA3 = 156, 157, 158, 159, 160, 161
    V_PK = 162
    V_S = [24, 40]
    V_AC, V_OA = 56, 72
    V_FA, V_FBB, V_WO = 56, 120, 88
    V_OUT = [24, 40]

    def srd(s, ka, size):
        a(f"""s_mov_b32 {sr(s)}, {sr(S_KA+ka)}
              s_mov_b32 {sr(s+1)}, {sr(S_KA+ka+1)}
              s_mov_b32 {sr(s+2)}, {hex(size)}
              s_mov_b32 {sr(s+3)}, 0x20000""")
    def flag_store(soff):
        a(f"""s_mov_b64 exec, 1
              buffer_store_dword {vr(V_TAG)}, {vr(V_L4)}, {sr(S_WS,4)}, {sr(soff)} offen sc1
              s_mov_b64 exec, -1""")
    def flag_load(soff):
        a(f"""s_mov_b32 exec_hi, 0
              buffer_load_dword {vr(V_FLG)}, {vr(V_L4)}, {sr(S_WS,4)}, {sr(soff)} offen sc1
              s_mov_b32 exec_hi, -1""")
    def flag_spin(lbl, soff):
        a(f"s_mov_b32 {sr(S_SPIN)}, 0")
        a.label(lbl + "_loop")
        a(f"""v_cmp_ne_u32 vcc, {vr(V_FLG)}, {vr(V_TAG)}
              s_cmp_eq_u32 vcc_lo, 0
              s_cbranch_scc1 {lbl}_ok
              s_add_u32 {sr(S_SPIN)}, {sr(S_SPIN)}, 1
              s_cmp_ge_u32 {sr(S_SPIN)}, 100000
              s_cbranch_scc1 {lbl}_ok""")
        flag_load(soff)
        a(f"""s_waitcnt vmcnt(0)
              s_branch {lbl}_loop""")
        a.label(lbl + "_ok")
    def arm_spin(lbl, soff):
        a(f"s_mov_b32 {sr(S_SPIN)}, 0")
        a.label(lbl + "_loop")
        a(f"""v_sub_u32 {vr(V_FLG)}, {vr(V_FLG)}, {vr(V_TAG)}
              v_cmp_lt_u32 vcc, 15, {vr(V_FLG)}
              s_cmp_eq_u32 vcc_lo, 0
              s_cbranch_scc1 {lbl}_ok
              s_add_u32 {sr(S_SPIN)}, {sr(S_SPIN)}, 1
              s_cmp_ge_u32 {sr(S_SPIN)}, 100000
              s_cbranch_scc1 {lbl}_ok""")
        flag_load(soff)
        a(f"""s_waitcnt vmcnt(0)
              s_branch {lbl}_loop""")
        a.label(lbl + "_ok")
    def tag_setup():
        a(f"""s_waitcnt lgkmcnt(0)
              s_mul_i32 {sr(S_TAG)}, {sr(S_TAG)}, 0x9e3779b1
              s_add_u32 {sr(S_TAG)}, {sr(S_TAG)}, 0x7f4a7c15
              v_mov_b32 {vr(V_TAG)}, {sr(S_TAG)}""")
    def omap():
        a(f"""s_and_b32 {sr(S_QO)}, s2, 7
              s_lshl_b32 {sr(S_QO)}, {sr(S_QO)}, 2
              s_bfe_u32 {sr(S_T1)}, s2, 0x20003
              s_add_u32 {sr(S_QO)}, {sr(S_QO)}, {sr(S_T1)}
              s_lshr_b32 {sr(S_NS)}, s2, 5""")
    def ts_out():
        a(f"""s_mul_i32 {sr(S_T0)}, s2, {NWAVE}
              s_add_u32 {sr(S_T0)}, {sr(S_T0)}, {sr(S_WAVE)}
              s_lshl_b32 {sr(S_T0)}, {sr(S_T0)}, 8
              s_add_u32 {sr(S_T0)}, {sr(S_T0)}, {WS_TS}
              buffer_store_dword v{V_STAMP}, {vr(V_L4)}, {sr(S_WS,4)}, {sr(S_T0)} offen""")
    def phi(src, n, tmp):
        for i in range(0, n, 2):
            a(f"v_pk_mul_f32 {vr(tmp+i,2)}, {sr(S_LOG2E,2)}, {vr(src+i,2)}")
        for i in range(n):
            a(f"v_exp_f32 {vr(tmp+i)}, {vr(tmp+i)} clamp")
        for i in range(n):
            a(f"v_max_f32 {vr(src+i)}, {sr(S_EPS)}, {vr(src+i)}")
        for i in range(0, n, 2):
            a(f"v_pk_add_f32 {vr(src+i,2)}, {vr(src+i,2)}, {vr(tmp+i,2)}")

    MAP = opts.get("map", 48)
    a.label(f"{NAME}_kernel")
    a(f"""s_cmp_ge_u32 s2, 256
          s_cbranch_scc1 L_end
          s_load_dwordx16 {sr(S_KA,16)}, s[0:1], 0
          s_load_dwordx8 {sr(S_KA+16,8)}, s[0:1], 64
          v_and_b32 {vr(V_LANE)}, 63, v0
          v_lshrrev_b32 {vr(V_T0)}, 6, v0
          s_and_b32 {sr(S_T0)}, s2, {7 if MAP == 48 else 1}
          v_readfirstlane_b32 {sr(S_WAVE)}, {vr(V_T0)}
          s_lshl_b32 {sr(S_T0)}, {sr(S_T0)}, 2
          s_bfe_u32 {sr(S_T1)}, s2, 0x20003
          s_add_u32 {sr(S_QB if MAP == 48 else S_HG)}, {sr(S_T0)}, {sr(S_T1)}
          s_sub_u32 {sr(S_WAVE)}, {sr(S_WAVE)}, 4
          s_cselect_b32 {sr(S_T1)}, 12, 0
          s_add_u32 {sr(S_WAVE)}, {sr(S_WAVE)}, {sr(S_T1)}
          s_lshr_b32 {sr(S_HG if MAP == 48 else S_QB)}, s2, 5
          {"" if MAP == 48 else f"s_and_b32 {sr(S_T1)}, s2, 6"}
          {"" if MAP == 48 else f"s_lshl_b32 {sr(S_T1)}, {sr(S_T1)}, 2"}
          {"" if MAP == 48 else f"s_add_u32 {sr(S_QB)}, {sr(S_QB)}, {sr(S_T1)}"}
          s_lshr_b32 {sr(S_RGJ)}, {sr(S_HG)}, 1
          s_xor_b32 {sr(S_HGQ)}, {sr(S_HG)}, 1
          s_xor_b32 {sr(S_HGK)}, {sr(S_HG)}, 2""")
    stamp(0)
    a(f"""v_lshrrev_b32 {vr(V_T0)}, 4, {vr(V_LANE)}
          v_xor_b32 {vr(V_T0)}, {vr(V_T0)}, {vr(V_LANE)}
          v_and_b32 {vr(V_T0)}, 3, {vr(V_T0)}
          v_lshlrev_b32 {vr(V_T0)}, 4, {vr(V_T0)}
          v_lshrrev_b32 {vr(V_T1)}, 2, {vr(V_LANE)}
          v_lshl_add_u32 {vr(V_XOFF)}, {vr(V_T1)}, 10, {vr(V_T0)}
          v_lshlrev_b32 {vr(V_L16)}, 4, {vr(V_LANE)}
          v_lshlrev_b32 {vr(V_L4)}, 2, {vr(V_LANE)}
          s_mov_b32 {sr(S_X+2)}, 0x200000
          s_mov_b32 {sr(S_X+3)}, 0x20000
          s_and_b32 {sr(S_J)}, s2, {opts.get("jmask", 7)}
          s_lshl_b32 {sr(S_T0)}, {sr(S_QB)}, 16
          s_lshl_b32 {sr(S_T1)}, {sr(S_J)}, 7
          s_or_b32 {sr(S_T0)}, {sr(S_T0)}, {sr(S_T1)}
          s_cmp_eq_u32 {sr(S_WAVE)}, 8
          s_cbranch_scc1 L_a0
          s_cmp_eq_u32 {sr(S_WAVE)}, 9
          s_cbranch_scc1 L_a1
          s_cmp_ge_u32 {sr(S_WAVE)}, 10
          s_cbranch_scc1 L_a23
          s_and_b32 {sr(S_RT)}, {sr(S_WAVE)}, 1
          s_lshr_b32 {sr(S_HH)}, {sr(S_WAVE)}, 1""")
    if opts.get("cpf", 0):
        W_ = opts["cpf"]
        a(f"s_getpc_b64 {sr(S_SAVE,2)}")
        a.label("L_pc")
        if W_ == 1:
            a(f"""s_lshr_b32 {sr(S_T2)}, s2, 3
                  s_lshl_b32 {sr(S_T2)}, {sr(S_T2)}, 10
                  s_cmp_eq_u32 {sr(S_WAVE)}, 0
                  s_cselect_b64 {sr(S_XMASK,2)}, 0xff, 1""")
        else:
            a(f"""s_lshl_b32 {sr(S_T2)}, {sr(S_WAVE)}, 12
                  s_bfe_u32 {sr(S_T1)}, s2, 0x20003
                  s_lshl_b32 {sr(S_T1)}, {sr(S_T1)}, 10
                  s_add_u32 {sr(S_T2)}, {sr(S_T2)}, {sr(S_T1)}
                  s_mov_b64 {sr(S_XMASK,2)}, 0xff""")
        a(f"""v_lshlrev_b32 {vr(V_T2)}, 7, {vr(V_LANE)}
              v_add_u32 {vr(V_T2)}, {sr(S_T2)}, {vr(V_T2)}
              v_min_u32 {vr(V_T2)}, L_codeend - L_pc - 4, {vr(V_T2)}
              s_mov_b64 exec, {sr(S_XMASK,2)}""")
        a.vmem(f"global_load_dword {vr(V_FLG)}, {vr(V_T2)}, {sr(S_SAVE,2)}", "cpf")
        a("s_mov_b64 exec, -1")
    S_XOFF, S_XM0 = S_U0, S_U1
    a(f"""s_and_b32 {sr(S_T1)}, {sr(S_WAVE)}, 3
          s_lshr_b32 {sr(S_T2)}, {sr(S_WAVE)}, 2
          s_lshl_b32 {sr(S_T3)}, {sr(S_T1)}, 14
          s_add_u32 {sr(S_XOFF)}, {sr(S_T0)}, {sr(S_T3)}
          s_lshl_b32 {sr(S_T3)}, {sr(S_T2)}, 7
          s_xor_b32 {sr(S_XOFF)}, {sr(S_XOFF)}, {sr(S_T3)}
          s_lshl_b32 {sr(S_XM0)}, {sr(S_T1)}, 10
          s_lshl_b32 {sr(S_T3)}, {sr(S_T2)}, 13
          s_add_u32 {sr(S_XM0)}, {sr(S_XM0)}, {sr(S_T3)}
          s_cmp_eq_u32 {sr(S_T1)}, {sr(S_RGJ)}
          s_cselect_b64 {sr(S_XMASK,2)}, 1, -1""")
    a(f"""v_lshrrev_b32 {vr(V_T0)}, 3, {vr(V_LANE)}
          v_and_b32 {vr(V_T3)}, 7, {vr(V_LANE)}
          v_lshlrev_b32 {vr(V_T3)}, 7, {vr(V_T3)}
          v_lshl_add_u32 {vr(V_T2)}, {vr(V_T0)}, 10, {vr(V_T3)}
          v_mul_u32_u24 {vr(V_T0)}, 3072, {vr(V_T0)}
          v_add_u32 {vr(V_T0)}, {vr(V_T0)}, {vr(V_T3)}
          s_xor_b32 {sr(S_T2)}, {sr(S_WAVE)}, {sr(S_J)}
          s_lshl_b32 {sr(S_T2)}, {sr(S_T2)}, 5
          s_lshr_b32 {sr(S_T3)}, s2, 3
          s_add_u32 {sr(S_T2)}, {sr(S_T2)}, {sr(S_T3)}
          s_lshl_b32 {sr(S_U2)}, {sr(S_T2)}, 11
          s_mul_i32 {sr(S_U3)}, {sr(S_T2)}, 6144
          s_lshl_b32 {sr(S_T3)}, {sr(S_HG)}, 13
          s_lshl_b32 {sr(S_RDY)}, {sr(S_WAVE)}, 10
          s_add_u32 {sr(S_T3)}, {sr(S_T3)}, {sr(S_RDY)}
          s_lshl_b32 {sr(S_RDY)}, {sr(S_QB)}, 16
          s_add_u32 {sr(S_T3)}, {sr(S_T3)}, {sr(S_RDY)}
          s_waitcnt lgkmcnt(0)
          s_mov_b32 {sr(S_X)}, {sr(S_KA+0)}
          s_mov_b32 {sr(S_X+1)}, {sr(S_KA+1)}
          s_load_dword {sr(S_TAG)}, {sr(S_KA+22,2)}, {WS_E}""")
    def xdma(r):
        a(f"s_xor_b32 {sr(S_T1)}, {sr(S_XOFF)}, {r*256}")
        a(f"s_add_u32 m0, {sr(S_XM0)}, {L_X + r*16384}")
        a(f"s_mov_b64 exec, {sr(S_XMASK,2)}")
        a.vmem(f"buffer_load_dwordx4 {vr(V_XOFF)}, {sr(S_X,4)}, {sr(S_T1)} offen lds", f"x{r}")
        a(f"s_add_u32 m0, {sr(S_XM0)}, {L_X + r*16384 + 4096 - 64}")
        a("s_nop 0")
        a.vmem(f"buffer_load_dwordx4 {vr(V_XOFF)}, {sr(S_X,4)}, {sr(S_T1)} offen offset:64 lds", f"x{r}")
        a("s_mov_b64 exec, -1")
    PF = opts.get("pf", 0)
    if not PF & 4: xdma(0)
    if PF & 1:
        a("s_mov_b64 exec, 0xff")
        a.vmem(f"buffer_load_dword {vr(V_FLG)}, {vr(V_T3)}, {sr(S_X,4)}, {sr(S_T3)} offen", "pf")
        a("s_mov_b64 exec, -1")
    if PF & 2:
        srd(S_W, 8, 0x80000)
        srd(S_WOB, 2, 0x180000)
        a(f"""s_lshl_b32 {sr(S_U2)}, s2, 11
              s_mul_i32 {sr(S_U3)}, s2, 6144
              s_cmp_eq_u32 {sr(S_WAVE)}, 0
              s_cselect_b64 exec, 0xffff, 1""")
        a.vmem(f"buffer_load_dword {vr(V_FLG)}, {vr(V_T2)}, {sr(S_W,4)}, {sr(S_U2)} offen", "pf")
        a.vmem(f"buffer_load_dword {vr(V_FLG)}, {vr(V_T0)}, {sr(S_WOB,4)}, {sr(S_U3)} offen", "pf")
        a("s_mov_b64 exec, -1")
    if PF & 4: xdma(0)
    srd(S_WS, 22, WS_SIZE)
    srd(S_OUT, 18, 0x200000)
    omap()
    a(f"""v_lshlrev_b32 {vr(V_T2)}, 15, {vr(V_LANE)}
          s_lshl_b32 {sr(S_T1)}, {sr(S_QB)}, 17
          s_lshl_b32 {sr(S_T2)}, {sr(S_QO)}, 17
          s_cmp_eq_u32 {sr(S_WAVE)}, 1
          s_cselect_b32 {sr(S_T1)}, {sr(S_T1)}, {sr(S_T2)}
          s_add_u32 {sr(S_T1)}, {sr(S_T1)}, {WS_OA}
          s_cmp_eq_u32 {sr(S_WAVE)}, 0
          s_cselect_b32 {sr(S_T1)}, 0x380, {sr(S_T1)}
          s_cselect_b32 exec_lo, 0xffffff, 15
          s_mov_b32 exec_hi, 0
          s_cmp_ge_u32 {sr(S_WAVE)}, 3
          s_cbranch_scc1 L_tlb1
          buffer_load_dword {vr(V_FLG)}, {vr(V_T2)}, {sr(S_WS,4)}, {sr(S_T1)} offen sc1
          s_branch L_tlb2""")
    a.label("L_tlb1")
    a(f"""s_lshl_b32 {sr(S_T1)}, {sr(S_QO)}, 16
          s_mov_b32 exec_lo, 3
          buffer_load_dword {vr(V_FLG)}, {vr(V_T2)}, {sr(S_OUT,4)}, {sr(S_T1)} offen""")
    a.label("L_tlb2")
    a("s_mov_b64 exec, -1")
    a.vm.append("tlb")
    xdma(1)
    def consts():
        a(f"""s_mov_b32 {sr(S_VMASK)}, 0xffff
              s_mov_b32 {sr(S_VMASK+1)}, 0xffff
              s_mov_b32 {sr(S_LOG2E)}, {hex(f2u(LOG2E))}
              s_mov_b32 {sr(S_LOG2E+1)}, {hex(f2u(LOG2E))}
              s_mov_b32 {sr(S_EPS)}, {hex(f2u(1e-6))}
              s_mov_b32 {sr(S_ONES)}, 0x3f803f80""")
    def xfrag_addr(rt_s):
        a(f"""v_and_b32 {vr(V_T0)}, 31, {vr(V_LANE)}
              v_lshrrev_b32 {vr(V_T1)}, 5, {vr(V_LANE)}
              v_bfe_u32 {vr(V_T2)}, {vr(V_LANE)}, 2, 2
              v_xor_b32 {vr(V_T2)}, {vr(V_T2)}, {vr(V_T1)}
              v_lshlrev_b32 {vr(V_T2)}, 4, {vr(V_T2)}
              v_lshl_add_u32 {vr(V_T3)}, {vr(V_T0)}, 6, {vr(V_T2)}
              s_lshl_b32 {sr(S_T0)}, {sr(rt_s)}, 11
              s_add_u32 {sr(S_T0)}, {sr(S_T0)}, {L_X}
              v_add_u32 {vr(V_XA0)}, {sr(S_T0)}, {vr(V_T3)}
              v_xor_b32 {vr(V_XA1)}, 32, {vr(V_XA0)}""")
    consts()
    a(f"""s_lshl_b32 {sr(S_HEAD)}, {sr(S_HG)}, 2
          s_add_u32 {sr(S_HEAD)}, {sr(S_HEAD)}, {sr(S_HH)}
          s_lshl_b32 {sr(S_HEADA)}, {sr(S_HGQ)}, 2
          s_add_u32 {sr(S_HEADA)}, {sr(S_HEADA)}, {sr(S_HH)}
          s_lshl_b32 {sr(S_RT32)}, {sr(S_QB)}, 1
          s_add_u32 {sr(S_RT32)}, {sr(S_RT32)}, {sr(S_RT)}
          s_lshl_b32 {sr(S_RO32)}, {sr(S_QO)}, 1
          s_add_u32 {sr(S_RO32)}, {sr(S_RO32)}, {sr(S_RT)}
          s_mov_b32 {sr(S_QS)}, {hex(f2u(QSCALE))}
          s_mov_b32 {sr(S_QS+1)}, {hex(f2u(QSCALE))}""")
    xfrag_addr(S_RT)
    a(f"""v_bfe_u32 {vr(V_T0)}, {vr(V_LANE)}, 4, 1
          v_bfe_u32 {vr(V_T2)}, {vr(V_LANE)}, 3, 2
          v_xor_b32 {vr(V_T2)}, {sr(S_HH)}, {vr(V_T2)}
          v_lshlrev_b32 {vr(V_T2)}, 5, {vr(V_T2)}
          v_lshl_add_u32 {vr(V_T2)}, {vr(V_T0)}, 13, {vr(V_T2)}
          v_lshl_add_u32 {vr(V_T2)}, {vr(V_T1)}, 10, {vr(V_T2)}
          v_bfe_u32 {vr(V_T0)}, {vr(V_LANE)}, 2, 2
          v_lshl_add_u32 {vr(V_T2)}, {vr(V_T0)}, 7, {vr(V_T2)}
          v_and_b32 {vr(V_T0)}, 3, {vr(V_LANE)}
          v_lshl_add_u32 {vr(V_WA)}, {vr(V_T0)}, 3, {vr(V_T2)}
          v_add_u32 {vr(V_WA3)}, {L_HI}, {vr(V_WA)}""")
    for i in range(8):
        a(f"v_mov_b32 {vr(V_ACCQ+i)}, 0")
        a(f"v_mov_b32 {vr(V_ACCQ+8+i)}, {sr(S_EPS)}")
    a(f"""v_mov_b32 {vr(V_T0)}, {sr(S_ONES)}
          s_mov_b32 {sr(S_SAVE)}, 0x110000
          s_mov_b32 {sr(S_SAVE+1)}, 0x110000
          v_cndmask_b32 {vr(V_T0)}, 0, {vr(V_T0)}, {sr(S_SAVE,2)}""")
    for i in range(16):
        a(f"v_mov_b32 {vr(V_O+i)}, 0")
        a(f"v_mov_b32 {vr(V_VF[0]+i)}, {vr(V_T0)}")
    a(f"""v_mov_b32 {vr(V_IDX)}, 0xdddd
          v_mov_b32 {vr(V_KA)}, {vr(V_L16)}
          v_and_b32 {vr(V_T3)}, 15, {vr(V_LANE)}
          v_lshlrev_b32 {vr(V_T3)}, 4, {vr(V_T3)}
          v_lshl_add_u32 {vr(V_VA)}, {vr(V_T1)}, 8, {vr(V_T3)}""")
    V_GA, V_ACA, V_ARM = V_WOFF, 166, 0
    S_GOFF, S_MYFO, S_INFO, S_ACC = 28, 29, 30, 31
    def ooff(dst, base):
        a(f"""s_lshl_b32 {sr(dst)}, {sr(S_RT32)}, 6
              s_add_u32 {sr(dst)}, {sr(dst)}, {sr(S_HEADA if base == WS_OA else S_HEAD)}
              s_lshl_b32 {sr(dst)}, {sr(dst)}, 10
              s_add_u32 {sr(dst)}, {sr(dst)}, {base}""")
    ooff(S_RDY, WS_OB)
    ooff(S_AUX, WS_OA)
    a(f"""v_and_b32 {vr(V_T0)}, 0x3c, {vr(V_L4)}
          v_bfe_u32 {vr(V_T1)}, {vr(V_LANE)}, 4, 1
          v_lshl_add_u32 {vr(V_GA)}, {vr(V_T1)}, 7, {vr(V_T0)}
          s_lshl_b32 {sr(S_GOFF)}, {sr(S_RT32)}, 8
          s_add_u32 {sr(S_GOFF)}, {sr(S_GOFF)}, {WS_G}
          v_mov_b32 {vr(V_PK)}, -1
          v_mov_b32 {vr(V_PK+1)}, -1
          v_mov_b32 {vr(V_PK+2)}, -1
          v_mov_b32 {vr(V_PK+3)}, -1
          s_lshl_b32 {sr(S_MYFO)}, {sr(S_RT32)}, 5
          s_add_u32 {sr(S_MYFO)}, {sr(S_MYFO)}, {sr(S_HEAD)}
          s_lshl_b32 {sr(S_MYFO)}, {sr(S_MYFO)}, 2
          s_add_u32 {sr(S_MYFO)}, {sr(S_MYFO)}, {WS_FO}
          v_lshrrev_b32 {vr(V_T0)}, 5, {vr(V_LANE)}
          v_lshlrev_b32 {vr(V_T0)}, 9, {vr(V_T0)}
          v_bfe_u32 {vr(V_T1)}, {vr(V_LANE)}, 2, 2
          v_lshl_add_u32 {vr(V_T0)}, {vr(V_T1)}, 7, {vr(V_T0)}
          v_bfe_u32 {vr(V_T1)}, {vr(V_LANE)}, 3, 1
          v_lshl_add_u32 {vr(V_T0)}, {vr(V_T1)}, 6, {vr(V_T0)}
          v_bfe_u32 {vr(V_T1)}, {vr(V_LANE)}, 4, 1
          v_lshl_add_u32 {vr(V_T0)}, {vr(V_T1)}, 5, {vr(V_T0)}
          v_and_b32 {vr(V_T1)}, 3, {vr(V_LANE)}
          v_lshl_add_u32 {vr(V_T0)}, {vr(V_T1)}, 3, {vr(V_T0)}
          s_lshl_b32 {sr(S_T0)}, {sr(S_HH)}, 14
          v_add_u32 {vr(V_WOA0)}, {sr(S_T0)}, {vr(V_T0)}
          v_xor_b32 {vr(V_WOA1)}, 64, {vr(V_WOA0)}
          s_lshl_b32 {sr(S_U0)}, {sr(S_RO32)}, 3
          s_add_u32 {sr(S_U0)}, {sr(S_U0)}, {sr(S_HH)}
          s_lshl_b32 {sr(S_U0)}, {sr(S_U0)}, 13
          s_add_u32 {sr(S_U0)}, {sr(S_U0)}, {WS_OA}
          s_add_u32 {sr(S_U1)}, {sr(S_U0)}, 4096
          s_lshl_b32 {sr(S_U2)}, {sr(S_RO32)}, 4
          s_add_u32 {sr(S_U2)}, {sr(S_U2)}, {sr(S_HH)}
          s_lshl_b32 {sr(S_U2)}, {sr(S_U2)}, 12
          s_add_u32 {sr(S_U2)}, {sr(S_U2)}, {WS_OB}
          s_add_u32 {sr(S_U3)}, {sr(S_U2)}, 16384
          s_and_b32 {sr(S_T1)}, {sr(S_HEADA)}, 1
          v_lshrrev_b32 {vr(V_T1)}, 5, {vr(V_LANE)}
          s_lshl_b32 {sr(S_T2)}, {sr(S_T1)}, 1
          s_add_u32 {sr(S_T2)}, {sr(S_T2)}, 64
          v_add_u32 {vr(V_T1)}, {sr(S_T2)}, {vr(V_T1)}
          v_and_b32 {vr(V_T0)}, 0x2f, {vr(V_LANE)}
          s_lshl_b32 {sr(S_T2)}, {sr(S_T1)}, 4
          v_add_u32 {vr(V_T0)}, {sr(S_T2)}, {vr(V_T0)}
          v_cndmask_b32 {vr(V_T0)}, {vr(V_T0)}, {vr(V_T1)}, {sr(S_VMASK,2)}
          v_lshlrev_b32 {vr(V_ACA)}, 2, {vr(V_T0)}
          s_lshr_b32 {sr(S_ACC)}, {sr(S_HEADA)}, 1
          s_lshl_b32 {sr(S_ACC)}, {sr(S_ACC)}, 12
          s_add_u32 {sr(S_ACC)}, {sr(S_ACC)}, {WS_ACC}
          s_lshl_b32 {sr(S_INFO)}, {sr(S_RO32)}, 7
          s_add_u32 {sr(S_INFO)}, {sr(S_INFO)}, {WS_FO}""")
    tag_setup()
    stamp(1)

    def reads(c):
        fb = V_FB[c % 2]
        s = c % 4
        wa, wo = (V_WA, RSLOT[s]) if s < 3 else (V_WA3, 0)
        r = []
        for p in range(4):
            r.append(f"ds_read_b128 {vr(fb+4*p,4)}, {vr(V_XA0 if p%2==0 else V_XA1)} offset:{(2*c + p//2)*4096}")
            for u in range(2):
                r.append(f"ds_read_b64_tr_b16 {vr(fb+16+4*p+2*u,2)}, {vr(wa)} offset:{wo + p*2048 + u*512}")
        return r
    def mfmas(c):
        fb = V_FB[c % 2]
        return [f"v_mfma_f32_32x32x16_bf16 {vr(V_ACCQ,16)}, {vr(fb+16+4*p,4)}, {vr(fb+4*p,4)}, {vr(V_ACCQ,16)}" for p in range(4)]
    for c in range(8):
        if c in (0, 2):
            a.wait_vm(f"x{c//2}", "lgkmcnt(0)")
        else:
            a("s_waitcnt lgkmcnt(0)")
        a("s_barrier")
        R_ = reads(c)
        if c == 0:
            for r in R_: a(r)
        else:
            M_ = mfmas(c - 1)
            for k in range(4):
                a(M_[k])
                for r in R_[4*k:4*k+4]: a(r)
    for k, m in enumerate(mfmas(7)):
        a(f"s_waitcnt lgkmcnt({9-3*k})")
        a(m)
    stamp(2)
    E = V_FB[0]
    a(f"""s_mov_b32 {sr(S_SEG)}, 0
          s_nop 10""")
    for i in range(0, 8, 2):
        a(f"v_pk_mul_f32 {vr(V_ACCQ+i,2)}, {sr(S_QS,2)}, {vr(V_ACCQ+i,2)}")
    for i in range(4):
        a(f"v_cvt_pk_bf16_f32 {vr(V_QF+i)}, {vr(V_ACCQ+2*i)}, {vr(V_ACCQ+2*i+1)}")
    phi(V_ACCQ + 8, 8, E)
    for i in range(4):
        a(f"v_cvt_pk_bf16_f32 {vr(V_PQ+i)}, {vr(V_ACCQ+8+2*i)}, {vr(V_ACCQ+8+2*i+1)}")
    stamp(3)
    a("s_barrier")
    a("s_setprio 3")
    stamp(4)
    a(f"""ds_read_b128 {vr(V_KF,4)}, {vr(V_KA)}
          s_mov_b64 exec, {sr(S_VMASK,2)}
          ds_read_b128 {vr(V_VF[0],4)}, {vr(V_VA)} offset:1024
          ds_read_b128 {vr(V_VF[0]+4,4)}, {vr(V_VA)} offset:1536
          ds_read_b128 {vr(V_VF[1],4)}, {vr(V_VA)} offset:{2048+1024}
          ds_read_b128 {vr(V_VF[1]+4,4)}, {vr(V_VA)} offset:{2048+1536}
          s_mov_b64 exec, -1
          s_waitcnt lgkmcnt(4)
          v_mfma_f32_32x32x16_bf16 {vr(V_S[0],16)}, {vr(V_KF,4)}, {vr(V_QF,4)}, 0
          ds_read_b128 {vr(V_KF,4)}, {vr(V_KA)} offset:2048""")
    if dbg:
        for reg, hd, base in ((V_QF, S_HEAD, WS_DBG1), (V_PQ, S_HEADA, WS_DBG2)):
            a(f"""s_lshl_b32 {sr(S_T0)}, {sr(S_RT32)}, 5
                  s_add_u32 {sr(S_T0)}, {sr(S_T0)}, {sr(hd)}
                  s_lshl_b32 {sr(S_T0)}, {sr(S_T0)}, 10
                  s_add_u32 {sr(S_T1)}, {sr(S_T0)}, {base}
                  buffer_store_dwordx4 {vr(reg,4)}, {vr(V_L16)}, {sr(S_WS,4)}, {sr(S_T1)} offen""")
    S0 = V_S[0]
    a(f"""s_nop 10
          v_max3_f32 {vr(V_T0)}, {vr(S0)}, {vr(S0+1)}, {vr(S0+2)}
          v_max3_f32 {vr(V_T1)}, {vr(S0+3)}, {vr(S0+4)}, {vr(S0+5)}
          v_max3_f32 {vr(V_T2)}, {vr(S0+6)}, {vr(S0+7)}, {vr(S0+8)}
          v_max3_f32 {vr(V_T3)}, {vr(S0+9)}, {vr(S0+10)}, {vr(S0+11)}
          v_max3_f32 {vr(V_T0)}, {vr(V_T0)}, {vr(S0+12)}, {vr(S0+13)}
          v_max3_f32 {vr(V_T1)}, {vr(V_T1)}, {vr(S0+14)}, {vr(S0+15)}
          v_max3_f32 {vr(V_T0)}, {vr(V_T0)}, {vr(V_T1)}, {vr(V_T2)}
          v_max_f32 {vr(V_T0)}, {vr(V_T0)}, {vr(V_T3)}
          v_mov_b32 {vr(V_T1)}, {vr(V_T0)}
          s_nop 1
          v_permlane32_swap_b32 {vr(V_T0)}, {vr(V_T1)}
          s_nop 1
          v_max_f32 {vr(V_T0)}, {vr(V_T0)}, {vr(V_T1)}
          v_sub_f32 {vr(V_T2)}, 0, {vr(V_T0)}
          v_sub_f32 {vr(V_T3)}, 0, {vr(V_T0)}""")
    for i in range(0, 16, 2):
        a(f"v_pk_add_f32 {vr(S0+i,2)}, {vr(S0+i,2)}, {vr(V_T2,2)}")
    for i in range(0, 16, 2):
        a(f"v_pk_mov_b32 {vr(V_C+i,2)}, {vr(V_T2,2)}, {vr(V_T2,2)} op_sel:[0,1]")
    a(f"""v_exp_f32 {vr(S0)}, {vr(S0)}
          v_exp_f32 {vr(S0+1)}, {vr(S0+1)}
          s_waitcnt lgkmcnt(0)""")
    stamp(5)

    PR = opts.get("ramp", "3210")
    PR = [int(ch) for ch in str(PR).zfill(4)]
    def oload(i, dst, br):
        so = [[S_U0, S_U1], [S_U2, S_U3]][br][i // 4]
        a(f"buffer_load_dwordx4 {vr(dst+4*i,4)}, {vr(V_L16)}, {sr(S_WS,4)}, {sr(so)} offen offset:{(i%4)*1024} sc1")
    def osan():
        for i in range(4):
            a(f"v_min_u32 {vr(V_PK+i)}, -2, {vr(V_PK+i)}")
    ins = {}
    def at(p, slot, fn): ins.setdefault((p, slot), []).append(fn)
    HK = 8 * opts.get("hk", 3)
    H5 = opts.get('h5', 40)
    bars = {8: (2, 11), 32: (0, 13), H5: (2, 17), 48: (0, 19)}
    at(8, "B", lambda: a(f"buffer_load_dword {vr(V_G)}, {vr(V_GA)}, {sr(S_WS,4)}, {sr(S_GOFF)} offen sc1"))
    at(9, "A", lambda: a(f"buffer_store_dwordx4 {vr(V_PK,4)}, {vr(V_L16)}, {sr(S_WS,4)}, {sr(S_RDY)} offen sc1"))
    at(10, "A", lambda: a(f"buffer_store_dwordx4 {vr(V_PK,4)}, {vr(V_L16)}, {sr(S_WS,4)}, {sr(S_AUX)} offen sc1"))
    at(20, "A", lambda: a(f"""s_waitcnt vmcnt(0)
                              s_mov_b64 exec, 1
                              buffer_store_dword {vr(V_TAG)}, {vr(V_L4)}, {sr(S_WS,4)}, {sr(S_MYFO)} offen sc1
                              s_mov_b64 exec, -1"""))
    for r in range(8):
        at(H5 + r // 2, "AB"[r % 2], lambda r=r: a(f"buffer_load_dword {vr(V_AC+r)}, {vr(V_ACA)}, {sr(S_WS,4)}, {sr(S_ACC)} offen offset:{r*512} sc1"))
    at(38, "A", lambda: flag_load(S_INFO))
    PO = opts.get("po", H5 + 7)
    def oa1():
        a("s_waitcnt vmcnt(0)")
        for i in range(4):
            a(f"v_cvt_pk_bf16_f32 {vr(V_AC+8+i)}, {vr(V_AC+2*i)}, {vr(V_AC+2*i+1)}")
    at(PO, "A", oa1)
    at(PO, "B", lambda: a(f"v_mfma_f32_32x32x16_bf16 {vr(V_OA,16)}, {vr(V_AC+8,4)}, {vr(V_PQ,4)}, 0"))
    at(PO + 1, "B", lambda: a(f"""v_add_f32 {vr(V_T0)}, {sr(S_EPS)}, {vr(V_OA)}
                                  v_rcp_f32 {vr(V_T0)}, {vr(V_T0)}"""))
    def oa2():
        a(f"v_mul_f32 {vr(V_T0)}, {vr(V_T0)}, {vr(V_G)}")
        for i in range(0, 8, 2):
            a(f"v_pk_mul_f32 {vr(V_OA+8+i,2)}, {vr(V_OA+8+i,2)}, {vr(V_T0,2)} op_sel_hi:[1,0]")
        for i in range(4):
            a(f"v_cvt_pk_bf16_f32 {vr(V_PK+i)}, {vr(V_OA+8+2*i)}, {vr(V_OA+8+2*i+1)}")
        osan()
        a(f"buffer_store_dwordx4 {vr(V_PK,4)}, {vr(V_L16)}, {sr(S_WS,4)}, {sr(S_AUX)} offen sc1")
        a(f"v_sub_f32 {vr(V_G)}, 1.0, {vr(V_G)}")
    at(PO + 1, "C", oa2)
    def armchk():
        a.label("L_arm")
        a(f"""v_cmp_ne_u32 vcc, {vr(V_FLG)}, {vr(V_TAG)}
              s_cmp_eq_u32 vcc_lo, 0
              s_cbranch_scc0 L_armr""")
        a.label("L_armk")
    at(PO + 3, "A", armchk)
    for i in range(8):
        at(56 + i, "A", lambda i=i: oload(i, V_FA, 0))
    def run(p, slot):
        for fn in ins.get((p, slot), []): fn()
    a(f"s_mov_b32 {sr(S_SPIN)}, 0")
    for p in range(2, 66):
        cur, nxt = V_S[p % 2], V_S[(p + 1) % 2]
        vf = V_VF[p % 2]
        ex = lambda r: a(f"v_exp_f32 {vr(r)}, {vr(r)}")
        if p < 56:
            ramp = {0: PR[0], 4: PR[1], 6: PR[2], 7: PR[3]}
            if p < 8:
                r0 = {2: 2, opts.get("r1", 6): 1, 7: 0}
                if p in r0: a(f"s_setprio {r0[p]}")
            elif p % 8 in ramp: a(f"s_setprio {ramp[p % 8]}")
        else:
            ramp = {56: PR[0], 62: PR[1], 64: PR[2], 65: PR[3]}
            if p in ramp: a(f"s_setprio {ramp[p]}")
        for i in (2, 3, 4, 5): ex(cur + i)
        if p < 65:
            a(f"s_waitcnt lgkmcnt({bars[p][0] if p in bars else 2})")
            a(f"v_mfma_f32_32x32x16_bf16 {vr(nxt,16)}, {vr(V_KF,4)}, {vr(V_QF,4)}, {vr(V_C,16)}")
        else:
            a("s_waitcnt lgkmcnt(0)")
        if p == 32:
            a(f"""v_add_u32 {vr(V_KA)}, 0x10000, {vr(V_KA)}
                  v_add_u32 {vr(V_VA)}, 0x10000, {vr(V_VA)}""")
        if p in bars:
            stamp(bars[p][1])
            a("s_barrier")
            stamp(bars[p][1] + 1)
        off = (p % 32) * 2048
        if p < 64:
            a(f"ds_read_b128 {vr(V_KF,4)}, {vr(V_KA)} offset:{off}")
        elif p == 64:
            a("s_nop 0")
        run(p, "A")
        for i in (6, 7, 8, 9, 10): ex(cur + i)
        a(f"v_smfmac_f32_32x32x32_bf16 {vr(V_O,16)}, {vr(vf,4)}, {vr(cur,8)}, {vr(V_IDX)}")
        run(p, "B")
        for i in (11, 12, 13, 14, 15): ex(cur + i)
        if p < 65:
            ex(nxt); ex(nxt + 1)
        else:
            a("s_nop 1")
        a(f"v_smfmac_f32_32x32x32_bf16 {vr(V_O,16)}, {vr(vf+4,4)}, {vr(cur+8,8)}, {vr(V_IDX)}")
        if p < 64:
            a(f"""s_mov_b64 exec, {sr(S_VMASK,2)}
                  ds_read_b128 {vr(vf,4)}, {vr(V_VA)} offset:{off+1024}
                  ds_read_b128 {vr(vf+4,4)}, {vr(V_VA)} offset:{off+1536}
                  s_mov_b64 exec, -1""")
        run(p, "C")

    VB0, VB1, VC0, VC1 = V_XOFF, V_WOFF, V_PQ, V_PQ + 1
    def wo_one(n, nt):
        b = V_WO + 8 * (n % 4) + 4 * nt
        ad = [V_WOA0, V_WOA1][nt] if n < 8 else ([VB0, VB1][nt] if n < 12 else [VC0, VC1][nt])
        off = n * 2048 if n < 8 else (n % 4) * 2048
        for u in range(2):
            a(f"ds_read_b64_tr_b16 {vr(b+2*u,2)}, {vr(ad)} offset:{off + u*1024}")
    def wo_rd(n):
        wo_one(n, 0); wo_one(n, 1)
    def mm(n, nt):
        src = V_FA + 4 * n if n < 8 else V_FBB + 4 * (n - 8)
        a(f"v_mfma_f32_32x32x16_bf16 {vr(V_OUT[nt],16)}, {vr(V_WO+8*(n%4)+4*nt,4)}, {vr(src,4)}, {'0' if n == 0 else vr(V_OUT[nt],16)}")
    wo_rd(0); wo_rd(1)
    a(f"""s_mov_b32 {sr(S_T0)}, {hex(f2u(2.0**64))}
          s_nop 2""")
    stamp(6)
    a(f"""v_rcp_f32 {vr(V_T0)}, {vr(V_O+8)}
          v_cmp_nle_f32 vcc, {vr(V_O+8)}, {sr(S_T0)}
          v_pk_mul_f32 {vr(V_T2,2)}, {vr(V_O,2)}, 0
          v_pk_fma_f32 {vr(V_T2,2)}, {vr(V_O+2,2)}, 0, {vr(V_T2,2)}
          v_pk_fma_f32 {vr(V_T2,2)}, {vr(V_O+4,2)}, 0, {vr(V_T2,2)}
          v_pk_fma_f32 {vr(V_T2,2)}, {vr(V_O+6,2)}, 0, {vr(V_T2,2)}
          v_cmp_u_f32 {sr(S_SAVE,2)}, {vr(V_T2)}, {vr(V_T3)}
          s_or_b64 vcc, vcc, {sr(S_SAVE,2)}
          s_cbranch_vccnz L_fallback""")
    a.label("L_norm")
    a(f"v_mul_f32 {vr(V_T0)}, {vr(V_T0)}, {vr(V_G)}")
    for i in range(0, 8, 2):
        a(f"v_pk_mul_f32 {vr(V_O+i,2)}, {vr(V_O+i,2)}, {vr(V_T0,2)} op_sel_hi:[1,0]")
    for i in range(4):
        a(f"v_cvt_pk_bf16_f32 {vr(V_PK+i)}, {vr(V_O+2*i)}, {vr(V_O+2*i+1)}")
    osan()
    a(f"buffer_store_dwordx4 {vr(V_PK,4)}, {vr(V_L16)}, {sr(S_WS,4)}, {sr(S_RDY)} offen sc1")
    wo_rd(2)
    a(f"""s_mov_b32 {sr(S_SPIN)}, 0
          s_waitcnt vmcnt(1)""")
    a.label("L_oa")
    a(f"v_max3_u32 {vr(V_FLG)}, {vr(V_FA)}, {vr(V_FA+1)}, {vr(V_FA+2)}")
    for i in range(3, 31, 2):
        a(f"v_max3_u32 {vr(V_FLG)}, {vr(V_FLG)}, {vr(V_FA+i)}, {vr(V_FA+i+1)}")
    a(f"""v_max_u32 {vr(V_FLG)}, {vr(V_FLG)}, {vr(V_FA+31)}
          v_cmp_eq_u32 vcc, -1, {vr(V_FLG)}
          s_cbranch_vccnz L_oar""")
    a.label("L_oak")
    A0, A1, A2, A3 = V_XA0, V_XA1, V_WA, V_KA
    setup = f"""s_lshl_b32 {sr(S_T0)}, {sr(S_HH)}, 13
          s_sub_u32 {sr(S_T1)}, {L_HI}, {sr(S_T0)}
          v_add_u32 {vr(VB0)}, {sr(S_T1)}, {vr(V_WOA0)}
          v_add_u32 {vr(VB1)}, {sr(S_T1)}, {vr(V_WOA1)}
          s_sub_u32 {sr(S_T1)}, 65536, {sr(S_T0)}
          v_add_u32 {vr(VC0)}, {sr(S_T1)}, {vr(V_WOA0)}
          v_add_u32 {vr(VC1)}, {sr(S_T1)}, {vr(V_WOA1)}
          v_and_b32 {vr(V_T0)}, 31, {vr(V_LANE)}
          v_lshrrev_b32 {vr(V_T1)}, 5, {vr(V_LANE)}
          v_and_b32 {vr(V_T2)}, 7, {vr(V_LANE)}
          v_xor_b32 {vr(V_T1)}, {vr(V_T1)}, {vr(V_T2)}
          v_lshlrev_b32 {vr(V_T1)}, 4, {vr(V_T1)}
          v_lshl_add_u32 {vr(V_T0)}, {vr(V_T0)}, 8, {vr(V_T1)}
          s_lshl_b32 {sr(S_T0)}, {sr(S_HH)}, 14
          s_lshl_b32 {sr(S_T1)}, {sr(S_RT)}, 13
          s_add_u32 {sr(S_T0)}, {sr(S_T0)}, {sr(S_T1)}
          v_add_u32 {vr(V_T0)}, {sr(S_T0)}, {vr(V_T0)}
          v_xor_b32 {vr(V_T1)}, 32, {vr(V_T0)}
          v_xor_b32 {vr(V_T2)}, 64, {vr(V_T0)}
          v_xor_b32 {vr(V_T3)}, 96, {vr(V_T0)}
          v_lshrrev_b32 {vr(A0)}, 3, {vr(V_LANE)}
          v_and_b32 {vr(A1)}, 7, {vr(V_LANE)}
          v_lshlrev_b32 {vr(A2)}, 1, {vr(A1)}
          v_xor_b32 {vr(A2)}, {vr(A2)}, {vr(A0)}
          v_lshlrev_b32 {vr(A2)}, 4, {vr(A2)}
          v_lshl_add_u32 {vr(A2)}, {vr(A0)}, 8, {vr(A2)}
          s_lshl_b32 {sr(S_T0)}, {sr(S_WAVE)}, 11
          v_add_u32 {vr(A2)}, {sr(S_T0)}, {vr(A2)}
          v_xor_b32 {vr(A3)}, 16, {vr(A2)}
          v_lshlrev_b32 {vr(A1)}, 4, {vr(A1)}
          v_lshl_add_u32 {vr(A0)}, {vr(A0)}, 10, {vr(A1)}
          s_lshl_b32 {sr(S_RDY)}, {sr(S_QO)}, 16
          s_lshl_b32 {sr(S_T1)}, {sr(S_WAVE)}, 13
          s_add_u32 {sr(S_RDY)}, {sr(S_RDY)}, {sr(S_T1)}
          s_lshl_b32 {sr(S_T1)}, {sr(S_NS)}, 7
          s_add_u32 {sr(S_RDY)}, {sr(S_RDY)}, {sr(S_T1)}""".split("\n")
    OBAT = opts.get("obat", 5)
    sched = {i: [] for i in range(8)}
    for k in range(8):
        sched[min(7, OBAT + (k * (8 - OBAT)) // 8)].append(k)
    per = (len(setup) + 3) // 4
    def chk(i):
        f = V_FBB + 4 * i
        a(f"s_waitcnt vmcnt({7-i})")
        a.label(f"L_ob{i}")
        a(f"""v_max3_u32 {vr(V_FLG)}, {vr(f)}, {vr(f+1)}, {vr(f+2)}
              v_max_u32 {vr(V_FLG)}, {vr(V_FLG)}, {vr(f+3)}
              v_cmp_eq_u32 vcc, -1, {vr(V_FLG)}
              s_cbranch_vccnz L_obr{i}""")
        a.label(f"L_obk{i}")
    OBM = opts.get("obm", 8)
    for n in range(12):
        if n == 8: stamp(7)
        if OBM and n == OBM:
            a("s_barrier")
            for k in range(8): oload(k, V_FBB, 1)
        if n >= 8: chk(n - 8)
        a(f"s_waitcnt lgkmcnt({4 * (min(n + 2, 11) - n)})")
        mm(n, 0); mm(n, 1)
        if n < 4:
            for l in setup[n*per:(n+1)*per]: a(l)
        if n + 3 < 12: wo_rd(n + 3)
        if n < 8 and not OBM:
            for k in sched[n]: oload(k, V_FBB, 1)
    if OBM != 8: a("s_barrier")
    stamp(8)
    for n in range(12, 16): wo_one(n, 0)
    for n in range(12, 15): wo_one(n, 1)
    for n in range(12, 16):
        chk(n - 8)
        a(f"s_waitcnt lgkmcnt({12 if n == 12 else 2*(15-n) + 8})")
        mm(n, 0)
        if n == 12: wo_one(15, 1)
    for n in range(12, 16):
        a(f"s_waitcnt lgkmcnt({2*(15-n)})")
        mm(n, 1)
    stamp(9)
    a("s_nop 3")
    for nt in range(2):
        if nt: a("s_nop 3")
        for g in range(4):
            a(f"ds_write_b128 {vr(V_T0+g)}, {vr(V_OUT[nt]+4*g,4)} offset:{nt*128}")
    a("""s_waitcnt lgkmcnt(0)
         s_barrier""")
    RR = V_FA
    for k in range(4):
        a(f"ds_read_b128 {vr(RR+8*k,4)}, {vr(A2)} offset:{k*16384}")
        a(f"ds_read_b128 {vr(RR+8*k+4,4)}, {vr(A3)} offset:{k*16384}")
    for k in range(1, 4):
        a(f"s_waitcnt lgkmcnt({2*(3-k)})")
        for i in range(0, 8, 2):
            a(f"v_pk_add_f32 {vr(RR+i,2)}, {vr(RR+i,2)}, {vr(RR+8*k+i,2)}")
    for i in range(4):
        a(f"v_cvt_pk_bf16_f32 {vr(RR+8+i)}, {vr(RR+2*i)}, {vr(RR+2*i+1)}")
    a(f"buffer_store_dwordx4 {vr(RR+8,4)}, {vr(A0)}, {sr(S_OUT,4)}, {sr(S_RDY)} offen " + ["", "nt", "sc0 sc1", "sc1", "sc1 nt"][opts.get("outf", 0)])
    if "dly" in opts:
        stamp(10)
        a(f"""s_cmp_lg_u32 s2, {opts.get('tswg', 100)}
              s_cbranch_scc1 L_end
              s_cmp_lg_u32 {sr(S_WAVE)}, 0
              s_cbranch_scc1 L_end
              s_memrealtime s[98:99]
              s_waitcnt lgkmcnt(0)
              s_sub_u32 {sr(S_T0)}, s100, s74
              s_lshl_b32 {sr(S_T0)}, {sr(S_T0)}, {opts.get('dsh', 2)}
              s_add_u32 {sr(S_T0)}, {sr(S_T0)}, 500
              s_min_u32 {sr(S_T0)}, {sr(S_T0)}, 30000""")
        a.label("L_dly2")
        a(f"""s_memrealtime s[96:97]
              s_waitcnt lgkmcnt(0)
              s_sub_u32 {sr(S_T1)}, s96, s98
              s_cmp_lt_u32 {sr(S_T1)}, {sr(S_T0)}
              s_cbranch_scc1 L_dly2""")
    if ts:
        stamp(10)
        ts_out()
    a.label("L_end")
    a("s_endpgm")

    a.label("L_armr")
    a(f"""s_add_u32 {sr(S_SPIN)}, {sr(S_SPIN)}, 1
          s_cmp_ge_u32 {sr(S_SPIN)}, 100000
          s_cbranch_scc1 L_armk""")
    flag_load(S_INFO)
    a("""s_waitcnt vmcnt(0)
         s_branch L_arm""")
    a.label("L_oar")
    a(f"""s_add_u32 {sr(S_SPIN)}, {sr(S_SPIN)}, 1
          s_cmp_ge_u32 {sr(S_SPIN)}, 100000
          s_cbranch_scc1 L_oak""")
    for k in range(8): oload(k, V_FA, 0)
    a("""s_waitcnt vmcnt(0)
         s_branch L_oa""")
    RM = opts.get("rm", 1)
    for i in range(8):
        f = V_FBB + 4 * i
        a.label(f"L_obr{i}")
        a(f"""s_add_u32 {sr(S_SPIN)}, {sr(S_SPIN)}, 1
              s_cmp_ge_u32 {sr(S_SPIN)}, 100000
              s_cbranch_scc1 L_obk{i}""")
        if RM == 1:
            if opts.get("slp", 0): a(f"s_sleep {opts['slp']}")
            for k in range(i, 8): oload(k, V_FBB, 1)
            a(f"""s_waitcnt vmcnt({7-i})
                  s_branch L_ob{i}""")
        else:
            if opts.get("slp", 0): a(f"s_sleep {opts['slp']}")
            oload(i, V_FBB, 1)
            a(f"""s_waitcnt vmcnt(0)
                  v_max3_u32 {vr(V_FLG)}, {vr(f)}, {vr(f+1)}, {vr(f+2)}
                  v_max_u32 {vr(V_FLG)}, {vr(V_FLG)}, {vr(f+3)}
                  v_cmp_eq_u32 vcc, -1, {vr(V_FLG)}
                  s_cbranch_vccnz L_obr{i}""")
            for k in range(i + 1, 8): oload(k, V_FBB, 1)
            a(f"s_branch L_obk{i}")

    a.label("L_fallback")
    FS = V_S[0]
    a(f"""v_mov_b32 {vr(V_T0)}, 0xff800000
          s_mov_b32 {sr(S_T0)}, {WS_KV}""")
    a.label("L_fb1")
    a(f"""buffer_load_dwordx4 {vr(V_KF,4)}, {vr(V_L16)}, {sr(S_WS,4)}, {sr(S_T0)} offen sc1
          s_waitcnt vmcnt(0)
          v_mfma_f32_32x32x16_bf16 {vr(FS,16)}, {vr(V_KF,4)}, {vr(V_QF,4)}, 0
          s_nop 15""")
    for i in range(8):
        a(f"v_max3_f32 {vr(V_T0)}, {vr(V_T0)}, {vr(FS+2*i)}, {vr(FS+2*i+1)}")
    a(f"""s_add_u32 {sr(S_T0)}, {sr(S_T0)}, 2048
          s_cmp_lt_u32 {sr(S_T0)}, {WS_KV + 131072}
          s_cbranch_scc1 L_fb1
          v_mov_b32 {vr(V_T1)}, {vr(V_T0)}
          s_nop 1
          v_permlane32_swap_b32 {vr(V_T0)}, {vr(V_T1)}
          s_nop 1
          v_max_f32 {vr(V_T0)}, {vr(V_T0)}, {vr(V_T1)}""")
    for i in range(16):
        a(f"v_sub_f32 {vr(V_C+i)}, 0, {vr(V_T0)}")
        a(f"v_mov_b32 {vr(V_O+i)}, 0")
    a(f"""v_and_b32 {vr(V_VA)}, 0x3ff, {vr(V_VA)}
          s_mov_b32 {sr(S_T0)}, {WS_KV}""")
    a.label("L_fb2")
    a(f"""buffer_load_dwordx4 {vr(V_KF,4)}, {vr(V_L16)}, {sr(S_WS,4)}, {sr(S_T0)} offen sc1
          s_mov_b64 exec, {sr(S_VMASK,2)}
          buffer_load_dwordx4 {vr(V_VF[0],4)}, {vr(V_VA)}, {sr(S_WS,4)}, {sr(S_T0)} offen offset:1024 sc1
          buffer_load_dwordx4 {vr(V_VF[0]+4,4)}, {vr(V_VA)}, {sr(S_WS,4)}, {sr(S_T0)} offen offset:1536 sc1
          s_mov_b64 exec, -1
          s_waitcnt vmcnt(0)
          v_mfma_f32_32x32x16_bf16 {vr(FS,16)}, {vr(V_KF,4)}, {vr(V_QF,4)}, {vr(V_C,16)}
          s_nop 15""")
    for i in range(16):
        a(f"v_exp_f32 {vr(FS+i)}, {vr(FS+i)}")
    a(f"""s_nop 1
          v_smfmac_f32_32x32x32_bf16 {vr(V_O,16)}, {vr(V_VF[0],4)}, {vr(FS,8)}, {vr(V_IDX)}
          v_smfmac_f32_32x32x32_bf16 {vr(V_O,16)}, {vr(V_VF[0]+4,4)}, {vr(FS+8,8)}, {vr(V_IDX)}
          s_add_u32 {sr(S_T0)}, {sr(S_T0)}, 2048
          s_cmp_lt_u32 {sr(S_T0)}, {WS_KV + 131072}
          s_cbranch_scc1 L_fb2
          s_nop 15
          v_rcp_f32 {vr(V_T0)}, {vr(V_O+8)}
          s_nop 0
          s_branch L_norm""")

    H_F4, H_FOFF = 148, 152
    S_ROT = S_HEAD
    def rot_setup():
        a(f"""s_and_b32 {sr(S_ROT)}, s2, 7
              s_lshl_b32 {sr(S_ROT)}, {sr(S_ROT)}, 3""")
    def kv_sample():
        a(f"buffer_load_dwordx4 {vr(H_F4,4)}, {vr(H_FOFF)}, {sr(S_WS,4)}, 0 offen offset:{WS_FKV} sc1")
    def kv_spin(lbl, lo_only):
        a(f"s_mov_b32 {sr(S_SPIN)}, 0")
        a.label(lbl + "_loop")
        a(f"""v_cmp_ne_u32 vcc, {vr(H_F4)}, {vr(V_TAG)}
              v_cmp_ne_u32 {sr(S_SAVE,2)}, {vr(H_F4+1)}, {vr(V_TAG)}
              s_or_b64 vcc, vcc, {sr(S_SAVE,2)}
              v_cmp_ne_u32 {sr(S_SAVE,2)}, {vr(H_F4+2)}, {vr(V_TAG)}
              s_or_b64 vcc, vcc, {sr(S_SAVE,2)}
              v_cmp_ne_u32 {sr(S_SAVE,2)}, {vr(H_F4+3)}, {vr(V_TAG)}
              s_or_b64 vcc, vcc, {sr(S_SAVE,2)}""")
        if lo_only:
            a(f"s_and_b32 {sr(S_SAVE)}, vcc_lo, 0xff\ns_cmp_eq_u32 {sr(S_SAVE)}, 0")
        else:
            a("s_cmp_eq_u64 vcc, 0")
        a(f"""s_cbranch_scc1 {lbl}_ok
              s_add_u32 {sr(S_SPIN)}, {sr(S_SPIN)}, 1
              s_cmp_ge_u32 {sr(S_SPIN)}, 100000
              s_cbranch_scc1 {lbl}_ok""")
        if lo_only: a("s_mov_b64 exec, 0xff")
        kv_sample()
        if lo_only: a("s_mov_b64 exec, -1")
        a(f"""s_waitcnt vmcnt(0)
              s_branch {lbl}_loop""")
        a.label(lbl + "_ok")
    def kv_dma(lbl, s0, n):
        a(f"""s_mul_i32 {sr(S_T0)}, {sr(S_RT)}, {n}
              s_add_u32 {sr(S_T0)}, {sr(S_T0)}, {s0}
              s_add_u32 {sr(S_T2)}, {sr(S_T0)}, {n}""")
        a.label(lbl)
        a(f"""s_add_u32 {sr(S_T1)}, {sr(S_T0)}, {sr(S_ROT)}
              s_and_b32 {sr(S_T1)}, {sr(S_T1)}, 63
              s_lshl_b32 {sr(S_T1)}, {sr(S_T1)}, 11
              s_add_u32 {sr(S_T1)}, {sr(S_T1)}, {WS_KV}
              s_lshl_b32 m0, {sr(S_T0)}, 11
              s_waitcnt vmcnt(40)""")
        for k in range(4):
            a(f"buffer_load_dwordx4 {vr(V_L16)}, {sr(S_WS,4)}, {sr(S_T1)} offen offset:{k*1024} sc1 lds")
        a(f"""s_add_u32 m0, m0, 4096
              s_add_u32 {sr(S_T1)}, {sr(S_T1)}, 4096""")
        for k in range(4):
            a(f"buffer_load_dwordx4 {vr(V_L16)}, {sr(S_WS,4)}, {sr(S_T1)} offen offset:{k*1024} sc1 lds")
        a(f"""s_add_u32 {sr(S_T0)}, {sr(S_T0)}, 4
              s_cmp_lt_u32 {sr(S_T0)}, {sr(S_T2)}
              s_cbranch_scc1 {lbl}""")
    def swz64(dst, stride):
        a(f"""v_lshrrev_b32 {vr(V_T0)}, 3, {vr(V_LANE)}
              v_bfe_u32 {vr(V_T1)}, {vr(V_LANE)}, 4, 1
              v_lshlrev_b32 {vr(V_T1)}, 2, {vr(V_T1)}
              v_xor_b32 {vr(V_T1)}, {vr(V_T1)}, {vr(V_LANE)}
              v_and_b32 {vr(V_T1)}, 7, {vr(V_T1)}
              v_lshlrev_b32 {vr(V_T1)}, 4, {vr(V_T1)}
              v_mul_u32_u24 {vr(V_T0)}, {stride}, {vr(V_T0)}
              v_add_u32 {vr(dst)}, {vr(V_T0)}, {vr(V_T1)}""")

    KACC = [24, 40]
    KB = [56, 68]
    KV0, KV1 = 153, 154
    S_KO, S_KM = S_U2, S_U3
    S_KW = S_WOB
    def kv_setup():
        srd(S_KW, 2, 0x180000)
        srd(S_WS, 22, WS_SIZE)
        consts()
        swz64(KV0, 3072)
        a(f"""v_add_u32 {vr(KV1)}, {24576 - 1024}, {vr(KV0)}
              s_sub_u32 {sr(S_AUX)}, {sr(S_WAVE)}, 8
              s_and_b32 {sr(S_RT)}, {sr(S_AUX)}, 1
              s_lshl_b32 {sr(S_KM)}, {sr(S_AUX)}, 13
              s_add_u32 {sr(S_KM)}, {sr(S_KM)}, {L_HI}
              s_lshl_b32 {sr(S_KO)}, {sr(S_HGK)}, 7
              s_cmp_lt_u32 {sr(S_AUX)}, 2
              s_cselect_b32 {sr(S_T1)}, 2, 1
              s_cselect_b32 {sr(S_T2)}, 0, {sr(S_EPS)}
              s_lshl_b32 {sr(S_T1)}, {sr(S_T1)}, 10
              s_add_u32 {sr(S_KO)}, {sr(S_KO)}, {sr(S_T1)}""")
        for i in range(32):
            a(f"v_mov_b32 {vr(KACC[0]+i)}, {sr(S_T2)}")
        xfrag_addr(S_RT)
        a(f"""v_lshlrev_b32 {vr(V_T0)}, 10, {vr(V_T1)}
              v_bfe_u32 {vr(V_T1)}, {vr(V_LANE)}, 2, 2
              v_lshl_add_u32 {vr(V_T0)}, {vr(V_T1)}, 7, {vr(V_T0)}
              v_bfe_u32 {vr(V_T1)}, {vr(V_LANE)}, 3, 1
              v_lshl_add_u32 {vr(V_T0)}, {vr(V_T1)}, 6, {vr(V_T0)}
              v_bfe_u32 {vr(V_T1)}, {vr(V_LANE)}, 4, 1
              v_lshl_add_u32 {vr(V_T0)}, {vr(V_T1)}, 5, {vr(V_T0)}
              v_and_b32 {vr(V_T1)}, 3, {vr(V_LANE)}
              v_lshl_add_u32 {vr(V_T0)}, {vr(V_T1)}, 3, {vr(V_T0)}
              v_add_u32 {vr(V_WOA0)}, {sr(S_KM)}, {vr(V_T0)}
              v_xor_b32 {vr(V_WOA1)}, 64, {vr(V_WOA0)}""")
    def kdma(st):
        a(f"s_add_u32 m0, {sr(S_KM)}, {(st % 4)*2048}")
        if st % 4 == 0:
            a(f"""s_xor_b32 {sr(S_U1)}, {sr(S_J)}, {st//4}
                  s_mul_i32 {sr(S_U1)}, {sr(S_U1)}, 196608
                  s_add_u32 {sr(S_U1)}, {sr(S_U1)}, {sr(S_KO)}""")
        else:
            a(f"s_add_u32 {sr(S_U1)}, {sr(S_U1)}, 49152")
        a.vmem(f"buffer_load_dwordx4 {vr(KV0)}, {sr(S_KW,4)}, {sr(S_U1)} offen lds", f"k{st}")
        a.vmem(f"buffer_load_dwordx4 {vr(KV1)}, {sr(S_KW,4)}, {sr(S_U1)} offen offset:1024 lds", f"k{st}")
    def krd(st):
        b = KB[st % 2]
        a(f"ds_read_b128 {vr(b,4)}, {vr(V_XA0 if st%2==0 else V_XA1)} offset:{(st//2)*4096}")
        for nt in range(2):
            for u in range(2):
                a(f"ds_read_b64_tr_b16 {vr(b+4+4*nt+2*u,2)}, {vr(V_WOA0 if nt==0 else V_WOA1)} offset:{(st%4)*2048 + u*512}")
    def kv_pass(bars, after={}):
        a.vm = []
        for st in range(4): kdma(st)
        for _ in range(bars.get(-1, 0)): a("s_barrier")
        a.wait_vm("k0")
        for _ in range(bars.get(0, 0)): a("s_barrier")
        krd(0)
        for st in range(32):
            if st + 1 < 32:
                if f"k{st+1}" in a.vm: a.wait_vm(f"k{st+1}")
                for _ in range(bars.get(st + 1, 0)): a("s_barrier")
                if st + 1 in after: after[st + 1]()
                krd(st + 1)
            a(f"s_waitcnt lgkmcnt({5 if st + 1 < 32 else 0})")
            b = KB[st % 2]
            for nt in range(2):
                a(f"v_mfma_f32_32x32x16_bf16 {vr(KACC[nt],16)}, {vr(b,4)}, {vr(b+4+4*nt,4)}, {vr(KACC[nt],16)}")
                if nt == (0 if opts.get("ksp", 0) else 1) and st + 4 < 32: kdma(st + 4)
    def foff_setup():
        a(f"""v_add_u32 {vr(H_FOFF)}, {sr(S_ROT)}, {vr(V_LANE)}
              v_and_b32 {vr(H_FOFF)}, 63, {vr(H_FOFF)}
              v_lshlrev_b32 {vr(H_FOFF)}, 4, {vr(H_FOFF)}""")

    TG = 80
    TKA, TVA = 12, 155
    S_TG = S_RDY
    def tg_setup(which):
        a(f"""v_and_b32 {vr(V_T0)}, 15, {vr(V_LANE)}
              v_lshlrev_b32 {vr(V_T0)}, 4, {vr(V_T0)}
              v_bfe_u32 {vr(V_T1)}, {vr(V_LANE)}, 4, 1
              v_lshrrev_b32 {vr(V_T2)}, 5, {vr(V_LANE)}
              v_lshl_add_u32 {vr(TKA)}, {vr(V_T1)}, 9, {vr(V_T0)}
              v_lshl_add_u32 {vr(TKA)}, {vr(V_T2)}, 3, {vr(TKA)}
              v_lshl_add_u32 {vr(TVA)}, {vr(V_T2)}, 8, {vr(V_T0)}
              v_lshl_add_u32 {vr(TVA)}, {vr(V_T1)}, 3, {vr(TVA)}
              s_lshl_b32 {sr(S_TG)}, {sr(S_ROT)}, 12
              s_add_u32 {sr(S_TG)}, {sr(S_TG)}, {WS_KVT + which*16384}""")
    def tg_loads():
        for t in range(4):
            a(f"s_add_u32 {sr(S_T0)}, {sr(S_TG)}, {t*4096}")
            for jb in range(4):
                a(f"buffer_load_dwordx4 {vr(TG+16*t+4*jb,4)}, {vr(V_L16)}, {sr(S_WS,4)}, {sr(S_T0)} offen offset:{jb*1024} sc1")
    def tg_finish(lbl, which):
        a(f"s_mov_b32 {sr(S_SPIN)}, 0")
        a.label(lbl + "_loop")
        a("s_waitcnt vmcnt(0)")
        a(f"v_min3_u32 {vr(V_T0)}, {vr(V_TAG)}, {vr(TG+1)}, {vr(TG+3)}")
        a(f"v_max3_u32 {vr(V_T1)}, {vr(V_TAG)}, {vr(TG+1)}, {vr(TG+3)}")
        for g in range(1, 16):
            a(f"v_min3_u32 {vr(V_T0)}, {vr(V_T0)}, {vr(TG+4*g+1)}, {vr(TG+4*g+3)}")
            a(f"v_max3_u32 {vr(V_T1)}, {vr(V_T1)}, {vr(TG+4*g+1)}, {vr(TG+4*g+3)}")
        a(f"""v_cmp_ne_u32 vcc, {vr(V_T0)}, {vr(V_T1)}
              s_cbranch_vccz {lbl}_ok
              s_add_u32 {sr(S_SPIN)}, {sr(S_SPIN)}, 1
              s_cmp_ge_u32 {sr(S_SPIN)}, 100000
              s_cbranch_scc1 {lbl}_ok""")
        tg_loads()
        a(f"s_branch {lbl}_loop")
        a.label(lbl + "_ok")
        for t in range(4):
            for jb in range(4):
                a(f"v_mov_b32 {vr(TG+16*t+4*jb+1)}, {vr(TG+16*t+4*jb+2)}")
            if t == 3: a("s_waitcnt lgkmcnt(8)")
            for jb in range(4):
                ad = TVA if jb & 1 else TKA
                off = (4 * which + t) * 2048 + ((1024 + (jb >> 1) * 512) if jb & 1 else (jb >> 1) * 256)
                a(f"ds_write_b64 {vr(ad)}, {vr(TG+16*t+4*jb,2)} offset:{off}")
        a("s_waitcnt lgkmcnt(0)")
    C_TG = opts.get("c_tg", 6)

    a.label("L_a0")
    a.vm = []
    HX, HW, HG_, HD, HDG = 16, 48, 80, 144, 112
    H_GWA = 8
    S_JX, S_JM = S_U0, S_U1
    a(f"""s_setprio 3
          s_lshl_b32 {sr(S_T1)}, {sr(S_RGJ)}, 14
          s_add_u32 {sr(S_JX)}, {sr(S_T0)}, {sr(S_T1)}
          s_lshl_b32 {sr(S_T1)}, {sr(S_RGJ)}, 10
          s_add_u32 {sr(S_JM)}, {sr(S_T1)}, {L_X}
          s_mov_b32 {sr(S_WJ+2)}, 16384
          s_mov_b32 {sr(S_WJ+3)}, 0x20000
          s_bitcmp1_b32 {sr(S_HG)}, 0
          s_waitcnt lgkmcnt(0)
          s_mov_b32 {sr(S_X)}, {sr(S_KA+0)}
          s_mov_b32 {sr(S_X+1)}, {sr(S_KA+1)}
          s_cselect_b32 {sr(S_WJ)}, {sr(S_KA+12)}, {sr(S_KA+10)}
          s_cselect_b32 {sr(S_WJ+1)}, {sr(S_KA+13)}, {sr(S_KA+11)}
          s_load_dword {sr(S_TAG)}, {sr(S_KA+22,2)}, {WS_E}""")
    a(f"""s_lshl_b32 {sr(S_U2)}, {sr(S_J)}, 11
          s_lshl_b32 {sr(S_T1)}, {sr(S_J)}, 7
          v_xor_b32 {vr(V_T0)}, {sr(S_T1)}, {vr(V_L16)}""")
    def jload(g):
        for k in range(4):
            kb = 4 * g + k
            a(f"s_add_u32 m0, {sr(S_JM)}, {kb*4096 - (k%2)*64}")
            a(f"s_xor_b32 {sr(S_T1)}, {sr(S_JX)}, {(kb//2)*128}" if k % 2 == 0 else "s_nop 0")
            a.vmem(f"buffer_load_dwordx4 {vr(V_XOFF)}, {sr(S_X,4)}, {sr(S_T1)} offen offset:{(k%2)*64} lds", f"j{g}")
        for k in range(2):
            a(f"s_mov_b32 m0, {L_JW + g*4096 + k*2048}")
            a(f"s_xor_b32 {sr(S_T2)}, {sr(S_U2)}, {g*4096 + k*2048}")
            for q in range(2):
                a.vmem(f"buffer_load_dwordx4 {vr(V_L16)}, {sr(S_WJ,4)}, {sr(S_T2)} offen offset:{q*1024} lds", f"j{g}")
    jload(0)
    srd(S_W, 16, 1024)
    a(f"s_mov_b32 m0, {L_GW}\ns_nop 0")
    a.vmem(f"buffer_load_dwordx4 {vr(V_T0)}, {sr(S_W,4)}, 0 offen lds", "gw")
    jload(1); jload(2); jload(3)
    srd(S_WS, 22, WS_SIZE)
    rot_setup()
    a(f"""v_and_b32 {vr(V_T0)}, 15, {vr(V_LANE)}
          v_lshrrev_b32 {vr(V_T1)}, 4, {vr(V_LANE)}
          v_bfe_u32 {vr(V_T2)}, {vr(V_LANE)}, 2, 2
          v_xor_b32 {vr(V_T2)}, {vr(V_T2)}, {vr(V_T1)}
          v_lshlrev_b32 {vr(V_T2)}, 4, {vr(V_T2)}
          v_lshl_add_u32 {vr(V_T2)}, {vr(V_T0)}, 6, {vr(V_T2)}
          v_add_u32 {vr(V_T2)}, {sr(S_JM)}, {vr(V_T2)}
          v_lshlrev_b32 {vr(V_T3)}, 3, {vr(V_T0)}
          v_lshl_add_u32 {vr(V_T3)}, {vr(V_T1)}, 8, {vr(V_T3)}
          v_lshlrev_b32 {vr(H_GWA)}, 4, {vr(V_T1)}
          v_add_u32 {vr(H_GWA)}, {L_GW}, {vr(H_GWA)}
          v_lshlrev_b32 {vr(13)}, 4, {vr(V_T0)}
          v_and_b32 {vr(14)}, 1, {vr(V_T1)}
          v_lshrrev_b32 {vr(15)}, 1, {vr(V_T1)}
          {f"s_lshl_b32 {sr(S_T0)}, {sr(S_QB)}, 1" if MAP == 48 else f"s_and_b32 {sr(S_T0)}, {sr(S_QB)}, 7"}
          {f"s_lshr_b32 {sr(S_T1)}, {sr(S_RGJ)}, 1" if MAP == 48 else f"s_mov_b32 {sr(S_T1)}, {sr(S_ROT)}"}
          s_add_u32 {sr(S_SEG)}, {sr(S_T0)}, {sr(S_T1)}
          s_lshl_b32 {sr(S_T3)}, {sr(S_SEG)}, 4
          s_and_b32 {sr(S_T0)}, {sr(S_HG)}, 3
          s_lshl_b32 {sr(S_T0)}, {sr(S_T0)}, 2
          s_add_u32 {sr(S_T3)}, {sr(S_T3)}, {sr(S_T0)}
          s_add_u32 {sr(S_T3)}, {sr(S_T3)}, {WS_FKV}""")
    tag_setup()
    if opts.get("lst"): stamp(19)
    vmh = list(a.vm)
    def job(isV):
        a.vm = list(vmh)
        nr = 3 if isV else 4
        for half in range(2):
            a.wait_vm(f"j{2*half}")
            if opts.get("lst"): stamp(20 + 3*half)
            a("s_barrier")
            if opts.get("lst"): stamp(21 + 3*half)
            a.wait_vm(f"j{2*half+1}")
            if opts.get("lst"): stamp(22 + 3*half)
            def rd(k):
                s = 8 * half + k
                a(f"ds_read_b128 {vr(HX+4*k,4)}, {vr(V_T2)} offset:{s*4096}")
                a(f"ds_read_b64_tr_b16 {vr(HW+4*k,2)}, {vr(V_T3)} offset:{L_JW + s*1024}")
                a(f"ds_read_b64_tr_b16 {vr(HW+4*k+2,2)}, {vr(V_T3)} offset:{L_JW + s*1024 + 128}")
                if not isV: a(f"ds_read_b128 {vr(HG_+4*k,4)}, {vr(H_GWA)} offset:{s*64}")
            rd(0); rd(1); rd(2)
            for k in range(8):
                a(f"s_waitcnt lgkmcnt({nr * (min(k + 2, 7) - k)})")
                z = half == 0 and k == 0
                A_, B_ = (HX, HW) if isV else (HW, HX)
                a(f"v_mfma_f32_16x16x32_bf16 {vr(HD,4)}, {vr(A_+4*k,4)}, {vr(B_+4*k,4)}, {'0' if z else vr(HD,4)}")
                if not isV: a(f"v_mfma_f32_16x16x32_bf16 {vr(HDG,4)}, {vr(HG_+4*k,4)}, {vr(HX+4*k,4)}, {'0' if z else vr(HDG,4)}")
                if k + 3 < 8: rd(k + 3)
        a(f"s_and_b32 {sr(S_T1)}, {sr(S_RGJ)}, 1")
        if isV:
            a(f"""v_lshl_add_u32 {vr(13)}, {vr(15)}, 8, {vr(13)}
                  v_lshl_add_u32 {vr(13)}, {vr(14)}, 3, {vr(13)}
                  s_lshl_b32 {sr(S_T1)}, {sr(S_T1)}, 9
                  s_add_u32 {sr(S_T1)}, {sr(S_T1)}, 1024""")
        else:
            a(f"""v_lshl_add_u32 {vr(13)}, {vr(14)}, 9, {vr(13)}
                  v_lshl_add_u32 {vr(13)}, {vr(15)}, 3, {vr(13)}
                  s_lshl_b32 {sr(S_T1)}, {sr(S_T1)}, 8
                  s_lshl_b32 {sr(S_T0)}, {sr(S_QB)}, 2
                  s_add_u32 {sr(S_T0)}, {sr(S_T0)}, {sr(S_RGJ)}
                  s_lshl_b32 {sr(S_T0)}, {sr(S_T0)}, 7
                  s_add_u32 {sr(S_T0)}, {sr(S_T0)}, {WS_G}
                  s_mov_b32 {sr(S_T2)}, {hex(f2u(LOG2E))}
                  v_mul_f32 {vr(HDG)}, {sr(S_T2)}, {vr(HDG)}
                  v_exp_f32 {vr(HDG)}, -{vr(HDG)}
                  s_nop 0
                  v_add_f32 {vr(HDG)}, 1.0, {vr(HDG)}
                  v_rcp_f32 {vr(HDG)}, {vr(HDG)}
                  s_mov_b32 exec_hi, 0
                  buffer_store_dword {vr(HDG)}, {vr(V_L4)}, {sr(S_WS,4)}, {sr(S_T0)} offen sc1
                  s_mov_b32 exec_hi, -1""")
    a(f"""s_bitcmp1_b32 {sr(S_HG)}, 0
          s_cbranch_scc1 L_jobV""")
    job(False)
    a("s_branch L_jobdone")
    a.label("L_jobV")
    job(True)
    a.label("L_jobdone")
    a.vm = []
    a(f"""s_lshl_b32 {sr(S_T0)}, {sr(S_SEG)}, 11
          s_add_u32 {sr(S_T0)}, {sr(S_T0)}, {sr(S_T1)}
          s_add_u32 {sr(S_T0)}, {sr(S_T0)}, {WS_KV}
          s_nop 1
          v_cvt_pk_bf16_f32 {vr(HD+4)}, {vr(HD)}, {vr(HD+1)}
          v_cvt_pk_bf16_f32 {vr(HD+5)}, {vr(HD+2)}, {vr(HD+3)}
          v_mov_b32 {vr(HX)}, {vr(HD+4)}
          v_mov_b32 {vr(HX+1)}, {vr(V_TAG)}
          v_mov_b32 {vr(HX+2)}, {vr(HD+5)}
          v_mov_b32 {vr(HX+3)}, {vr(V_TAG)}
          s_lshl_b32 {sr(S_T1)}, {sr(S_SEG)}, 2
          s_and_b32 {sr(S_T2)}, {sr(S_HG)}, 3
          s_add_u32 {sr(S_T1)}, {sr(S_T1)}, {sr(S_T2)}
          s_lshl_b32 {sr(S_T1)}, {sr(S_T1)}, 10
          s_add_u32 {sr(S_T1)}, {sr(S_T1)}, {WS_KVT}
          buffer_store_dwordx4 {vr(HX,4)}, {vr(V_L16)}, {sr(S_WS,4)}, {sr(S_T1)} offen {"" if opts.get("plaint", 0) else "sc1"}
          v_mov_b32 {vr(14)}, 0
          s_lshl_b32 {sr(S_T1)}, s2, 8
          s_add_u32 {sr(S_T1)}, {sr(S_T1)}, {WS_ACC}
          buffer_store_dwordx2 {vr(HD+4,2)}, {vr(13)}, {sr(S_WS,4)}, {sr(S_T0)} offen sc1
          buffer_store_dword {vr(14)}, {vr(V_L4)}, {sr(S_WS,4)}, {sr(S_T1)} offen sc1""")
    stamp(1)
    C_SIG = opts.get("c_sig", 4)
    for c in range(2, 8):
        a("s_barrier")
        if c == 2: kv_setup()
        if c == 3: tg_setup(0)
        if c == C_SIG:
            a("s_waitcnt vmcnt(0)")
            flag_store(S_T3)
            stamp(2)
        if c == C_TG: tg_loads()
    stamp(3)
    tg_finish("L_tg0", 0)
    stamp(4)
    a("s_barrier")
    a.label("L_kv01")
    kv_pass({opts.get("n1", 8): 1})
    a("s_branch L_kvend")

    a.label("L_a1")
    a.vm = []
    LV = [16, 20]
    SO = [S_U0, S_U1]
    a(f"""s_setprio 3
          v_lshrrev_b32 {vr(V_T0)}, 1, {vr(V_LANE)}
          v_and_b32 {vr(V_T0)}, 3, {vr(V_T0)}
          v_bfe_u32 {vr(V_T1)}, {vr(V_LANE)}, 4, 1
          v_xor_b32 {vr(V_T0)}, {vr(V_T0)}, {vr(V_T1)}
          v_lshlrev_b32 {vr(V_T0)}, 5, {vr(V_T0)}
          v_and_b32 {vr(V_T1)}, 1, {vr(V_LANE)}
          v_lshl_add_u32 {vr(V_T0)}, {vr(V_T1)}, 4, {vr(V_T0)}
          v_lshrrev_b32 {vr(V_T1)}, 3, {vr(V_LANE)}
          v_lshl_add_u32 {vr(LV[0])}, {vr(V_T1)}, 10, {vr(V_T0)}
          v_mul_u32_u24 {vr(V_T1)}, 3072, {vr(V_T1)}
          v_add_u32 {vr(LV[1])}, {vr(V_T1)}, {vr(V_T0)}
          v_xor_b32 {vr(LV[1])}, 64, {vr(LV[1])}""")
    for rg in range(1, 4):
        a(f"""v_add_u32 {vr(LV[0]+rg)}, {rg*(8192-1024)}, {vr(LV[0])}
              v_add_u32 {vr(LV[1]+rg)}, {rg*(24576-1024)}, {vr(LV[1])}""")
    a(f"""s_lshl_b32 {sr(SO[0])}, {sr(S_HG)}, 7
          s_lshl_b32 {sr(SO[1])}, {sr(S_HGQ)}, 7
          s_waitcnt lgkmcnt(0)
          s_load_dword {sr(S_TAG)}, {sr(S_KA+22,2)}, {WS_E}""")
    srd(S_W, 8, 0x80000)
    srd(S_WJ, 2, 0x180000)
    def lw(c):
        a(f"""s_xor_b32 {sr(S_T0)}, {sr(S_J)}, {c}
              s_lshl_b32 {sr(S_T1)}, {sr(S_T0)}, 16
              s_add_u32 {sr(S_T1)}, {sr(S_T1)}, {sr(SO[0])}
              s_mul_i32 {sr(S_T2)}, {sr(S_T0)}, 196608
              s_add_u32 {sr(S_T2)}, {sr(S_T2)}, {sr(SO[1])}""")
        for hf in range(2):
            for m in range(2):
                so = [S_T1, S_T2][m]
                a(f"s_mov_b32 m0, {RSLOT[c % 4] + m*8192 + hf*4096}")
                a("s_nop 0" if hf == 0 else f"s_add_u32 {sr(so)}, {sr(so)}, {32768 if m == 0 else 98304}")
                for rg in range(4):
                    a.vmem(f"buffer_load_dwordx4 {vr(LV[m]+rg)}, {sr(S_W if m == 0 else S_WJ,4)}, {sr(so)} offen offset:{rg*1024} lds", f"w{c}")
    NPRE = opts.get("npre", 2)
    if opts.get("lst"): stamp(18)
    for c in range(NPRE): lw(c)
    if opts.get("lst"): stamp(19)
    kv_setup(); rot_setup(); tg_setup(1)
    tag_setup()
    nxt = NPRE
    for c in range(8):
        a.wait_vm(f"w{c}")
        if opts.get("lst"): stamp(20 + c) if c < 4 else None
        a("s_barrier")
        if opts.get("lst"): stamp(24 + c)
        k = 0
        while nxt <= min(7, c + 3) and k < 2:
            lw(nxt); nxt += 1; k += 1
        if c == max(C_TG, 5):
            tg_loads()
            a.vm += ["tg"] * 16
    tg_finish("L_tg1", 1)
    stamp(4)
    a("""s_barrier
         s_branch L_kv01""")

    a.label("L_a23")
    a.vm = []
    a(f"""s_setprio 3
          s_sub_u32 {sr(S_T1)}, {sr(S_WAVE)}, 8
          s_lshl_b32 {sr(S_T2)}, {sr(S_T1)}, 8
          s_xor_b32 {sr(S_T0)}, {sr(S_T0)}, {sr(S_T2)}
          s_lshl_b32 {sr(S_T1)}, {sr(S_T1)}, 14
          s_add_u32 {sr(S_T1)}, {sr(S_T1)}, {L_X}
          s_waitcnt lgkmcnt(0)
          s_mov_b32 {sr(S_X)}, {sr(S_KA+0)}
          s_mov_b32 {sr(S_X+1)}, {sr(S_KA+1)}
          s_load_dword {sr(S_TAG)}, {sr(S_KA+22,2)}, {WS_E}""")
    tag_setup()
    XB = opts.get("xb", 0)
    for c in range(XB): a("s_barrier")
    for i in range(3):
        a(f"""s_add_u32 {sr(S_T3)}, {sr(S_RGJ)}, {i+1}
              s_and_b32 {sr(S_T3)}, {sr(S_T3)}, 3
              s_lshl_b32 {sr(S_T2)}, {sr(S_T3)}, 10
              s_add_u32 {sr(S_U0)}, {sr(S_T2)}, {sr(S_T1)}
              s_lshl_b32 {sr(S_T2)}, {sr(S_T3)}, 14
              s_add_u32 {sr(S_U1)}, {sr(S_T2)}, {sr(S_T0)}""")
        if i > 0 or XB == 0 or True:
            a("s_barrier")
        for k in range(4):
            a(f"s_add_u32 m0, {sr(S_U0)}, {k*4096 - (k%2)*64}")
            a(f"s_xor_b32 {sr(S_U1)}, {sr(S_U1)}, 128" if k == 2 else "s_nop 0")
            a(f"buffer_load_dwordx4 {vr(V_XOFF)}, {sr(S_X,4)}, {sr(S_U1)} offen offset:{(k%2)*64} lds")
        if i == opts.get("kpf", 1):
            srd(S_WOB, 2, 0x180000)
            a(f"""v_lshrrev_b32 {vr(V_T0)}, 3, {vr(V_LANE)}
                  v_mul_u32_u24 {vr(V_T0)}, 3072, {vr(V_T0)}
                  v_and_b32 {vr(V_T1)}, 7, {vr(V_LANE)}
                  v_lshl_add_u32 {vr(V_T0)}, {vr(V_T1)}, 7, {vr(V_T0)}
                  s_mul_i32 {sr(S_T2)}, s2, 6144
                  s_sub_u32 {sr(S_T3)}, {sr(S_WAVE)}, 9
                  s_lshl_b32 {sr(S_T3)}, {sr(S_T3)}, 10
                  s_add_u32 {sr(S_T2)}, {sr(S_T2)}, {sr(S_T3)}
                  s_mov_b64 exec, 0xffff
                  buffer_load_dword {vr(V_FLG)}, {vr(V_T0)}, {sr(S_WOB,4)}, {sr(S_T2)} offen
                  s_mov_b64 exec, -1""")
    assert XB == 0
    kv_setup(); rot_setup(); foff_setup()
    def stageB():
        kv_sample()
        a("s_waitcnt vmcnt(0)")
        kv_spin("L_skvB", False)
        stamp(5)
        kv_dma("L_kvdB", 8, 12)
        a(f"""s_or_b32 {sr(S_T0)}, s2, {sr(S_RT)}
              s_cmp_lg_u32 {sr(S_T0)}, 0
              s_cbranch_scc1 L_noep
              s_mov_b32 {sr(S_T0)}, {WS_E}""")
        flag_store(S_T0)
        a.label("L_noep")
        a.vm = []
    ES = opts.get("es", 5)
    for c in range(3, ES + 1):
        if c == 4: a("s_waitcnt vmcnt(0)")
        a("s_barrier")
    bars_ = {}
    st = -1
    for c in range(ES + 1, 8):
        bars_[st] = bars_.get(st, 0) + 1
        st = 1 if st < 0 else st + opts.get("esp", 1)
    ne, n2 = opts.get("ne", 6), opts.get("n2", 11)
    assert n2 >= ne + 4
    bars_[ne] = bars_.get(ne, 0) + 1
    bars_[n2] = bars_.get(n2, 0) + 1
    kv_pass(bars_, {ne: stageB})

    a.label("L_kvend")
    stamp(12)
    a(f"""v_add_u32 {vr(V_XA0)}, {sr(S_KM)}, {vr(V_L16)}
          s_nop 8
          s_cmp_lt_u32 {sr(S_AUX)}, 2
          s_cbranch_scc1 L_kcvt""")
    phi(KACC[0], 32, 56)
    a(f"""s_cmp_eq_u32 {sr(S_AUX)}, 2
          s_cselect_b32 {sr(S_WOA)}, {sr(S_KA+4)}, {sr(S_KA+14)}
          s_cselect_b32 {sr(S_WOA+1)}, {sr(S_KA+5)}, {sr(S_KA+15)}
          s_mov_b32 {sr(S_WOA+2)}, 0x80000
          s_mov_b32 {sr(S_WOA+3)}, 0x20000
          v_lshlrev_b32 {vr(V_T0)}, 7, {vr(V_LANE)}
          s_lshl_b32 {sr(S_T0)}, s2, 11
          s_mov_b64 exec, 0xffff
          buffer_load_dword {vr(V_FLG)}, {vr(V_T0)}, {sr(S_WOA,4)}, {sr(S_T0)} offen
          s_mov_b64 exec, -1""")
    a.label("L_kcvt")
    for f in range(4):
        for i in range(4):
            a(f"v_cvt_pk_bf16_f32 {vr(56+4*f+i)}, {vr(KACC[0]+8*f+2*i)}, {vr(KACC[0]+8*f+2*i+1)}")
        a(f"ds_write_b128 {vr(V_XA0)}, {vr(56+4*f,4)} offset:{f*1024}")
    a(f"""v_add_u32 {vr(V_T0)}, {sr(S_KM)}, {vr(V_L4)}
          v_add_u32 {vr(V_T1)}, {L_HI}, {vr(V_L4)}
          s_waitcnt lgkmcnt(0)
          ds_write_b32 {vr(V_T0)}, {vr(V_TAG)} offset:4096
          s_mov_b32 {sr(S_SPIN)}, 0""")
    stamp(13)
    a.label("L_rdv")
    for k in range(4):
        a(f"ds_read_b32 {vr(72+k)}, {vr(V_T1)} offset:{4096 + k*8192}")
    a(f"""s_waitcnt lgkmcnt(0)
          v_min3_u32 {vr(76)}, {vr(72)}, {vr(73)}, {vr(74)}
          v_max3_u32 {vr(77)}, {vr(72)}, {vr(73)}, {vr(74)}
          v_min3_u32 {vr(76)}, {vr(76)}, {vr(75)}, {vr(V_TAG)}
          v_max3_u32 {vr(77)}, {vr(77)}, {vr(75)}, {vr(V_TAG)}
          v_cmp_ne_u32 vcc, {vr(76)}, {vr(77)}
          s_cbranch_vccz L_rdv_ok
          s_sleep 4
          s_add_u32 {sr(S_SPIN)}, {sr(S_SPIN)}, 1
          s_cmp_lt_u32 {sr(S_SPIN)}, 1000000
          s_cbranch_scc1 L_rdv""")
    a.label("L_rdv_ok")
    a(f"""s_cmp_lt_u32 {sr(S_AUX)}, 2
          s_cbranch_scc1 L_a01b""")
    rot_setup()
    kv_dma("L_kvdC", 32, 16)
    a("s_waitcnt vmcnt(0)")
    stamp(14)
    if ts: ts_out()
    a("s_endpgm")

    a.label("L_a01b")
    HV, HK_, HKV, HZ, HON = 56, 72, 16, 32, 52
    a(f"""s_lshl_b32 {sr(S_T0)}, {sr(S_AUX)}, 11
          s_add_u32 {sr(S_T0)}, {sr(S_T0)}, {L_HI}
          v_add_u32 {vr(V_T1)}, {sr(S_T0)}, {vr(V_L16)}""")
    for f in range(4):
        off = (f // 2) * 8192 + (f % 2) * 1024
        a(f"ds_read_b128 {vr(HV+4*f,4)}, {vr(V_T1)} offset:{off}")
        a(f"ds_read_b128 {vr(HK_+4*f,4)}, {vr(V_T1)} offset:{16384 + off}")
    for i in range(4):
        a(f"v_mov_b32 {vr(HON+i)}, {sr(S_ONES)}")
    a(f"""v_bfe_u32 {vr(V_T2)}, {vr(V_LANE)}, 3, 1
          v_lshlrev_b32 {vr(V_T2)}, 11, {vr(V_T2)}
          v_and_b32 {vr(V_T3)}, 3, {vr(V_LANE)}
          v_lshl_add_u32 {vr(V_T2)}, {vr(V_T3)}, 9, {vr(V_T2)}
          v_bfe_u32 {vr(V_T3)}, {vr(V_LANE)}, 4, 1
          v_lshl_add_u32 {vr(V_T2)}, {vr(V_T3)}, 3, {vr(V_T2)}
          v_bfe_u32 {vr(V_T3)}, {vr(V_LANE)}, 2, 1
          v_lshl_add_u32 {vr(V_T2)}, {vr(V_T3)}, 2, {vr(V_T2)}
          s_waitcnt lgkmcnt(0)""")
    for f in range(4):
        a(f"v_mfma_f32_32x32x16_bf16 {vr(HKV,16)}, {vr(HK_+4*f,4)}, {vr(HV+4*f,4)}, {'0' if f==0 else vr(HKV,16)}")
        a(f"v_mfma_f32_32x32x16_bf16 {vr(HZ,16)}, {vr(HON,4)}, {vr(HK_+4*f,4)}, {'0' if f==0 else vr(HZ,16)}")
    a(f"""s_lshl_b32 {sr(S_T0)}, {sr(S_HGK)}, 1
          s_add_u32 {sr(S_T0)}, {sr(S_T0)}, {sr(S_AUX)}
          s_lshl_b32 {sr(S_T0)}, {sr(S_T0)}, 12
          s_add_u32 {sr(S_T0)}, {sr(S_T0)}, {WS_ACC}
          s_nop 7""")
    for r in range(8):
        a(f"v_cndmask_b32 {vr(HKV+r)}, {vr(HKV+8+r)}, {vr(HKV+r)}, {sr(S_VMASK,2)}")
    for r in range(8):
        a(f"buffer_atomic_add_f32 {vr(HKV+r)}, {vr(V_L4)}, {sr(S_WS,4)}, {sr(S_T0)} offen offset:{r*512} sc1")
    a(f"""s_mov_b32 exec_hi, 0
          buffer_atomic_add_f32 {vr(HZ)}, {vr(V_T2)}, {sr(S_WS,4)}, {sr(S_T0)} offen offset:256 sc1
          s_mov_b32 exec_hi, -1
          s_lshl_b32 {sr(S_T3)}, {sr(S_HGK)}, 8
          s_lshl_b32 {sr(S_T0)}, {sr(S_QB)}, 1
          s_add_u32 {sr(S_T0)}, {sr(S_T0)}, {sr(S_AUX)}
          s_lshl_b32 {sr(S_T0)}, {sr(S_T0)}, 2
          s_add_u32 {sr(S_T0)}, {sr(S_T0)}, {sr(S_T3)}
          s_add_u32 {sr(S_T0)}, {sr(S_T0)}, {WS_FA}
          s_lshl_b32 {sr(S_T3)}, {sr(S_HGQ)}, 8
          s_add_u32 {sr(S_T3)}, {sr(S_T3)}, {WS_FA}
          s_waitcnt vmcnt(0)""")
    flag_store(S_T0)
    stamp(15)
    a(f"""s_cmp_eq_u32 {sr(S_AUX)}, 1
          s_cbranch_scc1 L_a1b
          s_barrier
          s_mov_b32 {sr(S_SPIN)}, 0""")
    a.label("L_sfa")
    a(f"""buffer_load_dword {vr(V_FLG)}, {vr(V_L4)}, {sr(S_WS,4)}, {sr(S_T3)} offen sc1
          s_waitcnt vmcnt(0)
          v_cmp_ne_u32 vcc, {vr(V_FLG)}, {vr(V_TAG)}
          s_cbranch_vccz L_sfa_ok
          s_add_u32 {sr(S_SPIN)}, {sr(S_SPIN)}, 1
          s_cmp_lt_u32 {sr(S_SPIN)}, 100000
          s_cbranch_scc1 L_sfa""")
    a.label("L_sfa_ok")
    stamp(16)
    if ts: ts_out()
    a("""s_barrier
         s_endpgm""")

    a.label("L_a1b")
    srd(S_WOA, 4, 0x80000)
    srd(S_WOB, 14, 0x80000)
    omap()
    swz64(V_WOFF, 1024)
    stamp(14)
    a("s_barrier")
    def wodma(lbl, srdw, r0, nrows, dst):
        a(f"""s_lshl_b32 {sr(S_T0)}, {sr(S_NS)}, 7
              s_add_u32 {sr(S_T0)}, {sr(S_T0)}, {r0*1024}
              s_mov_b32 m0, {dst}""")
        a.label(lbl)
        a("s_waitcnt vmcnt(40)")
        for i in range(4):
            a(f"buffer_load_dwordx4 {vr(V_WOFF)}, {sr(srdw,4)}, {sr(S_T0)} offen lds")
            a(f"""s_add_u32 m0, m0, 1024
                  s_add_u32 {sr(S_T0)}, {sr(S_T0)}, 8192""")
        a(f"""s_cmp_lt_u32 m0, {dst + nrows*128}
              s_cbranch_scc1 {lbl}""")
    wodma("L_woa", S_WOA, 0, 512, 0)
    stamp(15)
    a("s_barrier")
    wodma("L_wob0", S_WOB, 0, 256, L_HI)
    a("s_waitcnt vmcnt(0)")
    stamp(16)
    a("s_barrier")
    wodma("L_wob1", S_WOB, 256, 256, 65536)
    a("s_waitcnt vmcnt(0)")
    if ts:
        stamp(17)
        ts_out()
    a("s_endpgm")
    a.label("L_codeend")

    head = open("cdna_kernels/" + NAME + ".s.ref").read().split("\n")
    hdr = [l for l in head if l.startswith(";") and "@launch" not in l and "Override" not in l and "grid=ceil" not in l]
    out = "\n".join(hdr) + f"\n; @launch grid=(256,1,1) block=({NWAVE*64},1,1) lds={LDS_SIZE}\n"
    out += f""".amdgcn_target "amdgcn-amd-amdhsa--gfx950"
.text
.globl {NAME}_kernel
.p2align 8
.type {NAME}_kernel,@function
"""
    out += a.text()
    out += f""".section .rodata,"a"
.p2align 6
.amdhsa_kernel {NAME}_kernel
  .amdhsa_next_free_vgpr {NVGPR}
  .amdhsa_next_free_sgpr 102
  .amdhsa_accum_offset {NVGPR}
  .amdhsa_group_segment_fixed_size 0
  .amdhsa_kernarg_size 96
  .amdhsa_user_sgpr_count 2
  .amdhsa_user_sgpr_kernarg_segment_ptr 1
  .amdhsa_system_sgpr_workgroup_id_x 1
.end_amdhsa_kernel
"""
    return out

if __name__ == "__main__":
    opts = {}
    outp = "cdna_kernels/" + NAME + ".s"
    for arg in sys.argv[1:]:
        if arg.startswith("-o"):
            outp = arg[2:]
        elif "=" in arg:
            k, v = arg.split("=")
            opts[k] = int(v)
        else:
            opts[arg] = True
    open(outp, "w").write(gen(opts))
    print("wrote", outp)
```

```python
import sys, math, struct

NAME = "gated_mix__linear_attn_block__grouped_kv_mqa__prompt"

def f2u(x):
    return struct.unpack("<I", struct.pack("<f", x))[0]

class Asm:
    def __init__(self):
        self.lines = []
        self.vm = []
    def __call__(self, s):
        for l in s.split("\n"):
            l = l.strip()
            if l:
                self.lines.append("    " + l)
    def label(self, l):
        self.lines.append(l + ":")
    def vmem(self, s, tag):
        self(s)
        self.vm.append(tag)
        assert len(self.vm) <= 63
    def vm_n(self, tag):
        idx = max(i for i, t in enumerate(self.vm) if t == tag)
        return len(self.vm) - 1 - idx
    def drop_to(self, n):
        self.vm = self.vm[len(self.vm) - n:] if n else []
    def wait_vm(self, tag, extra=""):
        n = 0 if tag is None else self.vm_n(tag)
        self.drop_to(n)
        self(f"s_waitcnt vmcnt({n}) {extra}".strip())
    def text(self):
        return "\n".join(self.lines) + "\n"

def vr(a, n=1):
    return f"v{a}" if n == 1 else f"v[{a}:{a+n-1}]"
def sr(a, n=1):
    return f"s{a}" if n == 1 else f"s[{a}:{a+n-1}]"

WS_E = 0x000000
WS_FKV = 0x000400
WS_FA = 0x001000
WS_FO = 0x004000
WS_G = 0x014000
WS_KV = 0x020000
WS_ACC = 0x040000
WS_KVT = 0x080000
WS_OA = 0x200000
WS_OB = 0x208000
WS_DBG1 = 0x600000
WS_DBG2 = 0x800000
WS_TS = 0xA00000
WS_SIZE = 0x1000000
L_JW = 0
L_X = 65536
L_HI = 131072
L_GW = L_HI + 16384
RSLOT = [16384, 32768, 49152, L_HI]
LDS_SIZE = 163840
LOG2E = 1.4426950408889634
QSCALE = 0.25 * LOG2E
NVGPR = 168
NWAVE = 12

S_HGQ, S_TAG, S_QO, S_NS, S_RDY = 3, 4, 5, 6, 7
S_X, S_W, S_WJ = 8, 12, 16
S_EPS, S_ONES, S_RGJ, S_HGK = 20, 21, 22, 23
S_XMASK, S_HEADA, S_AUX = 24, 26, 27
S_WOA, S_WOB, S_OUT, S_DBG, S_WS = 28, 32, 36, 40, 44
S_WAVE, S_QB, S_HG, S_RT, S_HH = 48, 49, 50, 51, 52
S_T0, S_T1, S_T2, S_T3 = 53, 54, 55, 56
S_U0, S_U1, S_U2, S_U3 = 57, 58, 59, 60
S_SEG, S_SPIN, S_HEAD = 61, 62, 63
S_VMASK, S_RT32, S_RO32, S_SAVE = 64, 66, 67, 40
S_LOG2E, S_QS = 70, 72
S_TS = 74
S_J = 69
S_XCC, S_FAST = 18, 19
S_KA = 76

def gen(opts):
    ts = opts.get("ts", False)
    dbg = opts.get("dbg", False)
    a = Asm()
    V_STAMP = NVGPR - 1

    def stamp(i):
        if "dly" in opts:
            if i == opts.get("dly0", 0): a("s_memrealtime s[74:75]")
            if i == opts["dly"]: a("s_memrealtime s[100:101]")
        if not ts: return
        a(f"""s_memrealtime {sr(S_TS,2)}
              s_memtime s[100:101]
              s_waitcnt lgkmcnt(0)
              v_writelane_b32 v{V_STAMP}, {sr(S_TS)}, {i}
              v_writelane_b32 v{V_STAMP}, s100, {32+i}""")

    V_LANE = 1
    V_T0, V_T1, V_T2, V_T3 = 2, 3, 4, 5
    V_XOFF, V_WOFF = 6, 7
    V_XA0, V_XA1, V_WA = 8, 9, 10
    V_L16, V_G, V_IDX, V_KA, V_VA = 11, 12, 13, 14, 15
    V_QF, V_PQ = 16, 20
    V_ACCQ = 24
    V_FB = [40, 72]
    V_O, V_C, V_KF = 104, 120, 136
    V_VF = [140, 148]
    V_L4, V_FLG, V_TAG, V_WOA0, V_WOA1, V_WA3 = 156, 157, 158, 159, 160, 161
    V_PK = 162
    V_S = [24, 40]
    V_AC, V_OA = 56, 72
    V_FA, V_FBB, V_WO = 56, 120, 88
    V_OUT = [24, 40]

    def srd(s, ka, size):
        a(f"""s_mov_b32 {sr(s)}, {sr(S_KA+ka)}
              s_mov_b32 {sr(s+1)}, {sr(S_KA+ka+1)}
              s_mov_b32 {sr(s+2)}, {hex(size)}
              s_mov_b32 {sr(s+3)}, 0x20000""")
    def flag_store(soff):
        a(f"""s_mov_b64 exec, 1
              buffer_store_dword {vr(V_TAG)}, {vr(V_L4)}, {sr(S_WS,4)}, {sr(soff)} offen sc1
              s_mov_b64 exec, -1""")
    def flag_load(soff):
        a(f"""s_mov_b32 exec_hi, 0
              buffer_load_dword {vr(V_FLG)}, {vr(V_L4)}, {sr(S_WS,4)}, {sr(soff)} offen sc1
              s_mov_b32 exec_hi, -1""")
    def flag_spin(lbl, soff):
        a(f"s_mov_b32 {sr(S_SPIN)}, 0")
        a.label(lbl + "_loop")
        a(f"""v_cmp_ne_u32 vcc, {vr(V_FLG)}, {vr(V_TAG)}
              s_cmp_eq_u32 vcc_lo, 0
              s_cbranch_scc1 {lbl}_ok
              s_add_u32 {sr(S_SPIN)}, {sr(S_SPIN)}, 1
              s_cmp_ge_u32 {sr(S_SPIN)}, 100000
              s_cbranch_scc1 {lbl}_ok""")
        flag_load(soff)
        a(f"""s_waitcnt vmcnt(0)
              s_branch {lbl}_loop""")
        a.label(lbl + "_ok")
    def arm_spin(lbl, soff):
        a(f"s_mov_b32 {sr(S_SPIN)}, 0")
        a.label(lbl + "_loop")
        a(f"""v_sub_u32 {vr(V_FLG)}, {vr(V_FLG)}, {vr(V_TAG)}
              v_cmp_lt_u32 vcc, 15, {vr(V_FLG)}
              s_cmp_eq_u32 vcc_lo, 0
              s_cbranch_scc1 {lbl}_ok
              s_add_u32 {sr(S_SPIN)}, {sr(S_SPIN)}, 1
              s_cmp_ge_u32 {sr(S_SPIN)}, 100000
              s_cbranch_scc1 {lbl}_ok""")
        flag_load(soff)
        a(f"""s_waitcnt vmcnt(0)
              s_branch {lbl}_loop""")
        a.label(lbl + "_ok")
    def tag_setup():
        a(f"""s_waitcnt lgkmcnt(0)
              s_mul_i32 {sr(S_TAG)}, {sr(S_TAG)}, 0x9e3779b1
              s_add_u32 {sr(S_TAG)}, {sr(S_TAG)}, 0x7f4a7c15
              v_mov_b32 {vr(V_TAG)}, {sr(S_TAG)}""")
    def omap():
        a(f"""s_and_b32 {sr(S_QO)}, s2, 7
              s_lshl_b32 {sr(S_QO)}, {sr(S_QO)}, 2
              s_bfe_u32 {sr(S_T1)}, s2, 0x20003
              s_add_u32 {sr(S_QO)}, {sr(S_QO)}, {sr(S_T1)}
              s_lshr_b32 {sr(S_NS)}, s2, 5""")
    def ts_out():
        a(f"""s_mul_i32 {sr(S_T0)}, s2, {NWAVE}
              s_add_u32 {sr(S_T0)}, {sr(S_T0)}, {sr(S_WAVE)}
              s_lshl_b32 {sr(S_T0)}, {sr(S_T0)}, 8
              s_add_u32 {sr(S_T0)}, {sr(S_T0)}, {WS_TS}
              buffer_store_dword v{V_STAMP}, {vr(V_L4)}, {sr(S_WS,4)}, {sr(S_T0)} offen""")
    def phi(src, n, tmp):
        for i in range(0, n, 2):
            a(f"v_pk_mul_f32 {vr(tmp+i,2)}, {sr(S_LOG2E,2)}, {vr(src+i,2)}")
        for i in range(n):
            a(f"v_exp_f32 {vr(tmp+i)}, {vr(tmp+i)} clamp")
        for i in range(n):
            a(f"v_max_f32 {vr(src+i)}, {sr(S_EPS)}, {vr(src+i)}")
        for i in range(0, n, 2):
            a(f"v_pk_add_f32 {vr(src+i,2)}, {vr(src+i,2)}, {vr(tmp+i,2)}")

    MAP = opts.get("map", 48)
    a.label(f"{NAME}_kernel")
    a(f"""s_cmp_ge_u32 s2, 256
          s_cbranch_scc1 L_end
          s_load_dwordx16 {sr(S_KA,16)}, s[0:1], 0
          s_load_dwordx8 {sr(S_KA+16,8)}, s[0:1], 64
          v_and_b32 {vr(V_LANE)}, 63, v0
          v_lshrrev_b32 {vr(V_T0)}, 6, v0
          s_and_b32 {sr(S_T0)}, s2, {7 if MAP == 48 else 1}
          v_readfirstlane_b32 {sr(S_WAVE)}, {vr(V_T0)}
          s_lshl_b32 {sr(S_T0)}, {sr(S_T0)}, 2
          s_bfe_u32 {sr(S_T1)}, s2, 0x20003
          s_add_u32 {sr(S_QB if MAP == 48 else S_HG)}, {sr(S_T0)}, {sr(S_T1)}
          s_sub_u32 {sr(S_WAVE)}, {sr(S_WAVE)}, 4
          s_cselect_b32 {sr(S_T1)}, 12, 0
          s_add_u32 {sr(S_WAVE)}, {sr(S_WAVE)}, {sr(S_T1)}
          s_lshr_b32 {sr(S_HG if MAP == 48 else S_QB)}, s2, 5
          {"" if MAP == 48 else f"s_and_b32 {sr(S_T1)}, s2, 6"}
          {"" if MAP == 48 else f"s_lshl_b32 {sr(S_T1)}, {sr(S_T1)}, 2"}
          {"" if MAP == 48 else f"s_add_u32 {sr(S_QB)}, {sr(S_QB)}, {sr(S_T1)}"}
          s_lshr_b32 {sr(S_RGJ)}, {sr(S_HG)}, 1
          s_xor_b32 {sr(S_HGQ)}, {sr(S_HG)}, 1
          s_xor_b32 {sr(S_HGK)}, {sr(S_HG)}, 2""")
    stamp(0)
    a(f"""v_lshrrev_b32 {vr(V_T0)}, 4, {vr(V_LANE)}
          v_xor_b32 {vr(V_T0)}, {vr(V_T0)}, {vr(V_LANE)}
          v_and_b32 {vr(V_T0)}, 3, {vr(V_T0)}
          v_lshlrev_b32 {vr(V_T0)}, 4, {vr(V_T0)}
          v_lshrrev_b32 {vr(V_T1)}, 2, {vr(V_LANE)}
          v_lshl_add_u32 {vr(V_XOFF)}, {vr(V_T1)}, 10, {vr(V_T0)}
          v_lshlrev_b32 {vr(V_L16)}, 4, {vr(V_LANE)}
          v_lshlrev_b32 {vr(V_L4)}, 2, {vr(V_LANE)}
          s_mov_b32 {sr(S_X+2)}, 0x200000
          s_mov_b32 {sr(S_X+3)}, 0x20000
          s_and_b32 {sr(S_J)}, s2, {opts.get("jmask", 7)}
          s_lshl_b32 {sr(S_T0)}, {sr(S_QB)}, 16
          s_lshl_b32 {sr(S_T1)}, {sr(S_J)}, 7
          s_or_b32 {sr(S_T0)}, {sr(S_T0)}, {sr(S_T1)}
          s_cmp_eq_u32 {sr(S_WAVE)}, 8
          s_cbranch_scc1 L_a0
          s_cmp_eq_u32 {sr(S_WAVE)}, 9
          s_cbranch_scc1 L_a1
          s_cmp_ge_u32 {sr(S_WAVE)}, 10
          s_cbranch_scc1 L_a23
          s_and_b32 {sr(S_RT)}, {sr(S_WAVE)}, 1
          s_lshr_b32 {sr(S_HH)}, {sr(S_WAVE)}, 1""")
    if opts.get("cpf", 1):
        W_ = opts.get("cpf", 1)
        a(f"s_getpc_b64 {sr(S_SAVE,2)}")
        a.label("L_pc")
        if W_ == 1:
            a(f"""s_lshr_b32 {sr(S_T2)}, s2, 3
                  s_lshl_b32 {sr(S_T2)}, {sr(S_T2)}, 10
                  s_cmp_eq_u32 {sr(S_WAVE)}, 0
                  s_cselect_b64 {sr(S_XMASK,2)}, 0xff, 1""")
        else:
            a(f"""s_lshl_b32 {sr(S_T2)}, {sr(S_WAVE)}, 12
                  s_bfe_u32 {sr(S_T1)}, s2, 0x20003
                  s_lshl_b32 {sr(S_T1)}, {sr(S_T1)}, 10
                  s_add_u32 {sr(S_T2)}, {sr(S_T2)}, {sr(S_T1)}
                  s_mov_b64 {sr(S_XMASK,2)}, 0xff""")
        a(f"""v_lshlrev_b32 {vr(V_T2)}, 7, {vr(V_LANE)}
              v_add_u32 {vr(V_T2)}, {sr(S_T2)}, {vr(V_T2)}
              v_min_u32 {vr(V_T2)}, L_codeend - L_pc - 4, {vr(V_T2)}
              s_mov_b64 exec, {sr(S_XMASK,2)}""")
        a.vmem(f"global_load_dword {vr(V_FLG)}, {vr(V_T2)}, {sr(S_SAVE,2)}", "cpf")
        a("s_mov_b64 exec, -1")
    S_XOFF, S_XM0 = S_U0, S_U1
    a(f"""s_and_b32 {sr(S_T1)}, {sr(S_WAVE)}, 3
          s_lshr_b32 {sr(S_T2)}, {sr(S_WAVE)}, 2
          s_lshl_b32 {sr(S_T3)}, {sr(S_T1)}, 14
          s_add_u32 {sr(S_XOFF)}, {sr(S_T0)}, {sr(S_T3)}
          s_lshl_b32 {sr(S_T3)}, {sr(S_T2)}, 7
          s_xor_b32 {sr(S_XOFF)}, {sr(S_XOFF)}, {sr(S_T3)}
          s_lshl_b32 {sr(S_XM0)}, {sr(S_T1)}, 10
          s_lshl_b32 {sr(S_T3)}, {sr(S_T2)}, 13
          s_add_u32 {sr(S_XM0)}, {sr(S_XM0)}, {sr(S_T3)}
          s_cmp_eq_u32 {sr(S_T1)}, {sr(S_RGJ)}
          s_cselect_b64 {sr(S_XMASK,2)}, 1, -1""")
    a(f"""v_lshrrev_b32 {vr(V_T0)}, 3, {vr(V_LANE)}
          v_and_b32 {vr(V_T3)}, 7, {vr(V_LANE)}
          v_lshlrev_b32 {vr(V_T3)}, 7, {vr(V_T3)}
          v_lshl_add_u32 {vr(V_T2)}, {vr(V_T0)}, 10, {vr(V_T3)}
          v_mul_u32_u24 {vr(V_T0)}, 3072, {vr(V_T0)}
          v_add_u32 {vr(V_T0)}, {vr(V_T0)}, {vr(V_T3)}
          s_xor_b32 {sr(S_T2)}, {sr(S_WAVE)}, {sr(S_J)}
          s_lshl_b32 {sr(S_T2)}, {sr(S_T2)}, 5
          s_lshr_b32 {sr(S_T3)}, s2, 3
          s_add_u32 {sr(S_T2)}, {sr(S_T2)}, {sr(S_T3)}
          s_lshl_b32 {sr(S_U2)}, {sr(S_T2)}, 11
          s_mul_i32 {sr(S_U3)}, {sr(S_T2)}, 6144
          s_lshl_b32 {sr(S_T3)}, {sr(S_HG)}, 13
          s_lshl_b32 {sr(S_RDY)}, {sr(S_WAVE)}, 10
          s_add_u32 {sr(S_T3)}, {sr(S_T3)}, {sr(S_RDY)}
          s_lshl_b32 {sr(S_RDY)}, {sr(S_QB)}, 16
          s_add_u32 {sr(S_T3)}, {sr(S_T3)}, {sr(S_RDY)}
          s_waitcnt lgkmcnt(0)
          s_mov_b32 {sr(S_X)}, {sr(S_KA+0)}
          s_mov_b32 {sr(S_X+1)}, {sr(S_KA+1)}
          s_load_dword {sr(S_TAG)}, {sr(S_KA+22,2)}, {WS_E}""")
    def xdma(r):
        a(f"s_xor_b32 {sr(S_T1)}, {sr(S_XOFF)}, {r*256}")
        a(f"s_add_u32 m0, {sr(S_XM0)}, {L_X + r*16384}")
        a(f"s_mov_b64 exec, {sr(S_XMASK,2)}")
        a.vmem(f"buffer_load_dwordx4 {vr(V_XOFF)}, {sr(S_X,4)}, {sr(S_T1)} offen lds", f"x{r}")
        a(f"s_add_u32 m0, {sr(S_XM0)}, {L_X + r*16384 + 4096 - 64}")
        a("s_nop 0")
        a.vmem(f"buffer_load_dwordx4 {vr(V_XOFF)}, {sr(S_X,4)}, {sr(S_T1)} offen offset:64 lds", f"x{r}")
        a("s_mov_b64 exec, -1")
    PF = opts.get("pf", 0)
    if not PF & 4: xdma(0)
    if PF & 1:
        a("s_mov_b64 exec, 0xff")
        a.vmem(f"buffer_load_dword {vr(V_FLG)}, {vr(V_T3)}, {sr(S_X,4)}, {sr(S_T3)} offen", "pf")
        a("s_mov_b64 exec, -1")
    if PF & 2:
        srd(S_W, 8, 0x80000)
        srd(S_WOB, 2, 0x180000)
        a(f"""s_lshl_b32 {sr(S_U2)}, s2, 11
              s_mul_i32 {sr(S_U3)}, s2, 6144
              s_cmp_eq_u32 {sr(S_WAVE)}, 0
              s_cselect_b64 exec, 0xffff, 1""")
        a.vmem(f"buffer_load_dword {vr(V_FLG)}, {vr(V_T2)}, {sr(S_W,4)}, {sr(S_U2)} offen", "pf")
        a.vmem(f"buffer_load_dword {vr(V_FLG)}, {vr(V_T0)}, {sr(S_WOB,4)}, {sr(S_U3)} offen", "pf")
        a("s_mov_b64 exec, -1")
    if PF & 4: xdma(0)
    srd(S_WS, 22, WS_SIZE)
    srd(S_OUT, 18, 0x200000)
    omap()
    if opts.get("tlb", 1):
        a(f"""v_lshlrev_b32 {vr(V_T2)}, 15, {vr(V_LANE)}
          s_lshl_b32 {sr(S_T1)}, {sr(S_QB)}, 17
          s_lshl_b32 {sr(S_T2)}, {sr(S_QO)}, 17
          s_cmp_eq_u32 {sr(S_WAVE)}, 1
          s_cselect_b32 {sr(S_T1)}, {sr(S_T1)}, {sr(S_T2)}
          s_add_u32 {sr(S_T1)}, {sr(S_T1)}, {WS_OA}
          s_cmp_eq_u32 {sr(S_WAVE)}, 0
          s_cselect_b32 {sr(S_T1)}, 0x380, {sr(S_T1)}
          s_cselect_b32 exec_lo, 0xffffff, 15
          s_mov_b32 exec_hi, 0
          s_cmp_ge_u32 {sr(S_WAVE)}, 3
          s_cbranch_scc1 L_tlb1
          buffer_load_dword {vr(V_FLG)}, {vr(V_T2)}, {sr(S_WS,4)}, {sr(S_T1)} offen sc1
          s_branch L_tlb2""")
        a.label("L_tlb1")
        a(f"""s_lshl_b32 {sr(S_T1)}, {sr(S_QO)}, 16
          s_mov_b32 exec_lo, 3
          buffer_load_dword {vr(V_FLG)}, {vr(V_T2)}, {sr(S_OUT,4)}, {sr(S_T1)} offen""")
        a.label("L_tlb2")
        a("s_mov_b64 exec, -1")
        a.vm.append("tlb")
    xdma(1)
    def consts():
        a(f"""s_mov_b32 {sr(S_VMASK)}, 0xffff
              s_mov_b32 {sr(S_VMASK+1)}, 0xffff
              s_mov_b32 {sr(S_LOG2E)}, {hex(f2u(LOG2E))}
              s_mov_b32 {sr(S_LOG2E+1)}, {hex(f2u(LOG2E))}
              s_mov_b32 {sr(S_EPS)}, {hex(f2u(1e-6))}
              s_mov_b32 {sr(S_ONES)}, 0x3f803f80""")
    def xfrag_addr(rt_s):
        a(f"""v_and_b32 {vr(V_T0)}, 31, {vr(V_LANE)}
              v_lshrrev_b32 {vr(V_T1)}, 5, {vr(V_LANE)}
              v_bfe_u32 {vr(V_T2)}, {vr(V_LANE)}, 2, 2
              v_xor_b32 {vr(V_T2)}, {vr(V_T2)}, {vr(V_T1)}
              v_lshlrev_b32 {vr(V_T2)}, 4, {vr(V_T2)}
              v_lshl_add_u32 {vr(V_T3)}, {vr(V_T0)}, 6, {vr(V_T2)}
              s_lshl_b32 {sr(S_T0)}, {sr(rt_s)}, 11
              s_add_u32 {sr(S_T0)}, {sr(S_T0)}, {L_X}
              v_add_u32 {vr(V_XA0)}, {sr(S_T0)}, {vr(V_T3)}
              v_xor_b32 {vr(V_XA1)}, 32, {vr(V_XA0)}""")
    consts()
    a(f"""s_lshl_b32 {sr(S_HEAD)}, {sr(S_HG)}, 2
          s_add_u32 {sr(S_HEAD)}, {sr(S_HEAD)}, {sr(S_HH)}
          s_lshl_b32 {sr(S_HEADA)}, {sr(S_HGQ)}, 2
          s_add_u32 {sr(S_HEADA)}, {sr(S_HEADA)}, {sr(S_HH)}
          s_lshl_b32 {sr(S_RT32)}, {sr(S_QB)}, 1
          s_add_u32 {sr(S_RT32)}, {sr(S_RT32)}, {sr(S_RT)}
          s_lshl_b32 {sr(S_RO32)}, {sr(S_QO)}, 1
          s_add_u32 {sr(S_RO32)}, {sr(S_RO32)}, {sr(S_RT)}
          s_mov_b32 {sr(S_QS)}, {hex(f2u(QSCALE))}
          s_mov_b32 {sr(S_QS+1)}, {hex(f2u(QSCALE))}""")
    xfrag_addr(S_RT)
    a(f"""v_bfe_u32 {vr(V_T0)}, {vr(V_LANE)}, 4, 1
          v_bfe_u32 {vr(V_T2)}, {vr(V_LANE)}, 3, 2
          v_xor_b32 {vr(V_T2)}, {sr(S_HH)}, {vr(V_T2)}
          v_lshlrev_b32 {vr(V_T2)}, 5, {vr(V_T2)}
          v_lshl_add_u32 {vr(V_T2)}, {vr(V_T0)}, 13, {vr(V_T2)}
          v_lshl_add_u32 {vr(V_T2)}, {vr(V_T1)}, 10, {vr(V_T2)}
          v_bfe_u32 {vr(V_T0)}, {vr(V_LANE)}, 2, 2
          v_lshl_add_u32 {vr(V_T2)}, {vr(V_T0)}, 7, {vr(V_T2)}
          v_and_b32 {vr(V_T0)}, 3, {vr(V_LANE)}
          v_lshl_add_u32 {vr(V_WA)}, {vr(V_T0)}, 3, {vr(V_T2)}
          v_add_u32 {vr(V_WA3)}, {L_HI}, {vr(V_WA)}""")
    for i in range(8):
        a(f"v_mov_b32 {vr(V_ACCQ+i)}, 0")
        a(f"v_mov_b32 {vr(V_ACCQ+8+i)}, {sr(S_EPS)}")
    a(f"""v_mov_b32 {vr(V_T0)}, {sr(S_ONES)}
          s_mov_b32 {sr(S_SAVE)}, 0x110000
          s_mov_b32 {sr(S_SAVE+1)}, 0x110000
          v_cndmask_b32 {vr(V_T0)}, 0, {vr(V_T0)}, {sr(S_SAVE,2)}""")
    for i in range(16):
        a(f"v_mov_b32 {vr(V_O+i)}, 0")
        a(f"v_mov_b32 {vr(V_VF[0]+i)}, {vr(V_T0)}")
    a(f"""v_mov_b32 {vr(V_IDX)}, 0xdddd
          v_mov_b32 {vr(V_KA)}, {vr(V_L16)}
          v_and_b32 {vr(V_T3)}, 15, {vr(V_LANE)}
          v_lshlrev_b32 {vr(V_T3)}, 4, {vr(V_T3)}
          v_lshl_add_u32 {vr(V_VA)}, {vr(V_T1)}, 8, {vr(V_T3)}""")
    V_GA, V_ACA, V_ARM = V_WOFF, 166, 0
    S_GOFF, S_MYFO, S_INFO, S_ACC = 28, 29, 30, 31
    def ooff(dst, base):
        a(f"""s_lshl_b32 {sr(dst)}, {sr(S_RT32)}, 6
              s_add_u32 {sr(dst)}, {sr(dst)}, {sr(S_HEADA if base == WS_OA else S_HEAD)}
              s_lshl_b32 {sr(dst)}, {sr(dst)}, 10
              s_add_u32 {sr(dst)}, {sr(dst)}, {base}""")
    ooff(S_RDY, WS_OB)
    ooff(S_AUX, WS_OA)
    a(f"""v_and_b32 {vr(V_T0)}, 0x3c, {vr(V_L4)}
          v_bfe_u32 {vr(V_T1)}, {vr(V_LANE)}, 4, 1
          v_lshl_add_u32 {vr(V_GA)}, {vr(V_T1)}, 7, {vr(V_T0)}
          s_lshl_b32 {sr(S_GOFF)}, {sr(S_RT32)}, 8
          s_add_u32 {sr(S_GOFF)}, {sr(S_GOFF)}, {WS_G}
          v_mov_b32 {vr(V_PK)}, -1
          v_mov_b32 {vr(V_PK+1)}, -1
          v_mov_b32 {vr(V_PK+2)}, -1
          v_mov_b32 {vr(V_PK+3)}, -1
          s_lshl_b32 {sr(S_MYFO)}, {sr(S_RT32)}, 5
          s_add_u32 {sr(S_MYFO)}, {sr(S_MYFO)}, {sr(S_HEAD)}
          s_lshl_b32 {sr(S_MYFO)}, {sr(S_MYFO)}, 2
          s_add_u32 {sr(S_MYFO)}, {sr(S_MYFO)}, {WS_FO}
          v_lshrrev_b32 {vr(V_T0)}, 5, {vr(V_LANE)}
          v_lshlrev_b32 {vr(V_T0)}, 9, {vr(V_T0)}
          v_bfe_u32 {vr(V_T1)}, {vr(V_LANE)}, 2, 2
          v_lshl_add_u32 {vr(V_T0)}, {vr(V_T1)}, 7, {vr(V_T0)}
          v_bfe_u32 {vr(V_T1)}, {vr(V_LANE)}, 3, 1
          v_lshl_add_u32 {vr(V_T0)}, {vr(V_T1)}, 6, {vr(V_T0)}
          v_bfe_u32 {vr(V_T1)}, {vr(V_LANE)}, 4, 1
          v_lshl_add_u32 {vr(V_T0)}, {vr(V_T1)}, 5, {vr(V_T0)}
          v_and_b32 {vr(V_T1)}, 3, {vr(V_LANE)}
          v_lshl_add_u32 {vr(V_T0)}, {vr(V_T1)}, 3, {vr(V_T0)}
          s_lshl_b32 {sr(S_T0)}, {sr(S_HH)}, 14
          v_add_u32 {vr(V_WOA0)}, {sr(S_T0)}, {vr(V_T0)}
          v_xor_b32 {vr(V_WOA1)}, 64, {vr(V_WOA0)}
          s_lshl_b32 {sr(S_U0)}, {sr(S_RO32)}, 3
          s_add_u32 {sr(S_U0)}, {sr(S_U0)}, {sr(S_HH)}
          s_lshl_b32 {sr(S_U0)}, {sr(S_U0)}, 13
          s_add_u32 {sr(S_U0)}, {sr(S_U0)}, {WS_OA}
          s_add_u32 {sr(S_U1)}, {sr(S_U0)}, 4096
          s_lshl_b32 {sr(S_U2)}, {sr(S_RO32)}, 4
          s_add_u32 {sr(S_U2)}, {sr(S_U2)}, {sr(S_HH)}
          s_lshl_b32 {sr(S_U2)}, {sr(S_U2)}, 12
          s_add_u32 {sr(S_U2)}, {sr(S_U2)}, {WS_OB}
          s_add_u32 {sr(S_U3)}, {sr(S_U2)}, 16384
          s_and_b32 {sr(S_T1)}, {sr(S_HEADA)}, 1
          v_lshrrev_b32 {vr(V_T1)}, 5, {vr(V_LANE)}
          s_lshl_b32 {sr(S_T2)}, {sr(S_T1)}, 1
          s_add_u32 {sr(S_T2)}, {sr(S_T2)}, 64
          v_add_u32 {vr(V_T1)}, {sr(S_T2)}, {vr(V_T1)}
          v_and_b32 {vr(V_T0)}, 0x2f, {vr(V_LANE)}
          s_lshl_b32 {sr(S_T2)}, {sr(S_T1)}, 4
          v_add_u32 {vr(V_T0)}, {sr(S_T2)}, {vr(V_T0)}
          v_cndmask_b32 {vr(V_T0)}, {vr(V_T0)}, {vr(V_T1)}, {sr(S_VMASK,2)}
          v_lshlrev_b32 {vr(V_ACA)}, 2, {vr(V_T0)}
          s_lshr_b32 {sr(S_ACC)}, {sr(S_HEADA)}, 1
          s_lshl_b32 {sr(S_ACC)}, {sr(S_ACC)}, 12
          s_add_u32 {sr(S_ACC)}, {sr(S_ACC)}, {WS_ACC}
          s_lshl_b32 {sr(S_INFO)}, {sr(S_RO32)}, 7
          s_add_u32 {sr(S_INFO)}, {sr(S_INFO)}, {WS_FO}""")
    tag_setup()
    stamp(1)

    def reads(c):
        fb = V_FB[c % 2]
        s = c % 4
        wa, wo = (V_WA, RSLOT[s]) if s < 3 else (V_WA3, 0)
        r = []
        for p in range(4):
            r.append(f"ds_read_b128 {vr(fb+4*p,4)}, {vr(V_XA0 if p%2==0 else V_XA1)} offset:{(2*c + p//2)*4096}")
            for u in range(2):
                r.append(f"ds_read_b64_tr_b16 {vr(fb+16+4*p+2*u,2)}, {vr(wa)} offset:{wo + p*2048 + u*512}")
        return r
    def mfmas(c):
        fb = V_FB[c % 2]
        return [f"v_mfma_f32_32x32x16_bf16 {vr(V_ACCQ,16)}, {vr(fb+16+4*p,4)}, {vr(fb+4*p,4)}, {vr(V_ACCQ,16)}" for p in range(4)]
    for c in range(8):
        if c in (0, 2):
            a.wait_vm(f"x{c//2}", "lgkmcnt(0)")
        else:
            a("s_waitcnt lgkmcnt(0)")
        a("s_barrier")
        R_ = reads(c)
        if c == 0:
            for r in R_: a(r)
        else:
            M_ = mfmas(c - 1)
            for k in range(4):
                a(M_[k])
                for r in R_[4*k:4*k+4]: a(r)
    for k, m in enumerate(mfmas(7)):
        a(f"s_waitcnt lgkmcnt({9-3*k})")
        a(m)
    stamp(2)
    E = V_FB[0]
    a(f"""s_mov_b32 {sr(S_SEG)}, 0
          s_nop 10""")
    for i in range(0, 8, 2):
        a(f"v_pk_mul_f32 {vr(V_ACCQ+i,2)}, {sr(S_QS,2)}, {vr(V_ACCQ+i,2)}")
    for i in range(4):
        a(f"v_cvt_pk_bf16_f32 {vr(V_QF+i)}, {vr(V_ACCQ+2*i)}, {vr(V_ACCQ+2*i+1)}")
    phi(V_ACCQ + 8, 8, E)
    for i in range(4):
        a(f"v_cvt_pk_bf16_f32 {vr(V_PQ+i)}, {vr(V_ACCQ+8+2*i)}, {vr(V_ACCQ+8+2*i+1)}")
    stamp(3)
    a("s_barrier")
    a("s_setprio 3")
    stamp(4)
    a(f"""ds_read_b128 {vr(V_KF,4)}, {vr(V_KA)}
          s_mov_b64 exec, {sr(S_VMASK,2)}
          ds_read_b128 {vr(V_VF[0],4)}, {vr(V_VA)} offset:1024
          ds_read_b128 {vr(V_VF[0]+4,4)}, {vr(V_VA)} offset:1536
          ds_read_b128 {vr(V_VF[1],4)}, {vr(V_VA)} offset:{2048+1024}
          ds_read_b128 {vr(V_VF[1]+4,4)}, {vr(V_VA)} offset:{2048+1536}
          s_mov_b64 exec, -1
          s_waitcnt lgkmcnt(4)
          v_mfma_f32_32x32x16_bf16 {vr(V_S[0],16)}, {vr(V_KF,4)}, {vr(V_QF,4)}, 0
          ds_read_b128 {vr(V_KF,4)}, {vr(V_KA)} offset:2048""")
    if dbg:
        for reg, hd, base in ((V_QF, S_HEAD, WS_DBG1), (V_PQ, S_HEADA, WS_DBG2)):
            a(f"""s_lshl_b32 {sr(S_T0)}, {sr(S_RT32)}, 5
                  s_add_u32 {sr(S_T0)}, {sr(S_T0)}, {sr(hd)}
                  s_lshl_b32 {sr(S_T0)}, {sr(S_T0)}, 10
                  s_add_u32 {sr(S_T1)}, {sr(S_T0)}, {base}
                  buffer_store_dwordx4 {vr(reg,4)}, {vr(V_L16)}, {sr(S_WS,4)}, {sr(S_T1)} offen""")
    S0 = V_S[0]
    a(f"""s_nop 10
          v_max3_f32 {vr(V_T0)}, {vr(S0)}, {vr(S0+1)}, {vr(S0+2)}
          v_max3_f32 {vr(V_T1)}, {vr(S0+3)}, {vr(S0+4)}, {vr(S0+5)}
          v_max3_f32 {vr(V_T2)}, {vr(S0+6)}, {vr(S0+7)}, {vr(S0+8)}
          v_max3_f32 {vr(V_T3)}, {vr(S0+9)}, {vr(S0+10)}, {vr(S0+11)}
          v_max3_f32 {vr(V_T0)}, {vr(V_T0)}, {vr(S0+12)}, {vr(S0+13)}
          v_max3_f32 {vr(V_T1)}, {vr(V_T1)}, {vr(S0+14)}, {vr(S0+15)}
          v_max3_f32 {vr(V_T0)}, {vr(V_T0)}, {vr(V_T1)}, {vr(V_T2)}
          v_max_f32 {vr(V_T0)}, {vr(V_T0)}, {vr(V_T3)}
          v_mov_b32 {vr(V_T1)}, {vr(V_T0)}
          s_nop 1
          v_permlane32_swap_b32 {vr(V_T0)}, {vr(V_T1)}
          s_nop 1
          v_max_f32 {vr(V_T0)}, {vr(V_T0)}, {vr(V_T1)}
          v_sub_f32 {vr(V_T2)}, 0, {vr(V_T0)}
          v_sub_f32 {vr(V_T3)}, 0, {vr(V_T0)}""")
    for i in range(0, 16, 2):
        a(f"v_pk_add_f32 {vr(S0+i,2)}, {vr(S0+i,2)}, {vr(V_T2,2)}")
    for i in range(0, 16, 2):
        a(f"v_pk_mov_b32 {vr(V_C+i,2)}, {vr(V_T2,2)}, {vr(V_T2,2)} op_sel:[0,1]")
    a(f"""v_exp_f32 {vr(S0)}, {vr(S0)}
          v_exp_f32 {vr(S0+1)}, {vr(S0+1)}
          s_waitcnt lgkmcnt(0)""")
    stamp(5)

    PR = opts.get("ramp", "3210")
    PR = [int(ch) for ch in str(PR).zfill(4)]
    def oload(i, dst, br):
        so = [[S_U0, S_U1], [S_U2, S_U3]][br][i // 4]
        a(f"buffer_load_dwordx4 {vr(dst+4*i,4)}, {vr(V_L16)}, {sr(S_WS,4)}, {sr(so)} offen offset:{(i%4)*1024} sc1")
    def osan():
        for i in range(4):
            a(f"v_min_u32 {vr(V_PK+i)}, -2, {vr(V_PK+i)}")
    ins = {}
    def at(p, slot, fn): ins.setdefault((p, slot), []).append(fn)
    HK = 8 * opts.get("hk", 3)
    H5 = opts.get('h5', 40)
    bars = {8: (2, 11), 32: (0, 13), H5: (2, 17), 48: (0, 19)}
    at(8, "B", lambda: a(f"buffer_load_dword {vr(V_G)}, {vr(V_GA)}, {sr(S_WS,4)}, {sr(S_GOFF)} offen sc1"))
    at(9, "A", lambda: a(f"buffer_store_dwordx4 {vr(V_PK,4)}, {vr(V_L16)}, {sr(S_WS,4)}, {sr(S_RDY)} offen sc1"))
    at(10, "A", lambda: a(f"buffer_store_dwordx4 {vr(V_PK,4)}, {vr(V_L16)}, {sr(S_WS,4)}, {sr(S_AUX)} offen sc1"))
    at(20, "A", lambda: a(f"""s_waitcnt vmcnt(0)
                              s_mov_b64 exec, 1
                              buffer_store_dword {vr(V_TAG)}, {vr(V_L4)}, {sr(S_WS,4)}, {sr(S_MYFO)} offen sc1
                              s_mov_b64 exec, -1"""))
    for r in range(8):
        at(H5 + r // 2, "AB"[r % 2], lambda r=r: a(f"buffer_load_dword {vr(V_AC+r)}, {vr(V_ACA)}, {sr(S_WS,4)}, {sr(S_ACC)} offen offset:{r*512} sc1"))
    at(38, "A", lambda: flag_load(S_INFO))
    PO = opts.get("po", H5 + 7)
    def oa1():
        a("s_waitcnt vmcnt(0)")
        for i in range(4):
            a(f"v_cvt_pk_bf16_f32 {vr(V_AC+8+i)}, {vr(V_AC+2*i)}, {vr(V_AC+2*i+1)}")
    at(PO, "A", oa1)
    at(PO, "B", lambda: a(f"v_mfma_f32_32x32x16_bf16 {vr(V_OA,16)}, {vr(V_AC+8,4)}, {vr(V_PQ,4)}, 0"))
    at(PO + 1, "B", lambda: a(f"""v_add_f32 {vr(V_T0)}, {sr(S_EPS)}, {vr(V_OA)}
                                  v_rcp_f32 {vr(V_T0)}, {vr(V_T0)}"""))
    def oa2():
        a(f"v_mul_f32 {vr(V_T0)}, {vr(V_T0)}, {vr(V_G)}")
        for i in range(0, 8, 2):
            a(f"v_pk_mul_f32 {vr(V_OA+8+i,2)}, {vr(V_OA+8+i,2)}, {vr(V_T0,2)} op_sel_hi:[1,0]")
        for i in range(4):
            a(f"v_cvt_pk_bf16_f32 {vr(V_PK+i)}, {vr(V_OA+8+2*i)}, {vr(V_OA+8+2*i+1)}")
        osan()
        a(f"buffer_store_dwordx4 {vr(V_PK,4)}, {vr(V_L16)}, {sr(S_WS,4)}, {sr(S_AUX)} offen sc1")
        a(f"v_sub_f32 {vr(V_G)}, 1.0, {vr(V_G)}")
    at(PO + 1, "C", oa2)
    def armchk():
        a.label("L_arm")
        a(f"""v_cmp_ne_u32 vcc, {vr(V_FLG)}, {vr(V_TAG)}
              s_cmp_eq_u32 vcc_lo, 0
              s_cbranch_scc0 L_armr""")
        a.label("L_armk")
    at(PO + 3, "A", armchk)
    for i in range(8):
        at(56 + i, "A", lambda i=i: oload(i, V_FA, 0))
    def run(p, slot):
        for fn in ins.get((p, slot), []): fn()
    a(f"s_mov_b32 {sr(S_SPIN)}, 0")
    for p in range(2, 66):
        cur, nxt = V_S[p % 2], V_S[(p + 1) % 2]
        vf = V_VF[p % 2]
        ex = lambda r: a(f"v_exp_f32 {vr(r)}, {vr(r)}")
        if p < 56:
            ramp = {0: PR[0], 4: PR[1], 6: PR[2], 7: PR[3]}
            if p < 8:
                r0 = {2: 2, opts.get("r1", 6): 1, 7: 0}
                if p in r0: a(f"s_setprio {r0[p]}")
            elif p % 8 in ramp: a(f"s_setprio {ramp[p % 8]}")
        else:
            ramp = {56: PR[0], 62: PR[1], 64: PR[2], 65: PR[3]}
            if p in ramp: a(f"s_setprio {ramp[p]}")
        for i in (2, 3, 4, 5): ex(cur + i)
        if p < 65:
            a(f"s_waitcnt lgkmcnt({bars[p][0] if p in bars else 2})")
            a(f"v_mfma_f32_32x32x16_bf16 {vr(nxt,16)}, {vr(V_KF,4)}, {vr(V_QF,4)}, {vr(V_C,16)}")
        else:
            a("s_waitcnt lgkmcnt(0)")
        if p == 32:
            a(f"""v_add_u32 {vr(V_KA)}, 0x10000, {vr(V_KA)}
                  v_add_u32 {vr(V_VA)}, 0x10000, {vr(V_VA)}""")
        if p in bars:
            stamp(bars[p][1])
            a("s_barrier")
            stamp(bars[p][1] + 1)
        off = (p % 32) * 2048
        if p < 64:
            a(f"ds_read_b128 {vr(V_KF,4)}, {vr(V_KA)} offset:{off}")
        elif p == 64:
            a("s_nop 0")
        run(p, "A")
        for i in (6, 7, 8, 9, 10): ex(cur + i)
        a(f"v_smfmac_f32_32x32x32_bf16 {vr(V_O,16)}, {vr(vf,4)}, {vr(cur,8)}, {vr(V_IDX)}")
        run(p, "B")
        for i in (11, 12, 13, 14, 15): ex(cur + i)
        if p < 65:
            ex(nxt); ex(nxt + 1)
        else:
            a("s_nop 1")
        a(f"v_smfmac_f32_32x32x32_bf16 {vr(V_O,16)}, {vr(vf+4,4)}, {vr(cur+8,8)}, {vr(V_IDX)}")
        if p < 64:
            a(f"""s_mov_b64 exec, {sr(S_VMASK,2)}
                  ds_read_b128 {vr(vf,4)}, {vr(V_VA)} offset:{off+1024}
                  ds_read_b128 {vr(vf+4,4)}, {vr(V_VA)} offset:{off+1536}
                  s_mov_b64 exec, -1""")
        run(p, "C")

    VB0, VB1, VC0, VC1 = V_XOFF, V_WOFF, V_PQ, V_PQ + 1
    def wo_one(n, nt):
        b = V_WO + 8 * (n % 4) + 4 * nt
        ad = [V_WOA0, V_WOA1][nt] if n < 8 else ([VB0, VB1][nt] if n < 12 else [VC0, VC1][nt])
        off = n * 2048 if n < 8 else (n % 4) * 2048
        for u in range(2):
            a(f"ds_read_b64_tr_b16 {vr(b+2*u,2)}, {vr(ad)} offset:{off + u*1024}")
    def wo_rd(n):
        wo_one(n, 0); wo_one(n, 1)
    def mm(n, nt):
        src = V_FA + 4 * n if n < 8 else V_FBB + 4 * (n - 8)
        a(f"v_mfma_f32_32x32x16_bf16 {vr(V_OUT[nt],16)}, {vr(V_WO+8*(n%4)+4*nt,4)}, {vr(src,4)}, {'0' if n == 0 else vr(V_OUT[nt],16)}")
    wo_rd(0); wo_rd(1)
    a(f"""s_mov_b32 {sr(S_T0)}, {hex(f2u(2.0**64))}
          s_nop 2""")
    stamp(6)
    a(f"""v_rcp_f32 {vr(V_T0)}, {vr(V_O+8)}
          v_cmp_nle_f32 vcc, {vr(V_O+8)}, {sr(S_T0)}
          v_pk_mul_f32 {vr(V_T2,2)}, {vr(V_O,2)}, 0
          v_pk_fma_f32 {vr(V_T2,2)}, {vr(V_O+2,2)}, 0, {vr(V_T2,2)}
          v_pk_fma_f32 {vr(V_T2,2)}, {vr(V_O+4,2)}, 0, {vr(V_T2,2)}
          v_pk_fma_f32 {vr(V_T2,2)}, {vr(V_O+6,2)}, 0, {vr(V_T2,2)}
          v_cmp_u_f32 {sr(S_SAVE,2)}, {vr(V_T2)}, {vr(V_T3)}
          s_or_b64 vcc, vcc, {sr(S_SAVE,2)}
          s_cbranch_vccnz L_fallback""")
    a.label("L_norm")
    a(f"v_mul_f32 {vr(V_T0)}, {vr(V_T0)}, {vr(V_G)}")
    for i in range(0, 8, 2):
        a(f"v_pk_mul_f32 {vr(V_O+i,2)}, {vr(V_O+i,2)}, {vr(V_T0,2)} op_sel_hi:[1,0]")
    for i in range(4):
        a(f"v_cvt_pk_bf16_f32 {vr(V_PK+i)}, {vr(V_O+2*i)}, {vr(V_O+2*i+1)}")
    osan()
    a(f"buffer_store_dwordx4 {vr(V_PK,4)}, {vr(V_L16)}, {sr(S_WS,4)}, {sr(S_RDY)} offen sc1")
    wo_rd(2)
    a(f"""s_mov_b32 {sr(S_SPIN)}, 0
          s_waitcnt vmcnt(1)""")
    a.label("L_oa")
    a(f"v_max3_u32 {vr(V_FLG)}, {vr(V_FA)}, {vr(V_FA+1)}, {vr(V_FA+2)}")
    for i in range(3, 31, 2):
        a(f"v_max3_u32 {vr(V_FLG)}, {vr(V_FLG)}, {vr(V_FA+i)}, {vr(V_FA+i+1)}")
    a(f"""v_max_u32 {vr(V_FLG)}, {vr(V_FLG)}, {vr(V_FA+31)}
          v_cmp_eq_u32 vcc, -1, {vr(V_FLG)}
          s_cbranch_vccnz L_oar""")
    a.label("L_oak")
    A0, A1, A2, A3 = V_XA0, V_XA1, V_WA, V_KA
    setup = f"""s_lshl_b32 {sr(S_T0)}, {sr(S_HH)}, 13
          s_sub_u32 {sr(S_T1)}, {L_HI}, {sr(S_T0)}
          v_add_u32 {vr(VB0)}, {sr(S_T1)}, {vr(V_WOA0)}
          v_add_u32 {vr(VB1)}, {sr(S_T1)}, {vr(V_WOA1)}
          s_sub_u32 {sr(S_T1)}, 65536, {sr(S_T0)}
          v_add_u32 {vr(VC0)}, {sr(S_T1)}, {vr(V_WOA0)}
          v_add_u32 {vr(VC1)}, {sr(S_T1)}, {vr(V_WOA1)}
          v_and_b32 {vr(V_T0)}, 31, {vr(V_LANE)}
          v_lshrrev_b32 {vr(V_T1)}, 5, {vr(V_LANE)}
          v_and_b32 {vr(V_T2)}, 7, {vr(V_LANE)}
          v_xor_b32 {vr(V_T1)}, {vr(V_T1)}, {vr(V_T2)}
          v_lshlrev_b32 {vr(V_T1)}, 4, {vr(V_T1)}
          v_lshl_add_u32 {vr(V_T0)}, {vr(V_T0)}, 8, {vr(V_T1)}
          s_lshl_b32 {sr(S_T0)}, {sr(S_HH)}, 14
          s_lshl_b32 {sr(S_T1)}, {sr(S_RT)}, 13
          s_add_u32 {sr(S_T0)}, {sr(S_T0)}, {sr(S_T1)}
          v_add_u32 {vr(V_T0)}, {sr(S_T0)}, {vr(V_T0)}
          v_xor_b32 {vr(V_T1)}, 32, {vr(V_T0)}
          v_xor_b32 {vr(V_T2)}, 64, {vr(V_T0)}
          v_xor_b32 {vr(V_T3)}, 96, {vr(V_T0)}
          v_lshrrev_b32 {vr(A0)}, 3, {vr(V_LANE)}
          v_and_b32 {vr(A1)}, 7, {vr(V_LANE)}
          v_lshlrev_b32 {vr(A2)}, 1, {vr(A1)}
          v_xor_b32 {vr(A2)}, {vr(A2)}, {vr(A0)}
          v_lshlrev_b32 {vr(A2)}, 4, {vr(A2)}
          v_lshl_add_u32 {vr(A2)}, {vr(A0)}, 8, {vr(A2)}
          s_lshl_b32 {sr(S_T0)}, {sr(S_WAVE)}, 11
          v_add_u32 {vr(A2)}, {sr(S_T0)}, {vr(A2)}
          v_xor_b32 {vr(A3)}, 16, {vr(A2)}
          v_lshlrev_b32 {vr(A1)}, 4, {vr(A1)}
          v_lshl_add_u32 {vr(A0)}, {vr(A0)}, 10, {vr(A1)}
          s_lshl_b32 {sr(S_RDY)}, {sr(S_QO)}, 16
          s_lshl_b32 {sr(S_T1)}, {sr(S_WAVE)}, 13
          s_add_u32 {sr(S_RDY)}, {sr(S_RDY)}, {sr(S_T1)}
          s_lshl_b32 {sr(S_T1)}, {sr(S_NS)}, 7
          s_add_u32 {sr(S_RDY)}, {sr(S_RDY)}, {sr(S_T1)}""".split("\n")
    OBAT = opts.get("obat", 5)
    sched = {i: [] for i in range(8)}
    for k in range(8):
        sched[min(7, OBAT + (k * (8 - OBAT)) // 8)].append(k)
    per = (len(setup) + 3) // 4
    def chk(i):
        f = V_FBB + 4 * i
        a(f"s_waitcnt vmcnt({7-i})")
        a.label(f"L_ob{i}")
        a(f"""v_max3_u32 {vr(V_FLG)}, {vr(f)}, {vr(f+1)}, {vr(f+2)}
              v_max_u32 {vr(V_FLG)}, {vr(V_FLG)}, {vr(f+3)}
              v_cmp_eq_u32 vcc, -1, {vr(V_FLG)}
              s_cbranch_vccnz L_obr{i}""")
        a.label(f"L_obk{i}")
    OBM = opts.get("obm", 8)
    for n in range(12):
        if n == 8: stamp(7)
        if OBM and n == OBM:
            a("s_barrier")
            for k in range(8): oload(k, V_FBB, 1)
        if n >= 8: chk(n - 8)
        a(f"s_waitcnt lgkmcnt({4 * (min(n + 2, 11) - n)})")
        mm(n, 0); mm(n, 1)
        if n < 4:
            for l in setup[n*per:(n+1)*per]: a(l)
        if n + 3 < 12: wo_rd(n + 3)
        if n < 8 and not OBM:
            for k in sched[n]: oload(k, V_FBB, 1)
    if OBM != 8: a("s_barrier")
    stamp(8)
    for n in range(12, 16): wo_one(n, 0)
    for n in range(12, 15): wo_one(n, 1)
    for n in range(12, 16):
        chk(n - 8)
        a(f"s_waitcnt lgkmcnt({12 if n == 12 else 2*(15-n) + 8})")
        mm(n, 0)
        if n == 12: wo_one(15, 1)
    for n in range(12, 16):
        a(f"s_waitcnt lgkmcnt({2*(15-n)})")
        mm(n, 1)
    stamp(9)
    a("s_nop 3")
    for nt in range(2):
        if nt: a("s_nop 3")
        for g in range(4):
            a(f"ds_write_b128 {vr(V_T0+g)}, {vr(V_OUT[nt]+4*g,4)} offset:{nt*128}")
    a("""s_waitcnt lgkmcnt(0)
         s_barrier""")
    RR = V_FA
    for k in range(4):
        a(f"ds_read_b128 {vr(RR+8*k,4)}, {vr(A2)} offset:{k*16384}")
        a(f"ds_read_b128 {vr(RR+8*k+4,4)}, {vr(A3)} offset:{k*16384}")
    for k in range(1, 4):
        a(f"s_waitcnt lgkmcnt({2*(3-k)})")
        for i in range(0, 8, 2):
            a(f"v_pk_add_f32 {vr(RR+i,2)}, {vr(RR+i,2)}, {vr(RR+8*k+i,2)}")
    for i in range(4):
        a(f"v_cvt_pk_bf16_f32 {vr(RR+8+i)}, {vr(RR+2*i)}, {vr(RR+2*i+1)}")
    a(f"buffer_store_dwordx4 {vr(RR+8,4)}, {vr(A0)}, {sr(S_OUT,4)}, {sr(S_RDY)} offen " + ["", "nt", "sc0 sc1", "sc1", "sc1 nt"][opts.get("outf", 0)])
    if "dly" in opts:
        stamp(10)
        a(f"""s_cmp_lg_u32 s2, {opts.get('tswg', 100)}
              s_cbranch_scc1 L_end
              s_cmp_lg_u32 {sr(S_WAVE)}, 0
              s_cbranch_scc1 L_end
              s_memrealtime s[98:99]
              s_waitcnt lgkmcnt(0)
              s_sub_u32 {sr(S_T0)}, s100, s74
              s_lshl_b32 {sr(S_T0)}, {sr(S_T0)}, {opts.get('dsh', 2)}
              s_add_u32 {sr(S_T0)}, {sr(S_T0)}, 500
              s_min_u32 {sr(S_T0)}, {sr(S_T0)}, 30000""")
        a.label("L_dly2")
        a(f"""s_memrealtime s[96:97]
              s_waitcnt lgkmcnt(0)
              s_sub_u32 {sr(S_T1)}, s96, s98
              s_cmp_lt_u32 {sr(S_T1)}, {sr(S_T0)}
              s_cbranch_scc1 L_dly2""")
    if ts:
        stamp(10)
        ts_out()
    a.label("L_end")
    a("s_endpgm")

    a.label("L_armr")
    a(f"""s_add_u32 {sr(S_SPIN)}, {sr(S_SPIN)}, 1
          s_cmp_ge_u32 {sr(S_SPIN)}, 100000
          s_cbranch_scc1 L_armk""")
    flag_load(S_INFO)
    a("""s_waitcnt vmcnt(0)
         s_branch L_arm""")
    a.label("L_oar")
    a(f"""s_add_u32 {sr(S_SPIN)}, {sr(S_SPIN)}, 1
          s_cmp_ge_u32 {sr(S_SPIN)}, 100000
          s_cbranch_scc1 L_oak""")
    for k in range(8): oload(k, V_FA, 0)
    a("""s_waitcnt vmcnt(0)
         s_branch L_oa""")
    RM = opts.get("rm", 1)
    for i in range(8):
        f = V_FBB + 4 * i
        a.label(f"L_obr{i}")
        a(f"""s_add_u32 {sr(S_SPIN)}, {sr(S_SPIN)}, 1
              s_cmp_ge_u32 {sr(S_SPIN)}, 100000
              s_cbranch_scc1 L_obk{i}""")
        if RM == 1:
            if opts.get("slp", 0): a(f"s_sleep {opts['slp']}")
            for k in range(i, 8): oload(k, V_FBB, 1)
            a(f"""s_waitcnt vmcnt({7-i})
                  s_branch L_ob{i}""")
        else:
            if opts.get("slp", 0): a(f"s_sleep {opts['slp']}")
            oload(i, V_FBB, 1)
            a(f"""s_waitcnt vmcnt(0)
                  v_max3_u32 {vr(V_FLG)}, {vr(f)}, {vr(f+1)}, {vr(f+2)}
                  v_max_u32 {vr(V_FLG)}, {vr(V_FLG)}, {vr(f+3)}
                  v_cmp_eq_u32 vcc, -1, {vr(V_FLG)}
                  s_cbranch_vccnz L_obr{i}""")
            for k in range(i + 1, 8): oload(k, V_FBB, 1)
            a(f"s_branch L_obk{i}")

    a.label("L_fallback")
    FS = V_S[0]
    a(f"""v_mov_b32 {vr(V_T0)}, 0xff800000
          s_mov_b32 {sr(S_T0)}, {WS_KV}""")
    a.label("L_fb1")
    a(f"""buffer_load_dwordx4 {vr(V_KF,4)}, {vr(V_L16)}, {sr(S_WS,4)}, {sr(S_T0)} offen sc1
          s_waitcnt vmcnt(0)
          v_mfma_f32_32x32x16_bf16 {vr(FS,16)}, {vr(V_KF,4)}, {vr(V_QF,4)}, 0
          s_nop 15""")
    for i in range(8):
        a(f"v_max3_f32 {vr(V_T0)}, {vr(V_T0)}, {vr(FS+2*i)}, {vr(FS+2*i+1)}")
    a(f"""s_add_u32 {sr(S_T0)}, {sr(S_T0)}, 2048
          s_cmp_lt_u32 {sr(S_T0)}, {WS_KV + 131072}
          s_cbranch_scc1 L_fb1
          v_mov_b32 {vr(V_T1)}, {vr(V_T0)}
          s_nop 1
          v_permlane32_swap_b32 {vr(V_T0)}, {vr(V_T1)}
          s_nop 1
          v_max_f32 {vr(V_T0)}, {vr(V_T0)}, {vr(V_T1)}""")
    for i in range(16):
        a(f"v_sub_f32 {vr(V_C+i)}, 0, {vr(V_T0)}")
        a(f"v_mov_b32 {vr(V_O+i)}, 0")
    a(f"""v_and_b32 {vr(V_VA)}, 0x3ff, {vr(V_VA)}
          s_mov_b32 {sr(S_T0)}, {WS_KV}""")
    a.label("L_fb2")
    a(f"""buffer_load_dwordx4 {vr(V_KF,4)}, {vr(V_L16)}, {sr(S_WS,4)}, {sr(S_T0)} offen sc1
          s_mov_b64 exec, {sr(S_VMASK,2)}
          buffer_load_dwordx4 {vr(V_VF[0],4)}, {vr(V_VA)}, {sr(S_WS,4)}, {sr(S_T0)} offen offset:1024 sc1
          buffer_load_dwordx4 {vr(V_VF[0]+4,4)}, {vr(V_VA)}, {sr(S_WS,4)}, {sr(S_T0)} offen offset:1536 sc1
          s_mov_b64 exec, -1
          s_waitcnt vmcnt(0)
          v_mfma_f32_32x32x16_bf16 {vr(FS,16)}, {vr(V_KF,4)}, {vr(V_QF,4)}, {vr(V_C,16)}
          s_nop 15""")
    for i in range(16):
        a(f"v_exp_f32 {vr(FS+i)}, {vr(FS+i)}")
    a(f"""s_nop 1
          v_smfmac_f32_32x32x32_bf16 {vr(V_O,16)}, {vr(V_VF[0],4)}, {vr(FS,8)}, {vr(V_IDX)}
          v_smfmac_f32_32x32x32_bf16 {vr(V_O,16)}, {vr(V_VF[0]+4,4)}, {vr(FS+8,8)}, {vr(V_IDX)}
          s_add_u32 {sr(S_T0)}, {sr(S_T0)}, 2048
          s_cmp_lt_u32 {sr(S_T0)}, {WS_KV + 131072}
          s_cbranch_scc1 L_fb2
          s_nop 15
          v_rcp_f32 {vr(V_T0)}, {vr(V_O+8)}
          s_nop 0
          s_branch L_norm""")

    H_F4, H_FOFF = 148, 152
    S_ROT = S_HEAD
    def rot_setup():
        a(f"""s_and_b32 {sr(S_ROT)}, s2, 7
              s_lshl_b32 {sr(S_ROT)}, {sr(S_ROT)}, 3""")
    def kv_sample():
        a(f"buffer_load_dwordx4 {vr(H_F4,4)}, {vr(H_FOFF)}, {sr(S_WS,4)}, 0 offen offset:{WS_FKV} sc1")
    def kv_spin(lbl, lo_only):
        a(f"s_mov_b32 {sr(S_SPIN)}, 0")
        a.label(lbl + "_loop")
        a(f"""v_cmp_ne_u32 vcc, {vr(H_F4)}, {vr(V_TAG)}
              v_cmp_ne_u32 {sr(S_SAVE,2)}, {vr(H_F4+1)}, {vr(V_TAG)}
              s_or_b64 vcc, vcc, {sr(S_SAVE,2)}
              v_cmp_ne_u32 {sr(S_SAVE,2)}, {vr(H_F4+2)}, {vr(V_TAG)}
              s_or_b64 vcc, vcc, {sr(S_SAVE,2)}
              v_cmp_ne_u32 {sr(S_SAVE,2)}, {vr(H_F4+3)}, {vr(V_TAG)}
              s_or_b64 vcc, vcc, {sr(S_SAVE,2)}""")
        if lo_only:
            a(f"s_and_b32 {sr(S_SAVE)}, vcc_lo, 0xff\ns_cmp_eq_u32 {sr(S_SAVE)}, 0")
        else:
            a("s_cmp_eq_u64 vcc, 0")
        a(f"""s_cbranch_scc1 {lbl}_ok
              s_add_u32 {sr(S_SPIN)}, {sr(S_SPIN)}, 1
              s_cmp_ge_u32 {sr(S_SPIN)}, 100000
              s_cbranch_scc1 {lbl}_ok""")
        if lo_only: a("s_mov_b64 exec, 0xff")
        kv_sample()
        if lo_only: a("s_mov_b64 exec, -1")
        a(f"""s_waitcnt vmcnt(0)
              s_branch {lbl}_loop""")
        a.label(lbl + "_ok")
    def kv_dma(lbl, s0, n):
        a(f"""s_mul_i32 {sr(S_T0)}, {sr(S_RT)}, {n}
              s_add_u32 {sr(S_T0)}, {sr(S_T0)}, {s0}
              s_add_u32 {sr(S_T2)}, {sr(S_T0)}, {n}""")
        a.label(lbl)
        a(f"""s_add_u32 {sr(S_T1)}, {sr(S_T0)}, {sr(S_ROT)}
              s_and_b32 {sr(S_T1)}, {sr(S_T1)}, 63
              s_lshl_b32 {sr(S_T1)}, {sr(S_T1)}, 11
              s_add_u32 {sr(S_T1)}, {sr(S_T1)}, {WS_KV}
              s_lshl_b32 m0, {sr(S_T0)}, 11
              s_waitcnt vmcnt(40)""")
        for k in range(4):
            a(f"buffer_load_dwordx4 {vr(V_L16)}, {sr(S_WS,4)}, {sr(S_T1)} offen offset:{k*1024} sc1 lds")
        a(f"""s_add_u32 m0, m0, 4096
              s_add_u32 {sr(S_T1)}, {sr(S_T1)}, 4096""")
        for k in range(4):
            a(f"buffer_load_dwordx4 {vr(V_L16)}, {sr(S_WS,4)}, {sr(S_T1)} offen offset:{k*1024} sc1 lds")
        a(f"""s_add_u32 {sr(S_T0)}, {sr(S_T0)}, 4
              s_cmp_lt_u32 {sr(S_T0)}, {sr(S_T2)}
              s_cbranch_scc1 {lbl}""")
    def swz64(dst, stride):
        a(f"""v_lshrrev_b32 {vr(V_T0)}, 3, {vr(V_LANE)}
              v_bfe_u32 {vr(V_T1)}, {vr(V_LANE)}, 4, 1
              v_lshlrev_b32 {vr(V_T1)}, 2, {vr(V_T1)}
              v_xor_b32 {vr(V_T1)}, {vr(V_T1)}, {vr(V_LANE)}
              v_and_b32 {vr(V_T1)}, 7, {vr(V_T1)}
              v_lshlrev_b32 {vr(V_T1)}, 4, {vr(V_T1)}
              v_mul_u32_u24 {vr(V_T0)}, {stride}, {vr(V_T0)}
              v_add_u32 {vr(dst)}, {vr(V_T0)}, {vr(V_T1)}""")

    KACC = [24, 40]
    KB = [56, 68]
    KV0, KV1 = 153, 154
    S_KO, S_KM = S_U2, S_U3
    S_KW = S_WOB
    def kv_setup(init=True):
        srd(S_KW, 2, 0x180000)
        srd(S_WS, 22, WS_SIZE)
        consts()
        swz64(KV0, 3072)
        a(f"""v_add_u32 {vr(KV1)}, {24576 - 1024}, {vr(KV0)}
              s_sub_u32 {sr(S_AUX)}, {sr(S_WAVE)}, 8
              s_and_b32 {sr(S_RT)}, {sr(S_AUX)}, 1
              s_lshl_b32 {sr(S_KM)}, {sr(S_AUX)}, 13
              s_add_u32 {sr(S_KM)}, {sr(S_KM)}, {L_HI}
              s_lshl_b32 {sr(S_KO)}, {sr(S_HGK)}, 7
              s_cmp_lt_u32 {sr(S_AUX)}, 2
              s_cselect_b32 {sr(S_T1)}, 2, 1
              s_cselect_b32 {sr(S_T2)}, 0, {sr(S_EPS)}
              s_lshl_b32 {sr(S_T1)}, {sr(S_T1)}, 10
              s_add_u32 {sr(S_KO)}, {sr(S_KO)}, {sr(S_T1)}""")
        if init:
            for i in range(32):
                a(f"v_mov_b32 {vr(KACC[0]+i)}, {sr(S_T2)}")
        a.split = len(a.lines)
        xfrag_addr(S_RT)
        a(f"""v_lshlrev_b32 {vr(V_T0)}, 10, {vr(V_T1)}
              v_bfe_u32 {vr(V_T1)}, {vr(V_LANE)}, 2, 2
              v_lshl_add_u32 {vr(V_T0)}, {vr(V_T1)}, 7, {vr(V_T0)}
              v_bfe_u32 {vr(V_T1)}, {vr(V_LANE)}, 3, 1
              v_lshl_add_u32 {vr(V_T0)}, {vr(V_T1)}, 6, {vr(V_T0)}
              v_bfe_u32 {vr(V_T1)}, {vr(V_LANE)}, 4, 1
              v_lshl_add_u32 {vr(V_T0)}, {vr(V_T1)}, 5, {vr(V_T0)}
              v_and_b32 {vr(V_T1)}, 3, {vr(V_LANE)}
              v_lshl_add_u32 {vr(V_T0)}, {vr(V_T1)}, 3, {vr(V_T0)}
              v_add_u32 {vr(V_WOA0)}, {sr(S_KM)}, {vr(V_T0)}
              v_xor_b32 {vr(V_WOA1)}, 64, {vr(V_WOA0)}""")
    def kdma(st):
        a(f"s_add_u32 m0, {sr(S_KM)}, {(st % 4)*2048}")
        if st % 4 == 0:
            a(f"""s_xor_b32 {sr(S_U1)}, {sr(S_J)}, {st//4}
                  s_mul_i32 {sr(S_U1)}, {sr(S_U1)}, 196608
                  s_add_u32 {sr(S_U1)}, {sr(S_U1)}, {sr(S_KO)}""")
        else:
            a(f"s_add_u32 {sr(S_U1)}, {sr(S_U1)}, 49152")
        a.vmem(f"buffer_load_dwordx4 {vr(KV0)}, {sr(S_KW,4)}, {sr(S_U1)} offen lds", f"k{st}")
        a.vmem(f"buffer_load_dwordx4 {vr(KV1)}, {sr(S_KW,4)}, {sr(S_U1)} offen offset:1024 lds", f"k{st}")
    def krd(st):
        b = KB[st % 2]
        a(f"ds_read_b128 {vr(b,4)}, {vr(V_XA0 if st%2==0 else V_XA1)} offset:{(st//2)*4096}")
        for nt in range(2):
            for u in range(2):
                a(f"ds_read_b64_tr_b16 {vr(b+4+4*nt+2*u,2)}, {vr(V_WOA0 if nt==0 else V_WOA1)} offset:{(st%4)*2048 + u*512}")
    def kv_pass(bars, after={}, zero=False):
        a.vm = []
        for st in range(4): kdma(st)
        for _ in range(bars.get(-1, 0)): a("s_barrier")
        a.wait_vm("k0")
        for _ in range(bars.get(0, 0)): a("s_barrier")
        krd(0)
        for st in range(32):
            if st + 1 < 32:
                if f"k{st+1}" in a.vm: a.wait_vm(f"k{st+1}")
                for _ in range(bars.get(st + 1, 0)): a("s_barrier")
                if st + 1 in after: after[st + 1]()
                krd(st + 1)
            a(f"s_waitcnt lgkmcnt({5 if st + 1 < 32 else 0})")
            b = KB[st % 2]
            for nt in range(2):
                a(f"v_mfma_f32_32x32x16_bf16 {vr(KACC[nt],16)}, {vr(b,4)}, {vr(b+4+4*nt,4)}, {'0' if (zero and st == 0) else vr(KACC[nt],16)}")
                if nt == (0 if opts.get("ksp", 0) else 1) and st + 4 < 32: kdma(st + 4)
    def foff_setup():
        a(f"""v_add_u32 {vr(H_FOFF)}, {sr(S_ROT)}, {vr(V_LANE)}
              v_and_b32 {vr(H_FOFF)}, 63, {vr(H_FOFF)}
              v_lshlrev_b32 {vr(H_FOFF)}, 4, {vr(H_FOFF)}""")

    TG = 80
    TKA, TVA = 12, 155
    S_TG = S_RDY
    def tg_setup(which):
        a(f"""v_and_b32 {vr(V_T0)}, 15, {vr(V_LANE)}
              v_lshlrev_b32 {vr(V_T0)}, 4, {vr(V_T0)}
              v_bfe_u32 {vr(V_T1)}, {vr(V_LANE)}, 4, 1
              v_lshrrev_b32 {vr(V_T2)}, 5, {vr(V_LANE)}
              v_lshl_add_u32 {vr(TKA)}, {vr(V_T1)}, 9, {vr(V_T0)}
              v_lshl_add_u32 {vr(TKA)}, {vr(V_T2)}, 3, {vr(TKA)}
              v_lshl_add_u32 {vr(TVA)}, {vr(V_T2)}, 8, {vr(V_T0)}
              v_lshl_add_u32 {vr(TVA)}, {vr(V_T1)}, 3, {vr(TVA)}
              s_lshl_b32 {sr(S_TG)}, {sr(S_ROT)}, 12
              s_add_u32 {sr(S_TG)}, {sr(S_TG)}, {WS_KVT + which*16384}""")
    def tg_loads():
        for t in range(4):
            a(f"s_add_u32 {sr(S_T0)}, {sr(S_TG)}, {t*4096}")
            for jb in range(4):
                a(f"buffer_load_dwordx4 {vr(TG+16*t+4*jb,4)}, {vr(V_L16)}, {sr(S_WS,4)}, {sr(S_T0)} offen offset:{jb*1024} sc1")
    def tg_finish(lbl, which):
        a(f"s_mov_b32 {sr(S_SPIN)}, 0")
        a.label(lbl + "_loop")
        a("s_waitcnt vmcnt(0)")
        a(f"v_min3_u32 {vr(V_T0)}, {vr(V_TAG)}, {vr(TG+1)}, {vr(TG+3)}")
        a(f"v_max3_u32 {vr(V_T1)}, {vr(V_TAG)}, {vr(TG+1)}, {vr(TG+3)}")
        for g in range(1, 16):
            a(f"v_min3_u32 {vr(V_T0)}, {vr(V_T0)}, {vr(TG+4*g+1)}, {vr(TG+4*g+3)}")
            a(f"v_max3_u32 {vr(V_T1)}, {vr(V_T1)}, {vr(TG+4*g+1)}, {vr(TG+4*g+3)}")
        a(f"""v_cmp_ne_u32 vcc, {vr(V_T0)}, {vr(V_T1)}
              s_cbranch_vccz {lbl}_ok
              s_add_u32 {sr(S_SPIN)}, {sr(S_SPIN)}, 1
              s_cmp_ge_u32 {sr(S_SPIN)}, 100000
              s_cbranch_scc1 {lbl}_ok""")
        tg_loads()
        a(f"s_branch {lbl}_loop")
        a.label(lbl + "_ok")
        for t in range(4):
            for jb in range(4):
                a(f"v_mov_b32 {vr(TG+16*t+4*jb+1)}, {vr(TG+16*t+4*jb+2)}")
            if t == 3: a("s_waitcnt lgkmcnt(8)")
            for jb in range(4):
                ad = TVA if jb & 1 else TKA
                off = (4 * which + t) * 2048 + ((1024 + (jb >> 1) * 512) if jb & 1 else (jb >> 1) * 256)
                a(f"ds_write_b64 {vr(ad)}, {vr(TG+16*t+4*jb,2)} offset:{off}")
        a("s_waitcnt lgkmcnt(0)")
    C_TG = opts.get("c_tg", 6)

    a.label("L_a0")
    a.vm = []
    HX, HW, HG_, HD, HDG = 16, 48, 80, 144, 112
    H_GWA = 8
    S_JX, S_JM = S_U0, S_U1
    a(f"""s_setprio 3
          s_lshl_b32 {sr(S_T1)}, {sr(S_RGJ)}, 14
          s_add_u32 {sr(S_JX)}, {sr(S_T0)}, {sr(S_T1)}
          s_lshl_b32 {sr(S_T1)}, {sr(S_RGJ)}, 10
          s_add_u32 {sr(S_JM)}, {sr(S_T1)}, {L_X}
          s_mov_b32 {sr(S_WJ+2)}, 16384
          s_mov_b32 {sr(S_WJ+3)}, 0x20000
          s_bitcmp1_b32 {sr(S_HG)}, 0
          s_waitcnt lgkmcnt(0)
          s_mov_b32 {sr(S_X)}, {sr(S_KA+0)}
          s_mov_b32 {sr(S_X+1)}, {sr(S_KA+1)}
          s_cselect_b32 {sr(S_WJ)}, {sr(S_KA+12)}, {sr(S_KA+10)}
          s_cselect_b32 {sr(S_WJ+1)}, {sr(S_KA+13)}, {sr(S_KA+11)}
          s_load_dword {sr(S_TAG)}, {sr(S_KA+22,2)}, {WS_E}""")
    a(f"""s_lshl_b32 {sr(S_U2)}, {sr(S_J)}, 11
          s_lshl_b32 {sr(S_T1)}, {sr(S_J)}, 7
          v_xor_b32 {vr(V_T0)}, {sr(S_T1)}, {vr(V_L16)}""")
    def jload(g):
        for k in range(4):
            kb = 4 * g + k
            a(f"s_add_u32 m0, {sr(S_JM)}, {kb*4096 - (k%2)*64}")
            a(f"s_xor_b32 {sr(S_T1)}, {sr(S_JX)}, {(kb//2)*128}" if k % 2 == 0 else "s_nop 0")
            a.vmem(f"buffer_load_dwordx4 {vr(V_XOFF)}, {sr(S_X,4)}, {sr(S_T1)} offen offset:{(k%2)*64} lds", f"j{g}")
        for k in range(2):
            a(f"s_mov_b32 m0, {L_JW + g*4096 + k*2048}")
            a(f"s_xor_b32 {sr(S_T2)}, {sr(S_U2)}, {g*4096 + k*2048}")
            for q in range(2):
                a.vmem(f"buffer_load_dwordx4 {vr(V_L16)}, {sr(S_WJ,4)}, {sr(S_T2)} offen offset:{q*1024} lds", f"j{g}")
    jload(0)
    srd(S_W, 16, 1024)
    a(f"s_mov_b32 m0, {L_GW}\ns_nop 0")
    a.vmem(f"buffer_load_dwordx4 {vr(V_T0)}, {sr(S_W,4)}, 0 offen lds", "gw")
    jload(1); jload(2); jload(3)
    srd(S_WS, 22, WS_SIZE)
    rot_setup()
    a(f"""v_and_b32 {vr(V_T0)}, 15, {vr(V_LANE)}
          v_lshrrev_b32 {vr(V_T1)}, 4, {vr(V_LANE)}
          v_bfe_u32 {vr(V_T2)}, {vr(V_LANE)}, 2, 2
          v_xor_b32 {vr(V_T2)}, {vr(V_T2)}, {vr(V_T1)}
          v_lshlrev_b32 {vr(V_T2)}, 4, {vr(V_T2)}
          v_lshl_add_u32 {vr(V_T2)}, {vr(V_T0)}, 6, {vr(V_T2)}
          v_add_u32 {vr(V_T2)}, {sr(S_JM)}, {vr(V_T2)}
          v_lshlrev_b32 {vr(V_T3)}, 3, {vr(V_T0)}
          v_lshl_add_u32 {vr(V_T3)}, {vr(V_T1)}, 8, {vr(V_T3)}
          v_lshlrev_b32 {vr(H_GWA)}, 4, {vr(V_T1)}
          v_add_u32 {vr(H_GWA)}, {L_GW}, {vr(H_GWA)}
          v_lshlrev_b32 {vr(13)}, 4, {vr(V_T0)}
          v_and_b32 {vr(14)}, 1, {vr(V_T1)}
          v_lshrrev_b32 {vr(15)}, 1, {vr(V_T1)}
          {f"s_lshl_b32 {sr(S_T0)}, {sr(S_QB)}, 1" if MAP == 48 else f"s_and_b32 {sr(S_T0)}, {sr(S_QB)}, 7"}
          {f"s_lshr_b32 {sr(S_T1)}, {sr(S_RGJ)}, 1" if MAP == 48 else f"s_mov_b32 {sr(S_T1)}, {sr(S_ROT)}"}
          s_add_u32 {sr(S_SEG)}, {sr(S_T0)}, {sr(S_T1)}
          s_lshl_b32 {sr(S_T3)}, {sr(S_SEG)}, 4
          s_and_b32 {sr(S_T0)}, {sr(S_HG)}, 3
          s_lshl_b32 {sr(S_T0)}, {sr(S_T0)}, 2
          s_add_u32 {sr(S_T3)}, {sr(S_T3)}, {sr(S_T0)}
          s_add_u32 {sr(S_T3)}, {sr(S_T3)}, {WS_FKV}""")
    tag_setup()
    if opts.get("lst"): stamp(19)
    vmh = list(a.vm)
    def job(isV):
        a.vm = list(vmh)
        nr = 3 if isV else 4
        for half in range(2):
            a.wait_vm(f"j{2*half}")
            if opts.get("lst"): stamp(20 + 3*half)
            a("s_barrier")
            if opts.get("lst"): stamp(21 + 3*half)
            a.wait_vm(f"j{2*half+1}")
            if opts.get("lst"): stamp(22 + 3*half)
            def rd(k):
                s = 8 * half + k
                a(f"ds_read_b128 {vr(HX+4*k,4)}, {vr(V_T2)} offset:{s*4096}")
                a(f"ds_read_b64_tr_b16 {vr(HW+4*k,2)}, {vr(V_T3)} offset:{L_JW + s*1024}")
                a(f"ds_read_b64_tr_b16 {vr(HW+4*k+2,2)}, {vr(V_T3)} offset:{L_JW + s*1024 + 128}")
                if not isV: a(f"ds_read_b128 {vr(HG_+4*k,4)}, {vr(H_GWA)} offset:{s*64}")
            rd(0); rd(1); rd(2)
            for k in range(8):
                a(f"s_waitcnt lgkmcnt({nr * (min(k + 2, 7) - k)})")
                z = half == 0 and k == 0
                A_, B_ = (HX, HW) if isV else (HW, HX)
                a(f"v_mfma_f32_16x16x32_bf16 {vr(HD,4)}, {vr(A_+4*k,4)}, {vr(B_+4*k,4)}, {'0' if z else vr(HD,4)}")
                if not isV: a(f"v_mfma_f32_16x16x32_bf16 {vr(HDG,4)}, {vr(HG_+4*k,4)}, {vr(HX+4*k,4)}, {'0' if z else vr(HDG,4)}")
                if k + 3 < 8: rd(k + 3)
        a(f"s_and_b32 {sr(S_T1)}, {sr(S_RGJ)}, 1")
        if isV:
            a(f"""v_lshl_add_u32 {vr(13)}, {vr(15)}, 8, {vr(13)}
                  v_lshl_add_u32 {vr(13)}, {vr(14)}, 3, {vr(13)}
                  s_lshl_b32 {sr(S_T1)}, {sr(S_T1)}, 9
                  s_add_u32 {sr(S_T1)}, {sr(S_T1)}, 1024""")
        else:
            a(f"""v_lshl_add_u32 {vr(13)}, {vr(14)}, 9, {vr(13)}
                  v_lshl_add_u32 {vr(13)}, {vr(15)}, 3, {vr(13)}
                  s_lshl_b32 {sr(S_T1)}, {sr(S_T1)}, 8
                  s_lshl_b32 {sr(S_T0)}, {sr(S_QB)}, 2
                  s_add_u32 {sr(S_T0)}, {sr(S_T0)}, {sr(S_RGJ)}
                  s_lshl_b32 {sr(S_T0)}, {sr(S_T0)}, 7
                  s_add_u32 {sr(S_T0)}, {sr(S_T0)}, {WS_G}
                  s_mov_b32 {sr(S_T2)}, {hex(f2u(LOG2E))}
                  v_mul_f32 {vr(HDG)}, {sr(S_T2)}, {vr(HDG)}
                  v_exp_f32 {vr(HDG)}, -{vr(HDG)}
                  s_nop 0
                  v_add_f32 {vr(HDG)}, 1.0, {vr(HDG)}
                  v_rcp_f32 {vr(HDG)}, {vr(HDG)}
                  s_mov_b32 exec_hi, 0
                  buffer_store_dword {vr(HDG)}, {vr(V_L4)}, {sr(S_WS,4)}, {sr(S_T0)} offen sc1
                  s_mov_b32 exec_hi, -1""")
    a(f"""s_bitcmp1_b32 {sr(S_HG)}, 0
          s_cbranch_scc1 L_jobV""")
    job(False)
    a("s_branch L_jobdone")
    a.label("L_jobV")
    job(True)
    a.label("L_jobdone")
    a.vm = []
    a(f"""s_lshl_b32 {sr(S_T0)}, {sr(S_SEG)}, 11
          s_add_u32 {sr(S_T0)}, {sr(S_T0)}, {sr(S_T1)}
          s_add_u32 {sr(S_T0)}, {sr(S_T0)}, {WS_KV}
          s_nop 1
          v_cvt_pk_bf16_f32 {vr(HD+4)}, {vr(HD)}, {vr(HD+1)}
          v_cvt_pk_bf16_f32 {vr(HD+5)}, {vr(HD+2)}, {vr(HD+3)}
          v_mov_b32 {vr(HX)}, {vr(HD+4)}
          v_mov_b32 {vr(HX+1)}, {vr(V_TAG)}
          v_mov_b32 {vr(HX+2)}, {vr(HD+5)}
          v_mov_b32 {vr(HX+3)}, {vr(V_TAG)}
          s_lshl_b32 {sr(S_T1)}, {sr(S_SEG)}, 2
          s_and_b32 {sr(S_T2)}, {sr(S_HG)}, 3
          s_add_u32 {sr(S_T1)}, {sr(S_T1)}, {sr(S_T2)}
          s_lshl_b32 {sr(S_T1)}, {sr(S_T1)}, 10
          s_add_u32 {sr(S_T1)}, {sr(S_T1)}, {WS_KVT}
          buffer_store_dwordx4 {vr(HX,4)}, {vr(V_L16)}, {sr(S_WS,4)}, {sr(S_T1)} offen {"" if opts.get("plaint", 0) else "sc1"}
          v_mov_b32 {vr(14)}, 0
          s_lshl_b32 {sr(S_T1)}, s2, 8
          s_add_u32 {sr(S_T1)}, {sr(S_T1)}, {WS_ACC}
          buffer_store_dwordx2 {vr(HD+4,2)}, {vr(13)}, {sr(S_WS,4)}, {sr(S_T0)} offen sc1
          buffer_store_dword {vr(14)}, {vr(V_L4)}, {sr(S_WS,4)}, {sr(S_T1)} offen sc1""")
    stamp(1)
    C_SIG = opts.get("c_sig", 4)
    for c in range(2, 8):
        a("s_barrier")
        if c == 2:
            kv_setup(False)
            rest = a.lines[a.split:]; a.lines = a.lines[:a.split]
        if c == 3: tg_setup(0)
        if c == 5: a.lines += rest
        if c == C_SIG:
            a("s_waitcnt vmcnt(0)")
            flag_store(S_T3)
            stamp(2)
        if c == C_TG: tg_loads()
    stamp(3)
    tg_finish("L_tg0", 0)
    stamp(4)
    a("s_barrier")
    a.label("L_kv01")
    kv_pass({opts.get("n1", 8): 1}, zero=True)
    a("s_branch L_kvend")

    a.label("L_a1")
    a.vm = []
    LV = [16, 20]
    SO = [S_U0, S_U1]
    a(f"""s_setprio 3
          v_lshrrev_b32 {vr(V_T0)}, 1, {vr(V_LANE)}
          v_and_b32 {vr(V_T0)}, 3, {vr(V_T0)}
          v_bfe_u32 {vr(V_T1)}, {vr(V_LANE)}, 4, 1
          v_xor_b32 {vr(V_T0)}, {vr(V_T0)}, {vr(V_T1)}
          v_lshlrev_b32 {vr(V_T0)}, 5, {vr(V_T0)}
          v_and_b32 {vr(V_T1)}, 1, {vr(V_LANE)}
          v_lshl_add_u32 {vr(V_T0)}, {vr(V_T1)}, 4, {vr(V_T0)}
          v_lshrrev_b32 {vr(V_T1)}, 3, {vr(V_LANE)}
          v_lshl_add_u32 {vr(LV[0])}, {vr(V_T1)}, 10, {vr(V_T0)}
          v_mul_u32_u24 {vr(V_T1)}, 3072, {vr(V_T1)}
          v_add_u32 {vr(LV[1])}, {vr(V_T1)}, {vr(V_T0)}
          v_xor_b32 {vr(LV[1])}, 64, {vr(LV[1])}""")
    for rg in range(1, 4):
        a(f"""v_add_u32 {vr(LV[0]+rg)}, {rg*(8192-1024)}, {vr(LV[0])}
              v_add_u32 {vr(LV[1]+rg)}, {rg*(24576-1024)}, {vr(LV[1])}""")
    a(f"""s_lshl_b32 {sr(SO[0])}, {sr(S_HG)}, 7
          s_lshl_b32 {sr(SO[1])}, {sr(S_HGQ)}, 7
          s_waitcnt lgkmcnt(0)
          s_load_dword {sr(S_TAG)}, {sr(S_KA+22,2)}, {WS_E}""")
    srd(S_W, 8, 0x80000)
    srd(S_WJ, 2, 0x180000)
    def lw(c):
        a(f"""s_xor_b32 {sr(S_T0)}, {sr(S_J)}, {c}
              s_lshl_b32 {sr(S_T1)}, {sr(S_T0)}, 16
              s_add_u32 {sr(S_T1)}, {sr(S_T1)}, {sr(SO[0])}
              s_mul_i32 {sr(S_T2)}, {sr(S_T0)}, 196608
              s_add_u32 {sr(S_T2)}, {sr(S_T2)}, {sr(SO[1])}""")
        for hf in range(2):
            for m in range(2):
                so = [S_T1, S_T2][m]
                a(f"s_mov_b32 m0, {RSLOT[c % 4] + m*8192 + hf*4096}")
                a("s_nop 0" if hf == 0 else f"s_add_u32 {sr(so)}, {sr(so)}, {32768 if m == 0 else 98304}")
                for rg in range(4):
                    a.vmem(f"buffer_load_dwordx4 {vr(LV[m]+rg)}, {sr(S_W if m == 0 else S_WJ,4)}, {sr(so)} offen offset:{rg*1024} lds", f"w{c}")
    NPRE = opts.get("npre", 2)
    if opts.get("lst"): stamp(18)
    for c in range(NPRE): lw(c)
    if opts.get("lst"): stamp(19)
    kv_setup(False); rot_setup(); tg_setup(1)
    tag_setup()
    nxt = NPRE
    for c in range(8):
        a.wait_vm(f"w{c}")
        if opts.get("lst"): stamp(20 + c) if c < 4 else None
        a("s_barrier")
        if opts.get("lst"): stamp(24 + c)
        k = 0
        while nxt <= min(7, c + 3) and k < 2:
            lw(nxt); nxt += 1; k += 1
        if c == max(C_TG, 5):
            tg_loads()
            a.vm += ["tg"] * 16
    tg_finish("L_tg1", 1)
    stamp(4)
    a("""s_barrier
         s_branch L_kv01""")

    a.label("L_a23")
    a.vm = []
    a(f"""s_setprio 3
          s_sub_u32 {sr(S_T1)}, {sr(S_WAVE)}, 8
          s_lshl_b32 {sr(S_T2)}, {sr(S_T1)}, 8
          s_xor_b32 {sr(S_T0)}, {sr(S_T0)}, {sr(S_T2)}
          s_lshl_b32 {sr(S_T1)}, {sr(S_T1)}, 14
          s_add_u32 {sr(S_T1)}, {sr(S_T1)}, {L_X}
          s_waitcnt lgkmcnt(0)
          s_mov_b32 {sr(S_X)}, {sr(S_KA+0)}
          s_mov_b32 {sr(S_X+1)}, {sr(S_KA+1)}
          s_load_dword {sr(S_TAG)}, {sr(S_KA+22,2)}, {WS_E}""")
    tag_setup()
    XB = opts.get("xb", 0)
    for c in range(XB): a("s_barrier")
    for i in range(3):
        a(f"""s_add_u32 {sr(S_T3)}, {sr(S_RGJ)}, {i+1}
              s_and_b32 {sr(S_T3)}, {sr(S_T3)}, 3
              s_lshl_b32 {sr(S_T2)}, {sr(S_T3)}, 10
              s_add_u32 {sr(S_U0)}, {sr(S_T2)}, {sr(S_T1)}
              s_lshl_b32 {sr(S_T2)}, {sr(S_T3)}, 14
              s_add_u32 {sr(S_U1)}, {sr(S_T2)}, {sr(S_T0)}""")
        if i > 0 or XB == 0 or True:
            a("s_barrier")
        for k in range(4):
            a(f"s_add_u32 m0, {sr(S_U0)}, {k*4096 - (k%2)*64}")
            a(f"s_xor_b32 {sr(S_U1)}, {sr(S_U1)}, 128" if k == 2 else "s_nop 0")
            a(f"buffer_load_dwordx4 {vr(V_XOFF)}, {sr(S_X,4)}, {sr(S_U1)} offen offset:{(k%2)*64} lds")
        if i == opts.get("kpf", 1):
            srd(S_WOB, 2, 0x180000)
            a(f"""v_lshrrev_b32 {vr(V_T0)}, 3, {vr(V_LANE)}
                  v_mul_u32_u24 {vr(V_T0)}, 3072, {vr(V_T0)}
                  v_and_b32 {vr(V_T1)}, 7, {vr(V_LANE)}
                  v_lshl_add_u32 {vr(V_T0)}, {vr(V_T1)}, 7, {vr(V_T0)}
                  s_mul_i32 {sr(S_T2)}, s2, 6144
                  s_sub_u32 {sr(S_T3)}, {sr(S_WAVE)}, 9
                  s_lshl_b32 {sr(S_T3)}, {sr(S_T3)}, 10
                  s_add_u32 {sr(S_T2)}, {sr(S_T2)}, {sr(S_T3)}
                  s_mov_b64 exec, 0xffff
                  buffer_load_dword {vr(V_FLG)}, {vr(V_T0)}, {sr(S_WOB,4)}, {sr(S_T2)} offen
                  s_mov_b64 exec, -1""")
    assert XB == 0
    kv_setup(); rot_setup(); foff_setup()
    def stageB():
        kv_sample()
        a("s_waitcnt vmcnt(0)")
        kv_spin("L_skvB", False)
        stamp(5)
        kv_dma("L_kvdB", 8, 12)
        a(f"""s_or_b32 {sr(S_T0)}, s2, {sr(S_RT)}
              s_cmp_lg_u32 {sr(S_T0)}, 0
              s_cbranch_scc1 L_noep
              s_mov_b32 {sr(S_T0)}, {WS_E}""")
        flag_store(S_T0)
        a.label("L_noep")
        a.vm = []
    ES = opts.get("es", 5)
    for c in range(3, ES + 1):
        if c == 4: a("s_waitcnt vmcnt(0)")
        a("s_barrier")
    bars_ = {}
    st = -1
    for c in range(ES + 1, 8):
        bars_[st] = bars_.get(st, 0) + 1
        st = 1 if st < 0 else st + opts.get("esp", 1)
    ne, n2 = opts.get("ne", 6), opts.get("n2", 11)
    assert n2 >= ne + 4
    bars_[ne] = bars_.get(ne, 0) + 1
    bars_[n2] = bars_.get(n2, 0) + 1
    kv_pass(bars_, {ne: stageB})

    a.label("L_kvend")
    stamp(12)
    a(f"""v_add_u32 {vr(V_XA0)}, {sr(S_KM)}, {vr(V_L16)}
          s_nop 8
          s_cmp_lt_u32 {sr(S_AUX)}, 2
          s_cbranch_scc1 L_kcvt""")
    phi(KACC[0], 32, 56)
    a(f"""s_cmp_eq_u32 {sr(S_AUX)}, 2
          s_cselect_b32 {sr(S_WOA)}, {sr(S_KA+4)}, {sr(S_KA+14)}
          s_cselect_b32 {sr(S_WOA+1)}, {sr(S_KA+5)}, {sr(S_KA+15)}
          s_mov_b32 {sr(S_WOA+2)}, 0x80000
          s_mov_b32 {sr(S_WOA+3)}, 0x20000
          v_lshlrev_b32 {vr(V_T0)}, 7, {vr(V_LANE)}
          s_lshl_b32 {sr(S_T0)}, s2, 11
          s_mov_b64 exec, 0xffff
          buffer_load_dword {vr(V_FLG)}, {vr(V_T0)}, {sr(S_WOA,4)}, {sr(S_T0)} offen
          s_mov_b64 exec, -1""")
    a.label("L_kcvt")
    for f in range(4):
        for i in range(4):
            a(f"v_cvt_pk_bf16_f32 {vr(56+4*f+i)}, {vr(KACC[0]+8*f+2*i)}, {vr(KACC[0]+8*f+2*i+1)}")
        a(f"ds_write_b128 {vr(V_XA0)}, {vr(56+4*f,4)} offset:{f*1024}")
    a(f"""v_add_u32 {vr(V_T0)}, {sr(S_KM)}, {vr(V_L4)}
          v_add_u32 {vr(V_T1)}, {L_HI}, {vr(V_L4)}
          s_waitcnt lgkmcnt(0)
          ds_write_b32 {vr(V_T0)}, {vr(V_TAG)} offset:4096
          s_mov_b32 {sr(S_SPIN)}, 0""")
    stamp(13)
    a.label("L_rdv")
    for k in range(4):
        a(f"ds_read_b32 {vr(72+k)}, {vr(V_T1)} offset:{4096 + k*8192}")
    a(f"""s_waitcnt lgkmcnt(0)
          v_min3_u32 {vr(76)}, {vr(72)}, {vr(73)}, {vr(74)}
          v_max3_u32 {vr(77)}, {vr(72)}, {vr(73)}, {vr(74)}
          v_min3_u32 {vr(76)}, {vr(76)}, {vr(75)}, {vr(V_TAG)}
          v_max3_u32 {vr(77)}, {vr(77)}, {vr(75)}, {vr(V_TAG)}
          v_cmp_ne_u32 vcc, {vr(76)}, {vr(77)}
          s_cbranch_vccz L_rdv_ok
          s_sleep 4
          s_add_u32 {sr(S_SPIN)}, {sr(S_SPIN)}, 1
          s_cmp_lt_u32 {sr(S_SPIN)}, 1000000
          s_cbranch_scc1 L_rdv""")
    a.label("L_rdv_ok")
    a(f"""s_cmp_lt_u32 {sr(S_AUX)}, 2
          s_cbranch_scc1 L_a01b""")
    rot_setup()
    kv_dma("L_kvdC", 32, 16)
    a("s_waitcnt vmcnt(0)")
    stamp(14)
    if ts: ts_out()
    a("s_endpgm")

    a.label("L_a01b")
    HV, HK_, HKV, HZ, HON = 56, 72, 16, 32, 52
    a(f"""s_lshl_b32 {sr(S_T0)}, {sr(S_AUX)}, 11
          s_add_u32 {sr(S_T0)}, {sr(S_T0)}, {L_HI}
          v_add_u32 {vr(V_T1)}, {sr(S_T0)}, {vr(V_L16)}""")
    for f in range(4):
        off = (f // 2) * 8192 + (f % 2) * 1024
        a(f"ds_read_b128 {vr(HV+4*f,4)}, {vr(V_T1)} offset:{off}")
        a(f"ds_read_b128 {vr(HK_+4*f,4)}, {vr(V_T1)} offset:{16384 + off}")
    for i in range(4):
        a(f"v_mov_b32 {vr(HON+i)}, {sr(S_ONES)}")
    a(f"""v_bfe_u32 {vr(V_T2)}, {vr(V_LANE)}, 3, 1
          v_lshlrev_b32 {vr(V_T2)}, 11, {vr(V_T2)}
          v_and_b32 {vr(V_T3)}, 3, {vr(V_LANE)}
          v_lshl_add_u32 {vr(V_T2)}, {vr(V_T3)}, 9, {vr(V_T2)}
          v_bfe_u32 {vr(V_T3)}, {vr(V_LANE)}, 4, 1
          v_lshl_add_u32 {vr(V_T2)}, {vr(V_T3)}, 3, {vr(V_T2)}
          v_bfe_u32 {vr(V_T3)}, {vr(V_LANE)}, 2, 1
          v_lshl_add_u32 {vr(V_T2)}, {vr(V_T3)}, 2, {vr(V_T2)}
          s_waitcnt lgkmcnt(0)""")
    for f in range(4):
        a(f"v_mfma_f32_32x32x16_bf16 {vr(HKV,16)}, {vr(HK_+4*f,4)}, {vr(HV+4*f,4)}, {'0' if f==0 else vr(HKV,16)}")
        a(f"v_mfma_f32_32x32x16_bf16 {vr(HZ,16)}, {vr(HON,4)}, {vr(HK_+4*f,4)}, {'0' if f==0 else vr(HZ,16)}")
    a(f"""s_lshl_b32 {sr(S_T0)}, {sr(S_HGK)}, 1
          s_add_u32 {sr(S_T0)}, {sr(S_T0)}, {sr(S_AUX)}
          s_lshl_b32 {sr(S_T0)}, {sr(S_T0)}, 12
          s_add_u32 {sr(S_T0)}, {sr(S_T0)}, {WS_ACC}
          s_nop 7""")
    for r in range(8):
        a(f"v_cndmask_b32 {vr(HKV+r)}, {vr(HKV+8+r)}, {vr(HKV+r)}, {sr(S_VMASK,2)}")
    for r in range(8):
        a(f"buffer_atomic_add_f32 {vr(HKV+r)}, {vr(V_L4)}, {sr(S_WS,4)}, {sr(S_T0)} offen offset:{r*512} sc1")
    a(f"""s_mov_b32 exec_hi, 0
          buffer_atomic_add_f32 {vr(HZ)}, {vr(V_T2)}, {sr(S_WS,4)}, {sr(S_T0)} offen offset:256 sc1
          s_mov_b32 exec_hi, -1
          s_lshl_b32 {sr(S_T3)}, {sr(S_HGK)}, 8
          s_lshl_b32 {sr(S_T0)}, {sr(S_QB)}, 1
          s_add_u32 {sr(S_T0)}, {sr(S_T0)}, {sr(S_AUX)}
          s_lshl_b32 {sr(S_T0)}, {sr(S_T0)}, 2
          s_add_u32 {sr(S_T0)}, {sr(S_T0)}, {sr(S_T3)}
          s_add_u32 {sr(S_T0)}, {sr(S_T0)}, {WS_FA}
          s_lshl_b32 {sr(S_T3)}, {sr(S_HGQ)}, 8
          s_add_u32 {sr(S_T3)}, {sr(S_T3)}, {WS_FA}
          s_waitcnt vmcnt(0)""")
    flag_store(S_T0)
    stamp(15)
    a(f"""s_cmp_eq_u32 {sr(S_AUX)}, 1
          s_cbranch_scc1 L_a1b
          s_barrier
          s_mov_b32 {sr(S_SPIN)}, 0""")
    a.label("L_sfa")
    a(f"""buffer_load_dword {vr(V_FLG)}, {vr(V_L4)}, {sr(S_WS,4)}, {sr(S_T3)} offen sc1
          s_waitcnt vmcnt(0)
          v_cmp_ne_u32 vcc, {vr(V_FLG)}, {vr(V_TAG)}
          s_cbranch_vccz L_sfa_ok
          s_add_u32 {sr(S_SPIN)}, {sr(S_SPIN)}, 1
          s_cmp_lt_u32 {sr(S_SPIN)}, 100000
          s_cbranch_scc1 L_sfa""")
    a.label("L_sfa_ok")
    stamp(16)
    if ts: ts_out()
    a("""s_barrier
         s_endpgm""")

    a.label("L_a1b")
    srd(S_WOA, 4, 0x80000)
    srd(S_WOB, 14, 0x80000)
    omap()
    swz64(V_WOFF, 1024)
    stamp(14)
    a("s_barrier")
    def wodma(lbl, srdw, r0, nrows, dst):
        a(f"""s_lshl_b32 {sr(S_T0)}, {sr(S_NS)}, 7
              s_add_u32 {sr(S_T0)}, {sr(S_T0)}, {r0*1024}
              s_mov_b32 m0, {dst}""")
        a.label(lbl)
        a("s_waitcnt vmcnt(40)")
        for i in range(4):
            a(f"buffer_load_dwordx4 {vr(V_WOFF)}, {sr(srdw,4)}, {sr(S_T0)} offen lds")
            a(f"""s_add_u32 m0, m0, 1024
                  s_add_u32 {sr(S_T0)}, {sr(S_T0)}, 8192""")
        a(f"""s_cmp_lt_u32 m0, {dst + nrows*128}
              s_cbranch_scc1 {lbl}""")
    wodma("L_woa", S_WOA, 0, 512, 0)
    stamp(15)
    a("s_barrier")
    wodma("L_wob0", S_WOB, 0, 256, L_HI)
    a("s_waitcnt vmcnt(0)")
    stamp(16)
    a("s_barrier")
    wodma("L_wob1", S_WOB, 256, 256, 65536)
    a("s_waitcnt vmcnt(0)")
    if ts:
        stamp(17)
        ts_out()
    a("s_endpgm")
    a.label("L_codeend")

    head = open("cdna_kernels/" + NAME + ".s.ref").read().split("\n")
    hdr = [l for l in head if l.startswith(";") and "@launch" not in l and "Override" not in l and "grid=ceil" not in l]
    out = "\n".join(hdr) + f"\n; @launch grid=(256,1,1) block=({NWAVE*64},1,1) lds={LDS_SIZE}\n"
    out += f""".amdgcn_target "amdgcn-amd-amdhsa--gfx950"
.text
.globl {NAME}_kernel
.p2align 8
.type {NAME}_kernel,@function
"""
    out += a.text()
    out += f""".section .rodata,"a"
.p2align 6
.amdhsa_kernel {NAME}_kernel
  .amdhsa_next_free_vgpr {NVGPR}
  .amdhsa_next_free_sgpr 102
  .amdhsa_accum_offset {NVGPR}
  .amdhsa_group_segment_fixed_size 0
  .amdhsa_kernarg_size 96
  .amdhsa_user_sgpr_count 2
  .amdhsa_user_sgpr_kernarg_segment_ptr 1
  .amdhsa_system_sgpr_workgroup_id_x 1
.end_amdhsa_kernel
"""
    return out

if __name__ == "__main__":
    opts = {}
    outp = "cdna_kernels/" + NAME + ".s"
    for arg in sys.argv[1:]:
        if arg.startswith("-o"):
            outp = arg[2:]
        elif "=" in arg:
            k, v = arg.split("=")
            opts[k] = int(v)
        else:
            opts[arg] = True
    open(outp, "w").write(gen(opts))
    print("wrote", outp)
```

```python
import sys, math, struct

NAME = "gated_mix__linear_attn_block__grouped_kv_mqa__prompt"

def f2u(x):
    return struct.unpack("<I", struct.pack("<f", x))[0]

class Asm:
    def __init__(self):
        self.lines = []
        self.vm = []
    def __call__(self, s):
        for l in s.split("\n"):
            l = l.strip()
            if l:
                self.lines.append("    " + l)
    def label(self, l):
        self.lines.append(l + ":")
    def c(self, t):
        self.lines.append("    ; ---- " + t)
    def vmem(self, s, tag):
        self(s)
        self.vm.append(tag)
        assert len(self.vm) <= 63
    def vm_n(self, tag):
        idx = max(i for i, t in enumerate(self.vm) if t == tag)
        return len(self.vm) - 1 - idx
    def drop_to(self, n):
        self.vm = self.vm[len(self.vm) - n:] if n else []
    def wait_vm(self, tag, extra=""):
        n = 0 if tag is None else self.vm_n(tag)
        self.drop_to(n)
        self(f"s_waitcnt vmcnt({n}) {extra}".strip())
    def text(self):
        return "\n".join(self.lines) + "\n"

def vr(a, n=1):
    return f"v{a}" if n == 1 else f"v[{a}:{a+n-1}]"
def sr(a, n=1):
    return f"s{a}" if n == 1 else f"s[{a}:{a+n-1}]"

WS_E = 0x000000
WS_FKV = 0x000400
WS_FA = 0x001000
WS_FO = 0x004000
WS_G = 0x014000
WS_KV = 0x020000
WS_ACC = 0x040000
WS_KVT = 0x080000
WS_OA = 0x200000
WS_OB = 0x208000
WS_DBG1 = 0x600000
WS_DBG2 = 0x800000
WS_TS = 0xA00000
WS_SIZE = 0x1000000
L_JW = 0
L_X = 65536
L_HI = 131072
L_GW = L_HI + 16384
RSLOT = [16384, 32768, 49152, L_HI]
LDS_SIZE = 163840
LOG2E = 1.4426950408889634
QSCALE = 0.25 * LOG2E
NVGPR = 168
NWAVE = 12

S_HGQ, S_TAG, S_QO, S_NS, S_RDY = 3, 4, 5, 6, 7
S_X, S_W, S_WJ = 8, 12, 16
S_EPS, S_ONES, S_RGJ, S_HGK = 20, 21, 22, 23
S_XMASK, S_HEADA, S_AUX = 24, 26, 27
S_WOA, S_WOB, S_OUT, S_DBG, S_WS = 28, 32, 36, 40, 44
S_WAVE, S_QB, S_HG, S_RT, S_HH = 48, 49, 50, 51, 52
S_T0, S_T1, S_T2, S_T3 = 53, 54, 55, 56
S_U0, S_U1, S_U2, S_U3 = 57, 58, 59, 60
S_SEG, S_SPIN, S_HEAD = 61, 62, 63
S_VMASK, S_RT32, S_RO32, S_SAVE = 64, 66, 67, 40
S_LOG2E, S_QS = 70, 72
S_TS = 74
S_J = 69
S_XCC, S_FAST = 18, 19
S_KA = 76


DOC = """
; ---------------------------------------------------------------------------------------------
; Hand-offs between workgroups go through d_ws with write-through stores.  Flags and tagged
; all-ones filler the producer writes (and announces) earlier in the same launch.
; ---------------------------------------------------------------------------------------------
"""

def gen(opts):
    ts = opts.get("ts", False)
    dbg = opts.get("dbg", False)
    a = Asm()
    V_STAMP = NVGPR - 1

    def stamp(i):
        if "dly" in opts:
            if i == opts.get("dly0", 0): a("s_memrealtime s[74:75]")
            if i == opts["dly"]: a("s_memrealtime s[100:101]")
        if not ts: return
        a(f"""s_memrealtime {sr(S_TS,2)}
              s_memtime s[100:101]
              s_waitcnt lgkmcnt(0)
              v_writelane_b32 v{V_STAMP}, {sr(S_TS)}, {i}
              v_writelane_b32 v{V_STAMP}, s100, {32+i}""")

    V_LANE = 1
    V_T0, V_T1, V_T2, V_T3 = 2, 3, 4, 5
    V_XOFF, V_WOFF = 6, 7
    V_XA0, V_XA1, V_WA = 8, 9, 10
    V_L16, V_G, V_IDX, V_KA, V_VA = 11, 12, 13, 14, 15
    V_QF, V_PQ = 16, 20
    V_ACCQ = 24
    V_FB = [40, 72]
    V_O, V_C, V_KF = 104, 120, 136
    V_VF = [140, 148]
    V_L4, V_FLG, V_TAG, V_WOA0, V_WOA1, V_WA3 = 156, 157, 158, 159, 160, 161
    V_PK = 162
    V_S = [24, 40]
    V_AC, V_OA = 56, 72
    V_FA, V_FBB, V_WO = 56, 120, 88
    V_OUT = [24, 40]

    def srd(s, ka, size):
        a(f"""s_mov_b32 {sr(s)}, {sr(S_KA+ka)}
              s_mov_b32 {sr(s+1)}, {sr(S_KA+ka+1)}
              s_mov_b32 {sr(s+2)}, {hex(size)}
              s_mov_b32 {sr(s+3)}, 0x20000""")
    def flag_store(soff):
        a(f"""s_mov_b64 exec, 1
              buffer_store_dword {vr(V_TAG)}, {vr(V_L4)}, {sr(S_WS,4)}, {sr(soff)} offen sc1
              s_mov_b64 exec, -1""")
    def flag_load(soff):
        a(f"""s_mov_b32 exec_hi, 0
              buffer_load_dword {vr(V_FLG)}, {vr(V_L4)}, {sr(S_WS,4)}, {sr(soff)} offen sc1
              s_mov_b32 exec_hi, -1""")
    def flag_spin(lbl, soff):
        a(f"s_mov_b32 {sr(S_SPIN)}, 0")
        a.label(lbl + "_loop")
        a(f"""v_cmp_ne_u32 vcc, {vr(V_FLG)}, {vr(V_TAG)}
              s_cmp_eq_u32 vcc_lo, 0
              s_cbranch_scc1 {lbl}_ok
              s_add_u32 {sr(S_SPIN)}, {sr(S_SPIN)}, 1
              s_cmp_ge_u32 {sr(S_SPIN)}, 100000
              s_cbranch_scc1 {lbl}_ok""")
        flag_load(soff)
        a(f"""s_waitcnt vmcnt(0)
              s_branch {lbl}_loop""")
        a.label(lbl + "_ok")
    def arm_spin(lbl, soff):
        a(f"s_mov_b32 {sr(S_SPIN)}, 0")
        a.label(lbl + "_loop")
        a(f"""v_sub_u32 {vr(V_FLG)}, {vr(V_FLG)}, {vr(V_TAG)}
              v_cmp_lt_u32 vcc, 15, {vr(V_FLG)}
              s_cmp_eq_u32 vcc_lo, 0
              s_cbranch_scc1 {lbl}_ok
              s_add_u32 {sr(S_SPIN)}, {sr(S_SPIN)}, 1
              s_cmp_ge_u32 {sr(S_SPIN)}, 100000
              s_cbranch_scc1 {lbl}_ok""")
        flag_load(soff)
        a(f"""s_waitcnt vmcnt(0)
              s_branch {lbl}_loop""")
        a.label(lbl + "_ok")
    def tag_setup():
        a(f"""s_waitcnt lgkmcnt(0)
              s_mul_i32 {sr(S_TAG)}, {sr(S_TAG)}, 0x9e3779b1
              s_add_u32 {sr(S_TAG)}, {sr(S_TAG)}, 0x7f4a7c15
              v_mov_b32 {vr(V_TAG)}, {sr(S_TAG)}""")
    def omap():
        a(f"""s_and_b32 {sr(S_QO)}, s2, 7
              s_lshl_b32 {sr(S_QO)}, {sr(S_QO)}, 2
              s_bfe_u32 {sr(S_T1)}, s2, 0x20003
              s_add_u32 {sr(S_QO)}, {sr(S_QO)}, {sr(S_T1)}
              s_lshr_b32 {sr(S_NS)}, s2, 5""")
    def ts_out():
        a(f"""s_mul_i32 {sr(S_T0)}, s2, {NWAVE}
              s_add_u32 {sr(S_T0)}, {sr(S_T0)}, {sr(S_WAVE)}
              s_lshl_b32 {sr(S_T0)}, {sr(S_T0)}, 8
              s_add_u32 {sr(S_T0)}, {sr(S_T0)}, {WS_TS}
              buffer_store_dword v{V_STAMP}, {vr(V_L4)}, {sr(S_WS,4)}, {sr(S_T0)} offen""")
    def phi(src, n, tmp):
        for i in range(0, n, 2):
            a(f"v_pk_mul_f32 {vr(tmp+i,2)}, {sr(S_LOG2E,2)}, {vr(src+i,2)}")
        for i in range(n):
            a(f"v_exp_f32 {vr(tmp+i)}, {vr(tmp+i)} clamp")
        for i in range(n):
            a(f"v_max_f32 {vr(src+i)}, {sr(S_EPS)}, {vr(src+i)}")
        for i in range(0, n, 2):
            a(f"v_pk_add_f32 {vr(src+i,2)}, {vr(src+i,2)}, {vr(tmp+i,2)}")

    MAP = opts.get("map", 48)
    a.label(f"{NAME}_kernel")
    a(f"""s_cmp_ge_u32 s2, 256
          s_cbranch_scc1 L_end
          s_load_dwordx16 {sr(S_KA,16)}, s[0:1], 0
          s_load_dwordx8 {sr(S_KA+16,8)}, s[0:1], 64
          v_and_b32 {vr(V_LANE)}, 63, v0
          v_lshrrev_b32 {vr(V_T0)}, 6, v0
          s_and_b32 {sr(S_T0)}, s2, {7 if MAP == 48 else 1}
          v_readfirstlane_b32 {sr(S_WAVE)}, {vr(V_T0)}
          s_lshl_b32 {sr(S_T0)}, {sr(S_T0)}, 2
          s_bfe_u32 {sr(S_T1)}, s2, 0x20003
          s_add_u32 {sr(S_QB if MAP == 48 else S_HG)}, {sr(S_T0)}, {sr(S_T1)}
          s_sub_u32 {sr(S_WAVE)}, {sr(S_WAVE)}, 4
          s_cselect_b32 {sr(S_T1)}, 12, 0
          s_add_u32 {sr(S_WAVE)}, {sr(S_WAVE)}, {sr(S_T1)}
          s_lshr_b32 {sr(S_HG if MAP == 48 else S_QB)}, s2, 5
          {"" if MAP == 48 else f"s_and_b32 {sr(S_T1)}, s2, 6"}
          {"" if MAP == 48 else f"s_lshl_b32 {sr(S_T1)}, {sr(S_T1)}, 2"}
          {"" if MAP == 48 else f"s_add_u32 {sr(S_QB)}, {sr(S_QB)}, {sr(S_T1)}"}
          s_lshr_b32 {sr(S_RGJ)}, {sr(S_HG)}, 1
          s_xor_b32 {sr(S_HGQ)}, {sr(S_HG)}, 1
          s_xor_b32 {sr(S_HGK)}, {sr(S_HG)}, 2""")
    stamp(0)
    a(f"""v_lshrrev_b32 {vr(V_T0)}, 4, {vr(V_LANE)}
          v_xor_b32 {vr(V_T0)}, {vr(V_T0)}, {vr(V_LANE)}
          v_and_b32 {vr(V_T0)}, 3, {vr(V_T0)}
          v_lshlrev_b32 {vr(V_T0)}, 4, {vr(V_T0)}
          v_lshrrev_b32 {vr(V_T1)}, 2, {vr(V_LANE)}
          v_lshl_add_u32 {vr(V_XOFF)}, {vr(V_T1)}, 10, {vr(V_T0)}
          v_lshlrev_b32 {vr(V_L16)}, 4, {vr(V_LANE)}
          v_lshlrev_b32 {vr(V_L4)}, 2, {vr(V_LANE)}
          s_mov_b32 {sr(S_X+2)}, 0x200000
          s_mov_b32 {sr(S_X+3)}, 0x20000
          s_and_b32 {sr(S_J)}, s2, {opts.get("jmask", 7)}
          s_lshl_b32 {sr(S_T0)}, {sr(S_QB)}, 16
          s_lshl_b32 {sr(S_T1)}, {sr(S_J)}, 7
          s_or_b32 {sr(S_T0)}, {sr(S_T0)}, {sr(S_T1)}
          s_cmp_eq_u32 {sr(S_WAVE)}, 8
          s_cbranch_scc1 L_a0
          s_cmp_eq_u32 {sr(S_WAVE)}, 9
          s_cbranch_scc1 L_a1
          s_cmp_ge_u32 {sr(S_WAVE)}, 10
          s_cbranch_scc1 L_a23
          s_and_b32 {sr(S_RT)}, {sr(S_WAVE)}, 1
          s_lshr_b32 {sr(S_HH)}, {sr(S_WAVE)}, 1""")
    if opts.get("cpf", 1):
        W_ = opts.get("cpf", 1)
        a(f"s_getpc_b64 {sr(S_SAVE,2)}")
        a.label("L_pc")
        if W_ == 1:
            a(f"""s_lshr_b32 {sr(S_T2)}, s2, 3
                  s_lshl_b32 {sr(S_T2)}, {sr(S_T2)}, 10
                  s_cmp_eq_u32 {sr(S_WAVE)}, 0
                  s_cselect_b64 {sr(S_XMASK,2)}, 0xff, 1""")
        else:
            a(f"""s_lshl_b32 {sr(S_T2)}, {sr(S_WAVE)}, 12
                  s_bfe_u32 {sr(S_T1)}, s2, 0x20003
                  s_lshl_b32 {sr(S_T1)}, {sr(S_T1)}, 10
                  s_add_u32 {sr(S_T2)}, {sr(S_T2)}, {sr(S_T1)}
                  s_mov_b64 {sr(S_XMASK,2)}, 0xff""")
        a(f"""v_lshlrev_b32 {vr(V_T2)}, 7, {vr(V_LANE)}
              v_add_u32 {vr(V_T2)}, {sr(S_T2)}, {vr(V_T2)}
              v_min_u32 {vr(V_T2)}, L_codeend - L_pc - 4, {vr(V_T2)}
              s_mov_b64 exec, {sr(S_XMASK,2)}""")
        a.vmem(f"global_load_dword {vr(V_FLG)}, {vr(V_T2)}, {sr(S_SAVE,2)}", "cpf")
        a("s_mov_b64 exec, -1")
    S_XOFF, S_XM0 = S_U0, S_U1
    a(f"""s_and_b32 {sr(S_T1)}, {sr(S_WAVE)}, 3
          s_lshr_b32 {sr(S_T2)}, {sr(S_WAVE)}, 2
          s_lshl_b32 {sr(S_T3)}, {sr(S_T1)}, 14
          s_add_u32 {sr(S_XOFF)}, {sr(S_T0)}, {sr(S_T3)}
          s_lshl_b32 {sr(S_T3)}, {sr(S_T2)}, 7
          s_xor_b32 {sr(S_XOFF)}, {sr(S_XOFF)}, {sr(S_T3)}
          s_lshl_b32 {sr(S_XM0)}, {sr(S_T1)}, 10
          s_lshl_b32 {sr(S_T3)}, {sr(S_T2)}, 13
          s_add_u32 {sr(S_XM0)}, {sr(S_XM0)}, {sr(S_T3)}
          s_cmp_eq_u32 {sr(S_T1)}, {sr(S_RGJ)}
          s_cselect_b64 {sr(S_XMASK,2)}, 1, -1""")
    a(f"""v_lshrrev_b32 {vr(V_T0)}, 3, {vr(V_LANE)}
          v_and_b32 {vr(V_T3)}, 7, {vr(V_LANE)}
          v_lshlrev_b32 {vr(V_T3)}, 7, {vr(V_T3)}
          v_lshl_add_u32 {vr(V_T2)}, {vr(V_T0)}, 10, {vr(V_T3)}
          v_mul_u32_u24 {vr(V_T0)}, 3072, {vr(V_T0)}
          v_add_u32 {vr(V_T0)}, {vr(V_T0)}, {vr(V_T3)}
          s_xor_b32 {sr(S_T2)}, {sr(S_WAVE)}, {sr(S_J)}
          s_lshl_b32 {sr(S_T2)}, {sr(S_T2)}, 5
          s_lshr_b32 {sr(S_T3)}, s2, 3
          s_add_u32 {sr(S_T2)}, {sr(S_T2)}, {sr(S_T3)}
          s_lshl_b32 {sr(S_U2)}, {sr(S_T2)}, 11
          s_mul_i32 {sr(S_U3)}, {sr(S_T2)}, 6144
          s_lshl_b32 {sr(S_T3)}, {sr(S_HG)}, 13
          s_lshl_b32 {sr(S_RDY)}, {sr(S_WAVE)}, 10
          s_add_u32 {sr(S_T3)}, {sr(S_T3)}, {sr(S_RDY)}
          s_lshl_b32 {sr(S_RDY)}, {sr(S_QB)}, 16
          s_add_u32 {sr(S_T3)}, {sr(S_T3)}, {sr(S_RDY)}
          s_waitcnt lgkmcnt(0)
          s_mov_b32 {sr(S_X)}, {sr(S_KA+0)}
          s_mov_b32 {sr(S_X+1)}, {sr(S_KA+1)}
          s_load_dword {sr(S_TAG)}, {sr(S_KA+22,2)}, {WS_E}""")
    def xdma(r):
        a(f"s_xor_b32 {sr(S_T1)}, {sr(S_XOFF)}, {r*256}")
        a(f"s_add_u32 m0, {sr(S_XM0)}, {L_X + r*16384}")
        a(f"s_mov_b64 exec, {sr(S_XMASK,2)}")
        a.vmem(f"buffer_load_dwordx4 {vr(V_XOFF)}, {sr(S_X,4)}, {sr(S_T1)} offen lds", f"x{r}")
        a(f"s_add_u32 m0, {sr(S_XM0)}, {L_X + r*16384 + 4096 - 64}")
        a("s_nop 0")
        a.vmem(f"buffer_load_dwordx4 {vr(V_XOFF)}, {sr(S_X,4)}, {sr(S_T1)} offen offset:64 lds", f"x{r}")
        a("s_mov_b64 exec, -1")
    PF = opts.get("pf", 0)
    if not PF & 4: xdma(0)
    if PF & 1:
        a("s_mov_b64 exec, 0xff")
        a.vmem(f"buffer_load_dword {vr(V_FLG)}, {vr(V_T3)}, {sr(S_X,4)}, {sr(S_T3)} offen", "pf")
        a("s_mov_b64 exec, -1")
    if PF & 2:
        srd(S_W, 8, 0x80000)
        srd(S_WOB, 2, 0x180000)
        a(f"""s_lshl_b32 {sr(S_U2)}, s2, 11
              s_mul_i32 {sr(S_U3)}, s2, 6144
              s_cmp_eq_u32 {sr(S_WAVE)}, 0
              s_cselect_b64 exec, 0xffff, 1""")
        a.vmem(f"buffer_load_dword {vr(V_FLG)}, {vr(V_T2)}, {sr(S_W,4)}, {sr(S_U2)} offen", "pf")
        a.vmem(f"buffer_load_dword {vr(V_FLG)}, {vr(V_T0)}, {sr(S_WOB,4)}, {sr(S_U3)} offen", "pf")
        a("s_mov_b64 exec, -1")
    if PF & 4: xdma(0)
    srd(S_WS, 22, WS_SIZE)
    srd(S_OUT, 18, 0x200000)
    omap()
    if opts.get("tlb", 0):
        a(f"""v_lshlrev_b32 {vr(V_T2)}, 15, {vr(V_LANE)}
          s_lshl_b32 {sr(S_T1)}, {sr(S_QB)}, 17
          s_lshl_b32 {sr(S_T2)}, {sr(S_QO)}, 17
          s_cmp_eq_u32 {sr(S_WAVE)}, 1
          s_cselect_b32 {sr(S_T1)}, {sr(S_T1)}, {sr(S_T2)}
          s_add_u32 {sr(S_T1)}, {sr(S_T1)}, {WS_OA}
          s_cmp_eq_u32 {sr(S_WAVE)}, 0
          s_cselect_b32 {sr(S_T1)}, 0x380, {sr(S_T1)}
          s_cselect_b32 exec_lo, 0xffffff, 15
          s_mov_b32 exec_hi, 0
          s_cmp_ge_u32 {sr(S_WAVE)}, 3
          s_cbranch_scc1 L_tlb1
          buffer_load_dword {vr(V_FLG)}, {vr(V_T2)}, {sr(S_WS,4)}, {sr(S_T1)} offen sc1
          s_branch L_tlb2""")
        a.label("L_tlb1")
        a(f"""s_lshl_b32 {sr(S_T1)}, {sr(S_QO)}, 16
          s_mov_b32 exec_lo, 3
          buffer_load_dword {vr(V_FLG)}, {vr(V_T2)}, {sr(S_OUT,4)}, {sr(S_T1)} offen""")
        a.label("L_tlb2")
        a("s_mov_b64 exec, -1")
        a.vm.append("tlb")
    xdma(1)
    def consts():
        a(f"""s_mov_b32 {sr(S_VMASK)}, 0xffff
              s_mov_b32 {sr(S_VMASK+1)}, 0xffff
              s_mov_b32 {sr(S_LOG2E)}, {hex(f2u(LOG2E))}
              s_mov_b32 {sr(S_LOG2E+1)}, {hex(f2u(LOG2E))}
              s_mov_b32 {sr(S_EPS)}, {hex(f2u(1e-6))}
              s_mov_b32 {sr(S_ONES)}, 0x3f803f80""")
    def xfrag_addr(rt_s):
        a(f"""v_and_b32 {vr(V_T0)}, 31, {vr(V_LANE)}
              v_lshrrev_b32 {vr(V_T1)}, 5, {vr(V_LANE)}
              v_bfe_u32 {vr(V_T2)}, {vr(V_LANE)}, 2, 2
              v_xor_b32 {vr(V_T2)}, {vr(V_T2)}, {vr(V_T1)}
              v_lshlrev_b32 {vr(V_T2)}, 4, {vr(V_T2)}
              v_lshl_add_u32 {vr(V_T3)}, {vr(V_T0)}, 6, {vr(V_T2)}
              s_lshl_b32 {sr(S_T0)}, {sr(rt_s)}, 11
              s_add_u32 {sr(S_T0)}, {sr(S_T0)}, {L_X}
              v_add_u32 {vr(V_XA0)}, {sr(S_T0)}, {vr(V_T3)}
              v_xor_b32 {vr(V_XA1)}, 32, {vr(V_XA0)}""")
    consts()
    a(f"""s_lshl_b32 {sr(S_HEAD)}, {sr(S_HG)}, 2
          s_add_u32 {sr(S_HEAD)}, {sr(S_HEAD)}, {sr(S_HH)}
          s_lshl_b32 {sr(S_HEADA)}, {sr(S_HGQ)}, 2
          s_add_u32 {sr(S_HEADA)}, {sr(S_HEADA)}, {sr(S_HH)}
          s_lshl_b32 {sr(S_RT32)}, {sr(S_QB)}, 1
          s_add_u32 {sr(S_RT32)}, {sr(S_RT32)}, {sr(S_RT)}
          s_lshl_b32 {sr(S_RO32)}, {sr(S_QO)}, 1
          s_add_u32 {sr(S_RO32)}, {sr(S_RO32)}, {sr(S_RT)}
          s_mov_b32 {sr(S_QS)}, {hex(f2u(QSCALE))}
          s_mov_b32 {sr(S_QS+1)}, {hex(f2u(QSCALE))}""")
    xfrag_addr(S_RT)
    a(f"""v_bfe_u32 {vr(V_T0)}, {vr(V_LANE)}, 4, 1
          v_bfe_u32 {vr(V_T2)}, {vr(V_LANE)}, 3, 2
          v_xor_b32 {vr(V_T2)}, {sr(S_HH)}, {vr(V_T2)}
          v_lshlrev_b32 {vr(V_T2)}, 5, {vr(V_T2)}
          v_lshl_add_u32 {vr(V_T2)}, {vr(V_T0)}, 13, {vr(V_T2)}
          v_lshl_add_u32 {vr(V_T2)}, {vr(V_T1)}, 10, {vr(V_T2)}
          v_bfe_u32 {vr(V_T0)}, {vr(V_LANE)}, 2, 2
          v_lshl_add_u32 {vr(V_T2)}, {vr(V_T0)}, 7, {vr(V_T2)}
          v_and_b32 {vr(V_T0)}, 3, {vr(V_LANE)}
          v_lshl_add_u32 {vr(V_WA)}, {vr(V_T0)}, 3, {vr(V_T2)}
          v_add_u32 {vr(V_WA3)}, {L_HI}, {vr(V_WA)}""")
    for i in range(8):
        a(f"v_mov_b32 {vr(V_ACCQ+i)}, 0")
        a(f"v_mov_b32 {vr(V_ACCQ+8+i)}, {sr(S_EPS)}")
    a(f"""v_mov_b32 {vr(V_T0)}, {sr(S_ONES)}
          s_mov_b32 {sr(S_SAVE)}, 0x110000
          s_mov_b32 {sr(S_SAVE+1)}, 0x110000
          v_cndmask_b32 {vr(V_T0)}, 0, {vr(V_T0)}, {sr(S_SAVE,2)}""")
    for i in range(16):
        a(f"v_mov_b32 {vr(V_O+i)}, 0")
        a(f"v_mov_b32 {vr(V_VF[0]+i)}, {vr(V_T0)}")
    a(f"""v_mov_b32 {vr(V_IDX)}, 0xdddd
          v_mov_b32 {vr(V_KA)}, {vr(V_L16)}
          v_and_b32 {vr(V_T3)}, 15, {vr(V_LANE)}
          v_lshlrev_b32 {vr(V_T3)}, 4, {vr(V_T3)}
          v_lshl_add_u32 {vr(V_VA)}, {vr(V_T1)}, 8, {vr(V_T3)}""")
    V_GA, V_ACA, V_ARM = V_WOFF, 166, 0
    S_GOFF, S_MYFO, S_INFO, S_ACC = 28, 29, 30, 31
    def ooff(dst, base):
        a(f"""s_lshl_b32 {sr(dst)}, {sr(S_RT32)}, 6
              s_add_u32 {sr(dst)}, {sr(dst)}, {sr(S_HEADA if base == WS_OA else S_HEAD)}
              s_lshl_b32 {sr(dst)}, {sr(dst)}, 10
              s_add_u32 {sr(dst)}, {sr(dst)}, {base}""")
    ooff(S_RDY, WS_OB)
    ooff(S_AUX, WS_OA)
    a(f"""v_and_b32 {vr(V_T0)}, 0x3c, {vr(V_L4)}
          v_bfe_u32 {vr(V_T1)}, {vr(V_LANE)}, 4, 1
          v_lshl_add_u32 {vr(V_GA)}, {vr(V_T1)}, 7, {vr(V_T0)}
          s_lshl_b32 {sr(S_GOFF)}, {sr(S_RT32)}, 8
          s_add_u32 {sr(S_GOFF)}, {sr(S_GOFF)}, {WS_G}
          v_mov_b32 {vr(V_PK)}, -1
          v_mov_b32 {vr(V_PK+1)}, -1
          v_mov_b32 {vr(V_PK+2)}, -1
          v_mov_b32 {vr(V_PK+3)}, -1
          s_lshl_b32 {sr(S_MYFO)}, {sr(S_RT32)}, 5
          s_add_u32 {sr(S_MYFO)}, {sr(S_MYFO)}, {sr(S_HEAD)}
          s_lshl_b32 {sr(S_MYFO)}, {sr(S_MYFO)}, 2
          s_add_u32 {sr(S_MYFO)}, {sr(S_MYFO)}, {WS_FO}
          v_lshrrev_b32 {vr(V_T0)}, 5, {vr(V_LANE)}
          v_lshlrev_b32 {vr(V_T0)}, 9, {vr(V_T0)}
          v_bfe_u32 {vr(V_T1)}, {vr(V_LANE)}, 2, 2
          v_lshl_add_u32 {vr(V_T0)}, {vr(V_T1)}, 7, {vr(V_T0)}
          v_bfe_u32 {vr(V_T1)}, {vr(V_LANE)}, 3, 1
          v_lshl_add_u32 {vr(V_T0)}, {vr(V_T1)}, 6, {vr(V_T0)}
          v_bfe_u32 {vr(V_T1)}, {vr(V_LANE)}, 4, 1
          v_lshl_add_u32 {vr(V_T0)}, {vr(V_T1)}, 5, {vr(V_T0)}
          v_and_b32 {vr(V_T1)}, 3, {vr(V_LANE)}
          v_lshl_add_u32 {vr(V_T0)}, {vr(V_T1)}, 3, {vr(V_T0)}
          s_lshl_b32 {sr(S_T0)}, {sr(S_HH)}, 14
          v_add_u32 {vr(V_WOA0)}, {sr(S_T0)}, {vr(V_T0)}
          v_xor_b32 {vr(V_WOA1)}, 64, {vr(V_WOA0)}
          s_lshl_b32 {sr(S_U0)}, {sr(S_RO32)}, 3
          s_add_u32 {sr(S_U0)}, {sr(S_U0)}, {sr(S_HH)}
          s_lshl_b32 {sr(S_U0)}, {sr(S_U0)}, 13
          s_add_u32 {sr(S_U0)}, {sr(S_U0)}, {WS_OA}
          s_add_u32 {sr(S_U1)}, {sr(S_U0)}, 4096
          s_lshl_b32 {sr(S_U2)}, {sr(S_RO32)}, 4
          s_add_u32 {sr(S_U2)}, {sr(S_U2)}, {sr(S_HH)}
          s_lshl_b32 {sr(S_U2)}, {sr(S_U2)}, 12
          s_add_u32 {sr(S_U2)}, {sr(S_U2)}, {WS_OB}
          s_add_u32 {sr(S_U3)}, {sr(S_U2)}, 16384
          s_and_b32 {sr(S_T1)}, {sr(S_HEADA)}, 1
          v_lshrrev_b32 {vr(V_T1)}, 5, {vr(V_LANE)}
          s_lshl_b32 {sr(S_T2)}, {sr(S_T1)}, 1
          s_add_u32 {sr(S_T2)}, {sr(S_T2)}, 64
          v_add_u32 {vr(V_T1)}, {sr(S_T2)}, {vr(V_T1)}
          v_and_b32 {vr(V_T0)}, 0x2f, {vr(V_LANE)}
          s_lshl_b32 {sr(S_T2)}, {sr(S_T1)}, 4
          v_add_u32 {vr(V_T0)}, {sr(S_T2)}, {vr(V_T0)}
          v_cndmask_b32 {vr(V_T0)}, {vr(V_T0)}, {vr(V_T1)}, {sr(S_VMASK,2)}
          v_lshlrev_b32 {vr(V_ACA)}, 2, {vr(V_T0)}
          s_lshr_b32 {sr(S_ACC)}, {sr(S_HEADA)}, 1
          s_lshl_b32 {sr(S_ACC)}, {sr(S_ACC)}, 12
          s_add_u32 {sr(S_ACC)}, {sr(S_ACC)}, {WS_ACC}
          s_lshl_b32 {sr(S_INFO)}, {sr(S_RO32)}, 7
          s_add_u32 {sr(S_INFO)}, {sr(S_INFO)}, {WS_FO}""")
    tag_setup()
    stamp(1)

    a.c("P1: q projections")
    def reads(c):
        fb = V_FB[c % 2]
        s = c % 4
        wa, wo = (V_WA, RSLOT[s]) if s < 3 else (V_WA3, 0)
        r = []
        for p in range(4):
            r.append(f"ds_read_b128 {vr(fb+4*p,4)}, {vr(V_XA0 if p%2==0 else V_XA1)} offset:{(2*c + p//2)*4096}")
            for u in range(2):
                r.append(f"ds_read_b64_tr_b16 {vr(fb+16+4*p+2*u,2)}, {vr(wa)} offset:{wo + p*2048 + u*512}")
        return r
    def mfmas(c):
        fb = V_FB[c % 2]
        return [f"v_mfma_f32_32x32x16_bf16 {vr(V_ACCQ,16)}, {vr(fb+16+4*p,4)}, {vr(fb+4*p,4)}, {vr(V_ACCQ,16)}" for p in range(4)]
    for c in range(8):
        if c in (0, 2):
            a.wait_vm(f"x{c//2}", "lgkmcnt(0)")
        else:
            a("s_waitcnt lgkmcnt(0)")
        a("s_barrier")
        R_ = reads(c)
        if c == 0:
            for r in R_: a(r)
        else:
            M_ = mfmas(c - 1)
            for k in range(4):
                a(M_[k])
                for r in R_[4*k:4*k+4]: a(r)
    for k, m in enumerate(mfmas(7)):
        a(f"s_waitcnt lgkmcnt({9-3*k})")
        a(m)
    stamp(2)
    E = V_FB[0]
    a(f"""s_mov_b32 {sr(S_SEG)}, 0
          s_nop 10""")
    for i in range(0, 8, 2):
        a(f"v_pk_mul_f32 {vr(V_ACCQ+i,2)}, {sr(S_QS,2)}, {vr(V_ACCQ+i,2)}")
    for i in range(4):
        a(f"v_cvt_pk_bf16_f32 {vr(V_QF+i)}, {vr(V_ACCQ+2*i)}, {vr(V_ACCQ+2*i+1)}")
    phi(V_ACCQ + 8, 8, E)
    for i in range(4):
        a(f"v_cvt_pk_bf16_f32 {vr(V_PQ+i)}, {vr(V_ACCQ+8+2*i)}, {vr(V_ACCQ+8+2*i+1)}")
    stamp(3)
    a("s_barrier")
    a("s_setprio 3")
    stamp(4)
    a(f"""ds_read_b128 {vr(V_KF,4)}, {vr(V_KA)}
          s_mov_b64 exec, {sr(S_VMASK,2)}
          ds_read_b128 {vr(V_VF[0],4)}, {vr(V_VA)} offset:1024
          ds_read_b128 {vr(V_VF[0]+4,4)}, {vr(V_VA)} offset:1536
          ds_read_b128 {vr(V_VF[1],4)}, {vr(V_VA)} offset:{2048+1024}
          ds_read_b128 {vr(V_VF[1]+4,4)}, {vr(V_VA)} offset:{2048+1536}
          s_mov_b64 exec, -1
          s_waitcnt lgkmcnt(4)
          v_mfma_f32_32x32x16_bf16 {vr(V_S[0],16)}, {vr(V_KF,4)}, {vr(V_QF,4)}, 0
          ds_read_b128 {vr(V_KF,4)}, {vr(V_KA)} offset:2048""")
    if dbg:
        for reg, hd, base in ((V_QF, S_HEAD, WS_DBG1), (V_PQ, S_HEADA, WS_DBG2)):
            a(f"""s_lshl_b32 {sr(S_T0)}, {sr(S_RT32)}, 5
                  s_add_u32 {sr(S_T0)}, {sr(S_T0)}, {sr(hd)}
                  s_lshl_b32 {sr(S_T0)}, {sr(S_T0)}, 10
                  s_add_u32 {sr(S_T1)}, {sr(S_T0)}, {base}
                  buffer_store_dwordx4 {vr(reg,4)}, {vr(V_L16)}, {sr(S_WS,4)}, {sr(S_T1)} offen""")
    S0 = V_S[0]
    a(f"""s_nop 10
          v_max3_f32 {vr(V_T0)}, {vr(S0)}, {vr(S0+1)}, {vr(S0+2)}
          v_max3_f32 {vr(V_T1)}, {vr(S0+3)}, {vr(S0+4)}, {vr(S0+5)}
          v_max3_f32 {vr(V_T2)}, {vr(S0+6)}, {vr(S0+7)}, {vr(S0+8)}
          v_max3_f32 {vr(V_T3)}, {vr(S0+9)}, {vr(S0+10)}, {vr(S0+11)}
          v_max3_f32 {vr(V_T0)}, {vr(V_T0)}, {vr(S0+12)}, {vr(S0+13)}
          v_max3_f32 {vr(V_T1)}, {vr(V_T1)}, {vr(S0+14)}, {vr(S0+15)}
          v_max3_f32 {vr(V_T0)}, {vr(V_T0)}, {vr(V_T1)}, {vr(V_T2)}
          v_max_f32 {vr(V_T0)}, {vr(V_T0)}, {vr(V_T3)}
          v_mov_b32 {vr(V_T1)}, {vr(V_T0)}
          s_nop 1
          v_permlane32_swap_b32 {vr(V_T0)}, {vr(V_T1)}
          s_nop 1
          v_max_f32 {vr(V_T0)}, {vr(V_T0)}, {vr(V_T1)}
          v_sub_f32 {vr(V_T2)}, 0, {vr(V_T0)}
          v_sub_f32 {vr(V_T3)}, 0, {vr(V_T0)}""")
    for i in range(0, 16, 2):
        a(f"v_pk_add_f32 {vr(S0+i,2)}, {vr(S0+i,2)}, {vr(V_T2,2)}")
    for i in range(0, 16, 2):
        a(f"v_pk_mov_b32 {vr(V_C+i,2)}, {vr(V_T2,2)}, {vr(V_T2,2)} op_sel:[0,1]")
    a(f"""v_exp_f32 {vr(S0)}, {vr(S0)}
          v_exp_f32 {vr(S0+1)}, {vr(S0+1)}
          s_waitcnt lgkmcnt(0)""")
    stamp(5)

    PR = opts.get("ramp", "3210")
    PR = [int(ch) for ch in str(PR).zfill(4)]
    def oload(i, dst, br):
        so = [[S_U0, S_U1], [S_U2, S_U3]][br][i // 4]
        a(f"buffer_load_dwordx4 {vr(dst+4*i,4)}, {vr(V_L16)}, {sr(S_WS,4)}, {sr(so)} offen offset:{(i%4)*1024} sc1")
    def osan():
        for i in range(4):
            a(f"v_min_u32 {vr(V_PK+i)}, -2, {vr(V_PK+i)}")
    ins = {}
    def at(p, slot, fn): ins.setdefault((p, slot), []).append(fn)
    HK = 8 * opts.get("hk", 3)
    H5 = opts.get('h5', 40)
    bars = {8: (2, 11), 32: (0, 13), H5: (2, 17), 48: (0, 19)}
    at(8, "B", lambda: a(f"buffer_load_dword {vr(V_G)}, {vr(V_GA)}, {sr(S_WS,4)}, {sr(S_GOFF)} offen sc1"))
    at(9, "A", lambda: a(f"buffer_store_dwordx4 {vr(V_PK,4)}, {vr(V_L16)}, {sr(S_WS,4)}, {sr(S_RDY)} offen sc1"))
    at(10, "A", lambda: a(f"buffer_store_dwordx4 {vr(V_PK,4)}, {vr(V_L16)}, {sr(S_WS,4)}, {sr(S_AUX)} offen sc1"))
    at(20, "A", lambda: a(f"""s_waitcnt vmcnt(0)
                              s_mov_b64 exec, 1
                              buffer_store_dword {vr(V_TAG)}, {vr(V_L4)}, {sr(S_WS,4)}, {sr(S_MYFO)} offen sc1
                              s_mov_b64 exec, -1"""))
    for r in range(8):
        at(H5 + r // 2, "AB"[r % 2], lambda r=r: a(f"buffer_load_dword {vr(V_AC+r)}, {vr(V_ACA)}, {sr(S_WS,4)}, {sr(S_ACC)} offen offset:{r*512} sc1"))
    at(38, "A", lambda: flag_load(S_INFO))
    PO = opts.get("po", H5 + 7)
    def oa1():
        a("s_waitcnt vmcnt(0)")
        for i in range(4):
            a(f"v_cvt_pk_bf16_f32 {vr(V_AC+8+i)}, {vr(V_AC+2*i)}, {vr(V_AC+2*i+1)}")
    at(PO, "A", oa1)
    at(PO, "B", lambda: a(f"v_mfma_f32_32x32x16_bf16 {vr(V_OA,16)}, {vr(V_AC+8,4)}, {vr(V_PQ,4)}, 0"))
    at(PO + 1, "B", lambda: a(f"""v_add_f32 {vr(V_T0)}, {sr(S_EPS)}, {vr(V_OA)}
                                  v_rcp_f32 {vr(V_T0)}, {vr(V_T0)}"""))
    def oa2():
        a(f"v_mul_f32 {vr(V_T0)}, {vr(V_T0)}, {vr(V_G)}")
        for i in range(0, 8, 2):
            a(f"v_pk_mul_f32 {vr(V_OA+8+i,2)}, {vr(V_OA+8+i,2)}, {vr(V_T0,2)} op_sel_hi:[1,0]")
        for i in range(4):
            a(f"v_cvt_pk_bf16_f32 {vr(V_PK+i)}, {vr(V_OA+8+2*i)}, {vr(V_OA+8+2*i+1)}")
        osan()
        a(f"buffer_store_dwordx4 {vr(V_PK,4)}, {vr(V_L16)}, {sr(S_WS,4)}, {sr(S_AUX)} offen sc1")
        a(f"v_sub_f32 {vr(V_G)}, 1.0, {vr(V_G)}")
    at(PO + 1, "C", oa2)
    def armchk():
        a.label("L_arm")
        a(f"""v_cmp_ne_u32 vcc, {vr(V_FLG)}, {vr(V_TAG)}
              s_cmp_eq_u32 vcc_lo, 0
              s_cbranch_scc0 L_armr""")
        a.label("L_armk")
    at(PO + 3, "A", armchk)
    for i in range(8):
        at(56 + i, "A", lambda i=i: oload(i, V_FA, 0))
    def run(p, slot):
        for fn in ins.get((p, slot), []): fn()
    a.c("attention over 64 key tiles, side work interleaved")
    a(f"s_mov_b32 {sr(S_SPIN)}, 0")
    for p in range(2, 66):
        cur, nxt = V_S[p % 2], V_S[(p + 1) % 2]
        vf = V_VF[p % 2]
        ex = lambda r: a(f"v_exp_f32 {vr(r)}, {vr(r)}")
        if p < 56:
            ramp = {0: PR[0], 4: PR[1], 6: PR[2], 7: PR[3]}
            if p < 8:
                r0 = {2: 2, opts.get("r1", 6): 1, 7: 0}
                if p in r0: a(f"s_setprio {r0[p]}")
            elif p % 8 in ramp: a(f"s_setprio {ramp[p % 8]}")
        else:
            ramp = {56: PR[0], 62: PR[1], 64: PR[2], 65: PR[3]}
            if p in ramp: a(f"s_setprio {ramp[p]}")
        for i in (2, 3, 4, 5): ex(cur + i)
        if p < 65:
            a(f"s_waitcnt lgkmcnt({bars[p][0] if p in bars else 2})")
            a(f"v_mfma_f32_32x32x16_bf16 {vr(nxt,16)}, {vr(V_KF,4)}, {vr(V_QF,4)}, {vr(V_C,16)}")
        else:
            a("s_waitcnt lgkmcnt(0)")
        if p == 32:
            a(f"""v_add_u32 {vr(V_KA)}, 0x10000, {vr(V_KA)}
                  v_add_u32 {vr(V_VA)}, 0x10000, {vr(V_VA)}""")
        if p in bars:
            stamp(bars[p][1])
            a("s_barrier")
            stamp(bars[p][1] + 1)
        off = (p % 32) * 2048
        if p < 64:
            a(f"ds_read_b128 {vr(V_KF,4)}, {vr(V_KA)} offset:{off}")
        elif p == 64:
            a("s_nop 0")
        run(p, "A")
        for i in (6, 7, 8, 9, 10): ex(cur + i)
        a(f"v_smfmac_f32_32x32x32_bf16 {vr(V_O,16)}, {vr(vf,4)}, {vr(cur,8)}, {vr(V_IDX)}")
        run(p, "B")
        for i in (11, 12, 13, 14, 15): ex(cur + i)
        if p < 65:
            ex(nxt); ex(nxt + 1)
        else:
            a("s_nop 1")
        a(f"v_smfmac_f32_32x32x32_bf16 {vr(V_O,16)}, {vr(vf+4,4)}, {vr(cur+8,8)}, {vr(V_IDX)}")
        if p < 64:
            a(f"""s_mov_b64 exec, {sr(S_VMASK,2)}
                  ds_read_b128 {vr(vf,4)}, {vr(V_VA)} offset:{off+1024}
                  ds_read_b128 {vr(vf+4,4)}, {vr(V_VA)} offset:{off+1536}
                  s_mov_b64 exec, -1""")
        run(p, "C")

    a.c("normalise, publish o_B, output projection")
    VB0, VB1, VC0, VC1 = V_XOFF, V_WOFF, V_PQ, V_PQ + 1
    def wo_one(n, nt):
        b = V_WO + 8 * (n % 4) + 4 * nt
        ad = [V_WOA0, V_WOA1][nt] if n < 8 else ([VB0, VB1][nt] if n < 12 else [VC0, VC1][nt])
        off = n * 2048 if n < 8 else (n % 4) * 2048
        for u in range(2):
            a(f"ds_read_b64_tr_b16 {vr(b+2*u,2)}, {vr(ad)} offset:{off + u*1024}")
    def wo_rd(n):
        wo_one(n, 0); wo_one(n, 1)
    def mm(n, nt):
        src = V_FA + 4 * n if n < 8 else V_FBB + 4 * (n - 8)
        a(f"v_mfma_f32_32x32x16_bf16 {vr(V_OUT[nt],16)}, {vr(V_WO+8*(n%4)+4*nt,4)}, {vr(src,4)}, {'0' if n == 0 else vr(V_OUT[nt],16)}")
    wo_rd(0); wo_rd(1)
    a(f"""s_mov_b32 {sr(S_T0)}, {hex(f2u(2.0**64))}
          s_nop 2""")
    stamp(6)
    a(f"""v_rcp_f32 {vr(V_T0)}, {vr(V_O+8)}
          v_cmp_nle_f32 vcc, {vr(V_O+8)}, {sr(S_T0)}
          v_pk_mul_f32 {vr(V_T2,2)}, {vr(V_O,2)}, 0
          v_pk_fma_f32 {vr(V_T2,2)}, {vr(V_O+2,2)}, 0, {vr(V_T2,2)}
          v_pk_fma_f32 {vr(V_T2,2)}, {vr(V_O+4,2)}, 0, {vr(V_T2,2)}
          v_pk_fma_f32 {vr(V_T2,2)}, {vr(V_O+6,2)}, 0, {vr(V_T2,2)}
          v_cmp_u_f32 {sr(S_SAVE,2)}, {vr(V_T2)}, {vr(V_T3)}
          s_or_b64 vcc, vcc, {sr(S_SAVE,2)}
          s_cbranch_vccnz L_fallback""")
    a.label("L_norm")
    a(f"v_mul_f32 {vr(V_T0)}, {vr(V_T0)}, {vr(V_G)}")
    for i in range(0, 8, 2):
        a(f"v_pk_mul_f32 {vr(V_O+i,2)}, {vr(V_O+i,2)}, {vr(V_T0,2)} op_sel_hi:[1,0]")
    for i in range(4):
        a(f"v_cvt_pk_bf16_f32 {vr(V_PK+i)}, {vr(V_O+2*i)}, {vr(V_O+2*i+1)}")
    osan()
    a(f"buffer_store_dwordx4 {vr(V_PK,4)}, {vr(V_L16)}, {sr(S_WS,4)}, {sr(S_RDY)} offen sc1")
    wo_rd(2)
    a(f"""s_mov_b32 {sr(S_SPIN)}, 0
          s_waitcnt vmcnt(1)""")
    a.label("L_oa")
    a(f"v_max3_u32 {vr(V_FLG)}, {vr(V_FA)}, {vr(V_FA+1)}, {vr(V_FA+2)}")
    for i in range(3, 31, 2):
        a(f"v_max3_u32 {vr(V_FLG)}, {vr(V_FLG)}, {vr(V_FA+i)}, {vr(V_FA+i+1)}")
    a(f"""v_max_u32 {vr(V_FLG)}, {vr(V_FLG)}, {vr(V_FA+31)}
          v_cmp_eq_u32 vcc, -1, {vr(V_FLG)}
          s_cbranch_vccnz L_oar""")
    a.label("L_oak")
    A0, A1, A2, A3 = V_XA0, V_XA1, V_WA, V_KA
    setup = f"""s_lshl_b32 {sr(S_T0)}, {sr(S_HH)}, 13
          s_sub_u32 {sr(S_T1)}, {L_HI}, {sr(S_T0)}
          v_add_u32 {vr(VB0)}, {sr(S_T1)}, {vr(V_WOA0)}
          v_add_u32 {vr(VB1)}, {sr(S_T1)}, {vr(V_WOA1)}
          s_sub_u32 {sr(S_T1)}, 65536, {sr(S_T0)}
          v_add_u32 {vr(VC0)}, {sr(S_T1)}, {vr(V_WOA0)}
          v_add_u32 {vr(VC1)}, {sr(S_T1)}, {vr(V_WOA1)}
          v_and_b32 {vr(V_T0)}, 31, {vr(V_LANE)}
          v_lshrrev_b32 {vr(V_T1)}, 5, {vr(V_LANE)}
          v_and_b32 {vr(V_T2)}, 7, {vr(V_LANE)}
          v_xor_b32 {vr(V_T1)}, {vr(V_T1)}, {vr(V_T2)}
          v_lshlrev_b32 {vr(V_T1)}, 4, {vr(V_T1)}
          v_lshl_add_u32 {vr(V_T0)}, {vr(V_T0)}, 8, {vr(V_T1)}
          s_lshl_b32 {sr(S_T0)}, {sr(S_HH)}, 14
          s_lshl_b32 {sr(S_T1)}, {sr(S_RT)}, 13
          s_add_u32 {sr(S_T0)}, {sr(S_T0)}, {sr(S_T1)}
          v_add_u32 {vr(V_T0)}, {sr(S_T0)}, {vr(V_T0)}
          v_xor_b32 {vr(V_T1)}, 32, {vr(V_T0)}
          v_xor_b32 {vr(V_T2)}, 64, {vr(V_T0)}
          v_xor_b32 {vr(V_T3)}, 96, {vr(V_T0)}
          v_lshrrev_b32 {vr(A0)}, 3, {vr(V_LANE)}
          v_and_b32 {vr(A1)}, 7, {vr(V_LANE)}
          v_lshlrev_b32 {vr(A2)}, 1, {vr(A1)}
          v_xor_b32 {vr(A2)}, {vr(A2)}, {vr(A0)}
          v_lshlrev_b32 {vr(A2)}, 4, {vr(A2)}
          v_lshl_add_u32 {vr(A2)}, {vr(A0)}, 8, {vr(A2)}
          s_lshl_b32 {sr(S_T0)}, {sr(S_WAVE)}, 11
          v_add_u32 {vr(A2)}, {sr(S_T0)}, {vr(A2)}
          v_xor_b32 {vr(A3)}, 16, {vr(A2)}
          v_lshlrev_b32 {vr(A1)}, 4, {vr(A1)}
          v_lshl_add_u32 {vr(A0)}, {vr(A0)}, 10, {vr(A1)}
          s_lshl_b32 {sr(S_RDY)}, {sr(S_QO)}, 16
          s_lshl_b32 {sr(S_T1)}, {sr(S_WAVE)}, 13
          s_add_u32 {sr(S_RDY)}, {sr(S_RDY)}, {sr(S_T1)}
          s_lshl_b32 {sr(S_T1)}, {sr(S_NS)}, 7
          s_add_u32 {sr(S_RDY)}, {sr(S_RDY)}, {sr(S_T1)}""".split("\n")
    OBAT = opts.get("obat", 5)
    sched = {i: [] for i in range(8)}
    for k in range(8):
        sched[min(7, OBAT + (k * (8 - OBAT)) // 8)].append(k)
    per = (len(setup) + 3) // 4
    def chk(i):
        f = V_FBB + 4 * i
        a(f"s_waitcnt vmcnt({7-i})")
        a.label(f"L_ob{i}")
        a(f"""v_max3_u32 {vr(V_FLG)}, {vr(f)}, {vr(f+1)}, {vr(f+2)}
              v_max_u32 {vr(V_FLG)}, {vr(V_FLG)}, {vr(f+3)}
              v_cmp_eq_u32 vcc, -1, {vr(V_FLG)}
              s_cbranch_vccnz L_obr{i}""")
        a.label(f"L_obk{i}")
    OBM = opts.get("obm", 8)
    for n in range(12):
        if n == 8: stamp(7)
        if OBM and n == OBM:
            a("s_barrier")
            for k in range(8): oload(k, V_FBB, 1)
        if n >= 8: chk(n - 8)
        a(f"s_waitcnt lgkmcnt({4 * (min(n + 2, 11) - n)})")
        mm(n, 0); mm(n, 1)
        if n < 4:
            for l in setup[n*per:(n+1)*per]: a(l)
        if n + 3 < 12: wo_rd(n + 3)
        if n < 8 and not OBM:
            for k in sched[n]: oload(k, V_FBB, 1)
    if OBM != 8: a("s_barrier")
    stamp(8)
    for n in range(12, 16): wo_one(n, 0)
    for n in range(12, 15): wo_one(n, 1)
    for n in range(12, 16):
        chk(n - 8)
        a(f"s_waitcnt lgkmcnt({12 if n == 12 else 2*(15-n) + 8})")
        mm(n, 0)
        if n == 12: wo_one(15, 1)
    for n in range(12, 16):
        a(f"s_waitcnt lgkmcnt({2*(15-n)})")
        mm(n, 1)
    stamp(9)
    a("s_nop 3")
    for nt in range(2):
        if nt: a("s_nop 3")
        for g in range(4):
            a(f"ds_write_b128 {vr(V_T0+g)}, {vr(V_OUT[nt]+4*g,4)} offset:{nt*128}")
    a("""s_waitcnt lgkmcnt(0)
         s_barrier""")
    RR = V_FA
    for k in range(4):
        a(f"ds_read_b128 {vr(RR+8*k,4)}, {vr(A2)} offset:{k*16384}")
        a(f"ds_read_b128 {vr(RR+8*k+4,4)}, {vr(A3)} offset:{k*16384}")
    for k in range(1, 4):
        a(f"s_waitcnt lgkmcnt({2*(3-k)})")
        for i in range(0, 8, 2):
            a(f"v_pk_add_f32 {vr(RR+i,2)}, {vr(RR+i,2)}, {vr(RR+8*k+i,2)}")
    for i in range(4):
        a(f"v_cvt_pk_bf16_f32 {vr(RR+8+i)}, {vr(RR+2*i)}, {vr(RR+2*i+1)}")
    a(f"buffer_store_dwordx4 {vr(RR+8,4)}, {vr(A0)}, {sr(S_OUT,4)}, {sr(S_RDY)} offen " + ["", "nt", "sc0 sc1", "sc1", "sc1 nt"][opts.get("outf", 0)])
    if "dly" in opts:
        stamp(10)
        a(f"""s_cmp_lg_u32 s2, {opts.get('tswg', 100)}
              s_cbranch_scc1 L_end
              s_cmp_lg_u32 {sr(S_WAVE)}, 0
              s_cbranch_scc1 L_end
              s_memrealtime s[98:99]
              s_waitcnt lgkmcnt(0)
              s_sub_u32 {sr(S_T0)}, s100, s74
              s_lshl_b32 {sr(S_T0)}, {sr(S_T0)}, {opts.get('dsh', 2)}
              s_add_u32 {sr(S_T0)}, {sr(S_T0)}, 500
              s_min_u32 {sr(S_T0)}, {sr(S_T0)}, 30000""")
        a.label("L_dly2")
        a(f"""s_memrealtime s[96:97]
              s_waitcnt lgkmcnt(0)
              s_sub_u32 {sr(S_T1)}, s96, s98
              s_cmp_lt_u32 {sr(S_T1)}, {sr(S_T0)}
              s_cbranch_scc1 L_dly2""")
    if ts:
        stamp(10)
        ts_out()
    a.label("L_end")
    a("s_endpgm")

    a.c("retry paths of the hand-offs (bounded)")
    a.label("L_armr")
    a(f"""s_add_u32 {sr(S_SPIN)}, {sr(S_SPIN)}, 1
          s_cmp_ge_u32 {sr(S_SPIN)}, 100000
          s_cbranch_scc1 L_armk""")
    flag_load(S_INFO)
    a("""s_waitcnt vmcnt(0)
         s_branch L_arm""")
    a.label("L_oar")
    a(f"""s_add_u32 {sr(S_SPIN)}, {sr(S_SPIN)}, 1
          s_cmp_ge_u32 {sr(S_SPIN)}, 100000
          s_cbranch_scc1 L_oak""")
    for k in range(8): oload(k, V_FA, 0)
    a("""s_waitcnt vmcnt(0)
         s_branch L_oa""")
    RM = opts.get("rm", 1)
    for i in range(8):
        f = V_FBB + 4 * i
        a.label(f"L_obr{i}")
        a(f"""s_add_u32 {sr(S_SPIN)}, {sr(S_SPIN)}, 1
              s_cmp_ge_u32 {sr(S_SPIN)}, 100000
              s_cbranch_scc1 L_obk{i}""")
        if RM == 1:
            if opts.get("slp", 0): a(f"s_sleep {opts['slp']}")
            for k in range(i, 8): oload(k, V_FBB, 1)
            a(f"""s_waitcnt vmcnt({7-i})
                  s_branch L_ob{i}""")
        else:
            if opts.get("slp", 0): a(f"s_sleep {opts['slp']}")
            oload(i, V_FBB, 1)
            a(f"""s_waitcnt vmcnt(0)
                  v_max3_u32 {vr(V_FLG)}, {vr(f)}, {vr(f+1)}, {vr(f+2)}
                  v_max_u32 {vr(V_FLG)}, {vr(V_FLG)}, {vr(f+3)}
                  v_cmp_eq_u32 vcc, -1, {vr(V_FLG)}
                  s_cbranch_vccnz L_obr{i}""")
            for k in range(i + 1, 8): oload(k, V_FBB, 1)
            a(f"s_branch L_obk{i}")

    a.c("exact row maximum path")
    a.label("L_fallback")
    FS = V_S[0]
    a(f"""v_mov_b32 {vr(V_T0)}, 0xff800000
          s_mov_b32 {sr(S_T0)}, {WS_KV}""")
    a.label("L_fb1")
    a(f"""buffer_load_dwordx4 {vr(V_KF,4)}, {vr(V_L16)}, {sr(S_WS,4)}, {sr(S_T0)} offen sc1
          s_waitcnt vmcnt(0)
          v_mfma_f32_32x32x16_bf16 {vr(FS,16)}, {vr(V_KF,4)}, {vr(V_QF,4)}, 0
          s_nop 15""")
    for i in range(8):
        a(f"v_max3_f32 {vr(V_T0)}, {vr(V_T0)}, {vr(FS+2*i)}, {vr(FS+2*i+1)}")
    a(f"""s_add_u32 {sr(S_T0)}, {sr(S_T0)}, 2048
          s_cmp_lt_u32 {sr(S_T0)}, {WS_KV + 131072}
          s_cbranch_scc1 L_fb1
          v_mov_b32 {vr(V_T1)}, {vr(V_T0)}
          s_nop 1
          v_permlane32_swap_b32 {vr(V_T0)}, {vr(V_T1)}
          s_nop 1
          v_max_f32 {vr(V_T0)}, {vr(V_T0)}, {vr(V_T1)}""")
    for i in range(16):
        a(f"v_sub_f32 {vr(V_C+i)}, 0, {vr(V_T0)}")
        a(f"v_mov_b32 {vr(V_O+i)}, 0")
    a(f"""v_and_b32 {vr(V_VA)}, 0x3ff, {vr(V_VA)}
          s_mov_b32 {sr(S_T0)}, {WS_KV}""")
    a.label("L_fb2")
    a(f"""buffer_load_dwordx4 {vr(V_KF,4)}, {vr(V_L16)}, {sr(S_WS,4)}, {sr(S_T0)} offen sc1
          s_mov_b64 exec, {sr(S_VMASK,2)}
          buffer_load_dwordx4 {vr(V_VF[0],4)}, {vr(V_VA)}, {sr(S_WS,4)}, {sr(S_T0)} offen offset:1024 sc1
          buffer_load_dwordx4 {vr(V_VF[0]+4,4)}, {vr(V_VA)}, {sr(S_WS,4)}, {sr(S_T0)} offen offset:1536 sc1
          s_mov_b64 exec, -1
          s_waitcnt vmcnt(0)
          v_mfma_f32_32x32x16_bf16 {vr(FS,16)}, {vr(V_KF,4)}, {vr(V_QF,4)}, {vr(V_C,16)}
          s_nop 15""")
    for i in range(16):
        a(f"v_exp_f32 {vr(FS+i)}, {vr(FS+i)}")
    a(f"""s_nop 1
          v_smfmac_f32_32x32x32_bf16 {vr(V_O,16)}, {vr(V_VF[0],4)}, {vr(FS,8)}, {vr(V_IDX)}
          v_smfmac_f32_32x32x32_bf16 {vr(V_O,16)}, {vr(V_VF[0]+4,4)}, {vr(FS+8,8)}, {vr(V_IDX)}
          s_add_u32 {sr(S_T0)}, {sr(S_T0)}, 2048
          s_cmp_lt_u32 {sr(S_T0)}, {WS_KV + 131072}
          s_cbranch_scc1 L_fb2
          s_nop 15
          v_rcp_f32 {vr(V_T0)}, {vr(V_O+8)}
          s_nop 0
          s_branch L_norm""")

    H_F4, H_FOFF = 148, 152
    S_ROT = S_HEAD
    def rot_setup():
        a(f"""s_and_b32 {sr(S_ROT)}, s2, 7
              s_lshl_b32 {sr(S_ROT)}, {sr(S_ROT)}, 3""")
    def kv_sample():
        a(f"buffer_load_dwordx4 {vr(H_F4,4)}, {vr(H_FOFF)}, {sr(S_WS,4)}, 0 offen offset:{WS_FKV} sc1")
    def kv_spin(lbl, lo_only):
        a(f"s_mov_b32 {sr(S_SPIN)}, 0")
        a.label(lbl + "_loop")
        a(f"""v_cmp_ne_u32 vcc, {vr(H_F4)}, {vr(V_TAG)}
              v_cmp_ne_u32 {sr(S_SAVE,2)}, {vr(H_F4+1)}, {vr(V_TAG)}
              s_or_b64 vcc, vcc, {sr(S_SAVE,2)}
              v_cmp_ne_u32 {sr(S_SAVE,2)}, {vr(H_F4+2)}, {vr(V_TAG)}
              s_or_b64 vcc, vcc, {sr(S_SAVE,2)}
              v_cmp_ne_u32 {sr(S_SAVE,2)}, {vr(H_F4+3)}, {vr(V_TAG)}
              s_or_b64 vcc, vcc, {sr(S_SAVE,2)}""")
        if lo_only:
            a(f"s_and_b32 {sr(S_SAVE)}, vcc_lo, 0xff\ns_cmp_eq_u32 {sr(S_SAVE)}, 0")
        else:
            a("s_cmp_eq_u64 vcc, 0")
        a(f"""s_cbranch_scc1 {lbl}_ok
              s_add_u32 {sr(S_SPIN)}, {sr(S_SPIN)}, 1
              s_cmp_ge_u32 {sr(S_SPIN)}, 100000
              s_cbranch_scc1 {lbl}_ok""")
        if lo_only: a("s_mov_b64 exec, 0xff")
        kv_sample()
        if lo_only: a("s_mov_b64 exec, -1")
        a(f"""s_waitcnt vmcnt(0)
              s_branch {lbl}_loop""")
        a.label(lbl + "_ok")
    def kv_dma(lbl, s0, n):
        a(f"""s_mul_i32 {sr(S_T0)}, {sr(S_RT)}, {n}
              s_add_u32 {sr(S_T0)}, {sr(S_T0)}, {s0}
              s_add_u32 {sr(S_T2)}, {sr(S_T0)}, {n}""")
        a.label(lbl)
        a(f"""s_add_u32 {sr(S_T1)}, {sr(S_T0)}, {sr(S_ROT)}
              s_and_b32 {sr(S_T1)}, {sr(S_T1)}, 63
              s_lshl_b32 {sr(S_T1)}, {sr(S_T1)}, 11
              s_add_u32 {sr(S_T1)}, {sr(S_T1)}, {WS_KV}
              s_lshl_b32 m0, {sr(S_T0)}, 11
              s_waitcnt vmcnt(40)""")
        for k in range(4):
            a(f"buffer_load_dwordx4 {vr(V_L16)}, {sr(S_WS,4)}, {sr(S_T1)} offen offset:{k*1024} sc1 lds")
        a(f"""s_add_u32 m0, m0, 4096
              s_add_u32 {sr(S_T1)}, {sr(S_T1)}, 4096""")
        for k in range(4):
            a(f"buffer_load_dwordx4 {vr(V_L16)}, {sr(S_WS,4)}, {sr(S_T1)} offen offset:{k*1024} sc1 lds")
        a(f"""s_add_u32 {sr(S_T0)}, {sr(S_T0)}, 4
              s_cmp_lt_u32 {sr(S_T0)}, {sr(S_T2)}
              s_cbranch_scc1 {lbl}""")
    def swz64(dst, stride):
        a(f"""v_lshrrev_b32 {vr(V_T0)}, 3, {vr(V_LANE)}
              v_bfe_u32 {vr(V_T1)}, {vr(V_LANE)}, 4, 1
              v_lshlrev_b32 {vr(V_T1)}, 2, {vr(V_T1)}
              v_xor_b32 {vr(V_T1)}, {vr(V_T1)}, {vr(V_LANE)}
              v_and_b32 {vr(V_T1)}, 7, {vr(V_T1)}
              v_lshlrev_b32 {vr(V_T1)}, 4, {vr(V_T1)}
              v_mul_u32_u24 {vr(V_T0)}, {stride}, {vr(V_T0)}
              v_add_u32 {vr(dst)}, {vr(V_T0)}, {vr(V_T1)}""")

    KACC = [24, 40]
    KB = [56, 68]
    KV0, KV1 = 153, 154
    S_KO, S_KM = S_U2, S_U3
    S_KW = S_WOB
    def kv_setup(init=True):
        srd(S_KW, 2, 0x180000)
        srd(S_WS, 22, WS_SIZE)
        consts()
        swz64(KV0, 3072)
        a(f"""v_add_u32 {vr(KV1)}, {24576 - 1024}, {vr(KV0)}
              s_sub_u32 {sr(S_AUX)}, {sr(S_WAVE)}, 8
              s_and_b32 {sr(S_RT)}, {sr(S_AUX)}, 1
              s_lshl_b32 {sr(S_KM)}, {sr(S_AUX)}, 13
              s_add_u32 {sr(S_KM)}, {sr(S_KM)}, {L_HI}
              s_lshl_b32 {sr(S_KO)}, {sr(S_HGK)}, 7
              s_cmp_lt_u32 {sr(S_AUX)}, 2
              s_cselect_b32 {sr(S_T1)}, 2, 1
              s_cselect_b32 {sr(S_T2)}, 0, {sr(S_EPS)}
              s_lshl_b32 {sr(S_T1)}, {sr(S_T1)}, 10
              s_add_u32 {sr(S_KO)}, {sr(S_KO)}, {sr(S_T1)}""")
        if init:
            for i in range(32):
                a(f"v_mov_b32 {vr(KACC[0]+i)}, {sr(S_T2)}")
        a.split = len(a.lines)
        xfrag_addr(S_RT)
        a(f"""v_lshlrev_b32 {vr(V_T0)}, 10, {vr(V_T1)}
              v_bfe_u32 {vr(V_T1)}, {vr(V_LANE)}, 2, 2
              v_lshl_add_u32 {vr(V_T0)}, {vr(V_T1)}, 7, {vr(V_T0)}
              v_bfe_u32 {vr(V_T1)}, {vr(V_LANE)}, 3, 1
              v_lshl_add_u32 {vr(V_T0)}, {vr(V_T1)}, 6, {vr(V_T0)}
              v_bfe_u32 {vr(V_T1)}, {vr(V_LANE)}, 4, 1
              v_lshl_add_u32 {vr(V_T0)}, {vr(V_T1)}, 5, {vr(V_T0)}
              v_and_b32 {vr(V_T1)}, 3, {vr(V_LANE)}
              v_lshl_add_u32 {vr(V_T0)}, {vr(V_T1)}, 3, {vr(V_T0)}
              v_add_u32 {vr(V_WOA0)}, {sr(S_KM)}, {vr(V_T0)}
              v_xor_b32 {vr(V_WOA1)}, 64, {vr(V_WOA0)}""")
    def kdma(st):
        a(f"s_add_u32 m0, {sr(S_KM)}, {(st % 4)*2048}")
        if st % 4 == 0:
            a(f"""s_xor_b32 {sr(S_U1)}, {sr(S_J)}, {st//4}
                  s_mul_i32 {sr(S_U1)}, {sr(S_U1)}, 196608
                  s_add_u32 {sr(S_U1)}, {sr(S_U1)}, {sr(S_KO)}""")
        else:
            a(f"s_add_u32 {sr(S_U1)}, {sr(S_U1)}, 49152")
        a.vmem(f"buffer_load_dwordx4 {vr(KV0)}, {sr(S_KW,4)}, {sr(S_U1)} offen lds", f"k{st}")
        a.vmem(f"buffer_load_dwordx4 {vr(KV1)}, {sr(S_KW,4)}, {sr(S_U1)} offen offset:1024 lds", f"k{st}")
    def krd(st):
        b = KB[st % 2]
        a(f"ds_read_b128 {vr(b,4)}, {vr(V_XA0 if st%2==0 else V_XA1)} offset:{(st//2)*4096}")
        for nt in range(2):
            for u in range(2):
                a(f"ds_read_b64_tr_b16 {vr(b+4+4*nt+2*u,2)}, {vr(V_WOA0 if nt==0 else V_WOA1)} offset:{(st%4)*2048 + u*512}")
    def kv_pass(bars, after={}, zero=False):
        a.vm = []
        for st in range(4): kdma(st)
        for _ in range(bars.get(-1, 0)): a("s_barrier")
        a.wait_vm("k0")
        for _ in range(bars.get(0, 0)): a("s_barrier")
        krd(0)
        for st in range(32):
            if st + 1 < 32:
                if f"k{st+1}" in a.vm: a.wait_vm(f"k{st+1}")
                for _ in range(bars.get(st + 1, 0)): a("s_barrier")
                if st + 1 in after: after[st + 1]()
                krd(st + 1)
            a(f"s_waitcnt lgkmcnt({5 if st + 1 < 32 else 0})")
            b = KB[st % 2]
            for nt in range(2):
                a(f"v_mfma_f32_32x32x16_bf16 {vr(KACC[nt],16)}, {vr(b,4)}, {vr(b+4+4*nt,4)}, {'0' if (zero and st == 0) else vr(KACC[nt],16)}")
                if nt == (0 if opts.get("ksp", 0) else 1) and st + 4 < 32: kdma(st + 4)
    def foff_setup():
        a(f"""v_add_u32 {vr(H_FOFF)}, {sr(S_ROT)}, {vr(V_LANE)}
              v_and_b32 {vr(H_FOFF)}, 63, {vr(H_FOFF)}
              v_lshlrev_b32 {vr(H_FOFF)}, 4, {vr(H_FOFF)}""")

    TG = 80
    TKA, TVA = 12, 155
    S_TG = S_RDY
    def tg_setup(which):
        a(f"""v_and_b32 {vr(V_T0)}, 15, {vr(V_LANE)}
              v_lshlrev_b32 {vr(V_T0)}, 4, {vr(V_T0)}
              v_bfe_u32 {vr(V_T1)}, {vr(V_LANE)}, 4, 1
              v_lshrrev_b32 {vr(V_T2)}, 5, {vr(V_LANE)}
              v_lshl_add_u32 {vr(TKA)}, {vr(V_T1)}, 9, {vr(V_T0)}
              v_lshl_add_u32 {vr(TKA)}, {vr(V_T2)}, 3, {vr(TKA)}
              v_lshl_add_u32 {vr(TVA)}, {vr(V_T2)}, 8, {vr(V_T0)}
              v_lshl_add_u32 {vr(TVA)}, {vr(V_T1)}, 3, {vr(TVA)}
              s_lshl_b32 {sr(S_TG)}, {sr(S_ROT)}, 12
              s_add_u32 {sr(S_TG)}, {sr(S_TG)}, {WS_KVT + which*16384}""")
    def tg_loads():
        for t in range(4):
            a(f"s_add_u32 {sr(S_T0)}, {sr(S_TG)}, {t*4096}")
            for jb in range(4):
                a(f"buffer_load_dwordx4 {vr(TG+16*t+4*jb,4)}, {vr(V_L16)}, {sr(S_WS,4)}, {sr(S_T0)} offen offset:{jb*1024} sc1")
    def tg_finish(lbl, which):
        a(f"s_mov_b32 {sr(S_SPIN)}, 0")
        a.label(lbl + "_loop")
        a("s_waitcnt vmcnt(0)")
        a(f"v_min3_u32 {vr(V_T0)}, {vr(V_TAG)}, {vr(TG+1)}, {vr(TG+3)}")
        a(f"v_max3_u32 {vr(V_T1)}, {vr(V_TAG)}, {vr(TG+1)}, {vr(TG+3)}")
        for g in range(1, 16):
            a(f"v_min3_u32 {vr(V_T0)}, {vr(V_T0)}, {vr(TG+4*g+1)}, {vr(TG+4*g+3)}")
            a(f"v_max3_u32 {vr(V_T1)}, {vr(V_T1)}, {vr(TG+4*g+1)}, {vr(TG+4*g+3)}")
        a(f"""v_cmp_ne_u32 vcc, {vr(V_T0)}, {vr(V_T1)}
              s_cbranch_vccz {lbl}_ok
              s_add_u32 {sr(S_SPIN)}, {sr(S_SPIN)}, 1
              s_cmp_ge_u32 {sr(S_SPIN)}, 100000
              s_cbranch_scc1 {lbl}_ok""")
        tg_loads()
        a(f"s_branch {lbl}_loop")
        a.label(lbl + "_ok")
        for t in range(4):
            for jb in range(4):
                a(f"v_mov_b32 {vr(TG+16*t+4*jb+1)}, {vr(TG+16*t+4*jb+2)}")
            if t == 3: a("s_waitcnt lgkmcnt(8)")
            for jb in range(4):
                ad = TVA if jb & 1 else TKA
                off = (4 * which + t) * 2048 + ((1024 + (jb >> 1) * 512) if jb & 1 else (jb >> 1) * 256)
                a(f"ds_write_b64 {vr(ad)}, {vr(TG+16*t+4*jb,2)} offset:{off}")
        a("s_waitcnt lgkmcnt(0)")
    C_TG = opts.get("c_tg", 6)

    a.c("aux 0: K/V/gate job")
    a.label("L_a0")
    a.vm = []
    HX, HW, HG_, HD, HDG = 16, 48, 80, 144, 112
    H_GWA = 8
    S_JX, S_JM = S_U0, S_U1
    a(f"""s_setprio 3
          s_lshl_b32 {sr(S_T1)}, {sr(S_RGJ)}, 14
          s_add_u32 {sr(S_JX)}, {sr(S_T0)}, {sr(S_T1)}
          s_lshl_b32 {sr(S_T1)}, {sr(S_RGJ)}, 10
          s_add_u32 {sr(S_JM)}, {sr(S_T1)}, {L_X}
          s_mov_b32 {sr(S_WJ+2)}, 16384
          s_mov_b32 {sr(S_WJ+3)}, 0x20000
          s_bitcmp1_b32 {sr(S_HG)}, 0
          s_waitcnt lgkmcnt(0)
          s_mov_b32 {sr(S_X)}, {sr(S_KA+0)}
          s_mov_b32 {sr(S_X+1)}, {sr(S_KA+1)}
          s_cselect_b32 {sr(S_WJ)}, {sr(S_KA+12)}, {sr(S_KA+10)}
          s_cselect_b32 {sr(S_WJ+1)}, {sr(S_KA+13)}, {sr(S_KA+11)}
          s_load_dword {sr(S_TAG)}, {sr(S_KA+22,2)}, {WS_E}""")
    a(f"""s_lshl_b32 {sr(S_U2)}, {sr(S_J)}, 11
          s_lshl_b32 {sr(S_T1)}, {sr(S_J)}, 7
          v_xor_b32 {vr(V_T0)}, {sr(S_T1)}, {vr(V_L16)}""")
    def jload(g):
        for k in range(4):
            kb = 4 * g + k
            a(f"s_add_u32 m0, {sr(S_JM)}, {kb*4096 - (k%2)*64}")
            a(f"s_xor_b32 {sr(S_T1)}, {sr(S_JX)}, {(kb//2)*128}" if k % 2 == 0 else "s_nop 0")
            a.vmem(f"buffer_load_dwordx4 {vr(V_XOFF)}, {sr(S_X,4)}, {sr(S_T1)} offen offset:{(k%2)*64} lds", f"j{g}")
        for k in range(2):
            a(f"s_mov_b32 m0, {L_JW + g*4096 + k*2048}")
            a(f"s_xor_b32 {sr(S_T2)}, {sr(S_U2)}, {g*4096 + k*2048}")
            for q in range(2):
                a.vmem(f"buffer_load_dwordx4 {vr(V_L16)}, {sr(S_WJ,4)}, {sr(S_T2)} offen offset:{q*1024} lds", f"j{g}")
    jload(0)
    srd(S_W, 16, 1024)
    a(f"s_mov_b32 m0, {L_GW}\ns_nop 0")
    a.vmem(f"buffer_load_dwordx4 {vr(V_T0)}, {sr(S_W,4)}, 0 offen lds", "gw")
    jload(1); jload(2); jload(3)
    srd(S_WS, 22, WS_SIZE)
    rot_setup()
    a(f"""v_and_b32 {vr(V_T0)}, 15, {vr(V_LANE)}
          v_lshrrev_b32 {vr(V_T1)}, 4, {vr(V_LANE)}
          v_bfe_u32 {vr(V_T2)}, {vr(V_LANE)}, 2, 2
          v_xor_b32 {vr(V_T2)}, {vr(V_T2)}, {vr(V_T1)}
          v_lshlrev_b32 {vr(V_T2)}, 4, {vr(V_T2)}
          v_lshl_add_u32 {vr(V_T2)}, {vr(V_T0)}, 6, {vr(V_T2)}
          v_add_u32 {vr(V_T2)}, {sr(S_JM)}, {vr(V_T2)}
          v_lshlrev_b32 {vr(V_T3)}, 3, {vr(V_T0)}
          v_lshl_add_u32 {vr(V_T3)}, {vr(V_T1)}, 8, {vr(V_T3)}
          v_lshlrev_b32 {vr(H_GWA)}, 4, {vr(V_T1)}
          v_add_u32 {vr(H_GWA)}, {L_GW}, {vr(H_GWA)}
          v_lshlrev_b32 {vr(13)}, 4, {vr(V_T0)}
          v_and_b32 {vr(14)}, 1, {vr(V_T1)}
          v_lshrrev_b32 {vr(15)}, 1, {vr(V_T1)}
          {f"s_lshl_b32 {sr(S_T0)}, {sr(S_QB)}, 1" if MAP == 48 else f"s_and_b32 {sr(S_T0)}, {sr(S_QB)}, 7"}
          {f"s_lshr_b32 {sr(S_T1)}, {sr(S_RGJ)}, 1" if MAP == 48 else f"s_mov_b32 {sr(S_T1)}, {sr(S_ROT)}"}
          s_add_u32 {sr(S_SEG)}, {sr(S_T0)}, {sr(S_T1)}
          s_lshl_b32 {sr(S_T3)}, {sr(S_SEG)}, 4
          s_and_b32 {sr(S_T0)}, {sr(S_HG)}, 3
          s_lshl_b32 {sr(S_T0)}, {sr(S_T0)}, 2
          s_add_u32 {sr(S_T3)}, {sr(S_T3)}, {sr(S_T0)}
          s_add_u32 {sr(S_T3)}, {sr(S_T3)}, {WS_FKV}""")
    tag_setup()
    if opts.get("lst"): stamp(19)
    vmh = list(a.vm)
    def job(isV):
        a.vm = list(vmh)
        nr = 3 if isV else 4
        for half in range(2):
            a.wait_vm(f"j{2*half}")
            if opts.get("lst"): stamp(20 + 3*half)
            a("s_barrier")
            if opts.get("lst"): stamp(21 + 3*half)
            a.wait_vm(f"j{2*half+1}")
            if opts.get("lst"): stamp(22 + 3*half)
            def rd(k):
                s = 8 * half + k
                a(f"ds_read_b128 {vr(HX+4*k,4)}, {vr(V_T2)} offset:{s*4096}")
                a(f"ds_read_b64_tr_b16 {vr(HW+4*k,2)}, {vr(V_T3)} offset:{L_JW + s*1024}")
                a(f"ds_read_b64_tr_b16 {vr(HW+4*k+2,2)}, {vr(V_T3)} offset:{L_JW + s*1024 + 128}")
                if not isV: a(f"ds_read_b128 {vr(HG_+4*k,4)}, {vr(H_GWA)} offset:{s*64}")
            rd(0); rd(1); rd(2)
            for k in range(8):
                a(f"s_waitcnt lgkmcnt({nr * (min(k + 2, 7) - k)})")
                z = half == 0 and k == 0
                A_, B_ = (HX, HW) if isV else (HW, HX)
                a(f"v_mfma_f32_16x16x32_bf16 {vr(HD,4)}, {vr(A_+4*k,4)}, {vr(B_+4*k,4)}, {'0' if z else vr(HD,4)}")
                if not isV: a(f"v_mfma_f32_16x16x32_bf16 {vr(HDG,4)}, {vr(HG_+4*k,4)}, {vr(HX+4*k,4)}, {'0' if z else vr(HDG,4)}")
                if k + 3 < 8: rd(k + 3)
        a(f"s_and_b32 {sr(S_T1)}, {sr(S_RGJ)}, 1")
        if isV:
            a(f"""v_lshl_add_u32 {vr(13)}, {vr(15)}, 8, {vr(13)}
                  v_lshl_add_u32 {vr(13)}, {vr(14)}, 3, {vr(13)}
                  s_lshl_b32 {sr(S_T1)}, {sr(S_T1)}, 9
                  s_add_u32 {sr(S_T1)}, {sr(S_T1)}, 1024""")
        else:
            a(f"""v_lshl_add_u32 {vr(13)}, {vr(14)}, 9, {vr(13)}
                  v_lshl_add_u32 {vr(13)}, {vr(15)}, 3, {vr(13)}
                  s_lshl_b32 {sr(S_T1)}, {sr(S_T1)}, 8
                  s_lshl_b32 {sr(S_T0)}, {sr(S_QB)}, 2
                  s_add_u32 {sr(S_T0)}, {sr(S_T0)}, {sr(S_RGJ)}
                  s_lshl_b32 {sr(S_T0)}, {sr(S_T0)}, 7
                  s_add_u32 {sr(S_T0)}, {sr(S_T0)}, {WS_G}
                  s_mov_b32 {sr(S_T2)}, {hex(f2u(LOG2E))}
                  v_mul_f32 {vr(HDG)}, {sr(S_T2)}, {vr(HDG)}
                  v_exp_f32 {vr(HDG)}, -{vr(HDG)}
                  s_nop 0
                  v_add_f32 {vr(HDG)}, 1.0, {vr(HDG)}
                  v_rcp_f32 {vr(HDG)}, {vr(HDG)}
                  s_mov_b32 exec_hi, 0
                  buffer_store_dword {vr(HDG)}, {vr(V_L4)}, {sr(S_WS,4)}, {sr(S_T0)} offen sc1
                  s_mov_b32 exec_hi, -1""")
    a(f"""s_bitcmp1_b32 {sr(S_HG)}, 0
          s_cbranch_scc1 L_jobV""")
    job(False)
    a("s_branch L_jobdone")
    a.label("L_jobV")
    job(True)
    a.label("L_jobdone")
    a.vm = []
    a(f"""s_lshl_b32 {sr(S_T0)}, {sr(S_SEG)}, 11
          s_add_u32 {sr(S_T0)}, {sr(S_T0)}, {sr(S_T1)}
          s_add_u32 {sr(S_T0)}, {sr(S_T0)}, {WS_KV}
          s_nop 1
          v_cvt_pk_bf16_f32 {vr(HD+4)}, {vr(HD)}, {vr(HD+1)}
          v_cvt_pk_bf16_f32 {vr(HD+5)}, {vr(HD+2)}, {vr(HD+3)}
          v_mov_b32 {vr(HX)}, {vr(HD+4)}
          v_mov_b32 {vr(HX+1)}, {vr(V_TAG)}
          v_mov_b32 {vr(HX+2)}, {vr(HD+5)}
          v_mov_b32 {vr(HX+3)}, {vr(V_TAG)}
          s_lshl_b32 {sr(S_T1)}, {sr(S_SEG)}, 2
          s_and_b32 {sr(S_T2)}, {sr(S_HG)}, 3
          s_add_u32 {sr(S_T1)}, {sr(S_T1)}, {sr(S_T2)}
          s_lshl_b32 {sr(S_T1)}, {sr(S_T1)}, 10
          s_add_u32 {sr(S_T1)}, {sr(S_T1)}, {WS_KVT}
          buffer_store_dwordx4 {vr(HX,4)}, {vr(V_L16)}, {sr(S_WS,4)}, {sr(S_T1)} offen {"" if opts.get("plaint", 0) else "sc1"}
          v_mov_b32 {vr(14)}, 0
          s_lshl_b32 {sr(S_T1)}, s2, 8
          s_add_u32 {sr(S_T1)}, {sr(S_T1)}, {WS_ACC}
          buffer_store_dwordx2 {vr(HD+4,2)}, {vr(13)}, {sr(S_WS,4)}, {sr(S_T0)} offen sc1
          buffer_store_dword {vr(14)}, {vr(V_L4)}, {sr(S_WS,4)}, {sr(S_T1)} offen sc1""")
    stamp(1)
    C_SIG = opts.get("c_sig", 4)
    for c in range(2, 8):
        a("s_barrier")
        if c == 2:
            kv_setup(False)
            rest = a.lines[a.split:]; a.lines = a.lines[:a.split]
        if c == 3: tg_setup(0)
        if c == 5: a.lines += rest
        if c == C_SIG:
            a("s_waitcnt vmcnt(0)")
            flag_store(S_T3)
            stamp(2)
        if c == C_TG: tg_loads()
    stamp(3)
    tg_finish("L_tg0", 0)
    stamp(4)
    a("s_barrier")
    a.label("L_kv01")
    kv_pass({opts.get("n1", 8): 1}, zero=True)
    a("s_branch L_kvend")

    a.c("aux 1: weight loader")
    a.label("L_a1")
    a.vm = []
    LV = [16, 20]
    SO = [S_U0, S_U1]
    a(f"""s_setprio 3
          v_lshrrev_b32 {vr(V_T0)}, 1, {vr(V_LANE)}
          v_and_b32 {vr(V_T0)}, 3, {vr(V_T0)}
          v_bfe_u32 {vr(V_T1)}, {vr(V_LANE)}, 4, 1
          v_xor_b32 {vr(V_T0)}, {vr(V_T0)}, {vr(V_T1)}
          v_lshlrev_b32 {vr(V_T0)}, 5, {vr(V_T0)}
          v_and_b32 {vr(V_T1)}, 1, {vr(V_LANE)}
          v_lshl_add_u32 {vr(V_T0)}, {vr(V_T1)}, 4, {vr(V_T0)}
          v_lshrrev_b32 {vr(V_T1)}, 3, {vr(V_LANE)}
          v_lshl_add_u32 {vr(LV[0])}, {vr(V_T1)}, 10, {vr(V_T0)}
          v_mul_u32_u24 {vr(V_T1)}, 3072, {vr(V_T1)}
          v_add_u32 {vr(LV[1])}, {vr(V_T1)}, {vr(V_T0)}
          v_xor_b32 {vr(LV[1])}, 64, {vr(LV[1])}""")
    for rg in range(1, 4):
        a(f"""v_add_u32 {vr(LV[0]+rg)}, {rg*(8192-1024)}, {vr(LV[0])}
              v_add_u32 {vr(LV[1]+rg)}, {rg*(24576-1024)}, {vr(LV[1])}""")
    a(f"""s_lshl_b32 {sr(SO[0])}, {sr(S_HG)}, 7
          s_lshl_b32 {sr(SO[1])}, {sr(S_HGQ)}, 7
          s_waitcnt lgkmcnt(0)
          s_load_dword {sr(S_TAG)}, {sr(S_KA+22,2)}, {WS_E}""")
    srd(S_W, 8, 0x80000)
    srd(S_WJ, 2, 0x180000)
    def lw(c):
        a(f"""s_xor_b32 {sr(S_T0)}, {sr(S_J)}, {c}
              s_lshl_b32 {sr(S_T1)}, {sr(S_T0)}, 16
              s_add_u32 {sr(S_T1)}, {sr(S_T1)}, {sr(SO[0])}
              s_mul_i32 {sr(S_T2)}, {sr(S_T0)}, 196608
              s_add_u32 {sr(S_T2)}, {sr(S_T2)}, {sr(SO[1])}""")
        for hf in range(2):
            for m in range(2):
                so = [S_T1, S_T2][m]
                a(f"s_mov_b32 m0, {RSLOT[c % 4] + m*8192 + hf*4096}")
                a("s_nop 0" if hf == 0 else f"s_add_u32 {sr(so)}, {sr(so)}, {32768 if m == 0 else 98304}")
                for rg in range(4):
                    a.vmem(f"buffer_load_dwordx4 {vr(LV[m]+rg)}, {sr(S_W if m == 0 else S_WJ,4)}, {sr(so)} offen offset:{rg*1024} lds", f"w{c}")
    NPRE = opts.get("npre", 2)
    if opts.get("lst"): stamp(18)
    for c in range(NPRE): lw(c)
    if opts.get("lst"): stamp(19)
    kv_setup(False); rot_setup(); tg_setup(1)
    tag_setup()
    nxt = NPRE
    for c in range(8):
        a.wait_vm(f"w{c}")
        if opts.get("lst"): stamp(20 + c) if c < 4 else None
        a("s_barrier")
        if opts.get("lst"): stamp(24 + c)
        k = 0
        while nxt <= min(7, c + 3) and k < 2:
            lw(nxt); nxt += 1; k += 1
        if c == max(C_TG, 5):
            tg_loads()
            a.vm += ["tg"] * 16
    tg_finish("L_tg1", 1)
    stamp(4)
    a("""s_barrier
         s_branch L_kv01""")

    a.c("aux 2,3: x rounds, K/V tiles")
    a.label("L_a23")
    a.vm = []
    a(f"""s_setprio 3
          s_sub_u32 {sr(S_T1)}, {sr(S_WAVE)}, 8
          s_lshl_b32 {sr(S_T2)}, {sr(S_T1)}, 8
          s_xor_b32 {sr(S_T0)}, {sr(S_T0)}, {sr(S_T2)}
          s_lshl_b32 {sr(S_T1)}, {sr(S_T1)}, 14
          s_add_u32 {sr(S_T1)}, {sr(S_T1)}, {L_X}
          s_waitcnt lgkmcnt(0)
          s_mov_b32 {sr(S_X)}, {sr(S_KA+0)}
          s_mov_b32 {sr(S_X+1)}, {sr(S_KA+1)}
          s_load_dword {sr(S_TAG)}, {sr(S_KA+22,2)}, {WS_E}""")
    tag_setup()
    XB = opts.get("xb", 0)
    for c in range(XB): a("s_barrier")
    for i in range(3):
        a(f"""s_add_u32 {sr(S_T3)}, {sr(S_RGJ)}, {i+1}
              s_and_b32 {sr(S_T3)}, {sr(S_T3)}, 3
              s_lshl_b32 {sr(S_T2)}, {sr(S_T3)}, 10
              s_add_u32 {sr(S_U0)}, {sr(S_T2)}, {sr(S_T1)}
              s_lshl_b32 {sr(S_T2)}, {sr(S_T3)}, 14
              s_add_u32 {sr(S_U1)}, {sr(S_T2)}, {sr(S_T0)}""")
        if i > 0 or XB == 0 or True:
            a("s_barrier")
        for k in range(4):
            a(f"s_add_u32 m0, {sr(S_U0)}, {k*4096 - (k%2)*64}")
            a(f"s_xor_b32 {sr(S_U1)}, {sr(S_U1)}, 128" if k == 2 else "s_nop 0")
            a(f"buffer_load_dwordx4 {vr(V_XOFF)}, {sr(S_X,4)}, {sr(S_U1)} offen offset:{(k%2)*64} lds")
        if i == opts.get("kpf", 1):
            srd(S_WOB, 2, 0x180000)
            a(f"""v_lshrrev_b32 {vr(V_T0)}, 3, {vr(V_LANE)}
                  v_mul_u32_u24 {vr(V_T0)}, 3072, {vr(V_T0)}
                  v_and_b32 {vr(V_T1)}, 7, {vr(V_LANE)}
                  v_lshl_add_u32 {vr(V_T0)}, {vr(V_T1)}, 7, {vr(V_T0)}
                  s_mul_i32 {sr(S_T2)}, s2, 6144
                  s_sub_u32 {sr(S_T3)}, {sr(S_WAVE)}, 9
                  s_lshl_b32 {sr(S_T3)}, {sr(S_T3)}, 10
                  s_add_u32 {sr(S_T2)}, {sr(S_T2)}, {sr(S_T3)}
                  s_mov_b64 exec, 0xffff
                  buffer_load_dword {vr(V_FLG)}, {vr(V_T0)}, {sr(S_WOB,4)}, {sr(S_T2)} offen
                  s_mov_b64 exec, -1""")
    assert XB == 0
    kv_setup(); rot_setup(); foff_setup()
    def stageB():
        kv_sample()
        a("s_waitcnt vmcnt(0)")
        kv_spin("L_skvB", False)
        stamp(5)
        kv_dma("L_kvdB", 8, 12)
        a(f"""s_or_b32 {sr(S_T0)}, s2, {sr(S_RT)}
              s_cmp_lg_u32 {sr(S_T0)}, 0
              s_cbranch_scc1 L_noep
              s_mov_b32 {sr(S_T0)}, {WS_E}""")
        flag_store(S_T0)
        a.label("L_noep")
        a.vm = []
    ES = opts.get("es", 5)
    for c in range(3, ES + 1):
        if c == 4: a("s_waitcnt vmcnt(0)")
        a("s_barrier")
    bars_ = {}
    st = -1
    for c in range(ES + 1, 8):
        bars_[st] = bars_.get(st, 0) + 1
        st = 1 if st < 0 else st + opts.get("esp", 1)
    ne, n2 = opts.get("ne", 6), opts.get("n2", 11)
    assert n2 >= ne + 4
    bars_[ne] = bars_.get(ne, 0) + 1
    bars_[n2] = bars_.get(n2, 0) + 1
    kv_pass(bars_, {ne: stageB})

    a.c("aux: k_A/v_A epilogue")
    a.label("L_kvend")
    stamp(12)
    a(f"""v_add_u32 {vr(V_XA0)}, {sr(S_KM)}, {vr(V_L16)}
          s_nop 8
          s_cmp_lt_u32 {sr(S_AUX)}, 2
          s_cbranch_scc1 L_kcvt""")
    phi(KACC[0], 32, 56)
    a(f"""s_cmp_eq_u32 {sr(S_AUX)}, 2
          s_cselect_b32 {sr(S_WOA)}, {sr(S_KA+4)}, {sr(S_KA+14)}
          s_cselect_b32 {sr(S_WOA+1)}, {sr(S_KA+5)}, {sr(S_KA+15)}
          s_mov_b32 {sr(S_WOA+2)}, 0x80000
          s_mov_b32 {sr(S_WOA+3)}, 0x20000
          v_lshlrev_b32 {vr(V_T0)}, 7, {vr(V_LANE)}
          s_lshl_b32 {sr(S_T0)}, s2, 11
          s_mov_b64 exec, 0xffff
          buffer_load_dword {vr(V_FLG)}, {vr(V_T0)}, {sr(S_WOA,4)}, {sr(S_T0)} offen
          s_mov_b64 exec, -1""")
    a.label("L_kcvt")
    for f in range(4):
        for i in range(4):
            a(f"v_cvt_pk_bf16_f32 {vr(56+4*f+i)}, {vr(KACC[0]+8*f+2*i)}, {vr(KACC[0]+8*f+2*i+1)}")
        a(f"ds_write_b128 {vr(V_XA0)}, {vr(56+4*f,4)} offset:{f*1024}")
    a(f"""v_add_u32 {vr(V_T0)}, {sr(S_KM)}, {vr(V_L4)}
          v_add_u32 {vr(V_T1)}, {L_HI}, {vr(V_L4)}
          s_waitcnt lgkmcnt(0)
          ds_write_b32 {vr(V_T0)}, {vr(V_TAG)} offset:4096
          s_mov_b32 {sr(S_SPIN)}, 0""")
    stamp(13)
    a.label("L_rdv")
    for k in range(4):
        a(f"ds_read_b32 {vr(72+k)}, {vr(V_T1)} offset:{4096 + k*8192}")
    a(f"""s_waitcnt lgkmcnt(0)
          v_min3_u32 {vr(76)}, {vr(72)}, {vr(73)}, {vr(74)}
          v_max3_u32 {vr(77)}, {vr(72)}, {vr(73)}, {vr(74)}
          v_min3_u32 {vr(76)}, {vr(76)}, {vr(75)}, {vr(V_TAG)}
          v_max3_u32 {vr(77)}, {vr(77)}, {vr(75)}, {vr(V_TAG)}
          v_cmp_ne_u32 vcc, {vr(76)}, {vr(77)}
          s_cbranch_vccz L_rdv_ok
          s_sleep 4
          s_add_u32 {sr(S_SPIN)}, {sr(S_SPIN)}, 1
          s_cmp_lt_u32 {sr(S_SPIN)}, 1000000
          s_cbranch_scc1 L_rdv""")
    a.label("L_rdv_ok")
    a(f"""s_cmp_lt_u32 {sr(S_AUX)}, 2
          s_cbranch_scc1 L_a01b""")
    rot_setup()
    kv_dma("L_kvdC", 32, 16)
    a("s_waitcnt vmcnt(0)")
    stamp(14)
    if ts: ts_out()
    a("s_endpgm")

    a.c("aux 0,1: kv / z accumulation")
    a.label("L_a01b")
    HV, HK_, HKV, HZ, HON = 56, 72, 16, 32, 52
    a(f"""s_lshl_b32 {sr(S_T0)}, {sr(S_AUX)}, 11
          s_add_u32 {sr(S_T0)}, {sr(S_T0)}, {L_HI}
          v_add_u32 {vr(V_T1)}, {sr(S_T0)}, {vr(V_L16)}""")
    for f in range(4):
        off = (f // 2) * 8192 + (f % 2) * 1024
        a(f"ds_read_b128 {vr(HV+4*f,4)}, {vr(V_T1)} offset:{off}")
        a(f"ds_read_b128 {vr(HK_+4*f,4)}, {vr(V_T1)} offset:{16384 + off}")
    for i in range(4):
        a(f"v_mov_b32 {vr(HON+i)}, {sr(S_ONES)}")
    a(f"""v_bfe_u32 {vr(V_T2)}, {vr(V_LANE)}, 3, 1
          v_lshlrev_b32 {vr(V_T2)}, 11, {vr(V_T2)}
          v_and_b32 {vr(V_T3)}, 3, {vr(V_LANE)}
          v_lshl_add_u32 {vr(V_T2)}, {vr(V_T3)}, 9, {vr(V_T2)}
          v_bfe_u32 {vr(V_T3)}, {vr(V_LANE)}, 4, 1
          v_lshl_add_u32 {vr(V_T2)}, {vr(V_T3)}, 3, {vr(V_T2)}
          v_bfe_u32 {vr(V_T3)}, {vr(V_LANE)}, 2, 1
          v_lshl_add_u32 {vr(V_T2)}, {vr(V_T3)}, 2, {vr(V_T2)}
          s_waitcnt lgkmcnt(0)""")
    for f in range(4):
        a(f"v_mfma_f32_32x32x16_bf16 {vr(HKV,16)}, {vr(HK_+4*f,4)}, {vr(HV+4*f,4)}, {'0' if f==0 else vr(HKV,16)}")
        a(f"v_mfma_f32_32x32x16_bf16 {vr(HZ,16)}, {vr(HON,4)}, {vr(HK_+4*f,4)}, {'0' if f==0 else vr(HZ,16)}")
    a(f"""s_lshl_b32 {sr(S_T0)}, {sr(S_HGK)}, 1
          s_add_u32 {sr(S_T0)}, {sr(S_T0)}, {sr(S_AUX)}
          s_lshl_b32 {sr(S_T0)}, {sr(S_T0)}, 12
          s_add_u32 {sr(S_T0)}, {sr(S_T0)}, {WS_ACC}
          s_nop 7""")
    for r in range(8):
        a(f"v_cndmask_b32 {vr(HKV+r)}, {vr(HKV+8+r)}, {vr(HKV+r)}, {sr(S_VMASK,2)}")
    for r in range(8):
        a(f"buffer_atomic_add_f32 {vr(HKV+r)}, {vr(V_L4)}, {sr(S_WS,4)}, {sr(S_T0)} offen offset:{r*512} sc1")
    a(f"""s_mov_b32 exec_hi, 0
          buffer_atomic_add_f32 {vr(HZ)}, {vr(V_T2)}, {sr(S_WS,4)}, {sr(S_T0)} offen offset:256 sc1
          s_mov_b32 exec_hi, -1
          s_lshl_b32 {sr(S_T3)}, {sr(S_HGK)}, 8
          s_lshl_b32 {sr(S_T0)}, {sr(S_QB)}, 1
          s_add_u32 {sr(S_T0)}, {sr(S_T0)}, {sr(S_AUX)}
          s_lshl_b32 {sr(S_T0)}, {sr(S_T0)}, 2
          s_add_u32 {sr(S_T0)}, {sr(S_T0)}, {sr(S_T3)}
          s_add_u32 {sr(S_T0)}, {sr(S_T0)}, {WS_FA}
          s_lshl_b32 {sr(S_T3)}, {sr(S_HGQ)}, 8
          s_add_u32 {sr(S_T3)}, {sr(S_T3)}, {WS_FA}
          s_waitcnt vmcnt(0)""")
    flag_store(S_T0)
    stamp(15)
    a(f"""s_cmp_eq_u32 {sr(S_AUX)}, 1
          s_cbranch_scc1 L_a1b
          s_barrier
          s_mov_b32 {sr(S_SPIN)}, 0""")
    a.label("L_sfa")
    a(f"""buffer_load_dword {vr(V_FLG)}, {vr(V_L4)}, {sr(S_WS,4)}, {sr(S_T3)} offen sc1
          s_waitcnt vmcnt(0)
          v_cmp_ne_u32 vcc, {vr(V_FLG)}, {vr(V_TAG)}
          s_cbranch_vccz L_sfa_ok
          s_add_u32 {sr(S_SPIN)}, {sr(S_SPIN)}, 1
          s_cmp_lt_u32 {sr(S_SPIN)}, 100000
          s_cbranch_scc1 L_sfa""")
    a.label("L_sfa_ok")
    stamp(16)
    if ts: ts_out()
    a("""s_barrier
         s_endpgm""")

    a.c("aux 1: output-projection weights")
    a.label("L_a1b")
    srd(S_WOA, 4, 0x80000)
    srd(S_WOB, 14, 0x80000)
    omap()
    swz64(V_WOFF, 1024)
    stamp(14)
    a("s_barrier")
    def wodma(lbl, srdw, r0, nrows, dst):
        a(f"""s_lshl_b32 {sr(S_T0)}, {sr(S_NS)}, 7
              s_add_u32 {sr(S_T0)}, {sr(S_T0)}, {r0*1024}
              s_mov_b32 m0, {dst}""")
        a.label(lbl)
        a("s_waitcnt vmcnt(40)")
        for i in range(4):
            a(f"buffer_load_dwordx4 {vr(V_WOFF)}, {sr(srdw,4)}, {sr(S_T0)} offen lds")
            a(f"""s_add_u32 m0, m0, 1024
                  s_add_u32 {sr(S_T0)}, {sr(S_T0)}, 8192""")
        a(f"""s_cmp_lt_u32 m0, {dst + nrows*128}
              s_cbranch_scc1 {lbl}""")
    wodma("L_woa", S_WOA, 0, 512, 0)
    stamp(15)
    a("s_barrier")
    wodma("L_wob0", S_WOB, 0, 256, L_HI)
    a("s_waitcnt vmcnt(0)")
    stamp(16)
    a("s_barrier")
    wodma("L_wob1", S_WOB, 256, 256, 65536)
    a("s_waitcnt vmcnt(0)")
    if ts:
        stamp(17)
        ts_out()
    a("s_endpgm")
    a.label("L_codeend")

    head = open("cdna_kernels/" + NAME + ".s.ref").read().split("\n")
    hdr = [l for l in head if l.startswith(";") and "@launch" not in l and "Override" not in l and "grid=ceil" not in l]
    out = "\n".join(hdr) + f"\n; @launch grid=(256,1,1) block=({NWAVE*64},1,1) lds={LDS_SIZE}\n"
    out += DOC.lstrip("\n")
    out += f""".amdgcn_target "amdgcn-amd-amdhsa--gfx950"
.text
.globl {NAME}_kernel
.p2align 8
.type {NAME}_kernel,@function
"""
    out += a.text()
    out += f""".section .rodata,"a"
.p2align 6
.amdhsa_kernel {NAME}_kernel
  .amdhsa_next_free_vgpr {NVGPR}
  .amdhsa_next_free_sgpr 102
  .amdhsa_accum_offset {NVGPR}
  .amdhsa_group_segment_fixed_size 0
  .amdhsa_kernarg_size 96
  .amdhsa_user_sgpr_count 2
  .amdhsa_user_sgpr_kernarg_segment_ptr 1
  .amdhsa_system_sgpr_workgroup_id_x 1
.end_amdhsa_kernel
"""
    return out

if __name__ == "__main__":
    opts = {}
    outp = "cdna_kernels/" + NAME + ".s"
    for arg in sys.argv[1:]:
        if arg.startswith("-o"):
            outp = arg[2:]
        elif "=" in arg:
            k, v = arg.split("=")
            opts[k] = int(v)
        else:
            opts[arg] = True
    open(outp, "w").write(gen(opts))
    print("wrote", outp)
```

```python
import sys, math, struct

NAME = "gated_mix__linear_attn_block__grouped_kv_mqa__prompt"

def f2u(x):
    return struct.unpack("<I", struct.pack("<f", x))[0]

class Asm:
    def __init__(self):
        self.lines = []
        self.vm = []
    def __call__(self, s):
        for l in s.split("\n"):
            l = l.strip()
            if l:
                self.lines.append("    " + l)
    def label(self, l):
        self.lines.append(l + ":")
    def vmem(self, s, tag):
        self(s)
        self.vm.append(tag)
        assert len(self.vm) <= 63
    def vm_n(self, tag):
        idx = max(i for i, t in enumerate(self.vm) if t == tag)
        return len(self.vm) - 1 - idx
    def drop_to(self, n):
        self.vm = self.vm[len(self.vm) - n:] if n else []
    def wait_vm(self, tag, extra=""):
        n = 0 if tag is None else self.vm_n(tag)
        self.drop_to(n)
        self(f"s_waitcnt vmcnt({n}) {extra}".strip())
    def text(self):
        return "\n".join(self.lines) + "\n"

def vr(a, n=1):
    return f"v{a}" if n == 1 else f"v[{a}:{a+n-1}]"
def sr(a, n=1):
    return f"s{a}" if n == 1 else f"s[{a}:{a+n-1}]"

WS_E = 0x000000
WS_FKV = 0x000400
WS_FA = 0x001000
WS_FO = 0x004000
WS_G = 0x014000
WS_KV = 0x020000
WS_ACC = 0x040000
WS_KVT = 0x080000
WS_OA = 0x200000
WS_OB = 0x208000
WS_DBG1 = 0x600000
WS_DBG2 = 0x800000
WS_TS = 0xA00000
WS_SIZE = 0x1000000
L_JW = 0
L_X = 65536
L_HI = 131072
L_GW = L_HI + 16384
RSLOT = [16384, 32768, 49152, L_HI]
LDS_SIZE = 163840
LOG2E = 1.4426950408889634
QSCALE = 0.25 * LOG2E
NVGPR = 168
NWAVE = 12

S_HGQ, S_TAG, S_QO, S_NS, S_RDY = 3, 4, 5, 6, 7
S_X, S_W, S_WJ = 8, 12, 16
S_EPS, S_ONES, S_RGJ, S_HGK = 20, 21, 22, 23
S_XMASK, S_HEADA, S_AUX = 24, 26, 27
S_WOA, S_WOB, S_OUT, S_DBG, S_WS = 28, 32, 36, 40, 44
S_WAVE, S_QB, S_HG, S_RT, S_HH = 48, 49, 50, 51, 52
S_T0, S_T1, S_T2, S_T3 = 53, 54, 55, 56
S_U0, S_U1, S_U2, S_U3 = 57, 58, 59, 60
S_SEG, S_SPIN, S_HEAD = 61, 62, 63
S_VMASK, S_RT32, S_RO32, S_SAVE = 64, 66, 67, 40
S_LOG2E, S_QS = 70, 72
S_TS = 74
S_J = 69
S_XCC, S_FAST = 18, 19
S_KA = 76

def gen(opts):
    ts = opts.get("ts", False)
    dbg = opts.get("dbg", False)
    a = Asm()
    V_STAMP = NVGPR - 1

    def stamp(i):
        if "dly" in opts:
            if i == opts.get("dly0", 0): a("s_memrealtime s[74:75]")
            if i == opts["dly"]: a("s_memrealtime s[100:101]")
        if not ts: return
        a(f"""s_memrealtime {sr(S_TS,2)}
              s_memtime s[100:101]
              s_waitcnt lgkmcnt(0)
              v_writelane_b32 v{V_STAMP}, {sr(S_TS)}, {i}
              v_writelane_b32 v{V_STAMP}, s100, {32+i}""")

    V_LANE = 1
    V_T0, V_T1, V_T2, V_T3 = 2, 3, 4, 5
    V_XOFF, V_WOFF = 6, 7
    V_XA0, V_XA1, V_WA = 8, 9, 10
    V_L16, V_G, V_IDX, V_KA, V_VA = 11, 12, 13, 14, 15
    V_QF, V_PQ = 16, 20
    V_ACCQ = 24
    V_FB = [40, 72]
    V_O, V_C, V_KF = 104, 120, 136
    V_VF = [140, 148]
    V_L4, V_FLG, V_TAG, V_WOA0, V_WOA1, V_WA3 = 156, 157, 158, 159, 160, 161
    V_PK = 162
    V_S = [24, 40]
    V_AC, V_OA = 56, 72
    V_FA, V_FBB, V_WO = 56, 120, 88
    V_OUT = [24, 40]

    def srd(s, ka, size):
        a(f"""s_mov_b32 {sr(s)}, {sr(S_KA+ka)}
              s_mov_b32 {sr(s+1)}, {sr(S_KA+ka+1)}
              s_mov_b32 {sr(s+2)}, {hex(size)}
              s_mov_b32 {sr(s+3)}, 0x20000""")
    def flag_store(soff):
        a(f"""s_mov_b64 exec, 1
              buffer_store_dword {vr(V_TAG)}, {vr(V_L4)}, {sr(S_WS,4)}, {sr(soff)} offen sc1
              s_mov_b64 exec, -1""")
    def flag_load(soff):
        a(f"""s_mov_b32 exec_hi, 0
              buffer_load_dword {vr(V_FLG)}, {vr(V_L4)}, {sr(S_WS,4)}, {sr(soff)} offen sc1
              s_mov_b32 exec_hi, -1""")
    def flag_spin(lbl, soff):
        a(f"s_mov_b32 {sr(S_SPIN)}, 0")
        a.label(lbl + "_loop")
        a(f"""v_cmp_ne_u32 vcc, {vr(V_FLG)}, {vr(V_TAG)}
              s_cmp_eq_u32 vcc_lo, 0
              s_cbranch_scc1 {lbl}_ok
              s_add_u32 {sr(S_SPIN)}, {sr(S_SPIN)}, 1
              s_cmp_ge_u32 {sr(S_SPIN)}, 100000
              s_cbranch_scc1 {lbl}_ok""")
        flag_load(soff)
        a(f"""s_waitcnt vmcnt(0)
              s_branch {lbl}_loop""")
        a.label(lbl + "_ok")
    def arm_spin(lbl, soff):
        a(f"s_mov_b32 {sr(S_SPIN)}, 0")
        a.label(lbl + "_loop")
        a(f"""v_sub_u32 {vr(V_FLG)}, {vr(V_FLG)}, {vr(V_TAG)}
              v_cmp_lt_u32 vcc, 15, {vr(V_FLG)}
              s_cmp_eq_u32 vcc_lo, 0
              s_cbranch_scc1 {lbl}_ok
              s_add_u32 {sr(S_SPIN)}, {sr(S_SPIN)}, 1
              s_cmp_ge_u32 {sr(S_SPIN)}, 100000
              s_cbranch_scc1 {lbl}_ok""")
        flag_load(soff)
        a(f"""s_waitcnt vmcnt(0)
              s_branch {lbl}_loop""")
        a.label(lbl + "_ok")
    def tag_setup():
        a(f"""s_waitcnt lgkmcnt(0)
              s_mul_i32 {sr(S_TAG)}, {sr(S_TAG)}, 0x9e3779b1
              s_add_u32 {sr(S_TAG)}, {sr(S_TAG)}, 0x7f4a7c15
              v_mov_b32 {vr(V_TAG)}, {sr(S_TAG)}""")
    def omap():
        a(f"""s_and_b32 {sr(S_QO)}, s2, 7
              s_lshl_b32 {sr(S_QO)}, {sr(S_QO)}, 2
              s_bfe_u32 {sr(S_T1)}, s2, 0x20003
              s_add_u32 {sr(S_QO)}, {sr(S_QO)}, {sr(S_T1)}
              s_lshr_b32 {sr(S_NS)}, s2, 5""")
    def ts_out():
        a(f"""s_mul_i32 {sr(S_T0)}, s2, {NWAVE}
              s_add_u32 {sr(S_T0)}, {sr(S_T0)}, {sr(S_WAVE)}
              s_lshl_b32 {sr(S_T0)}, {sr(S_T0)}, 8
              s_add_u32 {sr(S_T0)}, {sr(S_T0)}, {WS_TS}
              buffer_store_dword v{V_STAMP}, {vr(V_L4)}, {sr(S_WS,4)}, {sr(S_T0)} offen""")
    def phi(src, n, tmp):
        for i in range(0, n, 2):
            a(f"v_pk_mul_f32 {vr(tmp+i,2)}, {sr(S_LOG2E,2)}, {vr(src+i,2)}")
        for i in range(n):
            a(f"v_exp_f32 {vr(tmp+i)}, {vr(tmp+i)} clamp")
        for i in range(n):
            a(f"v_max_f32 {vr(src+i)}, {sr(S_EPS)}, {vr(src+i)}")
        for i in range(0, n, 2):
            a(f"v_pk_add_f32 {vr(src+i,2)}, {vr(src+i,2)}, {vr(tmp+i,2)}")

    MAP = opts.get("map", 48)
    a.label(f"{NAME}_kernel")
    a(f"""s_cmp_ge_u32 s2, 256
          s_cbranch_scc1 L_end
          s_load_dwordx16 {sr(S_KA,16)}, s[0:1], 0
          s_load_dwordx8 {sr(S_KA+16,8)}, s[0:1], 64
          v_and_b32 {vr(V_LANE)}, 63, v0
          v_lshrrev_b32 {vr(V_T0)}, 6, v0
          s_and_b32 {sr(S_T0)}, s2, {7 if MAP == 48 else 1}
          v_readfirstlane_b32 {sr(S_WAVE)}, {vr(V_T0)}
          s_lshl_b32 {sr(S_T0)}, {sr(S_T0)}, 2
          s_bfe_u32 {sr(S_T1)}, s2, 0x20003
          s_add_u32 {sr(S_QB if MAP == 48 else S_HG)}, {sr(S_T0)}, {sr(S_T1)}
          s_sub_u32 {sr(S_WAVE)}, {sr(S_WAVE)}, 4
          s_cselect_b32 {sr(S_T1)}, 12, 0
          s_add_u32 {sr(S_WAVE)}, {sr(S_WAVE)}, {sr(S_T1)}
          s_lshr_b32 {sr(S_HG if MAP == 48 else S_QB)}, s2, 5
          {"" if MAP == 48 else f"s_and_b32 {sr(S_T1)}, s2, 6"}
          {"" if MAP == 48 else f"s_lshl_b32 {sr(S_T1)}, {sr(S_T1)}, 2"}
          {"" if MAP == 48 else f"s_add_u32 {sr(S_QB)}, {sr(S_QB)}, {sr(S_T1)}"}
          s_lshr_b32 {sr(S_RGJ)}, {sr(S_HG)}, 1
          s_xor_b32 {sr(S_HGQ)}, {sr(S_HG)}, 1
          s_xor_b32 {sr(S_HGK)}, {sr(S_HG)}, 2""")
    stamp(0)
    a(f"""v_lshrrev_b32 {vr(V_T0)}, 4, {vr(V_LANE)}
          v_xor_b32 {vr(V_T0)}, {vr(V_T0)}, {vr(V_LANE)}
          v_and_b32 {vr(V_T0)}, 3, {vr(V_T0)}
          v_lshlrev_b32 {vr(V_T0)}, 4, {vr(V_T0)}
          v_lshrrev_b32 {vr(V_T1)}, 2, {vr(V_LANE)}
          v_lshl_add_u32 {vr(V_XOFF)}, {vr(V_T1)}, 10, {vr(V_T0)}
          v_lshlrev_b32 {vr(V_L16)}, 4, {vr(V_LANE)}
          v_lshlrev_b32 {vr(V_L4)}, 2, {vr(V_LANE)}
          s_mov_b32 {sr(S_X+2)}, 0x200000
          s_mov_b32 {sr(S_X+3)}, 0x20000
          s_and_b32 {sr(S_J)}, s2, {opts.get("jmask", 7)}
          s_lshl_b32 {sr(S_T0)}, {sr(S_QB)}, 16
          s_lshl_b32 {sr(S_T1)}, {sr(S_J)}, 7
          s_or_b32 {sr(S_T0)}, {sr(S_T0)}, {sr(S_T1)}
          s_cmp_eq_u32 {sr(S_WAVE)}, 8
          s_cbranch_scc1 L_a0
          s_cmp_eq_u32 {sr(S_WAVE)}, 9
          s_cbranch_scc1 L_a1
          s_cmp_ge_u32 {sr(S_WAVE)}, 10
          s_cbranch_scc1 L_a23
          s_and_b32 {sr(S_RT)}, {sr(S_WAVE)}, 1
          s_lshr_b32 {sr(S_HH)}, {sr(S_WAVE)}, 1""")
    if opts.get("cpf", 1):
        W_ = opts.get("cpf", 1)
        a(f"s_getpc_b64 {sr(S_SAVE,2)}")
        a.label("L_pc")
        if W_ == 1:
            a(f"""s_lshr_b32 {sr(S_T2)}, s2, 3
                  s_lshl_b32 {sr(S_T2)}, {sr(S_T2)}, 10
                  s_cmp_eq_u32 {sr(S_WAVE)}, 0
                  s_cselect_b64 {sr(S_XMASK,2)}, 0xff, 1""")
        else:
            a(f"""s_lshl_b32 {sr(S_T2)}, {sr(S_WAVE)}, 12
                  s_bfe_u32 {sr(S_T1)}, s2, 0x20003
                  s_lshl_b32 {sr(S_T1)}, {sr(S_T1)}, 10
                  s_add_u32 {sr(S_T2)}, {sr(S_T2)}, {sr(S_T1)}
                  s_mov_b64 {sr(S_XMASK,2)}, 0xff""")
        a(f"""v_lshlrev_b32 {vr(V_T2)}, 7, {vr(V_LANE)}
              v_add_u32 {vr(V_T2)}, {sr(S_T2)}, {vr(V_T2)}
              v_min_u32 {vr(V_T2)}, L_codeend - L_pc - 4, {vr(V_T2)}
              s_mov_b64 exec, {sr(S_XMASK,2)}""")
        a.vmem(f"global_load_dword {vr(V_FLG)}, {vr(V_T2)}, {sr(S_SAVE,2)}", "cpf")
        a("s_mov_b64 exec, -1")
    S_XOFF, S_XM0 = S_U0, S_U1
    a(f"""s_and_b32 {sr(S_T1)}, {sr(S_WAVE)}, 3
          s_lshr_b32 {sr(S_T2)}, {sr(S_WAVE)}, 2
          s_lshl_b32 {sr(S_T3)}, {sr(S_T1)}, 14
          s_add_u32 {sr(S_XOFF)}, {sr(S_T0)}, {sr(S_T3)}
          s_lshl_b32 {sr(S_T3)}, {sr(S_T2)}, 7
          s_xor_b32 {sr(S_XOFF)}, {sr(S_XOFF)}, {sr(S_T3)}
          s_lshl_b32 {sr(S_XM0)}, {sr(S_T1)}, 10
          s_lshl_b32 {sr(S_T3)}, {sr(S_T2)}, 13
          s_add_u32 {sr(S_XM0)}, {sr(S_XM0)}, {sr(S_T3)}
          s_cmp_eq_u32 {sr(S_T1)}, {sr(S_RGJ)}
          s_cselect_b64 {sr(S_XMASK,2)}, 1, -1""")
    a(f"""v_lshrrev_b32 {vr(V_T0)}, 3, {vr(V_LANE)}
          v_and_b32 {vr(V_T3)}, 7, {vr(V_LANE)}
          v_lshlrev_b32 {vr(V_T3)}, 7, {vr(V_T3)}
          v_lshl_add_u32 {vr(V_T2)}, {vr(V_T0)}, 10, {vr(V_T3)}
          v_mul_u32_u24 {vr(V_T0)}, 3072, {vr(V_T0)}
          v_add_u32 {vr(V_T0)}, {vr(V_T0)}, {vr(V_T3)}
          s_xor_b32 {sr(S_T2)}, {sr(S_WAVE)}, {sr(S_J)}
          s_lshl_b32 {sr(S_T2)}, {sr(S_T2)}, 5
          s_lshr_b32 {sr(S_T3)}, s2, 3
          s_add_u32 {sr(S_T2)}, {sr(S_T2)}, {sr(S_T3)}
          s_lshl_b32 {sr(S_U2)}, {sr(S_T2)}, 11
          s_mul_i32 {sr(S_U3)}, {sr(S_T2)}, 6144
          s_lshl_b32 {sr(S_T3)}, {sr(S_HG)}, 13
          s_lshl_b32 {sr(S_RDY)}, {sr(S_WAVE)}, 10
          s_add_u32 {sr(S_T3)}, {sr(S_T3)}, {sr(S_RDY)}
          s_lshl_b32 {sr(S_RDY)}, {sr(S_QB)}, 16
          s_add_u32 {sr(S_T3)}, {sr(S_T3)}, {sr(S_RDY)}
          s_waitcnt lgkmcnt(0)
          s_mov_b32 {sr(S_X)}, {sr(S_KA+0)}
          s_mov_b32 {sr(S_X+1)}, {sr(S_KA+1)}
          s_load_dword {sr(S_TAG)}, {sr(S_KA+22,2)}, {WS_E}""")
    def xdma(r):
        a(f"s_xor_b32 {sr(S_T1)}, {sr(S_XOFF)}, {r*256}")
        a(f"s_add_u32 m0, {sr(S_XM0)}, {L_X + r*16384}")
        a(f"s_mov_b64 exec, {sr(S_XMASK,2)}")
        a.vmem(f"buffer_load_dwordx4 {vr(V_XOFF)}, {sr(S_X,4)}, {sr(S_T1)} offen lds", f"x{r}")
        a(f"s_add_u32 m0, {sr(S_XM0)}, {L_X + r*16384 + 4096 - 64}")
        a("s_nop 0")
        a.vmem(f"buffer_load_dwordx4 {vr(V_XOFF)}, {sr(S_X,4)}, {sr(S_T1)} offen offset:64 lds", f"x{r}")
        a("s_mov_b64 exec, -1")
    PF = opts.get("pf", 0)
    if not PF & 4: xdma(0)
    if PF & 1:
        a("s_mov_b64 exec, 0xff")
        a.vmem(f"buffer_load_dword {vr(V_FLG)}, {vr(V_T3)}, {sr(S_X,4)}, {sr(S_T3)} offen", "pf")
        a("s_mov_b64 exec, -1")
    if PF & 2:
        srd(S_W, 8, 0x80000)
        srd(S_WOB, 2, 0x180000)
        a(f"""s_lshl_b32 {sr(S_U2)}, s2, 11
              s_mul_i32 {sr(S_U3)}, s2, 6144
              s_cmp_eq_u32 {sr(S_WAVE)}, 0
              s_cselect_b64 exec, 0xffff, 1""")
        a.vmem(f"buffer_load_dword {vr(V_FLG)}, {vr(V_T2)}, {sr(S_W,4)}, {sr(S_U2)} offen", "pf")
        a.vmem(f"buffer_load_dword {vr(V_FLG)}, {vr(V_T0)}, {sr(S_WOB,4)}, {sr(S_U3)} offen", "pf")
        a("s_mov_b64 exec, -1")
    if PF & 4: xdma(0)
    srd(S_WS, 22, WS_SIZE)
    srd(S_OUT, 18, 0x200000)
    omap()
    if opts.get("tlb", 0):
        a(f"""v_lshlrev_b32 {vr(V_T2)}, 15, {vr(V_LANE)}
          s_lshl_b32 {sr(S_T1)}, {sr(S_QB)}, 17
          s_lshl_b32 {sr(S_T2)}, {sr(S_QO)}, 17
          s_cmp_eq_u32 {sr(S_WAVE)}, 1
          s_cselect_b32 {sr(S_T1)}, {sr(S_T1)}, {sr(S_T2)}
          s_add_u32 {sr(S_T1)}, {sr(S_T1)}, {WS_OA}
          s_cmp_eq_u32 {sr(S_WAVE)}, 0
          s_cselect_b32 {sr(S_T1)}, 0x380, {sr(S_T1)}
          s_cselect_b32 exec_lo, 0xffffff, 15
          s_mov_b32 exec_hi, 0
          s_cmp_ge_u32 {sr(S_WAVE)}, 3
          s_cbranch_scc1 L_tlb1
          buffer_load_dword {vr(V_FLG)}, {vr(V_T2)}, {sr(S_WS,4)}, {sr(S_T1)} offen sc1
          s_branch L_tlb2""")
        a.label("L_tlb1")
        a(f"""s_lshl_b32 {sr(S_T1)}, {sr(S_QO)}, 16
          s_mov_b32 exec_lo, 3
          buffer_load_dword {vr(V_FLG)}, {vr(V_T2)}, {sr(S_OUT,4)}, {sr(S_T1)} offen""")
        a.label("L_tlb2")
        a("s_mov_b64 exec, -1")
        a.vm.append("tlb")
    xdma(1)
    def consts():
        a(f"""s_mov_b32 {sr(S_VMASK)}, 0xffff
              s_mov_b32 {sr(S_VMASK+1)}, 0xffff
              s_mov_b32 {sr(S_LOG2E)}, {hex(f2u(LOG2E))}
              s_mov_b32 {sr(S_LOG2E+1)}, {hex(f2u(LOG2E))}
              s_mov_b32 {sr(S_EPS)}, {hex(f2u(1e-6))}
              s_mov_b32 {sr(S_ONES)}, 0x3f803f80""")
    def xfrag_addr(rt_s):
        a(f"""v_and_b32 {vr(V_T0)}, 31, {vr(V_LANE)}
              v_lshrrev_b32 {vr(V_T1)}, 5, {vr(V_LANE)}
              v_bfe_u32 {vr(V_T2)}, {vr(V_LANE)}, 2, 2
              v_xor_b32 {vr(V_T2)}, {vr(V_T2)}, {vr(V_T1)}
              v_lshlrev_b32 {vr(V_T2)}, 4, {vr(V_T2)}
              v_lshl_add_u32 {vr(V_T3)}, {vr(V_T0)}, 6, {vr(V_T2)}
              s_lshl_b32 {sr(S_T0)}, {sr(rt_s)}, 11
              s_add_u32 {sr(S_T0)}, {sr(S_T0)}, {L_X}
              v_add_u32 {vr(V_XA0)}, {sr(S_T0)}, {vr(V_T3)}
              v_xor_b32 {vr(V_XA1)}, 32, {vr(V_XA0)}""")
    consts()
    a(f"""s_lshl_b32 {sr(S_HEAD)}, {sr(S_HG)}, 2
          s_add_u32 {sr(S_HEAD)}, {sr(S_HEAD)}, {sr(S_HH)}
          s_lshl_b32 {sr(S_HEADA)}, {sr(S_HGQ)}, 2
          s_add_u32 {sr(S_HEADA)}, {sr(S_HEADA)}, {sr(S_HH)}
          s_lshl_b32 {sr(S_RT32)}, {sr(S_QB)}, 1
          s_add_u32 {sr(S_RT32)}, {sr(S_RT32)}, {sr(S_RT)}
          s_lshl_b32 {sr(S_RO32)}, {sr(S_QO)}, 1
          s_add_u32 {sr(S_RO32)}, {sr(S_RO32)}, {sr(S_RT)}
          s_mov_b32 {sr(S_QS)}, {hex(f2u(QSCALE))}
          s_mov_b32 {sr(S_QS+1)}, {hex(f2u(QSCALE))}""")
    xfrag_addr(S_RT)
    a(f"""v_bfe_u32 {vr(V_T0)}, {vr(V_LANE)}, 4, 1
          v_bfe_u32 {vr(V_T2)}, {vr(V_LANE)}, 3, 2
          v_xor_b32 {vr(V_T2)}, {sr(S_HH)}, {vr(V_T2)}
          v_lshlrev_b32 {vr(V_T2)}, 5, {vr(V_T2)}
          v_lshl_add_u32 {vr(V_T2)}, {vr(V_T0)}, 13, {vr(V_T2)}
          v_lshl_add_u32 {vr(V_T2)}, {vr(V_T1)}, 10, {vr(V_T2)}
          v_bfe_u32 {vr(V_T0)}, {vr(V_LANE)}, 2, 2
          v_lshl_add_u32 {vr(V_T2)}, {vr(V_T0)}, 7, {vr(V_T2)}
          v_and_b32 {vr(V_T0)}, 3, {vr(V_LANE)}
          v_lshl_add_u32 {vr(V_WA)}, {vr(V_T0)}, 3, {vr(V_T2)}
          v_add_u32 {vr(V_WA3)}, {L_HI}, {vr(V_WA)}""")
    for i in range(8):
        a(f"v_mov_b32 {vr(V_ACCQ+i)}, 0")
        a(f"v_mov_b32 {vr(V_ACCQ+8+i)}, {sr(S_EPS)}")
    a(f"""v_mov_b32 {vr(V_T0)}, {sr(S_ONES)}
          s_mov_b32 {sr(S_SAVE)}, 0x110000
          s_mov_b32 {sr(S_SAVE+1)}, 0x110000
          v_cndmask_b32 {vr(V_T0)}, 0, {vr(V_T0)}, {sr(S_SAVE,2)}""")
    for i in range(16):
        a(f"v_mov_b32 {vr(V_O+i)}, 0")
        a(f"v_mov_b32 {vr(V_VF[0]+i)}, {vr(V_T0)}")
    a(f"""v_mov_b32 {vr(V_IDX)}, 0xdddd
          v_mov_b32 {vr(V_KA)}, {vr(V_L16)}
          v_and_b32 {vr(V_T3)}, 15, {vr(V_LANE)}
          v_lshlrev_b32 {vr(V_T3)}, 4, {vr(V_T3)}
          v_lshl_add_u32 {vr(V_VA)}, {vr(V_T1)}, 8, {vr(V_T3)}""")
    V_GA, V_ACA, V_ARM = V_WOFF, 166, 0
    S_GOFF, S_MYFO, S_INFO, S_ACC = 28, 29, 30, 31
    def ooff(dst, base):
        a(f"""s_lshl_b32 {sr(dst)}, {sr(S_RT32)}, 6
              s_add_u32 {sr(dst)}, {sr(dst)}, {sr(S_HEADA if base == WS_OA else S_HEAD)}
              s_lshl_b32 {sr(dst)}, {sr(dst)}, 10
              s_add_u32 {sr(dst)}, {sr(dst)}, {base}""")
    ooff(S_RDY, WS_OB)
    ooff(S_AUX, WS_OA)
    a(f"""v_and_b32 {vr(V_T0)}, 0x3c, {vr(V_L4)}
          v_bfe_u32 {vr(V_T1)}, {vr(V_LANE)}, 4, 1
          v_lshl_add_u32 {vr(V_GA)}, {vr(V_T1)}, 7, {vr(V_T0)}
          s_lshl_b32 {sr(S_GOFF)}, {sr(S_RT32)}, 8
          s_add_u32 {sr(S_GOFF)}, {sr(S_GOFF)}, {WS_G}
          v_mov_b32 {vr(V_PK)}, -1
          v_mov_b32 {vr(V_PK+1)}, -1
          v_mov_b32 {vr(V_PK+2)}, -1
          v_mov_b32 {vr(V_PK+3)}, -1
          s_lshl_b32 {sr(S_MYFO)}, {sr(S_RT32)}, 5
          s_add_u32 {sr(S_MYFO)}, {sr(S_MYFO)}, {sr(S_HEAD)}
          s_lshl_b32 {sr(S_MYFO)}, {sr(S_MYFO)}, 2
          s_add_u32 {sr(S_MYFO)}, {sr(S_MYFO)}, {WS_FO}
          v_lshrrev_b32 {vr(V_T0)}, 5, {vr(V_LANE)}
          v_lshlrev_b32 {vr(V_T0)}, 9, {vr(V_T0)}
          v_bfe_u32 {vr(V_T1)}, {vr(V_LANE)}, 2, 2
          v_lshl_add_u32 {vr(V_T0)}, {vr(V_T1)}, 7, {vr(V_T0)}
          v_bfe_u32 {vr(V_T1)}, {vr(V_LANE)}, 3, 1
          v_lshl_add_u32 {vr(V_T0)}, {vr(V_T1)}, 6, {vr(V_T0)}
          v_bfe_u32 {vr(V_T1)}, {vr(V_LANE)}, 4, 1
          v_lshl_add_u32 {vr(V_T0)}, {vr(V_T1)}, 5, {vr(V_T0)}
          v_and_b32 {vr(V_T1)}, 3, {vr(V_LANE)}
          v_lshl_add_u32 {vr(V_T0)}, {vr(V_T1)}, 3, {vr(V_T0)}
          s_lshl_b32 {sr(S_T0)}, {sr(S_HH)}, 14
          v_add_u32 {vr(V_WOA0)}, {sr(S_T0)}, {vr(V_T0)}
          v_xor_b32 {vr(V_WOA1)}, 64, {vr(V_WOA0)}
          s_lshl_b32 {sr(S_U0)}, {sr(S_RO32)}, 3
          s_add_u32 {sr(S_U0)}, {sr(S_U0)}, {sr(S_HH)}
          s_lshl_b32 {sr(S_U0)}, {sr(S_U0)}, 13
          s_add_u32 {sr(S_U0)}, {sr(S_U0)}, {WS_OA}
          s_add_u32 {sr(S_U1)}, {sr(S_U0)}, 4096
          s_lshl_b32 {sr(S_U2)}, {sr(S_RO32)}, 4
          s_add_u32 {sr(S_U2)}, {sr(S_U2)}, {sr(S_HH)}
          s_lshl_b32 {sr(S_U2)}, {sr(S_U2)}, 12
          s_add_u32 {sr(S_U2)}, {sr(S_U2)}, {WS_OB}
          s_add_u32 {sr(S_U3)}, {sr(S_U2)}, 16384
          s_and_b32 {sr(S_T1)}, {sr(S_HEADA)}, 1
          v_lshrrev_b32 {vr(V_T1)}, 5, {vr(V_LANE)}
          s_lshl_b32 {sr(S_T2)}, {sr(S_T1)}, 1
          s_add_u32 {sr(S_T2)}, {sr(S_T2)}, 64
          v_add_u32 {vr(V_T1)}, {sr(S_T2)}, {vr(V_T1)}
          v_and_b32 {vr(V_T0)}, 0x2f, {vr(V_LANE)}
          s_lshl_b32 {sr(S_T2)}, {sr(S_T1)}, 4
          v_add_u32 {vr(V_T0)}, {sr(S_T2)}, {vr(V_T0)}
          v_cndmask_b32 {vr(V_T0)}, {vr(V_T0)}, {vr(V_T1)}, {sr(S_VMASK,2)}
          v_lshlrev_b32 {vr(V_ACA)}, 2, {vr(V_T0)}
          s_lshr_b32 {sr(S_ACC)}, {sr(S_HEADA)}, 1
          s_lshl_b32 {sr(S_ACC)}, {sr(S_ACC)}, 12
          s_add_u32 {sr(S_ACC)}, {sr(S_ACC)}, {WS_ACC}
          s_lshl_b32 {sr(S_INFO)}, {sr(S_RO32)}, 7
          s_add_u32 {sr(S_INFO)}, {sr(S_INFO)}, {WS_FO}""")
    tag_setup()
    stamp(1)

    def reads(c):
        fb = V_FB[c % 2]
        s = c % 4
        wa, wo = (V_WA, RSLOT[s]) if s < 3 else (V_WA3, 0)
        r = []
        for p in range(4):
            r.append(f"ds_read_b128 {vr(fb+4*p,4)}, {vr(V_XA0 if p%2==0 else V_XA1)} offset:{(2*c + p//2)*4096}")
            for u in range(2):
                r.append(f"ds_read_b64_tr_b16 {vr(fb+16+4*p+2*u,2)}, {vr(wa)} offset:{wo + p*2048 + u*512}")
        return r
    def mfmas(c):
        fb = V_FB[c % 2]
        return [f"v_mfma_f32_32x32x16_bf16 {vr(V_ACCQ,16)}, {vr(fb+16+4*p,4)}, {vr(fb+4*p,4)}, {vr(V_ACCQ,16)}" for p in range(4)]
    for c in range(8):
        if c in (0, 2):
            a.wait_vm(f"x{c//2}", "lgkmcnt(0)")
        else:
            a("s_waitcnt lgkmcnt(0)")
        a("s_barrier")
        R_ = reads(c)
        if c == 0:
            for r in R_: a(r)
        else:
            M_ = mfmas(c - 1)
            for k in range(4):
                a(M_[k])
                for r in R_[4*k:4*k+4]: a(r)
    for k, m in enumerate(mfmas(7)):
        a(f"s_waitcnt lgkmcnt({9-3*k})")
        a(m)
    stamp(2)
    E = V_FB[0]
    a(f"""s_mov_b32 {sr(S_SEG)}, 0
          s_nop 10""")
    for i in range(0, 8, 2):
        a(f"v_pk_mul_f32 {vr(V_ACCQ+i,2)}, {sr(S_QS,2)}, {vr(V_ACCQ+i,2)}")
    for i in range(4):
        a(f"v_cvt_pk_bf16_f32 {vr(V_QF+i)}, {vr(V_ACCQ+2*i)}, {vr(V_ACCQ+2*i+1)}")
    phi(V_ACCQ + 8, 8, E)
    for i in range(4):
        a(f"v_cvt_pk_bf16_f32 {vr(V_PQ+i)}, {vr(V_ACCQ+8+2*i)}, {vr(V_ACCQ+8+2*i+1)}")
    stamp(3)
    a("s_barrier")
    a("s_setprio 3")
    stamp(4)
    a(f"""ds_read_b128 {vr(V_KF,4)}, {vr(V_KA)}
          s_mov_b64 exec, {sr(S_VMASK,2)}
          ds_read_b128 {vr(V_VF[0],4)}, {vr(V_VA)} offset:1024
          ds_read_b128 {vr(V_VF[0]+4,4)}, {vr(V_VA)} offset:1536
          ds_read_b128 {vr(V_VF[1],4)}, {vr(V_VA)} offset:{2048+1024}
          ds_read_b128 {vr(V_VF[1]+4,4)}, {vr(V_VA)} offset:{2048+1536}
          s_mov_b64 exec, -1
          s_waitcnt lgkmcnt(4)
          v_mfma_f32_32x32x16_bf16 {vr(V_S[0],16)}, {vr(V_KF,4)}, {vr(V_QF,4)}, 0
          ds_read_b128 {vr(V_KF,4)}, {vr(V_KA)} offset:2048""")
    if dbg:
        for reg, hd, base in ((V_QF, S_HEAD, WS_DBG1), (V_PQ, S_HEADA, WS_DBG2)):
            a(f"""s_lshl_b32 {sr(S_T0)}, {sr(S_RT32)}, 5
                  s_add_u32 {sr(S_T0)}, {sr(S_T0)}, {sr(hd)}
                  s_lshl_b32 {sr(S_T0)}, {sr(S_T0)}, 10
                  s_add_u32 {sr(S_T1)}, {sr(S_T0)}, {base}
                  buffer_store_dwordx4 {vr(reg,4)}, {vr(V_L16)}, {sr(S_WS,4)}, {sr(S_T1)} offen""")
    S0 = V_S[0]
    a(f"""s_nop 10
          v_max3_f32 {vr(V_T0)}, {vr(S0)}, {vr(S0+1)}, {vr(S0+2)}
          v_max3_f32 {vr(V_T1)}, {vr(S0+3)}, {vr(S0+4)}, {vr(S0+5)}
          v_max3_f32 {vr(V_T2)}, {vr(S0+6)}, {vr(S0+7)}, {vr(S0+8)}
          v_max3_f32 {vr(V_T3)}, {vr(S0+9)}, {vr(S0+10)}, {vr(S0+11)}
          v_max3_f32 {vr(V_T0)}, {vr(V_T0)}, {vr(S0+12)}, {vr(S0+13)}
          v_max3_f32 {vr(V_T1)}, {vr(V_T1)}, {vr(S0+14)}, {vr(S0+15)}
          v_max3_f32 {vr(V_T0)}, {vr(V_T0)}, {vr(V_T1)}, {vr(V_T2)}
          v_max_f32 {vr(V_T0)}, {vr(V_T0)}, {vr(V_T3)}
          v_mov_b32 {vr(V_T1)}, {vr(V_T0)}
          s_nop 1
          v_permlane32_swap_b32 {vr(V_T0)}, {vr(V_T1)}
          s_nop 1
          v_max_f32 {vr(V_T0)}, {vr(V_T0)}, {vr(V_T1)}
          v_sub_f32 {vr(V_T2)}, 0, {vr(V_T0)}
          v_sub_f32 {vr(V_T3)}, 0, {vr(V_T0)}""")
    for i in range(0, 16, 2):
        a(f"v_pk_add_f32 {vr(S0+i,2)}, {vr(S0+i,2)}, {vr(V_T2,2)}")
    for i in range(0, 16, 2):
        a(f"v_pk_mov_b32 {vr(V_C+i,2)}, {vr(V_T2,2)}, {vr(V_T2,2)} op_sel:[0,1]")
    a(f"""v_exp_f32 {vr(S0)}, {vr(S0)}
          v_exp_f32 {vr(S0+1)}, {vr(S0+1)}
          s_waitcnt lgkmcnt(0)""")
    stamp(5)

    PR = opts.get("ramp", "3210")
    PR = [int(ch) for ch in str(PR).zfill(4)]
    def oload(i, dst, br):
        so = [[S_U0, S_U1], [S_U2, S_U3]][br][i // 4]
        a(f"buffer_load_dwordx4 {vr(dst+4*i,4)}, {vr(V_L16)}, {sr(S_WS,4)}, {sr(so)} offen offset:{(i%4)*1024} sc1")
    def osan():
        for i in range(4):
            a(f"v_min_u32 {vr(V_PK+i)}, -2, {vr(V_PK+i)}")
    ins = {}
    def at(p, slot, fn): ins.setdefault((p, slot), []).append(fn)
    HK = 8 * opts.get("hk", 3)
    H5 = opts.get('h5', 40)
    bars = {8: (2, 11), 32: (0, 13), H5: (2, 17), 48: (0, 19)}
    at(8, "B", lambda: a(f"buffer_load_dword {vr(V_G)}, {vr(V_GA)}, {sr(S_WS,4)}, {sr(S_GOFF)} offen sc1"))
    at(9, "A", lambda: a(f"buffer_store_dwordx4 {vr(V_PK,4)}, {vr(V_L16)}, {sr(S_WS,4)}, {sr(S_RDY)} offen sc1"))
    at(10, "A", lambda: a(f"buffer_store_dwordx4 {vr(V_PK,4)}, {vr(V_L16)}, {sr(S_WS,4)}, {sr(S_AUX)} offen sc1"))
    at(20, "A", lambda: a(f"""s_waitcnt vmcnt(0)
                              s_mov_b64 exec, 1
                              buffer_store_dword {vr(V_TAG)}, {vr(V_L4)}, {sr(S_WS,4)}, {sr(S_MYFO)} offen sc1
                              s_mov_b64 exec, -1"""))
    for r in range(8):
        at(H5 + r // 2, "AB"[r % 2], lambda r=r: a(f"buffer_load_dword {vr(V_AC+r)}, {vr(V_ACA)}, {sr(S_WS,4)}, {sr(S_ACC)} offen offset:{r*512} sc1"))
    at(38, "A", lambda: flag_load(S_INFO))
    PO = opts.get("po", H5 + 7)
    def oa1():
        a("s_waitcnt vmcnt(0)")
        for i in range(4):
            a(f"v_cvt_pk_bf16_f32 {vr(V_AC+8+i)}, {vr(V_AC+2*i)}, {vr(V_AC+2*i+1)}")
    at(PO, "A", oa1)
    at(PO, "B", lambda: a(f"v_mfma_f32_32x32x16_bf16 {vr(V_OA,16)}, {vr(V_AC+8,4)}, {vr(V_PQ,4)}, 0"))
    at(PO + 1, "B", lambda: a(f"""v_add_f32 {vr(V_T0)}, {sr(S_EPS)}, {vr(V_OA)}
                                  v_rcp_f32 {vr(V_T0)}, {vr(V_T0)}"""))
    def oa2():
        a(f"v_mul_f32 {vr(V_T0)}, {vr(V_T0)}, {vr(V_G)}")
        for i in range(0, 8, 2):
            a(f"v_pk_mul_f32 {vr(V_OA+8+i,2)}, {vr(V_OA+8+i,2)}, {vr(V_T0,2)} op_sel_hi:[1,0]")
        for i in range(4):
            a(f"v_cvt_pk_bf16_f32 {vr(V_PK+i)}, {vr(V_OA+8+2*i)}, {vr(V_OA+8+2*i+1)}")
        osan()
        a(f"buffer_store_dwordx4 {vr(V_PK,4)}, {vr(V_L16)}, {sr(S_WS,4)}, {sr(S_AUX)} offen sc1")
        a(f"v_sub_f32 {vr(V_G)}, 1.0, {vr(V_G)}")
    at(PO + 1, "C", oa2)
    def armchk():
        a.label("L_arm")
        a(f"""v_cmp_ne_u32 vcc, {vr(V_FLG)}, {vr(V_TAG)}
              s_cmp_eq_u32 vcc_lo, 0
              s_cbranch_scc0 L_armr""")
        a.label("L_armk")
    at(PO + 3, "A", armchk)
    for i in range(8):
        at(56 + i, "A", lambda i=i: oload(i, V_FA, 0))
    def run(p, slot):
        for fn in ins.get((p, slot), []): fn()
    a(f"s_mov_b32 {sr(S_SPIN)}, 0")
    for p in range(2, 66):
        cur, nxt = V_S[p % 2], V_S[(p + 1) % 2]
        vf = V_VF[p % 2]
        ex = lambda r: a(f"v_exp_f32 {vr(r)}, {vr(r)}")
        if p < 56:
            ramp = {0: PR[0], 4: PR[1], 6: PR[2], 7: PR[3]}
            if p < 8:
                r0 = {2: 2, opts.get("r1", 6): 1, 7: 0}
                if p in r0: a(f"s_setprio {r0[p]}")
            elif p % 8 in ramp: a(f"s_setprio {ramp[p % 8]}")
        else:
            ramp = {56: PR[0], 62: PR[1], 64: PR[2], 65: PR[3]}
            if p in ramp: a(f"s_setprio {ramp[p]}")
        for i in (2, 3, 4, 5): ex(cur + i)
        if p < 65:
            a(f"s_waitcnt lgkmcnt({bars[p][0] if p in bars else 2})")
            a(f"v_mfma_f32_32x32x16_bf16 {vr(nxt,16)}, {vr(V_KF,4)}, {vr(V_QF,4)}, {vr(V_C,16)}")
        else:
            a("s_waitcnt lgkmcnt(0)")
        if p == 32:
            a(f"""v_add_u32 {vr(V_KA)}, 0x10000, {vr(V_KA)}
                  v_add_u32 {vr(V_VA)}, 0x10000, {vr(V_VA)}""")
        if p in bars:
            stamp(bars[p][1])
            a("s_barrier")
            stamp(bars[p][1] + 1)
        off = (p % 32) * 2048
        if p < 64:
            a(f"ds_read_b128 {vr(V_KF,4)}, {vr(V_KA)} offset:{off}")
        elif p == 64:
            a("s_nop 0")
        run(p, "A")
        for i in (6, 7, 8, 9, 10): ex(cur + i)
        a(f"v_smfmac_f32_32x32x32_bf16 {vr(V_O,16)}, {vr(vf,4)}, {vr(cur,8)}, {vr(V_IDX)}")
        run(p, "B")
        for i in (11, 12, 13, 14, 15): ex(cur + i)
        if p < 65:
            ex(nxt); ex(nxt + 1)
        else:
            a("s_nop 1")
        a(f"v_smfmac_f32_32x32x32_bf16 {vr(V_O,16)}, {vr(vf+4,4)}, {vr(cur+8,8)}, {vr(V_IDX)}")
        if p < 64:
            a(f"""s_mov_b64 exec, {sr(S_VMASK,2)}
                  ds_read_b128 {vr(vf,4)}, {vr(V_VA)} offset:{off+1024}
                  ds_read_b128 {vr(vf+4,4)}, {vr(V_VA)} offset:{off+1536}
                  s_mov_b64 exec, -1""")
        run(p, "C")

    VB0, VB1, VC0, VC1 = V_XOFF, V_WOFF, V_PQ, V_PQ + 1
    def wo_one(n, nt):
        b = V_WO + 8 * (n % 4) + 4 * nt
        ad = [V_WOA0, V_WOA1][nt] if n < 8 else ([VB0, VB1][nt] if n < 12 else [VC0, VC1][nt])
        off = n * 2048 if n < 8 else (n % 4) * 2048
        for u in range(2):
            a(f"ds_read_b64_tr_b16 {vr(b+2*u,2)}, {vr(ad)} offset:{off + u*1024}")
    def wo_rd(n):
        wo_one(n, 0); wo_one(n, 1)
    def mm(n, nt):
        src = V_FA + 4 * n if n < 8 else V_FBB + 4 * (n - 8)
        a(f"v_mfma_f32_32x32x16_bf16 {vr(V_OUT[nt],16)}, {vr(V_WO+8*(n%4)+4*nt,4)}, {vr(src,4)}, {'0' if n == 0 else vr(V_OUT[nt],16)}")
    wo_rd(0); wo_rd(1)
    a(f"""s_mov_b32 {sr(S_T0)}, {hex(f2u(2.0**64))}
          s_nop 2""")
    stamp(6)
    a(f"""v_rcp_f32 {vr(V_T0)}, {vr(V_O+8)}
          v_cmp_nle_f32 vcc, {vr(V_O+8)}, {sr(S_T0)}
          v_pk_mul_f32 {vr(V_T2,2)}, {vr(V_O,2)}, 0
          v_pk_fma_f32 {vr(V_T2,2)}, {vr(V_O+2,2)}, 0, {vr(V_T2,2)}
          v_pk_fma_f32 {vr(V_T2,2)}, {vr(V_O+4,2)}, 0, {vr(V_T2,2)}
          v_pk_fma_f32 {vr(V_T2,2)}, {vr(V_O+6,2)}, 0, {vr(V_T2,2)}
          v_cmp_u_f32 {sr(S_SAVE,2)}, {vr(V_T2)}, {vr(V_T3)}
          s_or_b64 vcc, vcc, {sr(S_SAVE,2)}
          s_cbranch_vccnz L_fallback""")
    a.label("L_norm")
    a(f"v_mul_f32 {vr(V_T0)}, {vr(V_T0)}, {vr(V_G)}")
    for i in range(0, 8, 2):
        a(f"v_pk_mul_f32 {vr(V_O+i,2)}, {vr(V_O+i,2)}, {vr(V_T0,2)} op_sel_hi:[1,0]")
    for i in range(4):
        a(f"v_cvt_pk_bf16_f32 {vr(V_PK+i)}, {vr(V_O+2*i)}, {vr(V_O+2*i+1)}")
    osan()
    a(f"buffer_store_dwordx4 {vr(V_PK,4)}, {vr(V_L16)}, {sr(S_WS,4)}, {sr(S_RDY)} offen sc1")
    wo_rd(2)
    a(f"""s_mov_b32 {sr(S_SPIN)}, 0
          s_waitcnt vmcnt(1)""")
    a.label("L_oa")
    a(f"v_max3_u32 {vr(V_FLG)}, {vr(V_FA)}, {vr(V_FA+1)}, {vr(V_FA+2)}")
    for i in range(3, 31, 2):
        a(f"v_max3_u32 {vr(V_FLG)}, {vr(V_FLG)}, {vr(V_FA+i)}, {vr(V_FA+i+1)}")
    a(f"""v_max_u32 {vr(V_FLG)}, {vr(V_FLG)}, {vr(V_FA+31)}
          v_cmp_eq_u32 vcc, -1, {vr(V_FLG)}
          s_cbranch_vccnz L_oar""")
    a.label("L_oak")
    A0, A1, A2, A3 = V_XA0, V_XA1, V_WA, V_KA
    setup = f"""s_lshl_b32 {sr(S_T0)}, {sr(S_HH)}, 13
          s_sub_u32 {sr(S_T1)}, {L_HI}, {sr(S_T0)}
          v_add_u32 {vr(VB0)}, {sr(S_T1)}, {vr(V_WOA0)}
          v_add_u32 {vr(VB1)}, {sr(S_T1)}, {vr(V_WOA1)}
          s_sub_u32 {sr(S_T1)}, 65536, {sr(S_T0)}
          v_add_u32 {vr(VC0)}, {sr(S_T1)}, {vr(V_WOA0)}
          v_add_u32 {vr(VC1)}, {sr(S_T1)}, {vr(V_WOA1)}
          v_and_b32 {vr(V_T0)}, 31, {vr(V_LANE)}
          v_lshrrev_b32 {vr(V_T1)}, 5, {vr(V_LANE)}
          v_and_b32 {vr(V_T2)}, 7, {vr(V_LANE)}
          v_xor_b32 {vr(V_T1)}, {vr(V_T1)}, {vr(V_T2)}
          v_lshlrev_b32 {vr(V_T1)}, 4, {vr(V_T1)}
          v_lshl_add_u32 {vr(V_T0)}, {vr(V_T0)}, 8, {vr(V_T1)}
          s_lshl_b32 {sr(S_T0)}, {sr(S_HH)}, 14
          s_lshl_b32 {sr(S_T1)}, {sr(S_RT)}, 13
          s_add_u32 {sr(S_T0)}, {sr(S_T0)}, {sr(S_T1)}
          v_add_u32 {vr(V_T0)}, {sr(S_T0)}, {vr(V_T0)}
          v_xor_b32 {vr(V_T1)}, 32, {vr(V_T0)}
          v_xor_b32 {vr(V_T2)}, 64, {vr(V_T0)}
          v_xor_b32 {vr(V_T3)}, 96, {vr(V_T0)}
          v_lshrrev_b32 {vr(A0)}, 3, {vr(V_LANE)}
          v_and_b32 {vr(A1)}, 7, {vr(V_LANE)}
          v_lshlrev_b32 {vr(A2)}, 1, {vr(A1)}
          v_xor_b32 {vr(A2)}, {vr(A2)}, {vr(A0)}
          v_lshlrev_b32 {vr(A2)}, 4, {vr(A2)}
          v_lshl_add_u32 {vr(A2)}, {vr(A0)}, 8, {vr(A2)}
          s_lshl_b32 {sr(S_T0)}, {sr(S_WAVE)}, 11
          v_add_u32 {vr(A2)}, {sr(S_T0)}, {vr(A2)}
          v_xor_b32 {vr(A3)}, 16, {vr(A2)}
          v_lshlrev_b32 {vr(A1)}, 4, {vr(A1)}
          v_lshl_add_u32 {vr(A0)}, {vr(A0)}, 10, {vr(A1)}
          s_lshl_b32 {sr(S_RDY)}, {sr(S_QO)}, 16
          s_lshl_b32 {sr(S_T1)}, {sr(S_WAVE)}, 13
          s_add_u32 {sr(S_RDY)}, {sr(S_RDY)}, {sr(S_T1)}
          s_lshl_b32 {sr(S_T1)}, {sr(S_NS)}, 7
          s_add_u32 {sr(S_RDY)}, {sr(S_RDY)}, {sr(S_T1)}""".split("\n")
    OBAT = opts.get("obat", 5)
    sched = {i: [] for i in range(8)}
    for k in range(8):
        sched[min(7, OBAT + (k * (8 - OBAT)) // 8)].append(k)
    per = (len(setup) + 3) // 4
    def chk(i):
        f = V_FBB + 4 * i
        a(f"s_waitcnt vmcnt({7-i})")
        a.label(f"L_ob{i}")
        a(f"""v_max3_u32 {vr(V_FLG)}, {vr(f)}, {vr(f+1)}, {vr(f+2)}
              v_max_u32 {vr(V_FLG)}, {vr(V_FLG)}, {vr(f+3)}
              v_cmp_eq_u32 vcc, -1, {vr(V_FLG)}
              s_cbranch_vccnz L_obr{i}""")
        a.label(f"L_obk{i}")
    OBM = opts.get("obm", 8)
    for n in range(12):
        if n == 8: stamp(7)
        if OBM and n == OBM:
            a("s_barrier")
            for k in range(8): oload(k, V_FBB, 1)
        if n >= 8: chk(n - 8)
        a(f"s_waitcnt lgkmcnt({4 * (min(n + 2, 11) - n)})")
        mm(n, 0); mm(n, 1)
        if n < 4:
            for l in setup[n*per:(n+1)*per]: a(l)
        if n + 3 < 12: wo_rd(n + 3)
        if n < 8 and not OBM:
            for k in sched[n]: oload(k, V_FBB, 1)
    if OBM != 8: a("s_barrier")
    stamp(8)
    for n in range(12, 16): wo_one(n, 0)
    for n in range(12, 15): wo_one(n, 1)
    for n in range(12, 16):
        chk(n - 8)
        a(f"s_waitcnt lgkmcnt({12 if n == 12 else 2*(15-n) + 8})")
        mm(n, 0)
        if n == 12: wo_one(15, 1)
    for n in range(12, 16):
        a(f"s_waitcnt lgkmcnt({2*(15-n)})")
        mm(n, 1)
    stamp(9)
    a("s_nop 3")
    for nt in range(2):
        if nt: a("s_nop 3")
        for g in range(4):
            a(f"ds_write_b128 {vr(V_T0+g)}, {vr(V_OUT[nt]+4*g,4)} offset:{nt*128}")
    a("""s_waitcnt lgkmcnt(0)
         s_barrier""")
    RR = V_FA
    for k in range(4):
        a(f"ds_read_b128 {vr(RR+8*k,4)}, {vr(A2)} offset:{k*16384}")
        a(f"ds_read_b128 {vr(RR+8*k+4,4)}, {vr(A3)} offset:{k*16384}")
    for k in range(1, 4):
        a(f"s_waitcnt lgkmcnt({2*(3-k)})")
        for i in range(0, 8, 2):
            a(f"v_pk_add_f32 {vr(RR+i,2)}, {vr(RR+i,2)}, {vr(RR+8*k+i,2)}")
    for i in range(4):
        a(f"v_cvt_pk_bf16_f32 {vr(RR+8+i)}, {vr(RR+2*i)}, {vr(RR+2*i+1)}")
    a(f"buffer_store_dwordx4 {vr(RR+8,4)}, {vr(A0)}, {sr(S_OUT,4)}, {sr(S_RDY)} offen " + ["", "nt", "sc0 sc1", "sc1", "sc1 nt"][opts.get("outf", 0)])
    if "dly" in opts:
        stamp(10)
        a(f"""s_cmp_lg_u32 s2, {opts.get('tswg', 100)}
              s_cbranch_scc1 L_end
              s_cmp_lg_u32 {sr(S_WAVE)}, 0
              s_cbranch_scc1 L_end
              s_memrealtime s[98:99]
              s_waitcnt lgkmcnt(0)
              s_sub_u32 {sr(S_T0)}, s100, s74
              s_lshl_b32 {sr(S_T0)}, {sr(S_T0)}, {opts.get('dsh', 2)}
              s_add_u32 {sr(S_T0)}, {sr(S_T0)}, 500
              s_min_u32 {sr(S_T0)}, {sr(S_T0)}, 30000""")
        a.label("L_dly2")
        a(f"""s_memrealtime s[96:97]
              s_waitcnt lgkmcnt(0)
              s_sub_u32 {sr(S_T1)}, s96, s98
              s_cmp_lt_u32 {sr(S_T1)}, {sr(S_T0)}
              s_cbranch_scc1 L_dly2""")
    if ts:
        stamp(10)
        ts_out()
    a.label("L_end")
    a("s_endpgm")

    a.label("L_armr")
    a(f"""s_add_u32 {sr(S_SPIN)}, {sr(S_SPIN)}, 1
          s_cmp_ge_u32 {sr(S_SPIN)}, 100000
          s_cbranch_scc1 L_armk""")
    flag_load(S_INFO)
    a("""s_waitcnt vmcnt(0)
         s_branch L_arm""")
    a.label("L_oar")
    a(f"""s_add_u32 {sr(S_SPIN)}, {sr(S_SPIN)}, 1
          s_cmp_ge_u32 {sr(S_SPIN)}, 100000
          s_cbranch_scc1 L_oak""")
    for k in range(8): oload(k, V_FA, 0)
    a("""s_waitcnt vmcnt(0)
         s_branch L_oa""")
    RM = opts.get("rm", 1)
    for i in range(8):
        f = V_FBB + 4 * i
        a.label(f"L_obr{i}")
        a(f"""s_add_u32 {sr(S_SPIN)}, {sr(S_SPIN)}, 1
              s_cmp_ge_u32 {sr(S_SPIN)}, 100000
              s_cbranch_scc1 L_obk{i}""")
        if RM == 1:
            if opts.get("slp", 0): a(f"s_sleep {opts['slp']}")
            for k in range(i, 8): oload(k, V_FBB, 1)
            a(f"""s_waitcnt vmcnt({7-i})
                  s_branch L_ob{i}""")
        else:
            if opts.get("slp", 0): a(f"s_sleep {opts['slp']}")
            oload(i, V_FBB, 1)
            a(f"""s_waitcnt vmcnt(0)
                  v_max3_u32 {vr(V_FLG)}, {vr(f)}, {vr(f+1)}, {vr(f+2)}
                  v_max_u32 {vr(V_FLG)}, {vr(V_FLG)}, {vr(f+3)}
                  v_cmp_eq_u32 vcc, -1, {vr(V_FLG)}
                  s_cbranch_vccnz L_obr{i}""")
            for k in range(i + 1, 8): oload(k, V_FBB, 1)
            a(f"s_branch L_obk{i}")

    a.label("L_fallback")
    FS = V_S[0]
    a(f"""v_mov_b32 {vr(V_T0)}, 0xff800000
          s_mov_b32 {sr(S_T0)}, {WS_KV}""")
    a.label("L_fb1")
    a(f"""buffer_load_dwordx4 {vr(V_KF,4)}, {vr(V_L16)}, {sr(S_WS,4)}, {sr(S_T0)} offen sc1
          s_waitcnt vmcnt(0)
          v_mfma_f32_32x32x16_bf16 {vr(FS,16)}, {vr(V_KF,4)}, {vr(V_QF,4)}, 0
          s_nop 15""")
    for i in range(8):
        a(f"v_max3_f32 {vr(V_T0)}, {vr(V_T0)}, {vr(FS+2*i)}, {vr(FS+2*i+1)}")
    a(f"""s_add_u32 {sr(S_T0)}, {sr(S_T0)}, 2048
          s_cmp_lt_u32 {sr(S_T0)}, {WS_KV + 131072}
          s_cbranch_scc1 L_fb1
          v_mov_b32 {vr(V_T1)}, {vr(V_T0)}
          s_nop 1
          v_permlane32_swap_b32 {vr(V_T0)}, {vr(V_T1)}
          s_nop 1
          v_max_f32 {vr(V_T0)}, {vr(V_T0)}, {vr(V_T1)}""")
    for i in range(16):
        a(f"v_sub_f32 {vr(V_C+i)}, 0, {vr(V_T0)}")
        a(f"v_mov_b32 {vr(V_O+i)}, 0")
    a(f"""v_and_b32 {vr(V_VA)}, 0x3ff, {vr(V_VA)}
          s_mov_b32 {sr(S_T0)}, {WS_KV}""")
    a.label("L_fb2")
    a(f"""buffer_load_dwordx4 {vr(V_KF,4)}, {vr(V_L16)}, {sr(S_WS,4)}, {sr(S_T0)} offen sc1
          s_mov_b64 exec, {sr(S_VMASK,2)}
          buffer_load_dwordx4 {vr(V_VF[0],4)}, {vr(V_VA)}, {sr(S_WS,4)}, {sr(S_T0)} offen offset:1024 sc1
          buffer_load_dwordx4 {vr(V_VF[0]+4,4)}, {vr(V_VA)}, {sr(S_WS,4)}, {sr(S_T0)} offen offset:1536 sc1
          s_mov_b64 exec, -1
          s_waitcnt vmcnt(0)
          v_mfma_f32_32x32x16_bf16 {vr(FS,16)}, {vr(V_KF,4)}, {vr(V_QF,4)}, {vr(V_C,16)}
          s_nop 15""")
    for i in range(16):
        a(f"v_exp_f32 {vr(FS+i)}, {vr(FS+i)}")
    a(f"""s_nop 1
          v_smfmac_f32_32x32x32_bf16 {vr(V_O,16)}, {vr(V_VF[0],4)}, {vr(FS,8)}, {vr(V_IDX)}
          v_smfmac_f32_32x32x32_bf16 {vr(V_O,16)}, {vr(V_VF[0]+4,4)}, {vr(FS+8,8)}, {vr(V_IDX)}
          s_add_u32 {sr(S_T0)}, {sr(S_T0)}, 2048
          s_cmp_lt_u32 {sr(S_T0)}, {WS_KV + 131072}
          s_cbranch_scc1 L_fb2
          s_nop 15
          v_rcp_f32 {vr(V_T0)}, {vr(V_O+8)}
          s_nop 0
          s_branch L_norm""")

    H_F4, H_FOFF = 148, 152
    S_ROT = S_HEAD
    def rot_setup():
        a(f"""s_and_b32 {sr(S_ROT)}, s2, 7
              s_lshl_b32 {sr(S_ROT)}, {sr(S_ROT)}, 3""")
    def kv_sample():
        a(f"buffer_load_dwordx4 {vr(H_F4,4)}, {vr(H_FOFF)}, {sr(S_WS,4)}, 0 offen offset:{WS_FKV} sc1")
    def kv_spin(lbl, lo_only):
        a(f"s_mov_b32 {sr(S_SPIN)}, 0")
        a.label(lbl + "_loop")
        a(f"""v_cmp_ne_u32 vcc, {vr(H_F4)}, {vr(V_TAG)}
              v_cmp_ne_u32 {sr(S_SAVE,2)}, {vr(H_F4+1)}, {vr(V_TAG)}
              s_or_b64 vcc, vcc, {sr(S_SAVE,2)}
              v_cmp_ne_u32 {sr(S_SAVE,2)}, {vr(H_F4+2)}, {vr(V_TAG)}
              s_or_b64 vcc, vcc, {sr(S_SAVE,2)}
              v_cmp_ne_u32 {sr(S_SAVE,2)}, {vr(H_F4+3)}, {vr(V_TAG)}
              s_or_b64 vcc, vcc, {sr(S_SAVE,2)}""")
        if lo_only:
            a(f"s_and_b32 {sr(S_SAVE)}, vcc_lo, 0xff\ns_cmp_eq_u32 {sr(S_SAVE)}, 0")
        else:
            a("s_cmp_eq_u64 vcc, 0")
        a(f"""s_cbranch_scc1 {lbl}_ok
              s_add_u32 {sr(S_SPIN)}, {sr(S_SPIN)}, 1
              s_cmp_ge_u32 {sr(S_SPIN)}, 100000
              s_cbranch_scc1 {lbl}_ok""")
        if lo_only: a("s_mov_b64 exec, 0xff")
        kv_sample()
        if lo_only: a("s_mov_b64 exec, -1")
        a(f"""s_waitcnt vmcnt(0)
              s_branch {lbl}_loop""")
        a.label(lbl + "_ok")
    def kv_dma(lbl, s0, n):
        a(f"""s_mul_i32 {sr(S_T0)}, {sr(S_RT)}, {n}
              s_add_u32 {sr(S_T0)}, {sr(S_T0)}, {s0}
              s_add_u32 {sr(S_T2)}, {sr(S_T0)}, {n}""")
        a.label(lbl)
        a(f"""s_add_u32 {sr(S_T1)}, {sr(S_T0)}, {sr(S_ROT)}
              s_and_b32 {sr(S_T1)}, {sr(S_T1)}, 63
              s_lshl_b32 {sr(S_T1)}, {sr(S_T1)}, 11
              s_add_u32 {sr(S_T1)}, {sr(S_T1)}, {WS_KV}
              s_lshl_b32 m0, {sr(S_T0)}, 11
              s_waitcnt vmcnt(40)""")
        for k in range(4):
            a(f"buffer_load_dwordx4 {vr(V_L16)}, {sr(S_WS,4)}, {sr(S_T1)} offen offset:{k*1024} sc1 lds")
        a(f"""s_add_u32 m0, m0, 4096
              s_add_u32 {sr(S_T1)}, {sr(S_T1)}, 4096""")
        for k in range(4):
            a(f"buffer_load_dwordx4 {vr(V_L16)}, {sr(S_WS,4)}, {sr(S_T1)} offen offset:{k*1024} sc1 lds")
        a(f"""s_add_u32 {sr(S_T0)}, {sr(S_T0)}, 4
              s_cmp_lt_u32 {sr(S_T0)}, {sr(S_T2)}
              s_cbranch_scc1 {lbl}""")
    def swz64(dst, stride):
        a(f"""v_lshrrev_b32 {vr(V_T0)}, 3, {vr(V_LANE)}
              v_bfe_u32 {vr(V_T1)}, {vr(V_LANE)}, 4, 1
              v_lshlrev_b32 {vr(V_T1)}, 2, {vr(V_T1)}
              v_xor_b32 {vr(V_T1)}, {vr(V_T1)}, {vr(V_LANE)}
              v_and_b32 {vr(V_T1)}, 7, {vr(V_T1)}
              v_lshlrev_b32 {vr(V_T1)}, 4, {vr(V_T1)}
              v_mul_u32_u24 {vr(V_T0)}, {stride}, {vr(V_T0)}
              v_add_u32 {vr(dst)}, {vr(V_T0)}, {vr(V_T1)}""")

    KACC = [24, 40]
    KB = [56, 68]
    KV0, KV1 = 153, 154
    S_KO, S_KM = S_U2, S_U3
    S_KW = S_WOB
    def kv_setup(init=True):
        srd(S_KW, 2, 0x180000)
        srd(S_WS, 22, WS_SIZE)
        consts()
        swz64(KV0, 3072)
        a(f"""v_add_u32 {vr(KV1)}, {24576 - 1024}, {vr(KV0)}
              s_sub_u32 {sr(S_AUX)}, {sr(S_WAVE)}, 8
              s_and_b32 {sr(S_RT)}, {sr(S_AUX)}, 1
              s_lshl_b32 {sr(S_KM)}, {sr(S_AUX)}, 13
              s_add_u32 {sr(S_KM)}, {sr(S_KM)}, {L_HI}
              s_lshl_b32 {sr(S_KO)}, {sr(S_HGK)}, 7
              s_cmp_lt_u32 {sr(S_AUX)}, 2
              s_cselect_b32 {sr(S_T1)}, 2, 1
              s_cselect_b32 {sr(S_T2)}, 0, {sr(S_EPS)}
              s_lshl_b32 {sr(S_T1)}, {sr(S_T1)}, 10
              s_add_u32 {sr(S_KO)}, {sr(S_KO)}, {sr(S_T1)}""")
        if init:
            for i in range(32):
                a(f"v_mov_b32 {vr(KACC[0]+i)}, {sr(S_T2)}")
        a.split = len(a.lines)
        xfrag_addr(S_RT)
        a(f"""v_lshlrev_b32 {vr(V_T0)}, 10, {vr(V_T1)}
              v_bfe_u32 {vr(V_T1)}, {vr(V_LANE)}, 2, 2
              v_lshl_add_u32 {vr(V_T0)}, {vr(V_T1)}, 7, {vr(V_T0)}
              v_bfe_u32 {vr(V_T1)}, {vr(V_LANE)}, 3, 1
              v_lshl_add_u32 {vr(V_T0)}, {vr(V_T1)}, 6, {vr(V_T0)}
              v_bfe_u32 {vr(V_T1)}, {vr(V_LANE)}, 4, 1
              v_lshl_add_u32 {vr(V_T0)}, {vr(V_T1)}, 5, {vr(V_T0)}
              v_and_b32 {vr(V_T1)}, 3, {vr(V_LANE)}
              v_lshl_add_u32 {vr(V_T0)}, {vr(V_T1)}, 3, {vr(V_T0)}
              v_add_u32 {vr(V_WOA0)}, {sr(S_KM)}, {vr(V_T0)}
              v_xor_b32 {vr(V_WOA1)}, 64, {vr(V_WOA0)}""")
    def kdma(st):
        a(f"s_add_u32 m0, {sr(S_KM)}, {(st % 4)*2048}")
        if st % 4 == 0:
            a(f"""s_xor_b32 {sr(S_U1)}, {sr(S_J)}, {st//4}
                  s_mul_i32 {sr(S_U1)}, {sr(S_U1)}, 196608
                  s_add_u32 {sr(S_U1)}, {sr(S_U1)}, {sr(S_KO)}""")
        else:
            a(f"s_add_u32 {sr(S_U1)}, {sr(S_U1)}, 49152")
        a.vmem(f"buffer_load_dwordx4 {vr(KV0)}, {sr(S_KW,4)}, {sr(S_U1)} offen lds", f"k{st}")
        a.vmem(f"buffer_load_dwordx4 {vr(KV1)}, {sr(S_KW,4)}, {sr(S_U1)} offen offset:1024 lds", f"k{st}")
    def krd(st):
        b = KB[st % 2]
        a(f"ds_read_b128 {vr(b,4)}, {vr(V_XA0 if st%2==0 else V_XA1)} offset:{(st//2)*4096}")
        for nt in range(2):
            for u in range(2):
                a(f"ds_read_b64_tr_b16 {vr(b+4+4*nt+2*u,2)}, {vr(V_WOA0 if nt==0 else V_WOA1)} offset:{(st%4)*2048 + u*512}")
    def kv_pass(bars, after={}, zero=False):
        a.vm = []
        for st in range(4): kdma(st)
        for _ in range(bars.get(-1, 0)): a("s_barrier")
        a.wait_vm("k0")
        for _ in range(bars.get(0, 0)): a("s_barrier")
        krd(0)
        for st in range(32):
            if st + 1 < 32:
                if f"k{st+1}" in a.vm: a.wait_vm(f"k{st+1}")
                for _ in range(bars.get(st + 1, 0)): a("s_barrier")
                if st + 1 in after: after[st + 1]()
                krd(st + 1)
            a(f"s_waitcnt lgkmcnt({5 if st + 1 < 32 else 0})")
            b = KB[st % 2]
            for nt in range(2):
                a(f"v_mfma_f32_32x32x16_bf16 {vr(KACC[nt],16)}, {vr(b,4)}, {vr(b+4+4*nt,4)}, {'0' if (zero and st == 0) else vr(KACC[nt],16)}")
                if nt == (0 if opts.get("ksp", 0) else 1) and st + 4 < 32: kdma(st + 4)
    def foff_setup():
        a(f"""v_add_u32 {vr(H_FOFF)}, {sr(S_ROT)}, {vr(V_LANE)}
              v_and_b32 {vr(H_FOFF)}, 63, {vr(H_FOFF)}
              v_lshlrev_b32 {vr(H_FOFF)}, 4, {vr(H_FOFF)}""")

    TG = 80
    TKA, TVA = 12, 155
    S_TG = S_RDY
    def tg_setup(which):
        a(f"""v_and_b32 {vr(V_T0)}, 15, {vr(V_LANE)}
              v_lshlrev_b32 {vr(V_T0)}, 4, {vr(V_T0)}
              v_bfe_u32 {vr(V_T1)}, {vr(V_LANE)}, 4, 1
              v_lshrrev_b32 {vr(V_T2)}, 5, {vr(V_LANE)}
              v_lshl_add_u32 {vr(TKA)}, {vr(V_T1)}, 9, {vr(V_T0)}
              v_lshl_add_u32 {vr(TKA)}, {vr(V_T2)}, 3, {vr(TKA)}
              v_lshl_add_u32 {vr(TVA)}, {vr(V_T2)}, 8, {vr(V_T0)}
              v_lshl_add_u32 {vr(TVA)}, {vr(V_T1)}, 3, {vr(TVA)}
              s_lshl_b32 {sr(S_TG)}, {sr(S_ROT)}, 12
              s_add_u32 {sr(S_TG)}, {sr(S_TG)}, {WS_KVT + which*16384}""")
    def tg_loads():
        for t in range(4):
            a(f"s_add_u32 {sr(S_T0)}, {sr(S_TG)}, {t*4096}")
            for jb in range(4):
                a(f"buffer_load_dwordx4 {vr(TG+16*t+4*jb,4)}, {vr(V_L16)}, {sr(S_WS,4)}, {sr(S_T0)} offen offset:{jb*1024} sc1")
    def tg_finish(lbl, which):
        a(f"s_mov_b32 {sr(S_SPIN)}, 0")
        a.label(lbl + "_loop")
        for t in range(4):
            a(f"s_waitcnt vmcnt({12 - 4*t})" + (" lgkmcnt(8)" if t == 3 else ""))
            for jb in range(4):
                g = TG + 16 * t + 4 * jb
                lo, hi = (V_T0, V_T1) if jb % 2 == 0 else (V_T2, V_T3)
                first = t == 0 and jb < 2
                a(f"v_min3_u32 {vr(lo)}, {vr(V_TAG if first else lo)}, {vr(g+1)}, {vr(g+3)}")
                a(f"v_max3_u32 {vr(hi)}, {vr(V_TAG if first else hi)}, {vr(g+1)}, {vr(g+3)}")
                a(f"v_mov_b32 {vr(g+1)}, {vr(g+2)}")
                ad = TVA if jb & 1 else TKA
                off = (4 * which + t) * 2048 + ((1024 + (jb >> 1) * 512) if jb & 1 else (jb >> 1) * 256)
                a(f"ds_write_b64 {vr(ad)}, {vr(g,2)} offset:{off}")
        a(f"""v_min_u32 {vr(V_T0)}, {vr(V_T0)}, {vr(V_T2)}
              v_max_u32 {vr(V_T1)}, {vr(V_T1)}, {vr(V_T3)}
              v_cmp_ne_u32 vcc, {vr(V_T0)}, {vr(V_T1)}
              s_waitcnt lgkmcnt(0)
              s_cbranch_vccz {lbl}_ok
              s_add_u32 {sr(S_SPIN)}, {sr(S_SPIN)}, 1
              s_cmp_ge_u32 {sr(S_SPIN)}, 100000
              s_cbranch_scc1 {lbl}_ok""")
        tg_loads()
        a(f"s_branch {lbl}_loop")
        a.label(lbl + "_ok")
    C_TG = opts.get("c_tg", 6)

    a.label("L_a0")
    a.vm = []
    HX, HW, HG_, HD, HDG = 16, 48, 80, 144, 112
    H_GWA = 8
    S_JX, S_JM = S_U0, S_U1
    a(f"""s_setprio 3
          s_lshl_b32 {sr(S_T1)}, {sr(S_RGJ)}, 14
          s_add_u32 {sr(S_JX)}, {sr(S_T0)}, {sr(S_T1)}
          s_lshl_b32 {sr(S_T1)}, {sr(S_RGJ)}, 10
          s_add_u32 {sr(S_JM)}, {sr(S_T1)}, {L_X}
          s_mov_b32 {sr(S_WJ+2)}, 16384
          s_mov_b32 {sr(S_WJ+3)}, 0x20000
          s_bitcmp1_b32 {sr(S_HG)}, 0
          s_waitcnt lgkmcnt(0)
          s_mov_b32 {sr(S_X)}, {sr(S_KA+0)}
          s_mov_b32 {sr(S_X+1)}, {sr(S_KA+1)}
          s_cselect_b32 {sr(S_WJ)}, {sr(S_KA+12)}, {sr(S_KA+10)}
          s_cselect_b32 {sr(S_WJ+1)}, {sr(S_KA+13)}, {sr(S_KA+11)}
          s_load_dword {sr(S_TAG)}, {sr(S_KA+22,2)}, {WS_E}""")
    a(f"""s_lshl_b32 {sr(S_U2)}, {sr(S_J)}, 11
          s_lshl_b32 {sr(S_T1)}, {sr(S_J)}, 7
          v_xor_b32 {vr(V_T0)}, {sr(S_T1)}, {vr(V_L16)}""")
    def jload(g):
        for k in range(4):
            kb = 4 * g + k
            a(f"s_add_u32 m0, {sr(S_JM)}, {kb*4096 - (k%2)*64}")
            a(f"s_xor_b32 {sr(S_T1)}, {sr(S_JX)}, {(kb//2)*128}" if k % 2 == 0 else "s_nop 0")
            a.vmem(f"buffer_load_dwordx4 {vr(V_XOFF)}, {sr(S_X,4)}, {sr(S_T1)} offen offset:{(k%2)*64} lds", f"j{g}")
        for k in range(2):
            a(f"s_mov_b32 m0, {L_JW + g*4096 + k*2048}")
            a(f"s_xor_b32 {sr(S_T2)}, {sr(S_U2)}, {g*4096 + k*2048}")
            for q in range(2):
                a.vmem(f"buffer_load_dwordx4 {vr(V_L16)}, {sr(S_WJ,4)}, {sr(S_T2)} offen offset:{q*1024} lds", f"j{g}")
    jload(0)
    srd(S_W, 16, 1024)
    a(f"s_mov_b32 m0, {L_GW}\ns_nop 0")
    a.vmem(f"buffer_load_dwordx4 {vr(V_T0)}, {sr(S_W,4)}, 0 offen lds", "gw")
    jload(1); jload(2); jload(3)
    srd(S_WS, 22, WS_SIZE)
    rot_setup()
    a(f"""v_and_b32 {vr(V_T0)}, 15, {vr(V_LANE)}
          v_lshrrev_b32 {vr(V_T1)}, 4, {vr(V_LANE)}
          v_bfe_u32 {vr(V_T2)}, {vr(V_LANE)}, 2, 2
          v_xor_b32 {vr(V_T2)}, {vr(V_T2)}, {vr(V_T1)}
          v_lshlrev_b32 {vr(V_T2)}, 4, {vr(V_T2)}
          v_lshl_add_u32 {vr(V_T2)}, {vr(V_T0)}, 6, {vr(V_T2)}
          v_add_u32 {vr(V_T2)}, {sr(S_JM)}, {vr(V_T2)}
          v_lshlrev_b32 {vr(V_T3)}, 3, {vr(V_T0)}
          v_lshl_add_u32 {vr(V_T3)}, {vr(V_T1)}, 8, {vr(V_T3)}
          v_lshlrev_b32 {vr(H_GWA)}, 4, {vr(V_T1)}
          v_add_u32 {vr(H_GWA)}, {L_GW}, {vr(H_GWA)}
          v_lshlrev_b32 {vr(13)}, 4, {vr(V_T0)}
          v_and_b32 {vr(14)}, 1, {vr(V_T1)}
          v_lshrrev_b32 {vr(15)}, 1, {vr(V_T1)}
          {f"s_lshl_b32 {sr(S_T0)}, {sr(S_QB)}, 1" if MAP == 48 else f"s_and_b32 {sr(S_T0)}, {sr(S_QB)}, 7"}
          {f"s_lshr_b32 {sr(S_T1)}, {sr(S_RGJ)}, 1" if MAP == 48 else f"s_mov_b32 {sr(S_T1)}, {sr(S_ROT)}"}
          s_add_u32 {sr(S_SEG)}, {sr(S_T0)}, {sr(S_T1)}
          s_lshl_b32 {sr(S_T3)}, {sr(S_SEG)}, 4
          s_and_b32 {sr(S_T0)}, {sr(S_HG)}, 3
          s_lshl_b32 {sr(S_T0)}, {sr(S_T0)}, 2
          s_add_u32 {sr(S_T3)}, {sr(S_T3)}, {sr(S_T0)}
          s_add_u32 {sr(S_T3)}, {sr(S_T3)}, {WS_FKV}""")
    tag_setup()
    if opts.get("lst"): stamp(19)
    vmh = list(a.vm)
    def job(isV):
        a.vm = list(vmh)
        nr = 3 if isV else 4
        for half in range(2):
            a.wait_vm(f"j{2*half}")
            if opts.get("lst"): stamp(20 + 3*half)
            a("s_barrier")
            if opts.get("lst"): stamp(21 + 3*half)
            a.wait_vm(f"j{2*half+1}")
            if opts.get("lst"): stamp(22 + 3*half)
            def rd(k):
                s = 8 * half + k
                a(f"ds_read_b128 {vr(HX+4*k,4)}, {vr(V_T2)} offset:{s*4096}")
                a(f"ds_read_b64_tr_b16 {vr(HW+4*k,2)}, {vr(V_T3)} offset:{L_JW + s*1024}")
                a(f"ds_read_b64_tr_b16 {vr(HW+4*k+2,2)}, {vr(V_T3)} offset:{L_JW + s*1024 + 128}")
                if not isV: a(f"ds_read_b128 {vr(HG_+4*k,4)}, {vr(H_GWA)} offset:{s*64}")
            rd(0); rd(1); rd(2)
            for k in range(8):
                a(f"s_waitcnt lgkmcnt({nr * (min(k + 2, 7) - k)})")
                z = half == 0 and k == 0
                A_, B_ = (HX, HW) if isV else (HW, HX)
                a(f"v_mfma_f32_16x16x32_bf16 {vr(HD,4)}, {vr(A_+4*k,4)}, {vr(B_+4*k,4)}, {'0' if z else vr(HD,4)}")
                if not isV: a(f"v_mfma_f32_16x16x32_bf16 {vr(HDG,4)}, {vr(HG_+4*k,4)}, {vr(HX+4*k,4)}, {'0' if z else vr(HDG,4)}")
                if k + 3 < 8: rd(k + 3)
        a(f"s_and_b32 {sr(S_T1)}, {sr(S_RGJ)}, 1")
        if isV:
            a(f"""v_lshl_add_u32 {vr(13)}, {vr(15)}, 8, {vr(13)}
                  v_lshl_add_u32 {vr(13)}, {vr(14)}, 3, {vr(13)}
                  s_lshl_b32 {sr(S_T1)}, {sr(S_T1)}, 9
                  s_add_u32 {sr(S_T1)}, {sr(S_T1)}, 1024""")
        else:
            a(f"""v_lshl_add_u32 {vr(13)}, {vr(14)}, 9, {vr(13)}
                  v_lshl_add_u32 {vr(13)}, {vr(15)}, 3, {vr(13)}
                  s_lshl_b32 {sr(S_T1)}, {sr(S_T1)}, 8
                  s_lshl_b32 {sr(S_T0)}, {sr(S_QB)}, 2
                  s_add_u32 {sr(S_T0)}, {sr(S_T0)}, {sr(S_RGJ)}
                  s_lshl_b32 {sr(S_T0)}, {sr(S_T0)}, 7
                  s_add_u32 {sr(S_T0)}, {sr(S_T0)}, {WS_G}
                  s_mov_b32 {sr(S_T2)}, {hex(f2u(LOG2E))}
                  v_mul_f32 {vr(HDG)}, {sr(S_T2)}, {vr(HDG)}
                  v_exp_f32 {vr(HDG)}, -{vr(HDG)}
                  s_nop 0
                  v_add_f32 {vr(HDG)}, 1.0, {vr(HDG)}
                  v_rcp_f32 {vr(HDG)}, {vr(HDG)}
                  s_mov_b32 exec_hi, 0
                  buffer_store_dword {vr(HDG)}, {vr(V_L4)}, {sr(S_WS,4)}, {sr(S_T0)} offen sc1
                  s_mov_b32 exec_hi, -1""")
    a(f"""s_bitcmp1_b32 {sr(S_HG)}, 0
          s_cbranch_scc1 L_jobV""")
    job(False)
    a("s_branch L_jobdone")
    a.label("L_jobV")
    job(True)
    a.label("L_jobdone")
    a.vm = []
    a(f"""s_lshl_b32 {sr(S_T0)}, {sr(S_SEG)}, 11
          s_add_u32 {sr(S_T0)}, {sr(S_T0)}, {sr(S_T1)}
          s_add_u32 {sr(S_T0)}, {sr(S_T0)}, {WS_KV}
          s_nop 1
          v_cvt_pk_bf16_f32 {vr(HD+4)}, {vr(HD)}, {vr(HD+1)}
          v_cvt_pk_bf16_f32 {vr(HD+5)}, {vr(HD+2)}, {vr(HD+3)}
          v_mov_b32 {vr(HX)}, {vr(HD+4)}
          v_mov_b32 {vr(HX+1)}, {vr(V_TAG)}
          v_mov_b32 {vr(HX+2)}, {vr(HD+5)}
          v_mov_b32 {vr(HX+3)}, {vr(V_TAG)}
          s_lshl_b32 {sr(S_T1)}, {sr(S_SEG)}, 2
          s_and_b32 {sr(S_T2)}, {sr(S_HG)}, 3
          s_add_u32 {sr(S_T1)}, {sr(S_T1)}, {sr(S_T2)}
          s_lshl_b32 {sr(S_T1)}, {sr(S_T1)}, 10
          s_add_u32 {sr(S_T1)}, {sr(S_T1)}, {WS_KVT}
          buffer_store_dwordx4 {vr(HX,4)}, {vr(V_L16)}, {sr(S_WS,4)}, {sr(S_T1)} offen {"" if opts.get("plaint", 0) else "sc1"}
          v_mov_b32 {vr(14)}, 0
          s_lshl_b32 {sr(S_T1)}, s2, 8
          s_add_u32 {sr(S_T1)}, {sr(S_T1)}, {WS_ACC}
          buffer_store_dwordx2 {vr(HD+4,2)}, {vr(13)}, {sr(S_WS,4)}, {sr(S_T0)} offen sc1
          buffer_store_dword {vr(14)}, {vr(V_L4)}, {sr(S_WS,4)}, {sr(S_T1)} offen sc1""")
    stamp(1)
    C_SIG = opts.get("c_sig", 4)
    for c in range(2, 8):
        a("s_barrier")
        if c == 2:
            kv_setup(False)
            rest = a.lines[a.split:]; a.lines = a.lines[:a.split]
        if c == 3: tg_setup(0)
        if c == 5: a.lines += rest
        if c == C_SIG:
            a("s_waitcnt vmcnt(0)")
            flag_store(S_T3)
            stamp(2)
        if c == C_TG: tg_loads()
    stamp(3)
    tg_finish("L_tg0", 0)
    stamp(4)
    a("s_barrier")
    a.label("L_kv01")
    kv_pass({opts.get("n1", 8): 1}, zero=True)
    a("s_branch L_kvend")

    a.label("L_a1")
    a.vm = []
    LV = [16, 20]
    SO = [S_U0, S_U1]
    a(f"""s_setprio 3
          v_lshrrev_b32 {vr(V_T0)}, 1, {vr(V_LANE)}
          v_and_b32 {vr(V_T0)}, 3, {vr(V_T0)}
          v_bfe_u32 {vr(V_T1)}, {vr(V_LANE)}, 4, 1
          v_xor_b32 {vr(V_T0)}, {vr(V_T0)}, {vr(V_T1)}
          v_lshlrev_b32 {vr(V_T0)}, 5, {vr(V_T0)}
          v_and_b32 {vr(V_T1)}, 1, {vr(V_LANE)}
          v_lshl_add_u32 {vr(V_T0)}, {vr(V_T1)}, 4, {vr(V_T0)}
          v_lshrrev_b32 {vr(V_T1)}, 3, {vr(V_LANE)}
          v_lshl_add_u32 {vr(LV[0])}, {vr(V_T1)}, 10, {vr(V_T0)}
          v_mul_u32_u24 {vr(V_T1)}, 3072, {vr(V_T1)}
          v_add_u32 {vr(LV[1])}, {vr(V_T1)}, {vr(V_T0)}
          v_xor_b32 {vr(LV[1])}, 64, {vr(LV[1])}""")
    for rg in range(1, 4):
        a(f"""v_add_u32 {vr(LV[0]+rg)}, {rg*(8192-1024)}, {vr(LV[0])}
              v_add_u32 {vr(LV[1]+rg)}, {rg*(24576-1024)}, {vr(LV[1])}""")
    a(f"""s_lshl_b32 {sr(SO[0])}, {sr(S_HG)}, 7
          s_lshl_b32 {sr(SO[1])}, {sr(S_HGQ)}, 7
          s_waitcnt lgkmcnt(0)
          s_load_dword {sr(S_TAG)}, {sr(S_KA+22,2)}, {WS_E}""")
    srd(S_W, 8, 0x80000)
    srd(S_WJ, 2, 0x180000)
    def lw(c):
        a(f"""s_xor_b32 {sr(S_T0)}, {sr(S_J)}, {c}
              s_lshl_b32 {sr(S_T1)}, {sr(S_T0)}, 16
              s_add_u32 {sr(S_T1)}, {sr(S_T1)}, {sr(SO[0])}
              s_mul_i32 {sr(S_T2)}, {sr(S_T0)}, 196608
              s_add_u32 {sr(S_T2)}, {sr(S_T2)}, {sr(SO[1])}""")
        for hf in range(2):
            for m in range(2):
                so = [S_T1, S_T2][m]
                a(f"s_mov_b32 m0, {RSLOT[c % 4] + m*8192 + hf*4096}")
                a("s_nop 0" if hf == 0 else f"s_add_u32 {sr(so)}, {sr(so)}, {32768 if m == 0 else 98304}")
                for rg in range(4):
                    a.vmem(f"buffer_load_dwordx4 {vr(LV[m]+rg)}, {sr(S_W if m == 0 else S_WJ,4)}, {sr(so)} offen offset:{rg*1024} lds", f"w{c}")
    NPRE = opts.get("npre", 2)
    if opts.get("lst"): stamp(18)
    for c in range(NPRE): lw(c)
    if opts.get("lst"): stamp(19)
    kv_setup(False); rot_setup(); tg_setup(1)
    tag_setup()
    nxt = NPRE
    for c in range(8):
        a.wait_vm(f"w{c}")
        if opts.get("lst"): stamp(20 + c) if c < 4 else None
        a("s_barrier")
        if opts.get("lst"): stamp(24 + c)
        k = 0
        while nxt <= min(7, c + 3) and k < 2:
            lw(nxt); nxt += 1; k += 1
        if c == max(C_TG, 5):
            tg_loads()
            a.vm += ["tg"] * 16
    tg_finish("L_tg1", 1)
    stamp(4)
    a("""s_barrier
         s_branch L_kv01""")

    a.label("L_a23")
    a.vm = []
    a(f"""s_setprio 3
          s_sub_u32 {sr(S_T1)}, {sr(S_WAVE)}, 8
          s_lshl_b32 {sr(S_T2)}, {sr(S_T1)}, 8
          s_xor_b32 {sr(S_T0)}, {sr(S_T0)}, {sr(S_T2)}
          s_lshl_b32 {sr(S_T1)}, {sr(S_T1)}, 14
          s_add_u32 {sr(S_T1)}, {sr(S_T1)}, {L_X}
          s_waitcnt lgkmcnt(0)
          s_mov_b32 {sr(S_X)}, {sr(S_KA+0)}
          s_mov_b32 {sr(S_X+1)}, {sr(S_KA+1)}
          s_load_dword {sr(S_TAG)}, {sr(S_KA+22,2)}, {WS_E}""")
    tag_setup()
    XB = opts.get("xb", 0)
    for c in range(XB): a("s_barrier")
    for i in range(3):
        a(f"""s_add_u32 {sr(S_T3)}, {sr(S_RGJ)}, {i+1}
              s_and_b32 {sr(S_T3)}, {sr(S_T3)}, 3
              s_lshl_b32 {sr(S_T2)}, {sr(S_T3)}, 10
              s_add_u32 {sr(S_U0)}, {sr(S_T2)}, {sr(S_T1)}
              s_lshl_b32 {sr(S_T2)}, {sr(S_T3)}, 14
              s_add_u32 {sr(S_U1)}, {sr(S_T2)}, {sr(S_T0)}""")
        if i > 0 or XB == 0 or True:
            a("s_barrier")
        for k in range(4):
            a(f"s_add_u32 m0, {sr(S_U0)}, {k*4096 - (k%2)*64}")
            a(f"s_xor_b32 {sr(S_U1)}, {sr(S_U1)}, 128" if k == 2 else "s_nop 0")
            a(f"buffer_load_dwordx4 {vr(V_XOFF)}, {sr(S_X,4)}, {sr(S_U1)} offen offset:{(k%2)*64} lds")
        if i == opts.get("kpf", 1):
            srd(S_WOB, 2, 0x180000)
            a(f"""v_lshrrev_b32 {vr(V_T0)}, 3, {vr(V_LANE)}
                  v_mul_u32_u24 {vr(V_T0)}, 3072, {vr(V_T0)}
                  v_and_b32 {vr(V_T1)}, 7, {vr(V_LANE)}
                  v_lshl_add_u32 {vr(V_T0)}, {vr(V_T1)}, 7, {vr(V_T0)}
                  s_mul_i32 {sr(S_T2)}, s2, 6144
                  s_sub_u32 {sr(S_T3)}, {sr(S_WAVE)}, 9
                  s_lshl_b32 {sr(S_T3)}, {sr(S_T3)}, 10
                  s_add_u32 {sr(S_T2)}, {sr(S_T2)}, {sr(S_T3)}
                  s_mov_b64 exec, 0xffff
                  buffer_load_dword {vr(V_FLG)}, {vr(V_T0)}, {sr(S_WOB,4)}, {sr(S_T2)} offen
                  s_mov_b64 exec, -1""")
    assert XB == 0
    kv_setup(); rot_setup(); foff_setup()
    def stageB():
        kv_sample()
        a("s_waitcnt vmcnt(0)")
        kv_spin("L_skvB", False)
        stamp(5)
        kv_dma("L_kvdB", 8, 12)
        a(f"""s_or_b32 {sr(S_T0)}, s2, {sr(S_RT)}
              s_cmp_lg_u32 {sr(S_T0)}, 0
              s_cbranch_scc1 L_noep
              s_mov_b32 {sr(S_T0)}, {WS_E}""")
        flag_store(S_T0)
        a.label("L_noep")
        a.vm = []
    ES = opts.get("es", 5)
    for c in range(3, ES + 1):
        if c == 4: a("s_waitcnt vmcnt(0)")
        a("s_barrier")
    bars_ = {}
    st = -1
    for c in range(ES + 1, 8):
        bars_[st] = bars_.get(st, 0) + 1
        st = 1 if st < 0 else st + opts.get("esp", 1)
    ne, n2 = opts.get("ne", 6), opts.get("n2", 11)
    assert n2 >= ne + 4
    bars_[ne] = bars_.get(ne, 0) + 1
    bars_[n2] = bars_.get(n2, 0) + 1
    kv_pass(bars_, {ne: stageB})

    a.label("L_kvend")
    stamp(12)
    a(f"""v_add_u32 {vr(V_XA0)}, {sr(S_KM)}, {vr(V_L16)}
          s_nop 8
          s_cmp_lt_u32 {sr(S_AUX)}, 2
          s_cbranch_scc1 L_kcvt""")
    phi(KACC[0], 32, 56)
    a(f"""s_cmp_eq_u32 {sr(S_AUX)}, 2
          s_cselect_b32 {sr(S_WOA)}, {sr(S_KA+4)}, {sr(S_KA+14)}
          s_cselect_b32 {sr(S_WOA+1)}, {sr(S_KA+5)}, {sr(S_KA+15)}
          s_mov_b32 {sr(S_WOA+2)}, 0x80000
          s_mov_b32 {sr(S_WOA+3)}, 0x20000
          v_lshlrev_b32 {vr(V_T0)}, 7, {vr(V_LANE)}
          s_lshl_b32 {sr(S_T0)}, s2, 11
          s_mov_b64 exec, 0xffff
          buffer_load_dword {vr(V_FLG)}, {vr(V_T0)}, {sr(S_WOA,4)}, {sr(S_T0)} offen
          s_mov_b64 exec, -1""")
    a.label("L_kcvt")
    for f in range(4):
        for i in range(4):
            a(f"v_cvt_pk_bf16_f32 {vr(56+4*f+i)}, {vr(KACC[0]+8*f+2*i)}, {vr(KACC[0]+8*f+2*i+1)}")
        a(f"ds_write_b128 {vr(V_XA0)}, {vr(56+4*f,4)} offset:{f*1024}")
    a(f"""v_add_u32 {vr(V_T0)}, {sr(S_KM)}, {vr(V_L4)}
          v_add_u32 {vr(V_T1)}, {L_HI}, {vr(V_L4)}
          s_waitcnt lgkmcnt(0)
          ds_write_b32 {vr(V_T0)}, {vr(V_TAG)} offset:4096
          s_mov_b32 {sr(S_SPIN)}, 0""")
    stamp(13)
    a.label("L_rdv")
    for k in range(4):
        a(f"ds_read_b32 {vr(72+k)}, {vr(V_T1)} offset:{4096 + k*8192}")
    a(f"""s_waitcnt lgkmcnt(0)
          v_min3_u32 {vr(76)}, {vr(72)}, {vr(73)}, {vr(74)}
          v_max3_u32 {vr(77)}, {vr(72)}, {vr(73)}, {vr(74)}
          v_min3_u32 {vr(76)}, {vr(76)}, {vr(75)}, {vr(V_TAG)}
          v_max3_u32 {vr(77)}, {vr(77)}, {vr(75)}, {vr(V_TAG)}
          v_cmp_ne_u32 vcc, {vr(76)}, {vr(77)}
          s_cbranch_vccz L_rdv_ok
          s_sleep 4
          s_add_u32 {sr(S_SPIN)}, {sr(S_SPIN)}, 1
          s_cmp_lt_u32 {sr(S_SPIN)}, 1000000
          s_cbranch_scc1 L_rdv""")
    a.label("L_rdv_ok")
    a(f"""s_cmp_lt_u32 {sr(S_AUX)}, 2
          s_cbranch_scc1 L_a01b""")
    rot_setup()
    kv_dma("L_kvdC", 32, 16)
    a("s_waitcnt vmcnt(0)")
    stamp(14)
    if ts: ts_out()
    a("s_endpgm")

    a.label("L_a01b")
    HV, HK_, HKV, HZ, HON = 56, 72, 16, 32, 52
    a(f"""s_lshl_b32 {sr(S_T0)}, {sr(S_AUX)}, 11
          s_add_u32 {sr(S_T0)}, {sr(S_T0)}, {L_HI}
          v_add_u32 {vr(V_T1)}, {sr(S_T0)}, {vr(V_L16)}""")
    for f in range(4):
        off = (f // 2) * 8192 + (f % 2) * 1024
        a(f"ds_read_b128 {vr(HV+4*f,4)}, {vr(V_T1)} offset:{off}")
        a(f"ds_read_b128 {vr(HK_+4*f,4)}, {vr(V_T1)} offset:{16384 + off}")
    for i in range(4):
        a(f"v_mov_b32 {vr(HON+i)}, {sr(S_ONES)}")
    a(f"""v_bfe_u32 {vr(V_T2)}, {vr(V_LANE)}, 3, 1
          v_lshlrev_b32 {vr(V_T2)}, 11, {vr(V_T2)}
          v_and_b32 {vr(V_T3)}, 3, {vr(V_LANE)}
          v_lshl_add_u32 {vr(V_T2)}, {vr(V_T3)}, 9, {vr(V_T2)}
          v_bfe_u32 {vr(V_T3)}, {vr(V_LANE)}, 4, 1
          v_lshl_add_u32 {vr(V_T2)}, {vr(V_T3)}, 3, {vr(V_T2)}
          v_bfe_u32 {vr(V_T3)}, {vr(V_LANE)}, 2, 1
          v_lshl_add_u32 {vr(V_T2)}, {vr(V_T3)}, 2, {vr(V_T2)}
          s_waitcnt lgkmcnt(0)""")
    for f in range(4):
        a(f"v_mfma_f32_32x32x16_bf16 {vr(HKV,16)}, {vr(HK_+4*f,4)}, {vr(HV+4*f,4)}, {'0' if f==0 else vr(HKV,16)}")
        a(f"v_mfma_f32_32x32x16_bf16 {vr(HZ,16)}, {vr(HON,4)}, {vr(HK_+4*f,4)}, {'0' if f==0 else vr(HZ,16)}")
    a(f"""s_lshl_b32 {sr(S_T0)}, {sr(S_HGK)}, 1
          s_add_u32 {sr(S_T0)}, {sr(S_T0)}, {sr(S_AUX)}
          s_lshl_b32 {sr(S_T0)}, {sr(S_T0)}, 12
          s_add_u32 {sr(S_T0)}, {sr(S_T0)}, {WS_ACC}
          s_nop 7""")
    for r in range(8):
        a(f"v_cndmask_b32 {vr(HKV+r)}, {vr(HKV+8+r)}, {vr(HKV+r)}, {sr(S_VMASK,2)}")
    for r in range(8):
        a(f"buffer_atomic_add_f32 {vr(HKV+r)}, {vr(V_L4)}, {sr(S_WS,4)}, {sr(S_T0)} offen offset:{r*512} sc1")
    a(f"""s_mov_b32 exec_hi, 0
          buffer_atomic_add_f32 {vr(HZ)}, {vr(V_T2)}, {sr(S_WS,4)}, {sr(S_T0)} offen offset:256 sc1
          s_mov_b32 exec_hi, -1
          s_lshl_b32 {sr(S_T3)}, {sr(S_HGK)}, 8
          s_lshl_b32 {sr(S_T0)}, {sr(S_QB)}, 1
          s_add_u32 {sr(S_T0)}, {sr(S_T0)}, {sr(S_AUX)}
          s_lshl_b32 {sr(S_T0)}, {sr(S_T0)}, 2
          s_add_u32 {sr(S_T0)}, {sr(S_T0)}, {sr(S_T3)}
          s_add_u32 {sr(S_T0)}, {sr(S_T0)}, {WS_FA}
          s_lshl_b32 {sr(S_T3)}, {sr(S_HGQ)}, 8
          s_add_u32 {sr(S_T3)}, {sr(S_T3)}, {WS_FA}
          s_waitcnt vmcnt(0)""")
    flag_store(S_T0)
    stamp(15)
    a(f"""s_cmp_eq_u32 {sr(S_AUX)}, 1
          s_cbranch_scc1 L_a1b
          s_barrier
          s_mov_b32 {sr(S_SPIN)}, 0""")
    a.label("L_sfa")
    a(f"""buffer_load_dword {vr(V_FLG)}, {vr(V_L4)}, {sr(S_WS,4)}, {sr(S_T3)} offen sc1
          s_waitcnt vmcnt(0)
          v_cmp_ne_u32 vcc, {vr(V_FLG)}, {vr(V_TAG)}
          s_cbranch_vccz L_sfa_ok
          s_add_u32 {sr(S_SPIN)}, {sr(S_SPIN)}, 1
          s_cmp_lt_u32 {sr(S_SPIN)}, 100000
          s_cbranch_scc1 L_sfa""")
    a.label("L_sfa_ok")
    stamp(16)
    if ts: ts_out()
    a("""s_barrier
         s_endpgm""")

    a.label("L_a1b")
    srd(S_WOA, 4, 0x80000)
    srd(S_WOB, 14, 0x80000)
    omap()
    swz64(V_WOFF, 1024)
    stamp(14)
    a("s_barrier")
    def wodma(lbl, srdw, r0, nrows, dst):
        a(f"""s_lshl_b32 {sr(S_T0)}, {sr(S_NS)}, 7
              s_add_u32 {sr(S_T0)}, {sr(S_T0)}, {r0*1024}
              s_mov_b32 m0, {dst}""")
        a.label(lbl)
        a("s_waitcnt vmcnt(40)")
        for i in range(4):
            a(f"buffer_load_dwordx4 {vr(V_WOFF)}, {sr(srdw,4)}, {sr(S_T0)} offen lds")
            a(f"""s_add_u32 m0, m0, 1024
                  s_add_u32 {sr(S_T0)}, {sr(S_T0)}, 8192""")
        a(f"""s_cmp_lt_u32 m0, {dst + nrows*128}
              s_cbranch_scc1 {lbl}""")
    wodma("L_woa", S_WOA, 0, 512, 0)
    stamp(15)
    a("s_barrier")
    wodma("L_wob0", S_WOB, 0, 256, L_HI)
    a("s_waitcnt vmcnt(0)")
    stamp(16)
    a("s_barrier")
    wodma("L_wob1", S_WOB, 256, 256, 65536)
    a("s_waitcnt vmcnt(0)")
    if ts:
        stamp(17)
        ts_out()
    a("s_endpgm")
    a.label("L_codeend")

    head = open("cdna_kernels/" + NAME + ".s.ref").read().split("\n")
    hdr = [l for l in head if l.startswith(";") and "@launch" not in l and "Override" not in l and "grid=ceil" not in l]
    out = "\n".join(hdr) + f"\n; @launch grid=(256,1,1) block=({NWAVE*64},1,1) lds={LDS_SIZE}\n"
    out += f""".amdgcn_target "amdgcn-amd-amdhsa--gfx950"
.text
.globl {NAME}_kernel
.p2align 8
.type {NAME}_kernel,@function
"""
    out += a.text()
    out += f""".section .rodata,"a"
.p2align 6
.amdhsa_kernel {NAME}_kernel
  .amdhsa_next_free_vgpr {NVGPR}
  .amdhsa_next_free_sgpr 102
  .amdhsa_accum_offset {NVGPR}
  .amdhsa_group_segment_fixed_size 0
  .amdhsa_kernarg_size 96
  .amdhsa_user_sgpr_count 2
  .amdhsa_user_sgpr_kernarg_segment_ptr 1
  .amdhsa_system_sgpr_workgroup_id_x 1
.end_amdhsa_kernel
"""
    return out

if __name__ == "__main__":
    opts = {}
    outp = "cdna_kernels/" + NAME + ".s"
    for arg in sys.argv[1:]:
        if arg.startswith("-o"):
            outp = arg[2:]
        elif "=" in arg:
            k, v = arg.split("=")
            opts[k] = int(v)
        else:
            opts[arg] = True
    open(outp, "w").write(gen(opts))
    print("wrote", outp)
```
